```python
import torch

def _softmax(x, axis=-1):
    return torch.softmax(x, dim=axis)
def _gelu(x):
    return torch.nn.functional.gelu(x, approximate="tanh")
def _silu(x):
    return torch.nn.functional.silu(x)
def _sigmoid(x):
    return torch.sigmoid(x)
def _layernorm(x, axis=-1, eps=1e-5):
    m = x.mean(dim=axis, keepdim=True)
    v = x.var(dim=axis, keepdim=True, unbiased=False)
    return (x - m) / torch.sqrt(v + eps)
def _scatter_add(tgt, idx, src, axis=0):
    return tgt.clone().index_add_(axis, idx, src)
def _segment_sum(src, seg, n):
    out = torch.zeros((n,) + src.shape[1:], dtype=src.dtype)
    return out.index_add_(0, seg, src)
def _pad(x, pw):
    flat = tuple(v for pair in reversed(pw) for v in pair)
    return torch.nn.functional.pad(x, flat)

kernel_name = 'concat_heads__ssm_conv_h3__linear_attn_block__prompt'

def setup_inputs():

    _w = (lambda a: (lambda t: t.to(torch.bfloat16) if t.is_floating_point() else t)(torch.as_tensor(a)))
    def _A_setup():
        B, S, D = 1, 2048, 640
        ks = 4
        return {
            "q": _w((lambda *s: torch.randn(*s, dtype=torch.bfloat16) * 0.05)(B, S, D)),
            "k": _w((lambda *s: torch.randn(*s, dtype=torch.bfloat16) * 0.4)(B, S, D)),
            "v": _w((lambda *s: torch.randn(*s, dtype=torch.bfloat16) * 0.4)(B, S, D)),
            "shift_k": _w((lambda *s: torch.randn(*s, dtype=torch.bfloat16) * 0.4)(D, ks) * 0.5),
            "ssm_k": _w((lambda *s: torch.randn(*s, dtype=torch.bfloat16) * 0.4)(D, S) * (1.0 / S ** 0.5)),
            "ssm_D": _w((lambda *s: torch.randn(*s, dtype=torch.bfloat16) * 0.4)(D)),
        }
    _A_in = _A_setup()

    def _B_setup():
        B, S, D = 1, 2048, 640
        return {
            "x": _w((lambda *s: torch.randn(*s, dtype=torch.bfloat16) * 0.05)(B, S, D)),
            "wqkv": _w((lambda *s: torch.randn(*s, dtype=torch.bfloat16) * 0.8)(D, 3 * D)),
            "wo": _w((lambda *s: torch.randn(*s, dtype=torch.bfloat16) * 0.05)(D, D)),
        }
    _B_in = _B_setup()

    return {
        "A_q": _A_in["q"],
        "A_k": _A_in["k"],
        "A_v": _A_in["v"],
        "A_shift_k": _A_in["shift_k"],
        "A_ssm_k": _A_in["ssm_k"],
        "A_ssm_D": _A_in["ssm_D"],
        "B_x": _B_in["x"],
        "B_wqkv": _B_in["wqkv"],
        "B_wo": _B_in["wo"],
    }

def reference(A_q, A_k, A_v, A_shift_k, A_ssm_k, A_ssm_D, B_x, B_wqkv, B_wo):
    def _A_ref(q, k, v, shift_k, ssm_k, ssm_D):
        B, S, D = q.shape
        ks = shift_k.shape[-1]
        k_pad = _pad(k, ((0, 0), (ks - 1, 0), (0, 0)))
        k_shift = torch.zeros_like(k)
        for t in range(ks):
            k_shift = k_shift + k_pad[:, t:t + S, :] * shift_k[:, ks - 1 - t][None, None, :]
        kv = k_shift * v
        L = 2 * S
        kv_pad = _pad(kv, ((0, 0), (0, S), (0, 0)))
        kf_pad = _pad(ssm_k, ((0, 0), (0, S)))
        kv_f = (lambda x, axes=(-2,-1): torch.fft.rfft2(x.float(), dim=axes))(kv_pad[:, None, :, :], axes=(1, 2))
        kf_f = (lambda x, axes=(-2,-1): torch.fft.rfft2(x.float(), dim=axes))(kf_pad[:, None, :], axes=(1, 2))
        kf_f = (lambda x, *d: x.permute(*d))(kf_f, 1, 2, 0)
        y_f = kv_f * kf_f[None, :, :, :]
        y = (lambda x, s, axes=(-2,-1): torch.fft.irfft2(x, s=s, dim=axes).to(torch.bfloat16))(y_f, (1, L), axes=(1, 2))[:, 0, :S, :]
        y = y + kv * ssm_D[None, None, :]
        return q * y

    def _B_ref(x, wqkv, wo):
        B, S, D = x.shape
        H = 32; Dh = D // H
        qkv = (lambda x, *d: x.permute(*d))((x @ wqkv).reshape(B, S, 3, H, Dh), 2, 0, 3, 1, 4)
        q, k, v = qkv[0], qkv[1], qkv[2]
        phi = lambda t: torch.where(t > 0, t + 1, torch.exp(t)) + 1e-6
        pq, pk = phi(q), phi(k)
        kv = torch.einsum("bhsd,bhse->bhde", pk, v)
        z = torch.einsum("bhsd->bhd", pk)
        num = torch.einsum("bhqd,bhde->bhqe", pq, kv)
        den = torch.einsum("bhqd,bhd->bhq", pq, z)[..., None] + 1e-6
        o = num / den
        return (lambda x, *d: x.permute(*d))(o, 0, 2, 1, 3).reshape(B, S, D) @ wo

    a = _A_ref(A_q, A_k, A_v, A_shift_k, A_ssm_k, A_ssm_D)
    b = _B_ref(B_x, B_wqkv, B_wo)
    return torch.concatenate([a, b], axis=-1)
```

```python
import re

class Asm:
    def __init__(self):
        self.lines = []
    def __call__(self, s):
        for ln in s.split("\n"):
            ln = ln.strip()
            if ln: self.lines.append(ln)
    def label(self, n): self.lines.append(n + ":")
    def extend(self, ls):
        for l in ls: self(l)

def interleave(main, fill, start=0, end=None, per=None):
    n = len(main); end = n if end is None else end
    slots = end - start
    out = []; k = 0; nf = len(fill)
    for i, m in enumerate(main):
        out.append(m)
        if start <= i < end:
            tgt = ((i - start + 1) * nf + slots - 1) // slots if per is None else min(nf, (i - start + 1) * per)
            while k < tgt:
                f = fill[k]; k += 1
                out.extend(f if isinstance(f, list) else [f])
    while k < nf:
        f = fill[k]; k += 1
        out.extend(f if isinstance(f, list) else [f])
    return out

_R = re.compile(r"^(-|abs\()?([vas])(?:(\d+)|\[(\d+):(\d+)\])\)?$")
def regs(tok):
    tok = tok.strip()
    if tok in ("vcc",): return {("s", 106), ("s", 107)}
    if tok == "vcc_lo": return {("s", 106)}
    if tok == "vcc_hi": return {("s", 107)}
    if tok == "exec": return {("s", 126), ("s", 127)}
    if tok == "exec_lo": return {("s", 126)}
    if tok == "exec_hi": return {("s", 127)}
    if tok == "m0": return {("s", 124)}
    m = _R.match(tok)
    if not m: return set()
    k = m.group(2)
    if m.group(3) is not None: return {(k, int(m.group(3)))}
    return {(k, i) for i in range(int(m.group(4)), int(m.group(5)) + 1)}

TRANS = ("v_exp_f32", "v_log_f32", "v_rcp_f32", "v_rsq_f32", "v_sqrt_f32", "v_sin_f32", "v_cos_f32", "v_rcp_iflag_f32")
class I:
    def __init__(self, text):
        self.text = text
        t = text.split(";")[0].strip()
        p = t.split(None, 1)
        self.mn = p[0]
        ops = []
        if len(p) > 1:
            for o in p[1].split(","):
                o = o.strip()
                ops.append(o.split()[0] if o else o)
            self.mods = p[1]
        else: self.mods = ""
        self.ops = ops
        mn = self.mn
        self.w = set(); self.r = set(); self.srcc = set(); self.srcab = set(); self.stdata = set()
        self.kind = "other"
        R = [regs(o) for o in ops]
        if mn.startswith("v_mfma"):
            self.kind = "mfma"; self.w = R[0]; self.srcab = R[1] | R[2]; self.srcc = R[3]; self.r = self.srcab | self.srcc
            self.passes = 8 if "32x32" in mn else 4
        elif mn.startswith("v_"):
            self.kind = "valu"
            if mn.startswith("v_cmp"):
                self.w = R[0]; self.r = set().union(*R[1:])
                if mn.startswith("v_cmpx"): self.w |= regs("exec")
            elif mn.startswith(("v_add_co", "v_sub_co", "v_addc_co", "v_subb_co")):
                self.w = R[0] | R[1]; self.r = set().union(*R[2:])
            elif mn.startswith("v_permlane") and "swap" in mn:
                self.w = R[0] | R[1]; self.r = R[0] | R[1]
            else:
                self.w = R[0]; self.r = set().union(*R[1:]) if len(R) > 1 else set()
                if mn.startswith(("v_fmac", "v_dot2c", "v_pk_fmac", "v_writelane")): self.r |= R[0]
        elif mn.startswith("ds_"):
            self.kind = "ds"
            if mn.startswith(("ds_read", "ds_bpermute", "ds_swizzle")) or "_rtn" in mn:
                self.w = R[0]; self.r = set().union(*R[1:])
            else:
                self.r = set().union(*R)
        elif mn.startswith(("buffer_", "global_")):
            self.kind = "vmem"
            lds = bool(re.search(r"\blds\b", self.mods)) or "_lds_" in mn
            self.lds = lds
            if mn in ("buffer_wbl2", "buffer_inv"): pass
            elif lds:
                self.r = set().union(*R) | regs("m0")
            elif "_load" in mn:
                self.w = R[0]; self.r = set().union(*R[1:])
            elif mn.startswith("buffer_"):
                self.r = set().union(*R); self.stdata = R[0] if len(R[0]) >= 3 else set()
                if "atomic" in mn and " sc0" in self.mods: self.w = R[0]
            else:
                if "atomic" in mn and " sc0" in self.mods:
                    self.w = R[0]; self.r = set().union(*R[1:])
                else:
                    self.r = set().union(*R); self.stdata = R[1] if len(R[1]) >= 3 else set()
        elif mn.startswith("s_"):
            self.kind = "salu"
            if mn.startswith(("s_cmp", "s_cbranch", "s_branch", "s_waitcnt", "s_barrier", "s_nop", "s_endpgm", "s_sleep", "s_setprio", "s_bitcmp")):
                self.r = set().union(*R) if R else set()
            else:
                self.w = R[0] if R else set(); self.r = set().union(*R[1:]) if len(R) > 1 else set()
                if "saveexec" in mn: self.w |= regs("exec")
    def states(self):
        if self.mn == "s_nop": return int(self.ops[0], 0) + 1
        return 1

def need(p, c):
    n = 0
    vw = {x for x in p.w if x[0] != "s"}; sw = {x for x in p.w if x[0] == "s"}
    if p.kind == "valu":
        isdot = p.mn.startswith("v_dot")
        if c.kind == "mfma" and vw & c.r: n = max(n, 3 if isdot else 2)
        if c.kind == "mfma" and sw & regs("exec"): n = max(n, 4)
        if c.kind == "valu":
            if sw & c.r: n = max(n, 4 if c.mn.startswith(("v_readlane", "v_writelane", "v_div_fmas")) else 2)
            if sw & regs("vcc") and c.mn.startswith("v_cndmask") : n = max(n, 2)
            if sw & regs("exec") and c.mn.startswith(("v_readlane", "v_readfirstlane", "v_writelane", "v_permlane")): n = max(n, 4)
            if sw & regs("exec") and "dpp" in c.mn: n = max(n, 5)
            if vw & c.r:
                if c.mn.startswith(("v_readlane", "v_readfirstlane")): n = max(n, 1)
                if c.mn.startswith("v_permlane") or "dpp" in c.mn: n = max(n, 2)
                if p.mn.startswith(TRANS) and not c.mn.startswith(TRANS): n = max(n, 1)
                if "sdwa" in p.mn or "op_sel" in p.mods: n = max(n, 1)
            if isdot and (vw & (c.r | c.w)):
                same = c.mn == p.mn
                if same:
                    ab = regs(c.ops[1]) | regs(c.ops[2])
                    if vw & ab: n = max(n, 3)
                else: n = max(n, 3)
        elif isdot and vw & (c.r | c.w): n = max(n, 3)
        if c.kind == "vmem" and sw & c.r: n = max(n, 5)
        if c.kind == "salu" and sw & c.r: n = max(n, 1)
    if p.kind == "mfma":
        big = {4: 8, 8: 12}[p.passes]; ovl = {4: 6, 8: 10}[p.passes]; war = {4: 3, 8: 7}[p.passes]
        if c.kind == "mfma":
            if p.w & c.srcab: n = max(n, big)
            if p.w & c.srcc and not (p.w == c.srcc and p.mn == c.mn): n = max(n, big)
            if p.w & c.w and not (p.w == c.srcc): n = max(n, ovl)
        else:
            if p.w & (c.r | c.w): n = max(n, big)
            if c.kind == "valu" and p.srcc & c.w: n = max(n, war)
    if p.kind == "vmem" and p.stdata and (p.stdata & c.w): n = max(n, 2)
    if p.kind == "salu" and (sw & regs("m0")) and c.kind == "vmem" and getattr(c, "lds", False): n = max(n, 1)
    return n

def fix_hazards(lines, verbose=False):
    out = []; hist = []; ins = 0
    for ln in lines:
        t = ln.split(";")[0].strip()
        if not t or t.endswith(":") or t.startswith("."):
            out.append(ln); continue
        c = I(ln)
        dist = 0; req = 0
        for p in reversed(hist):
            nd = need(p, c) - dist
            if nd > req: req = nd; why = p
            dist += p.states()
            if dist > 20: break
        if req > 0:
            nop = I(f"s_nop {req-1}")
            out.append(f"s_nop {req-1}"); hist.append(nop); ins += 1
            if verbose: print(f"nop {req}: [{why.text}] -> [{c.text}]")
        out.append(ln); hist.append(c)
        if len(hist) > 40: hist = hist[-30:]
    return out

_WC = re.compile(r"(vmcnt|lgkmcnt)\((\d+)\)")
def insert_waits(lines, slack_ds=20, verbose=False):
    out = []
    vm = []
    lg = []
    idx = 0; stack = []
    for ln in lines:
        t = ln.split(";")[0].strip()
        if not t or t.endswith(":") or t.startswith("."):
            out.append(ln); continue
        if t == "PUSHSTATE": stack.append((list(vm), list(lg))); continue
        if t == "POPSTATE": vm, lg = stack.pop(); continue
        if t.startswith("WAITTAG"):
            names = t.split()[1:]
            last = max((i for i, e in enumerate(vm) if e[2] in names), default=-1)
            w = []
            if last >= 0:
                n = min(len(vm) - 1 - last, 63); w.append(f"vmcnt({n})"); vm = vm[len(vm) - n:] if n else []
            if "lgkm0" in names: w.append("lgkmcnt(0)"); lg = []
            if w: out.append("s_waitcnt " + " ".join(w))
            continue
        c = I(ln); idx += 1
        if c.mn == "s_waitcnt":
            for k, n in _WC.findall(t):
                n = int(n)
                if k == "vmcnt": vm = vm[len(vm) - n:] if n < len(vm) and n > 0 else ([] if n == 0 else vm)
                else: lg = lg[len(lg) - n:] if n < len(lg) and n > 0 else ([] if n == 0 else lg)
            out.append(ln); continue
        if c.mn == "s_endpgm" or c.mn == "s_branch":
            out.append(ln); vm = []; lg = []; continue
        touch = c.r | c.w
        w = []
        last = max((i for i, e in enumerate(vm) if e[0] & touch), default=-1)
        if last >= 0:
            n = len(vm) - 1 - last
            n = min(n, 63); w.append(f"vmcnt({n})"); vm = vm[len(vm) - n:] if n else []
        last = max((i for i, (d, _) in enumerate(lg) if d & touch), default=-1)
        if last >= 0:
            while last + 1 < len(lg) and idx - lg[last + 1][1] >= slack_ds: last += 1
            n = min(len(lg) - 1 - last, 15); w.append(f"lgkmcnt({n})"); lg = lg[len(lg) - n:] if n else []
        if w: out.append("s_waitcnt " + " ".join(w))
        out.append(ln)
        if c.kind == "vmem" and c.mn not in ("buffer_wbl2x",): vm.append((set(c.w), idx, (re.search(r"tag=(\w+)", ln) or [None, None])[1]))
        elif c.kind == "ds": lg.append((set(c.w), idx))
        elif c.mn.startswith(("s_load", "s_memtime", "s_memrealtime", "s_buffer_load")):
            assert not lg or True
    return out
```

```python
import sys
sys.path.insert(0, "dev")
from asmlib import *

KN = "concat_heads__ssm_conv_h3__linear_attn_block__prompt"
WS_FLAGS = 0x0000
WS_KVCNT = WS_FLAGS
WS_QFLAG = WS_FLAGS + 1024
WS_PREPC = WS_FLAGS + 9216
WS_KV    = 0x2800
WS_ZERO_BYTES = 0x2800 + 32 * 1680
WS_UT    = 0x100000
WS_QT    = 0x400000
WS_PQ    = 0x700000
WS_STAMP = 0xA00000
WS_SIZE  = 0xB00000
LDS_BYTES = 81920
LOG2E = 0x3FB8AA3B
EPS = 0x358637BD

P_Q, P_K, P_V, P_SH, P_H, P_D, P_X, P_W, P_WO, P_OUT, P_DBG, P_WS = [4 + 2 * i for i in range(12)]
SRD0, SRD1, SRD2, SRD3, SRD4, SRDWS = 28, 32, 36, 40, 44, 48
SW = 3

def srd(a, d, p, nbytes):
    a(f"s_mov_b32 s{d}, s{p}\n s_and_b32 s{d+1}, s{p+1}, 0xffff\n s_mov_b32 s{d+2}, {nbytes}\n s_mov_b32 s{d+3}, 0x20000")
def sq(d): return f"s[{d}:{d+3}]"
def v4(r): return f"v[{r}:{r+3}]"
def v2(r): return f"v[{r}:{r+1}]"

class Cfg:
    fused = False
    stamps = False
cfg = Cfg()

NSTAMP = 8
def stamp(a, i):
    if cfg.stamps:
        a(f"s_memrealtime s[{80+2*i}:{81+2*i}]\n s_waitcnt lgkmcnt(0)")
def stamps_out(a, base, tag):
    if not cfg.stamps: return
    a("s_waitcnt vmcnt(0) lgkmcnt(0)")
    stamp(a, NSTAMP - 1)
    a(f"s_getreg_b32 s52, hwreg(HW_REG_HW_ID)\n s_getreg_b32 s53, hwreg(HW_REG_XCC_ID)")
    for i in range(NSTAMP): a(f"v_mov_b32 v{16+i}, s{80+2*i}")
    a(f"v_mov_b32 v24, s52\n v_mov_b32 v25, s53\n v_mov_b32 v26, {tag}\n v_mov_b32 v27, s2")
    a(f"s_lshl_b32 s54, s2, 8\n s_lshl_b32 s55, s{SW}, 6\n s_add_u32 s54, s54, s55\n s_add_u32 s54, s54, {WS_STAMP + base}")
    a(f"v_mov_b32 v28, 0\n s_mov_b64 exec, 1")
    for i in range(3): a(f"buffer_store_dwordx4 {v4(16+4*i)}, v28, {sq(SRDWS)}, s54 offen offset:{16*i}")
    a("s_mov_b64 exec, -1")

def prologue(a, name, nwg):
    a.label(name)
    a(f"""s_load_dwordx16 s[4:19], s[0:1], 0
    s_load_dwordx8 s[20:27], s[0:1], 64
    s_cmp_ge_u32 s2, {nwg}
    s_cbranch_scc1 L_END_{name}
    v_and_b32 v1, 63, v0
    v_lshrrev_b32 v2, 6, v0
    s_getpc_b64 s[52:53]""")
    a.label(f"L_PC_{name}")
    a(f"v_readfirstlane_b32 s{SW}, v2")
    if cfg.stamps:
        for i in range(NSTAMP): a(f"s_mov_b32 s{80+2*i}, 0")
        a("s_memrealtime s[80:81]")
    a(f"""s_lshr_b32 s54, s2, 3
    s_and_b32 s54, s54, 1
    s_lshl_b32 s54, s54, 15
    v_lshlrev_b32 v3, 7, v0
    v_add_u32 v3, s54, v3
    s_sub_u32 s52, s52, L_PC_{name}-L_CODE_BEGIN
    s_subb_u32 s53, s53, 0
    v_min_u32 v3, L_CODE_END-L_CODE_BEGIN-4, v3
    global_load_dword v15, v3, s[52:53]
    s_waitcnt lgkmcnt(0)""")
    srd(a, SRDWS, P_WS, WS_SIZE)

def dma_offsets(a, vbase, pitch, s_seg0, s_seg1, row_shift, t0, t1, t2, s_rowbase=None):
    for i in range(5):
        assert all(((64 * i + l) * 3277) >> 16 == (64 * i + l) // 20 for l in range(64))
        a(f"""v_add_u32 v{t0}, {64*i}, v1
        v_mul_u32_u24 v{t1}, 3277, v{t0}
        v_lshrrev_b32 v{t1}, 16, v{t1}
        v_mul_u32_u24 v{t2}, 20, v{t1}
        v_sub_u32 v{t0}, v{t0}, v{t2}
        v_lshrrev_b32 v{t2}, {row_shift - 1}, v{t1}
        v_and_b32 v{t2}, 2, v{t2}
        v_xor_b32 v{t0}, v{t0}, v{t2}
        v_lshlrev_b32 v{t0}, 4, v{t0}
        v_mov_b32 v{t2}, s{s_seg0}
        v_mov_b32 v{vbase+i}, s{s_seg1}
        v_cmp_gt_u32 vcc, 160, v{t0}
        v_cndmask_b32 v{t2}, v{vbase+i}, v{t2}, vcc
        v_add_u32 v{t0}, v{t0}, v{t2}
        v_mul_u32_u24 v{t1}, {pitch}, v{t1}
        v_add_u32 v{vbase+i}, v{t0}, v{t1}""")

def phi(r, t):
    return [f"v_mul_f32 v{t}, s72, v{r}", f"v_max_f32 v{r}, s73, v{r}", f"v_exp_f32 v{t}, v{t} clamp", None, f"v_add_f32 v{r}, v{r}, v{t}"]

def phi_block(regs_, temps):
    out = []
    n = len(temps)
    for g in range(0, len(regs_), n):
        grp = regs_[g:g + n]
        for r, t in zip(grp, temps): out.append(f"v_mul_f32 v{t}, s72, v{r}")
        for r, t in zip(grp, temps): out.append(f"v_exp_f32 v{t}, v{t} clamp"); out.append(f"v_max_f32 v{r}, s73, v{r}")
        for r, t in zip(grp, temps): out.append(f"v_add_f32 v{r}, v{r}, v{t}")
    return out

def poll(a, name, s_off, target, srdq=SRDWS, vt=14, vz=13):
    a(f"v_mov_b32 v{vz}, 0\n s_mov_b32 s78, 0")
    a.label(f"L_POLL_{name}")
    a(f"""buffer_load_dword v{vt}, v{vz}, {sq(srdq)}, s{s_off} offen sc1
    s_add_u32 s78, s78, 1
    s_waitcnt vmcnt(0)
    v_readfirstlane_b32 s79, v{vt}
    s_cmp_ge_u32 s78, 0x40000
    s_cbranch_scc1 L_POLLX_{name}
    s_cmp_eq_u32 s79, {target}
    s_cbranch_scc1 L_POLLX_{name}
    s_sleep 2
    s_branch L_POLL_{name}""")
    a.label(f"L_POLLX_{name}")

def poll_zero_done(a, name):
    srd(a, SRD4, P_DBG, 256)
    a("s_mov_b32 s77, 0")
    poll(a, name, 77, 1, SRD4)

def signal(a, s_off):
    a(f"""s_waitcnt vmcnt(0)
    s_barrier
    s_cmp_lg_u32 s{SW}, 0
    s_cbranch_scc1 L_SIG_{signal.n}
    v_mov_b32 v13, 0
    v_mov_b32 v14, 1
    s_mov_b64 exec, 1
    buffer_atomic_add v14, v13, {sq(SRDWS)}, s{s_off} offen sc1
    s_mov_b64 exec, -1""")
    a.label(f"L_SIG_{signal.n}"); signal.n += 1
signal.n = 0

def role_zero(a):
    a("v_lshlrev_b32 v2, 4, v0\n v_mov_b32 v4, 0\n v_mov_b32 v5, 0\n v_mov_b32 v6, 0\n v_mov_b32 v7, 0")
    srd(a, SRD0, P_WS, WS_ZERO_BYTES)
    for i in range((WS_ZERO_BYTES + 4095) // 4096):
        a(f"s_mov_b32 s54, {4096*i}\n buffer_store_dwordx4 v[4:7], v2, {sq(SRD0)}, s54 offen sc1")
    srd(a, SRD4, P_DBG, 256)
    a(f"""s_waitcnt vmcnt(0)
    s_barrier
    s_cmp_lg_u32 s{SW}, 0
    s_cbranch_scc1 L_ZDONE
    v_mov_b32 v5, 1
    s_mov_b64 exec, 1
    buffer_atomic_add v5, v4, {sq(SRD4)}, 0 offen sc1
    s_mov_b64 exec, -1""")
    a.label("L_ZDONE")

G_ACC, G_B, G_X = 16, 96, 176
G_XL = 40960
def g_setup(a):
    a(f"""s_and_b32 s52, s56, 7
    s_lshr_b32 s53, s56, 3
    s_and_b32 s57, s52, 3
    s_lshl_b32 s57, s57, 2
    s_and_b32 s54, s53, 3
    s_add_u32 s57, s57, s54
    s_lshr_b32 s58, s52, 2
    s_mul_i32 s58, s58, 6
    s_lshr_b32 s54, s53, 2
    s_add_u32 s58, s58, s54""")
    srd(a, SRD0, P_X, 2048 * 1280)
    srd(a, SRD1, P_W, 640 * 3840)
    a(f"""s_mul_i32 s59, s58, 160
    s_add_u32 s60, s59, 1280
    s_add_u32 s61, s59, {2560-160}
    s_sub_u32 s59, s58, 8
    s_mul_i32 s59, s59, 320
    s_cmp_ge_u32 s58, 8
    s_cselect_b32 s60, s59, s60
    s_cselect_b32 s61, s59, s61
    s_mul_i32 s59, s{SW}, {8*3840}
    s_add_u32 s60, s60, s59
    s_add_u32 s61, s61, s59
    s_mul_i32 s62, s57, 3
    s_lshl_b32 s59, s58, 1
    s_add_u32 s62, s62, s59
    s_mul_i32 s59, s62, 205
    s_lshr_b32 s59, s59, 11
    s_mul_i32 s59, s59, 10
    s_sub_u32 s62, s62, s59
    s_lshl_b32 s64, s62, 7
    s_mul_i32 s63, s62, {64*3840}
    s_mul_i32 s65, s{SW}, 2560
    s_lshl_b32 s66, s{SW}, 12
    s_add_u32 s66, s66, {G_XL}
    s_and_b32 s67, s{SW}, 1
    s_lshl_b32 s67, s67, 1""")
    assert all((v * 205) >> 11 == v // 10 for v in range(70))
    a(f"v_mov_b32 v244, s60\n v_mov_b32 v245, s61")
    for i in range(3):
        a(f"""v_add_u32 v240, {64*i}, v1
        v_mul_u32_u24 v241, 3277, v240
        v_lshrrev_b32 v241, 16, v241
        v_mul_u32_u24 v242, 20, v241
        v_sub_u32 v240, v240, v242
        v_xor_b32 v240, s67, v240
        v_lshlrev_b32 v240, 4, v240
        v_cmp_gt_u32 vcc, 160, v240
        v_mul_u32_u24 v241, 3840, v241
        v_add_u32 v240, v240, v241
        v_cndmask_b32 v242, v245, v244, vcc
        v_add_u32 v{2+i}, v240, v242""")
    a(f"""v_lshrrev_b32 v240, 3, v1
    s_lshl_b32 s59, s57, 7
    s_lshl_b32 s54, s{SW}, 5
    s_add_u32 s59, s59, s54
    v_add_u32 v240, s59, v240
    v_mul_u32_u24 v240, 1280, v240
    v_lshrrev_b32 v241, 4, v1
    v_and_b32 v242, 7, v1
    v_xor_b32 v242, v242, v241
    v_lshl_add_u32 v5, v242, 4, v240
    v_xor_b32 v242, 4, v242
    v_lshl_add_u32 v6, v242, 4, v240
    v_add_u32 v6, 10240, v6
    v_add_u32 v7, 20480, v5
    v_add_u32 v8, 20480, v6""")

def g_setup2(a):
    a(f"""v_lshrrev_b32 v241, 4, v1
    v_bfe_u32 v242, v1, 2, 2
    v_lshl_add_u32 v242, v241, 3, v242
    v_mul_u32_u24 v242, 320, v242
    v_and_b32 v243, 3, v1
    v_lshl_add_u32 v242, v243, 3, v242
    v_and_b32 v243, 1, v241
    v_lshlrev_b32 v243, 5, v243
    v_add_u32 v9, v242, v243
    v_sub_u32 v10, v242, v243
    v_and_b32 v240, 15, v1
    v_lshrrev_b32 v242, 1, v240
    v_xor_b32 v242, v242, v241
    v_lshlrev_b32 v240, 7, v240
    v_add_u32 v240, s66, v240
    v_lshl_add_u32 v11, v242, 4, v240
    v_xor_b32 v242, 4, v242
    v_lshl_add_u32 v12, v242, 4, v240""")

def g_wload(t):
    slot = t % 4
    o = [[f"s_add_u32 m0, s65, {slot*10240}", "s_add_u32 s68, s63, 0" if t % 2 == 0 else f"s_add_u32 s68, s63, {32*3840}",
          f"buffer_load_dwordx4 v2, {sq(SRD1)}, s68 offen lds ; tag=W{t}", "s_add_u32 m0, m0, 1024"],
         [f"buffer_load_dwordx4 v3, {sq(SRD1)}, s68 offen lds ; tag=W{t}", "s_add_u32 m0, m0, 1024"],
         ["s_mov_b32 exec_hi, 0", f"buffer_load_dwordx4 v4, {sq(SRD1)}, s68 offen lds ; tag=W{t}", "s_mov_b32 exec_hi, -1"]]
    if t % 2 == 1:
        o.append([f"s_add_u32 s63, s63, {64*3840}", f"s_cmp_eq_u32 s63, {640*3840}", "s_cselect_b32 s63, 0, s63"])
    return o
def g_xload(j):
    o = []
    for i in range(4):
        o.append([f"s_add_u32 m0, s66, {(j%2)*16384 + i*1024}", "s_nop 0", f"buffer_load_dwordx4 v{5+i}, {sq(SRD0)}, s64 offen lds ; tag=X{j}"])
    o.append(["s_add_u32 s64, s64, 128", "s_cmp_eq_u32 s64, 1280", "s_cselect_b32 s64, 0, s64"])
    return o
def g_xreads(j):
    return [f"ds_read_b128 {v4(G_X + (j&1)*16 + ks*8 + sub*4)}, v{11+ks} offset:{(j%2)*16384 + sub*2048}" for ks in range(2) for sub in range(2)]
def g_reads(t):
    o = []
    for n in range(10):
        for h in range(2):
            off = (t % 4) * 10240 + h * 1280 + 32 * n
            o.append(f"ds_read_b64_tr_b16 {v2(G_B + (t & 1) * 40 + n * 4 + 2 * h)}, v{9 + (n & 1)} offset:{off}")
    return o

def g_main(a, transposed):
    for g in g_wload(0) + g_xload(0) + g_wload(1) + g_xload(1) + g_wload(2) + g_wload(3): a.extend(g)
    g_setup2(a)
    stamp(a, 1)
    a("WAITTAG W0 X0\n s_barrier")
    stamp(a, 2)
    a.extend(g_xreads(0) + g_reads(0))
    for t in range(20):
        j, ks = t // 2, t % 2
        mf = []
        for n in range(10):
            for sub in range(2):
                acc = v4(G_ACC + (sub * 10 + n) * 4)
                x = v4(G_X + (j & 1) * 16 + ks * 8 + sub * 4)
                b = v4(G_B + (t & 1) * 40 + n * 4)
                c = "0" if t == 0 else acc
                mf.append(f"v_mfma_f32_16x16x32_bf16 {acc}, {b}, {x}, {c}" if transposed else f"v_mfma_f32_16x16x32_bf16 {acc}, {x}, {b}, {c}")
        rd = []; ld = []
        if t < 19:
            a(f"WAITTAG W{t+1} lgkm0" + (f" X{j+1}" if ks == 1 else "")); a("s_barrier")
            rd = g_reads(t + 1)
            if ks == 1: rd = g_xreads(j + 1) + rd
        if ks == 0 and j + 2 < 10: ld += g_xload(j + 2)
        if t + 4 < 20: ld = g_wload(t + 4) + ld
        body = interleave(mf, rd, 0, 15)
        body = interleave(body, ld, 0, len(body) - 1)
        a.extend(body)
    stamp(a, 3)

def g_consts(a):
    a(f"s_mov_b32 s72, {LOG2E}\n s_mov_b32 s73, {EPS}")

def role_q(a):
    g_main(a, True)
    g_consts(a)
    a(f"""s_lshl_b32 s52, s57, 3
    s_lshl_b32 s53, s{SW}, 1
    s_add_u32 s52, s52, s53
    s_mul_i32 s52, s52, 20
    s_sub_u32 s53, s58, 8
    s_mul_i32 s54, s53, 5
    s_add_u32 s52, s52, s54
    s_lshl_b32 s52, s52, 10
    s_add_u32 s52, s52, {WS_PQ}
    v_lshlrev_b32 v2, 4, v1""")
    for sub in range(2):
        for c in range(5):
            r0 = G_ACC + (sub * 10 + 2 * c) * 4
            a.extend(phi_block(list(range(r0, r0 + 8)), list(range(240, 248))))
            d = G_B + (sub * 5 + c) * 4
            for k in range(4): a(f"v_cvt_pk_bf16_f32 v{d+k}, v{r0+2*k}, v{r0+2*k+1}")
            a(f"s_add_u32 s54, s52, {(sub*20+c)*1024}")
            a(f"buffer_store_dwordx4 {v4(d)}, v2, {sq(SRDWS)}, s54 offen" + (" sc1" if cfg.fused else ""))
    stamp(a, 4)
    if cfg.fused:
        poll_zero_done(a, "q")
        a(f"s_lshl_b32 s54, s57, 2\n s_add_u32 s54, s54, s53\n s_lshl_b32 s54, s54, 7\n s_add_u32 s54, s54, {WS_QFLAG}")
        signal(a, 54)

def role_kv(a):
    g_main(a, False)
    g_consts(a)
    a(f"""s_barrier
    v_lshlrev_b32 v2, 4, v1
    s_mul_i32 s52, s{SW}, 10240
    v_add_u32 v3, s52, v2
    s_lshl_b32 s52, s{SW}, 10
    v_add_u32 v4, s52, v2""")
    order = [5, 6, 7, 8, 9, 0, 1, 2, 3, 4]
    for t in order:
        r0 = G_ACC + t * 4; r1 = G_ACC + (10 + t) * 4
        if t < 5: a.extend(phi_block(list(range(r0, r0 + 4)) + list(range(r1, r1 + 4)), list(range(240, 248))))
        d = G_B + t * 4
        a(f"v_cvt_pk_bf16_f32 v{d}, v{r0}, v{r0+1}\n v_cvt_pk_bf16_f32 v{d+1}, v{r0+2}, v{r0+3}")
        a(f"v_cvt_pk_bf16_f32 v{d+2}, v{r1}, v{r1+1}\n v_cvt_pk_bf16_f32 v{d+3}, v{r1+2}, v{r1+3}")
        a(f"ds_write_b128 v3, {v4(d)} offset:{t*1024}")
    for k in range(4): a(f"v_mov_b32 v{248+k}, 0x3f803f80")
    HB = 40960; DUMP = 40960 + 4 * 2048
    a(f"""v_and_b32 v5, 15, v1
    v_lshrrev_b32 v6, 4, v1
    v_lshlrev_b32 v6, 2, v6
    s_lshl_b32 s52, s{SW}, 2
    v_subrev_u32 v5, s52, v5
    v_subrev_u32 v6, s52, v6
    s_lshl_b32 s53, s{SW}, 11
    s_add_u32 s53, s53, {HB}
    v_mov_b32 v13, {DUMP}""")
    k = 0
    for dt in range(2):
        for et in range(2):
            a(f"""v_add_u32 v240, {16*dt}, v6
            v_add_u32 v241, {16*et}, v5
            v_max_u32 v242, v240, v241
            v_cmp_gt_u32 vcc, 20, v242
            v_mul_u32_u24 v241, 80, v241
            v_lshl_add_u32 v241, v240, 2, v241
            v_add_u32 v241, s53, v241
            v_cndmask_b32 v{7+k}, v13, v241, vcc""")
            k += 1
        a(f"""v_add_u32 v240, {16*dt}, v6
        v_and_b32 v241, 15, v1
        v_mul_u32_u24 v241, 20, v241
        v_max_u32 v242, v240, v241
        v_cmp_gt_u32 vcc, 20, v242
        v_lshlrev_b32 v240, 2, v240
        v_add_u32 v240, s53, v240
        v_add_u32 v240, 1600, v240
        v_cndmask_b32 v{11+dt}, v13, v240, vcc""")
    a("s_waitcnt lgkmcnt(0)\n s_barrier")
    F = 176
    for rg in range(4):
        for q, off in enumerate([0, 1024, 5120, 6144]):
            a(f"ds_read_b128 {v4(F + rg*16 + q*4)}, v4 offset:{rg*10240 + off}")
    D = 16
    for rg in range(4):
        for dt in range(2):
            A = v4(F + rg * 16 + dt * 4)
            for et in range(2):
                acc = v4(D + (dt * 2 + et) * 4)
                a(f"v_mfma_f32_16x16x32_bf16 {acc}, {A}, {v4(F + rg*16 + 8 + et*4)}, {'0' if rg == 0 else acc}")
            acc = v4(D + 16 + dt * 4)
            a(f"v_mfma_f32_16x16x32_bf16 {acc}, {A}, v[248:251], {'0' if rg == 0 else acc}")
    for k in range(6): a(f"ds_write_b128 v{7+k}, {v4(D + 4*k)}")
    a(f"v_lshlrev_b32 v2, 2, v1\n v_add_u32 v3, s53, v2\n s_waitcnt lgkmcnt(0)")
    for i in range(7): a(f"ds_read_b32 v{48+i}, v3 offset:{256*i}")
    stamp(a, 4)
    poll_zero_done(a, "kv")
    a(f"""s_lshl_b32 s52, s58, 2
    s_add_u32 s52, s52, s{SW}
    s_mul_i32 s52, s52, 1680
    s_add_u32 s52, s52, {WS_KV}
    s_waitcnt lgkmcnt(0)""")
    for i in range(7):
        if i == 6: a("s_mov_b32 exec_lo, -1\n s_mov_b32 exec_hi, 0xf")
        a(f"buffer_atomic_add_f32 v{48+i}, v2, {sq(SRDWS)}, s52 offen offset:{256*i}")
    a("s_mov_b64 exec, -1")
    stamp(a, 5)
    if cfg.fused:
        a(f"s_lshl_b32 s54, s58, 7")
        signal(a, 54)

def role_prep(a):
    sc = " sc1" if cfg.fused else ""
    a(f"""s_mul_i32 s52, s56, 205
    s_lshr_b32 s52, s52, 10
    s_mul_i32 s53, s52, 5
    s_sub_u32 s57, s56, s53
    s_lshl_b32 s53, s57, 7
    s_lshl_b32 s54, s{SW}, 5
    s_add_u32 s53, s53, s54
    s_lshl_b32 s52, s52, 6
    v_lshrrev_b32 v2, 3, v1
    v_lshlrev_b32 v2, 3, v2
    v_add_u32 v2, s52, v2
    v_and_b32 v3, 7, v1
    v_lshlrev_b32 v3, 2, v3
    v_add_u32 v3, s53, v3
    v_mul_u32_u24 v4, 1280, v2
    v_lshl_add_u32 v4, v3, 1, v4
    v_subrev_u32 v5, 3840, v4
    v_lshlrev_b32 v6, 3, v3
    s_movk_i32 s55, 5120""")
    assert all((v * 205) >> 10 == v // 5 for v in range(160))
    srd(a, SRD0, P_K, 2048 * 1280); srd(a, SRD1, P_V, 2048 * 1280); srd(a, SRD2, P_Q, 2048 * 1280); srd(a, SRD3, P_SH, 640 * 8)
    K, V, Q, C = 16, 40, 56, 72
    a(f"buffer_load_dwordx4 {v4(C)}, v6, {sq(SRD3)}, 0 offen\n buffer_load_dwordx4 {v4(C+4)}, v6, {sq(SRD3)}, 0 offen offset:16")
    for r in range(3): a(f"buffer_load_dwordx2 {v2(K+2*r)}, v5, {sq(SRD0)}, 0 offen offset:{1280*r}")
    for base, s, n0 in ((K + 6, SRD0, 0), (V, SRD1, 0), (Q, SRD2, 0)):
        for r in range(8):
            a(f"buffer_load_dwordx2 {v2(base+2*r)}, v4, {sq(s)}, {'s55' if r >= 4 else '0'} offen offset:{1280*(r%4)}")
    a(f"""v_lshlrev_b32 v7, 12, v3
    v_lshl_add_u32 v8, v2, 1, v7
    v_sub_u32 v9, 2040, v2
    v_lshl_add_u32 v7, v9, 1, v7
    s_mov_b32 s60, 0x05040100
    s_mov_b32 s61, 0x07060302
    s_mov_b32 s62, 0xffff0000""")
    stamp(a, 1)
    P, T, U, O = 80, 92, 100, 108
    for ch in range(4):
        dw, hi = ch // 2, ch % 2
        sel = "s61" if hi else "s60"
        for s in range(-2, 8):
            a(f"v_perm_b32 v{P+s+2}, v{K+2*(s+2)+dw}, v{K+2*(s+3)+dw}, {sel}")
        for s in range(8): a(f"v_dot2_f32_bf16 v{T+s}, v{P+s}, v{C+2*ch+1}, 0")
        for s in range(8):
            a(f"v_and_b32 v{U+s}, s62, v{V+2*s+dw}" if hi else f"v_lshlrev_b32 v{U+s}, 16, v{V+2*s+dw}")
        for s in range(8): a(f"v_dot2_f32_bf16 v{T+s}, v{P+s+2}, v{C+2*ch}, v{T+s}")
        for s in range(8): a(f"v_mul_f32 v{T+s}, v{T+s}, v{U+s}")
        o = O + 4 * ch
        for j in range(4): a(f"v_cvt_pk_bf16_f32 v{o+j}, v{T+7-2*j}, v{T+6-2*j}")
        a(f"s_mov_b32 s54, {WS_UT + 4096*ch}\n buffer_store_dwordx4 {v4(o)}, v7, {sq(SRDWS)}, s54 offen{sc}")
    for ch in range(4):
        dw, hi = ch // 2, ch % 2
        sel = "s61" if hi else "s60"
        o = O + 16 + 4 * ch
        for j in range(4): a(f"v_perm_b32 v{o+j}, v{Q+2*(2*j+1)+dw}, v{Q+2*(2*j)+dw}, {sel}")
        a(f"s_mov_b32 s54, {WS_QT + 4096*ch}\n buffer_store_dwordx4 {v4(o)}, v8, {sq(SRDWS)}, s54 offen{sc}")
    stamp(a, 2)
    if cfg.fused:
        poll_zero_done(a, "prep")
        a(f"s_lshl_b32 s54, s57, 7\n s_add_u32 s54, s54, {WS_PREPC}")
        signal(a, 54)

C_HCOPY = 4224; C_UH = 148; C_WAVE = 2 * C_HCOPY + 2 * C_UH * 16
C_STG = 4 * C_WAVE; C_STGP = 4160
def role_conv(a):
    sc = " sc1" if cfg.fused else ""
    ACC, A, RAW, B, QV, UL = 16, 48, 80, 128, 192, 208
    a(f"""s_and_b32 s52, s56, 7
    s_mul_i32 s52, s52, 20
    s_lshr_b32 s53, s56, 3
    s_add_u32 s57, s52, s53
    s_lshl_b32 s58, s57, 2
    s_add_u32 s58, s58, s{SW}
    s_lshl_b32 s59, s58, 12
    s_mul_i32 s60, s{SW}, {C_WAVE}
    s_add_u32 s52, s{P_H}, s59
    s_addc_u32 s53, s{P_H+1}, 0
    s_load_dword s66, s[52:53], 0
    s_lshr_b32 s54, s58, 1
    s_lshl_b32 s54, s54, 2
    s_load_dword s67, s[{P_D}:{P_D+1}], s54
    v_lshlrev_b32 v2, 4, v1
    v_add_u32 v3, 4, v2""")
    srd(a, SRD0, P_H, 640 * 4096)
    srd(a, SRD1, P_OUT, 2048 * 2560)
    a(f"s_add_u32 m0, s60, 32")
    for i in range(4): a(f"buffer_load_dwordx4 v2, {sq(SRD0)}, s59 offen offset:{1024*i} lds")
    a(f"s_add_u32 m0, s60, {C_HCOPY + 32}")
    for i in range(4): a(f"buffer_load_dwordx4 v3, {sq(SRD0)}, s59 offen offset:{1024*i} lds")
    a(f"""v_mov_b32 v4, 0
    v_mov_b32 v5, 0
    v_mov_b32 v6, 0
    v_mov_b32 v7, 0
    v_and_b32 v8, 15, v1
    v_lshrrev_b32 v9, 4, v1
    v_and_b32 v10, 1, v9
    v_mul_u32_u24 v10, {C_UH}, v10
    v_add_u32 v10, v10, v8
    v_lshlrev_b32 v10, 4, v10
    v_add_u32 v10, s60, v10
    ds_write_b128 v10, v[4:7] offset:{2*C_HCOPY + 128*16}
    v_and_b32 v10, 1, v1
    v_lshlrev_b32 v10, 4, v10
    v_bfe_u32 v11, v1, 1, 1
    v_mul_u32_u24 v11, {C_HCOPY}, v11
    v_add3_u32 v10, v10, v11, s60
    ds_write_b128 v10, v[4:7]""")
    a(f"""v_add_u32 v10, 1, v8
    v_bfe_u32 v11, v10, 1, 1
    v_mul_u32_u24 v11, {C_HCOPY}, v11
    v_lshrrev_b32 v12, 2, v10
    v_lshl_add_u32 v12, v9, 3, v12
    v_lshl_add_u32 v11, v12, 3, v11
    v_add_u32 v4, s60, v11
    v_and_b32 v10, 1, v10
    v_lshlrev_b32 v5, 4, v10
    v_lshlrev_b32 v10, 1, v9
    v_sub_u32 v10, v10, v8
    v_add_u32 v10, 15, v10
    v_lshlrev_b32 v10, 4, v10
    v_add_u32 v6, s60, v10
    v_lshrrev_b32 v10, 1, v1
    v_and_b32 v11, 1, v1
    v_mul_u32_u24 v11, {C_UH}, v11
    v_add_u32 v10, v10, v11
    v_lshlrev_b32 v10, 4, v10
    v_add_u32 v7, s60, v10
    v_lshlrev_b32 v10, 5, v8
    v_lshl_add_u32 v8, v9, 3, v10""")
    a(f"""s_waitcnt lgkmcnt(0)
    s_lshl_b32 s52, s66, 16
    s_lshl_b32 s53, s67, 16
    s_and_b32 s54, s67, 0xffff0000
    s_bitcmp1_b32 s58, 0
    s_cselect_b32 s53, s54, s53
    s_and_b32 s54, s66, 0xffff0000
    v_mov_b32 v10, s52
    v_add_f32 v10, s53, v10
    v_mov_b32 v11, s54
    v_cvt_pk_bf16_f32 v10, v10, v11
    v_mov_b32 v11, s60""")
    stamp(a, 3)
    if cfg.fused:
        a(f"s_lshr_b32 s54, s57, 5\n s_lshl_b32 s54, s54, 7\n s_add_u32 s54, s54, {WS_PREPC}")
        poll(a, "conv", 54, 32)
    stamp(a, 4)
    a(f"s_add_u32 s54, s59, {WS_UT}\n s_add_u32 s55, s59, {WS_QT}")
    for i in range(4): a(f"buffer_load_dwordx4 {v4(UL+4*i)}, v2, {sq(SRDWS)}, s54 offen offset:{1024*i}{sc}")
    for J in range(8): a(f"buffer_load_dwordx2 {v2(QV+2*J)}, v8, {sq(SRDWS)}, s55 offen offset:{512*J}{sc}")
    a(f"s_waitcnt vmcnt(12)\n ds_write_b32 v11, v10 offset:32\n ds_write_b32 v11, v10 offset:{C_HCOPY+28}")
    def raw_slots(i):
        return [(0, 1, 2), (2, 0, 1), (1, 2, 0), (0, 1, 2)][i]
    def raw_reads(it, N1):
        N0, i = it >> 2, it & 3
        sl = raw_slots(i)
        return [f"ds_read_b64 {v2(RAW + N1*6 + 2*sl[k])}, v4 offset:{(2*N1+N0)*256 + (2*i+k)*8}" for k in range(0 if i == 0 else 1, 3)]
    def aligns(it, N1):
        sl = raw_slots(it & 3)
        d = [RAW + N1 * 6 + 2 * sl[0], RAW + N1 * 6 + 2 * sl[0] + 1, RAW + N1 * 6 + 2 * sl[1], RAW + N1 * 6 + 2 * sl[1] + 1, RAW + N1 * 6 + 2 * sl[2]]
        return [f"v_alignbit_b32 v{A + 4*N1 + k}, v{d[k+1]}, v{d[k]}, v5" for k in range(4)]
    def b_reads(it):
        N0, i = it >> 2, it & 3
        return [f"ds_read_b128 {v4(B + (it&1)*32 + 4*dl)}, v6 offset:{2*C_HCOPY + (14-(2*dl-N0))*128 + (i>>1)*16 + (i&1)*C_UH*16}" for dl in range(8)]
    for N1 in range(8): a.extend(raw_reads(0, N1))
    for i in range(4): a(f"ds_write_b128 v7, {v4(UL+4*i)} offset:{2*C_HCOPY + 512*i}")
    for N1 in range(8):
        a.extend(aligns(0, N1)); a.extend(raw_reads(1, N1))
    a.extend(b_reads(0))
    stamp(a, 5)
    queue = []
    for it in range(8):
        if it < 7: queue += b_reads(it + 1)
        for N1 in range(8):
            tag = f"v_alignbit_b32 v{A+4*N1+3},"
            pos = max((k for k, q in enumerate(queue) if q.startswith(tag)), default=-1)
            for q in queue[:pos + 1]: a(q)
            queue = queue[pos + 1:]
            for J in range(N1, 8):
                acc = v4(ACC + 4 * J)
                c = "0" if (it == 0 and N1 == 0) else acc
                a(f"v_mfma_f32_16x16x32_bf16 {acc}, {v4(A+4*N1)}, {v4(B + (it&1)*32 + 4*(J-N1))}, {c}")
                for _ in range(2):
                    if queue: a(queue.pop(0))
            if it < 7: queue += aligns(it + 1, N1)
            if it < 6: queue += raw_reads(it + 2, N1)
        assert not any(q.startswith("ds_read_b128") for q in queue)
    assert not queue
    stamp(a, 6)
    a(f"""s_mov_b32 s62, 0xffff0000
    s_mul_i32 s52, s{SW}, {C_STGP}
    s_add_u32 s52, s52, {C_STG}
    v_add_u32 v9, s52, v8""")
    for J in range(8):
        T = 224 + (J & 1) * 8
        a(f"""v_lshlrev_b32 v{T}, 16, v{QV+2*J}
        v_and_b32 v{T+1}, s62, v{QV+2*J}
        v_lshlrev_b32 v{T+2}, 16, v{QV+2*J+1}
        v_and_b32 v{T+3}, s62, v{QV+2*J+1}""")
        for r in range(4): a(f"v_mul_f32 v{T+r}, v{T+r}, v{ACC+4*J+r}")
        a(f"v_cvt_pk_bf16_f32 v{T+4}, v{T}, v{T+1}\n v_cvt_pk_bf16_f32 v{T+5}, v{T+2}, v{T+3}")
        a(f"ds_write_b64 v9, {v2(T+4)} offset:{512*J}")
    a(f"""v_bfe_u32 v10, v1, 2, 2
    v_mul_u32_u24 v10, {C_STGP}, v10
    v_and_b32 v11, 3, v1
    v_lshl_add_u32 v10, v11, 3, v10
    v_lshrrev_b32 v11, 4, v1
    v_lshl_add_u32 v10, v11, 5, v10
    s_lshl_b32 s52, s{SW}, 10
    s_add_u32 s52, s52, {C_STG}
    v_add_u32 v10, s52, v10
    s_lshl_b32 s52, s{SW}, 9
    v_add_u32 v11, s52, v1
    v_mul_u32_u24 v11, 2560, v11
    s_lshl_b32 s52, s57, 3
    s_waitcnt lgkmcnt(0)
    s_barrier""")
    for i in range(8): a(f"ds_read_b64_tr_b16 {v2(48+2*i)}, v10 offset:{128*i}")
    for i in range(8):
        a(f"buffer_store_dwordx2 {v2(48+2*i)}, v11, {sq(SRD1)}, s52 offen")
        if i < 7: a(f"s_add_u32 s52, s52, {64*2560}")

def b2_tables(hf):
    num = {}
    for t in range(5 * hf, 5 * hf + 5):
        hs = {e // 20 for e in range(16 * t, 16 * t + 16)}
        dts = [dt for dt in range(10) if hs & {d // 20 for d in range(16 * dt, 16 * dt + 16)}]
        ch = {}
        for dt in dts: ch.setdefault(dt // 2, []).append(dt)
        num[t] = sorted(ch.items())
    ch = {}
    for dt in range(5 * hf, 5 * hf + 5): ch.setdefault(dt // 2, []).append(dt)
    return num, sorted(ch.items())

B_KS = 8448
def role_b2(a):
    sc = " sc1" if cfg.fused else ""
    PQ, W0, W1, KV, RAW = 16, 56, 88, 120, 192
    ACC, W2, W3 = 120, 184, 216
    U = [192, 216]
    a(f"""s_and_b32 s52, s56, 7
    s_lshr_b32 s53, s56, 3
    s_mul_i32 s54, s53, 205
    s_lshr_b32 s54, s54, 10
    s_lshl_b32 s57, s52, 3
    s_add_u32 s57, s57, s54
    s_mul_i32 s54, s54, 5
    s_sub_u32 s58, s53, s54""")
    srd(a, SRD0, P_WO, 640 * 1280)
    srd(a, SRD1, P_OUT, 2048 * 2560)
    a(f"""s_lshl_b32 s59, s58, 8
    s_mul_i32 s52, s{SW}, {160*1280}
    s_add_u32 s59, s59, s52
    s_and_b32 s53, s{SW}, 1
    s_lshl_b32 s53, s53, 7
    s_mul_i32 s65, s{SW}, 20480
    v_and_b32 v8, 15, v1
    v_lshrrev_b32 v9, 4, v1
    v_lshlrev_b32 v2, 4, v8
    v_xor_b32 v2, s53, v2
    v_mul_u32_u24 v10, {8*1280}, v9
    v_add3_u32 v2, v2, v10, s59""")
    def dma(kstep, slot):
        return [[f"s_add_u32 m0, s65, {slot*B_KS + i*1056}", f"s_mov_b32 s63, {(32*kstep + i)*1280}",
                 f"buffer_load_dwordx4 v2, {sq(SRD0)}, s63 offen lds ; tag=K{kstep}"] for i in range(8)]
    def wreads(slot, dst):
        return [f"ds_read_b64_tr_b16 {v2(dst + 4*n + 2*h)}, v0 offset:{slot*B_KS + h*512 + 32*n}" for n in range(8) for h in range(2)]
    for g in dma(0, 0) + dma(1, 1): a.extend(g)
    a(f"""v_bfe_u32 v10, v1, 2, 3
    v_mul_u32_u24 v10, 1056, v10
    v_lshrrev_b32 v11, 5, v1
    v_lshl_add_u32 v10, v11, 8, v10
    v_and_b32 v11, 3, v1
    v_lshl_add_u32 v10, v11, 3, v10
    v_add_u32 v0, s65, v10
    s_add_u32 s64, s65, {2*B_KS}
    v_lshlrev_b32 v9, 3, v9
    v_mul_u32_u24 v3, 40, v8
    v_add3_u32 v3, v3, v9, s64
    v_mul_u32_u24 v4, 800, v11
    v_add3_u32 v4, v4, v9, s64
    v_lshlrev_b32 v5, 4, v1
    v_lshlrev_b32 v6, 3, v1
    v_add_u32 v6, s64, v6
    v_add_u32 v7, 4096, v5""")
    for r in range(KV, KV + 72): a(f"v_mov_b32 v{r}, 0")
    def pq_loads():
        a(f"""s_lshr_b32 s52, s{SW}, 1
        s_lshl_b32 s53, s57, 1
        s_add_u32 s54, s53, s52
        s_xor_b32 s52, s52, 1
        s_add_u32 s55, s53, s52
        s_mul_i32 s54, s54, 20480
        s_mul_i32 s55, s55, 20480
        s_mul_i32 s52, s{SW}, 5120
        s_add_u32 s52, s52, {WS_PQ}
        s_add_u32 s54, s54, s52
        s_add_u32 s55, s55, s52""")
        for sub in range(2):
            for c in range(5):
                a(f"buffer_load_dwordx4 {v4(PQ + (sub*5+c)*4)}, v{5 if c < 4 else 7}, {sq(SRDWS)}, s{54+sub} offen offset:{1024*(c%4)}{sc}")
    def kv_loads(hf):
        a(f"s_mul_i32 s52, s{SW}, {8*1680}\n s_add_u32 s52, s52, {WS_KV + hf*6720}")
        for i in range(7):
            a(f"buffer_load_dwordx4 {v4(RAW + hf*28 + 4*i)}, v{5 if i < 4 else 7}, {sq(SRDWS)}, s52 offen offset:{1024*(i%4)} sc1")
    def wo_prefetch():
        a("WAITTAG K0")
        a.extend(wreads(0, W0))
        a("WAITTAG K1")
        a.extend(wreads(1, W1))
        a("s_waitcnt lgkmcnt(15)")
        a("s_waitcnt lgkmcnt(0)")
        for g in dma(2, 0) + dma(3, 1): a.extend(g)
    if cfg.fused:
        wo_prefetch()
        poll_zero_done(a, "b2")
        a(f"s_lshr_b32 s54, s57, 2\n s_lshl_b32 s54, s54, 2\n s_add_u32 s54, s54, s{SW}\n s_lshl_b32 s54, s54, 7\n s_add_u32 s54, s54, {WS_QFLAG}")
        poll(a, "b2q", 54, 1)
        pq_loads()
        a(f"s_lshl_b32 s54, s{SW}, 8")
        poll(a, "b2kv0", 54, 16)
        a(f"s_add_u32 s54, s54, 128")
        poll(a, "b2kv1", 54, 16)
        stamp(a, 6)
        kv_loads(0); kv_loads(1)
    else:
        kv_loads(0); kv_loads(1)
        pq_loads()
        stamp(a, 1)
        wo_prefetch()
        stamp(a, 2)
    a(f"""s_mov_b32 s73, {EPS}
    s_mov_b32 s66, 0xffff0000
    s_mov_b32 s67, -1
    s_mov_b32 s68, 0
    s_mov_b32 s69, -1
    s_mov_b32 s70, 0
    s_mov_b32 s71, 0xffff0000""")
    qi = {}
    tabs = [b2_tables(0), b2_tables(1)]
    for hf in range(2):
        for i in range(7):
            r = RAW + hf * 28 + 4 * i
            a(f"v_cvt_pk_bf16_f32 v{r}, v{r}, v{r+1}\n v_cvt_pk_bf16_f32 v{r+1}, v{r+2}, v{r+3}\n ds_write_b64 v6, {v2(r)} offset:{512*i}")
        num, den = tabs[hf]
        quads = [("z", hf, dt) for c, dts in den for dt in dts] + [("n", t, dt) for t in num for c, dts in num[t] for dt in dts]
        assert len(quads) == 18
        for (kind, t, dt) in quads:
            q = len(qi); qi[(kind, t, dt)] = q
            mask = 0
            for l in range(64):
                i, g = l & 15, l >> 4
                hd = (16 * dt + 4 * g) // 20
                he = (16 * t + i) // 20 if kind == "n" else (i & 3) + 4 * t
                if hd == he: mask |= 1 << l
            off = 640 * (t - 5 * hf) + 32 * (dt - 5 * hf) if kind == "n" else 800 + 32 * (dt - 5 * hf)
            a(f"s_mov_b32 exec_lo, {mask & 0xffffffff:#x}\n s_mov_b32 exec_hi, {mask >> 32:#x}")
            a(f"ds_read_b64 {v2(KV + 2*q)}, v{3 if kind == 'n' else 4} offset:{off}")
        a("s_mov_b64 exec, -1")
    if not cfg.fused: stamp(a, 3)
    def omf(sub, hf, T):
        o = []
        num, den = tabs[hf]
        def one(kind, t, lst, acc):
            lst = sorted(lst, key=lambda x: len(x[1]))
            for k, (c, dts) in enumerate(lst):
                src = "0" if k == 0 else v4(acc)
                kv = KV + 2 * qi[(kind, t, dts[0])]
                pq = PQ + (sub * 5 + c) * 4
                key = (min(k, 1), 0 if kind == "z" else 1, t, k)
                if len(dts) == 2: o.append((key, f"v_mfma_f32_16x16x32_bf16 {v4(acc)}, {v4(kv)}, {v4(pq)}, {src}"))
                else: o.append((key, f"v_mfma_f32_16x16x16_bf16 {v4(acc)}, {v2(kv)}, {v2(pq + 2*(dts[0]&1))}, {src}"))
        one("z", hf, den, T)
        for t in num: one("n", t, num[t], T + 4 + 4 * (t - 5 * hf))
        return [x for _, x in sorted(o)]
    def ovalu(sub, hf, T):
        o = []
        for r in range(4): o.append(f"v_add_f32 v{T+r}, s73, v{T+r}")
        for r in range(4): o.append(f"v_rcp_f32 v{T+r}, v{T+r}")
        for tl in range(5):
            t = tl + 5 * hf
            h0 = (16 * tl) // 20; h1 = (16 * tl + 12) // 20
            rc = T + h0; n = T + 4 + 4 * tl
            if h0 != h1:
                g0 = min(g for g in range(4) if (16 * tl + 4 * g) // 20 == h1)
                o.append(f"v_cndmask_b32 v{rc}, v{T+h0}, v{T+h1}, s[{64+2*g0}:{65+2*g0}]")
            for r in range(4): o.append(f"v_mul_f32 v{n+r}, v{n+r}, v{rc}")
            d = PQ + (sub * 5 + t // 2) * 4 + 2 * (t & 1)
            o.append(f"v_cvt_pk_bf16_f32 v{d}, v{n}, v{n+1}")
            o.append(f"v_cvt_pk_bf16_f32 v{d+1}, v{n+2}, v{n+3}")
        return o
    def g2(sub, k, W):
        return [f"v_mfma_f32_16x16x32_bf16 {v4(ACC + (sub*8+n)*4)}, {v4(W+4*n)}, {v4(PQ + (sub*5+k)*4)}, {'0' if k == 0 else v4(ACC + (sub*8+n)*4)}" for n in range(8)]
    def both(k, W):
        x, y = g2(0, k, W), g2(1, k, W)
        return [z for p in zip(x, y) for z in p]
    units = [(0, 0), (1, 0), (0, 1), (1, 1)]
    a.extend(omf(*units[0], U[0]))
    for u in range(1, 4):
        m = omf(*units[u], U[u & 1])
        a.extend(interleave(m, ovalu(*units[u - 1], U[(u - 1) & 1]), 2))
    a("WAITTAG K2 K3")
    v3_ = ovalu(*units[3], U[1])
    p1 = interleave(both(0, W0), wreads(0, W2), 0, 8)
    p1 = interleave(p1, v3_, 4)
    a.extend(p1)
    a("s_waitcnt lgkmcnt(0)")
    a.extend(interleave(interleave(both(1, W1), dma(4, 0), 0, 8), wreads(1, W3), 8))
    if not cfg.fused: stamp(a, 4)
    a.extend(both(2, W2))
    b3 = both(3, W3)
    a.extend(b3[:4]); a("WAITTAG K4")
    a.extend(interleave(b3[4:], wreads(0, W0), 0, 8))
    a.extend(both(4, W0))
    if not cfg.fused: stamp(a, 5)
    for gam in range(1, 4):
        a(f"s_xor_b32 s52, s{SW}, {gam}\n s_mul_i32 s52, s52, 12288\n s_add_u32 s52, s52, {(gam-1)*4096}\n v_add_u32 v{8+gam}, s52, v5")
    a(f"s_mul_i32 s52, s{SW}, 12288\n v_add_u32 v8, s52, v5\n s_barrier")
    for gam in range(1, 4):
        for k in range(4): a(f"ds_write_b128 v{8+gam}, {v4(ACC + (gam*4+k)*4)} offset:{1024*k}")
    a(f"""s_mul_i32 s53, s{SW}, 2304
    s_add_u32 s53, s53, 49152
    v_and_b32 v12, 15, v1
    v_mul_u32_u24 v12, 144, v12
    v_lshrrev_b32 v13, 4, v1
    v_lshl_add_u32 v12, v13, 3, v12
    v_add_u32 v12, s53, v12
    v_lshrrev_b32 v13, 3, v1
    v_and_b32 v14, 7, v1
    v_lshlrev_b32 v14, 4, v14
    v_mul_u32_u24 v15, 144, v13
    v_add3_u32 v15, v15, v14, s53
    s_lshl_b32 s52, s57, 5
    s_lshr_b32 s54, s{SW}, 1
    s_lshl_b32 s54, s54, 4
    s_add_u32 s52, s52, s54
    v_add_u32 v13, s52, v13
    v_mul_u32_u24 v13, 2560, v13
    v_add_u32 v13, v13, v14
    s_lshl_b32 s52, s58, 8
    s_and_b32 s54, s{SW}, 1
    s_lshl_b32 s54, s54, 7
    s_add_u32 s52, s52, s54
    s_add_u32 s52, s52, 1280
    s_add_u32 s54, s52, {8*2560}
    s_waitcnt lgkmcnt(0)
    s_barrier""")
    R = 192
    for k in range(4):
        for gam in range(3): a(f"ds_read_b128 {v4(R + (k*3+gam)*4)}, v8 offset:{gam*4096 + 1024*k}")
    for k in range(4):
        for r in range(4): a(f"v_add_f32 v{ACC+4*k+r}, v{ACC+4*k+r}, v{R+(k*3)*4+r}")
        for r in range(4): a(f"v_add_f32 v{R+(k*3+1)*4+r}, v{R+(k*3+1)*4+r}, v{R+(k*3+2)*4+r}")
        for r in range(4): a(f"v_add_f32 v{ACC+4*k+r}, v{ACC+4*k+r}, v{R+(k*3+1)*4+r}")
        a(f"v_cvt_pk_bf16_f32 v{16+2*k}, v{ACC+4*k}, v{ACC+4*k+1}\n v_cvt_pk_bf16_f32 v{17+2*k}, v{ACC+4*k+2}, v{ACC+4*k+3}")
        a(f"ds_write_b64 v12, {v2(16+2*k)} offset:{32*k}")
    a(f"ds_read_b128 v[24:27], v15\n ds_read_b128 v[28:31], v15 offset:{8*144}")
    a(f"buffer_store_dwordx4 v[24:27], v13, {sq(SRD1)}, s52 offen\n buffer_store_dwordx4 v[28:31], v13, {sq(SRD1)}, s54 offen")

def kd(name):
    return f""".p2align 6
.amdhsa_kernel {name}
  .amdhsa_next_free_vgpr 256
  .amdhsa_next_free_sgpr 96
  .amdhsa_accum_offset 256
  .amdhsa_group_segment_fixed_size 0
  .amdhsa_kernarg_size 96
  .amdhsa_user_sgpr_count 2
  .amdhsa_user_sgpr_kernarg_segment_ptr 1
  .amdhsa_system_sgpr_workgroup_id_x 1
  .amdhsa_float_denorm_mode_32 3
.end_amdhsa_kernel"""

def head(name): return f".globl {name}\n.p2align 8\n.type {name},@function"

def finish(a, tag, base):
    stamps_out(a, base, tag)
    a("s_endpgm")

def build_two():
    k1, k2 = "k1_kernel", "k2_kernel"
    a = Asm()
    a(head(k1)); prologue(a, k1, 353)
    a("""s_cmp_lt_u32 s2, 192
    s_cbranch_scc1 L_G
    s_cmp_eq_u32 s2, 352
    s_cbranch_scc1 L_Z
    s_sub_u32 s56, s2, 192""")
    role_prep(a); finish(a, 3, 0)
    a.label("L_Z"); role_zero(a); finish(a, 9, 0)
    a.label("L_G"); a("s_mov_b32 s56, s2"); g_setup(a)
    a("s_cmp_ge_u32 s58, 8\n s_cbranch_scc1 L_Q")
    role_kv(a); finish(a, 1, 0)
    a.label("L_Q"); role_q(a); finish(a, 2, 0)
    a.label(f"L_END_{k1}"); a("s_endpgm")
    a(head(k2)); prologue(a, k2, 480)
    a("""s_cmp_lt_u32 s2, 320
    s_cbranch_scc1 L_B2
    s_sub_u32 s56, s2, 320""")
    role_conv(a); finish(a, 4, 0x20000)
    a.label("L_B2"); a("s_mov_b32 s56, s2"); role_b2(a); finish(a, 5, 0x20000)
    a.label(f"L_END_{k2}"); a("s_endpgm")
    launch = [f"; @launch kernel={k1} grid=(353,1,1) block=(256,1,1) lds={LDS_BYTES}", f"; @launch kernel={k2} grid=(480,1,1) block=(256,1,1) lds={LDS_BYTES}"]
    return launch, a, [k1, k2]

def emit(path, launch, a, kernels, verbose=False):
    body = fix_hazards(insert_waits(a.lines), verbose)
    out = list(launch) + ['.amdgcn_target "amdgcn-amd-amdhsa--gfx950"', ".text", ".p2align 8", "L_CODE_BEGIN:"]
    out += [(l if l.endswith(":") or l.startswith(".") else "    " + l) for l in body]
    out += ["L_CODE_END:", "    s_endpgm", '.section .rodata,"a"'] + [kd(k) for k in kernels]
    open(path, "w").write("\n".join(out) + "\n")

if __name__ == "__main__":
    mode = sys.argv[1]; path = sys.argv[2]
    cfg.stamps = "stamps" in sys.argv[3:]
    if mode == "two":
        cfg.fused = False; emit(path, *build_two(), verbose="-v" in sys.argv)
```

```python
import sys
sys.path.insert(0, "dev")
from asmlib import *

KN = "concat_heads__ssm_conv_h3__linear_attn_block__prompt"
WS_FLAGS = 0x0000
WS_KVCNT = WS_FLAGS
WS_QFLAG = WS_FLAGS + 1024
WS_PREPC = WS_FLAGS + 9216
WS_KV    = 0x2800
WS_ZERO_BYTES = 65536
WS_UT    = 0x100000
WS_QT    = 0x400000
WS_PQ    = 0x700000
WS_STAMP = 0xA00000
WS_SIZE  = 0xB00000
LDS_BYTES = 163840
HALF = 81920
L_BAR = HALF - 64
L_SIG = HALF - 60
SGRP, SLB, SBT = 74, 75, 76
LOG2E = 0x3FB8AA3B
EPS = 0x358637BD

P_Q, P_K, P_V, P_SH, P_H, P_D, P_X, P_W, P_WO, P_OUT, P_DBG, P_WS = [4 + 2 * i for i in range(12)]
SRD0, SRD1, SRD2, SRD3, SRD4, SRDWS = 28, 32, 36, 40, 44, 48
SW = 3

def srd(a, d, p, nbytes):
    a(f"s_mov_b32 s{d}, s{p}\n s_and_b32 s{d+1}, s{p+1}, 0xffff\n s_mov_b32 s{d+2}, {nbytes}\n s_mov_b32 s{d+3}, 0x20000")
def sq(d): return f"s[{d}:{d+3}]"
def v4(r): return f"v[{r}:{r+3}]"
def v2(r): return f"v[{r}:{r+1}]"

class Cfg:
    fused = True
    stamps = False
cfg = Cfg()

NSTAMP = 10
def stamp(a, i):
    if cfg.stamps:
        a(f"s_memrealtime s[{80+2*i}:{81+2*i}]\n s_waitcnt lgkmcnt(0)")
def stamps_out(a):
    if not cfg.stamps: return
    a("s_waitcnt vmcnt(0) lgkmcnt(0)")
    stamp(a, NSTAMP - 1)
    a(f"s_getreg_b32 s52, hwreg(HW_REG_HW_ID)\n s_getreg_b32 s53, hwreg(HW_REG_XCC_ID)")
    for i in range(NSTAMP): a(f"v_mov_b32 v{16+i}, s{80+2*i}")
    a(f"v_mov_b32 v26, s52\n v_mov_b32 v27, s53\n v_mov_b32 v28, s100\n v_mov_b32 v29, s2\n v_mov_b32 v30, 0\n v_mov_b32 v31, 0")
    a(f"s_lshl_b32 s54, s2, 9\n s_lshl_b32 s55, s{SW}, 6\n s_add_u32 s54, s54, s55\n s_lshl_b32 s55, s{SGRP}, 8\n s_add_u32 s54, s54, s55\n s_add_u32 s54, s54, {WS_STAMP}")
    a(f"v_mov_b32 v32, 0\n s_mov_b64 exec, 1")
    for i in range(4): a(f"buffer_store_dwordx4 {v4(16+4*i)}, v32, {sq(SRDWS)}, s54 offen offset:{16*i}")
    a("s_mov_b64 exec, -1")
def tag(a, t):
    if cfg.stamps: a(f"s_lshl_b32 s100, s100, 4\n s_add_u32 s100, s100, {t}")

def prologue(a, name, nwg):
    a.label(name)
    a(f"""s_load_dwordx16 s[4:19], s[0:1], 0
    s_load_dwordx8 s[20:27], s[0:1], 64
    s_cmp_ge_u32 s2, {nwg}
    s_cbranch_scc1 L_END
    v_and_b32 v1, 63, v0
    v_lshrrev_b32 v2, 6, v0
    s_mov_b32 s{SBT}, 0
    v_readfirstlane_b32 s77, v2""")
    if cfg.stamps:
        for i in range(NSTAMP): a(f"s_mov_b32 s{80+2*i}, 0")
        a("s_mov_b32 s100, 0\n s_memrealtime s[80:81]")
    a(f"""s_and_b32 s{SW}, s77, 3
    s_lshr_b32 s{SGRP}, s77, 2
    s_mul_i32 s{SLB}, s{SGRP}, {HALF}
    s_cmp_lg_u32 s77, 3
    s_cbranch_scc1 L_NOPF
    s_getpc_b64 s[52:53]""")
    a.label("L_PC")
    a(f"""s_lshr_b32 s54, s2, 3
    s_and_b32 s54, s54, 7
    s_lshl_b32 s54, s54, 13
    v_lshlrev_b32 v3, 7, v1
    v_add_u32 v3, s54, v3
    s_sub_u32 s52, s52, L_PC-L_CODE_BEGIN
    s_subb_u32 s53, s53, 0
    v_min_u32 v3, L_CODE_END-L_CODE_BEGIN-4, v3
    global_load_dword v15, v3, s[52:53]
    v_and_b32 v4, 15, v1
    v_lshlrev_b32 v4, 2, v4
    v_bfe_u32 v5, v1, 4, 1
    v_mul_u32_u24 v5, {HALF}, v5
    v_add_u32 v4, v4, v5
    v_add_u32 v4, {L_BAR}, v4
    v_mov_b32 v5, 0
    ds_write_b32 v4, v5""")
    a.label("L_NOPF")
    a("s_waitcnt lgkmcnt(0)")
    srd(a, SRDWS, P_WS, WS_SIZE if cfg.stamps else WS_STAMP)

def bar_arrive(a):
    a(f"""v_mov_b32 v13, s{SLB}
    v_mov_b32 v14, 1
    v_add_u32 v13, {L_BAR}, v13
    s_add_u32 s{SBT}, s{SBT}, 4
    s_mov_b64 exec, 1
    ds_add_u32 v13, v14
    s_mov_b64 exec, -1""")
def bar_wait(a):
    n = bar_wait.n; bar_wait.n += 1
    a(f"v_mov_b32 v13, s{SLB}\n v_add_u32 v13, {L_BAR}, v13")
    a.label(f"L_BW_{n}")
    a(f"""ds_read_b32 v14, v13
    s_waitcnt lgkmcnt(0)
    v_readfirstlane_b32 s79, v14
    s_cmp_ge_u32 s79, s{SBT}
    s_cbranch_scc0 L_BW_{n}""")
bar_wait.n = 0
def swbar(a):
    bar_arrive(a); bar_wait(a)

def dma_offsets(a, vbase, pitch, s_seg0, s_seg1, row_shift, t0, t1, t2, s_rowbase=None):
    for i in range(5):
        assert all(((64 * i + l) * 3277) >> 16 == (64 * i + l) // 20 for l in range(64))
        a(f"""v_add_u32 v{t0}, {64*i}, v1
        v_mul_u32_u24 v{t1}, 3277, v{t0}
        v_lshrrev_b32 v{t1}, 16, v{t1}
        v_mul_u32_u24 v{t2}, 20, v{t1}
        v_sub_u32 v{t0}, v{t0}, v{t2}
        v_lshrrev_b32 v{t2}, {row_shift - 1}, v{t1}
        v_and_b32 v{t2}, 2, v{t2}
        v_xor_b32 v{t0}, v{t0}, v{t2}
        v_lshlrev_b32 v{t0}, 4, v{t0}
        v_mov_b32 v{t2}, s{s_seg0}
        v_mov_b32 v{vbase+i}, s{s_seg1}
        v_cmp_gt_u32 vcc, 160, v{t0}
        v_cndmask_b32 v{t2}, v{vbase+i}, v{t2}, vcc
        v_add_u32 v{t0}, v{t0}, v{t2}
        v_mul_u32_u24 v{t1}, {pitch}, v{t1}
        v_add_u32 v{vbase+i}, v{t0}, v{t1}""")

def phi(r, t):
    return [f"v_mul_f32 v{t}, s72, v{r}", f"v_max_f32 v{r}, s73, v{r}", f"v_exp_f32 v{t}, v{t} clamp", None, f"v_add_f32 v{r}, v{r}, v{t}"]

def phi_block(regs_, temps):
    out = []
    n = len(temps)
    for g in range(0, len(regs_), n):
        grp = regs_[g:g + n]
        for r, t in zip(grp, temps): out.append(f"v_mul_f32 v{t}, s72, v{r}")
        for r, t in zip(grp, temps): out.append(f"v_exp_f32 v{t}, v{t} clamp"); out.append(f"v_max_f32 v{r}, s73, v{r}")
        for r, t in zip(grp, temps): out.append(f"v_add_f32 v{r}, v{r}, v{t}")
    return out

def poll(a, name, s_off, target, srdq=SRDWS, vt=14, vz=13):
    a(f"v_mov_b32 v{vz}, 0\n s_mov_b32 s78, 0")
    a.label(f"L_POLL_{name}")
    a(f"""buffer_load_dword v{vt}, v{vz}, {sq(srdq)}, s{s_off} offen sc1
    s_add_u32 s78, s78, 1
    s_waitcnt vmcnt(0)
    v_readfirstlane_b32 s79, v{vt}
    s_cmp_ge_u32 s78, 0x40000
    s_cbranch_scc1 L_POLLX_{name}
    s_cmp_eq_u32 s79, {target}
    s_cbranch_scc1 L_POLLX_{name}
    s_sleep 2
    s_branch L_POLL_{name}""")
    a.label(f"L_POLLX_{name}")

def poll_zero_done(a, name):
    srd(a, SRD4, P_DBG, 256)
    a("s_mov_b32 s69, 0")
    poll(a, name, 69, 64, SRD4)

def signal(a, s_off, nwaves, ldsaddr):
    n = signal.n; signal.n += 1
    a(f"""s_waitcnt vmcnt(0)
    v_mov_b32 v13, {ldsaddr}
    v_mov_b32 v14, 1
    s_mov_b64 exec, 1
    ds_add_rtn_u32 v12, v13, v14
    s_waitcnt lgkmcnt(0)
    v_readfirstlane_b32 s79, v12
    v_mov_b32 v13, 0
    s_cmp_lg_u32 s79, {nwaves-1}
    s_cbranch_scc1 L_SIG_{n}
    buffer_atomic_add v14, v13, {sq(SRDWS)}, s{s_off} offen sc1""")
    a.label(f"L_SIG_{n}")
    a("s_mov_b64 exec, -1")
signal.n = 0

G_ACC, G_B, G_X = 16, 96, 176
G_XL = 40960
def g_ids(a):
    a(f"""s_and_b32 s52, s2, 7
    s_lshr_b32 s53, s2, 3
    s_and_b32 s57, s52, 3
    s_lshl_b32 s57, s57, 2
    s_and_b32 s54, s53, 3
    s_add_u32 s57, s57, s54
    s_lshr_b32 s52, s52, 2
    s_lshr_b32 s54, s53, 2
    s_lshl_b32 s58, s52, 2
    s_add_u32 s58, s58, s54
    s_lshl_b32 s52, s52, 1
    s_add_u32 s52, s52, s54
    s_add_u32 s52, s52, 4
    s_cmp_ge_u32 s54, 4
    s_cselect_b32 s58, s52, s58
    s_lshl_b32 s66, s{SW}, 12
    s_add_u32 s66, s66, {G_XL}""")

def g_setup(a):
    srd(a, SRD0, P_X, 2048 * 1280)
    srd(a, SRD1, P_W, 640 * 3840)
    a(f"""s_mul_i32 s59, s58, 160
    s_add_u32 s60, s59, 1280
    s_add_u32 s61, s59, {2560-160}
    s_sub_u32 s59, s58, 8
    s_mul_i32 s59, s59, 320
    s_cmp_ge_u32 s58, 8
    s_cselect_b32 s60, s59, s60
    s_cselect_b32 s61, s59, s61
    s_mul_i32 s59, s{SW}, {8*3840}
    s_add_u32 s60, s60, s59
    s_add_u32 s61, s61, s59
    s_mul_i32 s62, s57, 3
    s_lshl_b32 s59, s58, 1
    s_add_u32 s62, s62, s59
    s_mul_i32 s59, s62, 205
    s_lshr_b32 s59, s59, 11
    s_mul_i32 s59, s59, 10
    s_sub_u32 s62, s62, s59
    s_lshl_b32 s64, s62, 7
    s_mul_i32 s63, s62, {64*3840}
    s_mul_i32 s65, s{SW}, 2560
    s_and_b32 s67, s{SW}, 1
    s_lshl_b32 s67, s67, 1""")
    assert all((v * 205) >> 11 == v // 10 for v in range(70))
    a(f"v_mov_b32 v244, s60\n v_mov_b32 v245, s61")
    for i in range(3):
        a(f"""v_add_u32 v240, {64*i}, v1
        v_mul_u32_u24 v241, 3277, v240
        v_lshrrev_b32 v241, 16, v241
        v_mul_u32_u24 v242, 20, v241
        v_sub_u32 v240, v240, v242
        v_xor_b32 v240, s67, v240
        v_lshlrev_b32 v240, 4, v240
        v_cmp_gt_u32 vcc, 160, v240
        v_mul_u32_u24 v241, 3840, v241
        v_add_u32 v240, v240, v241
        v_cndmask_b32 v242, v245, v244, vcc
        v_add_u32 v{2+i}, v240, v242""")
    a(f"""v_lshrrev_b32 v240, 3, v1
    s_lshl_b32 s59, s57, 7
    s_lshl_b32 s54, s{SW}, 5
    s_add_u32 s59, s59, s54
    v_add_u32 v240, s59, v240
    v_mul_u32_u24 v240, 1280, v240
    v_lshrrev_b32 v241, 4, v1
    v_and_b32 v242, 7, v1
    v_xor_b32 v242, v242, v241
    v_lshl_add_u32 v5, v242, 4, v240
    v_xor_b32 v242, 4, v242
    v_lshl_add_u32 v6, v242, 4, v240
    v_add_u32 v6, 10240, v6
    v_add_u32 v7, 20480, v5
    v_add_u32 v8, 20480, v6""")

def g_setup2(a):
    a(f"""v_lshrrev_b32 v241, 4, v1
    v_bfe_u32 v242, v1, 2, 2
    v_lshl_add_u32 v242, v241, 3, v242
    v_mul_u32_u24 v242, 320, v242
    v_and_b32 v243, 3, v1
    v_lshl_add_u32 v242, v243, 3, v242
    v_and_b32 v243, 1, v241
    v_lshlrev_b32 v243, 5, v243
    v_add_u32 v9, v242, v243
    v_sub_u32 v10, v242, v243
    v_and_b32 v240, 15, v1
    v_lshrrev_b32 v242, 1, v240
    v_xor_b32 v242, v242, v241
    v_lshlrev_b32 v240, 7, v240
    v_add_u32 v240, s66, v240
    v_lshl_add_u32 v11, v242, 4, v240
    v_xor_b32 v242, 4, v242
    v_lshl_add_u32 v12, v242, 4, v240""")

def g_wload(t):
    slot = t % 4
    o = [[f"s_add_u32 m0, s65, {slot*10240}", "s_add_u32 s68, s63, 0" if t % 2 == 0 else f"s_add_u32 s68, s63, {32*3840}",
          f"buffer_load_dwordx4 v2, {sq(SRD1)}, s68 offen lds ; tag=W{t}", "s_add_u32 m0, m0, 1024"],
         [f"buffer_load_dwordx4 v3, {sq(SRD1)}, s68 offen lds ; tag=W{t}", "s_add_u32 m0, m0, 1024"],
         ["s_mov_b32 exec_hi, 0", f"buffer_load_dwordx4 v4, {sq(SRD1)}, s68 offen lds ; tag=W{t}", "s_mov_b32 exec_hi, -1"]]
    if t % 2 == 1:
        o.append([f"s_add_u32 s63, s63, {64*3840}", f"s_cmp_eq_u32 s63, {640*3840}", "s_cselect_b32 s63, 0, s63"])
    return o
def g_xload(j):
    o = []
    for i in range(4):
        o.append([f"s_add_u32 m0, s66, {(j%2)*16384 + i*1024}", "s_nop 0", f"buffer_load_dwordx4 v{5+i}, {sq(SRD0)}, s64 offen lds ; tag=X{j}"])
    o.append(["s_add_u32 s64, s64, 128", "s_cmp_eq_u32 s64, 1280", "s_cselect_b32 s64, 0, s64"])
    return o
def g_xreads(j):
    return [f"ds_read_b128 {v4(G_X + (j&1)*16 + ks*8 + sub*4)}, v{11+ks} offset:{(j%2)*16384 + sub*2048}" for ks in range(2) for sub in range(2)]
def g_reads(t):
    o = []
    for n in range(10):
        for h in range(2):
            off = (t % 4) * 10240 + h * 1280 + 32 * n
            o.append(f"ds_read_b64_tr_b16 {v2(G_B + (t & 1) * 40 + n * 4 + 2 * h)}, v{9 + (n & 1)} offset:{off}")
    return o

def role_loader(a):
    g_setup(a)
    for g in g_wload(0) + g_xload(0) + g_wload(1) + g_xload(1) + g_wload(2) + g_wload(3): a.extend(g)
    stamp(a, 1)
    a("WAITTAG W0 X0\n s_barrier")
    for t in range(19):
        j, ks = t // 2, t % 2
        a(f"WAITTAG W{t+1}" + (f" X{j+1}" if ks == 1 else "")); a("s_barrier")
        ld = []
        if t + 4 < 20: ld += g_wload(t + 4)
        if ks == 0 and j + 2 < 10: ld += g_xload(j + 2)
        for g in ld: a.extend(g)
    stamp(a, 2)

def g_main(a, transposed):
    a("s_waitcnt vmcnt(0)\n s_barrier")
    stamp(a, 1)
    a.extend(g_xreads(0) + g_reads(0))
    for t in range(20):
        j, ks = t // 2, t % 2
        mf = []
        for n in range(10):
            for sub in range(2):
                acc = v4(G_ACC + (sub * 10 + n) * 4)
                x = v4(G_X + (j & 1) * 16 + ks * 8 + sub * 4)
                b = v4(G_B + (t & 1) * 40 + n * 4)
                c = "0" if t == 0 else acc
                mf.append(f"v_mfma_f32_16x16x32_bf16 {acc}, {b}, {x}, {c}" if transposed else f"v_mfma_f32_16x16x32_bf16 {acc}, {x}, {b}, {c}")
        rd = []
        if t < 19:
            a("s_waitcnt lgkmcnt(0)\n s_barrier")
            rd = g_reads(t + 1)
            if ks == 1: rd = g_xreads(j + 1) + rd
        else:
            a("s_waitcnt lgkmcnt(0)")
            bar_arrive(a)
        a.extend(interleave(mf, rd, 0, 15))
    stamp(a, 2)

def g_consts(a):
    a(f"s_mov_b32 s72, {LOG2E}\n s_mov_b32 s73, {EPS}")

def role_q(a):
    g_main(a, True)
    g_consts(a)
    a(f"""s_lshl_b32 s52, s57, 3
    s_lshl_b32 s53, s{SW}, 1
    s_add_u32 s52, s52, s53
    s_mul_i32 s52, s52, 20
    s_sub_u32 s53, s58, 8
    s_mul_i32 s54, s53, 5
    s_add_u32 s52, s52, s54
    s_lshl_b32 s52, s52, 10
    s_add_u32 s52, s52, {WS_PQ}
    v_lshlrev_b32 v2, 4, v1""")
    for sub in range(2):
        for c in range(5):
            r0 = G_ACC + (sub * 10 + 2 * c) * 4
            a.extend(phi_block(list(range(r0, r0 + 8)), list(range(240, 248))))
            d = G_B + (sub * 5 + c) * 4
            for k in range(4): a(f"v_cvt_pk_bf16_f32 v{d+k}, v{r0+2*k}, v{r0+2*k+1}")
            a(f"s_add_u32 s54, s52, {(sub*20+c)*1024}")
            a(f"buffer_store_dwordx4 {v4(d)}, v2, {sq(SRDWS)}, s54 offen" + (" sc1" if cfg.fused else ""))
    stamp(a, 3)
    poll_zero_done(a, "q")
    a(f"s_lshl_b32 s54, s57, 2\n s_add_u32 s54, s54, s53\n s_lshl_b32 s54, s54, 7\n s_add_u32 s54, s54, {WS_QFLAG}")
    signal(a, 54, 4, L_SIG)
    stamp(a, 4)

def role_kv(a):
    g_main(a, False)
    g_consts(a)
    bar_wait(a)
    a(f"""v_lshlrev_b32 v2, 4, v1
    s_mul_i32 s52, s{SW}, 10240
    v_add_u32 v3, s52, v2
    s_lshl_b32 s52, s{SW}, 10
    v_add_u32 v4, s52, v2""")
    order = [5, 6, 7, 8, 9, 0, 1, 2, 3, 4]
    for t in order:
        r0 = G_ACC + t * 4; r1 = G_ACC + (10 + t) * 4
        if t < 5: a.extend(phi_block(list(range(r0, r0 + 4)) + list(range(r1, r1 + 4)), list(range(240, 248))))
        d = G_B + t * 4
        a(f"v_cvt_pk_bf16_f32 v{d}, v{r0}, v{r0+1}\n v_cvt_pk_bf16_f32 v{d+1}, v{r0+2}, v{r0+3}")
        a(f"v_cvt_pk_bf16_f32 v{d+2}, v{r1}, v{r1+1}\n v_cvt_pk_bf16_f32 v{d+3}, v{r1+2}, v{r1+3}")
        a(f"ds_write_b128 v3, {v4(d)} offset:{t*1024}")
    bar_arrive(a)
    for k in range(4): a(f"v_mov_b32 v{248+k}, 0x3f803f80")
    HB = 40960; DUMP = 40960 + 4 * 2048
    a(f"""v_and_b32 v5, 15, v1
    v_lshrrev_b32 v6, 4, v1
    v_lshlrev_b32 v6, 2, v6
    s_lshl_b32 s52, s{SW}, 2
    v_subrev_u32 v5, s52, v5
    v_subrev_u32 v6, s52, v6
    s_lshl_b32 s53, s{SW}, 11
    s_add_u32 s53, s53, {HB}
    v_mov_b32 v15, {DUMP}""")
    k = 0
    for dt in range(2):
        for et in range(2):
            a(f"""v_add_u32 v240, {16*dt}, v6
            v_add_u32 v241, {16*et}, v5
            v_max_u32 v242, v240, v241
            v_cmp_gt_u32 vcc, 20, v242
            v_mul_u32_u24 v241, 80, v241
            v_lshl_add_u32 v241, v240, 2, v241
            v_add_u32 v241, s53, v241
            v_cndmask_b32 v{7+k}, v15, v241, vcc""")
            k += 1
        a(f"""v_add_u32 v240, {16*dt}, v6
        v_and_b32 v241, 15, v1
        v_mul_u32_u24 v241, 20, v241
        v_max_u32 v242, v240, v241
        v_cmp_gt_u32 vcc, 20, v242
        v_lshlrev_b32 v240, 2, v240
        v_add_u32 v240, s53, v240
        v_add_u32 v240, 1600, v240
        v_cndmask_b32 v{11+dt}, v15, v240, vcc""")
    bar_wait(a)
    F = 176
    for rg in range(4):
        for q, off in enumerate([0, 1024, 5120, 6144]):
            a(f"ds_read_b128 {v4(F + rg*16 + q*4)}, v4 offset:{rg*10240 + off}")
    D = 16
    for rg in range(4):
        for dt in range(2):
            A = v4(F + rg * 16 + dt * 4)
            for et in range(2):
                acc = v4(D + (dt * 2 + et) * 4)
                a(f"v_mfma_f32_16x16x32_bf16 {acc}, {A}, {v4(F + rg*16 + 8 + et*4)}, {'0' if rg == 0 else acc}")
            acc = v4(D + 16 + dt * 4)
            a(f"v_mfma_f32_16x16x32_bf16 {acc}, {A}, v[248:251], {'0' if rg == 0 else acc}")
    for k in range(6): a(f"ds_write_b128 v{7+k}, {v4(D + 4*k)}")
    a(f"v_lshlrev_b32 v2, 2, v1\n v_add_u32 v3, s53, v2\n s_waitcnt lgkmcnt(0)")
    for i in range(7): a(f"ds_read_b32 v{48+i}, v3 offset:{256*i}")
    bar_arrive(a)
    stamp(a, 3)
    poll_zero_done(a, "kv")
    a(f"""s_lshl_b32 s52, s58, 2
    s_add_u32 s52, s52, s{SW}
    s_mul_i32 s52, s52, 1680
    s_add_u32 s52, s52, {WS_KV}
    s_waitcnt lgkmcnt(0)""")
    for i in range(7):
        if i == 6: a("s_mov_b32 exec_lo, -1\n s_mov_b32 exec_hi, 0xf")
        a(f"buffer_atomic_add_f32 v{48+i}, v2, {sq(SRDWS)}, s52 offen offset:{256*i}")
    a("s_mov_b64 exec, -1")
    a(f"s_lshl_b32 s54, s58, 7")
    signal(a, 54, 4, L_SIG)
    stamp(a, 4)

def role_prep(a):
    a(f"""s_sub_u32 s56, s2, 192
    s_lshr_b32 s52, s56, 1
    s_lshl_b32 s52, s52, 6
    s_and_b32 s57, s56, 1
    s_mul_i32 s53, s57, 320
    s_sub_u32 s54, s77, 5
    s_lshl_b32 s54, s54, 1
    s_cmp_lt_u32 s77, 5
    s_cselect_b32 s54, s77, s54
    s_lshl_b32 s54, s54, 6
    s_add_u32 s53, s53, s54
    v_lshrrev_b32 v2, 3, v1
    v_lshlrev_b32 v2, 3, v2
    v_add_u32 v2, s52, v2
    v_and_b32 v3, 7, v1
    v_lshlrev_b32 v3, 3, v3
    v_add_u32 v3, s53, v3
    v_mul_u32_u24 v4, 1280, v2
    v_lshl_add_u32 v4, v3, 1, v4
    v_lshlrev_b32 v7, 12, v3
    s_movk_i32 s55, 5120
    s_mov_b32 s60, 0x05040100
    s_mov_b32 s61, 0x07060302
    s_mov_b32 s62, 0xffff0000
    s_cmp_lt_u32 s77, 5
    s_cbranch_scc0 L_PQ""")
    tag(a, 3)
    srd(a, SRD0, P_K, 2048 * 1280); srd(a, SRD1, P_V, 2048 * 1280); srd(a, SRD3, P_SH, 640 * 8)
    K, V, C = 16, 60, 92
    a("v_subrev_u32 v5, 3840, v4\n v_lshlrev_b32 v6, 3, v3")
    for r in range(3): a(f"buffer_load_dwordx4 {v4(K+4*r)}, v5, {sq(SRD0)}, 0 offen offset:{1280*r}")
    for r in range(8): a(f"buffer_load_dwordx4 {v4(K+12+4*r)}, v4, {sq(SRD0)}, {'s55' if r >= 4 else '0'} offen offset:{1280*(r%4)}")
    for r in range(4): a(f"buffer_load_dwordx4 {v4(C+4*r)}, v6, {sq(SRD3)}, 0 offen offset:{16*r}")
    for r in range(8): a(f"buffer_load_dwordx4 {v4(V+4*r)}, v4, {sq(SRD1)}, {'s55' if r >= 4 else '0'} offen offset:{1280*(r%4)}")
    a("v_sub_u32 v9, 2040, v2\n v_lshl_add_u32 v7, v9, 1, v7\n s_barrier")
    stamp(a, 1)
    P, T, U, O = 108, 120, 128, 136
    for ch in range(8):
        dw, hi = ch // 2, ch % 2
        sel = "s61" if hi else "s60"
        for s_ in range(-2, 8):
            a(f"v_perm_b32 v{P+s_+2}, v{K+4*(s_+2)+dw}, v{K+4*(s_+3)+dw}, {sel}")
        for s_ in range(8): a(f"v_dot2_f32_bf16 v{T+s_}, v{P+s_}, v{C+2*ch+1}, 0")
        for s_ in range(8): a(f"v_dot2_f32_bf16 v{T+s_}, v{P+s_+2}, v{C+2*ch}, v{T+s_}")
        for s_ in range(8):
            a(f"v_and_b32 v{U+s_}, s62, v{V+4*s_+dw}" if hi else f"v_lshlrev_b32 v{U+s_}, 16, v{V+4*s_+dw}")
        for s_ in range(8): a(f"v_mul_f32 v{T+s_}, v{T+s_}, v{U+s_}")
        o = O + 4 * ch
        for j in range(4): a(f"v_cvt_pk_bf16_f32 v{o+j}, v{T+7-2*j}, v{T+6-2*j}")
        a(f"s_mov_b32 s54, {WS_UT + 4096*ch}\n buffer_store_dwordx4 {v4(o)}, v7, {sq(SRDWS)}, s54 offen sc1")
    a("s_branch L_PSIG")
    a.label("L_PQ")
    tag(a, 6)
    srd(a, SRD2, P_Q, 2048 * 1280)
    a(f"s_cmp_lg_u32 s77, 7\n s_cbranch_scc1 L_PQ1")
    srd(a, SRD4, P_DBG, 256)
    a(f"""v_lshlrev_b32 v8, 4, v1
    v_mov_b32 v16, 0
    v_mov_b32 v17, 0
    v_mov_b32 v18, 0
    v_mov_b32 v19, 0
    s_lshl_b32 s54, s56, 10
    buffer_store_dwordx4 v[16:19], v8, {sq(SRDWS)}, s54 offen sc1
    v_mov_b32 v8, 1
    s_waitcnt vmcnt(0)
    s_mov_b64 exec, 1
    buffer_atomic_add v8, v16, {sq(SRD4)}, 0 offen sc1
    s_mov_b64 exec, -1
    s_waitcnt vmcnt(0)""")
    a.label("L_PQ1")
    Q = 16
    for st in range(2):
        for r in range(8): a(f"buffer_load_dwordx4 {v4(Q+32*st+4*r)}, v4, {sq(SRD2)}, {'s55' if r >= 4 else '0'} offen offset:{1280*(r%4) + 128*st}")
    a("v_lshl_add_u32 v8, v2, 1, v7\n s_barrier")
    stamp(a, 1)
    for st in range(2):
        if st == 1: a("s_cmp_eq_u32 s77, 7\n s_cbranch_scc1 L_PSIG")
        for ch in range(8):
            dw, hi = ch // 2, ch % 2
            sel = "s61" if hi else "s60"
            o = 80 + 32 * st + 4 * ch
            for j in range(4): a(f"v_perm_b32 v{o+j}, v{Q+32*st+4*(2*j+1)+dw}, v{Q+32*st+4*(2*j)+dw}, {sel}")
            a(f"s_mov_b32 s54, {WS_QT + 4096*(ch + 64*st)}\n buffer_store_dwordx4 {v4(o)}, v8, {sq(SRDWS)}, s54 offen sc1")
    a.label("L_PSIG")
    a("s_waitcnt vmcnt(0)")
    stamp(a, 2)
    poll_zero_done(a, "prep")
    a(f"s_lshl_b32 s54, s57, 7\n s_add_u32 s54, s54, {WS_PREPC}")
    signal(a, 54, 8, L_SIG)
    stamp(a, 3)

C_HCOPY = 4224; C_UH = 148; C_WAVE = 2 * C_HCOPY + 2 * C_UH * 16
C_STG = HALF + 4 * C_WAVE; C_STGP = 4160
def role_conv(a):
    sc = " sc1" if cfg.fused else ""
    ACC, A, RAW, B, QV, UL = 16, 48, 80, 128, 192, 208
    a(f"""s_and_b32 s52, s2, 7
    s_mul_i32 s52, s52, 20
    s_lshr_b32 s53, s2, 3
    s_sub_u32 s53, s53, 12
    s_add_u32 s57, s52, s53
    s_lshl_b32 s58, s57, 2
    s_add_u32 s58, s58, s{SW}
    s_lshl_b32 s59, s58, 12
    s_mul_i32 s60, s{SW}, {C_WAVE}
    s_add_u32 s60, s60, {HALF}
    s_add_u32 s52, s{P_H}, s59
    s_addc_u32 s53, s{P_H+1}, 0
    s_load_dword s66, s[52:53], 0
    s_lshr_b32 s54, s58, 1
    s_lshl_b32 s54, s54, 2
    s_load_dword s67, s[{P_D}:{P_D+1}], s54
    v_lshlrev_b32 v2, 4, v1
    v_add_u32 v3, 4, v2""")
    srd(a, SRD0, P_H, 640 * 4096)
    srd(a, SRD1, P_OUT, 2048 * 2560)
    a(f"s_add_u32 m0, s60, 32")
    for i in range(4): a(f"buffer_load_dwordx4 v2, {sq(SRD0)}, s59 offen offset:{1024*i} lds")
    a(f"s_add_u32 m0, s60, {C_HCOPY + 32}")
    for i in range(4): a(f"buffer_load_dwordx4 v3, {sq(SRD0)}, s59 offen offset:{1024*i} lds")
    a(f"""v_mov_b32 v4, 0
    v_mov_b32 v5, 0
    v_mov_b32 v6, 0
    v_mov_b32 v7, 0
    v_and_b32 v8, 15, v1
    v_lshrrev_b32 v9, 4, v1
    v_and_b32 v10, 1, v9
    v_mul_u32_u24 v10, {C_UH}, v10
    v_add_u32 v10, v10, v8
    v_lshlrev_b32 v10, 4, v10
    v_add_u32 v10, s60, v10
    ds_write_b128 v10, v[4:7] offset:{2*C_HCOPY + 128*16}
    v_and_b32 v10, 1, v1
    v_lshlrev_b32 v10, 4, v10
    v_bfe_u32 v11, v1, 1, 1
    v_mul_u32_u24 v11, {C_HCOPY}, v11
    v_add3_u32 v10, v10, v11, s60
    ds_write_b128 v10, v[4:7]""")
    a(f"""v_add_u32 v10, 1, v8
    v_bfe_u32 v11, v10, 1, 1
    v_mul_u32_u24 v11, {C_HCOPY}, v11
    v_lshrrev_b32 v12, 2, v10
    v_lshl_add_u32 v12, v9, 3, v12
    v_lshl_add_u32 v11, v12, 3, v11
    v_add_u32 v4, s60, v11
    v_and_b32 v10, 1, v10
    v_lshlrev_b32 v5, 4, v10
    v_lshlrev_b32 v10, 1, v9
    v_sub_u32 v10, v10, v8
    v_add_u32 v10, 15, v10
    v_lshlrev_b32 v10, 4, v10
    v_add_u32 v6, s60, v10
    v_lshrrev_b32 v10, 1, v1
    v_and_b32 v11, 1, v1
    v_mul_u32_u24 v11, {C_UH}, v11
    v_add_u32 v10, v10, v11
    v_lshlrev_b32 v10, 4, v10
    v_add_u32 v7, s60, v10
    v_lshlrev_b32 v10, 5, v8
    v_lshl_add_u32 v8, v9, 3, v10""")
    a(f"""s_waitcnt lgkmcnt(0)
    s_lshl_b32 s52, s66, 16
    s_lshl_b32 s53, s67, 16
    s_and_b32 s54, s67, 0xffff0000
    s_bitcmp1_b32 s58, 0
    s_cselect_b32 s53, s54, s53
    s_and_b32 s54, s66, 0xffff0000
    v_mov_b32 v10, s52
    v_add_f32 v10, s53, v10
    v_mov_b32 v11, s54
    v_cvt_pk_bf16_f32 v10, v10, v11
    v_mov_b32 v11, s60""")
    stamp(a, 4)
    poll_zero_done(a, "conv")
    a(f"s_cmp_ge_u32 s57, 80\n s_cselect_b32 s54, 128, 0\n s_add_u32 s54, s54, {WS_PREPC}")
    poll(a, "conv2", 54, 32)
    stamp(a, 5)
    a(f"s_add_u32 s54, s59, {WS_UT}\n s_add_u32 s55, s59, {WS_QT}")
    for i in range(4): a(f"buffer_load_dwordx4 {v4(UL+4*i)}, v2, {sq(SRDWS)}, s54 offen offset:{1024*i}{sc}")
    for J in range(8): a(f"buffer_load_dwordx2 {v2(QV+2*J)}, v8, {sq(SRDWS)}, s55 offen offset:{512*J}{sc}")
    a(f"s_waitcnt vmcnt(12)\n ds_write_b32 v11, v10 offset:32\n ds_write_b32 v11, v10 offset:{C_HCOPY+28}")
    def raw_slots(i):
        return [(0, 1, 2), (2, 0, 1), (1, 2, 0), (0, 1, 2)][i]
    def raw_reads(it, N1):
        N0, i = it >> 2, it & 3
        sl = raw_slots(i)
        return [f"ds_read_b64 {v2(RAW + N1*6 + 2*sl[k])}, v4 offset:{(2*N1+N0)*256 + (2*i+k)*8}" for k in range(0 if i == 0 else 1, 3)]
    def aligns(it, N1):
        sl = raw_slots(it & 3)
        d = [RAW + N1 * 6 + 2 * sl[0], RAW + N1 * 6 + 2 * sl[0] + 1, RAW + N1 * 6 + 2 * sl[1], RAW + N1 * 6 + 2 * sl[1] + 1, RAW + N1 * 6 + 2 * sl[2]]
        return [f"v_alignbit_b32 v{A + 4*N1 + k}, v{d[k+1]}, v{d[k]}, v5" for k in range(4)]
    def b_reads(it):
        N0, i = it >> 2, it & 3
        return [f"ds_read_b128 {v4(B + (it&1)*32 + 4*dl)}, v6 offset:{2*C_HCOPY + (14-(2*dl-N0))*128 + (i>>1)*16 + (i&1)*C_UH*16}" for dl in range(8)]
    for N1 in range(8): a.extend(raw_reads(0, N1))
    for i in range(4): a(f"ds_write_b128 v7, {v4(UL+4*i)} offset:{2*C_HCOPY + 512*i}")
    for N1 in range(8):
        a.extend(aligns(0, N1)); a.extend(raw_reads(1, N1))
    a.extend(b_reads(0))
    stamp(a, 6)
    queue = []
    for it in range(8):
        if it < 7: queue += b_reads(it + 1)
        for N1 in range(8):
            tag = f"v_alignbit_b32 v{A+4*N1+3},"
            pos = max((k for k, q in enumerate(queue) if q.startswith(tag)), default=-1)
            for q in queue[:pos + 1]: a(q)
            queue = queue[pos + 1:]
            for J in range(N1, 8):
                acc = v4(ACC + 4 * J)
                c = "0" if (it == 0 and N1 == 0) else acc
                a(f"v_mfma_f32_16x16x32_bf16 {acc}, {v4(A+4*N1)}, {v4(B + (it&1)*32 + 4*(J-N1))}, {c}")
                for _ in range(2):
                    if queue: a(queue.pop(0))
            if it < 7: queue += aligns(it + 1, N1)
            if it < 6: queue += raw_reads(it + 2, N1)
        assert not any(q.startswith("ds_read_b128") for q in queue)
    assert not queue
    stamp(a, 7)
    a(f"""s_mov_b32 s62, 0xffff0000
    s_mul_i32 s52, s{SW}, {C_STGP}
    s_add_u32 s52, s52, {C_STG}
    v_add_u32 v9, s52, v8""")
    for J in range(8):
        T = 224 + (J & 1) * 8
        a(f"""v_lshlrev_b32 v{T}, 16, v{QV+2*J}
        v_and_b32 v{T+1}, s62, v{QV+2*J}
        v_lshlrev_b32 v{T+2}, 16, v{QV+2*J+1}
        v_and_b32 v{T+3}, s62, v{QV+2*J+1}""")
        for r in range(4): a(f"v_mul_f32 v{T+r}, v{T+r}, v{ACC+4*J+r}")
        a(f"v_cvt_pk_bf16_f32 v{T+4}, v{T}, v{T+1}\n v_cvt_pk_bf16_f32 v{T+5}, v{T+2}, v{T+3}")
        a(f"ds_write_b64 v9, {v2(T+4)} offset:{512*J}")
    bar_arrive(a)
    a(f"""v_bfe_u32 v10, v1, 2, 2
    v_mul_u32_u24 v10, {C_STGP}, v10
    v_and_b32 v11, 3, v1
    v_lshl_add_u32 v10, v11, 3, v10
    v_lshrrev_b32 v11, 4, v1
    v_lshl_add_u32 v10, v11, 5, v10
    s_lshl_b32 s52, s{SW}, 10
    s_add_u32 s52, s52, {C_STG}
    v_add_u32 v10, s52, v10
    s_lshl_b32 s52, s{SW}, 9
    v_add_u32 v11, s52, v1
    v_mul_u32_u24 v11, 2560, v11
    s_lshl_b32 s52, s57, 3""")
    bar_wait(a)
    stamp(a, 8)
    for i in range(8): a(f"ds_read_b64_tr_b16 {v2(48+2*i)}, v10 offset:{128*i}")
    for i in range(8):
        a(f"buffer_store_dwordx2 {v2(48+2*i)}, v11, {sq(SRD1)}, s52 offen")
        if i < 7: a(f"s_add_u32 s52, s52, {64*2560}")

def b2_tables(hf):
    num = {}
    for t in range(5 * hf, 5 * hf + 5):
        hs = {e // 20 for e in range(16 * t, 16 * t + 16)}
        dts = [dt for dt in range(10) if hs & {d // 20 for d in range(16 * dt, 16 * dt + 16)}]
        ch = {}
        for dt in dts: ch.setdefault(dt // 2, []).append(dt)
        num[t] = sorted(ch.items())
    ch = {}
    for dt in range(5 * hf, 5 * hf + 5): ch.setdefault(dt // 2, []).append(dt)
    return num, sorted(ch.items())

B_KS = 8416
def role_b2(a):
    sc = " sc1" if cfg.fused else ""
    PQ, W0, W1, KV, RAW = 16, 56, 88, 120, 192
    ACC, W2, W3 = 120, 184, 216
    U = [192, 216]
    a(f"""s_and_b32 s52, s56, 7
    s_lshr_b32 s53, s56, 3
    s_mul_i32 s54, s53, 205
    s_lshr_b32 s54, s54, 10
    s_lshl_b32 s57, s52, 3
    s_add_u32 s57, s57, s54
    s_mul_i32 s54, s54, 5
    s_sub_u32 s58, s53, s54""")
    srd(a, SRD0, P_WO, 640 * 1280)
    srd(a, SRD1, P_OUT, 2048 * 2560)
    a(f"""s_lshl_b32 s59, s58, 8
    s_mul_i32 s52, s{SW}, {160*1280}
    s_add_u32 s59, s59, s52
    s_and_b32 s53, s{SW}, 1
    s_lshl_b32 s53, s53, 7
    s_mul_i32 s65, s{SW}, 20480
    s_add_u32 s65, s65, s{SLB}
    v_and_b32 v8, 15, v1
    v_lshrrev_b32 v9, 4, v1
    v_lshlrev_b32 v2, 4, v8
    v_xor_b32 v2, s53, v2
    v_mul_u32_u24 v10, {8*1280}, v9
    v_add3_u32 v2, v2, v10, s59""")
    def dma(kstep, slot):
        return [[f"s_add_u32 m0, s65, {slot*B_KS + i*1056}", f"s_mov_b32 s63, {(32*kstep + i)*1280}",
                 f"buffer_load_dwordx4 v2, {sq(SRD0)}, s63 offen lds ; tag=K{kstep}"] for i in range(8)]
    def wreads(slot, dst):
        return [f"ds_read_b64_tr_b16 {v2(dst + 4*n + 2*h)}, v0 offset:{slot*B_KS + h*512 + 32*n}" for n in range(8) for h in range(2)]
    bar_wait(a)
    for g in dma(0, 0) + dma(1, 1): a.extend(g)
    a(f"""v_bfe_u32 v10, v1, 2, 3
    v_mul_u32_u24 v10, 1056, v10
    v_lshrrev_b32 v11, 5, v1
    v_lshl_add_u32 v10, v11, 8, v10
    v_and_b32 v11, 3, v1
    v_lshl_add_u32 v10, v11, 3, v10
    v_add_u32 v0, s65, v10
    s_add_u32 s64, s65, {2*B_KS}
    v_lshlrev_b32 v9, 3, v9
    v_mul_u32_u24 v3, 40, v8
    v_add3_u32 v3, v3, v9, s64
    v_mul_u32_u24 v4, 800, v11
    v_add3_u32 v4, v4, v9, s64
    v_lshlrev_b32 v5, 4, v1
    v_lshlrev_b32 v6, 3, v1
    v_add_u32 v6, s64, v6
    v_add_u32 v7, 4096, v5""")
    for r in range(KV, KV + 72): a(f"v_mov_b32 v{r}, 0")
    def pq_loads():
        a(f"""s_lshr_b32 s52, s{SW}, 1
        s_lshl_b32 s53, s57, 1
        s_add_u32 s54, s53, s52
        s_xor_b32 s52, s52, 1
        s_add_u32 s55, s53, s52
        s_mul_i32 s54, s54, 20480
        s_mul_i32 s55, s55, 20480
        s_mul_i32 s52, s{SW}, 5120
        s_add_u32 s52, s52, {WS_PQ}
        s_add_u32 s54, s54, s52
        s_add_u32 s55, s55, s52""")
        for sub in range(2):
            for c in range(5):
                a(f"buffer_load_dwordx4 {v4(PQ + (sub*5+c)*4)}, v{5 if c < 4 else 7}, {sq(SRDWS)}, s{54+sub} offen offset:{1024*(c%4)}{sc}")
    def kv_loads(hf):
        a(f"s_mul_i32 s52, s{SW}, {8*1680}\n s_add_u32 s52, s52, {WS_KV + hf*6720}")
        for i in range(7):
            a(f"buffer_load_dwordx4 {v4(RAW + hf*28 + 4*i)}, v{5 if i < 4 else 7}, {sq(SRDWS)}, s52 offen offset:{1024*(i%4)} sc1")
    def wo_prefetch():
        a("WAITTAG K0")
        a.extend(wreads(0, W0))
        a("WAITTAG K1")
        a.extend(wreads(1, W1))
        a("s_waitcnt lgkmcnt(0)")
        for g in dma(2, 0) + dma(3, 1): a.extend(g)
    if cfg.fused:
        wo_prefetch()
        stamp(a, 5)
        poll_zero_done(a, "b2")
        a(f"s_lshr_b32 s54, s57, 2\n s_lshl_b32 s54, s54, 2\n s_add_u32 s54, s54, s{SW}\n s_lshl_b32 s54, s54, 7\n s_add_u32 s54, s54, {WS_QFLAG}")
        poll(a, "b2q", 54, 1)
        pq_loads()
        a(f"s_lshl_b32 s54, s{SW}, 8")
        poll(a, "b2kv0", 54, 16)
        a(f"s_add_u32 s54, s54, 128")
        poll(a, "b2kv1", 54, 16)
        stamp(a, 6)
        kv_loads(0); kv_loads(1)
    else:
        kv_loads(0); kv_loads(1)
        pq_loads()
        stamp(a, 1)
        wo_prefetch()
        stamp(a, 2)
    a(f"""s_mov_b32 s73, {EPS}
    s_mov_b32 s66, 0xffff0000
    s_mov_b32 s67, -1
    s_mov_b32 s68, 0
    s_mov_b32 s69, -1
    s_mov_b32 s70, 0
    s_mov_b32 s71, 0xffff0000""")
    qi = {}
    tabs = [b2_tables(0), b2_tables(1)]
    for hf in range(2):
        for i in range(7):
            r = RAW + hf * 28 + 4 * i
            a(f"v_cvt_pk_bf16_f32 v{r}, v{r}, v{r+1}\n v_cvt_pk_bf16_f32 v{r+1}, v{r+2}, v{r+3}\n ds_write_b64 v6, {v2(r)} offset:{512*i}")
        num, den = tabs[hf]
        quads = [("z", hf, dt) for c, dts in den for dt in dts] + [("n", t, dt) for t in num for c, dts in num[t] for dt in dts]
        assert len(quads) == 18
        for (kind, t, dt) in quads:
            q = len(qi); qi[(kind, t, dt)] = q
            mask = 0
            for l in range(64):
                i, g = l & 15, l >> 4
                hd = (16 * dt + 4 * g) // 20
                he = (16 * t + i) // 20 if kind == "n" else (i & 3) + 4 * t
                if hd == he: mask |= 1 << l
            off = 640 * (t - 5 * hf) + 32 * (dt - 5 * hf) if kind == "n" else 800 + 32 * (dt - 5 * hf)
            a(f"s_mov_b32 exec_lo, {mask & 0xffffffff:#x}\n s_mov_b32 exec_hi, {mask >> 32:#x}")
            a(f"ds_read_b64 {v2(KV + 2*q)}, v{3 if kind == 'n' else 4} offset:{off}")
        a("s_mov_b64 exec, -1")
    stamp(a, 7)
    def omf(sub, hf, T):
        o = []
        num, den = tabs[hf]
        def one(kind, t, lst, acc):
            lst = sorted(lst, key=lambda x: len(x[1]))
            for k, (c, dts) in enumerate(lst):
                src = "0" if k == 0 else v4(acc)
                kv = KV + 2 * qi[(kind, t, dts[0])]
                pq = PQ + (sub * 5 + c) * 4
                key = (min(k, 1), 0 if kind == "z" else 1, t, k)
                if len(dts) == 2: o.append((key, f"v_mfma_f32_16x16x32_bf16 {v4(acc)}, {v4(kv)}, {v4(pq)}, {src}"))
                else: o.append((key, f"v_mfma_f32_16x16x16_bf16 {v4(acc)}, {v2(kv)}, {v2(pq + 2*(dts[0]&1))}, {src}"))
        one("z", hf, den, T)
        for t in num: one("n", t, num[t], T + 4 + 4 * (t - 5 * hf))
        return [x for _, x in sorted(o)]
    def ovalu(sub, hf, T):
        o = []
        for r in range(4): o.append(f"v_add_f32 v{T+r}, s73, v{T+r}")
        for r in range(4): o.append(f"v_rcp_f32 v{T+r}, v{T+r}")
        for tl in range(5):
            t = tl + 5 * hf
            h0 = (16 * tl) // 20; h1 = (16 * tl + 12) // 20
            rc = T + h0; n = T + 4 + 4 * tl
            if h0 != h1:
                g0 = min(g for g in range(4) if (16 * tl + 4 * g) // 20 == h1)
                o.append(f"v_cndmask_b32 v{rc}, v{T+h0}, v{T+h1}, s[{64+2*g0}:{65+2*g0}]")
            for r in range(4): o.append(f"v_mul_f32 v{n+r}, v{n+r}, v{rc}")
            d = PQ + (sub * 5 + t // 2) * 4 + 2 * (t & 1)
            o.append(f"v_cvt_pk_bf16_f32 v{d}, v{n}, v{n+1}")
            o.append(f"v_cvt_pk_bf16_f32 v{d+1}, v{n+2}, v{n+3}")
        return o
    def g2(sub, k, W):
        return [f"v_mfma_f32_16x16x32_bf16 {v4(ACC + (sub*8+n)*4)}, {v4(W+4*n)}, {v4(PQ + (sub*5+k)*4)}, {'0' if k == 0 else v4(ACC + (sub*8+n)*4)}" for n in range(8)]
    def both(k, W):
        x, y = g2(0, k, W), g2(1, k, W)
        return [z for p in zip(x, y) for z in p]
    units = [(0, 0), (1, 0), (0, 1), (1, 1)]
    a.extend(omf(*units[0], U[0]))
    for u in range(1, 4):
        m = omf(*units[u], U[u & 1])
        a.extend(interleave(m, ovalu(*units[u - 1], U[(u - 1) & 1]), 2))
    a("WAITTAG K2 K3")
    v3_ = ovalu(*units[3], U[1])
    p1 = interleave(both(0, W0), wreads(0, W2), 0, 8)
    p1 = interleave(p1, v3_, 4)
    a.extend(p1)
    a("s_waitcnt lgkmcnt(0)")
    a.extend(interleave(interleave(both(1, W1), dma(4, 0), 0, 8), wreads(1, W3), 8))
    a.extend(both(2, W2))
    b3 = both(3, W3)
    a.extend(b3[:4]); a("WAITTAG K4")
    a.extend(interleave(b3[4:], wreads(0, W0), 0, 8))
    a("s_waitcnt lgkmcnt(0)")
    bar_arrive(a)
    a.extend(both(4, W0))
    stamp(a, 8)
    for gam in range(1, 4):
        a(f"s_xor_b32 s52, s{SW}, {gam}\n s_mul_i32 s52, s52, 12288\n s_add_u32 s52, s52, {(gam-1)*4096}\n s_add_u32 s52, s52, s{SLB}\n v_add_u32 v{8+gam}, s52, v5")
    a(f"s_mul_i32 s52, s{SW}, 12288\n s_add_u32 s52, s52, s{SLB}\n v_add_u32 v8, s52, v5")
    bar_wait(a)
    for gam in range(1, 4):
        for k in range(4): a(f"ds_write_b128 v{8+gam}, {v4(ACC + (gam*4+k)*4)} offset:{1024*k}")
    bar_arrive(a)
    a(f"""s_mul_i32 s53, s{SW}, 2304
    s_add_u32 s53, s53, 49152
    s_add_u32 s53, s53, s{SLB}
    v_and_b32 v12, 15, v1
    v_mul_u32_u24 v12, 144, v12
    v_lshrrev_b32 v3, 4, v1
    v_lshl_add_u32 v12, v3, 3, v12
    v_add_u32 v12, s53, v12
    v_lshrrev_b32 v3, 3, v1
    v_and_b32 v4, 7, v1
    v_lshlrev_b32 v4, 4, v4
    v_mul_u32_u24 v15, 144, v3
    v_add3_u32 v15, v15, v4, s53
    s_lshl_b32 s52, s57, 5
    s_lshr_b32 s54, s{SW}, 1
    s_lshl_b32 s54, s54, 4
    s_add_u32 s52, s52, s54
    v_add_u32 v3, s52, v3
    v_mul_u32_u24 v3, 2560, v3
    v_add_u32 v3, v3, v4
    s_lshl_b32 s52, s58, 8
    s_and_b32 s54, s{SW}, 1
    s_lshl_b32 s54, s54, 7
    s_add_u32 s52, s52, s54
    s_add_u32 s52, s52, 1280
    s_add_u32 s54, s52, {8*2560}""")
    bar_wait(a)
    R = 192
    for k in range(4):
        for gam in range(3): a(f"ds_read_b128 {v4(R + (k*3+gam)*4)}, v8 offset:{gam*4096 + 1024*k}")
    for k in range(4):
        for r in range(4): a(f"v_add_f32 v{ACC+4*k+r}, v{ACC+4*k+r}, v{R+(k*3)*4+r}")
        for r in range(4): a(f"v_add_f32 v{R+(k*3+1)*4+r}, v{R+(k*3+1)*4+r}, v{R+(k*3+2)*4+r}")
        for r in range(4): a(f"v_add_f32 v{ACC+4*k+r}, v{ACC+4*k+r}, v{R+(k*3+1)*4+r}")
        a(f"v_cvt_pk_bf16_f32 v{16+2*k}, v{ACC+4*k}, v{ACC+4*k+1}\n v_cvt_pk_bf16_f32 v{17+2*k}, v{ACC+4*k+2}, v{ACC+4*k+3}")
        a(f"ds_write_b64 v12, {v2(16+2*k)} offset:{32*k}")
    a(f"ds_read_b128 v[24:27], v15\n ds_read_b128 v[28:31], v15 offset:{8*144}")
    a(f"buffer_store_dwordx4 v[24:27], v3, {sq(SRD1)}, s52 offen\n buffer_store_dwordx4 v[28:31], v3, {sq(SRD1)}, s54 offen")

def kd(name):
    return f""".p2align 6
.amdhsa_kernel {name}
  .amdhsa_next_free_vgpr 256
  .amdhsa_next_free_sgpr 102
  .amdhsa_accum_offset 256
  .amdhsa_group_segment_fixed_size 0
  .amdhsa_kernarg_size 96
  .amdhsa_user_sgpr_count 2
  .amdhsa_user_sgpr_kernarg_segment_ptr 1
  .amdhsa_system_sgpr_workgroup_id_x 1
  .amdhsa_float_denorm_mode_32 3
.end_amdhsa_kernel"""

def head(name): return f".globl {name}\n.p2align 8\n.type {name},@function"

def build():
    k = KN + "_kernel"
    a = Asm()
    a(head(k)); prologue(a, k, 256)
    a("s_cmp_ge_u32 s2, 192\n s_cbranch_scc1 L_P")
    g_ids(a)
    a(f"s_cmp_eq_u32 s{SGRP}, 0\n s_cbranch_scc1 L_CONS")
    tag(a, 7)
    role_loader(a)
    a("""s_cmp_ge_u32 s2, 96
    s_cbranch_scc1 L_CONV
    s_add_u32 s56, s2, 256
    s_cmp_lt_u32 s2, 64
    s_cbranch_scc1 L_B2
    s_branch L_FIN""")
    a.label("L_CONS")
    a("s_setprio 2")
    g_setup2(a)
    a("s_cmp_ge_u32 s58, 8\n s_cbranch_scc1 L_Q")
    tag(a, 1); role_kv(a); a("s_mov_b32 s56, s2\n s_branch L_B2")
    a.label("L_Q"); tag(a, 2); role_q(a); a("s_mov_b32 s56, s2\n s_branch L_B2")
    a.label("L_P"); role_prep(a)
    a(f"s_mov_b32 s56, s2\n s_cmp_eq_u32 s{SGRP}, 0\n s_cbranch_scc1 L_B2")
    a.label("L_CONV"); tag(a, 4); role_conv(a); a("s_branch L_FIN")
    a.label("L_B2"); a("s_setprio 2"); tag(a, 5); role_b2(a)
    a.label("L_FIN"); stamps_out(a)
    a.label("L_END"); a("s_endpgm")
    launch = [f"; @launch grid=(256,1,1) block=(512,1,1) lds={LDS_BYTES}"]
    return launch, a, [k]

def emit(path, launch, a, kernels, verbose=False):
    body = fix_hazards(insert_waits(a.lines), verbose)
    out = list(launch) + ['.amdgcn_target "amdgcn-amd-amdhsa--gfx950"', ".text", ".p2align 8", "L_CODE_BEGIN:"]
    out += [(l if l.endswith(":") or l.startswith(".") else "    " + l) for l in body]
    out += ["L_CODE_END:", "    s_endpgm", '.section .rodata,"a"'] + [kd(k) for k in kernels]
    open(path, "w").write("\n".join(out) + "\n")

if __name__ == "__main__":
    cfg.stamps = "stamps" in sys.argv[2:]
    emit(sys.argv[1], *build(), verbose="-v" in sys.argv)
```

```python
import sys
sys.path.insert(0, "dev")
from asmlib import *

KN = "concat_heads__ssm_conv_h3__linear_attn_block__prompt"
RKV, RPR = 16, 8
WS_KVCNT = 0x0000
WS_PREPC = 0x4000
WS_QCNT  = 0x4800
WS_KV    = 0x5000
WS_ZERO_BYTES = 131072
WS_UT    = 0x100000
WS_QT    = 0x400000
WS_PQ    = 0x700000
WS_STAMP = 0xA00000
WS_SIZE  = 0xB00000
LDS_BYTES = 163840
HALF = 81920
L_BAR = HALF - 64
L_SIG = HALF - 60
SGRP, SLB, SBT = 74, 75, 76
LOG2E = 0x3FB8AA3B
EPS = 0x358637BD

P_Q, P_K, P_V, P_SH, P_H, P_D, P_X, P_W, P_WO, P_OUT, P_DBG, P_WS = [4 + 2 * i for i in range(12)]
SRD0, SRD1, SRD2, SRD3, SRD4, SRDWS = 28, 32, 36, 40, 44, 48
SW = 3

def srd(a, d, p, nbytes):
    a(f"s_mov_b32 s{d}, s{p}\n s_and_b32 s{d+1}, s{p+1}, 0xffff\n s_mov_b32 s{d+2}, {nbytes}\n s_mov_b32 s{d+3}, 0x20000")
def sq(d): return f"s[{d}:{d+3}]"
def v4(r): return f"v[{r}:{r+3}]"
def v2(r): return f"v[{r}:{r+1}]"

class Cfg:
    fused = True
    stamps = False
cfg = Cfg()

NSTAMP = 10
def stamp(a, i):
    if cfg.stamps:
        a(f"s_memrealtime s[{80+2*i}:{81+2*i}]\n s_waitcnt lgkmcnt(0)")
def stamps_out(a):
    if not cfg.stamps: return
    a("s_waitcnt vmcnt(0) lgkmcnt(0)")
    stamp(a, NSTAMP - 1)
    a("s_memtime s[70:71]\n s_waitcnt lgkmcnt(0)\n s_sub_u32 s101, s70, s101")
    a(f"s_getreg_b32 s52, hwreg(HW_REG_HW_ID)\n s_getreg_b32 s53, hwreg(HW_REG_XCC_ID)")
    for i in range(NSTAMP): a(f"v_mov_b32 v{16+i}, s{80+2*i}")
    a(f"v_mov_b32 v26, s52\n v_mov_b32 v27, s53\n v_mov_b32 v28, s100\n v_mov_b32 v29, s2\n v_mov_b32 v30, s101\n v_mov_b32 v31, 0")
    a(f"s_lshl_b32 s54, s2, 9\n s_lshl_b32 s55, s{SW}, 6\n s_add_u32 s54, s54, s55\n s_lshl_b32 s55, s{SGRP}, 8\n s_add_u32 s54, s54, s55\n s_add_u32 s54, s54, {WS_STAMP}")
    a(f"v_mov_b32 v32, 0\n s_mov_b64 exec, 1")
    for i in range(4): a(f"buffer_store_dwordx4 {v4(16+4*i)}, v32, {sq(SRDWS)}, s54 offen offset:{16*i}")
    a("s_mov_b64 exec, -1")
def tag(a, t):
    if cfg.stamps: a(f"s_lshl_b32 s100, s100, 4\n s_add_u32 s100, s100, {t}")

def prologue(a, name, nwg):
    a.label(name)
    a(f"""s_load_dwordx16 s[4:19], s[0:1], 0
    s_load_dwordx8 s[20:27], s[0:1], 64
    s_cmp_ge_u32 s2, {nwg}
    s_cbranch_scc1 L_END
    v_and_b32 v1, 63, v0
    v_lshrrev_b32 v2, 6, v0
    s_mov_b32 s{SBT}, 0
    v_readfirstlane_b32 s77, v2""")
    if cfg.stamps:
        for i in range(NSTAMP): a(f"s_mov_b32 s{80+2*i}, 0")
        a("s_mov_b32 s100, 0\n s_memrealtime s[80:81]\n s_memtime s[70:71]\n s_waitcnt lgkmcnt(0)\n s_mov_b32 s101, s70")
    a(f"""s_and_b32 s{SW}, s77, 3
    s_lshr_b32 s{SGRP}, s77, 2
    s_mul_i32 s{SLB}, s{SGRP}, {HALF}
    s_cmp_lg_u32 s77, 3
    s_cbranch_scc1 L_NOPF
    s_getpc_b64 s[52:53]""")
    a.label("L_PC")
    a(f"""s_lshr_b32 s54, s2, 3
    s_and_b32 s54, s54, 7
    s_lshl_b32 s54, s54, 13
    v_lshlrev_b32 v3, 7, v1
    v_add_u32 v3, s54, v3
    s_sub_u32 s52, s52, L_PC-L_CODE_BEGIN
    s_subb_u32 s53, s53, 0
    v_min_u32 v3, L_CODE_END-L_CODE_BEGIN-4, v3
    global_load_dword v15, v3, s[52:53]
    v_and_b32 v4, 15, v1
    v_lshlrev_b32 v4, 2, v4
    v_bfe_u32 v5, v1, 4, 1
    v_mul_u32_u24 v5, {HALF}, v5
    v_add_u32 v4, v4, v5
    v_add_u32 v4, {L_BAR}, v4
    v_mov_b32 v5, 0
    ds_write_b32 v4, v5""")
    a.label("L_NOPF")

def args_ready(a):
    a("s_waitcnt lgkmcnt(0)")
    srd(a, SRDWS, P_WS, WS_SIZE if cfg.stamps else WS_STAMP)
    srd(a, SRD4, P_DBG, 256)

def bar_arrive(a):
    a(f"""v_mov_b32 v13, s{SLB}
    v_mov_b32 v14, 1
    v_add_u32 v13, {L_BAR}, v13
    s_add_u32 s{SBT}, s{SBT}, 4
    s_mov_b64 exec, 1
    ds_add_u32 v13, v14
    s_mov_b64 exec, -1""")
def bar_wait(a, sleep=0):
    n = bar_wait.n; bar_wait.n += 1
    a(f"v_mov_b32 v13, s{SLB}\n v_add_u32 v13, {L_BAR}, v13")
    a.label(f"L_BW_{n}")
    if sleep: a(f"s_sleep {sleep}")
    a(f"""ds_read_b32 v14, v13
    s_waitcnt lgkmcnt(0)
    v_readfirstlane_b32 s79, v14
    s_cmp_ge_u32 s79, s{SBT}
    s_cbranch_scc0 L_BW_{n}""")
bar_wait.n = 0
def swbar(a):
    bar_arrive(a); bar_wait(a)

def dma_offsets(a, vbase, pitch, s_seg0, s_seg1, row_shift, t0, t1, t2, s_rowbase=None):
    for i in range(5):
        assert all(((64 * i + l) * 3277) >> 16 == (64 * i + l) // 20 for l in range(64))
        a(f"""v_add_u32 v{t0}, {64*i}, v1
        v_mul_u32_u24 v{t1}, 3277, v{t0}
        v_lshrrev_b32 v{t1}, 16, v{t1}
        v_mul_u32_u24 v{t2}, 20, v{t1}
        v_sub_u32 v{t0}, v{t0}, v{t2}
        v_lshrrev_b32 v{t2}, {row_shift - 1}, v{t1}
        v_and_b32 v{t2}, 2, v{t2}
        v_xor_b32 v{t0}, v{t0}, v{t2}
        v_lshlrev_b32 v{t0}, 4, v{t0}
        v_mov_b32 v{t2}, s{s_seg0}
        v_mov_b32 v{vbase+i}, s{s_seg1}
        v_cmp_gt_u32 vcc, 160, v{t0}
        v_cndmask_b32 v{t2}, v{vbase+i}, v{t2}, vcc
        v_add_u32 v{t0}, v{t0}, v{t2}
        v_mul_u32_u24 v{t1}, {pitch}, v{t1}
        v_add_u32 v{vbase+i}, v{t0}, v{t1}""")

def phi(r, t):
    return [f"v_mul_f32 v{t}, s72, v{r}", f"v_max_f32 v{r}, s73, v{r}", f"v_exp_f32 v{t}, v{t} clamp", None, f"v_add_f32 v{r}, v{r}, v{t}"]

def phi_block(regs_, temps):
    out = []
    n = len(temps)
    for g in range(0, len(regs_), n):
        grp = regs_[g:g + n]
        for r, t in zip(grp, temps): out.append(f"v_mul_f32 v{t}, s72, v{r}")
        for r, t in zip(grp, temps): out.append(f"v_exp_f32 v{t}, v{t} clamp"); out.append(f"v_max_f32 v{r}, s73, v{r}")
        for r, t in zip(grp, temps): out.append(f"v_add_f32 v{r}, v{r}, v{t}")
    return out

def poll(a, name, s_off, target, nl=1, srdq=SRDWS, sleep=4):
    a(f"v_and_b32 v13, {nl-1}, v1\n v_lshlrev_b32 v13, 7, v13\n s_mov_b32 s78, 0")
    a.label(f"L_POLL_{name}")
    a(f"""s_mov_b64 exec, {(1 << nl) - 1}
    buffer_load_dword v14, v13, {sq(srdq)}, {s_off} offen sc1
    s_add_u32 s78, s78, 1
    s_waitcnt vmcnt(0)
    v_cmp_gt_u32 vcc, {target}, v14
    s_mov_b64 exec, -1
    s_cmp_ge_u32 s78, 0x20000
    s_cbranch_scc1 L_POLLX_{name}
    s_cbranch_vccz L_POLLX_{name}
    s_sleep {sleep}
    s_branch L_POLL_{name}""")
    a.label(f"L_POLLX_{name}")

def zero_probe(a, vreg):
    a(f"v_mov_b32 v{vreg}, 0\n buffer_load_dword v{vreg}, v{vreg}, {sq(SRD4)}, 0 offen sc1")
def zero_check(a, name, vreg):
    a(f"v_readfirstlane_b32 s79, v{vreg}\n s_cmp_ge_u32 s79, 64\n s_cbranch_scc1 L_ZOK_{name}")
    a("PUSHSTATE"); poll(a, "z" + name, "0", 64, 1, SRD4); a("POPSTATE")
    a.label(f"L_ZOK_{name}")

def signal(a, s_off, nwaves, ldsaddr, nrep=1, rstride_log2=7):
    n = signal.n; signal.n += 1
    a(f"""v_mov_b32 v13, {ldsaddr}
    v_mov_b32 v14, 1
    s_waitcnt vmcnt(0)
    s_mov_b64 exec, 1
    ds_add_rtn_u32 v12, v13, v14
    s_mov_b64 exec, {(1 << nrep) - 1}
    v_lshlrev_b32 v13, {rstride_log2}, v1
    s_waitcnt lgkmcnt(0)
    v_readfirstlane_b32 s79, v12
    s_cmp_lg_u32 s79, {nwaves-1}
    s_cbranch_scc1 L_SIG_{n}
    buffer_atomic_add v14, v13, {sq(SRDWS)}, s{s_off} offen sc1""")
    a.label(f"L_SIG_{n}")
    a("s_mov_b64 exec, -1")
signal.n = 0

def leader(a, name, body):
    a(f"s_cmp_lg_u32 s{SW}, 0\n s_cbranch_scc1 L_LD_{name}")
    a("PUSHSTATE"); body(); a("POPSTATE")
    a.label(f"L_LD_{name}")
    bar_arrive(a); bar_wait(a, sleep=1)

G_ACC, G_B, G_X = 16, 96, 176
G_XL = 40960
def g_ids(a):
    a(f"""s_and_b32 s52, s2, 7
    s_lshr_b32 s53, s2, 3
    s_and_b32 s57, s52, 3
    s_lshl_b32 s57, s57, 2
    s_and_b32 s54, s53, 3
    s_add_u32 s57, s57, s54
    s_lshr_b32 s52, s52, 2
    s_lshr_b32 s54, s53, 2
    s_lshl_b32 s58, s52, 2
    s_add_u32 s58, s58, s54
    s_lshl_b32 s52, s52, 1
    s_add_u32 s52, s52, s54
    s_add_u32 s52, s52, 4
    s_cmp_ge_u32 s54, 4
    s_cselect_b32 s58, s52, s58
    s_lshl_b32 s66, s{SW}, 12
    s_add_u32 s66, s66, {G_XL}""")

def g_setup(a):
    a(f"""s_mul_i32 s59, s58, 160
    s_add_u32 s60, s59, 1280
    s_add_u32 s61, s59, {2560-160}
    s_sub_u32 s59, s58, 8
    s_mul_i32 s59, s59, 320
    s_cmp_ge_u32 s58, 8
    s_cselect_b32 s60, s59, s60
    s_cselect_b32 s61, s59, s61
    s_mul_i32 s59, s{SW}, {16*3840}
    s_add_u32 s60, s60, s59
    s_add_u32 s61, s61, s59
    s_mul_i32 s62, s57, 3
    s_lshl_b32 s59, s58, 1
    s_add_u32 s62, s62, s59
    s_mul_i32 s59, s62, 205
    s_lshr_b32 s59, s59, 11
    s_mul_i32 s59, s59, 10
    s_sub_u32 s62, s62, s59
    s_lshl_b32 s64, s62, 7
    s_mul_i32 s63, s62, {64*3840}
    s_mul_i32 s65, s{SW}, 5120""")
    assert all((v * 205) >> 11 == v // 10 for v in range(70))
    a(f"""v_lshrrev_b32 v240, 3, v1
    s_lshl_b32 s59, s57, 7
    s_lshl_b32 s54, s{SW}, 5
    s_add_u32 s59, s59, s54
    v_add_u32 v240, s59, v240
    v_mul_u32_u24 v240, 1280, v240
    v_lshrrev_b32 v241, 4, v1
    v_and_b32 v242, 7, v1
    v_xor_b32 v242, v242, v241
    v_lshl_add_u32 v7, v242, 4, v240
    v_xor_b32 v242, 4, v242
    v_lshl_add_u32 v8, v242, 4, v240
    v_add_u32 v8, {10240-1024}, v8
    v_add_u32 v9, {20480-2048}, v7
    v_add_u32 v10, {20480-2048}, v8""")
    a(f"v_mov_b32 v244, s60\n v_mov_b32 v245, s61")
    for i in range(5):
        assert all(((64 * i + l) * 3277) >> 16 == (64 * i + l) // 20 for l in range(64))
        a(f"""v_add_u32 v240, {64*i}, v1
        v_mul_u32_u24 v241, 3277, v240
        v_lshrrev_b32 v241, 16, v241
        v_mul_u32_u24 v242, 20, v241
        v_sub_u32 v240, v240, v242""")
        if i == 2: a("v_lshrrev_b32 v242, 4, v1\n v_and_b32 v242, 2, v242\n v_xor_b32 v240, v240, v242")
        if i > 2: a("v_xor_b32 v240, 2, v240")
        a(f"""v_cmp_gt_u32 vcc, 10, v240
        v_mul_u32_u24 v241, 3840, v241
        v_lshl_add_u32 v240, v240, 4, v241
        v_cndmask_b32 v242, v245, v244, vcc""")
        if i in (0, 4): a(f"v_add_u32 v{2+i}, v240, v242")
        else: a(f"v_add_u32 v240, v240, v242\n v_subrev_u32 v{2+i}, {1024*i}, v240")

def g_setup2(a):
    a(f"""v_lshrrev_b32 v241, 4, v1
    v_bfe_u32 v242, v1, 2, 2
    v_lshl_add_u32 v242, v241, 3, v242
    v_mul_u32_u24 v242, 320, v242
    v_and_b32 v243, 3, v1
    v_lshl_add_u32 v242, v243, 3, v242
    v_and_b32 v243, 1, v241
    v_lshlrev_b32 v243, 5, v243
    v_add_u32 v9, v242, v243
    v_sub_u32 v10, v242, v243
    v_and_b32 v240, 15, v1
    v_lshrrev_b32 v242, 1, v240
    v_xor_b32 v242, v242, v241
    v_lshlrev_b32 v240, 7, v240
    v_add_u32 v240, s66, v240
    v_lshl_add_u32 v11, v242, 4, v240
    v_xor_b32 v242, 4, v242
    v_lshl_add_u32 v12, v242, 4, v240""")
    for k in range(4): a(f"v_add_u32 v{2+k}, {HALF}, v{9+k}")

def g_load(j):
    slot = j % 4
    base = (slot >> 1) * HALF
    o = [f"s_add_u32 m0, s65, {base + (slot&1)*20480}", "s_nop 0"]
    for i in range(4): o.append(f"buffer_load_dwordx4 v{2+i}, {sq(SRD1)}, s63 offen offset:{1024*i} lds ; tag=S{j}")
    o += [f"s_add_u32 m0, s65, {base + (slot&1)*20480 + 4096}", "s_nop 0", f"buffer_load_dwordx4 v6, {sq(SRD1)}, s63 offen lds ; tag=S{j}"]
    o += [f"s_add_u32 m0, s66, {base + (slot&1)*16384}", f"s_add_u32 s63, s63, {64*3840}"]
    for i in range(4): o.append(f"buffer_load_dwordx4 v{7+i}, {sq(SRD0)}, s64 offen offset:{1024*i} lds ; tag=S{j}")
    o += ["s_add_u32 s64, s64, 128", "s_cmp_eq_u32 s64, 1280", "s_cselect_b32 s64, 0, s64", "s_cselect_b32 s63, 0, s63"]
    return o
def g_xreads(j):
    slot = j % 4
    return [f"ds_read_b128 {v4(G_X + (j&1)*16 + ks*8 + sub*4)}, v{(4 if slot >= 2 else 11)+ks} offset:{(slot&1)*16384 + sub*2048}" for ks in range(2) for sub in range(2)]
def g_reads(t):
    slot = (t // 2) % 4
    o = []
    for n in range(10):
        for h in range(2):
            off = (slot & 1) * 20480 + (t & 1) * 10240 + h * 1280 + 32 * n
            o.append(f"ds_read_b64_tr_b16 {v2(G_B + (t & 1) * 40 + n * 4 + 2 * h)}, v{(2 if slot >= 2 else 9) + (n & 1)} offset:{off}")
    return o

def role_loader(a):
    g_setup(a)
    a("s_waitcnt lgkmcnt(0)")
    srd(a, SRD1, P_W, 640 * 3840)
    srd(a, SRD0, P_X, 2048 * 1280)
    stamp(a, 1)
    for j in range(4): a.extend(g_load(j))
    args_ready(a)
    stamp(a, 2)
    a("WAITTAG S0\n s_barrier")
    for j in range(8):
        a(f"WAITTAG S{j+1}" + (" S9" if j == 7 else "")); a("s_barrier")
        if j + 4 < 10: a.extend(g_load(j + 4))
    stamp(a, 3)

def g_main(a, transposed):
    a("s_waitcnt vmcnt(0)\n s_barrier")
    stamp(a, 1)
    a.extend(g_xreads(0) + g_reads(0))
    for t in range(20):
        j, ks = t // 2, t % 2
        mf = []
        for n in range(10):
            for sub in range(2):
                acc = v4(G_ACC + (sub * 10 + n) * 4)
                x = v4(G_X + (j & 1) * 16 + ks * 8 + sub * 4)
                b = v4(G_B + (t & 1) * 40 + n * 4)
                c = "0" if t == 0 else acc
                mf.append(f"v_mfma_f32_16x16x32_bf16 {acc}, {b}, {x}, {c}" if transposed else f"v_mfma_f32_16x16x32_bf16 {acc}, {x}, {b}, {c}")
        rd = []
        if ks == 1 and j < 8: a("s_waitcnt lgkmcnt(0)\n s_barrier")
        if t < 19:
            rd = g_reads(t + 1)
            if ks == 1: rd = g_xreads(j + 1) + rd
        else:
            a("s_waitcnt lgkmcnt(0)")
            bar_arrive(a)
        a.extend(interleave(mf, rd, 0, 15 if ks == 0 else 19))
    stamp(a, 2)

def g_consts(a):
    a(f"s_mov_b32 s72, {LOG2E}\n s_mov_b32 s73, {EPS}")

def role_q(a):
    g_main(a, True)
    zero_probe(a, 3)
    g_consts(a)
    a(f"""s_lshl_b32 s52, s57, 3
    s_lshl_b32 s53, s{SW}, 1
    s_add_u32 s52, s52, s53
    s_mul_i32 s52, s52, 20
    s_sub_u32 s53, s58, 8
    s_mul_i32 s54, s53, 5
    s_add_u32 s52, s52, s54
    s_lshl_b32 s52, s52, 10
    s_add_u32 s52, s52, {WS_PQ}
    v_lshlrev_b32 v2, 4, v1""")
    for sub in range(2):
        for c in range(5):
            r0 = G_ACC + (sub * 10 + 2 * c) * 4
            a.extend(phi_block(list(range(r0, r0 + 8)), list(range(240, 248))))
            d = G_B + (sub * 5 + c) * 4
            for k in range(4): a(f"v_cvt_pk_bf16_f32 v{d+k}, v{r0+2*k}, v{r0+2*k+1}")
            a(f"s_add_u32 s54, s52, {(sub*20+c)*1024}")
            a(f"buffer_store_dwordx4 {v4(d)}, v2, {sq(SRDWS)}, s54 offen" + (" sc1" if cfg.fused else ""))
    stamp(a, 3)
    zero_check(a, "q", 3)
    a(f"s_lshl_b32 s54, s57, 7\n s_add_u32 s54, s54, {WS_QCNT}")
    signal(a, 54, 4, L_SIG)
    stamp(a, 4)

def role_kv(a):
    g_main(a, False)
    zero_probe(a, 252)
    g_consts(a)
    bar_wait(a)
    a(f"""v_lshlrev_b32 v2, 4, v1
    s_mul_i32 s52, s{SW}, 10240
    v_add_u32 v3, s52, v2
    s_lshl_b32 s52, s{SW}, 10
    v_add_u32 v4, s52, v2""")
    order = [5, 6, 7, 8, 9, 0, 1, 2, 3, 4]
    for t in order:
        r0 = G_ACC + t * 4; r1 = G_ACC + (10 + t) * 4
        if t < 5: a.extend(phi_block(list(range(r0, r0 + 4)) + list(range(r1, r1 + 4)), list(range(240, 248))))
        d = G_B + t * 4
        a(f"v_cvt_pk_bf16_f32 v{d}, v{r0}, v{r0+1}\n v_cvt_pk_bf16_f32 v{d+1}, v{r0+2}, v{r0+3}")
        a(f"v_cvt_pk_bf16_f32 v{d+2}, v{r1}, v{r1+1}\n v_cvt_pk_bf16_f32 v{d+3}, v{r1+2}, v{r1+3}")
        a(f"ds_write_b128 v3, {v4(d)} offset:{t*1024}")
    bar_arrive(a)
    for k in range(4): a(f"v_mov_b32 v{248+k}, 0x3f803f80")
    HB = 40960; DUMP = 40960 + 4 * 2048
    a(f"""v_and_b32 v5, 15, v1
    v_lshrrev_b32 v6, 4, v1
    v_lshlrev_b32 v6, 2, v6
    s_lshl_b32 s52, s{SW}, 2
    v_subrev_u32 v5, s52, v5
    v_subrev_u32 v6, s52, v6
    s_lshl_b32 s53, s{SW}, 11
    s_add_u32 s53, s53, {HB}
    v_mov_b32 v15, {DUMP}""")
    k = 0
    for dt in range(2):
        for et in range(2):
            a(f"""v_add_u32 v240, {16*dt}, v6
            v_add_u32 v241, {16*et}, v5
            v_max_u32 v242, v240, v241
            v_cmp_gt_u32 vcc, 20, v242
            v_mul_u32_u24 v241, 80, v241
            v_lshl_add_u32 v241, v240, 2, v241
            v_add_u32 v241, s53, v241
            v_cndmask_b32 v{7+k}, v15, v241, vcc""")
            k += 1
        a(f"""v_add_u32 v240, {16*dt}, v6
        v_and_b32 v241, 15, v1
        v_mul_u32_u24 v241, 20, v241
        v_max_u32 v242, v240, v241
        v_cmp_gt_u32 vcc, 20, v242
        v_lshlrev_b32 v240, 2, v240
        v_add_u32 v240, s53, v240
        v_add_u32 v240, 1600, v240
        v_cndmask_b32 v{11+dt}, v15, v240, vcc""")
    bar_wait(a)
    F = 176
    for rg in range(4):
        for q, off in enumerate([0, 1024, 5120, 6144]):
            a(f"ds_read_b128 {v4(F + rg*16 + q*4)}, v4 offset:{rg*10240 + off}")
    D = 16
    for rg in range(4):
        for dt in range(2):
            A = v4(F + rg * 16 + dt * 4)
            for et in range(2):
                acc = v4(D + (dt * 2 + et) * 4)
                a(f"v_mfma_f32_16x16x32_bf16 {acc}, {A}, {v4(F + rg*16 + 8 + et*4)}, {'0' if rg == 0 else acc}")
            acc = v4(D + 16 + dt * 4)
            a(f"v_mfma_f32_16x16x32_bf16 {acc}, {A}, v[248:251], {'0' if rg == 0 else acc}")
    for k in range(6): a(f"ds_write_b128 v{7+k}, {v4(D + 4*k)}")
    a(f"v_lshlrev_b32 v2, 2, v1\n v_add_u32 v3, s53, v2\n s_waitcnt lgkmcnt(0)")
    for i in range(7): a(f"ds_read_b32 v{48+i}, v3 offset:{256*i}")
    bar_arrive(a)
    stamp(a, 3)
    zero_check(a, "kv", 252)
    a(f"""s_lshl_b32 s52, s58, 2
    s_add_u32 s52, s52, s{SW}
    s_mul_i32 s52, s52, 1680
    s_add_u32 s52, s52, {WS_KV}
    s_waitcnt lgkmcnt(0)""")
    for i in range(7):
        if i == 6: a("s_mov_b32 exec_lo, -1\n s_mov_b32 exec_hi, 0xf")
        a(f"buffer_atomic_add_f32 v{48+i}, v2, {sq(SRDWS)}, s52 offen offset:{256*i}")
    a("s_mov_b64 exec, -1")
    a(f"s_lshl_b32 s54, s58, 7")
    signal(a, 54, 4, L_SIG, RKV, 10)
    stamp(a, 4)

def role_prep(a):
    a(f"""s_sub_u32 s56, s2, 192
    s_lshr_b32 s52, s56, 1
    s_lshl_b32 s52, s52, 6
    s_and_b32 s57, s56, 1
    s_mul_i32 s53, s57, 320
    s_sub_u32 s54, s77, 5
    s_lshl_b32 s54, s54, 1
    s_cmp_lt_u32 s77, 5
    s_cselect_b32 s54, s77, s54
    s_lshl_b32 s54, s54, 6
    s_add_u32 s53, s53, s54
    v_lshrrev_b32 v2, 3, v1
    v_lshlrev_b32 v2, 3, v2
    v_add_u32 v2, s52, v2
    v_and_b32 v3, 7, v1
    v_lshlrev_b32 v3, 3, v3
    v_add_u32 v3, s53, v3
    v_mul_u32_u24 v4, 1280, v2
    v_lshl_add_u32 v4, v3, 1, v4
    v_lshrrev_b32 v7, 3, v1
    v_add_u32 v7, s53, v7
    v_lshlrev_b32 v7, 12, v7
    v_and_b32 v8, 7, v1
    v_lshl_add_u32 v7, v8, 4, v7
    s_mul_i32 s63, s77, 8448
    v_mul_u32_u24 v10, 1040, v8
    v_add_u32 v10, s63, v10
    v_lshlrev_b32 v11, 4, v1
    v_add_u32 v11, s63, v11
    v_lshrrev_b32 v9, 3, v1
    s_lshl_b32 s64, s52, 1
    s_movk_i32 s55, 5120
    s_mov_b32 s60, 0x05040100
    s_mov_b32 s61, 0x07060302
    s_mov_b32 s62, 0xffff0000
""")
    args_ready(a)
    a("s_cmp_lt_u32 s77, 5\n s_cbranch_scc0 L_PQ")
    tag(a, 3)
    srd(a, SRD0, P_K, 2048 * 1280); srd(a, SRD1, P_V, 2048 * 1280); srd(a, SRD3, P_SH, 640 * 8)
    K, V, C = 16, 60, 92
    a("v_subrev_u32 v5, 3840, v4\n v_lshlrev_b32 v6, 3, v3")
    for r in range(3): a(f"buffer_load_dwordx4 {v4(K+4*r)}, v5, {sq(SRD0)}, 0 offen offset:{1280*r}")
    for r in range(8): a(f"buffer_load_dwordx4 {v4(K+12+4*r)}, v4, {sq(SRD0)}, {'s55' if r >= 4 else '0'} offen offset:{1280*(r%4)}")
    for r in range(4): a(f"buffer_load_dwordx4 {v4(C+4*r)}, v6, {sq(SRD3)}, 0 offen offset:{16*r}")
    for r in range(8): a(f"buffer_load_dwordx4 {v4(V+4*r)}, v4, {sq(SRD1)}, {'s55' if r >= 4 else '0'} offen offset:{1280*(r%4)}")
    a(f"v_sub_u32 v9, 7, v9\n v_lshl_add_u32 v10, v9, 4, v10\n s_sub_u32 s64, {WS_UT + 1984*2}, s64")
    stamp(a, 1)
    P, T, U, O = 108, 120, 128, 136
    for ch in range(8):
        dw, hi = ch // 2, ch % 2
        sel = "s61" if hi else "s60"
        for s_ in range(-2, 8):
            a(f"v_perm_b32 v{P+s_+2}, v{K+4*(s_+2)+dw}, v{K+4*(s_+3)+dw}, {sel}")
        for s_ in range(8): a(f"v_dot2_f32_bf16 v{T+s_}, v{P+s_}, v{C+2*ch+1}, 0")
        for s_ in range(8): a(f"v_dot2_f32_bf16 v{T+s_}, v{P+s_+2}, v{C+2*ch}, v{T+s_}")
        for s_ in range(8):
            a(f"v_and_b32 v{U+s_}, s62, v{V+4*s_+dw}" if hi else f"v_lshlrev_b32 v{U+s_}, 16, v{V+4*s_+dw}")
        for s_ in range(8): a(f"v_mul_f32 v{T+s_}, v{T+s_}, v{U+s_}")
        o = O + 4 * ch
        for j in range(4): a(f"v_cvt_pk_bf16_f32 v{o+j}, v{T+7-2*j}, v{T+6-2*j}")
        a(f"ds_write_b128 v10, {v4(o)} offset:{128*ch}")
    def flush(R, extra):
        for i in range(8): a(f"ds_read_b128 {v4(R+4*i)}, v11 offset:{1040*i}")
        for i in range(8): a(f"s_add_u32 s54, s64, {32768*i + extra}\n buffer_store_dwordx4 {v4(R+4*i)}, v7, {sq(SRDWS)}, s54 offen sc1")
    flush(16, 0)
    a("s_branch L_PSIG")
    a.label("L_PQ")
    tag(a, 6)
    srd(a, SRD2, P_Q, 2048 * 1280)
    a(f"s_cmp_lg_u32 s77, 7\n s_cbranch_scc1 L_PQ1")
    a(f"""v_lshlrev_b32 v8, 4, v1
    v_mov_b32 v16, 0
    v_mov_b32 v17, 0
    v_mov_b32 v18, 0
    v_mov_b32 v19, 0
    s_lshl_b32 s54, s56, 11
    buffer_store_dwordx4 v[16:19], v8, {sq(SRDWS)}, s54 offen sc1
    buffer_store_dwordx4 v[16:19], v8, {sq(SRDWS)}, s54 offen offset:1024 sc1
    v_mov_b32 v8, 1
    s_waitcnt vmcnt(0)
    s_mov_b64 exec, 1
    buffer_atomic_add v8, v16, {sq(SRD4)}, 0 offen sc1
    s_mov_b64 exec, -1""")
    a.label("L_PQ1")
    Q = 16
    for st in range(2):
        for r in range(8): a(f"buffer_load_dwordx4 {v4(Q+32*st+4*r)}, v4, {sq(SRD2)}, {'s55' if r >= 4 else '0'} offen offset:{1280*(r%4) + 128*st}")
    a(f"v_lshl_add_u32 v10, v9, 4, v10\n s_add_u32 s64, s64, {WS_QT}")
    stamp(a, 1)
    for st in range(2):
        if st == 1: a("s_cmp_eq_u32 s77, 7\n s_cbranch_scc1 L_PSIG")
        for ch in range(8):
            dw, hi = ch // 2, ch % 2
            sel = "s61" if hi else "s60"
            o = 80 + 32 * st + 4 * ch
            for j in range(4): a(f"v_perm_b32 v{o+j}, v{Q+32*st+4*(2*j+1)+dw}, v{Q+32*st+4*(2*j)+dw}, {sel}")
            a(f"ds_write_b128 v10, {v4(o)} offset:{128*ch}")
        flush(144 + 32 * st, 64 * 4096 * st)
    a.label("L_PSIG")
    a("s_waitcnt lgkmcnt(0)\n s_barrier")
    stamp(a, 2)
    zero_probe(a, 3)
    a("s_waitcnt vmcnt(0)")
    zero_check(a, "prep", 3)
    a(f"s_lshl_b32 s54, s57, 10\n s_add_u32 s54, s54, {WS_PREPC}")
    signal(a, 54, 8, L_SIG, RPR, 7)
    stamp(a, 3)

C_HCOPY = 4224; C_UH = 148; C_WAVE = 2 * C_HCOPY + 2 * C_UH * 16
C_STG = HALF + 4 * C_WAVE; C_STGP = 4160
def role_conv(a):
    sc = " sc1" if cfg.fused else ""
    ACC, A, RAW, B, QV, UL = 16, 48, 80, 128, 192, 208
    a(f"""s_and_b32 s52, s2, 7
    s_mul_i32 s52, s52, 20
    s_lshr_b32 s53, s2, 3
    s_sub_u32 s53, s53, 12
    s_add_u32 s57, s52, s53
    s_lshl_b32 s58, s57, 2
    s_add_u32 s58, s58, s{SW}
    s_lshl_b32 s59, s58, 12
    s_mul_i32 s60, s{SW}, {C_WAVE}
    s_add_u32 s60, s60, {HALF}
    s_add_u32 s52, s{P_H}, s59
    s_addc_u32 s53, s{P_H+1}, 0
    s_load_dword s66, s[52:53], 0
    s_lshr_b32 s54, s58, 1
    s_lshl_b32 s54, s54, 2
    s_load_dword s67, s[{P_D}:{P_D+1}], s54
    v_lshlrev_b32 v2, 4, v1
    v_add_u32 v3, 4, v2""")
    srd(a, SRD0, P_H, 640 * 4096)
    srd(a, SRD1, P_OUT, 2048 * 2560)
    a(f"s_add_u32 m0, s60, 32")
    for i in range(4): a(f"buffer_load_dwordx4 v2, {sq(SRD0)}, s59 offen offset:{1024*i} lds")
    a(f"s_add_u32 m0, s60, {C_HCOPY + 32}")
    for i in range(4): a(f"buffer_load_dwordx4 v3, {sq(SRD0)}, s59 offen offset:{1024*i} lds")
    a(f"""v_mov_b32 v4, 0
    v_mov_b32 v5, 0
    v_mov_b32 v6, 0
    v_mov_b32 v7, 0
    v_and_b32 v8, 15, v1
    v_lshrrev_b32 v9, 4, v1
    v_and_b32 v10, 1, v9
    v_mul_u32_u24 v10, {C_UH}, v10
    v_add_u32 v10, v10, v8
    v_lshlrev_b32 v10, 4, v10
    v_add_u32 v10, s60, v10
    ds_write_b128 v10, v[4:7] offset:{2*C_HCOPY + 128*16}
    v_and_b32 v10, 1, v1
    v_lshlrev_b32 v10, 4, v10
    v_bfe_u32 v11, v1, 1, 1
    v_mul_u32_u24 v11, {C_HCOPY}, v11
    v_add3_u32 v10, v10, v11, s60
    ds_write_b128 v10, v[4:7]""")
    a(f"""v_add_u32 v10, 1, v8
    v_bfe_u32 v11, v10, 1, 1
    v_mul_u32_u24 v11, {C_HCOPY}, v11
    v_lshrrev_b32 v12, 2, v10
    v_lshl_add_u32 v12, v9, 3, v12
    v_lshl_add_u32 v11, v12, 3, v11
    v_add_u32 v4, s60, v11
    v_and_b32 v10, 1, v10
    v_lshlrev_b32 v5, 4, v10
    v_lshlrev_b32 v10, 1, v9
    v_sub_u32 v10, v10, v8
    v_add_u32 v10, 15, v10
    v_lshlrev_b32 v10, 4, v10
    v_add_u32 v6, s60, v10
    v_lshrrev_b32 v10, 1, v1
    v_and_b32 v11, 1, v1
    v_mul_u32_u24 v11, {C_UH}, v11
    v_add_u32 v10, v10, v11
    v_lshlrev_b32 v10, 4, v10
    v_add_u32 v7, s60, v10
    v_lshlrev_b32 v10, 5, v8
    v_lshl_add_u32 v8, v9, 3, v10""")
    a(f"""s_waitcnt lgkmcnt(0)
    s_lshl_b32 s52, s66, 16
    s_lshl_b32 s53, s67, 16
    s_and_b32 s54, s67, 0xffff0000
    s_bitcmp1_b32 s58, 0
    s_cselect_b32 s53, s54, s53
    s_and_b32 s54, s66, 0xffff0000
    v_mov_b32 v10, s52
    v_add_f32 v10, s53, v10
    v_mov_b32 v11, s54
    v_cvt_pk_bf16_f32 v10, v10, v11
    v_mov_b32 v11, s60""")
    stamp(a, 4)
    def body():
        poll(a, "convz", "0", 64, 1, SRD4)
        a(f"s_cmp_ge_u32 s57, 80\n s_cselect_b32 s54, 1024, 0\n s_lshr_b32 s52, s2, 3\n s_and_b32 s52, s52, {RPR-1}\n s_lshl_b32 s52, s52, 7\n s_add_u32 s54, s54, s52\n s_add_u32 s54, s54, {WS_PREPC}")
        poll(a, "conv2", "s54", 32)
    leader(a, "conv", body)
    stamp(a, 5)
    a(f"s_add_u32 s54, s59, {WS_UT}\n s_add_u32 s55, s59, {WS_QT}")
    for i in range(4): a(f"buffer_load_dwordx4 {v4(UL+4*i)}, v2, {sq(SRDWS)}, s54 offen offset:{1024*i}{sc}")
    for J in range(8): a(f"buffer_load_dwordx2 {v2(QV+2*J)}, v8, {sq(SRDWS)}, s55 offen offset:{512*J}{sc}")
    a(f"s_waitcnt vmcnt(12)\n ds_write_b32 v11, v10 offset:32\n ds_write_b32 v11, v10 offset:{C_HCOPY+28}")
    def raw_slots(i):
        return [(0, 1, 2), (2, 0, 1), (1, 2, 0), (0, 1, 2)][i]
    def raw_reads(it, N1):
        N0, i = it >> 2, it & 3
        sl = raw_slots(i)
        return [f"ds_read_b64 {v2(RAW + N1*6 + 2*sl[k])}, v4 offset:{(2*N1+N0)*256 + (2*i+k)*8}" for k in range(0 if i == 0 else 1, 3)]
    def aligns(it, N1):
        sl = raw_slots(it & 3)
        d = [RAW + N1 * 6 + 2 * sl[0], RAW + N1 * 6 + 2 * sl[0] + 1, RAW + N1 * 6 + 2 * sl[1], RAW + N1 * 6 + 2 * sl[1] + 1, RAW + N1 * 6 + 2 * sl[2]]
        return [f"v_alignbit_b32 v{A + 4*N1 + k}, v{d[k+1]}, v{d[k]}, v5" for k in range(4)]
    def b_reads(it):
        N0, i = it >> 2, it & 3
        return [f"ds_read_b128 {v4(B + (it&1)*32 + 4*dl)}, v6 offset:{2*C_HCOPY + (14-(2*dl-N0))*128 + (i>>1)*16 + (i&1)*C_UH*16}" for dl in range(8)]
    for N1 in range(8): a.extend(raw_reads(0, N1))
    for i in range(4): a(f"ds_write_b128 v7, {v4(UL+4*i)} offset:{2*C_HCOPY + 512*i}")
    for N1 in range(8):
        a.extend(aligns(0, N1)); a.extend(raw_reads(1, N1))
    a.extend(b_reads(0))
    stamp(a, 6)
    queue = []
    for it in range(8):
        if it < 7: queue += b_reads(it + 1)
        for N1 in range(8):
            tag = f"v_alignbit_b32 v{A+4*N1+3},"
            pos = max((k for k, q in enumerate(queue) if q.startswith(tag)), default=-1)
            for q in queue[:pos + 1]: a(q)
            queue = queue[pos + 1:]
            for J in range(N1, 8):
                acc = v4(ACC + 4 * J)
                c = "0" if (it == 0 and N1 == 0) else acc
                a(f"v_mfma_f32_16x16x32_bf16 {acc}, {v4(A+4*N1)}, {v4(B + (it&1)*32 + 4*(J-N1))}, {c}")
                for _ in range(2):
                    if queue: a(queue.pop(0))
            if it < 7: queue += aligns(it + 1, N1)
            if it < 6: queue += raw_reads(it + 2, N1)
        assert not any(q.startswith("ds_read_b128") for q in queue)
    assert not queue
    stamp(a, 7)
    a(f"""s_mov_b32 s62, 0xffff0000
    s_mul_i32 s52, s{SW}, {C_STGP}
    s_add_u32 s52, s52, {C_STG}
    v_add_u32 v9, s52, v8""")
    for J in range(8):
        T = 224 + (J & 1) * 8
        a(f"""v_lshlrev_b32 v{T}, 16, v{QV+2*J}
        v_and_b32 v{T+1}, s62, v{QV+2*J}
        v_lshlrev_b32 v{T+2}, 16, v{QV+2*J+1}
        v_and_b32 v{T+3}, s62, v{QV+2*J+1}""")
        for r in range(4): a(f"v_mul_f32 v{T+r}, v{T+r}, v{ACC+4*J+r}")
        a(f"v_cvt_pk_bf16_f32 v{T+4}, v{T}, v{T+1}\n v_cvt_pk_bf16_f32 v{T+5}, v{T+2}, v{T+3}")
        a(f"ds_write_b64 v9, {v2(T+4)} offset:{512*J}")
    bar_arrive(a)
    a(f"""v_bfe_u32 v10, v1, 2, 2
    v_mul_u32_u24 v10, {C_STGP}, v10
    v_and_b32 v11, 3, v1
    v_lshl_add_u32 v10, v11, 3, v10
    v_lshrrev_b32 v11, 4, v1
    v_lshl_add_u32 v10, v11, 5, v10
    s_lshl_b32 s52, s{SW}, 10
    s_add_u32 s52, s52, {C_STG}
    v_add_u32 v10, s52, v10
    s_lshl_b32 s52, s{SW}, 9
    v_add_u32 v11, s52, v1
    v_mul_u32_u24 v11, 2560, v11
    s_lshl_b32 s52, s57, 3""")
    bar_wait(a)
    stamp(a, 8)
    for i in range(8): a(f"ds_read_b64_tr_b16 {v2(48+2*i)}, v10 offset:{128*i}")
    for i in range(8):
        a(f"buffer_store_dwordx2 {v2(48+2*i)}, v11, {sq(SRD1)}, s52 offen")
        if i < 7: a(f"s_add_u32 s52, s52, {64*2560}")

def b2_tables(hf):
    num = {}
    for t in range(5 * hf, 5 * hf + 5):
        hs = {e // 20 for e in range(16 * t, 16 * t + 16)}
        dts = [dt for dt in range(10) if hs & {d // 20 for d in range(16 * dt, 16 * dt + 16)}]
        ch = {}
        for dt in dts: ch.setdefault(dt // 2, []).append(dt)
        num[t] = sorted(ch.items())
    ch = {}
    for dt in range(5 * hf, 5 * hf + 5): ch.setdefault(dt // 2, []).append(dt)
    return num, sorted(ch.items())

B_KS = 8416
def role_b2(a):
    sc = " sc1" if cfg.fused else ""
    PQ, W0, W1, KV, RAW = 16, 56, 88, 120, 192
    ACC, W2, W3 = 120, 184, 216
    U = [192, 216]
    a(f"""s_and_b32 s52, s56, 7
    s_lshr_b32 s53, s56, 3
    s_mul_i32 s54, s53, 205
    s_lshr_b32 s54, s54, 10
    s_lshl_b32 s57, s52, 3
    s_add_u32 s57, s57, s54
    s_mul_i32 s54, s54, 5
    s_sub_u32 s58, s53, s54""")
    srd(a, SRD0, P_WO, 640 * 1280)
    srd(a, SRD1, P_OUT, 2048 * 2560)
    a(f"""s_lshl_b32 s59, s58, 8
    s_mul_i32 s52, s{SW}, {160*1280}
    s_add_u32 s59, s59, s52
    s_and_b32 s53, s{SW}, 1
    s_lshl_b32 s53, s53, 7
    s_mul_i32 s65, s{SW}, 20480
    s_add_u32 s65, s65, s{SLB}
    v_and_b32 v8, 15, v1
    v_lshrrev_b32 v9, 4, v1
    v_lshlrev_b32 v2, 4, v8
    v_xor_b32 v2, s53, v2
    v_mul_u32_u24 v10, {8*1280}, v9
    v_add3_u32 v2, v2, v10, s59""")
    def dma(kstep, slot):
        return [[f"s_add_u32 m0, s65, {slot*B_KS + i*1056}", f"s_mov_b32 s63, {(32*kstep + i)*1280}",
                 f"buffer_load_dwordx4 v2, {sq(SRD0)}, s63 offen lds ; tag=K{kstep}"] for i in range(8)]
    def wreads(slot, dst):
        return [f"ds_read_b64_tr_b16 {v2(dst + 4*n + 2*h)}, v0 offset:{slot*B_KS + h*512 + 32*n}" for n in range(8) for h in range(2)]
    bar_wait(a)
    for g in dma(0, 0) + dma(1, 1): a.extend(g)
    a(f"""v_bfe_u32 v10, v1, 2, 3
    v_mul_u32_u24 v10, 1056, v10
    v_lshrrev_b32 v11, 5, v1
    v_lshl_add_u32 v10, v11, 8, v10
    v_and_b32 v11, 3, v1
    v_lshl_add_u32 v10, v11, 3, v10
    v_add_u32 v0, s65, v10
    s_add_u32 s64, s65, {2*B_KS}
    v_lshlrev_b32 v9, 3, v9
    v_mul_u32_u24 v3, 40, v8
    v_add3_u32 v3, v3, v9, s64
    v_mul_u32_u24 v4, 800, v11
    v_add3_u32 v4, v4, v9, s64
    v_lshlrev_b32 v5, 4, v1
    v_lshlrev_b32 v6, 3, v1
    v_add_u32 v6, s64, v6
    v_add_u32 v7, 4096, v5""")
    for r in range(KV, KV + 72): a(f"v_mov_b32 v{r}, 0")
    def pq_loads():
        a(f"""s_lshr_b32 s52, s{SW}, 1
        s_lshl_b32 s53, s57, 1
        s_add_u32 s54, s53, s52
        s_xor_b32 s52, s52, 1
        s_add_u32 s55, s53, s52
        s_mul_i32 s54, s54, 20480
        s_mul_i32 s55, s55, 20480
        s_mul_i32 s52, s{SW}, 5120
        s_add_u32 s52, s52, {WS_PQ}
        s_add_u32 s54, s54, s52
        s_add_u32 s55, s55, s52""")
        for sub in range(2):
            for c in range(5):
                a(f"buffer_load_dwordx4 {v4(PQ + (sub*5+c)*4)}, v{5 if c < 4 else 7}, {sq(SRDWS)}, s{54+sub} offen offset:{1024*(c%4)}{sc}")
    def kv_loads(hf):
        a(f"s_mul_i32 s52, s{SW}, {8*1680}\n s_add_u32 s52, s52, {WS_KV + hf*6720}")
        for i in range(7):
            a(f"buffer_load_dwordx4 {v4(RAW + hf*28 + 4*i)}, v{5 if i < 4 else 7}, {sq(SRDWS)}, s52 offen offset:{1024*(i%4)} sc1")
    def wo_prefetch():
        a("WAITTAG K0")
        a.extend(wreads(0, W0))
        a("WAITTAG K1")
        a.extend(wreads(1, W1))
        a("s_waitcnt lgkmcnt(0)")
        for g in dma(2, 0) + dma(3, 1): a.extend(g)
    if cfg.fused:
        wo_prefetch()
        stamp(a, 5)
        def body1():
            poll(a, "b2z", "0", 64, 1, SRD4)
            a(f"s_lshr_b32 s54, s57, 2\n s_lshl_b32 s54, s54, 7\n s_add_u32 s54, s54, {WS_QCNT}")
            poll(a, "b2q", "s54", 4)
        leader(a, "b2q", body1)
        pq_loads()
        def body2():
            a(f"s_and_b32 s54, s56, {RKV-1}\n s_lshl_b32 s54, s54, 10")
            poll(a, "b2kv", "s54", 16, 8)
        leader(a, "b2kv", body2)
        stamp(a, 6)
        kv_loads(0); kv_loads(1)
    else:
        kv_loads(0); kv_loads(1)
        pq_loads()
        stamp(a, 1)
        wo_prefetch()
        stamp(a, 2)
    a(f"""s_mov_b32 s73, {EPS}
    s_mov_b32 s66, 0xffff0000
    s_mov_b32 s67, -1
    s_mov_b32 s68, 0
    s_mov_b32 s69, -1
    s_mov_b32 s70, 0
    s_mov_b32 s71, 0xffff0000""")
    qi = {}
    tabs = [b2_tables(0), b2_tables(1)]
    for hf in range(2):
        for i in range(7):
            r = RAW + hf * 28 + 4 * i
            a(f"v_cvt_pk_bf16_f32 v{r}, v{r}, v{r+1}\n v_cvt_pk_bf16_f32 v{r+1}, v{r+2}, v{r+3}\n ds_write_b64 v6, {v2(r)} offset:{512*i}")
        num, den = tabs[hf]
        quads = [("z", hf, dt) for c, dts in den for dt in dts] + [("n", t, dt) for t in num for c, dts in num[t] for dt in dts]
        assert len(quads) == 18
        for (kind, t, dt) in quads:
            q = len(qi); qi[(kind, t, dt)] = q
            mask = 0
            for l in range(64):
                i, g = l & 15, l >> 4
                hd = (16 * dt + 4 * g) // 20
                he = (16 * t + i) // 20 if kind == "n" else (i & 3) + 4 * t
                if hd == he: mask |= 1 << l
            off = 640 * (t - 5 * hf) + 32 * (dt - 5 * hf) if kind == "n" else 800 + 32 * (dt - 5 * hf)
            a(f"s_mov_b32 exec_lo, {mask & 0xffffffff:#x}\n s_mov_b32 exec_hi, {mask >> 32:#x}")
            a(f"ds_read_b64 {v2(KV + 2*q)}, v{3 if kind == 'n' else 4} offset:{off}")
        a("s_mov_b64 exec, -1")
    stamp(a, 7)
    def omf(sub, hf, T):
        o = []
        num, den = tabs[hf]
        def one(kind, t, lst, acc):
            lst = sorted(lst, key=lambda x: len(x[1]))
            for k, (c, dts) in enumerate(lst):
                src = "0" if k == 0 else v4(acc)
                kv = KV + 2 * qi[(kind, t, dts[0])]
                pq = PQ + (sub * 5 + c) * 4
                key = (min(k, 1), 0 if kind == "z" else 1, t, k)
                if len(dts) == 2: o.append((key, f"v_mfma_f32_16x16x32_bf16 {v4(acc)}, {v4(kv)}, {v4(pq)}, {src}"))
                else: o.append((key, f"v_mfma_f32_16x16x16_bf16 {v4(acc)}, {v2(kv)}, {v2(pq + 2*(dts[0]&1))}, {src}"))
        one("z", hf, den, T)
        for t in num: one("n", t, num[t], T + 4 + 4 * (t - 5 * hf))
        return [x for _, x in sorted(o)]
    def ovalu(sub, hf, T):
        o = []
        for r in range(4): o.append(f"v_add_f32 v{T+r}, s73, v{T+r}")
        for r in range(4): o.append(f"v_rcp_f32 v{T+r}, v{T+r}")
        for tl in range(5):
            t = tl + 5 * hf
            h0 = (16 * tl) // 20; h1 = (16 * tl + 12) // 20
            rc = T + h0; n = T + 4 + 4 * tl
            if h0 != h1:
                g0 = min(g for g in range(4) if (16 * tl + 4 * g) // 20 == h1)
                o.append(f"v_cndmask_b32 v{rc}, v{T+h0}, v{T+h1}, s[{64+2*g0}:{65+2*g0}]")
            for r in range(4): o.append(f"v_mul_f32 v{n+r}, v{n+r}, v{rc}")
            d = PQ + (sub * 5 + t // 2) * 4 + 2 * (t & 1)
            o.append(f"v_cvt_pk_bf16_f32 v{d}, v{n}, v{n+1}")
            o.append(f"v_cvt_pk_bf16_f32 v{d+1}, v{n+2}, v{n+3}")
        return o
    def g2(sub, k, W):
        return [f"v_mfma_f32_16x16x32_bf16 {v4(ACC + (sub*8+n)*4)}, {v4(W+4*n)}, {v4(PQ + (sub*5+k)*4)}, {'0' if k == 0 else v4(ACC + (sub*8+n)*4)}" for n in range(8)]
    def both(k, W):
        x, y = g2(0, k, W), g2(1, k, W)
        return [z for p in zip(x, y) for z in p]
    units = [(0, 0), (1, 0), (0, 1), (1, 1)]
    a.extend(omf(*units[0], U[0]))
    for u in range(1, 4):
        m = omf(*units[u], U[u & 1])
        a.extend(interleave(m, ovalu(*units[u - 1], U[(u - 1) & 1]), 2))
    a("WAITTAG K2 K3")
    v3_ = ovalu(*units[3], U[1])
    p1 = interleave(both(0, W0), wreads(0, W2), 0, 8)
    p1 = interleave(p1, v3_, 4)
    a.extend(p1)
    a("s_waitcnt lgkmcnt(0)")
    a.extend(interleave(interleave(both(1, W1), dma(4, 0), 0, 8), wreads(1, W3), 8))
    a.extend(both(2, W2))
    b3 = both(3, W3)
    a.extend(b3[:4]); a("WAITTAG K4")
    a.extend(interleave(b3[4:], wreads(0, W0), 0, 8))
    a("s_waitcnt lgkmcnt(0)")
    bar_arrive(a)
    a.extend(both(4, W0))
    stamp(a, 8)
    for gam in range(1, 4):
        a(f"s_xor_b32 s52, s{SW}, {gam}\n s_mul_i32 s52, s52, 12288\n s_add_u32 s52, s52, {(gam-1)*4096}\n s_add_u32 s52, s52, s{SLB}\n v_add_u32 v{8+gam}, s52, v5")
    a(f"s_mul_i32 s52, s{SW}, 12288\n s_add_u32 s52, s52, s{SLB}\n v_add_u32 v8, s52, v5")
    bar_wait(a)
    for gam in range(1, 4):
        for k in range(4): a(f"ds_write_b128 v{8+gam}, {v4(ACC + (gam*4+k)*4)} offset:{1024*k}")
    bar_arrive(a)
    a(f"""s_mul_i32 s53, s{SW}, 2304
    s_add_u32 s53, s53, 49152
    s_add_u32 s53, s53, s{SLB}
    v_and_b32 v12, 15, v1
    v_mul_u32_u24 v12, 144, v12
    v_lshrrev_b32 v3, 4, v1
    v_lshl_add_u32 v12, v3, 3, v12
    v_add_u32 v12, s53, v12
    v_lshrrev_b32 v3, 3, v1
    v_and_b32 v4, 7, v1
    v_lshlrev_b32 v4, 4, v4
    v_mul_u32_u24 v15, 144, v3
    v_add3_u32 v15, v15, v4, s53
    s_lshl_b32 s52, s57, 5
    s_lshr_b32 s54, s{SW}, 1
    s_lshl_b32 s54, s54, 4
    s_add_u32 s52, s52, s54
    v_add_u32 v3, s52, v3
    v_mul_u32_u24 v3, 2560, v3
    v_add_u32 v3, v3, v4
    s_lshl_b32 s52, s58, 8
    s_and_b32 s54, s{SW}, 1
    s_lshl_b32 s54, s54, 7
    s_add_u32 s52, s52, s54
    s_add_u32 s52, s52, 1280
    s_add_u32 s54, s52, {8*2560}""")
    bar_wait(a)
    R = 192
    for k in range(4):
        for gam in range(3): a(f"ds_read_b128 {v4(R + (k*3+gam)*4)}, v8 offset:{gam*4096 + 1024*k}")
    for k in range(4):
        for r in range(4): a(f"v_add_f32 v{ACC+4*k+r}, v{ACC+4*k+r}, v{R+(k*3)*4+r}")
        for r in range(4): a(f"v_add_f32 v{R+(k*3+1)*4+r}, v{R+(k*3+1)*4+r}, v{R+(k*3+2)*4+r}")
        for r in range(4): a(f"v_add_f32 v{ACC+4*k+r}, v{ACC+4*k+r}, v{R+(k*3+1)*4+r}")
        a(f"v_cvt_pk_bf16_f32 v{16+2*k}, v{ACC+4*k}, v{ACC+4*k+1}\n v_cvt_pk_bf16_f32 v{17+2*k}, v{ACC+4*k+2}, v{ACC+4*k+3}")
        a(f"ds_write_b64 v12, {v2(16+2*k)} offset:{32*k}")
    a(f"ds_read_b128 v[24:27], v15\n ds_read_b128 v[28:31], v15 offset:{8*144}")
    a(f"buffer_store_dwordx4 v[24:27], v3, {sq(SRD1)}, s52 offen\n buffer_store_dwordx4 v[28:31], v3, {sq(SRD1)}, s54 offen")

def kd(name):
    return f""".p2align 6
.amdhsa_kernel {name}
  .amdhsa_next_free_vgpr 256
  .amdhsa_next_free_sgpr 102
  .amdhsa_accum_offset 256
  .amdhsa_group_segment_fixed_size 0
  .amdhsa_kernarg_size 96
  .amdhsa_user_sgpr_count 2
  .amdhsa_user_sgpr_kernarg_segment_ptr 1
  .amdhsa_system_sgpr_workgroup_id_x 1
  .amdhsa_float_denorm_mode_32 3
.end_amdhsa_kernel"""

def head(name): return f".globl {name}\n.p2align 8\n.type {name},@function"

def build():
    k = KN + "_kernel"
    a = Asm()
    a(head(k)); prologue(a, k, 256)
    a("s_cmp_ge_u32 s2, 192\n s_cbranch_scc1 L_P")
    g_ids(a)
    a(f"s_cmp_eq_u32 s{SGRP}, 0\n s_cbranch_scc1 L_CONS")
    tag(a, 7)
    role_loader(a)
    a("""s_cmp_ge_u32 s2, 96
    s_cbranch_scc1 L_CONV
    s_add_u32 s56, s2, 256
    s_cmp_lt_u32 s2, 64
    s_cbranch_scc1 L_B2
    s_branch L_FIN""")
    a.label("L_CONS")
    a("s_setprio 2")
    g_setup2(a)
    args_ready(a)
    a("s_cmp_ge_u32 s58, 8\n s_cbranch_scc1 L_Q")
    tag(a, 1); role_kv(a); a("s_mov_b32 s56, s2\n s_branch L_B2")
    a.label("L_Q"); tag(a, 2); role_q(a); a("s_mov_b32 s56, s2\n s_branch L_B2")
    a.label("L_P"); role_prep(a)
    a(f"s_mov_b32 s56, s2\n s_cmp_eq_u32 s{SGRP}, 0\n s_cbranch_scc1 L_B2")
    a.label("L_CONV"); tag(a, 4); role_conv(a); a("s_branch L_FIN")
    a.label("L_B2"); a("s_setprio 2"); tag(a, 5); role_b2(a)
    a.label("L_FIN"); stamps_out(a)
    a.label("L_END"); a("s_endpgm")
    launch = [f"; @launch grid=(256,1,1) block=(512,1,1) lds={LDS_BYTES}"]
    return launch, a, [k]

def emit(path, launch, a, kernels, verbose=False):
    body = fix_hazards(insert_waits(a.lines), verbose)
    out = list(launch) + ['.amdgcn_target "amdgcn-amd-amdhsa--gfx950"', ".text", ".p2align 8", "L_CODE_BEGIN:"]
    out += [(l if l.endswith(":") or l.startswith(".") else "    " + l) for l in body]
    out += ["L_CODE_END:", "    s_endpgm", '.section .rodata,"a"'] + [kd(k) for k in kernels]
    open(path, "w").write("\n".join(out) + "\n")

if __name__ == "__main__":
    cfg.stamps = "stamps" in sys.argv[2:]
    emit(sys.argv[1], *build(), verbose="-v" in sys.argv)
```

```python
import sys
sys.path.insert(0, "dev")
from asmlib import *

KN = "concat_heads__ssm_conv_h3__linear_attn_block__prompt"
WS_KVFLG = 0x0000
WS_CNT   = 0x2000
WS_UFLG  = 0x2800
WS_TFLG  = 0x3000
WS_QFLAG = 0x5800
WS_KV    = 0x8000
TP = 4224
WS_UT    = 0x100000
WS_QT    = 0x400000
WS_PQ    = 0x700000
WS_STAMP = 0xA00000
WS_SIZE  = 0xB00000
LDS_BYTES = 163840
HALF = 81920
L_BAR = HALF - 64
L_SIG = HALF - 60
SGRP, SLB, SBT, SW8, SLD = 74, 75, 76, 77, 72
LOG2E = 0x3FB8AA3B
EPS = 0x358637BD

P_Q, P_K, P_V, P_SH, P_H, P_D, P_X, P_W, P_WO, P_OUT, P_DBG, P_WS = [4 + 2 * i for i in range(12)]
SRD0, SRD1, SRD2, SRD3, SRD4, SRDWS = 28, 32, 36, 40, 44, 48
SW = 3

def srd(a, d, p, nbytes):
    a(f"s_mov_b32 s{d}, s{p}\n s_and_b32 s{d+1}, s{p+1}, 0xffff\n s_mov_b32 s{d+2}, {nbytes}\n s_mov_b32 s{d+3}, 0x20000")
def sq(d): return f"s[{d}:{d+3}]"
def v4(r): return f"v[{r}:{r+3}]"
def v2(r): return f"v[{r}:{r+1}]"

class Cfg:
    stamps = False
    rot = False
    gonly = 0
    ahead0 = 4
    ahead = 4
    bpos = 3
    lprio = 3
    cprio = 2
    psleep = 4
    qlate = 1
    pmode = 0
    x_noq = 0
    x_plain = 0
    x_pend = 0
    x_nost = 0
cfg = Cfg()

NSTAMP = 10
def stamp(a, i):
    if cfg.stamps:
        a(f"s_memrealtime s[{80+2*i}:{81+2*i}]\n s_waitcnt lgkmcnt(0)")
def stamps_out(a):
    if not cfg.stamps: return
    a("s_waitcnt vmcnt(0) lgkmcnt(0)")
    stamp(a, NSTAMP - 1)
    a("s_memtime s[70:71]\n s_waitcnt lgkmcnt(0)\n s_sub_u32 s101, s70, s101")
    a(f"s_getreg_b32 s52, hwreg(HW_REG_HW_ID)\n s_getreg_b32 s53, hwreg(HW_REG_XCC_ID)")
    for i in range(NSTAMP): a(f"v_mov_b32 v{16+i}, s{80+2*i}")
    a(f"v_mov_b32 v26, s52\n v_mov_b32 v27, s53\n v_mov_b32 v28, s100\n v_mov_b32 v29, s2\n v_mov_b32 v30, s101\n v_mov_b32 v31, 0")
    a(f"s_lshl_b32 s54, s2, 9\n s_lshl_b32 s55, s{SW8}, 6\n s_add_u32 s54, s54, s55\n s_add_u32 s54, s54, {WS_STAMP}")
    a(f"v_mov_b32 v32, 0\n s_mov_b64 exec, 1")
    for i in range(4): a(f"buffer_store_dwordx4 {v4(16+4*i)}, v32, {sq(SRDWS)}, s54 offen offset:{16*i}")
    a("s_mov_b64 exec, -1")
def tag(a, t):
    if cfg.stamps: a(f"s_lshl_b32 s100, s100, 4\n s_add_u32 s100, s100, {t}")

def prologue(a, name, nwg):
    a.label(name)
    a(f"""s_load_dwordx16 s[4:19], s[0:1], 0
    s_load_dwordx8 s[20:27], s[0:1], 64
    s_cmp_ge_u32 s2, {nwg}
    s_cbranch_scc1 L_END
    v_and_b32 v1, 63, v0
    v_lshrrev_b32 v2, 6, v0
    s_mov_b32 s{SBT}, 0
    v_readfirstlane_b32 s{SW8}, v2
    s_mov_b32 s{SLD}, 0""")
    if cfg.stamps:
        for i in range(NSTAMP): a(f"s_mov_b32 s{80+2*i}, 0")
        a("s_mov_b32 s100, 0\n s_memrealtime s[80:81]\n s_memtime s[98:99]")
    a(f"""s_and_b32 s{SW}, s{SW8}, 3
    s_lshr_b32 s{SGRP}, s{SW8}, 2
    s_mul_i32 s{SLB}, s{SGRP}, {HALF}""")

def init_wave(a, name):
    a("s_getpc_b64 s[52:53]")
    a.label(f"L_PC{name}")
    a(f"""s_lshr_b32 s54, s2, 3
    s_and_b32 s54, s54, 7
    s_lshl_b32 s54, s54, 13
    v_lshlrev_b32 v3, 7, v1
    v_add_u32 v3, s54, v3
    s_sub_u32 s52, s52, L_PC{name}-L_CODE_BEGIN
    s_subb_u32 s53, s53, 0
    v_min_u32 v3, L_CODE_END-L_CODE_BEGIN-4, v3
    global_load_dword v15, v3, s[52:53]
    v_and_b32 v4, 15, v1
    v_lshlrev_b32 v4, 2, v4
    v_bfe_u32 v5, v1, 4, 1
    v_mul_u32_u24 v5, {HALF}, v5
    v_add_u32 v4, v4, v5
    v_add_u32 v4, {L_BAR}, v4
    v_mov_b32 v5, 0
    ds_write_b32 v4, v5""")

def args_ready(a):
    a("s_waitcnt lgkmcnt(0)")
    if cfg.stamps: a("s_mov_b32 s101, s98\n s_mov_b32 s98, 0")
    srd(a, SRDWS, P_WS, WS_SIZE if cfg.stamps else WS_STAMP)
    srd(a, SRD4, P_DBG, 256)

def bar_arrive(a):
    a(f"""v_mov_b32 v13, s{SLB}
    v_mov_b32 v14, 1
    v_add_u32 v13, {L_BAR}, v13
    s_add_u32 s{SBT}, s{SBT}, 4
    s_mov_b64 exec, 1
    ds_add_u32 v13, v14
    s_mov_b64 exec, -1""")
def bar_wait(a, addr_ok=False):
    n = bar_wait.n; bar_wait.n += 1
    if not addr_ok: a(f"v_mov_b32 v13, s{SLB}\n v_add_u32 v13, {L_BAR}, v13")
    a.label(f"L_BW_{n}")
    a(f"""ds_read_b32 v14, v13
    s_waitcnt lgkmcnt(0)
    v_cmp_gt_u32 vcc, s{SBT}, v14
    s_nop 1
    s_cbranch_vccnz L_BW_{n}""")
bar_wait.n = 0

def phi_block(regs_, temps):
    out = []
    n = len(temps)
    for g in range(0, len(regs_), n):
        grp = regs_[g:g + n]
        for r, t in zip(grp, temps): out.append(f"v_mul_f32 v{t}, s70, v{r}")
        for r, t in zip(grp, temps): out.append(f"v_exp_f32 v{t}, v{t} clamp"); out.append(f"v_max_f32 v{r}, s71, v{r}")
        for r, t in zip(grp, temps): out.append(f"v_add_f32 v{r}, v{r}, v{t}")
    return out

def probe(vdst, voff, s_off, srdq=SRDWS):
    if cfg.pmode == 3:
        return f"v_mov_b32 v{vdst}, -1\n s_mov_b64 exec, 3\n v_mov_b32 v{vdst}, 0\n buffer_atomic_add v{vdst}, v{voff}, {sq(srdq)}, {s_off} offen sc0 sc1\n s_mov_b64 exec, -1"
    return f"buffer_load_dword v{vdst}, v{voff}, {sq(srdq)}, {s_off} offen " + ["sc1", "sc0 sc1", "sc0 sc1 nt"][cfg.pmode]
def check(a, name, vdst, voff, s_off, target, srdq=SRDWS):
    a(f"v_cmp_gt_u32 vcc, {target}, v{vdst}\n s_mov_b32 s78, 0\n s_nop 0\n s_cbranch_vccz L_OK_{name}")
    a("PUSHSTATE")
    a.label(f"L_POLL_{name}")
    a(f"""s_sleep {cfg.psleep}
    {probe(vdst, voff, s_off, srdq)}
    s_add_u32 s78, s78, 1
    s_waitcnt vmcnt(0)
    v_cmp_gt_u32 vcc, {target}, v{vdst}
    s_cmp_ge_u32 s78, 0x20000
    s_cbranch_scc1 L_OK_{name}
    s_cbranch_vccnz L_POLL_{name}""")
    a("POPSTATE")
    a.label(f"L_OK_{name}")
def zero_probe(a, vd, vz): a(f"v_mov_b32 v{vz}, 0\n" + probe(vd, vz, "0", SRD4))
def zero_check(a, name, vd, vz): check(a, "z" + name, vd, vz, "0", 64, SRD4)

def signal(a, s_off, nwaves, ldsaddr, narr=1, rstride_log2=7):
    n = signal.n; signal.n += 1
    a(f"""v_mov_b32 v13, {ldsaddr}
    v_mov_b32 v14, 1
    s_waitcnt vmcnt(0)
    s_mov_b64 exec, 1
    ds_add_rtn_u32 v12, v13, v14
    v_mov_b32 v13, {WS_CNT if narr > 1 else 0}
    s_waitcnt lgkmcnt(0)
    v_readfirstlane_b32 s79, v12
    v_mov_b32 v12, 1
    s_cmp_lg_u32 s79, {nwaves-1}
    s_cbranch_scc1 L_SIG_{n}""")
    if narr > 1:
        a(f"""buffer_atomic_add v12, v13, {sq(SRDWS)}, s{s_off} offen sc0 sc1
        s_mov_b64 exec, 0xff
        v_lshlrev_b32 v13, {rstride_log2}, v1
        s_waitcnt vmcnt(0)
        v_readfirstlane_b32 s79, v12
        s_cmp_lg_u32 s79, {narr-1}
        s_cbranch_scc1 L_SIG_{n}""")
    a(f"buffer_store_dword v14, v13, {sq(SRDWS)}, s{s_off} offen sc1")
    a.label(f"L_SIG_{n}")
    a("s_mov_b64 exec, -1")
signal.n = 0

def last_barrier(a, name, n_younger):
    a(f"s_cmp_eq_u32 s{SLD}, 0\n s_cbranch_scc1 L_LB_{name}\n PUSHSTATE\n s_waitcnt vmcnt({n_younger})\n s_barrier\n s_setprio 0\n POPSTATE")
    a.label(f"L_LB_{name}")

G_ACC, G_B, G_X = 16, 96, 176
G_SLOT = 36864
def slot_off(j): return ((j & 1) ^ 1) * G_SLOT
def slot_half(j): return (j % 4) >> 1
def g_ids(a):
    a(f"""s_and_b32 s52, s2, 7
    s_lshr_b32 s53, s2, 3
    s_and_b32 s57, s52, 3
    s_lshl_b32 s57, s57, 2
    s_and_b32 s54, s53, 3
    s_add_u32 s57, s57, s54
    s_lshr_b32 s52, s52, 2
    s_lshr_b32 s54, s53, 2
    s_lshl_b32 s58, s52, 2
    s_add_u32 s58, s58, s54
    s_lshl_b32 s52, s52, 1
    s_add_u32 s52, s52, s54
    s_add_u32 s52, s52, 4
    s_cmp_ge_u32 s54, 4
    s_cselect_b32 s58, s52, s58
    s_lshl_b32 s66, s{SW}, 12
    s_add_u32 s66, s66, 20480""")

def g_setup_x(a):
    if cfg.rot:
        a(f"""s_mul_i32 s62, s57, 3
        s_lshl_b32 s59, s58, 1
        s_add_u32 s62, s62, s59
        s_mul_i32 s59, s62, 205
        s_lshr_b32 s59, s59, 11
        s_mul_i32 s59, s59, 10
        s_sub_u32 s62, s62, s59
        s_lshl_b32 s64, s62, 7
        s_mul_i32 s63, s62, {64*3840}""")
    else:
        a("s_mov_b32 s64, 0\n s_mov_b32 s63, 0")
    a(f"""v_lshrrev_b32 v240, 3, v1
    s_lshl_b32 s59, s57, 7
    s_lshl_b32 s54, s{SW}, 5
    s_add_u32 s59, s59, s54
    v_add_u32 v240, s59, v240
    v_mul_u32_u24 v240, 1280, v240
    v_lshrrev_b32 v241, 4, v1
    v_and_b32 v242, 7, v1
    v_xor_b32 v242, v242, v241
    v_lshl_add_u32 v7, v242, 4, v240
    v_xor_b32 v242, 4, v242
    v_lshl_add_u32 v8, v242, 4, v240
    v_add_u32 v8, {10240-1024}, v8
    v_add_u32 v9, {20480-2048}, v7
    v_add_u32 v10, {20480-2048}, v8""")

def g_setup_w(a):
    a(f"""s_mul_i32 s59, s58, 160
    s_add_u32 s60, s59, 1280
    s_add_u32 s61, s59, {2560-160}
    s_sub_u32 s59, s58, 8
    s_mul_i32 s59, s59, 320
    s_cmp_ge_u32 s58, 8
    s_cselect_b32 s60, s59, s60
    s_cselect_b32 s61, s59, s61
    s_mul_i32 s59, s{SW}, {16*3840}
    s_add_u32 s60, s60, s59
    s_add_u32 s61, s61, s59
    s_mul_i32 s65, s{SW}, 5120""")
    a(f"v_mov_b32 v244, s60\n v_mov_b32 v245, s61")
    for i in range(5):
        assert all(((64 * i + l) * 3277) >> 16 == (64 * i + l) // 20 for l in range(64))
        a(f"""v_add_u32 v240, {64*i}, v1
        v_mul_u32_u24 v241, 3277, v240
        v_lshrrev_b32 v241, 16, v241
        v_mul_u32_u24 v242, 20, v241
        v_sub_u32 v240, v240, v242""")
        if i == 2: a("v_lshrrev_b32 v242, 4, v1\n v_and_b32 v242, 2, v242\n v_xor_b32 v240, v240, v242")
        if i > 2: a("v_xor_b32 v240, 2, v240")
        a(f"""v_cmp_gt_u32 vcc, 10, v240
        v_mul_u32_u24 v241, 3840, v241
        v_lshl_add_u32 v240, v240, 4, v241
        v_cndmask_b32 v242, v245, v244, vcc""")
        if i in (0, 4): a(f"v_add_u32 v{2+i}, v240, v242")
        else: a(f"v_add_u32 v240, v240, v242\n v_subrev_u32 v{2+i}, {1024*i}, v240")

def g_setup2(a):
    a(f"""v_lshrrev_b32 v241, 4, v1
    v_bfe_u32 v242, v1, 2, 2
    v_lshl_add_u32 v242, v241, 3, v242
    v_mul_u32_u24 v242, 320, v242
    v_and_b32 v243, 3, v1
    v_lshl_add_u32 v242, v243, 3, v242
    v_and_b32 v243, 1, v241
    v_lshlrev_b32 v243, 5, v243
    v_add_u32 v9, v242, v243
    v_sub_u32 v10, v242, v243
    v_and_b32 v240, 15, v1
    v_lshrrev_b32 v242, 1, v240
    v_xor_b32 v242, v242, v241
    v_lshlrev_b32 v240, 7, v240
    v_add_u32 v240, s66, v240
    v_lshl_add_u32 v11, v242, 4, v240
    v_xor_b32 v242, 4, v242
    v_lshl_add_u32 v12, v242, 4, v240
    s_mov_b32 s70, {LOG2E}
    s_mov_b32 s71, {EPS}""")
    for k in range(4): a(f"v_add_u32 v{2+k}, {HALF}, v{9+k}")

def g_loadx(j):
    o = [f"s_add_u32 m0, s66, {slot_half(j) * HALF + slot_off(j)}", "s_nop 0"]
    for i in range(4): o.append(f"buffer_load_dwordx4 v{7+i}, {sq(SRD0)}, s64 offen offset:{1024*i} lds ; tag=S{j}")
    o += ["s_add_u32 s64, s64, 128"]
    if cfg.rot: o += ["s_cmp_eq_u32 s64, 1280", "s_cselect_b32 s64, 0, s64"]
    return o
def g_loadw(j):
    base = slot_half(j) * HALF + slot_off(j)
    o = [f"s_add_u32 m0, s65, {base}", "s_nop 0"]
    for i in range(4): o.append(f"buffer_load_dwordx4 v{2+i}, {sq(SRD1)}, s63 offen offset:{1024*i} lds ; tag=S{j}")
    o += [f"s_add_u32 m0, s65, {base + 4096}", "s_nop 0", f"buffer_load_dwordx4 v6, {sq(SRD1)}, s63 offen lds ; tag=S{j}"]
    o += [f"s_add_u32 s63, s63, {64*3840}"]
    if cfg.rot: o += [f"s_cmp_eq_u32 s63, {640*3840}", "s_cselect_b32 s63, 0, s63"]
    return o
def g_xreads(j):
    return [f"ds_read_b128 {v4(G_X + (j&1)*16 + ks*8 + sub*4)}, v{(4 if slot_half(j) else 11)+ks} offset:{slot_off(j) + sub*2048}" for ks in range(2) for sub in range(2)]
def g_reads(t):
    j = t // 2
    o = []
    for n in range(10):
        for h in range(2):
            off = slot_off(j) + (t & 1) * 10240 + h * 1280 + 32 * n
            o.append(f"ds_read_b64_tr_b16 {v2(G_B + (t & 1) * 40 + n * 4 + 2 * h)}, v{(2 if slot_half(j) else 9) + (n & 1)} offset:{off}")
    return o

def role_loader(a):
    a(f"s_setprio {cfg.lprio}")
    g_setup_x(a)
    a("s_waitcnt lgkmcnt(0)")
    srd(a, SRD0, P_X, 2048 * 1280)
    a.extend(g_loadx(0))
    g_setup_w(a)
    srd(a, SRD1, P_W, 640 * 3840)
    seq = []
    for j in range(10): seq += [g_loadx(j), g_loadw(j)]
    pos = 1
    def upto(n):
        nonlocal pos
        while pos < min(n, 20): a.extend(seq[pos]); pos += 1
    upto(cfg.ahead0)
    args_ready(a)
    stamp(a, 1)
    for j in range(9):
        a(f"WAITTAG S{j}"); a("s_barrier")
        if j == 0: stamp(a, 2)
        if j == 6: zero_probe(a, 14, 13)
        upto(min(2 * (j + 1) + cfg.ahead, 2 * (j + 4)))
    zero_check(a, "ld", 14, 13)
    a(f"s_mov_b32 s{SLD}, 1")
    stamp(a, 3)

def g_main(a, transposed, tail):
    a("s_waitcnt vmcnt(0)\n s_barrier")
    stamp(a, 1)
    a.extend(g_xreads(0) + g_reads(0))
    def mfma(t, n, sub):
        j, ks = t // 2, t % 2
        acc = v4(G_ACC + (sub * 10 + n) * 4)
        x = v4(G_X + (j & 1) * 16 + ks * 8 + sub * 4)
        b = v4(G_B + (t & 1) * 40 + n * 4)
        c = "0" if t == 0 else acc
        return f"v_mfma_f32_16x16x32_bf16 {acc}, {b}, {x}, {c}" if transposed else f"v_mfma_f32_16x16x32_bf16 {acc}, {x}, {b}, {c}"
    for t in range(19):
        j, ks = t // 2, t % 2
        mf = [mfma(t, n, sub) for n in range(10) for sub in range(2)]
        rd = g_reads(t + 1)
        if ks == 1:
            rd = g_xreads(j + 1) + rd
            a.extend(mf[:cfg.bpos]); a("s_waitcnt lgkmcnt(0)\n s_barrier")
            a.extend(interleave(mf[cfg.bpos:], rd))
        else:
            a.extend(interleave(mf, rd))
    tail([mfma(19, n, sub) for n in range(10) for sub in range(2)])

def role_q(a):
    a(f"""s_lshl_b32 s52, s57, 3
    s_lshl_b32 s53, s{SW}, 1
    s_add_u32 s52, s52, s53
    s_mul_i32 s52, s52, 20
    s_sub_u32 s53, s58, 8
    s_mul_i32 s54, s53, 5
    s_add_u32 s52, s52, s54
    s_lshl_b32 s52, s52, 10
    s_add_u32 s52, s52, {WS_PQ}
    s_mul_i32 s55, s53, 17
    s_add_u32 s55, s55, s57
    s_lshl_b32 s55, s55, 7
    s_add_u32 s55, s55, {WS_QFLAG}
    v_lshlrev_b32 v6, 4, v1""")
    def tail(mf):
        bar_arrive(a)
        ep = []
        for c in range(5):
            for sub in range(2):
                r0 = G_ACC + (sub * 10 + 2 * c) * 4
                ep += phi_block(list(range(r0, r0 + 8)), list(range(240, 248)))
                d = G_B + (sub * 5 + c) * 4
                ep += [f"v_cvt_pk_bf16_f32 v{d+k}, v{r0+2*k}, v{r0+2*k+1}" for k in range(4)]
                ep += [f"s_add_u32 s54, s52, {(sub*20+c)*1024}", f"buffer_store_dwordx4 {v4(d)}, v6, {sq(SRDWS)}, s54 offen sc1"]
        a.extend(mf[:8])
        a.extend(interleave(mf[8:], ep[:24]))
        stamp(a, 2)
        zero_probe(a, 7, 8)
        a.extend(ep[24:])
    g_main(a, True, tail)
    stamp(a, 3)
    zero_check(a, "q", 7, 8)
    signal(a, 55, 4, L_SIG)
    stamp(a, 4)

def role_kv(a):
    EX, HB = G_SLOT, 0
    DUMP = HB + 4 * 2048
    AD = 208
    a(f"""v_lshlrev_b32 v240, 4, v1
    s_mul_i32 s52, s{SW}, 10240
    s_add_u32 s52, s52, {EX}
    v_add_u32 v{AD+6}, s52, v240
    s_lshl_b32 s52, s{SW}, 10
    s_add_u32 s52, s52, {EX}
    v_add_u32 v{AD+7}, s52, v240
    v_and_b32 v246, 15, v1
    v_lshrrev_b32 v247, 4, v1
    v_lshlrev_b32 v247, 2, v247
    s_lshl_b32 s52, s{SW}, 2
    v_subrev_u32 v246, s52, v246
    v_subrev_u32 v247, s52, v247
    s_lshl_b32 s53, s{SW}, 11
    v_mov_b32 v245, {DUMP}
    v_lshlrev_b32 v{AD+8}, 2, v1
    v_add_u32 v{AD+9}, s53, v{AD+8}""")
    for k in range(4): a(f"v_mov_b32 v{AD+12+k}, 0x3f803f80")
    k = 0
    for dt in range(2):
        for et in range(2):
            a(f"""v_add_u32 v240, {16*dt}, v247
            v_add_u32 v241, {16*et}, v246
            v_max_u32 v242, v240, v241
            v_cmp_gt_u32 vcc, 20, v242
            v_mul_u32_u24 v241, 80, v241
            v_lshl_add_u32 v241, v240, 2, v241
            v_add_u32 v241, s53, v241
            v_cndmask_b32 v{AD+k}, v245, v241, vcc""")
            k += 1
        a(f"""v_add_u32 v240, {16*dt}, v247
        v_and_b32 v241, 15, v1
        v_mul_u32_u24 v241, 20, v241
        v_max_u32 v242, v240, v241
        v_cmp_gt_u32 vcc, 20, v242
        v_lshlrev_b32 v240, 2, v240
        v_add_u32 v240, s53, v240
        v_add_u32 v240, 1600, v240
        v_cndmask_b32 v{AD+4+dt}, v245, v240, vcc""")
    a(f"""s_lshl_b32 s52, s58, 2
    s_add_u32 s52, s52, s{SW}
    s_mul_i32 s52, s52, 1680
    s_add_u32 s52, s52, {WS_KV}
    s_lshl_b32 s55, s58, 7""")
    def tail(mf):
        ep = []
        for t in [0, 1, 5, 2, 6, 7, 3, 8, 9, 4]:
            r0 = G_ACC + t * 4; r1 = G_ACC + (10 + t) * 4
            if t < 5: ep += phi_block(list(range(r0, r0 + 4)) + list(range(r1, r1 + 4)), list(range(240, 248)))
            d = G_B + t * 4
            ep += [f"v_cvt_pk_bf16_f32 v{d}, v{r0}, v{r0+1}", f"v_cvt_pk_bf16_f32 v{d+1}, v{r0+2}, v{r0+3}",
                   f"v_cvt_pk_bf16_f32 v{d+2}, v{r1}, v{r1+1}", f"v_cvt_pk_bf16_f32 v{d+3}, v{r1+2}, v{r1+3}",
                   f"ds_write_b128 v{AD+6}, {v4(d)} offset:{t*1024}"]
        a.extend(mf[:6])
        a.extend(interleave(mf[6:], ep[:28]))
        stamp(a, 2)
        zero_probe(a, 7, 8)
        a.extend(ep[28:])
    g_main(a, False, tail)
    bar_arrive(a); bar_wait(a, True)
    F = 136
    for rg in range(4):
        for q, off in enumerate([0, 5120, 1024, 6144]):
            a(f"ds_read_b128 {v4(F + rg*16 + [0, 2, 1, 3][q]*4)}, v{AD+7} offset:{rg*10240 + off}")
    D = 16
    for rg in range(4):
        for dt in range(2):
            A = v4(F + rg * 16 + dt * 4)
            acc = v4(D + 16 + dt * 4)
            a(f"v_mfma_f32_16x16x32_bf16 {acc}, {A}, {v4(AD+12)}, {'0' if rg == 0 else acc}")
            for et in range(2):
                acc = v4(D + (dt * 2 + et) * 4)
                a(f"v_mfma_f32_16x16x32_bf16 {acc}, {A}, {v4(F + rg*16 + 8 + et*4)}, {'0' if rg == 0 else acc}")
    zero_check(a, "kv", 7, 8)
    for k in [4, 0, 1, 5, 2, 3]: a(f"ds_write_b128 v{AD+k}, {v4(D + 4*k)}")
    for i in range(7): a(f"ds_read_b32 v{48+i}, v{AD+9} offset:{256*i}")
    stamp(a, 3)
    for i in range(7):
        if i == 6: a("s_mov_b32 exec_hi, 0xf")
        a(f"buffer_atomic_add_f32 v{48+i}, v{AD+8}, {sq(SRDWS)}, s52 offen offset:{256*i}")
    a("s_mov_b64 exec, -1")
    signal(a, 55, 4, L_SIG, 16, 10)
    stamp(a, 4)

def role_prep(a):
    a(f"""s_sub_u32 s56, s2, 192
    s_lshr_b32 s52, s56, 1
    s_lshl_b32 s52, s52, 6
    s_and_b32 s57, s56, 1
    s_mul_i32 s53, s57, 320
    s_sub_u32 s54, s{SW8}, 3
    s_lshl_b32 s55, s{SW8}, 1
    s_cmp_ge_u32 s{SW8}, 3
    s_cselect_b32 s54, s54, s55
    s_lshl_b32 s54, s54, 6
    s_add_u32 s53, s53, s54
    v_lshrrev_b32 v9, 3, v1
    v_lshl_add_u32 v2, v9, 3, s52
    v_and_b32 v8, 7, v1
    v_lshl_add_u32 v6, v8, 3, s53
    v_mul_u32_u24 v7, 1280, v2
    v_lshl_add_u32 v2, v6, 1, v7
    v_add_u32 v7, s53, v9
    v_mul_u32_u24 v7, {TP}, v7
    v_lshl_add_u32 v7, v8, 4, v7
    s_mul_i32 s63, s{SW}, 20480
    s_mul_i32 s64, s{SGRP}, 10240
    s_add_u32 s63, s63, s64
    v_mul_u32_u24 v10, 1040, v8
    v_add_u32 v10, s63, v10
    v_lshlrev_b32 v11, 4, v1
    v_add_u32 v11, s63, v11
    s_lshl_b32 s64, s52, 1
    s_movk_i32 s55, 5120
    s_mov_b32 s60, 0x05040100
    s_mov_b32 s61, 0x07060302
    s_mov_b32 s62, 0xffff0000
    s_lshl_b32 s59, s57, 10
    s_cmp_ge_u32 s{SW8}, 3
    s_cbranch_scc0 L_PQ""")
    tag(a, 3)
    a("v_subrev_u32 v5, 3840, v2\n v_lshlrev_b32 v6, 3, v6\n s_waitcnt lgkmcnt(0)")
    srd(a, SRD0, P_K, 2048 * 1280)
    K, V, C = 16, 60, 92
    for r in range(3): a(f"buffer_load_dwordx4 {v4(K+4*r)}, v5, {sq(SRD0)}, 0 offen offset:{1280*r}")
    for r in range(8): a(f"buffer_load_dwordx4 {v4(K+12+4*r)}, v2, {sq(SRD0)}, {'s55' if r >= 4 else '0'} offen offset:{1280*(r%4)}")
    srd(a, SRD1, P_V, 2048 * 1280); srd(a, SRD3, P_SH, 640 * 8)
    for r in range(4): a(f"buffer_load_dwordx4 {v4(C+4*r)}, v6, {sq(SRD3)}, 0 offen offset:{16*r}")
    for r in range(8): a(f"buffer_load_dwordx4 {v4(V+4*r)}, v2, {sq(SRD1)}, {'s55' if r >= 4 else '0'} offen offset:{1280*(r%4)}")
    args_ready(a)
    a(f"v_sub_u32 v9, 7, v9\n v_lshl_add_u32 v10, v9, 4, v10\n s_sub_u32 s64, {WS_UT + 1984*2}, s64\n s_add_u32 s59, s59, {WS_UFLG}")
    stamp(a, 1)
    if cfg.qlate == 0: a("s_barrier")
    P, T, U, O = 108, 120, 184, 136+56
    for ch in range(8):
        dw, hi = ch // 2, ch % 2
        sel = "s61" if hi else "s60"
        for s_ in range(-2, 8):
            a(f"v_perm_b32 v{P+s_+2}, v{K+4*(s_+2)+dw}, v{K+4*(s_+3)+dw}, {sel}")
        for s_ in range(8): a(f"v_dot2_f32_bf16 v{T+8*ch+s_}, v{P+s_}, v{C+2*ch+1}, 0")
        for s_ in range(8): a(f"v_dot2_f32_bf16 v{T+8*ch+s_}, v{P+s_+2}, v{C+2*ch}, v{T+8*ch+s_}")
    if cfg.qlate == 1: a("s_waitcnt vmcnt(0)\n s_barrier")
    for ch in range(8):
        dw, hi = ch // 2, ch % 2
        for s_ in range(8):
            a(f"v_and_b32 v{U+s_}, s62, v{V+4*s_+dw}" if hi else f"v_lshlrev_b32 v{U+s_}, 16, v{V+4*s_+dw}")
        for s_ in range(8): a(f"v_mul_f32 v{T+8*ch+s_}, v{T+8*ch+s_}, v{U+s_}")
        o = O + 4 * ch
        for j in range(4): a(f"v_cvt_pk_bf16_f32 v{o+j}, v{T+8*ch+7-2*j}, v{T+8*ch+6-2*j}")
        a(f"ds_write_b128 v10, {v4(o)} offset:{128*ch}")
    def flush(R, extra):
        for i in range(8): a(f"ds_read_b128 {v4(R+4*i)}, v11 offset:{1040*i}")
        for i in range(8): a(f"s_add_u32 s54, s64, {8*TP*i + extra}\n buffer_store_dwordx4 {v4(R+4*i)}, v7, {sq(SRDWS)}, s54 offen{'' if cfg.x_plain == 1 else (' nt' if cfg.x_plain == 2 else ' sc1')}" if not cfg.x_nost else "s_nop 0")
    flush(16, 0)
    zero_probe(a, 3, 4)
    if cfg.qlate == 2: a("s_barrier")
    a("s_barrier")
    stamp(a, 2)
    zero_check(a, "pu", 3, 4)
    signal(a, 59, 5, L_SIG, 32, 7)
    stamp(a, 3)
    a("s_branch L_PEND")
    a.label("L_PQ")
    tag(a, 6)
    a(f"s_cmp_lg_u32 s{SW8}, 1\n s_cbranch_scc1 L_PQ0")
    init_wave(a, "p")
    a.label("L_PQ0")
    args_ready(a)
    srd(a, SRD2, P_Q, 2048 * 1280)
    a(f"s_cmp_lg_u32 s{SW8}, 2\n s_cbranch_scc1 L_PQ1")
    a(f"""v_lshlrev_b32 v8, 4, v1
    v_mov_b32 v16, 0
    v_mov_b32 v17, 0
    v_mov_b32 v18, 0
    v_mov_b32 v19, 0
    s_lshl_b32 s54, s56, 11
    buffer_store_dwordx4 v[16:19], v8, {sq(SRDWS)}, s54 offen sc1
    buffer_store_dwordx4 v[16:19], v8, {sq(SRDWS)}, s54 offen offset:1024 sc1
    v_mov_b32 v8, 1
    s_waitcnt vmcnt(0)
    s_mov_b64 exec, 1
    buffer_atomic_add v8, v16, {sq(SRD4)}, 0 offen sc1
    s_mov_b64 exec, -1""")
    a.label("L_PQ1")
    a(f"v_lshl_add_u32 v10, v9, 4, v10\n s_add_u32 s64, s64, {WS_QT}\n s_add_u32 s59, s59, {WS_TFLG}\n s_barrier")
    stamp(a, 1)
    Q = 16
    if cfg.x_noq: a("s_barrier\n s_branch L_PQ2")
    for st in range(2):
        for r in range(8): a(f"buffer_load_dwordx4 {v4(Q+32*st+4*r)}, v2, {sq(SRD2)}, {'s55' if r >= 4 else '0'} offen offset:{1280*(r%4) + 128*st}")
    a("s_barrier")
    for st in range(2):
        if st == 1: a(f"s_cmp_eq_u32 s{SW8}, 2\n s_cbranch_scc1 L_PQ2")
        for ch in range(8):
            dw, hi = ch // 2, ch % 2
            sel = "s61" if hi else "s60"
            o = 80 + 32 * st + 4 * ch
            for j in range(4): a(f"v_perm_b32 v{o+j}, v{Q+32*st+4*(2*j+1)+dw}, v{Q+32*st+4*(2*j)+dw}, {sel}")
            a(f"ds_write_b128 v10, {v4(o)} offset:{128*ch}")
        flush(144 + 32 * st, 64 * TP * st)
    a.label("L_PQ2")
    zero_probe(a, 3, 4)
    a("s_waitcnt vmcnt(0) lgkmcnt(0)")
    stamp(a, 2)
    zero_check(a, "pq", 3, 4)
    signal(a, 59, 3, L_SIG + 4, 32, 7)
    stamp(a, 3)
    a.label("L_PEND")
    if cfg.x_pend == 1: a("s_branch L_FIN")
    if cfg.x_pend == 2: a(f"s_cmp_eq_u32 s{SGRP}, 0\n s_cbranch_scc1 L_FIN")
    if cfg.x_pend == 3: a(f"s_cmp_eq_u32 s{SGRP}, 1\n s_cbranch_scc1 L_FIN")

C_HCOPY = 4224; C_UH = 148; C_WAVE = 2 * C_HCOPY + 2 * C_UH * 16
C_STG = HALF + 4 * C_WAVE; C_STGP = 4160
def role_conv(a):
    ACC, A, RAW, B, QV, UL = 16, 48, 80, 128, 192, 208
    a(f"""s_and_b32 s52, s2, 7
    s_mul_i32 s52, s52, 20
    s_lshr_b32 s53, s2, 3
    s_and_b32 s61, s2, 7
    s_sub_u32 s53, s53, 12
    s_add_u32 s57, s52, s53
    s_lshl_b32 s58, s57, 2
    s_add_u32 s58, s58, s{SW}
    s_lshl_b32 s59, s58, 12
    s_mul_i32 s60, s{SW}, {C_WAVE}
    s_add_u32 s60, s60, {HALF}
    s_add_u32 s52, s{P_H}, s59
    s_addc_u32 s53, s{P_H+1}, 0
    s_load_dword s66, s[52:53], 0
    s_lshr_b32 s54, s58, 1
    s_lshl_b32 s54, s54, 2
    s_load_dword s67, s[{P_D}:{P_D+1}], s54
    s_lshl_b32 s61, s61, 7
    s_cmp_ge_u32 s57, 80
    s_cselect_b32 s54, 1024, 0
    s_add_u32 s61, s61, s54
    s_add_u32 s61, s61, {WS_UFLG}
    s_add_u32 s63, s61, {WS_TFLG - WS_UFLG}
    v_lshlrev_b32 v2, 4, v1
    v_add_u32 v3, 4, v2
    v_mov_b32 v12, 0""")
    a(probe(15, 12, "s61"))
    srd(a, SRD0, P_H, 640 * 4096)
    srd(a, SRD1, P_OUT, 2048 * 2560)
    a(f"s_add_u32 m0, s60, 32")
    for i in range(4): a(f"buffer_load_dwordx4 v2, {sq(SRD0)}, s59 offen offset:{1024*i} lds ; tag=H")
    a(f"s_add_u32 m0, s60, {C_HCOPY + 32}")
    for i in range(4): a(f"buffer_load_dwordx4 v3, {sq(SRD0)}, s59 offen offset:{1024*i} lds ; tag=H")
    last_barrier(a, "conv", 9)
    stamp(a, 4)
    check(a, "convu", 15, 12, "s61", 1)
    stamp(a, 5)
    a(f"s_mul_i32 s55, s58, {TP}\n s_add_u32 s54, s55, {WS_UT}\n s_add_u32 s55, s55, {WS_QT}")
    for i in range(4): a(f"buffer_load_dwordx4 {v4(UL+4*i)}, v2, {sq(SRDWS)}, s54 offen offset:{1024*i} sc1")
    a(f"""v_and_b32 v8, 15, v1
    v_lshrrev_b32 v9, 4, v1
    v_add_u32 v10, 1, v8
    v_bfe_u32 v11, v10, 1, 1
    v_mul_u32_u24 v11, {C_HCOPY}, v11
    v_lshrrev_b32 v13, 2, v10
    v_lshl_add_u32 v13, v9, 3, v13
    v_lshl_add_u32 v11, v13, 3, v11
    v_add_u32 v4, s60, v11
    v_and_b32 v10, 1, v10
    v_lshlrev_b32 v5, 4, v10
    v_lshlrev_b32 v10, 1, v9
    v_sub_u32 v10, v10, v8
    v_add_u32 v10, 15, v10
    v_lshlrev_b32 v10, 4, v10
    v_add_u32 v6, s60, v10
    v_lshrrev_b32 v10, 1, v1
    v_and_b32 v11, 1, v1
    v_mul_u32_u24 v11, {C_UH}, v11
    v_add_u32 v10, v10, v11
    v_lshlrev_b32 v10, 4, v10
    v_add_u32 v7, s60, v10
    v_mov_b32 v16, 0
    v_mov_b32 v17, 0
    v_mov_b32 v18, 0
    v_mov_b32 v19, 0
    v_and_b32 v10, 1, v9
    v_mul_u32_u24 v10, {C_UH}, v10
    v_add_u32 v10, v10, v8
    v_lshl_add_u32 v20, v10, 4, s60
    v_and_b32 v10, 1, v1
    v_lshlrev_b32 v10, 4, v10
    v_bfe_u32 v11, v1, 1, 1
    v_mul_u32_u24 v11, {C_HCOPY}, v11
    v_add3_u32 v21, v10, v11, s60
    v_lshlrev_b32 v10, 5, v8
    v_lshl_add_u32 v8, v9, 3, v10""")
    a(f"""s_waitcnt lgkmcnt(0)
    s_lshl_b32 s52, s66, 16
    s_lshl_b32 s53, s67, 16
    s_and_b32 s54, s67, 0xffff0000
    s_bitcmp1_b32 s58, 0
    s_cselect_b32 s53, s54, s53
    s_and_b32 s54, s66, 0xffff0000
    v_mov_b32 v10, s52
    v_add_f32 v10, s53, v10
    v_mov_b32 v11, s54
    v_cvt_pk_bf16_f32 v10, v10, v11
    v_mov_b32 v11, s60
    WAITTAG H
    ds_write_b128 v21, v[16:19]
    ds_write_b32 v11, v10 offset:32
    ds_write_b32 v11, v10 offset:{C_HCOPY+28}
    ds_write_b128 v20, v[16:19] offset:{2*C_HCOPY + 128*16}""")
    def raw_slots(i):
        return [(0, 1, 2), (2, 0, 1), (1, 2, 0), (0, 1, 2)][i]
    def raw_reads(it, N1):
        N0, i = it >> 2, it & 3
        sl = raw_slots(i)
        return [f"ds_read_b64 {v2(RAW + N1*6 + 2*sl[k])}, v4 offset:{(2*N1+N0)*256 + (2*i+k)*8}" for k in range(0 if i == 0 else 1, 3)]
    def aligns(it, N1):
        sl = raw_slots(it & 3)
        d = [RAW + N1 * 6 + 2 * sl[0], RAW + N1 * 6 + 2 * sl[0] + 1, RAW + N1 * 6 + 2 * sl[1], RAW + N1 * 6 + 2 * sl[1] + 1, RAW + N1 * 6 + 2 * sl[2]]
        return [f"v_alignbit_b32 v{A + 4*N1 + k}, v{d[k+1]}, v{d[k]}, v5" for k in range(4)]
    def b_reads(it):
        N0, i = it >> 2, it & 3
        return [f"ds_read_b128 {v4(B + (it&1)*32 + 4*dl)}, v6 offset:{2*C_HCOPY + (14-(2*dl-N0))*128 + (i>>1)*16 + (i&1)*C_UH*16}" for dl in range(8)]
    for N1 in range(8): a.extend(raw_reads(0, N1))
    for N1 in range(8):
        a.extend(aligns(0, N1)); a.extend(raw_reads(1, N1))
    for i in range(4): a(f"ds_write_b128 v7, {v4(UL+4*i)} offset:{2*C_HCOPY + 512*i}")
    a.extend(b_reads(0))
    stamp(a, 6)
    queue = []
    for it in range(8):
        if it < 7: queue += b_reads(it + 1)
        if it == 4: a(probe(15, 12, "s63"))
        if it == 6:
            check(a, "convq", 15, 12, "s63", 1)
            queue += [f"buffer_load_dwordx2 {v2(QV+2*J)}, v8, {sq(SRDWS)}, s55 offen offset:{512*J} sc1" for J in range(8)]
        for N1 in range(8):
            tg = f"v_alignbit_b32 v{A+4*N1+3},"
            pos = max((k for k, q in enumerate(queue) if q.startswith(tg)), default=-1)
            for q in queue[:pos + 1]: a(q)
            queue = queue[pos + 1:]
            for J in range(N1, 8):
                acc = v4(ACC + 4 * J)
                c = "0" if (it == 0 and N1 == 0) else acc
                a(f"v_mfma_f32_16x16x32_bf16 {acc}, {v4(A+4*N1)}, {v4(B + (it&1)*32 + 4*(J-N1))}, {c}")
                for _ in range(2):
                    if queue: a(queue.pop(0))
            if it < 7: queue += aligns(it + 1, N1)
            if it < 6: queue += raw_reads(it + 2, N1)
        assert not any(q.startswith("ds_read_b128") for q in queue)
    assert not queue
    stamp(a, 7)
    a(f"""s_mov_b32 s62, 0xffff0000
    s_mul_i32 s52, s{SW}, {C_STGP}
    s_add_u32 s52, s52, {C_STG}
    v_add_u32 v9, s52, v8""")
    for J in range(8):
        T = 224 + (J & 1) * 8
        a(f"""v_lshlrev_b32 v{T}, 16, v{QV+2*J}
        v_and_b32 v{T+1}, s62, v{QV+2*J}
        v_lshlrev_b32 v{T+2}, 16, v{QV+2*J+1}
        v_and_b32 v{T+3}, s62, v{QV+2*J+1}""")
        for r in range(4): a(f"v_mul_f32 v{T+r}, v{T+r}, v{ACC+4*J+r}")
        a(f"v_cvt_pk_bf16_f32 v{T+4}, v{T}, v{T+1}\n v_cvt_pk_bf16_f32 v{T+5}, v{T+2}, v{T+3}")
        a(f"ds_write_b64 v9, {v2(T+4)} offset:{512*J}")
    bar_arrive(a)
    a(f"""v_bfe_u32 v10, v1, 2, 2
    v_mul_u32_u24 v10, {C_STGP}, v10
    v_and_b32 v11, 3, v1
    v_lshl_add_u32 v10, v11, 3, v10
    v_lshrrev_b32 v11, 4, v1
    v_lshl_add_u32 v10, v11, 5, v10
    s_lshl_b32 s52, s{SW}, 10
    s_add_u32 s52, s52, {C_STG}
    v_add_u32 v10, s52, v10
    s_lshl_b32 s52, s{SW}, 9
    v_add_u32 v11, s52, v1
    v_mul_u32_u24 v11, 2560, v11
    s_lshl_b32 s52, s57, 3""")
    bar_wait(a, True)
    stamp(a, 8)
    for i in range(8): a(f"ds_read_b64_tr_b16 {v2(48+2*i)}, v10 offset:{128*i}")
    for i in range(8):
        a(f"buffer_store_dwordx2 {v2(48+2*i)}, v11, {sq(SRD1)}, s52 offen")
        if i < 7: a(f"s_add_u32 s52, s52, {64*2560}")

def b2_tables(hf):
    num = {}
    for t in range(5 * hf, 5 * hf + 5):
        hs = {e // 20 for e in range(16 * t, 16 * t + 16)}
        dts = [dt for dt in range(10) if hs & {d // 20 for d in range(16 * dt, 16 * dt + 16)}]
        ch = {}
        for dt in dts: ch.setdefault(dt // 2, []).append(dt)
        num[t] = sorted(ch.items())
    ch = {}
    for dt in range(5 * hf, 5 * hf + 5): ch.setdefault(dt // 2, []).append(dt)
    return num, sorted(ch.items())

B_KS = 8416
NS = 3
def role_b2(a):
    PQ, KV, RAW = 16, 108, 180
    WA = [76 + 4 * n for n in range(8)]
    WB = [228 + 4 * n for n in range(7)] + [8]
    ACC = 108
    U = [180, 204]
    a(f"""s_mul_i32 s57, s56, 205
    s_lshr_b32 s57, s57, 10
    s_mul_i32 s54, s57, 5
    s_sub_u32 s58, s56, s54""")
    assert all((v * 205) >> 10 == v // 5 for v in range(216))
    srd(a, SRD0, P_WO, 640 * 1280)
    a(f"""s_lshl_b32 s59, s58, 8
    s_mul_i32 s52, s{SW}, {160*1280}
    s_add_u32 s59, s59, s52
    s_lshl_b32 s53, s{SW}, 6
    s_mul_i32 s65, s{SW}, 20480
    s_add_u32 s65, s65, s{SLB}
    v_and_b32 v8, 15, v1
    v_lshrrev_b32 v9, 4, v1
    v_lshlrev_b32 v2, 4, v8
    v_xor_b32 v2, s53, v2
    v_mul_u32_u24 v10, {8*1280}, v9
    v_add3_u32 v2, v2, v10, s59""")
    def dma(kstep, slot):
        return [[f"s_add_u32 m0, s65, {slot*B_KS + i*1056}", f"s_mov_b32 s63, {(32*kstep + i)*1280}",
                 f"buffer_load_dwordx4 v2, {sq(SRD0)}, s63 offen lds ; tag=K{kstep}"] for i in range(8)]
    def wreads(slot, dst):
        return [f"ds_read_b64_tr_b16 {v2(dst[n] + 2*h)}, v0 offset:{slot*B_KS + h*512 + 32*n}" for n in range(8) for h in range(2)]
    bar_wait(a)
    for g in dma(0, 0) + dma(1, 1): a.extend(g)
    last_barrier(a, "b2", 16)
    a(f"s_setprio {cfg.cprio}")
    srd(a, SRD1, P_OUT, 2048 * 2560)
    a(f"""v_bfe_u32 v10, v1, 2, 3
    v_mul_u32_u24 v10, 1056, v10
    v_lshrrev_b32 v11, 5, v1
    v_lshl_add_u32 v10, v11, 8, v10
    v_and_b32 v11, 3, v1
    v_lshl_add_u32 v10, v11, 3, v10
    v_add_u32 v0, s65, v10
    s_add_u32 s64, s65, {2*B_KS}
    v_lshlrev_b32 v9, 3, v9
    v_mul_u32_u24 v3, 40, v8
    v_add3_u32 v3, v3, v9, s64
    v_mul_u32_u24 v4, 800, v11
    v_add3_u32 v4, v4, v9, s64
    v_lshlrev_b32 v5, 4, v1
    v_lshlrev_b32 v6, 3, v1
    v_add_u32 v6, s64, v6
    v_add_u32 v7, 4096, v5
    s_mul_i32 s52, s57, 3
    s_lshr_b32 s53, s52, 3
    s_add_u32 s54, s52, 2
    s_min_u32 s54, s54, 127
    s_lshr_b32 s54, s54, 3
    s_sub_u32 s54, s54, s53
    s_lshl_b32 s54, s54, 7
    v_and_b32 v12, 1, v1
    v_lshlrev_b32 v13, 7, v12
    v_mul_u32_u24 v12, s54, v12
    s_mul_i32 s60, s{SW}, 17
    s_add_u32 s60, s60, s53
    s_lshl_b32 s60, s60, 7
    s_add_u32 s60, s60, {WS_QFLAG}
    s_and_b32 s61, s2, 7
    s_lshl_b32 s61, s61, 10
    s_lshl_b32 s53, s{SW}, 8
    s_add_u32 s61, s61, s53
    s_mul_i32 s52, s52, 20480
    s_mul_i32 s53, s{SW}, 5120
    s_add_u32 s52, s52, s53
    s_add_u32 s52, s52, {WS_PQ}
    s_mul_i32 s62, s{SW}, {8*1680}
    s_add_u32 s62, s62, {WS_KV}
    s_mov_b32 s73, {EPS}
    s_mov_b32 s66, 0xffff0000
    s_mov_b32 s67, -1
    s_mov_b32 s68, 0
    s_mov_b32 s69, -1
    s_mov_b32 s70, 0
    s_mov_b32 s71, 0xffff0000""")
    for r in range(KV, KV + 72): a(f"v_mov_b32 v{r}, 0")
    a("WAITTAG K0")
    a.extend(wreads(0, WA))
    a("s_waitcnt lgkmcnt(0)")
    for g in dma(2, 0): a.extend(g)
    a(probe(14, 12, "s60"))
    stamp(a, 5)
    check(a, "b2q", 14, 12, "s60", 1)
    for sub in range(NS):
        for c in range(5):
            a(f"buffer_load_dwordx4 {v4(PQ + (sub*5+c)*4)}, v{5 if c < 4 else 7}, {sq(SRDWS)}, s52 offen offset:{1024*(c%4)} sc1")
        if sub < NS - 1: a("s_add_u32 s52, s52, 20480")
    a(probe(14, 13, "s61"))
    check(a, "b2kv", 14, 13, "s61", 1)
    stamp(a, 6)
    for hf in range(2):
        for i in range(7):
            a(f"buffer_load_dwordx4 {v4(RAW + hf*28 + 4*i)}, v{5 if i < 4 else 7}, {sq(SRDWS)}, s62 offen offset:{1024*(i%4)} sc1")
        if hf == 0: a("s_add_u32 s62, s62, 6720")
    qi = {}
    tabs = [b2_tables(0), b2_tables(1)]
    for hf in range(2):
        for i in range(7):
            r = RAW + hf * 28 + 4 * i
            a(f"v_cvt_pk_bf16_f32 v{r}, v{r}, v{r+1}\n v_cvt_pk_bf16_f32 v{r+1}, v{r+2}, v{r+3}\n ds_write_b64 v6, {v2(r)} offset:{512*i}")
        num, den = tabs[hf]
        quads = [("z", hf, dt) for c, dts in den for dt in dts] + [("n", t, dt) for t in num for c, dts in num[t] for dt in dts]
        assert len(quads) == 18
        for (kind, t, dt) in quads:
            q = len(qi); qi[(kind, t, dt)] = q
            mask = 0
            for l in range(64):
                i, g = l & 15, l >> 4
                hd = (16 * dt + 4 * g) // 20
                he = (16 * t + i) // 20 if kind == "n" else (i & 3) + 4 * t
                if hd == he: mask |= 1 << l
            off = 640 * (t - 5 * hf) + 32 * (dt - 5 * hf) if kind == "n" else 800 + 32 * (dt - 5 * hf)
            a(f"s_mov_b32 exec_lo, {mask & 0xffffffff:#x}\n s_mov_b32 exec_hi, {mask >> 32:#x}")
            a(f"ds_read_b64 {v2(KV + 2*q)}, v{3 if kind == 'n' else 4} offset:{off}")
        a("s_mov_b64 exec, -1")
    stamp(a, 7)
    def omf(sub, hf, T):
        o = []
        num, den = tabs[hf]
        def one(kind, t, lst, acc):
            lst = sorted(lst, key=lambda x: len(x[1]))
            for k, (c, dts) in enumerate(lst):
                src = "0" if k == 0 else v4(acc)
                kv = KV + 2 * qi[(kind, t, dts[0])]
                pq = PQ + (sub * 5 + c) * 4
                key = (min(k, 1), 0 if kind == "z" else 1, t, k)
                if len(dts) == 2: o.append((key, f"v_mfma_f32_16x16x32_bf16 {v4(acc)}, {v4(kv)}, {v4(pq)}, {src}"))
                else: o.append((key, f"v_mfma_f32_16x16x16_bf16 {v4(acc)}, {v2(kv)}, {v2(pq + 2*(dts[0]&1))}, {src}"))
        one("z", hf, den, T)
        for t in num: one("n", t, num[t], T + 4 + 4 * (t - 5 * hf))
        return [x for _, x in sorted(o)]
    def ovalu(sub, hf, T):
        o = []
        for r in range(4): o.append(f"v_add_f32 v{T+r}, s73, v{T+r}")
        for r in range(4): o.append(f"v_rcp_f32 v{T+r}, v{T+r}")
        for tl in range(5):
            t = tl + 5 * hf
            h0 = (16 * tl) // 20; h1 = (16 * tl + 12) // 20
            rc = T + h0; n = T + 4 + 4 * tl
            if h0 != h1:
                g0 = min(g for g in range(4) if (16 * tl + 4 * g) // 20 == h1)
                o.append(f"v_cndmask_b32 v{rc}, v{T+h0}, v{T+h1}, s[{64+2*g0}:{65+2*g0}]")
            for r in range(4): o.append(f"v_mul_f32 v{n+r}, v{n+r}, v{rc}")
            d = PQ + (sub * 5 + t // 2) * 4 + 2 * (t & 1)
            o.append(f"v_cvt_pk_bf16_f32 v{d}, v{n}, v{n+1}")
            o.append(f"v_cvt_pk_bf16_f32 v{d+1}, v{n+2}, v{n+3}")
        return o
    def acc(sub, n): return ACC + (n * NS + sub) * 4
    def g2(k, W):
        return [f"v_mfma_f32_16x16x32_bf16 {v4(acc(sub, n))}, {v4(W[n])}, {v4(PQ + (sub*5+k)*4)}, {'0' if k == 0 else v4(acc(sub, n))}" for n in range(8) for sub in range(NS)]
    units = [(s_, h) for h in range(2) for s_ in range(NS)]
    nu = len(units)
    a.extend(interleave(omf(*units[0], U[0]), wreads(1, WB)))
    for u in range(1, nu):
        m = omf(*units[u], U[u & 1])
        body = interleave(m, ovalu(*units[u - 1], U[(u - 1) & 1]), 2)
        if u == 1:
            a("s_waitcnt lgkmcnt(0)")
            body = interleave(body, dma(3, 1))
        a.extend(body)
    a.extend(interleave(g2(0, WA), ovalu(*units[nu - 1], U[(nu - 1) & 1]), 2))
    k1 = g2(1, WB)
    a.extend(interleave(k1[:10], wreads(0, WA), 0, 8))
    a("s_waitcnt lgkmcnt(0)")
    a.extend(interleave(k1[10:], dma(4, 0), 0, 10))
    a("WAITTAG K3")
    a.extend(interleave(g2(2, WA), wreads(1, WB), 0, 20))
    k3 = g2(3, WB)
    a.extend(k3[:10]); a("WAITTAG K4")
    a.extend(interleave(k3[10:], wreads(0, WA), 0, 10))
    bar_arrive(a)
    ad = []
    for gam in range(1, 4):
        ad += [f"s_xor_b32 s52, s{SW}, {gam}", "s_mul_i32 s52, s52, 18432", f"s_add_u32 s52, s52, {(gam-1)*6144}", f"s_add_u32 s52, s52, s{SLB}", f"v_add_u32 v{8+gam}, s52, v5"]
    ad += [f"s_mul_i32 s53, s{SW}, 18432", f"s_add_u32 s53, s53, s{SLB}", "v_add_u32 v8, s53, v5"]
    ad += f"""v_and_b32 v12, 15, v1
    v_mul_u32_u24 v12, 80, v12
    v_lshrrev_b32 v3, 4, v1
    v_lshl_add_u32 v12, v3, 3, v12
    v_add_u32 v12, s53, v12
    v_lshrrev_b32 v3, 2, v1
    v_and_b32 v4, 3, v1
    v_lshlrev_b32 v4, 4, v4
    v_mul_u32_u24 v15, 80, v3
    v_add3_u32 v15, v15, v4, s53
    s_mul_i32 s52, s57, 48
    v_add_u32 v3, s52, v3
    v_mul_u32_u24 v3, 2560, v3
    v_add_u32 v3, v3, v4
    s_lshl_b32 s52, s58, 8
    s_lshl_b32 s54, s{SW}, 6
    s_add_u32 s52, s52, s54
    s_add_u32 s52, s52, 1280""".split("\n")
    k4 = g2(4, WA)
    k4 = k4[6:] + k4[:6]
    a.extend(interleave(k4[:18], ad))
    bar_wait(a, True)
    wr = [f"ds_write_b128 v{8+gam}, {v4(ACC + (gam*6+k)*4)} offset:{1024*k}" for gam in range(1, 4) for k in range(6)]
    a.extend(interleave(k4[18:], wr[:6])); a.extend(wr[6:])
    stamp(a, 8)
    bar_arrive(a); bar_wait(a, True)
    R = 16
    for k in range(6):
        for gam in range(3): a(f"ds_read_b128 {v4(R + (k*3+gam)*4)}, v8 offset:{gam*6144 + 1024*k}")
    for k in range(6):
        n, sub = k // NS, k % NS
        for r in range(4): a(f"v_add_f32 v{ACC+4*k+r}, v{ACC+4*k+r}, v{R+(k*3)*4+r}")
        for r in range(4): a(f"v_add_f32 v{R+(k*3+1)*4+r}, v{R+(k*3+1)*4+r}, v{R+(k*3+2)*4+r}")
        for r in range(4): a(f"v_add_f32 v{ACC+4*k+r}, v{ACC+4*k+r}, v{R+(k*3+1)*4+r}")
        a(f"v_cvt_pk_bf16_f32 v{140+2*k}, v{ACC+4*k}, v{ACC+4*k+1}\n v_cvt_pk_bf16_f32 v{141+2*k}, v{ACC+4*k+2}, v{ACC+4*k+3}")
        a(f"ds_write_b64 v12, {v2(140+2*k)} offset:{32*n + 1280*sub}")
    for sub in range(NS): a(f"ds_read_b128 {v4(160+4*sub)}, v15 offset:{1280*sub}")
    for sub in range(NS):
        a(f"buffer_store_dwordx4 {v4(160+4*sub)}, v3, {sq(SRD1)}, s52 offen")
        if sub < NS - 1: a(f"s_add_u32 s52, s52, {16*2560}")

def kd(name):
    return f""".p2align 6
.amdhsa_kernel {name}
  .amdhsa_next_free_vgpr 256
  .amdhsa_next_free_sgpr 102
  .amdhsa_accum_offset 256
  .amdhsa_group_segment_fixed_size 0
  .amdhsa_kernarg_size 96
  .amdhsa_user_sgpr_count 2
  .amdhsa_user_sgpr_kernarg_segment_ptr 1
  .amdhsa_system_sgpr_workgroup_id_x 1
  .amdhsa_float_denorm_mode_32 3
.end_amdhsa_kernel"""

def head(name): return f".globl {name}\n.p2align 8\n.type {name},@function"

def build():
    k = KN + "_kernel"
    a = Asm()
    a(head(k)); prologue(a, k, 256)
    a("s_cmp_ge_u32 s2, 192\n s_cbranch_scc1 L_P")
    g_ids(a)
    a(f"s_cmp_eq_u32 s{SGRP}, 0\n s_cbranch_scc1 L_CONS")
    tag(a, 7)
    role_loader(a)
    a("s_cmp_ge_u32 s2, 96\n s_cbranch_scc1 L_CONV\n s_branch L_B2")
    a.label("L_CONS")
    a(f"s_cmp_lg_u32 s{SW}, 3\n s_cbranch_scc1 L_CONS1")
    init_wave(a, "g")
    a.label("L_CONS1")
    a(f"s_setprio {cfg.cprio}")
    g_setup2(a)
    args_ready(a)
    a("s_cmp_ge_u32 s58, 8\n s_cbranch_scc1 L_Q")
    tag(a, 1); role_kv(a); a("s_branch L_FIN")
    a.label("L_Q"); tag(a, 2); role_q(a); a("s_branch L_B2")
    a.label("L_P"); role_prep(a)
    a(f"s_cmp_eq_u32 s{SGRP}, 0\n s_cbranch_scc1 L_B2")
    a.label("L_CONV"); tag(a, 4); role_conv(a); a("s_branch L_FIN")
    a.label("L_B2")
    a("""s_lshr_b32 s53, s2, 3
    s_sub_u32 s54, s53, 4
    s_cmp_lt_u32 s53, 12
    s_cselect_b32 s53, s53, s54
    s_cmp_ge_u32 s53, 27
    s_cbranch_scc1 L_FIN
    s_and_b32 s56, s2, 7
    s_mul_i32 s56, s56, 27
    s_add_u32 s56, s56, s53
    s_cmp_ge_u32 s56, 215
    s_cbranch_scc1 L_FIN""")
    tag(a, 5); role_b2(a)
    a.label("L_FIN"); stamps_out(a)
    a.label("L_END"); a("s_endpgm")
    launch = [f"; @launch grid=(256,1,1) block=(512,1,1) lds={LDS_BYTES}"]
    return launch, a, [k]

def emit(path, launch, a, kernels, verbose=False):
    body = fix_hazards(insert_waits(a.lines), verbose)
    out = list(launch) + ['.amdgcn_target "amdgcn-amd-amdhsa--gfx950"', ".text", ".p2align 8", "L_CODE_BEGIN:"]
    out += [(l if l.endswith(":") or l.startswith(".") else "    " + l) for l in body]
    out += ["L_CODE_END:", "    s_endpgm", '.section .rodata,"a"'] + [kd(k) for k in kernels]
    open(path, "w").write("\n".join(out) + "\n")

if __name__ == "__main__":
    cfg.stamps = "stamps" in sys.argv[2:]
    cfg.rot = "rot" in sys.argv[2:]
    for x in sys.argv[2:]:
        if "=" in x: setattr(cfg, x.split("=")[0], int(x.split("=")[1]))
    emit(sys.argv[1], *build(), verbose="-v" in sys.argv)
```

```python
import sys
sys.path.insert(0, "dev")
from asmlib import *

KN = "concat_heads__ssm_conv_h3__linear_attn_block__prompt"
WS_KVFLG = 0x0000
WS_CNT   = 0x2000
WS_UFLG  = 0x2800
WS_TFLG  = 0x3000
WS_QFLAG = 0x5800
WS_KV    = 0x8000
TP = 4224
WS_UT    = 0x100000
WS_QT    = 0x400000
WS_PQ    = 0x700000
WS_STAMP = 0xA00000
WS_SIZE  = 0xB00000
LDS_BYTES = 163840
HALF = 81920
L_BAR = HALF - 64
L_SIG = HALF - 60
SGRP, SLB, SBT, SW8, SLD = 74, 75, 76, 77, 72
LOG2E = 0x3FB8AA3B
EPS = 0x358637BD

P_Q, P_K, P_V, P_SH, P_H, P_D, P_X, P_W, P_WO, P_OUT, P_DBG, P_WS = [4 + 2 * i for i in range(12)]
SRD0, SRD1, SRD2, SRD3, SRD4, SRDWS = 28, 32, 36, 40, 44, 48
SW = 3

def srd(a, d, p, nbytes):
    a(f"s_mov_b32 s{d}, s{p}\n s_and_b32 s{d+1}, s{p+1}, 0xffff\n s_mov_b32 s{d+2}, {nbytes}\n s_mov_b32 s{d+3}, 0x20000")
def sq(d): return f"s[{d}:{d+3}]"
def v4(r): return f"v[{r}:{r+3}]"
def v2(r): return f"v[{r}:{r+1}]"

class Cfg:
    stamps = False
    rot = False
    gonly = 0
    ahead0 = 4
    ahead = 4
    bpos = 3
    lprio = 3
    cprio = 2
    psleep = 4
    qlate = 1
    enc = 0
    role = 0
    pmode = 0
    x_noq = 0
    x_plain = 0
    x_pend = 0
    x_nost = 0
cfg = Cfg()

NSTAMP = 10
def stamp(a, i):
    if cfg.enc and cfg.enc == cfg.role * 10 + i:
        a("s_memrealtime s[96:97]\n s_waitcnt lgkmcnt(0)")
    if cfg.stamps:
        a(f"s_memrealtime s[{80+2*i}:{81+2*i}]\n s_waitcnt lgkmcnt(0)")
def stamps_out(a):
    if not cfg.stamps: return
    a("s_waitcnt vmcnt(0) lgkmcnt(0)")
    stamp(a, NSTAMP - 1)
    a("s_memtime s[70:71]\n s_waitcnt lgkmcnt(0)\n s_sub_u32 s101, s70, s101")
    a(f"s_getreg_b32 s52, hwreg(HW_REG_HW_ID)\n s_getreg_b32 s53, hwreg(HW_REG_XCC_ID)")
    for i in range(NSTAMP): a(f"v_mov_b32 v{16+i}, s{80+2*i}")
    a(f"v_mov_b32 v26, s52\n v_mov_b32 v27, s53\n v_mov_b32 v28, s100\n v_mov_b32 v29, s2\n v_mov_b32 v30, s101\n v_mov_b32 v31, 0")
    a(f"s_lshl_b32 s54, s2, 9\n s_lshl_b32 s55, s{SW8}, 6\n s_add_u32 s54, s54, s55\n s_add_u32 s54, s54, {WS_STAMP}")
    a(f"v_mov_b32 v32, 0\n s_mov_b64 exec, 1")
    for i in range(4): a(f"buffer_store_dwordx4 {v4(16+4*i)}, v32, {sq(SRDWS)}, s54 offen offset:{16*i}")
    a("s_mov_b64 exec, -1")
def tag(a, t):
    cfg.role = t
    if cfg.stamps: a(f"s_lshl_b32 s100, s100, 4\n s_add_u32 s100, s100, {t}")

def prologue(a, name, nwg):
    a.label(name)
    if cfg.enc: a("s_memrealtime s[98:99]\n s_memrealtime s[96:97]")
    a(f"""s_load_dwordx16 s[4:19], s[0:1], 0
    s_load_dwordx8 s[20:27], s[0:1], 64
    s_cmp_ge_u32 s2, {nwg}
    s_cbranch_scc1 L_END
    v_and_b32 v1, 63, v0
    v_lshrrev_b32 v2, 6, v0
    s_mov_b32 s{SBT}, 0
    v_readfirstlane_b32 s{SW8}, v2
    s_mov_b32 s{SLD}, 0""")
    if cfg.stamps:
        for i in range(NSTAMP): a(f"s_mov_b32 s{80+2*i}, 0")
        a("s_mov_b32 s100, 0\n s_memrealtime s[80:81]\n s_memtime s[98:99]")
    a(f"""s_and_b32 s{SW}, s{SW8}, 3
    s_lshr_b32 s{SGRP}, s{SW8}, 2
    s_mul_i32 s{SLB}, s{SGRP}, {HALF}""")

def init_wave(a, name):
    a("s_getpc_b64 s[52:53]")
    a.label(f"L_PC{name}")
    a(f"""s_lshr_b32 s54, s2, 3
    s_and_b32 s54, s54, 7
    s_lshl_b32 s54, s54, 13
    v_lshlrev_b32 v3, 7, v1
    v_add_u32 v3, s54, v3
    s_sub_u32 s52, s52, L_PC{name}-L_CODE_BEGIN
    s_subb_u32 s53, s53, 0
    v_min_u32 v3, L_CODE_END-L_CODE_BEGIN-4, v3
    global_load_dword v15, v3, s[52:53]
    v_and_b32 v4, 15, v1
    v_lshlrev_b32 v4, 2, v4
    v_bfe_u32 v5, v1, 4, 1
    v_mul_u32_u24 v5, {HALF}, v5
    v_add_u32 v4, v4, v5
    v_add_u32 v4, {L_BAR}, v4
    v_mov_b32 v5, 0
    ds_write_b32 v4, v5""")

def args_ready(a):
    a("s_waitcnt lgkmcnt(0)")
    if cfg.stamps: a("s_mov_b32 s101, s98\n s_mov_b32 s98, 0")
    srd(a, SRDWS, P_WS, WS_SIZE if cfg.stamps else WS_STAMP)
    srd(a, SRD4, P_DBG, 256)

def bar_arrive(a):
    a(f"""v_mov_b32 v13, s{SLB}
    v_mov_b32 v14, 1
    v_add_u32 v13, {L_BAR}, v13
    s_add_u32 s{SBT}, s{SBT}, 4
    s_mov_b64 exec, 1
    ds_add_u32 v13, v14
    s_mov_b64 exec, -1""")
def bar_wait(a, addr_ok=False):
    n = bar_wait.n; bar_wait.n += 1
    if not addr_ok: a(f"v_mov_b32 v13, s{SLB}\n v_add_u32 v13, {L_BAR}, v13")
    a.label(f"L_BW_{n}")
    a(f"""ds_read_b32 v14, v13
    s_waitcnt lgkmcnt(0)
    v_cmp_gt_u32 vcc, s{SBT}, v14
    s_nop 1
    s_cbranch_vccnz L_BW_{n}""")
bar_wait.n = 0

def phi_block(regs_, temps):
    out = []
    n = len(temps)
    for g in range(0, len(regs_), n):
        grp = regs_[g:g + n]
        for r, t in zip(grp, temps): out.append(f"v_mul_f32 v{t}, s70, v{r}")
        for r, t in zip(grp, temps): out.append(f"v_exp_f32 v{t}, v{t} clamp"); out.append(f"v_max_f32 v{r}, s71, v{r}")
        for r, t in zip(grp, temps): out.append(f"v_add_f32 v{r}, v{r}, v{t}")
    return out

def probe(vdst, voff, s_off, srdq=SRDWS):
    if cfg.pmode == 3:
        return f"v_mov_b32 v{vdst}, -1\n s_mov_b64 exec, 3\n v_mov_b32 v{vdst}, 0\n buffer_atomic_add v{vdst}, v{voff}, {sq(srdq)}, {s_off} offen sc0 sc1\n s_mov_b64 exec, -1"
    return f"buffer_load_dword v{vdst}, v{voff}, {sq(srdq)}, {s_off} offen " + ["sc1", "sc0 sc1", "sc0 sc1 nt"][cfg.pmode]
def check(a, name, vdst, voff, s_off, target, srdq=SRDWS):
    a(f"v_cmp_gt_u32 vcc, {target}, v{vdst}\n s_mov_b32 s78, 0\n s_nop 0\n s_cbranch_vccz L_OK_{name}")
    a("PUSHSTATE")
    a.label(f"L_POLL_{name}")
    a(f"""s_sleep {cfg.psleep}
    {probe(vdst, voff, s_off, srdq)}
    s_add_u32 s78, s78, 1
    s_waitcnt vmcnt(0)
    v_cmp_gt_u32 vcc, {target}, v{vdst}
    s_cmp_ge_u32 s78, 0x20000
    s_cbranch_scc1 L_OK_{name}
    s_cbranch_vccnz L_POLL_{name}""")
    a("POPSTATE")
    a.label(f"L_OK_{name}")
def zero_probe(a, vd, vz): a(f"v_mov_b32 v{vz}, 0\n" + probe(vd, vz, "0", SRD4))
def zero_check(a, name, vd, vz): check(a, "z" + name, vd, vz, "0", 64, SRD4)

def signal(a, s_off, nwaves, ldsaddr, narr=1, rstride_log2=7):
    n = signal.n; signal.n += 1
    a(f"""v_mov_b32 v13, {ldsaddr}
    v_mov_b32 v14, 1
    s_waitcnt vmcnt(0)
    s_mov_b64 exec, 1
    ds_add_rtn_u32 v12, v13, v14
    v_mov_b32 v13, {WS_CNT if narr > 1 else 0}
    s_waitcnt lgkmcnt(0)
    v_readfirstlane_b32 s79, v12
    v_mov_b32 v12, 1
    s_cmp_lg_u32 s79, {nwaves-1}
    s_cbranch_scc1 L_SIG_{n}""")
    if narr > 1:
        a(f"""buffer_atomic_add v12, v13, {sq(SRDWS)}, s{s_off} offen sc0 sc1
        s_mov_b64 exec, 0xff
        v_lshlrev_b32 v13, {rstride_log2}, v1
        s_waitcnt vmcnt(0)
        v_readfirstlane_b32 s79, v12
        s_cmp_lg_u32 s79, {narr-1}
        s_cbranch_scc1 L_SIG_{n}""")
    a(f"buffer_store_dword v14, v13, {sq(SRDWS)}, s{s_off} offen sc1")
    a.label(f"L_SIG_{n}")
    a("s_mov_b64 exec, -1")
signal.n = 0

def last_barrier(a, name, n_younger):
    a(f"s_cmp_eq_u32 s{SLD}, 0\n s_cbranch_scc1 L_LB_{name}\n PUSHSTATE\n s_waitcnt vmcnt({n_younger})\n s_barrier\n s_setprio 0\n POPSTATE")
    a.label(f"L_LB_{name}")

G_ACC, G_B, G_X = 16, 96, 176
G_SLOT = 36864
def slot_off(j): return ((j & 1) ^ 1) * G_SLOT
def slot_half(j): return (j % 4) >> 1
def g_ids(a):
    a(f"""s_and_b32 s52, s2, 7
    s_lshr_b32 s53, s2, 3
    s_and_b32 s57, s52, 3
    s_lshl_b32 s57, s57, 2
    s_and_b32 s54, s53, 3
    s_add_u32 s57, s57, s54
    s_lshr_b32 s52, s52, 2
    s_lshr_b32 s54, s53, 2
    s_lshl_b32 s58, s52, 2
    s_add_u32 s58, s58, s54
    s_lshl_b32 s52, s52, 1
    s_add_u32 s52, s52, s54
    s_add_u32 s52, s52, 4
    s_cmp_ge_u32 s54, 4
    s_cselect_b32 s58, s52, s58
    s_lshl_b32 s66, s{SW}, 12
    s_add_u32 s66, s66, 20480""")

def g_setup_x(a):
    if cfg.rot:
        a(f"""s_mul_i32 s62, s57, 3
        s_lshl_b32 s59, s58, 1
        s_add_u32 s62, s62, s59
        s_mul_i32 s59, s62, 205
        s_lshr_b32 s59, s59, 11
        s_mul_i32 s59, s59, 10
        s_sub_u32 s62, s62, s59
        s_lshl_b32 s64, s62, 7
        s_mul_i32 s63, s62, {64*3840}""")
    else:
        a("s_mov_b32 s64, 0\n s_mov_b32 s63, 0")
    a(f"""v_lshrrev_b32 v240, 3, v1
    s_lshl_b32 s59, s57, 7
    s_lshl_b32 s54, s{SW}, 5
    s_add_u32 s59, s59, s54
    v_add_u32 v240, s59, v240
    v_mul_u32_u24 v240, 1280, v240
    v_lshrrev_b32 v241, 4, v1
    v_and_b32 v242, 7, v1
    v_xor_b32 v242, v242, v241
    v_lshl_add_u32 v7, v242, 4, v240
    v_xor_b32 v242, 4, v242
    v_lshl_add_u32 v8, v242, 4, v240
    v_add_u32 v8, {10240-1024}, v8
    v_add_u32 v9, {20480-2048}, v7
    v_add_u32 v10, {20480-2048}, v8""")

def g_setup_w(a):
    a(f"""s_mul_i32 s59, s58, 160
    s_add_u32 s60, s59, 1280
    s_add_u32 s61, s59, {2560-160}
    s_sub_u32 s59, s58, 8
    s_mul_i32 s59, s59, 320
    s_cmp_ge_u32 s58, 8
    s_cselect_b32 s60, s59, s60
    s_cselect_b32 s61, s59, s61
    s_mul_i32 s59, s{SW}, {16*3840}
    s_add_u32 s60, s60, s59
    s_add_u32 s61, s61, s59
    s_mul_i32 s65, s{SW}, 5120""")
    a(f"v_mov_b32 v244, s60\n v_mov_b32 v245, s61")
    for i in range(5):
        assert all(((64 * i + l) * 3277) >> 16 == (64 * i + l) // 20 for l in range(64))
        a(f"""v_add_u32 v240, {64*i}, v1
        v_mul_u32_u24 v241, 3277, v240
        v_lshrrev_b32 v241, 16, v241
        v_mul_u32_u24 v242, 20, v241
        v_sub_u32 v240, v240, v242""")
        if i == 2: a("v_lshrrev_b32 v242, 4, v1\n v_and_b32 v242, 2, v242\n v_xor_b32 v240, v240, v242")
        if i > 2: a("v_xor_b32 v240, 2, v240")
        a(f"""v_cmp_gt_u32 vcc, 10, v240
        v_mul_u32_u24 v241, 3840, v241
        v_lshl_add_u32 v240, v240, 4, v241
        v_cndmask_b32 v242, v245, v244, vcc""")
        if i in (0, 4): a(f"v_add_u32 v{2+i}, v240, v242")
        else: a(f"v_add_u32 v240, v240, v242\n v_subrev_u32 v{2+i}, {1024*i}, v240")

def g_setup2(a):
    a(f"""v_lshrrev_b32 v241, 4, v1
    v_bfe_u32 v242, v1, 2, 2
    v_lshl_add_u32 v242, v241, 3, v242
    v_mul_u32_u24 v242, 320, v242
    v_and_b32 v243, 3, v1
    v_lshl_add_u32 v242, v243, 3, v242
    v_and_b32 v243, 1, v241
    v_lshlrev_b32 v243, 5, v243
    v_add_u32 v9, v242, v243
    v_sub_u32 v10, v242, v243
    v_and_b32 v240, 15, v1
    v_lshrrev_b32 v242, 1, v240
    v_xor_b32 v242, v242, v241
    v_lshlrev_b32 v240, 7, v240
    v_add_u32 v240, s66, v240
    v_lshl_add_u32 v11, v242, 4, v240
    v_xor_b32 v242, 4, v242
    v_lshl_add_u32 v12, v242, 4, v240
    s_mov_b32 s70, {LOG2E}
    s_mov_b32 s71, {EPS}""")
    for k in range(4): a(f"v_add_u32 v{2+k}, {HALF}, v{9+k}")

def g_loadx(j):
    o = [f"s_add_u32 m0, s66, {slot_half(j) * HALF + slot_off(j)}", "s_nop 0"]
    for i in range(4): o.append(f"buffer_load_dwordx4 v{7+i}, {sq(SRD0)}, s64 offen offset:{1024*i} lds ; tag=S{j}")
    o += ["s_add_u32 s64, s64, 128"]
    if cfg.rot: o += ["s_cmp_eq_u32 s64, 1280", "s_cselect_b32 s64, 0, s64"]
    return o
def g_loadw(j):
    base = slot_half(j) * HALF + slot_off(j)
    o = [f"s_add_u32 m0, s65, {base}", "s_nop 0"]
    for i in range(4): o.append(f"buffer_load_dwordx4 v{2+i}, {sq(SRD1)}, s63 offen offset:{1024*i} lds ; tag=S{j}")
    o += [f"s_add_u32 m0, s65, {base + 4096}", "s_nop 0", f"buffer_load_dwordx4 v6, {sq(SRD1)}, s63 offen lds ; tag=S{j}"]
    o += [f"s_add_u32 s63, s63, {64*3840}"]
    if cfg.rot: o += [f"s_cmp_eq_u32 s63, {640*3840}", "s_cselect_b32 s63, 0, s63"]
    return o
def g_xreads(j):
    return [f"ds_read_b128 {v4(G_X + (j&1)*16 + ks*8 + sub*4)}, v{(4 if slot_half(j) else 11)+ks} offset:{slot_off(j) + sub*2048}" for ks in range(2) for sub in range(2)]
def g_reads(t):
    j = t // 2
    o = []
    for n in range(10):
        for h in range(2):
            off = slot_off(j) + (t & 1) * 10240 + h * 1280 + 32 * n
            o.append(f"ds_read_b64_tr_b16 {v2(G_B + (t & 1) * 40 + n * 4 + 2 * h)}, v{(2 if slot_half(j) else 9) + (n & 1)} offset:{off}")
    return o

def role_loader(a):
    a(f"s_setprio {cfg.lprio}")
    g_setup_x(a)
    a("s_waitcnt lgkmcnt(0)")
    srd(a, SRD0, P_X, 2048 * 1280)
    a.extend(g_loadx(0))
    g_setup_w(a)
    srd(a, SRD1, P_W, 640 * 3840)
    seq = []
    for j in range(10): seq += [g_loadx(j), g_loadw(j)]
    pos = 1
    def upto(n):
        nonlocal pos
        while pos < min(n, 20): a.extend(seq[pos]); pos += 1
    upto(cfg.ahead0)
    args_ready(a)
    stamp(a, 1)
    for j in range(9):
        a(f"WAITTAG S{j}"); a("s_barrier")
        if j == 0: stamp(a, 2)
        if j == 6: zero_probe(a, 14, 13)
        upto(min(2 * (j + 1) + cfg.ahead, 2 * (j + 4)))
    zero_check(a, "ld", 14, 13)
    a(f"s_mov_b32 s{SLD}, 1")
    stamp(a, 3)

def g_main(a, transposed, tail):
    a("s_waitcnt vmcnt(0)\n s_barrier")
    stamp(a, 1)
    a.extend(g_xreads(0) + g_reads(0))
    def mfma(t, n, sub):
        j, ks = t // 2, t % 2
        acc = v4(G_ACC + (sub * 10 + n) * 4)
        x = v4(G_X + (j & 1) * 16 + ks * 8 + sub * 4)
        b = v4(G_B + (t & 1) * 40 + n * 4)
        c = "0" if t == 0 else acc
        return f"v_mfma_f32_16x16x32_bf16 {acc}, {b}, {x}, {c}" if transposed else f"v_mfma_f32_16x16x32_bf16 {acc}, {x}, {b}, {c}"
    for t in range(19):
        j, ks = t // 2, t % 2
        mf = [mfma(t, n, sub) for n in range(10) for sub in range(2)]
        rd = g_reads(t + 1)
        if ks == 1:
            rd = g_xreads(j + 1) + rd
            a.extend(mf[:cfg.bpos]); a("s_waitcnt lgkmcnt(0)\n s_barrier")
            a.extend(interleave(mf[cfg.bpos:], rd))
        else:
            a.extend(interleave(mf, rd))
    tail([mfma(19, n, sub) for n in range(10) for sub in range(2)])

def role_q(a):
    a(f"""s_lshl_b32 s52, s57, 3
    s_lshl_b32 s53, s{SW}, 1
    s_add_u32 s52, s52, s53
    s_mul_i32 s52, s52, 20
    s_sub_u32 s53, s58, 8
    s_mul_i32 s54, s53, 5
    s_add_u32 s52, s52, s54
    s_lshl_b32 s52, s52, 10
    s_add_u32 s52, s52, {WS_PQ}
    s_mul_i32 s55, s53, 17
    s_add_u32 s55, s55, s57
    s_lshl_b32 s55, s55, 7
    s_add_u32 s55, s55, {WS_QFLAG}
    v_lshlrev_b32 v6, 4, v1""")
    def tail(mf):
        bar_arrive(a)
        ep = []
        for c in range(5):
            for sub in range(2):
                r0 = G_ACC + (sub * 10 + 2 * c) * 4
                ep += phi_block(list(range(r0, r0 + 8)), list(range(240, 248)))
                d = G_B + (sub * 5 + c) * 4
                ep += [f"v_cvt_pk_bf16_f32 v{d+k}, v{r0+2*k}, v{r0+2*k+1}" for k in range(4)]
                ep += [f"s_add_u32 s54, s52, {(sub*20+c)*1024}", f"buffer_store_dwordx4 {v4(d)}, v6, {sq(SRDWS)}, s54 offen sc1"]
        a.extend(mf[:8])
        a.extend(interleave(mf[8:], ep[:24]))
        stamp(a, 2)
        zero_probe(a, 7, 8)
        a.extend(ep[24:])
    g_main(a, True, tail)
    stamp(a, 3)
    zero_check(a, "q", 7, 8)
    signal(a, 55, 4, L_SIG)
    stamp(a, 4)

def role_kv(a):
    EX, HB = G_SLOT, 0
    DUMP = HB + 4 * 2048
    AD = 208
    a(f"""v_lshlrev_b32 v240, 4, v1
    s_mul_i32 s52, s{SW}, 10240
    s_add_u32 s52, s52, {EX}
    v_add_u32 v{AD+6}, s52, v240
    s_lshl_b32 s52, s{SW}, 10
    s_add_u32 s52, s52, {EX}
    v_add_u32 v{AD+7}, s52, v240
    v_and_b32 v246, 15, v1
    v_lshrrev_b32 v247, 4, v1
    v_lshlrev_b32 v247, 2, v247
    s_lshl_b32 s52, s{SW}, 2
    v_subrev_u32 v246, s52, v246
    v_subrev_u32 v247, s52, v247
    s_lshl_b32 s53, s{SW}, 11
    v_mov_b32 v245, {DUMP}
    v_lshlrev_b32 v{AD+8}, 2, v1
    v_add_u32 v{AD+9}, s53, v{AD+8}""")
    for k in range(4): a(f"v_mov_b32 v{AD+12+k}, 0x3f803f80")
    k = 0
    for dt in range(2):
        for et in range(2):
            a(f"""v_add_u32 v240, {16*dt}, v247
            v_add_u32 v241, {16*et}, v246
            v_max_u32 v242, v240, v241
            v_cmp_gt_u32 vcc, 20, v242
            v_mul_u32_u24 v241, 80, v241
            v_lshl_add_u32 v241, v240, 2, v241
            v_add_u32 v241, s53, v241
            v_cndmask_b32 v{AD+k}, v245, v241, vcc""")
            k += 1
        a(f"""v_add_u32 v240, {16*dt}, v247
        v_and_b32 v241, 15, v1
        v_mul_u32_u24 v241, 20, v241
        v_max_u32 v242, v240, v241
        v_cmp_gt_u32 vcc, 20, v242
        v_lshlrev_b32 v240, 2, v240
        v_add_u32 v240, s53, v240
        v_add_u32 v240, 1600, v240
        v_cndmask_b32 v{AD+4+dt}, v245, v240, vcc""")
    a(f"""s_lshl_b32 s52, s58, 2
    s_add_u32 s52, s52, s{SW}
    s_mul_i32 s52, s52, 1680
    s_add_u32 s52, s52, {WS_KV}
    s_lshl_b32 s55, s58, 7""")
    def tail(mf):
        ep = []
        for t in [0, 1, 5, 2, 6, 7, 3, 8, 9, 4]:
            r0 = G_ACC + t * 4; r1 = G_ACC + (10 + t) * 4
            if t < 5: ep += phi_block(list(range(r0, r0 + 4)) + list(range(r1, r1 + 4)), list(range(240, 248)))
            d = G_B + t * 4
            ep += [f"v_cvt_pk_bf16_f32 v{d}, v{r0}, v{r0+1}", f"v_cvt_pk_bf16_f32 v{d+1}, v{r0+2}, v{r0+3}",
                   f"v_cvt_pk_bf16_f32 v{d+2}, v{r1}, v{r1+1}", f"v_cvt_pk_bf16_f32 v{d+3}, v{r1+2}, v{r1+3}",
                   f"ds_write_b128 v{AD+6}, {v4(d)} offset:{t*1024}"]
        a.extend(mf[:6])
        a.extend(interleave(mf[6:], ep[:28]))
        stamp(a, 2)
        zero_probe(a, 7, 8)
        a.extend(ep[28:])
    g_main(a, False, tail)
    bar_arrive(a); bar_wait(a, True)
    F = 136
    for rg in range(4):
        for q, off in enumerate([0, 5120, 1024, 6144]):
            a(f"ds_read_b128 {v4(F + rg*16 + [0, 2, 1, 3][q]*4)}, v{AD+7} offset:{rg*10240 + off}")
    D = 16
    for rg in range(4):
        for dt in range(2):
            A = v4(F + rg * 16 + dt * 4)
            acc = v4(D + 16 + dt * 4)
            a(f"v_mfma_f32_16x16x32_bf16 {acc}, {A}, {v4(AD+12)}, {'0' if rg == 0 else acc}")
            for et in range(2):
                acc = v4(D + (dt * 2 + et) * 4)
                a(f"v_mfma_f32_16x16x32_bf16 {acc}, {A}, {v4(F + rg*16 + 8 + et*4)}, {'0' if rg == 0 else acc}")
    zero_check(a, "kv", 7, 8)
    for k in [4, 0, 1, 5, 2, 3]: a(f"ds_write_b128 v{AD+k}, {v4(D + 4*k)}")
    for i in range(7): a(f"ds_read_b32 v{48+i}, v{AD+9} offset:{256*i}")
    stamp(a, 3)
    for i in range(7):
        if i == 6: a("s_mov_b32 exec_hi, 0xf")
        a(f"buffer_atomic_add_f32 v{48+i}, v{AD+8}, {sq(SRDWS)}, s52 offen offset:{256*i}")
    a("s_mov_b64 exec, -1")
    signal(a, 55, 4, L_SIG, 16, 10)
    stamp(a, 4)

def role_prep(a):
    a(f"""s_sub_u32 s56, s2, 192
    s_lshr_b32 s52, s56, 1
    s_lshl_b32 s52, s52, 6
    s_and_b32 s57, s56, 1
    s_mul_i32 s53, s57, 320
    s_sub_u32 s54, s{SW8}, 3
    s_lshl_b32 s55, s{SW8}, 1
    s_cmp_ge_u32 s{SW8}, 3
    s_cselect_b32 s54, s54, s55
    s_lshl_b32 s54, s54, 6
    s_add_u32 s53, s53, s54
    v_lshrrev_b32 v9, 3, v1
    v_lshl_add_u32 v2, v9, 3, s52
    v_and_b32 v8, 7, v1
    v_lshl_add_u32 v6, v8, 3, s53
    v_mul_u32_u24 v7, 1280, v2
    v_lshl_add_u32 v2, v6, 1, v7
    v_add_u32 v7, s53, v9
    v_mul_u32_u24 v7, {TP}, v7
    v_lshl_add_u32 v7, v8, 4, v7
    s_mul_i32 s63, s{SW}, 20480
    s_mul_i32 s64, s{SGRP}, 10240
    s_add_u32 s63, s63, s64
    v_mul_u32_u24 v10, 1040, v8
    v_add_u32 v10, s63, v10
    v_lshlrev_b32 v11, 4, v1
    v_add_u32 v11, s63, v11
    s_lshl_b32 s64, s52, 1
    s_movk_i32 s55, 5120
    s_mov_b32 s60, 0x05040100
    s_mov_b32 s61, 0x07060302
    s_mov_b32 s62, 0xffff0000
    s_lshl_b32 s59, s57, 10
    s_cmp_ge_u32 s{SW8}, 3
    s_cbranch_scc0 L_PQ""")
    tag(a, 3)
    a("v_subrev_u32 v5, 3840, v2\n v_lshlrev_b32 v6, 3, v6\n s_waitcnt lgkmcnt(0)")
    srd(a, SRD0, P_K, 2048 * 1280)
    K, V, C = 16, 60, 92
    for r in range(3): a(f"buffer_load_dwordx4 {v4(K+4*r)}, v5, {sq(SRD0)}, 0 offen offset:{1280*r}")
    for r in range(8): a(f"buffer_load_dwordx4 {v4(K+12+4*r)}, v2, {sq(SRD0)}, {'s55' if r >= 4 else '0'} offen offset:{1280*(r%4)}")
    srd(a, SRD1, P_V, 2048 * 1280); srd(a, SRD3, P_SH, 640 * 8)
    for r in range(4): a(f"buffer_load_dwordx4 {v4(C+4*r)}, v6, {sq(SRD3)}, 0 offen offset:{16*r}")
    for r in range(8): a(f"buffer_load_dwordx4 {v4(V+4*r)}, v2, {sq(SRD1)}, {'s55' if r >= 4 else '0'} offen offset:{1280*(r%4)}")
    args_ready(a)
    a(f"v_sub_u32 v9, 7, v9\n v_lshl_add_u32 v10, v9, 4, v10\n s_sub_u32 s64, {WS_UT + 1984*2}, s64\n s_add_u32 s59, s59, {WS_UFLG}")
    stamp(a, 1)
    if cfg.qlate == 0: a("s_barrier")
    P, T, U, O = 108, 120, 184, 136+56
    for ch in range(8):
        dw, hi = ch // 2, ch % 2
        sel = "s61" if hi else "s60"
        for s_ in range(-2, 8):
            a(f"v_perm_b32 v{P+s_+2}, v{K+4*(s_+2)+dw}, v{K+4*(s_+3)+dw}, {sel}")
        for s_ in range(8): a(f"v_dot2_f32_bf16 v{T+8*ch+s_}, v{P+s_}, v{C+2*ch+1}, 0")
        for s_ in range(8): a(f"v_dot2_f32_bf16 v{T+8*ch+s_}, v{P+s_+2}, v{C+2*ch}, v{T+8*ch+s_}")
    if cfg.qlate == 1: a("s_waitcnt vmcnt(0)\n s_barrier")
    for ch in range(8):
        dw, hi = ch // 2, ch % 2
        for s_ in range(8):
            a(f"v_and_b32 v{U+s_}, s62, v{V+4*s_+dw}" if hi else f"v_lshlrev_b32 v{U+s_}, 16, v{V+4*s_+dw}")
        for s_ in range(8): a(f"v_mul_f32 v{T+8*ch+s_}, v{T+8*ch+s_}, v{U+s_}")
        o = O + 4 * ch
        for j in range(4): a(f"v_cvt_pk_bf16_f32 v{o+j}, v{T+8*ch+7-2*j}, v{T+8*ch+6-2*j}")
        a(f"ds_write_b128 v10, {v4(o)} offset:{128*ch}")
    def flush(R, extra):
        for i in range(8): a(f"ds_read_b128 {v4(R+4*i)}, v11 offset:{1040*i}")
        for i in range(8): a(f"s_add_u32 s54, s64, {8*TP*i + extra}\n buffer_store_dwordx4 {v4(R+4*i)}, v7, {sq(SRDWS)}, s54 offen{'' if cfg.x_plain == 1 else (' nt' if cfg.x_plain == 2 else ' sc1')}" if not cfg.x_nost else "s_nop 0")
    flush(16, 0)
    zero_probe(a, 3, 4)
    if cfg.qlate == 2: a("s_barrier")
    a("s_barrier")
    stamp(a, 2)
    zero_check(a, "pu", 3, 4)
    signal(a, 59, 5, L_SIG, 32, 7)
    stamp(a, 3)
    a("s_branch L_PEND")
    a.label("L_PQ")
    tag(a, 6)
    a(f"s_cmp_lg_u32 s{SW8}, 1\n s_cbranch_scc1 L_PQ0")
    init_wave(a, "p")
    a.label("L_PQ0")
    args_ready(a)
    srd(a, SRD2, P_Q, 2048 * 1280)
    a(f"s_cmp_lg_u32 s{SW8}, 2\n s_cbranch_scc1 L_PQ1")
    a(f"""v_lshlrev_b32 v8, 4, v1
    v_mov_b32 v16, 0
    v_mov_b32 v17, 0
    v_mov_b32 v18, 0
    v_mov_b32 v19, 0
    s_lshl_b32 s54, s56, 11
    buffer_store_dwordx4 v[16:19], v8, {sq(SRDWS)}, s54 offen sc1
    buffer_store_dwordx4 v[16:19], v8, {sq(SRDWS)}, s54 offen offset:1024 sc1
    v_mov_b32 v8, 1
    s_waitcnt vmcnt(0)
    s_mov_b64 exec, 1
    buffer_atomic_add v8, v16, {sq(SRD4)}, 0 offen sc1
    s_mov_b64 exec, -1""")
    a.label("L_PQ1")
    a(f"v_lshl_add_u32 v10, v9, 4, v10\n s_add_u32 s64, s64, {WS_QT}\n s_add_u32 s59, s59, {WS_TFLG}\n s_barrier")
    stamp(a, 1)
    Q = 16
    if cfg.x_noq: a("s_barrier\n s_branch L_PQ2")
    for st in range(2):
        for r in range(8): a(f"buffer_load_dwordx4 {v4(Q+32*st+4*r)}, v2, {sq(SRD2)}, {'s55' if r >= 4 else '0'} offen offset:{1280*(r%4) + 128*st}")
    a("s_barrier")
    for st in range(2):
        if st == 1: a(f"s_cmp_eq_u32 s{SW8}, 2\n s_cbranch_scc1 L_PQ2")
        for ch in range(8):
            dw, hi = ch // 2, ch % 2
            sel = "s61" if hi else "s60"
            o = 80 + 32 * st + 4 * ch
            for j in range(4): a(f"v_perm_b32 v{o+j}, v{Q+32*st+4*(2*j+1)+dw}, v{Q+32*st+4*(2*j)+dw}, {sel}")
            a(f"ds_write_b128 v10, {v4(o)} offset:{128*ch}")
        flush(144 + 32 * st, 64 * TP * st)
    a.label("L_PQ2")
    zero_probe(a, 3, 4)
    a("s_waitcnt vmcnt(0) lgkmcnt(0)")
    stamp(a, 2)
    zero_check(a, "pq", 3, 4)
    signal(a, 59, 3, L_SIG + 4, 32, 7)
    stamp(a, 3)
    a.label("L_PEND")
    if cfg.x_pend == 1: a("s_branch L_FIN")
    if cfg.x_pend == 2: a(f"s_cmp_eq_u32 s{SGRP}, 0\n s_cbranch_scc1 L_FIN")
    if cfg.x_pend == 3: a(f"s_cmp_eq_u32 s{SGRP}, 1\n s_cbranch_scc1 L_FIN")

C_HCOPY = 4224; C_UH = 148; C_WAVE = 2 * C_HCOPY + 2 * C_UH * 16
C_STG = HALF + 4 * C_WAVE; C_STGP = 4160
def role_conv(a):
    ACC, A, RAW, B, QV, UL = 16, 48, 80, 128, 192, 208
    a(f"""s_and_b32 s52, s2, 7
    s_mul_i32 s52, s52, 20
    s_lshr_b32 s53, s2, 3
    s_and_b32 s61, s2, 7
    s_sub_u32 s53, s53, 12
    s_add_u32 s57, s52, s53
    s_lshl_b32 s58, s57, 2
    s_add_u32 s58, s58, s{SW}
    s_lshl_b32 s59, s58, 12
    s_mul_i32 s60, s{SW}, {C_WAVE}
    s_add_u32 s60, s60, {HALF}
    s_add_u32 s52, s{P_H}, s59
    s_addc_u32 s53, s{P_H+1}, 0
    s_load_dword s66, s[52:53], 0
    s_lshr_b32 s54, s58, 1
    s_lshl_b32 s54, s54, 2
    s_load_dword s67, s[{P_D}:{P_D+1}], s54
    s_lshl_b32 s61, s61, 7
    s_cmp_ge_u32 s57, 80
    s_cselect_b32 s54, 1024, 0
    s_add_u32 s61, s61, s54
    s_add_u32 s61, s61, {WS_UFLG}
    s_add_u32 s63, s61, {WS_TFLG - WS_UFLG}
    v_lshlrev_b32 v2, 4, v1
    v_add_u32 v3, 4, v2
    v_mov_b32 v12, 0""")
    a(probe(15, 12, "s61"))
    srd(a, SRD0, P_H, 640 * 4096)
    srd(a, SRD1, P_OUT, 2048 * 2560)
    a(f"s_add_u32 m0, s60, 32")
    for i in range(4): a(f"buffer_load_dwordx4 v2, {sq(SRD0)}, s59 offen offset:{1024*i} lds ; tag=H")
    a(f"s_add_u32 m0, s60, {C_HCOPY + 32}")
    for i in range(4): a(f"buffer_load_dwordx4 v3, {sq(SRD0)}, s59 offen offset:{1024*i} lds ; tag=H")
    last_barrier(a, "conv", 9)
    stamp(a, 4)
    check(a, "convu", 15, 12, "s61", 1)
    stamp(a, 5)
    a(f"s_mul_i32 s55, s58, {TP}\n s_add_u32 s54, s55, {WS_UT}\n s_add_u32 s55, s55, {WS_QT}")
    for i in range(4): a(f"buffer_load_dwordx4 {v4(UL+4*i)}, v2, {sq(SRDWS)}, s54 offen offset:{1024*i} sc1")
    a(f"""v_and_b32 v8, 15, v1
    v_lshrrev_b32 v9, 4, v1
    v_add_u32 v10, 1, v8
    v_bfe_u32 v11, v10, 1, 1
    v_mul_u32_u24 v11, {C_HCOPY}, v11
    v_lshrrev_b32 v13, 2, v10
    v_lshl_add_u32 v13, v9, 3, v13
    v_lshl_add_u32 v11, v13, 3, v11
    v_add_u32 v4, s60, v11
    v_and_b32 v10, 1, v10
    v_lshlrev_b32 v5, 4, v10
    v_lshlrev_b32 v10, 1, v9
    v_sub_u32 v10, v10, v8
    v_add_u32 v10, 15, v10
    v_lshlrev_b32 v10, 4, v10
    v_add_u32 v6, s60, v10
    v_lshrrev_b32 v10, 1, v1
    v_and_b32 v11, 1, v1
    v_mul_u32_u24 v11, {C_UH}, v11
    v_add_u32 v10, v10, v11
    v_lshlrev_b32 v10, 4, v10
    v_add_u32 v7, s60, v10
    v_mov_b32 v16, 0
    v_mov_b32 v17, 0
    v_mov_b32 v18, 0
    v_mov_b32 v19, 0
    v_and_b32 v10, 1, v9
    v_mul_u32_u24 v10, {C_UH}, v10
    v_add_u32 v10, v10, v8
    v_lshl_add_u32 v20, v10, 4, s60
    v_and_b32 v10, 1, v1
    v_lshlrev_b32 v10, 4, v10
    v_bfe_u32 v11, v1, 1, 1
    v_mul_u32_u24 v11, {C_HCOPY}, v11
    v_add3_u32 v21, v10, v11, s60
    v_lshlrev_b32 v10, 5, v8
    v_lshl_add_u32 v8, v9, 3, v10""")
    a(f"""s_waitcnt lgkmcnt(0)
    s_lshl_b32 s52, s66, 16
    s_lshl_b32 s53, s67, 16
    s_and_b32 s54, s67, 0xffff0000
    s_bitcmp1_b32 s58, 0
    s_cselect_b32 s53, s54, s53
    s_and_b32 s54, s66, 0xffff0000
    v_mov_b32 v10, s52
    v_add_f32 v10, s53, v10
    v_mov_b32 v11, s54
    v_cvt_pk_bf16_f32 v10, v10, v11
    v_mov_b32 v11, s60
    WAITTAG H
    ds_write_b128 v21, v[16:19]
    ds_write_b32 v11, v10 offset:32
    ds_write_b32 v11, v10 offset:{C_HCOPY+28}
    ds_write_b128 v20, v[16:19] offset:{2*C_HCOPY + 128*16}""")
    def raw_slots(i):
        return [(0, 1, 2), (2, 0, 1), (1, 2, 0), (0, 1, 2)][i]
    def raw_reads(it, N1):
        N0, i = it >> 2, it & 3
        sl = raw_slots(i)
        return [f"ds_read_b64 {v2(RAW + N1*6 + 2*sl[k])}, v4 offset:{(2*N1+N0)*256 + (2*i+k)*8}" for k in range(0 if i == 0 else 1, 3)]
    def aligns(it, N1):
        sl = raw_slots(it & 3)
        d = [RAW + N1 * 6 + 2 * sl[0], RAW + N1 * 6 + 2 * sl[0] + 1, RAW + N1 * 6 + 2 * sl[1], RAW + N1 * 6 + 2 * sl[1] + 1, RAW + N1 * 6 + 2 * sl[2]]
        return [f"v_alignbit_b32 v{A + 4*N1 + k}, v{d[k+1]}, v{d[k]}, v5" for k in range(4)]
    def b_reads(it):
        N0, i = it >> 2, it & 3
        return [f"ds_read_b128 {v4(B + (it&1)*32 + 4*dl)}, v6 offset:{2*C_HCOPY + (14-(2*dl-N0))*128 + (i>>1)*16 + (i&1)*C_UH*16}" for dl in range(8)]
    for N1 in range(8): a.extend(raw_reads(0, N1))
    for N1 in range(8):
        a.extend(aligns(0, N1)); a.extend(raw_reads(1, N1))
    for i in range(4): a(f"ds_write_b128 v7, {v4(UL+4*i)} offset:{2*C_HCOPY + 512*i}")
    a.extend(b_reads(0))
    stamp(a, 6)
    queue = []
    for it in range(8):
        if it < 7: queue += b_reads(it + 1)
        if it == 4: a(probe(15, 12, "s63"))
        if it == 6:
            check(a, "convq", 15, 12, "s63", 1)
            queue += [f"buffer_load_dwordx2 {v2(QV+2*J)}, v8, {sq(SRDWS)}, s55 offen offset:{512*J} sc1" for J in range(8)]
        for N1 in range(8):
            tg = f"v_alignbit_b32 v{A+4*N1+3},"
            pos = max((k for k, q in enumerate(queue) if q.startswith(tg)), default=-1)
            for q in queue[:pos + 1]: a(q)
            queue = queue[pos + 1:]
            for J in range(N1, 8):
                acc = v4(ACC + 4 * J)
                c = "0" if (it == 0 and N1 == 0) else acc
                a(f"v_mfma_f32_16x16x32_bf16 {acc}, {v4(A+4*N1)}, {v4(B + (it&1)*32 + 4*(J-N1))}, {c}")
                for _ in range(2):
                    if queue: a(queue.pop(0))
            if it < 7: queue += aligns(it + 1, N1)
            if it < 6: queue += raw_reads(it + 2, N1)
        assert not any(q.startswith("ds_read_b128") for q in queue)
    assert not queue
    stamp(a, 7)
    a(f"""s_mov_b32 s62, 0xffff0000
    s_mul_i32 s52, s{SW}, {C_STGP}
    s_add_u32 s52, s52, {C_STG}
    v_add_u32 v9, s52, v8""")
    for J in range(8):
        T = 224 + (J & 1) * 8
        a(f"""v_lshlrev_b32 v{T}, 16, v{QV+2*J}
        v_and_b32 v{T+1}, s62, v{QV+2*J}
        v_lshlrev_b32 v{T+2}, 16, v{QV+2*J+1}
        v_and_b32 v{T+3}, s62, v{QV+2*J+1}""")
        for r in range(4): a(f"v_mul_f32 v{T+r}, v{T+r}, v{ACC+4*J+r}")
        a(f"v_cvt_pk_bf16_f32 v{T+4}, v{T}, v{T+1}\n v_cvt_pk_bf16_f32 v{T+5}, v{T+2}, v{T+3}")
        a(f"ds_write_b64 v9, {v2(T+4)} offset:{512*J}")
    bar_arrive(a)
    a(f"""v_bfe_u32 v10, v1, 2, 2
    v_mul_u32_u24 v10, {C_STGP}, v10
    v_and_b32 v11, 3, v1
    v_lshl_add_u32 v10, v11, 3, v10
    v_lshrrev_b32 v11, 4, v1
    v_lshl_add_u32 v10, v11, 5, v10
    s_lshl_b32 s52, s{SW}, 10
    s_add_u32 s52, s52, {C_STG}
    v_add_u32 v10, s52, v10
    s_lshl_b32 s52, s{SW}, 9
    v_add_u32 v11, s52, v1
    v_mul_u32_u24 v11, 2560, v11
    s_lshl_b32 s52, s57, 3""")
    bar_wait(a, True)
    stamp(a, 8)
    for i in range(8): a(f"ds_read_b64_tr_b16 {v2(48+2*i)}, v10 offset:{128*i}")
    for i in range(8):
        a(f"buffer_store_dwordx2 {v2(48+2*i)}, v11, {sq(SRD1)}, s52 offen")
        if i < 7: a(f"s_add_u32 s52, s52, {64*2560}")

def b2_tables(hf):
    num = {}
    for t in range(5 * hf, 5 * hf + 5):
        hs = {e // 20 for e in range(16 * t, 16 * t + 16)}
        dts = [dt for dt in range(10) if hs & {d // 20 for d in range(16 * dt, 16 * dt + 16)}]
        ch = {}
        for dt in dts: ch.setdefault(dt // 2, []).append(dt)
        num[t] = sorted(ch.items())
    ch = {}
    for dt in range(5 * hf, 5 * hf + 5): ch.setdefault(dt // 2, []).append(dt)
    return num, sorted(ch.items())

B_KS = 8416
NS = 3
def role_b2(a):
    PQ, KV, RAW = 16, 108, 180
    WA = [76 + 4 * n for n in range(8)]
    WB = [228 + 4 * n for n in range(7)] + [8]
    ACC = 108
    U = [180, 204]
    a(f"""s_mul_i32 s57, s56, 205
    s_lshr_b32 s57, s57, 10
    s_mul_i32 s54, s57, 5
    s_sub_u32 s58, s56, s54""")
    assert all((v * 205) >> 10 == v // 5 for v in range(216))
    srd(a, SRD0, P_WO, 640 * 1280)
    a(f"""s_lshl_b32 s59, s58, 8
    s_mul_i32 s52, s{SW}, {160*1280}
    s_add_u32 s59, s59, s52
    s_lshl_b32 s53, s{SW}, 6
    s_mul_i32 s65, s{SW}, 20480
    s_add_u32 s65, s65, s{SLB}
    v_and_b32 v8, 15, v1
    v_lshrrev_b32 v9, 4, v1
    v_lshlrev_b32 v2, 4, v8
    v_xor_b32 v2, s53, v2
    v_mul_u32_u24 v10, {8*1280}, v9
    v_add3_u32 v2, v2, v10, s59""")
    def dma(kstep, slot):
        return [[f"s_add_u32 m0, s65, {slot*B_KS + i*1056}", f"s_mov_b32 s63, {(32*kstep + i)*1280}",
                 f"buffer_load_dwordx4 v2, {sq(SRD0)}, s63 offen lds ; tag=K{kstep}"] for i in range(8)]
    def wreads(slot, dst):
        return [f"ds_read_b64_tr_b16 {v2(dst[n] + 2*h)}, v0 offset:{slot*B_KS + h*512 + 32*n}" for n in range(8) for h in range(2)]
    bar_wait(a)
    for g in dma(0, 0) + dma(1, 1): a.extend(g)
    last_barrier(a, "b2", 16)
    a(f"s_setprio {cfg.cprio}")
    srd(a, SRD1, P_OUT, 2048 * 2560)
    a(f"""v_bfe_u32 v10, v1, 2, 3
    v_mul_u32_u24 v10, 1056, v10
    v_lshrrev_b32 v11, 5, v1
    v_lshl_add_u32 v10, v11, 8, v10
    v_and_b32 v11, 3, v1
    v_lshl_add_u32 v10, v11, 3, v10
    v_add_u32 v0, s65, v10
    s_add_u32 s64, s65, {2*B_KS}
    v_lshlrev_b32 v9, 3, v9
    v_mul_u32_u24 v3, 40, v8
    v_add3_u32 v3, v3, v9, s64
    v_mul_u32_u24 v4, 800, v11
    v_add3_u32 v4, v4, v9, s64
    v_lshlrev_b32 v5, 4, v1
    v_lshlrev_b32 v6, 3, v1
    v_add_u32 v6, s64, v6
    v_add_u32 v7, 4096, v5
    s_mul_i32 s52, s57, 3
    s_lshr_b32 s53, s52, 3
    s_add_u32 s54, s52, 2
    s_min_u32 s54, s54, 127
    s_lshr_b32 s54, s54, 3
    s_sub_u32 s54, s54, s53
    s_lshl_b32 s54, s54, 7
    v_and_b32 v12, 1, v1
    v_lshlrev_b32 v13, 7, v12
    v_mul_u32_u24 v12, s54, v12
    s_mul_i32 s60, s{SW}, 17
    s_add_u32 s60, s60, s53
    s_lshl_b32 s60, s60, 7
    s_add_u32 s60, s60, {WS_QFLAG}
    s_and_b32 s61, s2, 7
    s_lshl_b32 s61, s61, 10
    s_lshl_b32 s53, s{SW}, 8
    s_add_u32 s61, s61, s53
    s_mul_i32 s52, s52, 20480
    s_mul_i32 s53, s{SW}, 5120
    s_add_u32 s52, s52, s53
    s_add_u32 s52, s52, {WS_PQ}
    s_mul_i32 s62, s{SW}, {8*1680}
    s_add_u32 s62, s62, {WS_KV}
    s_mov_b32 s73, {EPS}
    s_mov_b32 s66, 0xffff0000
    s_mov_b32 s67, -1
    s_mov_b32 s68, 0
    s_mov_b32 s69, -1
    s_mov_b32 s70, 0
    s_mov_b32 s71, 0xffff0000""")
    for r in range(KV, KV + 72): a(f"v_mov_b32 v{r}, 0")
    a("WAITTAG K0")
    a.extend(wreads(0, WA))
    a("s_waitcnt lgkmcnt(0)")
    for g in dma(2, 0): a.extend(g)
    a(probe(14, 12, "s60"))
    stamp(a, 5)
    check(a, "b2q", 14, 12, "s60", 1)
    for sub in range(NS):
        for c in range(5):
            a(f"buffer_load_dwordx4 {v4(PQ + (sub*5+c)*4)}, v{5 if c < 4 else 7}, {sq(SRDWS)}, s52 offen offset:{1024*(c%4)} sc1")
        if sub < NS - 1: a("s_add_u32 s52, s52, 20480")
    a(probe(14, 13, "s61"))
    check(a, "b2kv", 14, 13, "s61", 1)
    stamp(a, 6)
    for hf in range(2):
        for i in range(7):
            a(f"buffer_load_dwordx4 {v4(RAW + hf*28 + 4*i)}, v{5 if i < 4 else 7}, {sq(SRDWS)}, s62 offen offset:{1024*(i%4)} sc1")
        if hf == 0: a("s_add_u32 s62, s62, 6720")
    qi = {}
    tabs = [b2_tables(0), b2_tables(1)]
    for hf in range(2):
        for i in range(7):
            r = RAW + hf * 28 + 4 * i
            a(f"v_cvt_pk_bf16_f32 v{r}, v{r}, v{r+1}\n v_cvt_pk_bf16_f32 v{r+1}, v{r+2}, v{r+3}\n ds_write_b64 v6, {v2(r)} offset:{512*i}")
        num, den = tabs[hf]
        quads = [("z", hf, dt) for c, dts in den for dt in dts] + [("n", t, dt) for t in num for c, dts in num[t] for dt in dts]
        assert len(quads) == 18
        for (kind, t, dt) in quads:
            q = len(qi); qi[(kind, t, dt)] = q
            mask = 0
            for l in range(64):
                i, g = l & 15, l >> 4
                hd = (16 * dt + 4 * g) // 20
                he = (16 * t + i) // 20 if kind == "n" else (i & 3) + 4 * t
                if hd == he: mask |= 1 << l
            off = 640 * (t - 5 * hf) + 32 * (dt - 5 * hf) if kind == "n" else 800 + 32 * (dt - 5 * hf)
            a(f"s_mov_b32 exec_lo, {mask & 0xffffffff:#x}\n s_mov_b32 exec_hi, {mask >> 32:#x}")
            a(f"ds_read_b64 {v2(KV + 2*q)}, v{3 if kind == 'n' else 4} offset:{off}")
        a("s_mov_b64 exec, -1")
    stamp(a, 7)
    def omf(sub, hf, T):
        o = []
        num, den = tabs[hf]
        def one(kind, t, lst, acc):
            lst = sorted(lst, key=lambda x: len(x[1]))
            for k, (c, dts) in enumerate(lst):
                src = "0" if k == 0 else v4(acc)
                kv = KV + 2 * qi[(kind, t, dts[0])]
                pq = PQ + (sub * 5 + c) * 4
                key = (min(k, 1), 0 if kind == "z" else 1, t, k)
                if len(dts) == 2: o.append((key, f"v_mfma_f32_16x16x32_bf16 {v4(acc)}, {v4(kv)}, {v4(pq)}, {src}"))
                else: o.append((key, f"v_mfma_f32_16x16x16_bf16 {v4(acc)}, {v2(kv)}, {v2(pq + 2*(dts[0]&1))}, {src}"))
        one("z", hf, den, T)
        for t in num: one("n", t, num[t], T + 4 + 4 * (t - 5 * hf))
        return [x for _, x in sorted(o)]
    def ovalu(sub, hf, T):
        o = []
        for r in range(4): o.append(f"v_add_f32 v{T+r}, s73, v{T+r}")
        for r in range(4): o.append(f"v_rcp_f32 v{T+r}, v{T+r}")
        for tl in range(5):
            t = tl + 5 * hf
            h0 = (16 * tl) // 20; h1 = (16 * tl + 12) // 20
            rc = T + h0; n = T + 4 + 4 * tl
            if h0 != h1:
                g0 = min(g for g in range(4) if (16 * tl + 4 * g) // 20 == h1)
                o.append(f"v_cndmask_b32 v{rc}, v{T+h0}, v{T+h1}, s[{64+2*g0}:{65+2*g0}]")
            for r in range(4): o.append(f"v_mul_f32 v{n+r}, v{n+r}, v{rc}")
            d = PQ + (sub * 5 + t // 2) * 4 + 2 * (t & 1)
            o.append(f"v_cvt_pk_bf16_f32 v{d}, v{n}, v{n+1}")
            o.append(f"v_cvt_pk_bf16_f32 v{d+1}, v{n+2}, v{n+3}")
        return o
    def acc(sub, n): return ACC + (n * NS + sub) * 4
    def g2(k, W):
        return [f"v_mfma_f32_16x16x32_bf16 {v4(acc(sub, n))}, {v4(W[n])}, {v4(PQ + (sub*5+k)*4)}, {'0' if k == 0 else v4(acc(sub, n))}" for n in range(8) for sub in range(NS)]
    units = [(s_, h) for h in range(2) for s_ in range(NS)]
    nu = len(units)
    a.extend(interleave(omf(*units[0], U[0]), wreads(1, WB)))
    for u in range(1, nu):
        m = omf(*units[u], U[u & 1])
        body = interleave(m, ovalu(*units[u - 1], U[(u - 1) & 1]), 2)
        if u == 1:
            a("s_waitcnt lgkmcnt(0)")
            body = interleave(body, dma(3, 1))
        a.extend(body)
    a.extend(interleave(g2(0, WA), ovalu(*units[nu - 1], U[(nu - 1) & 1]), 2))
    k1 = g2(1, WB)
    a.extend(interleave(k1[:10], wreads(0, WA), 0, 8))
    a("s_waitcnt lgkmcnt(0)")
    a.extend(interleave(k1[10:], dma(4, 0), 0, 10))
    a("WAITTAG K3")
    a.extend(interleave(g2(2, WA), wreads(1, WB), 0, 20))
    k3 = g2(3, WB)
    a.extend(k3[:10]); a("WAITTAG K4")
    a.extend(interleave(k3[10:], wreads(0, WA), 0, 10))
    bar_arrive(a)
    ad = []
    for gam in range(1, 4):
        ad += [f"s_xor_b32 s52, s{SW}, {gam}", "s_mul_i32 s52, s52, 18432", f"s_add_u32 s52, s52, {(gam-1)*6144}", f"s_add_u32 s52, s52, s{SLB}", f"v_add_u32 v{8+gam}, s52, v5"]
    ad += [f"s_mul_i32 s53, s{SW}, 18432", f"s_add_u32 s53, s53, s{SLB}", "v_add_u32 v8, s53, v5"]
    ad += f"""v_and_b32 v12, 15, v1
    v_mul_u32_u24 v12, 80, v12
    v_lshrrev_b32 v3, 4, v1
    v_lshl_add_u32 v12, v3, 3, v12
    v_add_u32 v12, s53, v12
    v_lshrrev_b32 v3, 2, v1
    v_and_b32 v4, 3, v1
    v_lshlrev_b32 v4, 4, v4
    v_mul_u32_u24 v15, 80, v3
    v_add3_u32 v15, v15, v4, s53
    s_mul_i32 s52, s57, 48
    v_add_u32 v3, s52, v3
    v_mul_u32_u24 v3, 2560, v3
    v_add_u32 v3, v3, v4
    s_lshl_b32 s52, s58, 8
    s_lshl_b32 s54, s{SW}, 6
    s_add_u32 s52, s52, s54
    s_add_u32 s52, s52, 1280""".split("\n")
    k4 = g2(4, WA)
    k4 = k4[6:] + k4[:6]
    a.extend(interleave(k4[:18], ad))
    bar_wait(a, True)
    wr = [f"ds_write_b128 v{8+gam}, {v4(ACC + (gam*6+k)*4)} offset:{1024*k}" for gam in range(1, 4) for k in range(6)]
    a.extend(interleave(k4[18:], wr[:6])); a.extend(wr[6:])
    stamp(a, 8)
    bar_arrive(a); bar_wait(a, True)
    R = 16
    for k in range(6):
        for gam in range(3): a(f"ds_read_b128 {v4(R + (k*3+gam)*4)}, v8 offset:{gam*6144 + 1024*k}")
    for k in range(6):
        n, sub = k // NS, k % NS
        for r in range(4): a(f"v_add_f32 v{ACC+4*k+r}, v{ACC+4*k+r}, v{R+(k*3)*4+r}")
        for r in range(4): a(f"v_add_f32 v{R+(k*3+1)*4+r}, v{R+(k*3+1)*4+r}, v{R+(k*3+2)*4+r}")
        for r in range(4): a(f"v_add_f32 v{ACC+4*k+r}, v{ACC+4*k+r}, v{R+(k*3+1)*4+r}")
        a(f"v_cvt_pk_bf16_f32 v{140+2*k}, v{ACC+4*k}, v{ACC+4*k+1}\n v_cvt_pk_bf16_f32 v{141+2*k}, v{ACC+4*k+2}, v{ACC+4*k+3}")
        a(f"ds_write_b64 v12, {v2(140+2*k)} offset:{32*n + 1280*sub}")
    for sub in range(NS): a(f"ds_read_b128 {v4(160+4*sub)}, v15 offset:{1280*sub}")
    for sub in range(NS):
        a(f"buffer_store_dwordx4 {v4(160+4*sub)}, v3, {sq(SRD1)}, s52 offen")
        if sub < NS - 1: a(f"s_add_u32 s52, s52, {16*2560}")

def kd(name):
    return f""".p2align 6
.amdhsa_kernel {name}
  .amdhsa_next_free_vgpr 256
  .amdhsa_next_free_sgpr 102
  .amdhsa_accum_offset 256
  .amdhsa_group_segment_fixed_size 0
  .amdhsa_kernarg_size 96
  .amdhsa_user_sgpr_count 2
  .amdhsa_user_sgpr_kernarg_segment_ptr 1
  .amdhsa_system_sgpr_workgroup_id_x 1
  .amdhsa_float_denorm_mode_32 3
.end_amdhsa_kernel"""

def head(name): return f".globl {name}\n.p2align 8\n.type {name},@function"

def build():
    k = KN + "_kernel"
    a = Asm()
    a(head(k)); prologue(a, k, 256)
    a("s_cmp_ge_u32 s2, 192\n s_cbranch_scc1 L_P")
    g_ids(a)
    a(f"s_cmp_eq_u32 s{SGRP}, 0\n s_cbranch_scc1 L_CONS")
    tag(a, 7)
    role_loader(a)
    a("s_cmp_ge_u32 s2, 96\n s_cbranch_scc1 L_CONV\n s_branch L_B2")
    a.label("L_CONS")
    a(f"s_cmp_lg_u32 s{SW}, 3\n s_cbranch_scc1 L_CONS1")
    init_wave(a, "g")
    a.label("L_CONS1")
    a(f"s_setprio {cfg.cprio}")
    g_setup2(a)
    args_ready(a)
    a("s_cmp_ge_u32 s58, 8\n s_cbranch_scc1 L_Q")
    tag(a, 1); role_kv(a); a("s_branch L_FIN")
    a.label("L_Q"); tag(a, 2); role_q(a); a("s_branch L_B2")
    a.label("L_P"); role_prep(a)
    a(f"s_cmp_eq_u32 s{SGRP}, 0\n s_cbranch_scc1 L_B2")
    a.label("L_CONV"); tag(a, 4); role_conv(a)
    if cfg.enc == 49: a("s_waitcnt vmcnt(0)"); stamp(a, 9)
    a("s_branch L_FIN")
    a.label("L_B2")
    a("""s_lshr_b32 s53, s2, 3
    s_sub_u32 s54, s53, 4
    s_cmp_lt_u32 s53, 12
    s_cselect_b32 s53, s53, s54
    s_cmp_ge_u32 s53, 27
    s_cbranch_scc1 L_FIN
    s_and_b32 s56, s2, 7
    s_mul_i32 s56, s56, 27
    s_add_u32 s56, s56, s53
    s_cmp_ge_u32 s56, 215
    s_cbranch_scc1 L_FIN""")
    tag(a, 5); role_b2(a)
    if cfg.enc == 59: a("s_waitcnt vmcnt(0)"); stamp(a, 9)
    a.label("L_FIN"); stamps_out(a)
    if cfg.enc:
        a("s_waitcnt vmcnt(0) lgkmcnt(0)")
        a.label("L_SPIN")
        a("s_memrealtime s[94:95]\n s_waitcnt lgkmcnt(0)\n s_sub_u32 s94, s94, s96\n s_cmp_lt_u32 s94, 6000\n s_cbranch_scc1 L_SPIN")
    a.label("L_END"); a("s_endpgm")
    launch = [f"; @launch grid=(256,1,1) block=(512,1,1) lds={LDS_BYTES}"]
    return launch, a, [k]

def emit(path, launch, a, kernels, verbose=False):
    body = fix_hazards(insert_waits(a.lines), verbose)
    out = list(launch) + ['.amdgcn_target "amdgcn-amd-amdhsa--gfx950"', ".text", ".p2align 8", "L_CODE_BEGIN:"]
    out += [(l if l.endswith(":") or l.startswith(".") else "    " + l) for l in body]
    out += ["L_CODE_END:", "    s_endpgm", '.section .rodata,"a"'] + [kd(k) for k in kernels]
    open(path, "w").write("\n".join(out) + "\n")

if __name__ == "__main__":
    cfg.stamps = "stamps" in sys.argv[2:]
    cfg.rot = "rot" in sys.argv[2:]
    for x in sys.argv[2:]:
        if "=" in x: setattr(cfg, x.split("=")[0], int(x.split("=")[1]))
    emit(sys.argv[1], *build(), verbose="-v" in sys.argv)
```

```python
import sys
sys.path.insert(0, "dev")
from asmlib import *

KN = "concat_heads__ssm_conv_h3__linear_attn_block__prompt"
WS_KVFLG = 0x0000
WS_CNT   = 0x2000
WS_UFLG  = 0x2800
WS_TFLG  = 0x3000
WS_QFLAG = 0x5800
WS_KV    = 0x8000
TP = 4224
WS_UT    = 0x100000
WS_QT    = 0x400000
WS_PQ    = 0x700000
WS_STAMP = 0xA00000
WS_SIZE  = 0xB00000
LDS_BYTES = 163840
HALF = 81920
L_BAR = HALF - 64
L_SIG = HALF - 60
SGRP, SLB, SBT, SW8, SLD = 74, 75, 76, 77, 72
LOG2E = 0x3FB8AA3B
EPS = 0x358637BD

P_Q, P_K, P_V, P_SH, P_H, P_D, P_X, P_W, P_WO, P_OUT, P_DBG, P_WS = [4 + 2 * i for i in range(12)]
SRD0, SRD1, SRD2, SRD3, SRD4, SRDWS = 28, 32, 36, 40, 44, 48
SW = 3

def srd(a, d, p, nbytes):
    a(f"s_mov_b32 s{d}, s{p}\n s_and_b32 s{d+1}, s{p+1}, 0xffff\n s_mov_b32 s{d+2}, {nbytes}\n s_mov_b32 s{d+3}, 0x20000")
def sq(d): return f"s[{d}:{d+3}]"
def v4(r): return f"v[{r}:{r+3}]"
def v2(r): return f"v[{r}:{r+1}]"

class Cfg:
    stamps = False
    rot = False
    gonly = 0
    ahead0 = 4
    ahead = 4
    bpos = 3
    lprio = 3
    cprio = 2
    psleep = 4
    qlate = 3
    pprio = 0
    qit = 6
    tlb = 0
    osc = 0
    gate = 1
    usig = 4
    qbar = 1
    spf = 0
    slab = 0
    enc = 0
    role = 0
    pmode = 0
    x_noq = 0
    x_plain = 0
    x_pend = 0
    x_nost = 0
cfg = Cfg()

NSTAMP = 10
def stamp(a, i, force=False):
    if cfg.slab and not force and i != NSTAMP - 1 and cfg.role in (7, 4, 5): return
    if cfg.enc and cfg.enc == cfg.role * 10 + i:
        a("s_memrealtime s[96:97]\n s_waitcnt lgkmcnt(0)")
    if cfg.stamps:
        a(f"s_memrealtime s[{80+2*i}:{81+2*i}]\n s_waitcnt lgkmcnt(0)")
def stamps_out(a):
    if not cfg.stamps: return
    a("s_waitcnt vmcnt(0) lgkmcnt(0)")
    stamp(a, NSTAMP - 1)
    a("s_memtime s[70:71]\n s_waitcnt lgkmcnt(0)\n s_sub_u32 s101, s70, s101")
    a(f"s_getreg_b32 s52, hwreg(HW_REG_HW_ID)\n s_getreg_b32 s53, hwreg(HW_REG_XCC_ID)")
    for i in range(NSTAMP): a(f"v_mov_b32 v{16+i}, s{80+2*i}")
    a(f"v_mov_b32 v26, s52\n v_mov_b32 v27, s53\n v_mov_b32 v28, s100\n v_mov_b32 v29, s2\n v_mov_b32 v30, s101\n v_mov_b32 v31, 0")
    a(f"s_lshl_b32 s54, s2, 9\n s_lshl_b32 s55, s{SW8}, 6\n s_add_u32 s54, s54, s55\n s_add_u32 s54, s54, {WS_STAMP}")
    a(f"v_mov_b32 v32, 0\n s_mov_b64 exec, 1")
    for i in range(4): a(f"buffer_store_dwordx4 {v4(16+4*i)}, v32, {sq(SRDWS)}, s54 offen offset:{16*i}")
    a("s_mov_b64 exec, -1")
def tag(a, t):
    cfg.role = t
    if cfg.stamps: a(f"s_lshl_b32 s100, s100, 4\n s_add_u32 s100, s100, {t}")

def prologue(a, name, nwg):
    a.label(name)
    if cfg.enc: a("s_memrealtime s[98:99]\n s_memrealtime s[96:97]")
    a(f"""s_load_dwordx16 s[4:19], s[0:1], 0
    s_load_dwordx8 s[20:27], s[0:1], 64
    s_cmp_ge_u32 s2, {nwg}
    s_cbranch_scc1 L_END
    v_and_b32 v1, 63, v0
    v_lshrrev_b32 v2, 6, v0
    s_mov_b32 s{SBT}, 0
    v_readfirstlane_b32 s{SW8}, v2
    v_mov_b32 v12, 0
    s_mov_b32 s{SLD}, 0""")
    if cfg.stamps:
        for i in range(NSTAMP): a(f"s_mov_b32 s{80+2*i}, 0")
        a("s_mov_b32 s100, 0\n s_memrealtime s[80:81]\n s_memtime s[98:99]")
    a(f"""s_and_b32 s{SW}, s{SW8}, 3
    s_lshr_b32 s{SGRP}, s{SW8}, 2
    s_mul_i32 s{SLB}, s{SGRP}, {HALF}""")

def init_wave(a, name):
    a("s_getpc_b64 s[52:53]")
    a.label(f"L_PC{name}")
    a(f"""s_lshr_b32 s54, s2, 3
    s_and_b32 s54, s54, 7
    s_lshl_b32 s54, s54, 13
    v_lshlrev_b32 v3, 7, v1
    v_add_u32 v3, s54, v3
    s_sub_u32 s52, s52, L_PC{name}-L_CODE_BEGIN
    s_subb_u32 s53, s53, 0
    v_min_u32 v3, L_CODE_END-L_CODE_BEGIN-4, v3
    global_load_dword v15, v3, s[52:53]""")
    lds_init(a)
    if cfg.tlb:
        n = cfg.tlb
        a(f"s_waitcnt lgkmcnt(0)\n s_mov_b64 exec, {(1 << n) - 1}")
        for k, (p, size) in enumerate(((P_WS, WS_STAMP), (P_OUT, 2048 * 2560), (P_Q, 2048 * 1280), (P_H, 640 * 4096), (P_WO, 640 * 1280))):
            st = (size - 128) // (n - 1) // 128 * 128
            a(f"s_mov_b32 s54, {st}\n v_mul_lo_u32 v3, v1, s54\n global_load_dword v{250+k}, v3, s[{p}:{p+1}]")
        a("s_mov_b64 exec, -1")

def lds_init(a):
    a(f"""v_and_b32 v4, 15, v1
    v_lshlrev_b32 v4, 2, v4
    v_bfe_u32 v5, v1, 4, 1
    v_mul_u32_u24 v5, {HALF}, v5
    v_add_u32 v4, v4, v5
    v_add_u32 v4, {L_BAR}, v4
    v_mov_b32 v5, 0
    ds_write_b32 v4, v5""")

def args_ready(a):
    a("s_waitcnt lgkmcnt(0)")
    if cfg.stamps: a("s_mov_b32 s101, s98")
    srd(a, SRDWS, P_WS, WS_SIZE if cfg.stamps else WS_STAMP)
    srd(a, SRD4, P_DBG, 256)

def bar_arrive(a):
    a(f"""v_mov_b32 v13, s{SLB}
    v_mov_b32 v14, 1
    v_add_u32 v13, {L_BAR}, v13
    s_add_u32 s{SBT}, s{SBT}, 4
    s_mov_b64 exec, 1
    ds_add_u32 v13, v14
    s_mov_b64 exec, -1""")
def bar_wait(a, addr_ok=False):
    n = bar_wait.n; bar_wait.n += 1
    if not addr_ok: a(f"v_mov_b32 v13, s{SLB}\n v_add_u32 v13, {L_BAR}, v13")
    a.label(f"L_BW_{n}")
    a(f"""ds_read_b32 v14, v13
    s_waitcnt lgkmcnt(0)
    v_cmp_gt_u32 vcc, s{SBT}, v14
    s_nop 1
    s_cbranch_vccnz L_BW_{n}""")
bar_wait.n = 0

def phi_block(regs_, temps):
    out = []
    n = len(temps)
    for g in range(0, len(regs_), n):
        grp = regs_[g:g + n]
        for r, t in zip(grp, temps): out.append(f"v_mul_f32 v{t}, s70, v{r}")
        for r, t in zip(grp, temps): out.append(f"v_exp_f32 v{t}, v{t} clamp"); out.append(f"v_max_f32 v{r}, s71, v{r}")
        for r, t in zip(grp, temps): out.append(f"v_add_f32 v{r}, v{r}, v{t}")
    return out

def probe(vdst, voff, s_off, srdq=SRDWS):
    if cfg.pmode == 3:
        return f"v_mov_b32 v{vdst}, -1\n s_mov_b64 exec, 3\n v_mov_b32 v{vdst}, 0\n buffer_atomic_add v{vdst}, v{voff}, {sq(srdq)}, {s_off} offen sc0 sc1\n s_mov_b64 exec, -1"
    return f"buffer_load_dword v{vdst}, v{voff}, {sq(srdq)}, {s_off} offen " + ["sc1", "sc0 sc1", "sc0 sc1 nt"][cfg.pmode]
def check(a, name, vdst, voff, s_off, target, srdq=SRDWS):
    a(f"v_cmp_gt_u32 vcc, {target}, v{vdst}\n s_mov_b32 s78, 0\n s_nop 0\n s_cbranch_vccz L_OK_{name}")
    a("PUSHSTATE")
    a.label(f"L_POLL_{name}")
    a(f"""s_sleep {cfg.psleep}
    {probe(vdst, voff, s_off, srdq)}
    s_add_u32 s78, s78, 1
    s_waitcnt vmcnt(0)
    v_cmp_gt_u32 vcc, {target}, v{vdst}
    s_cmp_ge_u32 s78, 0x20000
    s_cbranch_scc1 L_OK_{name}
    s_cbranch_vccnz L_POLL_{name}""")
    a("POPSTATE")
    a.label(f"L_OK_{name}")
def zero_probe(a, vd, vz): a(f"v_mov_b32 v{vz}, 128\n" + probe(vd, vz, "0", SRD4))
def zero_check(a, name, vd, vz): check(a, "z" + name, vd, vz, "0", 1, SRD4)
def zero_wave(a):
    a(f"""v_lshlrev_b32 v8, 4, v1
    v_mov_b32 v16, 0
    v_mov_b32 v17, 0
    v_mov_b32 v18, 0
    v_mov_b32 v19, 0
    s_lshl_b32 s54, s2, 11
    s_mov_b32 s79, 1
    s_mov_b32 s78, 1""")
    args_ready(a)
    a(f"""buffer_store_dwordx4 v[16:19], v8, {sq(SRDWS)}, s54 offen sc1
    buffer_store_dwordx4 v[16:19], v8, {sq(SRDWS)}, s54 offen offset:1024 sc1
    s_waitcnt vmcnt(0)
    s_atomic_add s79, s[{P_DBG}:{P_DBG+1}], 0 glc
    s_waitcnt lgkmcnt(0)
    s_cmp_lg_u32 s79, 47
    s_cbranch_scc1 L_ZW
    s_atomic_add s78, s[{P_DBG}:{P_DBG+1}], 128
    s_waitcnt lgkmcnt(0)""")
    a.label("L_ZW")

def signal(a, s_off, nwaves, ldsaddr, narr=1, rstride=128):
    n = signal.n; signal.n += 1
    a(f"""v_mov_b32 v13, {ldsaddr}
    v_mov_b32 v14, 1
    s_add_u32 s68, s{P_WS}, s{s_off}
    s_addc_u32 s69, s{P_WS+1}, 0
    s_mov_b32 s78, 1
    s_waitcnt vmcnt(0)
    s_mov_b64 exec, 1
    ds_add_rtn_u32 v12, v13, v14
    s_mov_b64 exec, -1
    s_waitcnt lgkmcnt(0)
    v_readfirstlane_b32 s79, v12
    s_cmp_lg_u32 s79, {nwaves-1}
    s_cbranch_scc1 L_SIG_{n}""")
    if narr > 1:
        a(f"""s_mov_b32 s79, 1
        s_atomic_add s79, s[68:69], {WS_CNT} glc
        s_waitcnt lgkmcnt(0)
        s_cmp_lg_u32 s79, {narr-1}
        s_cbranch_scc1 L_SIG_{n}""")
    for r in range(8 if narr > 1 else 1): a(f"s_atomic_add s78, s[68:69], {r*rstride}")
    a("s_waitcnt lgkmcnt(0)")
    a.label(f"L_SIG_{n}")
signal.n = 0

def conv_ids(a):
    a("""s_and_b32 s52, s2, 7
    s_mul_i32 s52, s52, 20
    s_lshr_b32 s53, s2, 3
    s_sub_u32 s53, s53, 12
    s_add_u32 s52, s52, s53""")
def sprefetch(a, p, s_off, n):
    a(f"s_add_u32 s68, s{p}, s{s_off}\n s_addc_u32 s69, s{p+1}, 0")
    for i in range(n): a(f"s_load_dword s79, s[68:69], {128*i}")
    a("s_waitcnt lgkmcnt(0)")

def last_barrier(a, name, n_younger):
    a(f"s_cmp_eq_u32 s{SLD}, 0\n s_cbranch_scc1 L_LB_{name}\n PUSHSTATE\n s_waitcnt vmcnt({n_younger})\n s_barrier\n s_setprio 0\n POPSTATE")
    a.label(f"L_LB_{name}")

G_ACC, G_B, G_X = 16, 96, 176
G_SLOT = 36864
def slot_off(j): return ((j & 1) ^ 1) * G_SLOT
def slot_half(j): return (j % 4) >> 1
def g_ids(a):
    a(f"""s_and_b32 s52, s2, 7
    s_lshr_b32 s53, s2, 3
    s_and_b32 s57, s52, 3
    s_lshl_b32 s57, s57, 2
    s_and_b32 s54, s53, 3
    s_add_u32 s57, s57, s54
    s_lshr_b32 s52, s52, 2
    s_lshr_b32 s54, s53, 2
    s_lshl_b32 s58, s52, 2
    s_add_u32 s58, s58, s54
    s_lshl_b32 s52, s52, 1
    s_add_u32 s52, s52, s54
    s_add_u32 s52, s52, 4
    s_cmp_ge_u32 s54, 4
    s_cselect_b32 s58, s52, s58
    s_lshl_b32 s66, s{SW}, 12
    s_add_u32 s66, s66, 20480""")

def g_setup_x(a):
    if cfg.rot:
        a(f"""s_mul_i32 s62, s57, 3
        s_lshl_b32 s59, s58, 1
        s_add_u32 s62, s62, s59
        s_mul_i32 s59, s62, 205
        s_lshr_b32 s59, s59, 11
        s_mul_i32 s59, s59, 10
        s_sub_u32 s62, s62, s59
        s_lshl_b32 s64, s62, 7
        s_mul_i32 s63, s62, {64*3840}""")
    else:
        a("s_mov_b32 s64, 0\n s_mov_b32 s63, 0")
    a(f"""v_lshrrev_b32 v240, 3, v1
    s_lshl_b32 s59, s57, 7
    s_lshl_b32 s54, s{SW}, 5
    s_add_u32 s59, s59, s54
    v_add_u32 v240, s59, v240
    v_mul_u32_u24 v240, 1280, v240
    v_lshrrev_b32 v241, 4, v1
    v_and_b32 v242, 7, v1
    v_xor_b32 v242, v242, v241
    v_lshl_add_u32 v7, v242, 4, v240
    v_xor_b32 v242, 4, v242
    v_lshl_add_u32 v8, v242, 4, v240
    v_add_u32 v8, {10240-1024}, v8
    v_add_u32 v9, {20480-2048}, v7
    v_add_u32 v10, {20480-2048}, v8""")

def g_setup_w(a):
    a(f"""s_mul_i32 s59, s58, 160
    s_add_u32 s60, s59, 1280
    s_add_u32 s61, s59, {2560-160}
    s_sub_u32 s59, s58, 8
    s_mul_i32 s59, s59, 320
    s_cmp_ge_u32 s58, 8
    s_cselect_b32 s60, s59, s60
    s_cselect_b32 s61, s59, s61
    s_mul_i32 s59, s{SW}, {16*3840}
    s_add_u32 s60, s60, s59
    s_add_u32 s61, s61, s59
    s_mul_i32 s65, s{SW}, 5120""")
    a(f"v_mov_b32 v244, s60\n v_mov_b32 v245, s61")
    for i in range(5):
        assert all(((64 * i + l) * 3277) >> 16 == (64 * i + l) // 20 for l in range(64))
        a(f"""v_add_u32 v240, {64*i}, v1
        v_mul_u32_u24 v241, 3277, v240
        v_lshrrev_b32 v241, 16, v241
        v_mul_u32_u24 v242, 20, v241
        v_sub_u32 v240, v240, v242""")
        if i == 2: a("v_lshrrev_b32 v242, 4, v1\n v_and_b32 v242, 2, v242\n v_xor_b32 v240, v240, v242")
        if i > 2: a("v_xor_b32 v240, 2, v240")
        a(f"""v_cmp_gt_u32 vcc, 10, v240
        v_mul_u32_u24 v241, 3840, v241
        v_lshl_add_u32 v240, v240, 4, v241
        v_cndmask_b32 v242, v245, v244, vcc""")
        if i in (0, 4): a(f"v_add_u32 v{2+i}, v240, v242")
        else: a(f"v_add_u32 v240, v240, v242\n v_subrev_u32 v{2+i}, {1024*i}, v240")

def g_setup2(a):
    a(f"""v_lshrrev_b32 v241, 4, v1
    v_bfe_u32 v242, v1, 2, 2
    v_lshl_add_u32 v242, v241, 3, v242
    v_mul_u32_u24 v242, 320, v242
    v_and_b32 v243, 3, v1
    v_lshl_add_u32 v242, v243, 3, v242
    v_and_b32 v243, 1, v241
    v_lshlrev_b32 v243, 5, v243
    v_add_u32 v9, v242, v243
    v_sub_u32 v10, v242, v243
    v_and_b32 v240, 15, v1
    v_lshrrev_b32 v242, 1, v240
    v_xor_b32 v242, v242, v241
    v_lshlrev_b32 v240, 7, v240
    v_add_u32 v240, s66, v240
    v_lshl_add_u32 v11, v242, 4, v240
    v_xor_b32 v242, 4, v242
    v_lshl_add_u32 v12, v242, 4, v240
    s_mov_b32 s70, {LOG2E}
    s_mov_b32 s71, {EPS}""")
    for k in range(4): a(f"v_add_u32 v{2+k}, {HALF}, v{9+k}")

def g_loadx(j):
    o = [f"s_add_u32 m0, s66, {slot_half(j) * HALF + slot_off(j)}", "s_nop 0"]
    for i in range(4): o.append(f"buffer_load_dwordx4 v{7+i}, {sq(SRD0)}, s64 offen offset:{1024*i} lds ; tag=S{j}")
    o += ["s_add_u32 s64, s64, 128"]
    if cfg.rot: o += ["s_cmp_eq_u32 s64, 1280", "s_cselect_b32 s64, 0, s64"]
    return o
def g_loadw(j):
    base = slot_half(j) * HALF + slot_off(j)
    o = [f"s_add_u32 m0, s65, {base}", "s_nop 0"]
    for i in range(4): o.append(f"buffer_load_dwordx4 v{2+i}, {sq(SRD1)}, s63 offen offset:{1024*i} lds ; tag=S{j}")
    o += [f"s_add_u32 m0, s65, {base + 4096}", "s_nop 0", f"buffer_load_dwordx4 v6, {sq(SRD1)}, s63 offen lds ; tag=S{j}"]
    o += [f"s_add_u32 s63, s63, {64*3840}"]
    if cfg.rot: o += [f"s_cmp_eq_u32 s63, {640*3840}", "s_cselect_b32 s63, 0, s63"]
    return o
def g_xreads(j):
    return [f"ds_read_b128 {v4(G_X + (j&1)*16 + ks*8 + sub*4)}, v{(4 if slot_half(j) else 11)+ks} offset:{slot_off(j) + sub*2048}" for ks in range(2) for sub in range(2)]
def g_reads(t):
    j = t // 2
    o = []
    for n in range(10):
        for h in range(2):
            off = slot_off(j) + (t & 1) * 10240 + h * 1280 + 32 * n
            o.append(f"ds_read_b64_tr_b16 {v2(G_B + (t & 1) * 40 + n * 4 + 2 * h)}, v{(2 if slot_half(j) else 9) + (n & 1)} offset:{off}")
    return o

def role_loader(a):
    a(f"s_setprio {cfg.lprio}")
    g_setup_x(a)
    a("s_waitcnt lgkmcnt(0)")
    srd(a, SRD0, P_X, 2048 * 1280)
    a.extend(g_loadx(0))
    g_setup_w(a)
    srd(a, SRD1, P_W, 640 * 3840)
    seq = []
    for j in range(10): seq += [g_loadx(j), g_loadw(j)]
    pos = 1
    def upto(n):
        nonlocal pos
        while pos < min(n, 20): a.extend(seq[pos]); pos += 1
    upto(cfg.ahead0)
    args_ready(a)
    stamp(a, 1)
    for j in range(9):
        a(f"WAITTAG S{j}")
        if cfg.slab == 2 and j < 8: stamp(a, j + 1, True)
        a("s_barrier")
        if cfg.slab == 1 and j < 8: stamp(a, j + 1, True)
        if j == 0: stamp(a, 2)
        if j == 6: zero_probe(a, 14, 13)
        upto(min(2 * (j + 1) + cfg.ahead, 2 * (j + 4)))
    zero_check(a, "ld", 14, 13)
    a(f"s_mov_b32 s{SLD}, 1")
    stamp(a, 3)

def g_main(a, transposed, tail):
    a("s_waitcnt vmcnt(0) lgkmcnt(0)\n s_barrier")
    stamp(a, 1)
    a.extend(g_xreads(0) + g_reads(0))
    def mfma(t, n, sub):
        j, ks = t // 2, t % 2
        acc = v4(G_ACC + (sub * 10 + n) * 4)
        x = v4(G_X + (j & 1) * 16 + ks * 8 + sub * 4)
        b = v4(G_B + (t & 1) * 40 + n * 4)
        c = "0" if t == 0 else acc
        return f"v_mfma_f32_16x16x32_bf16 {acc}, {b}, {x}, {c}" if transposed else f"v_mfma_f32_16x16x32_bf16 {acc}, {x}, {b}, {c}"
    for t in range(19):
        j, ks = t // 2, t % 2
        mf = [mfma(t, n, sub) for n in range(10) for sub in range(2)]
        rd = g_reads(t + 1)
        if ks == 1:
            rd = g_xreads(j + 1) + rd
            a.extend(mf[:cfg.bpos]); a("s_waitcnt lgkmcnt(0)" + "\n s_barrier")
            a.extend(interleave(mf[cfg.bpos:], rd))
        else:
            a.extend(interleave(mf, rd))
    tail([mfma(19, n, sub) for n in range(10) for sub in range(2)])

def role_q(a):
    a(f"""s_lshl_b32 s52, s57, 3
    s_lshl_b32 s53, s{SW}, 1
    s_add_u32 s52, s52, s53
    s_mul_i32 s52, s52, 20
    s_sub_u32 s53, s58, 8
    s_mul_i32 s54, s53, 5
    s_add_u32 s52, s52, s54
    s_lshl_b32 s52, s52, 10
    s_add_u32 s52, s52, {WS_PQ}
    s_mul_i32 s55, s53, 17
    s_add_u32 s55, s55, s57
    s_lshl_b32 s55, s55, 7
    s_add_u32 s55, s55, {WS_QFLAG}
    v_lshlrev_b32 v6, 4, v1""")
    def tail(mf):
        bar_arrive(a)
        ep = []
        for c in range(5):
            for sub in range(2):
                r0 = G_ACC + (sub * 10 + 2 * c) * 4
                ep += phi_block(list(range(r0, r0 + 8)), list(range(240, 248)))
                d = G_B + (sub * 5 + c) * 4
                ep += [f"v_cvt_pk_bf16_f32 v{d+k}, v{r0+2*k}, v{r0+2*k+1}" for k in range(4)]
                ep += [f"s_add_u32 s54, s52, {(sub*20+c)*1024}", f"buffer_store_dwordx4 {v4(d)}, v6, {sq(SRDWS)}, s54 offen sc1"]
        a.extend(mf[:8])
        a.extend(interleave(mf[8:], ep[:24]))
        stamp(a, 2)
        zero_probe(a, 7, 8)
        a.extend(ep[24:])
    g_main(a, True, tail)
    stamp(a, 3)
    zero_check(a, "q", 7, 8)
    signal(a, 55, 4, L_SIG)
    stamp(a, 4)

def role_kv(a):
    EX, HB = G_SLOT, 0
    DUMP = HB + 4 * 2048
    AD = 208
    a(f"""v_lshlrev_b32 v240, 4, v1
    s_mul_i32 s52, s{SW}, 10240
    s_add_u32 s52, s52, {EX}
    v_add_u32 v{AD+6}, s52, v240
    s_lshl_b32 s52, s{SW}, 10
    s_add_u32 s52, s52, {EX}
    v_add_u32 v{AD+7}, s52, v240
    v_and_b32 v246, 15, v1
    v_lshrrev_b32 v247, 4, v1
    v_lshlrev_b32 v247, 2, v247
    s_lshl_b32 s52, s{SW}, 2
    v_subrev_u32 v246, s52, v246
    v_subrev_u32 v247, s52, v247
    s_lshl_b32 s53, s{SW}, 11
    v_mov_b32 v245, {DUMP}
    v_lshlrev_b32 v{AD+8}, 2, v1
    v_add_u32 v{AD+9}, s53, v{AD+8}""")
    for k in range(4): a(f"v_mov_b32 v{AD+12+k}, 0x3f803f80")
    k = 0
    for dt in range(2):
        for et in range(2):
            a(f"""v_add_u32 v240, {16*dt}, v247
            v_add_u32 v241, {16*et}, v246
            v_max_u32 v242, v240, v241
            v_cmp_gt_u32 vcc, 20, v242
            v_mul_u32_u24 v241, 80, v241
            v_lshl_add_u32 v241, v240, 2, v241
            v_add_u32 v241, s53, v241
            v_cndmask_b32 v{AD+k}, v245, v241, vcc""")
            k += 1
        a(f"""v_add_u32 v240, {16*dt}, v247
        v_and_b32 v241, 15, v1
        v_mul_u32_u24 v241, 20, v241
        v_max_u32 v242, v240, v241
        v_cmp_gt_u32 vcc, 20, v242
        v_lshlrev_b32 v240, 2, v240
        v_add_u32 v240, s53, v240
        v_add_u32 v240, 1600, v240
        v_cndmask_b32 v{AD+4+dt}, v245, v240, vcc""")
    a(f"""s_lshl_b32 s52, s58, 2
    s_add_u32 s52, s52, s{SW}
    s_mul_i32 s52, s52, 1680
    s_add_u32 s52, s52, {WS_KV}
    s_lshl_b32 s55, s58, 7""")
    def tail(mf):
        ep = []
        for t in [0, 1, 5, 2, 6, 7, 3, 8, 9, 4]:
            r0 = G_ACC + t * 4; r1 = G_ACC + (10 + t) * 4
            if t < 5: ep += phi_block(list(range(r0, r0 + 4)) + list(range(r1, r1 + 4)), list(range(240, 248)))
            d = G_B + t * 4
            ep += [f"v_cvt_pk_bf16_f32 v{d}, v{r0}, v{r0+1}", f"v_cvt_pk_bf16_f32 v{d+1}, v{r0+2}, v{r0+3}",
                   f"v_cvt_pk_bf16_f32 v{d+2}, v{r1}, v{r1+1}", f"v_cvt_pk_bf16_f32 v{d+3}, v{r1+2}, v{r1+3}",
                   f"ds_write_b128 v{AD+6}, {v4(d)} offset:{t*1024}"]
        a.extend(mf[:6])
        a.extend(interleave(mf[6:], ep[:28]))
        stamp(a, 2)
        zero_probe(a, 7, 8)
        a.extend(ep[28:])
    g_main(a, False, tail)
    bar_arrive(a); bar_wait(a, True)
    F = 136
    for rg in range(4):
        for q, off in enumerate([0, 5120, 1024, 6144]):
            a(f"ds_read_b128 {v4(F + rg*16 + [0, 2, 1, 3][q]*4)}, v{AD+7} offset:{rg*10240 + off}")
    D = 16
    for rg in range(4):
        for dt in range(2):
            A = v4(F + rg * 16 + dt * 4)
            acc = v4(D + 16 + dt * 4)
            a(f"v_mfma_f32_16x16x32_bf16 {acc}, {A}, {v4(AD+12)}, {'0' if rg == 0 else acc}")
            for et in range(2):
                acc = v4(D + (dt * 2 + et) * 4)
                a(f"v_mfma_f32_16x16x32_bf16 {acc}, {A}, {v4(F + rg*16 + 8 + et*4)}, {'0' if rg == 0 else acc}")
    zero_check(a, "kv", 7, 8)
    for k in [4, 0, 1, 5, 2, 3]: a(f"ds_write_b128 v{AD+k}, {v4(D + 4*k)}")
    for i in range(7): a(f"ds_read_b32 v{48+i}, v{AD+9} offset:{256*i}")
    if cfg.gate: bar_arrive(a)
    stamp(a, 3)
    for i in range(7):
        if i == 6: a("s_mov_b32 exec_hi, 0xf")
        a(f"buffer_atomic_add_f32 v{48+i}, v{AD+8}, {sq(SRDWS)}, s52 offen offset:{256*i}")
    a("s_mov_b64 exec, -1")
    signal(a, 55, 4, L_SIG, 16, 1024)
    stamp(a, 4)

C_HCOPY = 4224; C_UH = 148; C_WAVE = 2 * C_HCOPY + 2 * C_UH * 16
C_STG = HALF + 4 * C_WAVE; C_STGP = 4160
PV = 224
def role_prep(a):
    a(f"s_cmp_lt_u32 s{SW8}, 3\n s_cbranch_scc1 L_PQ")
    tag(a, 3)
    a(f"""s_and_b32 s52, s2, 7
    s_lshl_b32 s52, s52, 2
    s_bfe_u32 s53, s2, 0x20004
    s_add_u32 s52, s52, s53
    s_lshl_b32 s52, s52, 6
    s_bfe_u32 s65, s2, 0x10003
    s_mul_i32 s53, s65, 320
    s_sub_u32 s54, s{SW8}, 3
    s_lshl_b32 s54, s54, 6
    s_add_u32 s53, s53, s54
    v_lshrrev_b32 v240, 3, v1
    v_lshl_add_u32 v241, v240, 3, s52
    v_and_b32 v242, 7, v1
    v_lshl_add_u32 v243, v242, 3, s53
    v_mul_u32_u24 v241, 1280, v241
    v_lshl_add_u32 v{PV}, v243, 1, v241
    v_subrev_u32 v{PV+1}, 3840, v{PV}
    v_lshlrev_b32 v{PV+2}, 3, v243
    s_movk_i32 s55, 5120
    s_waitcnt lgkmcnt(0)""")
    srd(a, SRD0, P_K, 2048 * 1280)
    K, V, C = 16, 60, 92
    for r in range(3): a(f"buffer_load_dwordx4 {v4(K+4*r)}, v{PV+1}, {sq(SRD0)}, 0 offen offset:{1280*r}")
    for r in range(8): a(f"buffer_load_dwordx4 {v4(K+12+4*r)}, v{PV}, {sq(SRD0)}, {'s55' if r >= 4 else '0'} offen offset:{1280*(r%4)}")
    srd(a, SRD1, P_V, 2048 * 1280); srd(a, SRD3, P_SH, 640 * 8)
    for r in range(4): a(f"buffer_load_dwordx4 {v4(C+4*r)}, v{PV+2}, {sq(SRD3)}, 0 offen offset:{16*r}")
    for r in range(8): a(f"buffer_load_dwordx4 {v4(V+4*r)}, v{PV}, {sq(SRD1)}, {'s55' if r >= 4 else '0'} offen offset:{1280*(r%4)}")
    args_ready(a)
    srd(a, SRD2, P_Q, 2048 * 1280)
    a(f"""v_add_u32 v241, s53, v240
    v_mul_u32_u24 v241, {TP}, v241
    v_lshl_add_u32 v{PV+3}, v242, 4, v241
    s_mul_i32 s54, s{SW8}, 8448
    v_mul_u32_u24 v241, 1040, v242
    v_add_u32 v241, s54, v241
    v_lshl_add_u32 v{PV+6}, v240, 4, v241
    v_sub_u32 v240, 7, v240
    v_lshl_add_u32 v{PV+4}, v240, 4, v241
    v_lshl_add_u32 v{PV+5}, v1, 4, s54
    s_lshl_b32 s73, s52, 1
    s_sub_u32 s64, {WS_UT + 1984*2}, s73
    s_add_u32 s73, s73, {WS_QT}
    s_lshl_b32 s65, s65, 10
    s_add_u32 s65, s65, {WS_UFLG}
    s_mov_b32 s70, 0x05040100
    s_mov_b32 s71, 0x07060302
    s_mov_b32 s62, 0xffff0000""")
    stamp(a, 1)
    P, T, U, O = 108, 120, 184, 192
    for ch in range(8):
        dw, hi = ch // 2, ch % 2
        sel = "s71" if hi else "s70"
        for s_ in range(-2, 8):
            a(f"v_perm_b32 v{P+s_+2}, v{K+4*(s_+2)+dw}, v{K+4*(s_+3)+dw}, {sel}")
        for s_ in range(8): a(f"v_dot2_f32_bf16 v{T+8*ch+s_}, v{P+s_}, v{C+2*ch+1}, 0")
        for s_ in range(8): a(f"v_dot2_f32_bf16 v{T+8*ch+s_}, v{P+s_+2}, v{C+2*ch}, v{T+8*ch+s_}")
    for ch in range(8):
        dw, hi = ch // 2, ch % 2
        for s_ in range(8):
            a(f"v_and_b32 v{U+s_}, s62, v{V+4*s_+dw}" if hi else f"v_lshlrev_b32 v{U+s_}, 16, v{V+4*s_+dw}")
        for s_ in range(8): a(f"v_mul_f32 v{T+8*ch+s_}, v{T+8*ch+s_}, v{U+s_}")
        o = O + 4 * ch
        for j in range(4): a(f"v_cvt_pk_bf16_f32 v{o+j}, v{T+8*ch+7-2*j}, v{T+8*ch+6-2*j}")
        a(f"ds_write_b128 v{PV+4}, {v4(o)} offset:{128*ch}")
    def flush(R, sb):
        for i in range(8): a(f"ds_read_b128 {v4(R+4*i)}, v{PV+5} offset:{1040*i}")
        for i in range(8): a(f"s_add_u32 s54, s{sb}, {8*TP*i}\n buffer_store_dwordx4 {v4(R+4*i)}, v{PV+3}, {sq(SRDWS)}, s54 offen sc1")
    flush(16, 64)
    zero_probe(a, 3, 4)
    zero_check(a, "pu", 3, 4)
    a("s_waitcnt vmcnt(0)\n s_barrier")
    stamp(a, 2)
    Q = 16
    for r in range(8): a(f"buffer_load_dwordx4 {v4(Q+4*r)}, v{PV}, {sq(SRD2)}, {'s55' if r >= 4 else '0'} offen offset:{1280*(r%4)}")
    a(f"s_cmp_eq_u32 s{SGRP}, 0\n s_cbranch_scc1 L_PH\n PUSHSTATE")
    conv_head(a)
    a("s_waitcnt vmcnt(8)\n POPSTATE"); a.label("L_PH")
    for ch in range(8):
        dw, hi = ch // 2, ch % 2
        o = 48 + 4 * ch
        for j in range(4): a(f"v_perm_b32 v{o+j}, v{Q+4*(2*j+1)+dw}, v{Q+4*(2*j)+dw}, {'s71' if hi else 's70'}")
        a(f"ds_write_b128 v{PV+6}, {v4(o)} offset:{128*ch}")
    a(f"s_cmp_eq_u32 s{SGRP}, 0\n s_cbranch_scc1 L_PH2")
    a(probe(15, 12, "s61"))
    a.label("L_PH2")
    flush(80, 73)
    stamp(a, 3)
    a(f"s_mov_b32 s{SLD}, 2\n s_cmp_eq_u32 s{SGRP}, 1\n s_cbranch_scc1 L_CONV2")
    a(f"s_mov_b32 s{SLD}, 0\n s_waitcnt vmcnt(0)\n s_barrier\n s_branch L_B2")
    a.label("L_PQ")
    tag(a, 6)
    a(f"s_cmp_lg_u32 s{SW8}, 1\n s_cbranch_scc1 L_PQ0")
    init_wave(a, "p")
    a.label("L_PQ0")
    args_ready(a)
    a(f"""s_bfe_u32 s65, s2, 0x10003
    s_lshl_b32 s65, s65, 10
    s_add_u32 s65, s65, {WS_UFLG}
    s_add_u32 s68, s{P_WS}, s65
    s_addc_u32 s69, s{P_WS+1}, 0
    s_mov_b32 s78, 1""")
    for k, off in ((0, 0), (1, WS_TFLG - WS_UFLG)):
        a(f"""s_barrier
        s_cmp_lg_u32 s{SW8}, 0
        s_cbranch_scc1 L_PS{k}
        s_mov_b32 s79, 1
        s_atomic_add s79, s[68:69], {WS_CNT + off} glc
        s_waitcnt lgkmcnt(0)
        s_cmp_lg_u32 s79, 31
        s_cbranch_scc1 L_PS{k}""")
        for r in range(8): a(f"s_atomic_add s78, s[68:69], {off + 128*r}")
        a("s_waitcnt lgkmcnt(0)")
        a.label(f"L_PS{k}")
        stamp(a, 2 + k)
    a("s_waitcnt vmcnt(0)\n s_branch L_B2")

def conv_head(a, pr=False):
    a(f"""s_and_b32 s52, s2, 7
    s_mul_i32 s52, s52, 20
    s_lshr_b32 s53, s2, 3
    s_and_b32 s61, s2, 7
    s_sub_u32 s53, s53, 12
    s_add_u32 s57, s52, s53
    s_lshl_b32 s58, s57, 2
    s_add_u32 s58, s58, s{SW}
    s_lshl_b32 s59, s58, 12
    s_mul_i32 s60, s{SW}, {C_WAVE}
    s_add_u32 s60, s60, {HALF}
    s_add_u32 s52, s{P_H}, s59
    s_addc_u32 s53, s{P_H+1}, 0
    s_load_dword s66, s[52:53], 0
    s_lshr_b32 s54, s58, 1
    s_lshl_b32 s54, s54, 2
    s_load_dword s67, s[{P_D}:{P_D+1}], s54
    s_lshl_b32 s61, s61, 7
    s_cmp_ge_u32 s57, 80
    s_cselect_b32 s54, 1024, 0
    s_add_u32 s61, s61, s54
    s_add_u32 s61, s61, {WS_UFLG}
    s_add_u32 s63, s61, {WS_TFLG - WS_UFLG}
    v_lshlrev_b32 v2, 4, v1
    v_add_u32 v3, 4, v2
    v_mov_b32 v12, 0""")
    if pr: a(probe(15, 12, "s61"))
    srd(a, SRD0, P_H, 640 * 4096)
    srd(a, SRD1, P_OUT, 2048 * 2560)
    a(f"s_add_u32 m0, s60, 32")
    for i in range(4): a(f"buffer_load_dwordx4 v2, {sq(SRD0)}, s59 offen offset:{1024*i} lds ; tag=H")
    a(f"s_add_u32 m0, s60, {C_HCOPY + 32}")
    for i in range(4): a(f"buffer_load_dwordx4 v3, {sq(SRD0)}, s59 offen offset:{1024*i} lds ; tag=H")
    a("s_waitcnt lgkmcnt(0)")

def role_conv(a):
    ACC, A, RAW, B, QV, UL = 16, 48, 80, 128, 192, 208
    conv_head(a, True)
    last_barrier(a, "conv", 9)
    a.label("L_CONV2")
    tag(a, 4)
    stamp(a, 4)
    check(a, "convu", 15, 12, "s61", 1)
    stamp(a, 5)
    a(f"s_mul_i32 s55, s58, {TP}\n s_add_u32 s54, s55, {WS_UT}\n s_add_u32 s55, s55, {WS_QT}")
    for i in range(4): a(f"buffer_load_dwordx4 {v4(UL+4*i)}, v2, {sq(SRDWS)}, s54 offen offset:{1024*i} sc1")
    a(f"""v_and_b32 v8, 15, v1
    v_lshrrev_b32 v9, 4, v1
    v_add_u32 v10, 1, v8
    v_bfe_u32 v11, v10, 1, 1
    v_mul_u32_u24 v11, {C_HCOPY}, v11
    v_lshrrev_b32 v13, 2, v10
    v_lshl_add_u32 v13, v9, 3, v13
    v_lshl_add_u32 v11, v13, 3, v11
    v_add_u32 v4, s60, v11
    v_and_b32 v10, 1, v10
    v_lshlrev_b32 v5, 4, v10
    v_lshlrev_b32 v10, 1, v9
    v_sub_u32 v10, v10, v8
    v_add_u32 v10, 15, v10
    v_lshlrev_b32 v10, 4, v10
    v_add_u32 v6, s60, v10
    v_lshrrev_b32 v10, 1, v1
    v_and_b32 v11, 1, v1
    v_mul_u32_u24 v11, {C_UH}, v11
    v_add_u32 v10, v10, v11
    v_lshlrev_b32 v10, 4, v10
    v_add_u32 v7, s60, v10
    v_mov_b32 v16, 0
    v_mov_b32 v17, 0
    v_mov_b32 v18, 0
    v_mov_b32 v19, 0
    v_and_b32 v10, 1, v9
    v_mul_u32_u24 v10, {C_UH}, v10
    v_add_u32 v10, v10, v8
    v_lshl_add_u32 v20, v10, 4, s60
    v_and_b32 v10, 1, v1
    v_lshlrev_b32 v10, 4, v10
    v_bfe_u32 v11, v1, 1, 1
    v_mul_u32_u24 v11, {C_HCOPY}, v11
    v_add3_u32 v21, v10, v11, s60
    v_lshlrev_b32 v10, 5, v8
    v_lshl_add_u32 v8, v9, 3, v10""")
    a(f"""s_waitcnt lgkmcnt(0)
    s_lshl_b32 s52, s66, 16
    s_lshl_b32 s53, s67, 16
    s_and_b32 s54, s67, 0xffff0000
    s_bitcmp1_b32 s58, 0
    s_cselect_b32 s53, s54, s53
    s_and_b32 s54, s66, 0xffff0000
    v_mov_b32 v10, s52
    v_add_f32 v10, s53, v10
    v_mov_b32 v11, s54
    v_cvt_pk_bf16_f32 v10, v10, v11
    v_mov_b32 v11, s60
    WAITTAG H
    ds_write_b128 v21, v[16:19]
    ds_write_b32 v11, v10 offset:32
    ds_write_b32 v11, v10 offset:{C_HCOPY+28}
    ds_write_b128 v20, v[16:19] offset:{2*C_HCOPY + 128*16}""")
    def raw_slots(i):
        return [(0, 1, 2), (2, 0, 1), (1, 2, 0), (0, 1, 2)][i]
    def raw_reads(it, N1):
        N0, i = it >> 2, it & 3
        sl = raw_slots(i)
        return [f"ds_read_b64 {v2(RAW + N1*6 + 2*sl[k])}, v4 offset:{(2*N1+N0)*256 + (2*i+k)*8}" for k in range(0 if i == 0 else 1, 3)]
    def aligns(it, N1):
        sl = raw_slots(it & 3)
        d = [RAW + N1 * 6 + 2 * sl[0], RAW + N1 * 6 + 2 * sl[0] + 1, RAW + N1 * 6 + 2 * sl[1], RAW + N1 * 6 + 2 * sl[1] + 1, RAW + N1 * 6 + 2 * sl[2]]
        return [f"v_alignbit_b32 v{A + 4*N1 + k}, v{d[k+1]}, v{d[k]}, v5" for k in range(4)]
    def b_reads(it):
        N0, i = it >> 2, it & 3
        return [f"ds_read_b128 {v4(B + (it&1)*32 + 4*dl)}, v6 offset:{2*C_HCOPY + (14-(2*dl-N0))*128 + (i>>1)*16 + (i&1)*C_UH*16}" for dl in range(8)]
    for N1 in range(8): a.extend(raw_reads(0, N1))
    for N1 in range(8):
        a.extend(aligns(0, N1)); a.extend(raw_reads(1, N1))
    for i in range(4): a(f"ds_write_b128 v7, {v4(UL+4*i)} offset:{2*C_HCOPY + 512*i}")
    a.extend(b_reads(0))
    a(f"s_cmp_lg_u32 s{SLD}, 2\n s_cbranch_scc1 L_CV3\n s_waitcnt vmcnt(0)\n s_barrier")
    a.label("L_CV3")
    stamp(a, 6)
    queue = []
    for it in range(8):
        if it < 7: queue += b_reads(it + 1)
        if it == cfg.qit - 1: a(probe(15, 12, "s63"))
        if it == cfg.qit:
            check(a, "convq", 15, 12, "s63", 1)
            queue += [f"buffer_load_dwordx2 {v2(QV+2*J)}, v8, {sq(SRDWS)}, s55 offen offset:{512*J} sc1" for J in range(8)]
        for N1 in range(8):
            tg = f"v_alignbit_b32 v{A+4*N1+3},"
            pos = max((k for k, q in enumerate(queue) if q.startswith(tg)), default=-1)
            for q in queue[:pos + 1]: a(q)
            queue = queue[pos + 1:]
            for J in range(N1, 8):
                acc = v4(ACC + 4 * J)
                c = "0" if (it == 0 and N1 == 0) else acc
                a(f"v_mfma_f32_16x16x32_bf16 {acc}, {v4(A+4*N1)}, {v4(B + (it&1)*32 + 4*(J-N1))}, {c}")
                for _ in range(2):
                    if queue: a(queue.pop(0))
            if it < 7: queue += aligns(it + 1, N1)
            if it < 6: queue += raw_reads(it + 2, N1)
        assert not any(q.startswith("ds_read_b128") for q in queue)
    assert not queue
    stamp(a, 7)
    a(f"""s_mov_b32 s62, 0xffff0000
    s_mul_i32 s52, s{SW}, {C_STGP}
    s_add_u32 s52, s52, {C_STG}
    v_add_u32 v9, s52, v8""")
    for J in range(8):
        T = 224 + (J & 1) * 8
        a(f"""v_lshlrev_b32 v{T}, 16, v{QV+2*J}
        v_and_b32 v{T+1}, s62, v{QV+2*J}
        v_lshlrev_b32 v{T+2}, 16, v{QV+2*J+1}
        v_and_b32 v{T+3}, s62, v{QV+2*J+1}""")
        for r in range(4): a(f"v_mul_f32 v{T+r}, v{T+r}, v{ACC+4*J+r}")
        a(f"v_cvt_pk_bf16_f32 v{T+4}, v{T}, v{T+1}\n v_cvt_pk_bf16_f32 v{T+5}, v{T+2}, v{T+3}")
        a(f"ds_write_b64 v9, {v2(T+4)} offset:{512*J}")
    bar_arrive(a)
    a(f"""v_bfe_u32 v10, v1, 2, 2
    v_mul_u32_u24 v10, {C_STGP}, v10
    v_and_b32 v11, 3, v1
    v_lshl_add_u32 v10, v11, 3, v10
    v_lshrrev_b32 v11, 4, v1
    v_lshl_add_u32 v10, v11, 5, v10
    s_lshl_b32 s52, s{SW}, 10
    s_add_u32 s52, s52, {C_STG}
    v_add_u32 v10, s52, v10
    s_lshl_b32 s52, s{SW}, 9
    v_add_u32 v11, s52, v1
    v_mul_u32_u24 v11, 2560, v11
    s_lshl_b32 s52, s57, 3""")
    bar_wait(a, True)
    stamp(a, 8)
    for i in range(8): a(f"ds_read_b64_tr_b16 {v2(48+2*i)}, v10 offset:{128*i}")
    for i in range(8):
        a(f"buffer_store_dwordx2 {v2(48+2*i)}, v11, {sq(SRD1)}, s52 offen")
        if i < 7: a(f"s_add_u32 s52, s52, {64*2560}")

def b2_tables(hf):
    num = {}
    for t in range(5 * hf, 5 * hf + 5):
        hs = {e // 20 for e in range(16 * t, 16 * t + 16)}
        dts = [dt for dt in range(10) if hs & {d // 20 for d in range(16 * dt, 16 * dt + 16)}]
        ch = {}
        for dt in dts: ch.setdefault(dt // 2, []).append(dt)
        num[t] = sorted(ch.items())
    ch = {}
    for dt in range(5 * hf, 5 * hf + 5): ch.setdefault(dt // 2, []).append(dt)
    return num, sorted(ch.items())

B_KS = 8416
NS = 3
def role_b2(a):
    PQ, KV, RAW = 16, 108, 180
    WA = [76 + 4 * n for n in range(8)]
    WB = [228 + 4 * n for n in range(7)] + [8]
    ACC = 108
    U = [180, 204]
    a(f"""s_mul_i32 s57, s56, 205
    s_lshr_b32 s57, s57, 10
    s_mul_i32 s54, s57, 5
    s_sub_u32 s58, s56, s54""")
    assert all((v * 205) >> 10 == v // 5 for v in range(216))
    srd(a, SRD0, P_WO, 640 * 1280)
    a(f"""s_lshl_b32 s59, s58, 8
    s_mul_i32 s52, s{SW}, {160*1280}
    s_add_u32 s59, s59, s52
    s_lshl_b32 s53, s{SW}, 6
    s_mul_i32 s65, s{SW}, 20480
    s_add_u32 s65, s65, s{SLB}
    v_and_b32 v8, 15, v1
    v_lshrrev_b32 v9, 4, v1
    v_lshlrev_b32 v2, 4, v8
    v_xor_b32 v2, s53, v2
    v_mul_u32_u24 v10, {8*1280}, v9
    v_add3_u32 v2, v2, v10, s59""")
    def dma(kstep, slot):
        return [[f"s_add_u32 m0, s65, {slot*B_KS + i*1056}", f"s_mov_b32 s63, {(32*kstep + i)*1280}",
                 f"buffer_load_dwordx4 v2, {sq(SRD0)}, s63 offen lds ; tag=K{kstep}"] for i in range(8)]
    def wreads(slot, dst):
        return [f"ds_read_b64_tr_b16 {v2(dst[n] + 2*h)}, v0 offset:{slot*B_KS + h*512 + 32*n}" for n in range(8) for h in range(2)]
    bar_wait(a)
    for g in dma(0, 0): a.extend(g)
    last_barrier(a, "b2", 8)
    if cfg.gate:
        a(f"s_cmp_eq_u32 s{SLD}, 0\n s_cbranch_scc1 L_GT\n v_mov_b32 v13, {L_BAR}")
        a.label("L_GTW")
        a("s_sleep 4\n ds_read_b32 v14, v13\n s_waitcnt lgkmcnt(0)\n v_cmp_gt_u32 vcc, 8, v14\n s_nop 1\n s_cbranch_vccnz L_GTW")
        a.label("L_GT")
    for g in dma(1, 1): a.extend(g)
    a(f"s_setprio {cfg.cprio}")
    srd(a, SRD1, P_OUT, 2048 * 2560)
    a(f"""v_bfe_u32 v10, v1, 2, 3
    v_mul_u32_u24 v10, 1056, v10
    v_lshrrev_b32 v11, 5, v1
    v_lshl_add_u32 v10, v11, 8, v10
    v_and_b32 v11, 3, v1
    v_lshl_add_u32 v10, v11, 3, v10
    v_add_u32 v0, s65, v10
    s_add_u32 s64, s65, {2*B_KS}
    v_lshlrev_b32 v9, 3, v9
    v_mul_u32_u24 v3, 40, v8
    v_add3_u32 v3, v3, v9, s64
    v_mul_u32_u24 v4, 800, v11
    v_add3_u32 v4, v4, v9, s64
    v_lshlrev_b32 v5, 4, v1
    v_lshlrev_b32 v6, 3, v1
    v_add_u32 v6, s64, v6
    v_add_u32 v7, 4096, v5
    s_mul_i32 s52, s57, 3
    s_lshr_b32 s53, s52, 3
    s_add_u32 s54, s52, 2
    s_min_u32 s54, s54, 127
    s_lshr_b32 s54, s54, 3
    s_sub_u32 s54, s54, s53
    s_lshl_b32 s54, s54, 7
    v_and_b32 v12, 1, v1
    v_lshlrev_b32 v13, 7, v12
    v_mul_u32_u24 v12, s54, v12
    s_mul_i32 s60, s{SW}, 17
    s_add_u32 s60, s60, s53
    s_lshl_b32 s60, s60, 7
    s_add_u32 s60, s60, {WS_QFLAG}
    s_and_b32 s61, s2, 7
    s_lshl_b32 s61, s61, 10
    s_lshl_b32 s53, s{SW}, 8
    s_add_u32 s61, s61, s53
    s_mul_i32 s52, s52, 20480
    s_mul_i32 s53, s{SW}, 5120
    s_add_u32 s52, s52, s53
    s_add_u32 s52, s52, {WS_PQ}
    s_mul_i32 s62, s{SW}, {8*1680}
    s_add_u32 s62, s62, {WS_KV}
    s_mov_b32 s73, {EPS}
    s_mov_b32 s66, 0xffff0000
    s_mov_b32 s67, -1
    s_mov_b32 s68, 0
    s_mov_b32 s69, -1
    s_mov_b32 s70, 0
    s_mov_b32 s71, 0xffff0000""")
    for r in range(KV, KV + 72): a(f"v_mov_b32 v{r}, 0")
    a("WAITTAG K0")
    a.extend(wreads(0, WA))
    a("s_waitcnt lgkmcnt(0)")
    for g in dma(2, 0): a.extend(g)
    a("WAITTAG K1")
    a.extend(wreads(1, WB))
    a("s_waitcnt lgkmcnt(0)")
    for g in dma(3, 1): a.extend(g)
    a(probe(14, 12, "s60"))
    stamp(a, 5)
    check(a, "b2q", 14, 12, "s60", 1)
    for sub in range(NS):
        for c in range(5):
            a(f"buffer_load_dwordx4 {v4(PQ + (sub*5+c)*4)}, v{5 if c < 4 else 7}, {sq(SRDWS)}, s52 offen offset:{1024*(c%4)} sc1")
        if sub < NS - 1: a("s_add_u32 s52, s52, 20480")
    a(probe(14, 13, "s61"))
    check(a, "b2kv", 14, 13, "s61", 1)
    stamp(a, 6)
    raw = [RAW + 4 * i for i in range(12)] + [KV + 64, KV + 68]
    for hf in range(2):
        for i in range(7):
            a(f"buffer_load_dwordx4 {v4(raw[hf*7+i])}, v{5 if i < 4 else 7}, {sq(SRDWS)}, s62 offen offset:{1024*(i%4)} sc1")
        if hf == 0: a("s_add_u32 s62, s62, 6720")
    for r in range(4): a(f"v_mov_b32 v{12+r}, s73")
    qi = {}
    tabs = [b2_tables(0), b2_tables(1)]
    def build_half(hf):
        o = []
        for i in range(7):
            r = raw[hf * 7 + i]
            o += [f"v_cvt_pk_bf16_f32 v{r}, v{r}, v{r+1}", f"v_cvt_pk_bf16_f32 v{r+1}, v{r+2}, v{r+3}", f"ds_write_b64 v6, {v2(r)} offset:{512*i}"]
        if hf == 1: o += [f"v_mov_b32 v{KV+64+k}, 0" for k in range(8)]
        num, den = tabs[hf]
        quads = [("z", hf, dt) for c, dts in den for dt in dts] + [("n", t, dt) for t in num for c, dts in num[t] for dt in dts]
        assert len(quads) == 18
        rd = []
        for (kind, t, dt) in quads:
            q = len(qi); qi[(kind, t, dt)] = q
            mask = 0
            for l in range(64):
                i, g = l & 15, l >> 4
                hd = (16 * dt + 4 * g) // 20
                he = (16 * t + i) // 20 if kind == "n" else (i & 3) + 4 * t
                if hd == he: mask |= 1 << l
            off = 640 * (t - 5 * hf) + 32 * (dt - 5 * hf) if kind == "n" else 800 + 32 * (dt - 5 * hf)
            rd.append([f"s_mov_b32 exec_lo, {mask & 0xffffffff:#x}", f"s_mov_b32 exec_hi, {mask >> 32:#x}", f"ds_read_b64 {v2(KV + 2*q)}, v{3 if kind == 'n' else 4} offset:{off}"])
        return o, rd
    def omf(sub, hf, T):
        o = []
        num, den = tabs[hf]
        def one(kind, t, lst, acc):
            lst = sorted(lst, key=lambda x: len(x[1]))
            for k, (c, dts) in enumerate(lst):
                src = v4(acc) if k else ("v[12:15]" if kind == "z" else "0")
                kv = KV + 2 * qi[(kind, t, dts[0])]
                pq = PQ + (sub * 5 + c) * 4
                key = (min(k, 1), 0 if kind == "z" else 1, t, k)
                if len(dts) == 2: o.append((key, f"v_mfma_f32_16x16x32_bf16 {v4(acc)}, {v4(kv)}, {v4(pq)}, {src}"))
                else: o.append((key, f"v_mfma_f32_16x16x16_bf16 {v4(acc)}, {v2(kv)}, {v2(pq + 2*(dts[0]&1))}, {src}"))
        one("z", hf, den, T)
        for t in num: one("n", t, num[t], T + 4 + 4 * (t - 5 * hf))
        return [x for _, x in sorted(o)]
    def ovalu(sub, hf, T):
        o = []
        for r in range(4): o.append(f"v_rcp_f32 v{T+r}, v{T+r}")
        for tl in range(5):
            t = tl + 5 * hf
            h0 = (16 * tl) // 20; h1 = (16 * tl + 12) // 20
            rc = T + h0; n = T + 4 + 4 * tl
            if h0 != h1:
                g0 = min(g for g in range(4) if (16 * tl + 4 * g) // 20 == h1)
                o.append(f"v_cndmask_b32 v{rc}, v{T+h0}, v{T+h1}, s[{64+2*g0}:{65+2*g0}]")
            for r in range(4): o.append(f"v_mul_f32 v{n+r}, v{n+r}, v{rc}")
            d = PQ + (sub * 5 + t // 2) * 4 + 2 * (t & 1)
            o.append(f"v_cvt_pk_bf16_f32 v{d}, v{n}, v{n+1}")
            o.append(f"v_cvt_pk_bf16_f32 v{d+1}, v{n+2}, v{n+3}")
        return o
    def acc(sub, n): return ACC + (n * NS + sub) * 4
    def g2(k, W, ns=range(8)):
        return [f"v_mfma_f32_16x16x32_bf16 {v4(acc(sub, n))}, {v4(W[n])}, {v4(PQ + (sub*5+k)*4)}, {'0' if k == 0 else v4(acc(sub, n))}" for n in ns for sub in range(NS)]
    units = [(s_, h) for h in range(2) for s_ in range(NS)]
    nu = len(units)
    w0, r0 = build_half(0)
    a.extend(w0)
    for g in r0: a.extend(g)
    a("s_mov_b64 exec, -1")
    w1, r1 = build_half(1)
    a.extend(w1)
    r1g = [r1[k] + r1[k + 1] + ["s_mov_b64 exec, -1"] for k in range(0, 18, 2)]
    a.extend(interleave(omf(*units[0], U[0]), r1g, 1, 11))
    stamp(a, 7)
    for u in range(1, nu):
        a.extend(interleave(omf(*units[u], U[u & 1]), ovalu(*units[u - 1], U[(u - 1) & 1]), 2))
    a.extend(interleave(g2(0, WA), ovalu(*units[nu - 1], U[(nu - 1) & 1]), 2))
    k1 = g2(1, WB)
    a.extend(interleave(k1[:10], wreads(0, WA), 0, 8))
    a("s_waitcnt lgkmcnt(0)")
    a.extend(interleave(k1[10:], dma(4, 0), 0, 10))
    ad = []
    for gam in range(1, 4):
        ad += [f"s_xor_b32 s52, s{SW}, {gam}", "s_mul_i32 s52, s52, 20480", f"s_add_u32 s52, s52, {(gam-1)*6144}", f"s_add_u32 s52, s52, s{SLB}", f"v_add_u32 v{203+gam}, s52, v5"]
    ad += f"""v_add_u32 v207, s65, v5
    s_add_u32 s53, s65, 18432
    v_and_b32 v12, 15, v1
    v_mul_u32_u24 v12, 80, v12
    v_lshrrev_b32 v3, 4, v1
    v_lshl_add_u32 v12, v3, 3, v12
    v_add_u32 v12, s53, v12
    v_lshrrev_b32 v3, 2, v1
    v_and_b32 v4, 3, v1
    v_lshlrev_b32 v4, 4, v4
    v_mul_u32_u24 v15, 80, v3
    v_add3_u32 v15, v15, v4, s53
    s_mul_i32 s52, s57, 48
    v_add_u32 v3, s52, v3
    v_mul_u32_u24 v3, 2560, v3
    v_add_u32 v3, v3, v4
    s_lshl_b32 s52, s58, 8
    s_lshl_b32 s54, s{SW}, 6
    s_add_u32 s52, s52, s54
    s_add_u32 s52, s52, 1280""".split("\n")
    a.extend(interleave(interleave(g2(2, WA), wreads(1, WB), 0, 16), ad))
    pre = g2(3, WB, [0, 1, 2, 3])
    a.extend(pre[:4]); a("WAITTAG K4")
    rd4 = wreads(0, WA); rd4 = rd4[4:] + rd4[:4]
    a.extend(interleave(pre[4:], rd4))
    def wr(gam): return [f"ds_write_b128 v207, {v4(ACC + (gam*6+k)*4)} offset:{(gam-1)*6144 + 1024*k}" for k in range(6)]
    a.extend(g2(4, WA, [2, 3]))
    a.extend(interleave(g2(3, WB, [4, 5]) + g2(4, WA, [4, 5]), wr(1), 2))
    a.extend(interleave(g2(3, WB, [6, 7]) + g2(4, WA, [6, 7]), wr(2), 2))
    a.extend(interleave(g2(4, WA, [0, 1]), wr(3), 2))
    stamp(a, 8)
    bar_arrive(a); bar_wait(a, True)
    R = 16
    order = [n * NS + sub for sub in range(NS) for n in range(2)]
    for k in order:
        for gam in range(3): a(f"ds_read_b128 {v4(R + (k*3+gam)*4)}, v{204+gam} offset:{1024*k}")
    for k in order:
        n, sub = k // NS, k % NS
        for r in range(4): a(f"v_add_f32 v{ACC+4*k+r}, v{ACC+4*k+r}, v{R+(k*3)*4+r}")
        for r in range(4): a(f"v_add_f32 v{R+(k*3+1)*4+r}, v{R+(k*3+1)*4+r}, v{R+(k*3+2)*4+r}")
        for r in range(4): a(f"v_add_f32 v{ACC+4*k+r}, v{ACC+4*k+r}, v{R+(k*3+1)*4+r}")
        a(f"v_cvt_pk_bf16_f32 v{140+2*k}, v{ACC+4*k}, v{ACC+4*k+1}\n v_cvt_pk_bf16_f32 v{141+2*k}, v{ACC+4*k+2}, v{ACC+4*k+3}")
        a(f"ds_write_b64 v12, {v2(140+2*k)} offset:{32*n}")
        if n == 1:
            a(f"ds_read_b128 {v4(160+4*sub)}, v15")
            if sub > 0:
                a(f"buffer_store_dwordx4 {v4(160+4*(sub-1))}, v3, {sq(SRD1)}, s52 offen{OSC()}\n s_add_u32 s52, s52, {16*2560}")
    a(f"buffer_store_dwordx4 {v4(160+4*(NS-1))}, v3, {sq(SRD1)}, s52 offen{OSC()}")

def OSC(): return ["", " sc1", " nt", " sc0 sc1"][cfg.osc]

def kd(name):
    return f""".p2align 6
.amdhsa_kernel {name}
  .amdhsa_next_free_vgpr 256
  .amdhsa_next_free_sgpr 102
  .amdhsa_accum_offset 256
  .amdhsa_group_segment_fixed_size 0
  .amdhsa_kernarg_size 96
  .amdhsa_user_sgpr_count 2
  .amdhsa_user_sgpr_kernarg_segment_ptr 1
  .amdhsa_system_sgpr_workgroup_id_x 1
  .amdhsa_float_denorm_mode_32 3
.end_amdhsa_kernel"""

def head(name): return f".globl {name}\n.p2align 8\n.type {name},@function"

def build():
    k = KN + "_kernel"
    a = Asm()
    a(head(k)); prologue(a, k, 256)
    a("s_cmp_ge_u32 s2, 192\n s_cbranch_scc1 L_P")
    g_ids(a)
    a(f"s_cmp_eq_u32 s{SGRP}, 0\n s_cbranch_scc1 L_CONS")
    tag(a, 7)
    role_loader(a)
    a("s_cmp_ge_u32 s2, 96\n s_cbranch_scc1 L_CONV\n s_branch L_B2")
    a.label("L_CONS")
    a(f"s_cmp_lg_u32 s{SW}, 0\n s_cbranch_scc1 L_ZW\n s_cmp_ge_u32 s2, 48\n s_cbranch_scc1 L_ZW")
    zero_wave(a)
    a(f"s_cmp_lg_u32 s{SW}, 3\n s_cbranch_scc1 L_CONS1")
    init_wave(a, "g")
    a.label("L_CONS1")
    a(f"s_setprio {cfg.cprio}")
    args_ready(a)
    g_setup2(a)
    a("s_cmp_ge_u32 s58, 8\n s_cbranch_scc1 L_Q")
    tag(a, 1); role_kv(a); a("s_branch L_FIN")
    a.label("L_Q"); tag(a, 2); role_q(a); a("s_branch L_B2")
    a.label("L_P"); role_prep(a)
    a.label("L_CONV"); role_conv(a)
    if cfg.enc == 49: a("s_waitcnt vmcnt(0)"); stamp(a, 9)
    a("s_branch L_FIN")
    a.label("L_B2")
    a("""s_lshr_b32 s53, s2, 3
    s_sub_u32 s54, s53, 4
    s_cmp_lt_u32 s53, 12
    s_cselect_b32 s53, s53, s54
    s_cmp_ge_u32 s53, 27
    s_cbranch_scc1 L_FIN
    s_and_b32 s56, s2, 7
    s_mul_i32 s56, s56, 27
    s_add_u32 s56, s56, s53
    s_cmp_ge_u32 s56, 215
    s_cbranch_scc1 L_FIN""")
    tag(a, 5); role_b2(a)
    if cfg.enc == 59: a("s_waitcnt vmcnt(0)"); stamp(a, 9)
    a.label("L_FIN"); stamps_out(a)
    if cfg.enc:
        a("s_waitcnt vmcnt(0) lgkmcnt(0)")
        a.label("L_SPIN")
        a("s_memrealtime s[94:95]\n s_waitcnt lgkmcnt(0)\n s_sub_u32 s94, s94, s96\n s_cmp_lt_u32 s94, 6000\n s_cbranch_scc1 L_SPIN")
    a.label("L_END"); a("s_endpgm")
    launch = [f"; @launch grid=(256,1,1) block=(512,1,1) lds={LDS_BYTES}"]
    return launch, a, [k]

def emit(path, launch, a, kernels, verbose=False):
    body = fix_hazards(insert_waits(a.lines), verbose)
    out = list(launch) + ['.amdgcn_target "amdgcn-amd-amdhsa--gfx950"', ".text", ".p2align 8", "L_CODE_BEGIN:"]
    out += [(l if l.endswith(":") or l.startswith(".") else "    " + l) for l in body]
    out += ["L_CODE_END:", "    s_endpgm", '.section .rodata,"a"'] + [kd(k) for k in kernels]
    open(path, "w").write("\n".join(out) + "\n")

if __name__ == "__main__":
    cfg.stamps = "stamps" in sys.argv[2:]
    cfg.rot = "norot" not in sys.argv[2:]
    for x in sys.argv[2:]:
        if "=" in x: setattr(cfg, x.split("=")[0], int(x.split("=")[1]))
    emit(sys.argv[1], *build(), verbose="-v" in sys.argv)
```

```python
import sys
sys.path.insert(0, "dev")
from asmlib import *

KN = "concat_heads__ssm_conv_h3__linear_attn_block__prompt"
WS_KVFLG = 0x0000
WS_YFLG  = 0x2000
WS_UFLG  = 0x4800
WS_QFLAG = 0x5000
WS_CNT   = 0x8000
WS_KV    = 0xD000
NZERO    = 56
TP = 4224
WS_UT    = 0x100000
WS_YT    = 0x400000
WS_PQ    = 0x700000
WS_STAMP = 0xA00000
WS_SIZE  = 0xB00000
LDS_BYTES = 163840
HALF = 81920
L_BAR = HALF - 64
L_SIG = HALF - 60
SGRP, SLB, SBT, SW8, SLD = 74, 75, 76, 77, 72
LOG2E = 0x3FB8AA3B
EPS = 0x358637BD

P_Q, P_K, P_V, P_SH, P_H, P_D, P_X, P_W, P_WO, P_OUT, P_DBG, P_WS = [4 + 2 * i for i in range(12)]
SRD0, SRD1, SRD2, SRD3, SRD4, SRDWS = 28, 32, 36, 40, 44, 48
SW = 3

def srd(a, d, p, nbytes):
    a(f"s_mov_b32 s{d}, s{p}\n s_and_b32 s{d+1}, s{p+1}, 0xffff\n s_mov_b32 s{d+2}, {nbytes}\n s_mov_b32 s{d+3}, 0x20000")
def sq(d): return f"s[{d}:{d+3}]"
def v4(r): return f"v[{r}:{r+3}]"
def v2(r): return f"v[{r}:{r+1}]"

class Cfg:
    stamps = False
    rot = False
    gonly = 0
    ahead0 = 4
    ahead = 4
    bpos = 3
    lprio = 3
    cprio = 2
    psleep = 4
    qlate = 3
    pprio = 0
    qit = 6
    tlb = 0
    pwait = 1
    eprio = 3
    fprio = 3
    qrel = 8
    qst = 1
    osc = 0
    gate = 1
    usig = 4
    qbar = 1
    spf = 0
    slab = 0
    enc = 0
    role = 0
    pmode = 0
    x_noq = 0
    x_plain = 0
    x_pend = 0
    x_nost = 0
cfg = Cfg()

NSTAMP = 10
def stamp(a, i, force=False):
    if cfg.slab and not force and i != NSTAMP - 1 and cfg.role in (7, 4, 5): return
    if cfg.enc and cfg.enc == cfg.role * 10 + i:
        a("s_memrealtime s[96:97]\n s_waitcnt lgkmcnt(0)")
    if cfg.stamps:
        a(f"s_memrealtime s[{80+2*i}:{81+2*i}]\n s_waitcnt lgkmcnt(0)")
def stamps_out(a):
    if not cfg.stamps: return
    a("s_waitcnt vmcnt(0) lgkmcnt(0)")
    stamp(a, NSTAMP - 1)
    a("s_memtime s[70:71]\n s_waitcnt lgkmcnt(0)\n s_sub_u32 s101, s70, s101")
    a(f"s_getreg_b32 s52, hwreg(HW_REG_HW_ID)\n s_getreg_b32 s53, hwreg(HW_REG_XCC_ID)")
    for i in range(NSTAMP): a(f"v_mov_b32 v{16+i}, s{80+2*i}")
    a(f"v_mov_b32 v26, s52\n v_mov_b32 v27, s53\n v_mov_b32 v28, s100\n v_mov_b32 v29, s2\n v_mov_b32 v30, s101\n v_mov_b32 v31, 0")
    a(f"s_lshl_b32 s54, s2, 9\n s_lshl_b32 s55, s{SW8}, 6\n s_add_u32 s54, s54, s55\n s_add_u32 s54, s54, {WS_STAMP}")
    a(f"v_mov_b32 v32, 0\n s_mov_b64 exec, 1")
    for i in range(4): a(f"buffer_store_dwordx4 {v4(16+4*i)}, v32, {sq(SRDWS)}, s54 offen offset:{16*i}")
    a("s_mov_b64 exec, -1")
def tag(a, t):
    cfg.role = t
    if cfg.stamps: a(f"s_lshl_b32 s100, s100, 4\n s_add_u32 s100, s100, {t}")

def prologue(a, name, nwg):
    a.label(name)
    if cfg.enc: a("s_memrealtime s[98:99]\n s_memrealtime s[96:97]")
    a(f"""s_load_dwordx16 s[4:19], s[0:1], 0
    s_load_dwordx8 s[20:27], s[0:1], 64
    s_cmp_ge_u32 s2, {nwg}
    s_cbranch_scc1 L_END
    v_and_b32 v1, 63, v0
    v_lshrrev_b32 v2, 6, v0
    s_mov_b32 s{SBT}, 0
    v_readfirstlane_b32 s{SW8}, v2
    v_mov_b32 v12, 0
    s_mov_b32 s{SLD}, 0""")
    if cfg.stamps:
        for i in range(NSTAMP): a(f"s_mov_b32 s{80+2*i}, 0")
        a("s_mov_b32 s100, 0\n s_memrealtime s[80:81]\n s_memtime s[98:99]")
    a(f"""s_and_b32 s{SW}, s{SW8}, 3
    s_lshr_b32 s{SGRP}, s{SW8}, 2
    s_mul_i32 s{SLB}, s{SGRP}, {HALF}""")

def init_wave(a, name):
    a("s_getpc_b64 s[52:53]")
    a.label(f"L_PC{name}")
    a(f"""s_lshr_b32 s54, s2, 3
    s_and_b32 s54, s54, 7
    s_lshl_b32 s54, s54, 13
    v_lshlrev_b32 v3, 7, v1
    v_add_u32 v3, s54, v3
    s_sub_u32 s52, s52, L_PC{name}-L_CODE_BEGIN
    s_subb_u32 s53, s53, 0
    v_min_u32 v3, L_CODE_END-L_CODE_BEGIN-4, v3
    global_load_dword v15, v3, s[52:53]""")
    lds_init(a)
    if cfg.tlb:
        n = cfg.tlb
        a(f"s_waitcnt lgkmcnt(0)\n s_mov_b64 exec, {(1 << n) - 1}")
        for k, (p, size) in enumerate(((P_WS, WS_STAMP), (P_OUT, 2048 * 2560), (P_Q, 2048 * 1280), (P_H, 640 * 4096), (P_WO, 640 * 1280))):
            st = (size - 128) // (n - 1) // 128 * 128
            a(f"s_mov_b32 s54, {st}\n v_mul_lo_u32 v3, v1, s54\n global_load_dword v{250+k}, v3, s[{p}:{p+1}]")
        a("s_mov_b64 exec, -1")

def lds_init(a):
    a(f"""v_and_b32 v4, 15, v1
    v_lshlrev_b32 v4, 2, v4
    v_bfe_u32 v5, v1, 4, 1
    v_mul_u32_u24 v5, {HALF}, v5
    v_add_u32 v4, v4, v5
    v_add_u32 v4, {L_BAR}, v4
    v_mov_b32 v5, 0
    ds_write_b32 v4, v5""")

def args_ready(a):
    a("s_waitcnt lgkmcnt(0)")
    if cfg.stamps: a("s_mov_b32 s101, s98")
    srd(a, SRDWS, P_WS, WS_SIZE if cfg.stamps else WS_STAMP)
    srd(a, SRD4, P_DBG, 256)

def bar_arrive(a):
    a(f"""v_mov_b32 v13, s{SLB}
    v_mov_b32 v14, 1
    v_add_u32 v13, {L_BAR}, v13
    s_add_u32 s{SBT}, s{SBT}, 4
    s_mov_b64 exec, 1
    ds_add_u32 v13, v14
    s_mov_b64 exec, -1""")
def bar_wait(a, addr_ok=False):
    n = bar_wait.n; bar_wait.n += 1
    if not addr_ok: a(f"v_mov_b32 v13, s{SLB}\n v_add_u32 v13, {L_BAR}, v13")
    a.label(f"L_BW_{n}")
    a(f"""ds_read_b32 v14, v13
    s_waitcnt lgkmcnt(0)
    v_cmp_gt_u32 vcc, s{SBT}, v14
    s_nop 1
    s_cbranch_vccnz L_BW_{n}""")
bar_wait.n = 0

def phi_block(regs_, temps):
    out = []
    n = len(temps)
    for g in range(0, len(regs_), n):
        grp = regs_[g:g + n]
        for r, t in zip(grp, temps): out.append(f"v_mul_f32 v{t}, s70, v{r}")
        for r, t in zip(grp, temps): out.append(f"v_exp_f32 v{t}, v{t} clamp"); out.append(f"v_max_f32 v{r}, s71, v{r}")
        for r, t in zip(grp, temps): out.append(f"v_add_f32 v{r}, v{r}, v{t}")
    return out

def probe(vdst, voff, s_off, srdq=SRDWS):
    if cfg.pmode == 3:
        return f"v_mov_b32 v{vdst}, -1\n s_mov_b64 exec, 3\n v_mov_b32 v{vdst}, 0\n buffer_atomic_add v{vdst}, v{voff}, {sq(srdq)}, {s_off} offen sc0 sc1\n s_mov_b64 exec, -1"
    return f"buffer_load_dword v{vdst}, v{voff}, {sq(srdq)}, {s_off} offen " + ["sc1", "sc0 sc1", "sc0 sc1 nt"][cfg.pmode]
def check(a, name, vdst, voff, s_off, target, srdq=SRDWS):
    a(f"v_cmp_gt_u32 vcc, {target}, v{vdst}\n s_mov_b32 s78, 0\n s_nop 0\n s_cbranch_vccz L_OK_{name}")
    a("PUSHSTATE")
    a.label(f"L_POLL_{name}")
    a(f"""s_sleep {cfg.psleep}
    {probe(vdst, voff, s_off, srdq)}
    s_add_u32 s78, s78, 1
    s_waitcnt vmcnt(0)
    v_cmp_gt_u32 vcc, {target}, v{vdst}
    s_cmp_ge_u32 s78, 0x20000
    s_cbranch_scc1 L_OK_{name}
    s_cbranch_vccnz L_POLL_{name}""")
    a("POPSTATE")
    a.label(f"L_OK_{name}")
def zero_probe(a, vd, vz): a(f"v_mov_b32 v{vz}, 128\n" + probe(vd, vz, "0", SRD4))
def zero_check(a, name, vd, vz): check(a, "z" + name, vd, vz, "0", 1, SRD4)
def zero_wave(a):
    a(f"""v_lshlrev_b32 v8, 4, v1
    v_mov_b32 v16, 0
    v_mov_b32 v17, 0
    v_mov_b32 v18, 0
    v_mov_b32 v19, 0
    s_lshl_b32 s54, s2, 11
    s_mov_b32 s79, 1
    s_mov_b32 s78, 1""")
    args_ready(a)
    a(f"""buffer_store_dwordx4 v[16:19], v8, {sq(SRDWS)}, s54 offen sc1
    buffer_store_dwordx4 v[16:19], v8, {sq(SRDWS)}, s54 offen offset:1024 sc1
    s_waitcnt vmcnt(0)
    s_atomic_add s79, s[{P_DBG}:{P_DBG+1}], 0 glc
    s_waitcnt lgkmcnt(0)
    s_cmp_lg_u32 s79, {NZERO-1}
    s_cbranch_scc1 L_ZW
    s_atomic_add s78, s[{P_DBG}:{P_DBG+1}], 128
    s_waitcnt lgkmcnt(0)""")
    a.label("L_ZW")

def signal(a, s_off, nwaves, ldsaddr, narr=1, rstride=128):
    n = signal.n; signal.n += 1
    a(f"""v_mov_b32 v13, {ldsaddr}
    v_mov_b32 v14, 1
    s_add_u32 s68, s{P_WS}, s{s_off}
    s_addc_u32 s69, s{P_WS+1}, 0
    s_mov_b32 s78, 1
    s_waitcnt vmcnt(0)
    s_mov_b64 exec, 1
    ds_add_rtn_u32 v12, v13, v14
    s_mov_b64 exec, -1
    s_waitcnt lgkmcnt(0)
    v_readfirstlane_b32 s79, v12
    s_cmp_lg_u32 s79, {nwaves-1}
    s_cbranch_scc1 L_SIG_{n}""")
    if narr > 1:
        a(f"""s_mov_b32 s79, 1
        s_atomic_add s79, s[68:69], {WS_CNT} glc
        s_waitcnt lgkmcnt(0)
        s_cmp_lg_u32 s79, {narr-1}
        s_cbranch_scc1 L_SIG_{n}""")
    for r in range(8 if narr > 1 else 1): a(f"s_atomic_add s78, s[68:69], {r*rstride}")
    a("s_waitcnt lgkmcnt(0)")
    a.label(f"L_SIG_{n}")
signal.n = 0

def conv_ids(a):
    a("""s_and_b32 s52, s2, 7
    s_mul_i32 s52, s52, 20
    s_lshr_b32 s53, s2, 3
    s_sub_u32 s53, s53, 12
    s_add_u32 s52, s52, s53""")
def sprefetch(a, p, s_off, n):
    a(f"s_add_u32 s68, s{p}, s{s_off}\n s_addc_u32 s69, s{p+1}, 0")
    for i in range(n): a(f"s_load_dword s79, s[68:69], {128*i}")
    a("s_waitcnt lgkmcnt(0)")

def last_barrier(a, name, n_younger):
    a(f"s_cmp_eq_u32 s{SLD}, 0\n s_cbranch_scc1 L_LB_{name}\n PUSHSTATE\n s_waitcnt vmcnt({n_younger})\n s_barrier\n s_setprio 0\n POPSTATE")
    a.label(f"L_LB_{name}")

G_ACC, G_B, G_X = 16, 96, 176
G_SLOT = 36864
def slot_off(j): return ((j & 1) ^ 1) * G_SLOT
def slot_half(j): return (j % 4) >> 1
def g_ids(a):
    a(f"""s_and_b32 s52, s2, 7
    s_lshr_b32 s53, s2, 3
    s_and_b32 s57, s52, 3
    s_lshl_b32 s57, s57, 2
    s_and_b32 s54, s53, 3
    s_add_u32 s57, s57, s54
    s_lshr_b32 s52, s52, 2
    s_lshr_b32 s54, s53, 2
    s_lshl_b32 s58, s52, 2
    s_add_u32 s58, s58, s54
    s_lshl_b32 s52, s52, 1
    s_add_u32 s52, s52, s54
    s_add_u32 s52, s52, 4
    s_cmp_ge_u32 s54, 4
    s_cselect_b32 s58, s52, s58
    s_lshl_b32 s66, s{SW}, 12
    s_add_u32 s66, s66, 20480""")

def g_setup_x(a):
    if cfg.rot:
        a(f"""s_mul_i32 s62, s57, 3
        s_lshl_b32 s59, s58, 1
        s_add_u32 s62, s62, s59
        s_mul_i32 s59, s62, 205
        s_lshr_b32 s59, s59, 11
        s_mul_i32 s59, s59, 10
        s_sub_u32 s62, s62, s59
        s_lshl_b32 s64, s62, 7
        s_mul_i32 s63, s62, {64*3840}""")
    else:
        a("s_mov_b32 s64, 0\n s_mov_b32 s63, 0")
    a(f"""v_lshrrev_b32 v240, 3, v1
    s_lshl_b32 s59, s57, 7
    s_lshl_b32 s54, s{SW}, 5
    s_add_u32 s59, s59, s54
    v_add_u32 v240, s59, v240
    v_mul_u32_u24 v240, 1280, v240
    v_lshrrev_b32 v241, 4, v1
    v_and_b32 v242, 7, v1
    v_xor_b32 v242, v242, v241
    v_lshl_add_u32 v7, v242, 4, v240
    v_xor_b32 v242, 4, v242
    v_lshl_add_u32 v8, v242, 4, v240
    v_add_u32 v8, {10240-1024}, v8
    v_add_u32 v9, {20480-2048}, v7
    v_add_u32 v10, {20480-2048}, v8""")

def g_setup_w(a):
    a(f"""s_mul_i32 s59, s58, 160
    s_add_u32 s60, s59, 1280
    s_add_u32 s61, s59, {2560-160}
    s_sub_u32 s59, s58, 8
    s_mul_i32 s59, s59, 320
    s_cmp_ge_u32 s58, 8
    s_cselect_b32 s60, s59, s60
    s_cselect_b32 s61, s59, s61
    s_mul_i32 s59, s{SW}, {16*3840}
    s_add_u32 s60, s60, s59
    s_add_u32 s61, s61, s59
    s_mul_i32 s65, s{SW}, 5120""")
    a(f"v_mov_b32 v244, s60\n v_mov_b32 v245, s61")
    for i in range(5):
        assert all(((64 * i + l) * 3277) >> 16 == (64 * i + l) // 20 for l in range(64))
        a(f"""v_add_u32 v240, {64*i}, v1
        v_mul_u32_u24 v241, 3277, v240
        v_lshrrev_b32 v241, 16, v241
        v_mul_u32_u24 v242, 20, v241
        v_sub_u32 v240, v240, v242""")
        if i == 2: a("v_lshrrev_b32 v242, 4, v1\n v_and_b32 v242, 2, v242\n v_xor_b32 v240, v240, v242")
        if i > 2: a("v_xor_b32 v240, 2, v240")
        a(f"""v_cmp_gt_u32 vcc, 10, v240
        v_mul_u32_u24 v241, 3840, v241
        v_lshl_add_u32 v240, v240, 4, v241
        v_cndmask_b32 v242, v245, v244, vcc""")
        if i in (0, 4): a(f"v_add_u32 v{2+i}, v240, v242")
        else: a(f"v_add_u32 v240, v240, v242\n v_subrev_u32 v{2+i}, {1024*i}, v240")

def g_setup2(a):
    a(f"""v_lshrrev_b32 v241, 4, v1
    v_bfe_u32 v242, v1, 2, 2
    v_lshl_add_u32 v242, v241, 3, v242
    v_mul_u32_u24 v242, 320, v242
    v_and_b32 v243, 3, v1
    v_lshl_add_u32 v242, v243, 3, v242
    v_and_b32 v243, 1, v241
    v_lshlrev_b32 v243, 5, v243
    v_add_u32 v9, v242, v243
    v_sub_u32 v10, v242, v243
    v_and_b32 v240, 15, v1
    v_lshrrev_b32 v242, 1, v240
    v_xor_b32 v242, v242, v241
    v_lshlrev_b32 v240, 7, v240
    v_add_u32 v240, s66, v240
    v_lshl_add_u32 v11, v242, 4, v240
    v_xor_b32 v242, 4, v242
    v_lshl_add_u32 v12, v242, 4, v240
    s_mov_b32 s70, {LOG2E}
    s_mov_b32 s71, {EPS}""")
    for k in range(4): a(f"v_add_u32 v{2+k}, {HALF}, v{9+k}")

def g_loadx(j):
    o = [f"s_add_u32 m0, s66, {slot_half(j) * HALF + slot_off(j)}", "s_nop 0"]
    for i in range(4): o.append(f"buffer_load_dwordx4 v{7+i}, {sq(SRD0)}, s64 offen offset:{1024*i} lds ; tag=S{j}")
    o += ["s_add_u32 s64, s64, 128"]
    if cfg.rot: o += ["s_cmp_eq_u32 s64, 1280", "s_cselect_b32 s64, 0, s64"]
    return o
def g_loadw(j):
    base = slot_half(j) * HALF + slot_off(j)
    o = [f"s_add_u32 m0, s65, {base}", "s_nop 0"]
    for i in range(4): o.append(f"buffer_load_dwordx4 v{2+i}, {sq(SRD1)}, s63 offen offset:{1024*i} lds ; tag=S{j}")
    o += [f"s_add_u32 m0, s65, {base + 4096}", "s_nop 0", f"buffer_load_dwordx4 v6, {sq(SRD1)}, s63 offen lds ; tag=S{j}"]
    o += [f"s_add_u32 s63, s63, {64*3840}"]
    if cfg.rot: o += [f"s_cmp_eq_u32 s63, {640*3840}", "s_cselect_b32 s63, 0, s63"]
    return o
def g_xreads(j):
    return [f"ds_read_b128 {v4(G_X + (j&1)*16 + ks*8 + sub*4)}, v{(4 if slot_half(j) else 11)+ks} offset:{slot_off(j) + sub*2048}" for ks in range(2) for sub in range(2)]
def g_reads(t):
    j = t // 2
    o = []
    for n in range(10):
        for h in range(2):
            off = slot_off(j) + (t & 1) * 10240 + h * 1280 + 32 * n
            o.append(f"ds_read_b64_tr_b16 {v2(G_B + (t & 1) * 40 + n * 4 + 2 * h)}, v{(2 if slot_half(j) else 9) + (n & 1)} offset:{off}")
    return o

def role_loader(a):
    a(f"s_setprio {cfg.lprio}")
    g_setup_x(a)
    a("s_waitcnt lgkmcnt(0)")
    srd(a, SRD0, P_X, 2048 * 1280)
    a.extend(g_loadx(0))
    g_setup_w(a)
    srd(a, SRD1, P_W, 640 * 3840)
    seq = []
    for j in range(10): seq += [g_loadx(j), g_loadw(j)]
    pos = 1
    def upto(n):
        nonlocal pos
        while pos < min(n, 20): a.extend(seq[pos]); pos += 1
    upto(cfg.ahead0)
    args_ready(a)
    stamp(a, 1)
    for j in range(9):
        a(f"WAITTAG S{j}")
        if cfg.slab == 2 and j < 8: stamp(a, j + 1, True)
        a("s_barrier")
        if cfg.slab == 1 and j < 8: stamp(a, j + 1, True)
        if j == 0: stamp(a, 2)
        if j == 6: zero_probe(a, 14, 13)
        upto(min(2 * (j + 1) + cfg.ahead, 2 * (j + 4)))
    zero_check(a, "ld", 14, 13)
    a(f"s_mov_b32 s{SLD}, 1")
    stamp(a, 3)

def g_main(a, transposed, tail):
    a("s_waitcnt vmcnt(0) lgkmcnt(0)\n s_barrier")
    stamp(a, 1)
    a.extend(g_xreads(0) + g_reads(0))
    def mfma(t, n, sub):
        j, ks = t // 2, t % 2
        acc = v4(G_ACC + (sub * 10 + n) * 4)
        x = v4(G_X + (j & 1) * 16 + ks * 8 + sub * 4)
        b = v4(G_B + (t & 1) * 40 + n * 4)
        c = "0" if t == 0 else acc
        return f"v_mfma_f32_16x16x32_bf16 {acc}, {b}, {x}, {c}" if transposed else f"v_mfma_f32_16x16x32_bf16 {acc}, {x}, {b}, {c}"
    for t in range(19):
        j, ks = t // 2, t % 2
        mf = [mfma(t, n, sub) for n in range(10) for sub in range(2)]
        rd = g_reads(t + 1)
        if ks == 1:
            rd = g_xreads(j + 1) + rd
            a.extend(mf[:cfg.bpos]); a("s_waitcnt lgkmcnt(0)" + "\n s_barrier")
            a.extend(interleave(mf[cfg.bpos:], rd))
        else:
            a.extend(interleave(mf, rd))
    tail([mfma(19, n, sub) for n in range(10) for sub in range(2)])

def role_q(a):
    a(f"""s_lshl_b32 s52, s57, 3
    s_lshl_b32 s53, s{SW}, 1
    s_add_u32 s52, s52, s53
    s_mul_i32 s52, s52, 20
    s_sub_u32 s53, s58, 8
    s_mul_i32 s54, s53, 5
    s_add_u32 s52, s52, s54
    s_lshl_b32 s52, s52, 10
    s_add_u32 s52, s52, {WS_PQ}
    s_mul_i32 s55, s53, 17
    s_add_u32 s55, s55, s57
    s_lshl_b32 s55, s55, 7
    s_add_u32 s55, s55, {WS_QFLAG}
    v_lshlrev_b32 v6, 4, v1""")
    def tail(mf):
        bar_arrive(a)
        ep = []
        for c in range(5):
            for sub in range(2):
                r0 = G_ACC + (sub * 10 + 2 * c) * 4
                ep += phi_block(list(range(r0, r0 + 8)), list(range(240, 248)))
                d = G_B + (sub * 5 + c) * 4
                ep += [f"v_cvt_pk_bf16_f32 v{d+k}, v{r0+2*k}, v{r0+2*k+1}" for k in range(4)]
                ep += [f"s_add_u32 s54, s52, {(sub*20+c)*1024}", f"buffer_store_dwordx4 {v4(d)}, v6, {sq(SRDWS)}, s54 offen sc1"]
        a.extend(mf[:8])
        a.extend(interleave(mf[8:], ep[:24]))
        stamp(a, 2)
        zero_probe(a, 7, 8)
        a.extend(ep[24:])
    g_main(a, True, tail)
    stamp(a, 3)
    zero_check(a, "q", 7, 8)
    signal(a, 55, 4, L_SIG)
    stamp(a, 4)

def role_kv(a):
    EX, HB = G_SLOT, 0
    DUMP = HB + 4 * 2048
    AD = 208
    a(f"""v_lshlrev_b32 v240, 4, v1
    s_mul_i32 s52, s{SW}, 10240
    s_add_u32 s52, s52, {EX}
    v_add_u32 v{AD+6}, s52, v240
    s_lshl_b32 s52, s{SW}, 10
    s_add_u32 s52, s52, {EX}
    v_add_u32 v{AD+7}, s52, v240
    v_and_b32 v246, 15, v1
    v_lshrrev_b32 v247, 4, v1
    v_lshlrev_b32 v247, 2, v247
    s_lshl_b32 s52, s{SW}, 2
    v_subrev_u32 v246, s52, v246
    v_subrev_u32 v247, s52, v247
    s_lshl_b32 s53, s{SW}, 11
    v_mov_b32 v245, {DUMP}
    v_lshlrev_b32 v{AD+8}, 2, v1
    v_add_u32 v{AD+9}, s53, v{AD+8}""")
    for k in range(4): a(f"v_mov_b32 v{AD+12+k}, 0x3f803f80")
    k = 0
    for dt in range(2):
        for et in range(2):
            a(f"""v_add_u32 v240, {16*dt}, v247
            v_add_u32 v241, {16*et}, v246
            v_max_u32 v242, v240, v241
            v_cmp_gt_u32 vcc, 20, v242
            v_mul_u32_u24 v241, 80, v241
            v_lshl_add_u32 v241, v240, 2, v241
            v_add_u32 v241, s53, v241
            v_cndmask_b32 v{AD+k}, v245, v241, vcc""")
            k += 1
        a(f"""v_add_u32 v240, {16*dt}, v247
        v_and_b32 v241, 15, v1
        v_mul_u32_u24 v241, 20, v241
        v_max_u32 v242, v240, v241
        v_cmp_gt_u32 vcc, 20, v242
        v_lshlrev_b32 v240, 2, v240
        v_add_u32 v240, s53, v240
        v_add_u32 v240, 1600, v240
        v_cndmask_b32 v{AD+4+dt}, v245, v240, vcc""")
    a(f"""s_lshl_b32 s52, s58, 2
    s_add_u32 s52, s52, s{SW}
    s_mul_i32 s52, s52, 1680
    s_add_u32 s52, s52, {WS_KV}
    s_lshl_b32 s55, s58, 7""")
    def tail(mf):
        ep = []
        for t in [0, 1, 5, 2, 6, 7, 3, 8, 9, 4]:
            r0 = G_ACC + t * 4; r1 = G_ACC + (10 + t) * 4
            if t < 5: ep += phi_block(list(range(r0, r0 + 4)) + list(range(r1, r1 + 4)), list(range(240, 248)))
            d = G_B + t * 4
            ep += [f"v_cvt_pk_bf16_f32 v{d}, v{r0}, v{r0+1}", f"v_cvt_pk_bf16_f32 v{d+1}, v{r0+2}, v{r0+3}",
                   f"v_cvt_pk_bf16_f32 v{d+2}, v{r1}, v{r1+1}", f"v_cvt_pk_bf16_f32 v{d+3}, v{r1+2}, v{r1+3}",
                   f"ds_write_b128 v{AD+6}, {v4(d)} offset:{t*1024}"]
        a.extend(mf[:6])
        a.extend(interleave(mf[6:], ep[:28]))
        stamp(a, 2)
        zero_probe(a, 7, 8)
        a.extend(ep[28:])
    g_main(a, False, tail)
    bar_arrive(a); bar_wait(a, True)
    F = 136
    for rg in range(4):
        for q, off in enumerate([0, 5120, 1024, 6144]):
            a(f"ds_read_b128 {v4(F + rg*16 + [0, 2, 1, 3][q]*4)}, v{AD+7} offset:{rg*10240 + off}")
    D = 16
    for rg in range(4):
        for dt in range(2):
            A = v4(F + rg * 16 + dt * 4)
            acc = v4(D + 16 + dt * 4)
            a(f"v_mfma_f32_16x16x32_bf16 {acc}, {A}, {v4(AD+12)}, {'0' if rg == 0 else acc}")
            for et in range(2):
                acc = v4(D + (dt * 2 + et) * 4)
                a(f"v_mfma_f32_16x16x32_bf16 {acc}, {A}, {v4(F + rg*16 + 8 + et*4)}, {'0' if rg == 0 else acc}")
    zero_check(a, "kv", 7, 8)
    for k in [4, 0, 1, 5, 2, 3]: a(f"ds_write_b128 v{AD+k}, {v4(D + 4*k)}")
    for i in range(7): a(f"ds_read_b32 v{48+i}, v{AD+9} offset:{256*i}")
    bar_arrive(a)
    stamp(a, 3)
    for i in range(7):
        if i == 6: a("s_mov_b32 exec_hi, 0xf")
        a(f"buffer_atomic_add_f32 v{48+i}, v{AD+8}, {sq(SRDWS)}, s52 offen offset:{256*i}")
    a("s_mov_b64 exec, -1")
    signal(a, 55, 4, L_SIG, 16, 1024)
    stamp(a, 4)

C_HCOPY = 4224; C_UH = 148; C_WAVE = 2 * C_HCOPY + 2 * C_UH * 16
C_STG = HALF + 4 * C_WAVE; C_STGP = 4160
PV = 224
def role_prep(a):
    a(f"""s_and_b32 s52, s2, 7
    s_lshl_b32 s52, s52, 2
    s_bfe_u32 s53, s2, 0x20004
    s_add_u32 s52, s52, s53
    s_lshl_b32 s52, s52, 6
    s_bfe_u32 s65, s2, 0x10003
    s_mul_i32 s53, s65, 320
    s_sub_u32 s54, s{SW8}, 3
    s_lshl_b32 s55, s{SW8}, 1
    s_cmp_ge_u32 s{SW8}, 3
    s_cselect_b32 s54, s54, s55
    s_lshl_b32 s54, s54, 6
    s_add_u32 s53, s53, s54
    v_lshrrev_b32 v240, 3, v1
    v_lshl_add_u32 v241, v240, 3, s52
    v_and_b32 v242, 7, v1
    v_lshl_add_u32 v243, v242, 3, s53
    v_mul_u32_u24 v241, 1280, v241
    v_lshl_add_u32 v{PV}, v243, 1, v241
    s_movk_i32 s55, 5120""")
    def common2(rev):
        a(f"""v_add_u32 v241, s53, v240
        v_mul_u32_u24 v241, {TP}, v241
        v_lshl_add_u32 v{PV+3}, v242, 4, v241
        s_mul_i32 s54, s{SW}, 20480
        s_mul_i32 s63, s{SGRP}, 10240
        s_add_u32 s54, s54, s63
        v_mul_u32_u24 v241, 1040, v242
        v_add_u32 v241, s54, v241""")
        if rev: a("v_sub_u32 v240, 7, v240")
        a(f"""v_lshl_add_u32 v{PV+4}, v240, 4, v241
        v_lshl_add_u32 v{PV+5}, v1, 4, s54
        s_lshl_b32 s64, s52, 1
        s_mov_b32 s70, 0x05040100
        s_mov_b32 s71, 0x07060302""")
    def rds(R): return [f"ds_read_b128 {v4(R+4*i)}, v{PV+5} offset:{1040*i}" for i in range(8)]
    def sts(R, extra): return [x for i in range(8) for x in (f"s_add_u32 s54, s64, {8*TP*i + extra}", f"buffer_store_dwordx4 {v4(R+4*i)}, v{PV+3}, {sq(SRDWS)}, s54 offen sc1")]
    a(f"s_cmp_lt_u32 s{SW8}, 3\n s_cbranch_scc1 L_PQ")
    tag(a, 3)
    a(f"v_subrev_u32 v{PV+1}, 3840, v{PV}\n v_lshlrev_b32 v{PV+2}, 3, v243\n s_waitcnt lgkmcnt(0)")
    srd(a, SRD0, P_K, 2048 * 1280)
    K, V, C = 16, 60, 92
    for r in range(3): a(f"buffer_load_dwordx4 {v4(K+4*r)}, v{PV+1}, {sq(SRD0)}, 0 offen offset:{1280*r}")
    for r in range(8): a(f"buffer_load_dwordx4 {v4(K+12+4*r)}, v{PV}, {sq(SRD0)}, {'s55' if r >= 4 else '0'} offen offset:{1280*(r%4)}")
    srd(a, SRD1, P_V, 2048 * 1280); srd(a, SRD3, P_SH, 640 * 8)
    for r in range(4): a(f"buffer_load_dwordx4 {v4(C+4*r)}, v{PV+2}, {sq(SRD3)}, 0 offen offset:{16*r}")
    for r in range(8):
        a(f"buffer_load_dwordx4 {v4(V+4*r)}, v{PV}, {sq(SRD1)}, {'s55' if r >= 4 else '0'} offen offset:{1280*(r%4)}")
    args_ready(a)
    common2(True)
    a(f"s_sub_u32 s64, {WS_UT + 1984*2}, s64\n s_mov_b32 s62, 0xffff0000")
    stamp(a, 1)
    P, T, U, O = 108, 120, 184, 192
    for ch in range(8):
        dw, hi = ch // 2, ch % 2
        sel = "s71" if hi else "s70"
        for s_ in range(-2, 8):
            a(f"v_perm_b32 v{P+s_+2}, v{K+4*(s_+2)+dw}, v{K+4*(s_+3)+dw}, {sel}")
        for s_ in range(8): a(f"v_dot2_f32_bf16 v{T+8*ch+s_}, v{P+s_}, v{C+2*ch+1}, 0")
        for s_ in range(8): a(f"v_dot2_f32_bf16 v{T+8*ch+s_}, v{P+s_+2}, v{C+2*ch}, v{T+8*ch+s_}")
    for ch in range(8):
        dw, hi = ch // 2, ch % 2
        for s_ in range(8):
            a(f"v_and_b32 v{U+s_}, s62, v{V+4*s_+dw}" if hi else f"v_lshlrev_b32 v{U+s_}, 16, v{V+4*s_+dw}")
        for s_ in range(8): a(f"v_mul_f32 v{T+8*ch+s_}, v{T+8*ch+s_}, v{U+s_}")
        o = O + 4 * ch
        for j in range(4): a(f"v_cvt_pk_bf16_f32 v{o+j}, v{T+8*ch+7-2*j}, v{T+8*ch+6-2*j}")
        a(f"ds_write_b128 v{PV+4}, {v4(o)} offset:{128*ch}")
    a.extend(rds(16) + sts(16, 0))
    stamp(a, 2)
    zero_probe(a, 3, 4)
    zero_check(a, "pu", 3, 4)
    a("s_waitcnt vmcnt(0)\n s_barrier")
    stamp(a, 3)
    a(f"s_cmp_eq_u32 s{SGRP}, 1\n s_cbranch_scc1 L_CONV")
    a(f"""s_lshl_b32 s65, s65, 10
    s_add_u32 s65, s65, {WS_UFLG}
    s_add_u32 s68, s{P_WS}, s65
    s_addc_u32 s69, s{P_WS+1}, 0
    s_mov_b32 s78, 1
    s_mov_b32 s79, 1
    s_atomic_add s79, s[68:69], {WS_CNT} glc
    s_waitcnt lgkmcnt(0)
    s_cmp_lg_u32 s79, 31
    s_cbranch_scc1 L_B2""")
    for r in range(8): a(f"s_atomic_add s78, s[68:69], {128*r}")
    a("s_waitcnt lgkmcnt(0)\n s_branch L_B2")
    a.label("L_PQ")
    tag(a, 6)
    a(f"s_cmp_lg_u32 s{SW8}, 2\n s_cbranch_scc1 L_PQ0")
    init_wave(a, "p")
    a.label("L_PQ0")
    args_ready(a)
    a("s_waitcnt vmcnt(0)\n s_barrier")
    if cfg.pwait:
        a(f"s_and_b32 s61, s2, 7\n s_lshl_b32 s61, s61, 7\n s_bfe_u32 s54, s2, 0x10002\n s_lshl_b32 s54, s54, 10\n s_add_u32 s61, s61, s54\n s_add_u32 s61, s61, {WS_UFLG}\n v_mov_b32 v12, 0")
        a(probe(15, 12, "s61")); check(a, "pw", 15, 12, "s61", 1)
    stamp(a, 3)
    a("s_branch L_B2")

def conv_head(a, pr=False):
    a(f"""s_and_b32 s52, s2, 7
    s_mul_i32 s52, s52, 20
    s_lshr_b32 s53, s2, 3
    s_and_b32 s61, s2, 7
    s_sub_u32 s53, s53, 12
    s_add_u32 s57, s52, s53
    s_lshl_b32 s58, s57, 2
    s_add_u32 s58, s58, s{SW}
    s_lshl_b32 s59, s58, 12
    s_mul_i32 s60, s{SW}, {C_WAVE}
    s_add_u32 s60, s60, {HALF}
    s_add_u32 s52, s{P_H}, s59
    s_addc_u32 s53, s{P_H+1}, 0
    s_load_dword s66, s[52:53], 0
    s_lshr_b32 s54, s58, 1
    s_lshl_b32 s54, s54, 2
    s_load_dword s67, s[{P_D}:{P_D+1}], s54
    s_lshl_b32 s61, s61, 7
    s_cmp_ge_u32 s57, 80
    s_cselect_b32 s54, 1024, 0
    s_add_u32 s61, s61, s54
    s_add_u32 s61, s61, {WS_UFLG}
    s_lshr_b32 s63, s57, 4
    s_lshl_b32 s63, s63, 10
    s_add_u32 s63, s63, {WS_YFLG}
    v_lshlrev_b32 v2, 4, v1
    v_add_u32 v3, 4, v2
    v_mov_b32 v12, 0""")
    if pr: a(probe(15, 12, "s61"))
    srd(a, SRD0, P_H, 640 * 4096)
    a(f"s_add_u32 m0, s60, 32")
    for i in range(4): a(f"buffer_load_dwordx4 v2, {sq(SRD0)}, s59 offen offset:{1024*i} lds ; tag=H")
    a(f"s_add_u32 m0, s60, {C_HCOPY + 32}")
    for i in range(4): a(f"buffer_load_dwordx4 v3, {sq(SRD0)}, s59 offen offset:{1024*i} lds ; tag=H")
    a("s_waitcnt lgkmcnt(0)")

def role_conv(a):
    ACC, A, RAW, B, QV, UL = 16, 48, 80, 128, 192, 208
    conv_head(a, True)
    last_barrier(a, "conv", 9)
    tag(a, 4)
    stamp(a, 4)
    check(a, "convu", 15, 12, "s61", 1)
    stamp(a, 5)
    a(f"s_mul_i32 s55, s58, {TP}\n s_add_u32 s54, s55, {WS_UT}\n s_add_u32 s55, s55, {WS_YT}")
    for i in range(4): a(f"buffer_load_dwordx4 {v4(UL+4*i)}, v2, {sq(SRDWS)}, s54 offen offset:{1024*i} sc1")
    a(f"""v_and_b32 v8, 15, v1
    v_lshrrev_b32 v9, 4, v1
    v_add_u32 v10, 1, v8
    v_bfe_u32 v11, v10, 1, 1
    v_mul_u32_u24 v11, {C_HCOPY}, v11
    v_lshrrev_b32 v13, 2, v10
    v_lshl_add_u32 v13, v9, 3, v13
    v_lshl_add_u32 v11, v13, 3, v11
    v_add_u32 v4, s60, v11
    v_and_b32 v10, 1, v10
    v_lshlrev_b32 v5, 4, v10
    v_lshlrev_b32 v10, 1, v9
    v_sub_u32 v10, v10, v8
    v_add_u32 v10, 15, v10
    v_lshlrev_b32 v10, 4, v10
    v_add_u32 v6, s60, v10
    v_lshrrev_b32 v10, 1, v1
    v_and_b32 v11, 1, v1
    v_mul_u32_u24 v11, {C_UH}, v11
    v_add_u32 v10, v10, v11
    v_lshlrev_b32 v10, 4, v10
    v_add_u32 v7, s60, v10
    v_mov_b32 v16, 0
    v_mov_b32 v17, 0
    v_mov_b32 v18, 0
    v_mov_b32 v19, 0
    v_and_b32 v10, 1, v9
    v_mul_u32_u24 v10, {C_UH}, v10
    v_add_u32 v10, v10, v8
    v_lshl_add_u32 v20, v10, 4, s60
    v_and_b32 v10, 1, v1
    v_lshlrev_b32 v10, 4, v10
    v_bfe_u32 v11, v1, 1, 1
    v_mul_u32_u24 v11, {C_HCOPY}, v11
    v_add3_u32 v21, v10, v11, s60
    v_lshlrev_b32 v10, 5, v8
    v_lshl_add_u32 v8, v9, 3, v10""")
    a(f"""s_waitcnt lgkmcnt(0)
    s_lshl_b32 s52, s66, 16
    s_lshl_b32 s53, s67, 16
    s_and_b32 s54, s67, 0xffff0000
    s_bitcmp1_b32 s58, 0
    s_cselect_b32 s53, s54, s53
    s_and_b32 s54, s66, 0xffff0000
    v_mov_b32 v10, s52
    v_add_f32 v10, s53, v10
    v_mov_b32 v11, s54
    v_cvt_pk_bf16_f32 v10, v10, v11
    v_mov_b32 v11, s60
    WAITTAG H
    ds_write_b128 v21, v[16:19]
    ds_write_b32 v11, v10 offset:32
    ds_write_b32 v11, v10 offset:{C_HCOPY+28}
    ds_write_b128 v20, v[16:19] offset:{2*C_HCOPY + 128*16}""")
    def raw_slots(i):
        return [(0, 1, 2), (2, 0, 1), (1, 2, 0), (0, 1, 2)][i]
    def raw_reads(it, N1):
        N0, i = it >> 2, it & 3
        sl = raw_slots(i)
        return [f"ds_read_b64 {v2(RAW + N1*6 + 2*sl[k])}, v4 offset:{(2*N1+N0)*256 + (2*i+k)*8}" for k in range(0 if i == 0 else 1, 3)]
    def aligns(it, N1):
        sl = raw_slots(it & 3)
        d = [RAW + N1 * 6 + 2 * sl[0], RAW + N1 * 6 + 2 * sl[0] + 1, RAW + N1 * 6 + 2 * sl[1], RAW + N1 * 6 + 2 * sl[1] + 1, RAW + N1 * 6 + 2 * sl[2]]
        return [f"v_alignbit_b32 v{A + 4*N1 + k}, v{d[k+1]}, v{d[k]}, v5" for k in range(4)]
    def b_reads(it):
        N0, i = it >> 2, it & 3
        return [f"ds_read_b128 {v4(B + (it&1)*32 + 4*dl)}, v6 offset:{2*C_HCOPY + (14-(2*dl-N0))*128 + (i>>1)*16 + (i&1)*C_UH*16}" for dl in range(8)]
    for N1 in range(8): a.extend(raw_reads(0, N1))
    for N1 in range(8):
        a.extend(aligns(0, N1)); a.extend(raw_reads(1, N1))
    for i in range(4): a(f"ds_write_b128 v7, {v4(UL+4*i)} offset:{2*C_HCOPY + 512*i}")
    a.extend(b_reads(0))
    stamp(a, 6)
    queue = []
    for it in range(8):
        if it < 7: queue += b_reads(it + 1)
        for N1 in range(8):
            tg = f"v_alignbit_b32 v{A+4*N1+3},"
            pos = max((k for k, q in enumerate(queue) if q.startswith(tg)), default=-1)
            for q in queue[:pos + 1]: a(q)
            queue = queue[pos + 1:]
            for J in range(N1, 8):
                acc = v4(ACC + 4 * J)
                c = "0" if (it == 0 and N1 == 0) else acc
                a(f"v_mfma_f32_16x16x32_bf16 {acc}, {v4(A+4*N1)}, {v4(B + (it&1)*32 + 4*(J-N1))}, {c}")
                for _ in range(2):
                    if queue: a(queue.pop(0))
            if it < 7: queue += aligns(it + 1, N1)
            if it < 6: queue += raw_reads(it + 2, N1)
        assert not any(q.startswith("ds_read_b128") for q in queue)
    assert not queue
    stamp(a, 7)
    a(f"s_setprio {cfg.eprio}\n v_add_u32 v9, s60, v8\n v_add_u32 v10, s60, v2")
    for J in range(8):
        T = 48 + 2 * J
        a(f"v_cvt_pk_bf16_f32 v{T}, v{ACC+4*J}, v{ACC+4*J+1}\n v_cvt_pk_bf16_f32 v{T+1}, v{ACC+4*J+2}, v{ACC+4*J+3}")
        a(f"ds_write_b64 v9, {v2(T)} offset:{512*J}")
    for i in range(4): a(f"ds_read_b128 {v4(64+4*i)}, v10 offset:{1024*i}")
    for i in range(4): a(f"buffer_store_dwordx4 {v4(64+4*i)}, v2, {sq(SRDWS)}, s55 offen offset:{1024*i} sc1")
    stamp(a, 8)
    signal(a, 63, 4, HALF + L_SIG, 16)

def role_fin(a):
    srd(a, SRD2, P_Q, 2048 * 1280); srd(a, SRD1, P_OUT, 2048 * 2560)
    a(f"""s_setprio {cfg.fprio}
    s_and_b32 s61, s2, 7
    s_lshl_b32 s52, s61, 2
    s_add_u32 s52, s52, s{SW}
    s_lshl_b32 s52, s52, 6
    s_lshr_b32 s53, s2, 3
    s_lshl_b32 s61, s61, 7
    s_lshl_b32 s54, s53, 10
    s_add_u32 s61, s61, s54
    s_add_u32 s61, s61, {WS_YFLG}
    s_lshl_b32 s53, s53, 6
    v_lshrrev_b32 v2, 3, v1
    v_lshl_add_u32 v3, v2, 3, s52
    v_and_b32 v4, 7, v1
    v_lshl_add_u32 v5, v4, 3, s53
    v_mul_u32_u24 v3, 1280, v3
    v_lshl_add_u32 v6, v5, 1, v3
    v_add_u32 v7, v6, v3
    s_movk_i32 s55, 5120""")
    Q, QF, Y, T = 16, 48, 112, 144
    for r in range(8): a(f"buffer_load_dwordx4 {v4(Q+4*r)}, v6, {sq(SRD2)}, {'s55' if r >= 4 else '0'} offen offset:{1280*(r%4)}")
    a(f"""v_add_u32 v3, s53, v2
    v_mul_u32_u24 v3, {TP}, v3
    v_lshl_add_u32 v8, v4, 4, v3
    s_mul_i32 s54, s{SW}, 8448
    s_add_u32 s54, s54, 16384
    v_lshl_add_u32 v9, v1, 4, s54
    v_mul_u32_u24 v3, 1040, v4
    v_lshl_add_u32 v3, v2, 4, v3
    v_add_u32 v10, s54, v3
    s_lshl_b32 s64, s52, 1
    s_add_u32 s64, s64, {WS_YT}
    s_mov_b32 s62, 0xffff0000
    v_mov_b32 v12, 0""")
    for r in range(8):
        for d in range(4):
            a(f"v_lshlrev_b32 v{QF+8*r+2*d}, 16, v{Q+4*r+d}\n v_and_b32 v{QF+8*r+2*d+1}, s62, v{Q+4*r+d}")
    bar_wait(a)
    a(probe(15, 12, "s61"))
    stamp(a, 5)
    check(a, "fin", 15, 12, "s61", 1)
    stamp(a, 6)
    for i in range(8): a(f"s_add_u32 s54, s64, {8*TP*i}\n buffer_load_dwordx4 {v4(Q+4*i)}, v8, {sq(SRDWS)}, s54 offen sc1")
    for i in range(8): a(f"ds_write_b128 v9, {v4(Q+4*i)} offset:{1040*i}")
    for ch in range(8): a(f"ds_read_b128 {v4(Y+4*ch)}, v10 offset:{128*ch}")
    stamp(a, 7)
    a("s_mov_b32 s54, 0")
    for r in range(8):
        t = T + 8 * (r & 1)
        for ch in range(8):
            src = Y + 4 * ch + r // 2
            a(f"v_and_b32 v{t+ch}, s62, v{src}" if r & 1 else f"v_lshlrev_b32 v{t+ch}, 16, v{src}")
        for ch in range(8): a(f"v_mul_f32 v{t+ch}, v{t+ch}, v{QF+8*r+ch}")
        o = 160 + 4 * r
        for d in range(4): a(f"v_cvt_pk_bf16_f32 v{o+d}, v{t+2*d}, v{t+2*d+1}")
        a(f"buffer_store_dwordx4 {v4(o)}, v7, {sq(SRD1)}, s54 offen{OSC()}")
        if r < 7: a("s_add_u32 s54, s54, 2560")

def b2_tables(hf):
    num = {}
    for t in range(5 * hf, 5 * hf + 5):
        hs = {e // 20 for e in range(16 * t, 16 * t + 16)}
        dts = [dt for dt in range(10) if hs & {d // 20 for d in range(16 * dt, 16 * dt + 16)}]
        ch = {}
        for dt in dts: ch.setdefault(dt // 2, []).append(dt)
        num[t] = sorted(ch.items())
    ch = {}
    for dt in range(5 * hf, 5 * hf + 5): ch.setdefault(dt // 2, []).append(dt)
    return num, sorted(ch.items())

B_KS = 8416
NS = 3
def role_b2(a):
    PQ, KV, RAW = 16, 108, 180
    WA = [76 + 4 * n for n in range(8)]
    WB = [228 + 4 * n for n in range(7)] + [8]
    ACC = 108
    U = [180, 204]
    a(f"""s_mul_i32 s57, s56, 205
    s_lshr_b32 s57, s57, 10
    s_mul_i32 s54, s57, 5
    s_sub_u32 s58, s56, s54""")
    assert all((v * 205) >> 10 == v // 5 for v in range(216))
    srd(a, SRD0, P_WO, 640 * 1280)
    a(f"""s_lshl_b32 s59, s58, 8
    s_mul_i32 s52, s{SW}, {160*1280}
    s_add_u32 s59, s59, s52
    s_lshl_b32 s53, s{SW}, 6
    s_mul_i32 s65, s{SW}, 20480
    s_add_u32 s65, s65, s{SLB}
    v_and_b32 v8, 15, v1
    v_lshrrev_b32 v9, 4, v1
    v_lshlrev_b32 v2, 4, v8
    v_xor_b32 v2, s53, v2
    v_mul_u32_u24 v10, {8*1280}, v9
    v_add3_u32 v2, v2, v10, s59""")
    def dma(kstep, slot):
        return [[f"s_add_u32 m0, s65, {slot*B_KS + i*1056}", f"s_mov_b32 s63, {(32*kstep + i)*1280}",
                 f"buffer_load_dwordx4 v2, {sq(SRD0)}, s63 offen lds ; tag=K{kstep}"] for i in range(8)]
    def wreads(slot, dst):
        return [f"ds_read_b64_tr_b16 {v2(dst[n] + 2*h)}, v0 offset:{slot*B_KS + h*512 + 32*n}" for n in range(8) for h in range(2)]
    bar_wait(a)
    for g in dma(0, 0): a.extend(g)
    last_barrier(a, "b2", 8)
    if cfg.gate:
        a(f"s_cmp_eq_u32 s{SLD}, 0\n s_cbranch_scc1 L_GT\n v_mov_b32 v13, {L_BAR}")
        a.label("L_GTW")
        a("s_sleep 4\n ds_read_b32 v14, v13\n s_waitcnt lgkmcnt(0)\n v_cmp_gt_u32 vcc, 8, v14\n s_nop 1\n s_cbranch_vccnz L_GTW")
        a.label("L_GT")
    for g in dma(1, 1): a.extend(g)
    a(f"s_setprio {cfg.cprio}")
    srd(a, SRD1, P_OUT, 2048 * 2560)
    a(f"""v_bfe_u32 v10, v1, 2, 3
    v_mul_u32_u24 v10, 1056, v10
    v_lshrrev_b32 v11, 5, v1
    v_lshl_add_u32 v10, v11, 8, v10
    v_and_b32 v11, 3, v1
    v_lshl_add_u32 v10, v11, 3, v10
    v_add_u32 v0, s65, v10
    s_add_u32 s64, s65, {2*B_KS}
    v_lshlrev_b32 v9, 3, v9
    v_mul_u32_u24 v3, 40, v8
    v_add3_u32 v3, v3, v9, s64
    v_mul_u32_u24 v4, 800, v11
    v_add3_u32 v4, v4, v9, s64
    v_lshlrev_b32 v5, 4, v1
    v_lshlrev_b32 v6, 3, v1
    v_add_u32 v6, s64, v6
    v_add_u32 v7, 4096, v5
    s_mul_i32 s52, s57, 3
    s_lshr_b32 s53, s52, 3
    s_add_u32 s54, s52, 2
    s_min_u32 s54, s54, 127
    s_lshr_b32 s54, s54, 3
    s_sub_u32 s54, s54, s53
    s_lshl_b32 s54, s54, 7
    v_and_b32 v12, 1, v1
    v_lshlrev_b32 v13, 7, v12
    v_mul_u32_u24 v12, s54, v12
    s_mul_i32 s60, s{SW}, 17
    s_add_u32 s60, s60, s53
    s_lshl_b32 s60, s60, 7
    s_add_u32 s60, s60, {WS_QFLAG}
    s_and_b32 s61, s2, 7
    s_lshl_b32 s61, s61, 10
    s_lshl_b32 s53, s{SW}, 8
    s_add_u32 s61, s61, s53
    s_mul_i32 s52, s52, 20480
    s_mul_i32 s53, s{SW}, 5120
    s_add_u32 s52, s52, s53
    s_add_u32 s52, s52, {WS_PQ}
    s_mul_i32 s62, s{SW}, {8*1680}
    s_add_u32 s62, s62, {WS_KV}
    s_mov_b32 s73, {EPS}
    s_mov_b32 s66, 0xffff0000
    s_mov_b32 s67, -1
    s_mov_b32 s68, 0
    s_mov_b32 s69, -1
    s_mov_b32 s70, 0
    s_mov_b32 s71, 0xffff0000""")
    for r in range(KV, KV + 72): a(f"v_mov_b32 v{r}, 0")
    a("WAITTAG K0")
    a.extend(wreads(0, WA))
    a("s_waitcnt lgkmcnt(0)")
    for g in dma(2, 0): a.extend(g)
    a("WAITTAG K1")
    a.extend(wreads(1, WB))
    a("s_waitcnt lgkmcnt(0)")
    for g in dma(3, 1): a.extend(g)
    a(probe(14, 12, "s60"))
    stamp(a, 5)
    check(a, "b2q", 14, 12, "s60", 1)
    for sub in range(NS):
        for c in range(5):
            a(f"buffer_load_dwordx4 {v4(PQ + (sub*5+c)*4)}, v{5 if c < 4 else 7}, {sq(SRDWS)}, s52 offen offset:{1024*(c%4)} sc1")
        if sub < NS - 1: a("s_add_u32 s52, s52, 20480")
    a(probe(14, 13, "s61"))
    check(a, "b2kv", 14, 13, "s61", 1)
    stamp(a, 6)
    raw = [RAW + 4 * i for i in range(12)] + [KV + 64, KV + 68]
    for hf in range(2):
        for i in range(7):
            a(f"buffer_load_dwordx4 {v4(raw[hf*7+i])}, v{5 if i < 4 else 7}, {sq(SRDWS)}, s62 offen offset:{1024*(i%4)} sc1")
        if hf == 0: a("s_add_u32 s62, s62, 6720")
    for r in range(4): a(f"v_mov_b32 v{12+r}, s73")
    qi = {}
    tabs = [b2_tables(0), b2_tables(1)]
    def build_half(hf):
        o = []
        for i in range(7):
            r = raw[hf * 7 + i]
            o += [f"v_cvt_pk_bf16_f32 v{r}, v{r}, v{r+1}", f"v_cvt_pk_bf16_f32 v{r+1}, v{r+2}, v{r+3}", f"ds_write_b64 v6, {v2(r)} offset:{512*i}"]
        if hf == 1: o += [f"v_mov_b32 v{KV+64+k}, 0" for k in range(8)]
        num, den = tabs[hf]
        quads = [("z", hf, dt) for c, dts in den for dt in dts] + [("n", t, dt) for t in num for c, dts in num[t] for dt in dts]
        assert len(quads) == 18
        rd = []
        for (kind, t, dt) in quads:
            q = len(qi); qi[(kind, t, dt)] = q
            mask = 0
            for l in range(64):
                i, g = l & 15, l >> 4
                hd = (16 * dt + 4 * g) // 20
                he = (16 * t + i) // 20 if kind == "n" else (i & 3) + 4 * t
                if hd == he: mask |= 1 << l
            off = 640 * (t - 5 * hf) + 32 * (dt - 5 * hf) if kind == "n" else 800 + 32 * (dt - 5 * hf)
            rd.append([f"s_mov_b32 exec_lo, {mask & 0xffffffff:#x}", f"s_mov_b32 exec_hi, {mask >> 32:#x}", f"ds_read_b64 {v2(KV + 2*q)}, v{3 if kind == 'n' else 4} offset:{off}"])
        return o, rd
    def omf(sub, hf, T):
        o = []
        num, den = tabs[hf]
        def one(kind, t, lst, acc):
            lst = sorted(lst, key=lambda x: len(x[1]))
            for k, (c, dts) in enumerate(lst):
                src = v4(acc) if k else ("v[12:15]" if kind == "z" else "0")
                kv = KV + 2 * qi[(kind, t, dts[0])]
                pq = PQ + (sub * 5 + c) * 4
                key = (min(k, 1), 0 if kind == "z" else 1, t, k)
                if len(dts) == 2: o.append((key, f"v_mfma_f32_16x16x32_bf16 {v4(acc)}, {v4(kv)}, {v4(pq)}, {src}"))
                else: o.append((key, f"v_mfma_f32_16x16x16_bf16 {v4(acc)}, {v2(kv)}, {v2(pq + 2*(dts[0]&1))}, {src}"))
        one("z", hf, den, T)
        for t in num: one("n", t, num[t], T + 4 + 4 * (t - 5 * hf))
        return [x for _, x in sorted(o)]
    def ovalu(sub, hf, T):
        o = []
        for r in range(4): o.append(f"v_rcp_f32 v{T+r}, v{T+r}")
        for tl in range(5):
            t = tl + 5 * hf
            h0 = (16 * tl) // 20; h1 = (16 * tl + 12) // 20
            rc = T + h0; n = T + 4 + 4 * tl
            if h0 != h1:
                g0 = min(g for g in range(4) if (16 * tl + 4 * g) // 20 == h1)
                o.append(f"v_cndmask_b32 v{rc}, v{T+h0}, v{T+h1}, s[{64+2*g0}:{65+2*g0}]")
            for r in range(4): o.append(f"v_mul_f32 v{n+r}, v{n+r}, v{rc}")
            d = PQ + (sub * 5 + t // 2) * 4 + 2 * (t & 1)
            o.append(f"v_cvt_pk_bf16_f32 v{d}, v{n}, v{n+1}")
            o.append(f"v_cvt_pk_bf16_f32 v{d+1}, v{n+2}, v{n+3}")
        return o
    def acc(sub, n): return ACC + (n * NS + sub) * 4
    def g2(k, W, ns=range(8)):
        return [f"v_mfma_f32_16x16x32_bf16 {v4(acc(sub, n))}, {v4(W[n])}, {v4(PQ + (sub*5+k)*4)}, {'0' if k == 0 else v4(acc(sub, n))}" for n in ns for sub in range(NS)]
    units = [(s_, h) for h in range(2) for s_ in range(NS)]
    nu = len(units)
    w0, r0 = build_half(0)
    a.extend(w0)
    for g in r0: a.extend(g)
    a("s_mov_b64 exec, -1")
    w1, r1 = build_half(1)
    a.extend(w1)
    r1g = [r1[k] + r1[k + 1] + ["s_mov_b64 exec, -1"] for k in range(0, 18, 2)]
    a.extend(interleave(omf(*units[0], U[0]), r1g, 1, 11))
    stamp(a, 7)
    for u in range(1, nu):
        a.extend(interleave(omf(*units[u], U[u & 1]), ovalu(*units[u - 1], U[(u - 1) & 1]), 2))
    a.extend(interleave(g2(0, WA), ovalu(*units[nu - 1], U[(nu - 1) & 1]), 2))
    k1 = g2(1, WB)
    a.extend(interleave(k1[:10], wreads(0, WA), 0, 8))
    a("s_waitcnt lgkmcnt(0)")
    a.extend(interleave(k1[10:], dma(4, 0), 0, 10))
    ad = []
    for gam in range(1, 4):
        ad += [f"s_xor_b32 s52, s{SW}, {gam}", "s_mul_i32 s52, s52, 20480", f"s_add_u32 s52, s52, {(gam-1)*6144}", f"s_add_u32 s52, s52, s{SLB}", f"v_add_u32 v{203+gam}, s52, v5"]
    ad += f"""v_add_u32 v207, s65, v5
    s_add_u32 s53, s65, 18432
    v_and_b32 v12, 15, v1
    v_mul_u32_u24 v12, 80, v12
    v_lshrrev_b32 v3, 4, v1
    v_lshl_add_u32 v12, v3, 3, v12
    v_add_u32 v12, s53, v12
    v_lshrrev_b32 v3, 2, v1
    v_and_b32 v4, 3, v1
    v_lshlrev_b32 v4, 4, v4
    v_mul_u32_u24 v15, 80, v3
    v_add3_u32 v15, v15, v4, s53
    s_mul_i32 s52, s57, 48
    v_add_u32 v3, s52, v3
    v_mul_u32_u24 v3, 2560, v3
    v_add_u32 v3, v3, v4
    s_lshl_b32 s52, s58, 8
    s_lshl_b32 s54, s{SW}, 6
    s_add_u32 s52, s52, s54
    s_add_u32 s52, s52, 1280""".split("\n")
    a.extend(interleave(interleave(g2(2, WA), wreads(1, WB), 0, 16), ad))
    pre = g2(3, WB, [0, 1, 2, 3])
    a.extend(pre[:4]); a("WAITTAG K4")
    rd4 = wreads(0, WA); rd4 = rd4[4:] + rd4[:4]
    a.extend(interleave(pre[4:], rd4))
    def wr(gam): return [f"ds_write_b128 v207, {v4(ACC + (gam*6+k)*4)} offset:{(gam-1)*6144 + 1024*k}" for k in range(6)]
    a.extend(g2(4, WA, [2, 3]))
    a.extend(interleave(g2(3, WB, [4, 5]) + g2(4, WA, [4, 5]), wr(1), 2))
    a.extend(interleave(g2(3, WB, [6, 7]) + g2(4, WA, [6, 7]), wr(2), 2))
    a.extend(interleave(g2(4, WA, [0, 1]), wr(3), 2))
    stamp(a, 8)
    bar_arrive(a); bar_wait(a, True)
    R = 16
    order = [n * NS + sub for sub in range(NS) for n in range(2)]
    for k in order:
        for gam in range(3): a(f"ds_read_b128 {v4(R + (k*3+gam)*4)}, v{204+gam} offset:{1024*k}")
    for k in order:
        n, sub = k // NS, k % NS
        for r in range(4): a(f"v_add_f32 v{ACC+4*k+r}, v{ACC+4*k+r}, v{R+(k*3)*4+r}")
        for r in range(4): a(f"v_add_f32 v{R+(k*3+1)*4+r}, v{R+(k*3+1)*4+r}, v{R+(k*3+2)*4+r}")
        for r in range(4): a(f"v_add_f32 v{ACC+4*k+r}, v{ACC+4*k+r}, v{R+(k*3+1)*4+r}")
        a(f"v_cvt_pk_bf16_f32 v{140+2*k}, v{ACC+4*k}, v{ACC+4*k+1}\n v_cvt_pk_bf16_f32 v{141+2*k}, v{ACC+4*k+2}, v{ACC+4*k+3}")
        a(f"ds_write_b64 v12, {v2(140+2*k)} offset:{32*n}")
        if n == 1:
            a(f"ds_read_b128 {v4(160+4*sub)}, v15")
            if sub > 0:
                a(f"buffer_store_dwordx4 {v4(160+4*(sub-1))}, v3, {sq(SRD1)}, s52 offen{OSC()}\n s_add_u32 s52, s52, {16*2560}")
    a(f"buffer_store_dwordx4 {v4(160+4*(NS-1))}, v3, {sq(SRD1)}, s52 offen{OSC()}")

def OSC(): return ["", " sc1", " nt", " sc0 sc1"][cfg.osc]

def kd(name):
    return f""".p2align 6
.amdhsa_kernel {name}
  .amdhsa_next_free_vgpr 256
  .amdhsa_next_free_sgpr 102
  .amdhsa_accum_offset 256
  .amdhsa_group_segment_fixed_size 0
  .amdhsa_kernarg_size 96
  .amdhsa_user_sgpr_count 2
  .amdhsa_user_sgpr_kernarg_segment_ptr 1
  .amdhsa_system_sgpr_workgroup_id_x 1
  .amdhsa_float_denorm_mode_32 3
.end_amdhsa_kernel"""

def head(name): return f".globl {name}\n.p2align 8\n.type {name},@function"

def build():
    k = KN + "_kernel"
    a = Asm()
    a(head(k)); prologue(a, k, 256)
    a("s_cmp_ge_u32 s2, 192\n s_cbranch_scc1 L_P")
    g_ids(a)
    a(f"s_cmp_eq_u32 s{SGRP}, 0\n s_cbranch_scc1 L_CONS")
    tag(a, 7)
    role_loader(a)
    a("s_cmp_ge_u32 s2, 96\n s_cbranch_scc1 L_CONV\n s_branch L_B2")
    a.label("L_CONS")
    a(f"s_cmp_lg_u32 s{SW}, 0\n s_cbranch_scc1 L_ZW\n s_cmp_ge_u32 s2, {NZERO}\n s_cbranch_scc1 L_ZW")
    zero_wave(a)
    a(f"s_cmp_lg_u32 s{SW}, 3\n s_cbranch_scc1 L_CONS1")
    init_wave(a, "g")
    a.label("L_CONS1")
    a(f"s_setprio {cfg.cprio}")
    args_ready(a)
    g_setup2(a)
    a("s_cmp_ge_u32 s58, 8\n s_cbranch_scc1 L_Q")
    tag(a, 1); role_kv(a)
    a("s_cmp_ge_u32 s2, 80\n s_cbranch_scc1 L_FIN")
    tag(a, 8); role_fin(a); a("s_branch L_FIN")
    a.label("L_Q"); tag(a, 2); role_q(a); a("s_branch L_B2")
    a.label("L_P"); role_prep(a)
    a.label("L_CONV"); role_conv(a)
    if cfg.enc == 49: a("s_waitcnt vmcnt(0)"); stamp(a, 9)
    a("s_branch L_FIN")
    a.label("L_B2")
    a("""s_lshr_b32 s53, s2, 3
    s_sub_u32 s54, s53, 4
    s_cmp_lt_u32 s53, 12
    s_cselect_b32 s53, s53, s54
    s_cmp_ge_u32 s53, 27
    s_cbranch_scc1 L_FIN
    s_and_b32 s56, s2, 7
    s_mul_i32 s56, s56, 27
    s_add_u32 s56, s56, s53
    s_cmp_ge_u32 s56, 215
    s_cbranch_scc1 L_FIN""")
    tag(a, 5); role_b2(a)
    if cfg.enc == 59: a("s_waitcnt vmcnt(0)"); stamp(a, 9)
    a.label("L_FIN"); stamps_out(a)
    if cfg.enc:
        a("s_waitcnt vmcnt(0) lgkmcnt(0)")
        a.label("L_SPIN")
        a("s_memrealtime s[94:95]\n s_waitcnt lgkmcnt(0)\n s_sub_u32 s94, s94, s96\n s_cmp_lt_u32 s94, 6000\n s_cbranch_scc1 L_SPIN")
    a.label("L_END"); a("s_endpgm")
    launch = [f"; @launch grid=(256,1,1) block=(512,1,1) lds={LDS_BYTES}"]
    return launch, a, [k]

def emit(path, launch, a, kernels, verbose=False):
    body = fix_hazards(insert_waits(a.lines), verbose)
    out = list(launch) + ['.amdgcn_target "amdgcn-amd-amdhsa--gfx950"', ".text", ".p2align 8", "L_CODE_BEGIN:"]
    out += [(l if l.endswith(":") or l.startswith(".") else "    " + l) for l in body]
    out += ["L_CODE_END:", "    s_endpgm", '.section .rodata,"a"'] + [kd(k) for k in kernels]
    open(path, "w").write("\n".join(out) + "\n")

if __name__ == "__main__":
    cfg.stamps = "stamps" in sys.argv[2:]
    cfg.rot = "norot" not in sys.argv[2:]
    for x in sys.argv[2:]:
        if "=" in x: setattr(cfg, x.split("=")[0], int(x.split("=")[1]))
    emit(sys.argv[1], *build(), verbose="-v" in sys.argv)
```

```python
import sys
sys.path.insert(0, "dev")
from asmlib import *

KN = "concat_heads__ssm_conv_h3__linear_attn_block__prompt"
WS_KVFLG = 0x0000
WS_YFLG  = 0x2000
WS_UFLG  = 0x4800
WS_QFLAG = 0x5000
WS_CNT   = 0x8000
WS_KV    = 0xD000
NZERO    = 56
TP = 4224
WS_UT    = 0x100000
WS_YT    = 0x400000
WS_PQ    = 0x700000
WS_STAMP = 0xA00000
WS_SIZE  = 0xB00000
LDS_BYTES = 163840
HALF = 81920
L_BAR = HALF - 64
L_SIG = HALF - 60
SGRP, SLB, SBT, SW8, SLD = 74, 75, 76, 77, 72
LOG2E = 0x3FB8AA3B
EPS = 0x358637BD

P_Q, P_K, P_V, P_SH, P_H, P_D, P_X, P_W, P_WO, P_OUT, P_DBG, P_WS = [4 + 2 * i for i in range(12)]
SRD0, SRD1, SRD2, SRD3, SRD4, SRDWS = 28, 32, 36, 40, 44, 48
SW = 3

def srd(a, d, p, nbytes):
    a(f"s_mov_b32 s{d}, s{p}\n s_and_b32 s{d+1}, s{p+1}, 0xffff\n s_mov_b32 s{d+2}, {nbytes}\n s_mov_b32 s{d+3}, 0x20000")
def sq(d): return f"s[{d}:{d+3}]"
def v4(r): return f"v[{r}:{r+3}]"
def v2(r): return f"v[{r}:{r+1}]"

class Cfg:
    stamps = False
    rot = False
    gonly = 0
    ahead0 = 4
    ahead = 4
    bpos = 3
    lprio = 3
    cprio = 2
    psleep = 4
    qlate = 3
    pprio = 0
    qit = 6
    tlb = 0
    pwait = 1
    eprio = 3
    fprio = 3
    qrel = 8
    qst = 1
    osc = 0
    gate = 1
    usig = 4
    qbar = 1
    spf = 0
    slab = 0
    enc = 0
    role = 0
    pmode = 0
    x_noq = 0
    x_plain = 0
    x_pend = 0
    x_nost = 0
cfg = Cfg()

NSTAMP = 10
def stamp(a, i, force=False):
    if cfg.slab and not force and i != NSTAMP - 1 and cfg.role in (7, 4, 5): return
    if cfg.enc and cfg.enc == cfg.role * 10 + i:
        a("s_memrealtime s[96:97]\n s_waitcnt lgkmcnt(0)")
    if cfg.stamps:
        a(f"s_memrealtime s[{80+2*i}:{81+2*i}]\n s_waitcnt lgkmcnt(0)")
def stamps_out(a):
    if not cfg.stamps: return
    a("s_waitcnt vmcnt(0) lgkmcnt(0)")
    stamp(a, NSTAMP - 1)
    a("s_memtime s[70:71]\n s_waitcnt lgkmcnt(0)\n s_sub_u32 s101, s70, s101")
    a(f"s_getreg_b32 s52, hwreg(HW_REG_HW_ID)\n s_getreg_b32 s53, hwreg(HW_REG_XCC_ID)")
    for i in range(NSTAMP): a(f"v_mov_b32 v{16+i}, s{80+2*i}")
    a(f"v_mov_b32 v26, s52\n v_mov_b32 v27, s53\n v_mov_b32 v28, s100\n v_mov_b32 v29, s2\n v_mov_b32 v30, s101\n v_mov_b32 v31, 0")
    a(f"s_lshl_b32 s54, s2, 9\n s_lshl_b32 s55, s{SW8}, 6\n s_add_u32 s54, s54, s55\n s_add_u32 s54, s54, {WS_STAMP}")
    a(f"v_mov_b32 v32, 0\n s_mov_b64 exec, 1")
    for i in range(4): a(f"buffer_store_dwordx4 {v4(16+4*i)}, v32, {sq(SRDWS)}, s54 offen offset:{16*i}")
    a("s_mov_b64 exec, -1")
def tag(a, t):
    cfg.role = t
    if cfg.stamps: a(f"s_lshl_b32 s100, s100, 4\n s_add_u32 s100, s100, {t}")

def prologue(a, name, nwg):
    a.label(name)
    if cfg.enc: a("s_memrealtime s[98:99]\n s_memrealtime s[96:97]")
    a(f"""s_load_dwordx16 s[4:19], s[0:1], 0
    s_load_dwordx8 s[20:27], s[0:1], 64
    s_cmp_ge_u32 s2, {nwg}
    s_cbranch_scc1 L_END
    v_and_b32 v1, 63, v0
    v_lshrrev_b32 v2, 6, v0
    s_mov_b32 s{SBT}, 0
    v_readfirstlane_b32 s{SW8}, v2
    v_mov_b32 v12, 0
    s_mov_b32 s{SLD}, 0""")
    if cfg.stamps:
        for i in range(NSTAMP): a(f"s_mov_b32 s{80+2*i}, 0")
        a("s_mov_b32 s100, 0\n s_memrealtime s[80:81]\n s_memtime s[98:99]")
    a(f"""s_and_b32 s{SW}, s{SW8}, 3
    s_lshr_b32 s{SGRP}, s{SW8}, 2
    s_mul_i32 s{SLB}, s{SGRP}, {HALF}""")

def init_wave(a, name):
    a("s_getpc_b64 s[52:53]")
    a.label(f"L_PC{name}")
    a(f"""s_lshr_b32 s54, s2, 3
    s_and_b32 s54, s54, 7
    s_lshl_b32 s54, s54, 13
    v_lshlrev_b32 v3, 7, v1
    v_add_u32 v3, s54, v3
    s_sub_u32 s52, s52, L_PC{name}-L_CODE_BEGIN
    s_subb_u32 s53, s53, 0
    v_min_u32 v3, L_CODE_END-L_CODE_BEGIN-4, v3
    global_load_dword v15, v3, s[52:53]""")
    lds_init(a)
    if cfg.tlb:
        n = cfg.tlb
        a(f"s_waitcnt lgkmcnt(0)\n s_mov_b64 exec, {(1 << n) - 1}")
        for k, (p, size) in enumerate(((P_WS, WS_STAMP), (P_OUT, 2048 * 2560), (P_Q, 2048 * 1280), (P_H, 640 * 4096), (P_WO, 640 * 1280))):
            st = (size - 128) // (n - 1) // 128 * 128
            a(f"s_mov_b32 s54, {st}\n v_mul_lo_u32 v3, v1, s54\n global_load_dword v{250+k}, v3, s[{p}:{p+1}]")
        a("s_mov_b64 exec, -1")

def lds_init(a):
    a(f"""v_and_b32 v4, 15, v1
    v_lshlrev_b32 v4, 2, v4
    v_bfe_u32 v5, v1, 4, 1
    v_mul_u32_u24 v5, {HALF}, v5
    v_add_u32 v4, v4, v5
    v_add_u32 v4, {L_BAR}, v4
    v_mov_b32 v5, 0
    ds_write_b32 v4, v5""")

def args_ready(a):
    a("s_waitcnt lgkmcnt(0)")
    if cfg.stamps: a("s_mov_b32 s101, s98")
    srd(a, SRDWS, P_WS, WS_SIZE if cfg.stamps else WS_STAMP)
    srd(a, SRD4, P_DBG, 256)

def bar_arrive(a):
    a(f"""v_mov_b32 v13, s{SLB}
    v_mov_b32 v14, 1
    v_add_u32 v13, {L_BAR}, v13
    s_add_u32 s{SBT}, s{SBT}, 4
    s_mov_b64 exec, 1
    ds_add_u32 v13, v14
    s_mov_b64 exec, -1""")
def bar_wait(a, addr_ok=False):
    n = bar_wait.n; bar_wait.n += 1
    if not addr_ok: a(f"v_mov_b32 v13, s{SLB}\n v_add_u32 v13, {L_BAR}, v13")
    a.label(f"L_BW_{n}")
    a(f"""ds_read_b32 v14, v13
    s_waitcnt lgkmcnt(0)
    v_cmp_gt_u32 vcc, s{SBT}, v14
    s_nop 1
    s_cbranch_vccnz L_BW_{n}""")
bar_wait.n = 0

def phi_block(regs_, temps):
    out = []
    n = len(temps)
    for g in range(0, len(regs_), n):
        grp = regs_[g:g + n]
        for r, t in zip(grp, temps): out.append(f"v_mul_f32 v{t}, s70, v{r}")
        for r, t in zip(grp, temps): out.append(f"v_exp_f32 v{t}, v{t} clamp"); out.append(f"v_max_f32 v{r}, s71, v{r}")
        for r, t in zip(grp, temps): out.append(f"v_add_f32 v{r}, v{r}, v{t}")
    return out

def probe(vdst, voff, s_off, srdq=SRDWS):
    if cfg.pmode == 3:
        return f"v_mov_b32 v{vdst}, -1\n s_mov_b64 exec, 3\n v_mov_b32 v{vdst}, 0\n buffer_atomic_add v{vdst}, v{voff}, {sq(srdq)}, {s_off} offen sc0 sc1\n s_mov_b64 exec, -1"
    return f"buffer_load_dword v{vdst}, v{voff}, {sq(srdq)}, {s_off} offen " + ["sc1", "sc0 sc1", "sc0 sc1 nt"][cfg.pmode]
def check(a, name, vdst, voff, s_off, target, srdq=SRDWS):
    a(f"v_cmp_gt_u32 vcc, {target}, v{vdst}\n s_mov_b32 s78, 0\n s_nop 0\n s_cbranch_vccz L_OK_{name}")
    a("PUSHSTATE")
    a.label(f"L_POLL_{name}")
    a(f"""s_sleep {cfg.psleep}
    {probe(vdst, voff, s_off, srdq)}
    s_add_u32 s78, s78, 1
    s_waitcnt vmcnt(0)
    v_cmp_gt_u32 vcc, {target}, v{vdst}
    s_cmp_ge_u32 s78, 0x20000
    s_cbranch_scc1 L_OK_{name}
    s_cbranch_vccnz L_POLL_{name}""")
    a("POPSTATE")
    a.label(f"L_OK_{name}")
def zero_probe(a, vd, vz): a(f"v_mov_b32 v{vz}, 128\n" + probe(vd, vz, "0", SRD4))
def zero_check(a, name, vd, vz): check(a, "z" + name, vd, vz, "0", 1, SRD4)
def zero_wave(a):
    a(f"""v_lshlrev_b32 v8, 4, v1
    v_mov_b32 v16, 0
    v_mov_b32 v17, 0
    v_mov_b32 v18, 0
    v_mov_b32 v19, 0
    s_lshl_b32 s54, s2, 11
    s_mov_b32 s79, 1
    s_mov_b32 s78, 1""")
    args_ready(a)
    a(f"""buffer_store_dwordx4 v[16:19], v8, {sq(SRDWS)}, s54 offen sc1
    buffer_store_dwordx4 v[16:19], v8, {sq(SRDWS)}, s54 offen offset:1024 sc1
    s_waitcnt vmcnt(0)
    s_atomic_add s79, s[{P_DBG}:{P_DBG+1}], 0 glc
    s_waitcnt lgkmcnt(0)
    s_cmp_lg_u32 s79, {NZERO-1}
    s_cbranch_scc1 L_ZW
    s_atomic_add s78, s[{P_DBG}:{P_DBG+1}], 128
    s_waitcnt lgkmcnt(0)""")
    a.label("L_ZW")

def signal(a, s_off, nwaves, ldsaddr, narr=1, rstride=128):
    n = signal.n; signal.n += 1
    a(f"""v_mov_b32 v13, {ldsaddr}
    v_mov_b32 v14, 1
    s_add_u32 s68, s{P_WS}, s{s_off}
    s_addc_u32 s69, s{P_WS+1}, 0
    s_mov_b32 s78, 1
    s_waitcnt vmcnt(0)
    s_mov_b64 exec, 1
    ds_add_rtn_u32 v12, v13, v14
    s_mov_b64 exec, -1
    s_waitcnt lgkmcnt(0)
    v_readfirstlane_b32 s79, v12
    s_cmp_lg_u32 s79, {nwaves-1}
    s_cbranch_scc1 L_SIG_{n}""")
    if narr > 1:
        a(f"""s_mov_b32 s79, 1
        s_atomic_add s79, s[68:69], {WS_CNT} glc
        s_waitcnt lgkmcnt(0)
        s_cmp_lg_u32 s79, {narr-1}
        s_cbranch_scc1 L_SIG_{n}""")
    for r in range(8 if narr > 1 else 1): a(f"s_atomic_add s78, s[68:69], {r*rstride}")
    a("s_waitcnt lgkmcnt(0)")
    a.label(f"L_SIG_{n}")
signal.n = 0

def conv_ids(a):
    a("""s_and_b32 s52, s2, 7
    s_mul_i32 s52, s52, 20
    s_lshr_b32 s53, s2, 3
    s_sub_u32 s53, s53, 12
    s_add_u32 s52, s52, s53""")
def sprefetch(a, p, s_off, n):
    a(f"s_add_u32 s68, s{p}, s{s_off}\n s_addc_u32 s69, s{p+1}, 0")
    for i in range(n): a(f"s_load_dword s79, s[68:69], {128*i}")
    a("s_waitcnt lgkmcnt(0)")

def last_barrier(a, name, n_younger):
    a(f"s_cmp_eq_u32 s{SLD}, 0\n s_cbranch_scc1 L_LB_{name}\n PUSHSTATE\n s_waitcnt vmcnt({n_younger})\n s_barrier\n s_setprio 0\n POPSTATE")
    a.label(f"L_LB_{name}")

G_ACC, G_B, G_X = 16, 96, 176
G_SLOT = 36864
def slot_off(j): return ((j & 1) ^ 1) * G_SLOT
def slot_half(j): return (j % 4) >> 1
def g_ids(a):
    a(f"""s_and_b32 s52, s2, 7
    s_lshr_b32 s53, s2, 3
    s_and_b32 s57, s52, 3
    s_lshl_b32 s57, s57, 2
    s_and_b32 s54, s53, 3
    s_add_u32 s57, s57, s54
    s_lshr_b32 s52, s52, 2
    s_lshr_b32 s54, s53, 2
    s_lshl_b32 s58, s52, 2
    s_add_u32 s58, s58, s54
    s_lshl_b32 s52, s52, 1
    s_add_u32 s52, s52, s54
    s_add_u32 s52, s52, 4
    s_cmp_ge_u32 s54, 4
    s_cselect_b32 s58, s52, s58
    s_lshl_b32 s66, s{SW}, 12
    s_add_u32 s66, s66, 20480""")

def g_setup_x(a):
    if cfg.rot:
        a(f"""s_mul_i32 s62, s57, 3
        s_lshl_b32 s59, s58, 1
        s_add_u32 s62, s62, s59
        s_mul_i32 s59, s62, 205
        s_lshr_b32 s59, s59, 11
        s_mul_i32 s59, s59, 10
        s_sub_u32 s62, s62, s59
        s_lshl_b32 s64, s62, 7
        s_mul_i32 s63, s62, {64*3840}""")
    else:
        a("s_mov_b32 s64, 0\n s_mov_b32 s63, 0")
    a(f"""v_lshrrev_b32 v240, 3, v1
    s_lshl_b32 s59, s57, 7
    s_lshl_b32 s54, s{SW}, 5
    s_add_u32 s59, s59, s54
    v_add_u32 v240, s59, v240
    v_mul_u32_u24 v240, 1280, v240
    v_lshrrev_b32 v241, 4, v1
    v_and_b32 v242, 7, v1
    v_xor_b32 v242, v242, v241
    v_lshl_add_u32 v7, v242, 4, v240
    v_xor_b32 v242, 4, v242
    v_lshl_add_u32 v8, v242, 4, v240
    v_add_u32 v8, {10240-1024}, v8
    v_add_u32 v9, {20480-2048}, v7
    v_add_u32 v10, {20480-2048}, v8""")

def g_setup_w(a):
    a(f"""s_mul_i32 s59, s58, 160
    s_add_u32 s60, s59, 1280
    s_add_u32 s61, s59, {2560-160}
    s_sub_u32 s59, s58, 8
    s_mul_i32 s59, s59, 320
    s_cmp_ge_u32 s58, 8
    s_cselect_b32 s60, s59, s60
    s_cselect_b32 s61, s59, s61
    s_mul_i32 s59, s{SW}, {16*3840}
    s_add_u32 s60, s60, s59
    s_add_u32 s61, s61, s59
    s_mul_i32 s65, s{SW}, 5120""")
    a(f"v_mov_b32 v244, s60\n v_mov_b32 v245, s61")
    for i in range(5):
        assert all(((64 * i + l) * 3277) >> 16 == (64 * i + l) // 20 for l in range(64))
        a(f"""v_add_u32 v240, {64*i}, v1
        v_mul_u32_u24 v241, 3277, v240
        v_lshrrev_b32 v241, 16, v241
        v_mul_u32_u24 v242, 20, v241
        v_sub_u32 v240, v240, v242""")
        if i == 2: a("v_lshrrev_b32 v242, 4, v1\n v_and_b32 v242, 2, v242\n v_xor_b32 v240, v240, v242")
        if i > 2: a("v_xor_b32 v240, 2, v240")
        a(f"""v_cmp_gt_u32 vcc, 10, v240
        v_mul_u32_u24 v241, 3840, v241
        v_lshl_add_u32 v240, v240, 4, v241
        v_cndmask_b32 v242, v245, v244, vcc""")
        if i in (0, 4): a(f"v_add_u32 v{2+i}, v240, v242")
        else: a(f"v_add_u32 v240, v240, v242\n v_subrev_u32 v{2+i}, {1024*i}, v240")

def g_setup2(a):
    a(f"""v_lshrrev_b32 v241, 4, v1
    v_bfe_u32 v242, v1, 2, 2
    v_lshl_add_u32 v242, v241, 3, v242
    v_mul_u32_u24 v242, 320, v242
    v_and_b32 v243, 3, v1
    v_lshl_add_u32 v242, v243, 3, v242
    v_and_b32 v243, 1, v241
    v_lshlrev_b32 v243, 5, v243
    v_add_u32 v9, v242, v243
    v_sub_u32 v10, v242, v243
    v_and_b32 v240, 15, v1
    v_lshrrev_b32 v242, 1, v240
    v_xor_b32 v242, v242, v241
    v_lshlrev_b32 v240, 7, v240
    v_add_u32 v240, s66, v240
    v_lshl_add_u32 v11, v242, 4, v240
    v_xor_b32 v242, 4, v242
    v_lshl_add_u32 v12, v242, 4, v240
    s_mov_b32 s70, {LOG2E}
    s_mov_b32 s71, {EPS}""")
    for k in range(4): a(f"v_add_u32 v{2+k}, {HALF}, v{9+k}")

def g_loadx(j):
    o = [f"s_add_u32 m0, s66, {slot_half(j) * HALF + slot_off(j)}", "s_nop 0"]
    for i in range(4): o.append(f"buffer_load_dwordx4 v{7+i}, {sq(SRD0)}, s64 offen offset:{1024*i} lds ; tag=S{j}")
    o += ["s_add_u32 s64, s64, 128"]
    if cfg.rot: o += ["s_cmp_eq_u32 s64, 1280", "s_cselect_b32 s64, 0, s64"]
    return o
def g_loadw(j):
    base = slot_half(j) * HALF + slot_off(j)
    o = [f"s_add_u32 m0, s65, {base}", "s_nop 0"]
    for i in range(4): o.append(f"buffer_load_dwordx4 v{2+i}, {sq(SRD1)}, s63 offen offset:{1024*i} lds ; tag=S{j}")
    o += [f"s_add_u32 m0, s65, {base + 4096}", "s_nop 0", f"buffer_load_dwordx4 v6, {sq(SRD1)}, s63 offen lds ; tag=S{j}"]
    o += [f"s_add_u32 s63, s63, {64*3840}"]
    if cfg.rot: o += [f"s_cmp_eq_u32 s63, {640*3840}", "s_cselect_b32 s63, 0, s63"]
    return o
def g_xreads(j):
    return [f"ds_read_b128 {v4(G_X + (j&1)*16 + ks*8 + sub*4)}, v{(4 if slot_half(j) else 11)+ks} offset:{slot_off(j) + sub*2048}" for ks in range(2) for sub in range(2)]
def g_reads(t):
    j = t // 2
    o = []
    for n in range(10):
        for h in range(2):
            off = slot_off(j) + (t & 1) * 10240 + h * 1280 + 32 * n
            o.append(f"ds_read_b64_tr_b16 {v2(G_B + (t & 1) * 40 + n * 4 + 2 * h)}, v{(2 if slot_half(j) else 9) + (n & 1)} offset:{off}")
    return o

def role_loader(a):
    a(f"s_setprio {cfg.lprio}")
    g_setup_x(a)
    a("s_waitcnt lgkmcnt(0)")
    srd(a, SRD0, P_X, 2048 * 1280)
    a.extend(g_loadx(0))
    g_setup_w(a)
    srd(a, SRD1, P_W, 640 * 3840)
    seq = []
    for j in range(10): seq += [g_loadx(j), g_loadw(j)]
    pos = 1
    def upto(n):
        nonlocal pos
        while pos < min(n, 20): a.extend(seq[pos]); pos += 1
    upto(cfg.ahead0)
    args_ready(a)
    stamp(a, 1)
    for j in range(9):
        a(f"WAITTAG S{j}")
        if cfg.slab == 2 and j < 8: stamp(a, j + 1, True)
        a("s_barrier")
        if cfg.slab == 1 and j < 8: stamp(a, j + 1, True)
        if j == 0: stamp(a, 2)
        if j == 6: zero_probe(a, 14, 13)
        upto(min(2 * (j + 1) + cfg.ahead, 2 * (j + 4)))
    zero_check(a, "ld", 14, 13)
    a(f"s_mov_b32 s{SLD}, 1")
    stamp(a, 3)

def g_main(a, transposed, tail):
    a("s_waitcnt vmcnt(0) lgkmcnt(0)\n s_barrier")
    stamp(a, 1)
    a.extend(g_xreads(0) + g_reads(0))
    def mfma(t, n, sub):
        j, ks = t // 2, t % 2
        acc = v4(G_ACC + (sub * 10 + n) * 4)
        x = v4(G_X + (j & 1) * 16 + ks * 8 + sub * 4)
        b = v4(G_B + (t & 1) * 40 + n * 4)
        c = "0" if t == 0 else acc
        return f"v_mfma_f32_16x16x32_bf16 {acc}, {b}, {x}, {c}" if transposed else f"v_mfma_f32_16x16x32_bf16 {acc}, {x}, {b}, {c}"
    for t in range(19):
        j, ks = t // 2, t % 2
        mf = [mfma(t, n, sub) for n in range(10) for sub in range(2)]
        rd = g_reads(t + 1)
        if ks == 1:
            rd = g_xreads(j + 1) + rd
            a.extend(mf[:cfg.bpos]); a("s_waitcnt lgkmcnt(0)" + "\n s_barrier")
            a.extend(interleave(mf[cfg.bpos:], rd))
        else:
            a.extend(interleave(mf, rd))
    tail([mfma(19, n, sub) for n in range(10) for sub in range(2)])

def role_q(a):
    a(f"""s_lshl_b32 s52, s57, 3
    s_lshl_b32 s53, s{SW}, 1
    s_add_u32 s52, s52, s53
    s_mul_i32 s52, s52, 20
    s_sub_u32 s53, s58, 8
    s_mul_i32 s54, s53, 5
    s_add_u32 s52, s52, s54
    s_lshl_b32 s52, s52, 10
    s_add_u32 s52, s52, {WS_PQ}
    s_mul_i32 s55, s53, 17
    s_add_u32 s55, s55, s57
    s_lshl_b32 s55, s55, 7
    s_add_u32 s55, s55, {WS_QFLAG}
    v_lshlrev_b32 v6, 4, v1""")
    def tail(mf):
        bar_arrive(a)
        ep = []
        for c in range(5):
            for sub in range(2):
                r0 = G_ACC + (sub * 10 + 2 * c) * 4
                ep += phi_block(list(range(r0, r0 + 8)), list(range(240, 248)))
                d = G_B + (sub * 5 + c) * 4
                ep += [f"v_cvt_pk_bf16_f32 v{d+k}, v{r0+2*k}, v{r0+2*k+1}" for k in range(4)]
                ep += [f"s_add_u32 s54, s52, {(sub*20+c)*1024}", f"buffer_store_dwordx4 {v4(d)}, v6, {sq(SRDWS)}, s54 offen sc1"]
        a.extend(mf[:8])
        a.extend(interleave(mf[8:], ep[:24]))
        stamp(a, 2)
        zero_probe(a, 7, 8)
        a.extend(ep[24:])
    g_main(a, True, tail)
    stamp(a, 3)
    zero_check(a, "q", 7, 8)
    signal(a, 55, 4, L_SIG)
    stamp(a, 4)

def role_kv(a):
    EX, HB = G_SLOT, 0
    DUMP = HB + 4 * 2048
    AD = 208
    a(f"""v_lshlrev_b32 v240, 4, v1
    s_mul_i32 s52, s{SW}, 10240
    s_add_u32 s52, s52, {EX}
    v_add_u32 v{AD+6}, s52, v240
    s_lshl_b32 s52, s{SW}, 10
    s_add_u32 s52, s52, {EX}
    v_add_u32 v{AD+7}, s52, v240
    v_and_b32 v246, 15, v1
    v_lshrrev_b32 v247, 4, v1
    v_lshlrev_b32 v247, 2, v247
    s_lshl_b32 s52, s{SW}, 2
    v_subrev_u32 v246, s52, v246
    v_subrev_u32 v247, s52, v247
    s_lshl_b32 s53, s{SW}, 11
    v_mov_b32 v245, {DUMP}
    v_lshlrev_b32 v{AD+8}, 2, v1
    v_add_u32 v{AD+9}, s53, v{AD+8}""")
    for k in range(4): a(f"v_mov_b32 v{AD+12+k}, 0x3f803f80")
    k = 0
    for dt in range(2):
        for et in range(2):
            a(f"""v_add_u32 v240, {16*dt}, v247
            v_add_u32 v241, {16*et}, v246
            v_max_u32 v242, v240, v241
            v_cmp_gt_u32 vcc, 20, v242
            v_mul_u32_u24 v241, 80, v241
            v_lshl_add_u32 v241, v240, 2, v241
            v_add_u32 v241, s53, v241
            v_cndmask_b32 v{AD+k}, v245, v241, vcc""")
            k += 1
        a(f"""v_add_u32 v240, {16*dt}, v247
        v_and_b32 v241, 15, v1
        v_mul_u32_u24 v241, 20, v241
        v_max_u32 v242, v240, v241
        v_cmp_gt_u32 vcc, 20, v242
        v_lshlrev_b32 v240, 2, v240
        v_add_u32 v240, s53, v240
        v_add_u32 v240, 1600, v240
        v_cndmask_b32 v{AD+4+dt}, v245, v240, vcc""")
    a(f"""s_lshl_b32 s52, s58, 2
    s_add_u32 s52, s52, s{SW}
    s_mul_i32 s52, s52, 1680
    s_add_u32 s52, s52, {WS_KV}
    s_lshl_b32 s55, s58, 7""")
    def tail(mf):
        ep = []
        for t in [0, 1, 5, 2, 6, 7, 3, 8, 9, 4]:
            r0 = G_ACC + t * 4; r1 = G_ACC + (10 + t) * 4
            if t < 5: ep += phi_block(list(range(r0, r0 + 4)) + list(range(r1, r1 + 4)), list(range(240, 248)))
            d = G_B + t * 4
            ep += [f"v_cvt_pk_bf16_f32 v{d}, v{r0}, v{r0+1}", f"v_cvt_pk_bf16_f32 v{d+1}, v{r0+2}, v{r0+3}",
                   f"v_cvt_pk_bf16_f32 v{d+2}, v{r1}, v{r1+1}", f"v_cvt_pk_bf16_f32 v{d+3}, v{r1+2}, v{r1+3}",
                   f"ds_write_b128 v{AD+6}, {v4(d)} offset:{t*1024}"]
        a.extend(mf[:6])
        a.extend(interleave(mf[6:], ep[:28]))
        stamp(a, 2)
        zero_probe(a, 7, 8)
        a.extend(ep[28:])
    g_main(a, False, tail)
    bar_arrive(a); bar_wait(a, True)
    F = 136
    for rg in range(4):
        for q, off in enumerate([0, 5120, 1024, 6144]):
            a(f"ds_read_b128 {v4(F + rg*16 + [0, 2, 1, 3][q]*4)}, v{AD+7} offset:{rg*10240 + off}")
    D = 16
    for rg in range(4):
        for dt in range(2):
            A = v4(F + rg * 16 + dt * 4)
            acc = v4(D + 16 + dt * 4)
            a(f"v_mfma_f32_16x16x32_bf16 {acc}, {A}, {v4(AD+12)}, {'0' if rg == 0 else acc}")
            for et in range(2):
                acc = v4(D + (dt * 2 + et) * 4)
                a(f"v_mfma_f32_16x16x32_bf16 {acc}, {A}, {v4(F + rg*16 + 8 + et*4)}, {'0' if rg == 0 else acc}")
    zero_check(a, "kv", 7, 8)
    for k in [4, 0, 1, 5, 2, 3]: a(f"ds_write_b128 v{AD+k}, {v4(D + 4*k)}")
    for i in range(7): a(f"ds_read_b32 v{48+i}, v{AD+9} offset:{256*i}")
    bar_arrive(a)
    stamp(a, 3)
    for i in range(7):
        if i == 6: a("s_mov_b32 exec_hi, 0xf")
        a(f"buffer_atomic_add_f32 v{48+i}, v{AD+8}, {sq(SRDWS)}, s52 offen offset:{256*i}")
    a("s_mov_b64 exec, -1")
    signal(a, 55, 4, L_SIG, 16, 1024)
    stamp(a, 4)

C_HCOPY = 4224; C_UH = 148; C_WAVE = 2 * C_HCOPY + 2 * C_UH * 16
C_STG = HALF + 4 * C_WAVE; C_STGP = 4160
PV = 224
def role_prep(a):
    a(f"""s_and_b32 s52, s2, 7
    s_lshl_b32 s52, s52, 2
    s_bfe_u32 s53, s2, 0x20004
    s_add_u32 s52, s52, s53
    s_lshl_b32 s52, s52, 6
    s_bfe_u32 s65, s2, 0x10003
    s_mul_i32 s53, s65, 320
    s_sub_u32 s54, s{SW8}, 3
    s_lshl_b32 s55, s{SW8}, 1
    s_cmp_ge_u32 s{SW8}, 3
    s_cselect_b32 s54, s54, s55
    s_lshl_b32 s54, s54, 6
    s_add_u32 s53, s53, s54
    v_lshrrev_b32 v240, 3, v1
    v_lshl_add_u32 v241, v240, 3, s52
    v_and_b32 v242, 7, v1
    v_lshl_add_u32 v243, v242, 3, s53
    v_mul_u32_u24 v241, 1280, v241
    v_lshl_add_u32 v{PV}, v243, 1, v241
    s_movk_i32 s55, 5120""")
    def common2(rev):
        a(f"""v_add_u32 v241, s53, v240
        v_mul_u32_u24 v241, {TP}, v241
        v_lshl_add_u32 v{PV+3}, v242, 4, v241
        s_mul_i32 s54, s{SW}, 20480
        s_mul_i32 s63, s{SGRP}, 10240
        s_add_u32 s54, s54, s63
        v_mul_u32_u24 v241, 1040, v242
        v_add_u32 v241, s54, v241""")
        if rev: a("v_sub_u32 v240, 7, v240")
        a(f"""v_lshl_add_u32 v{PV+4}, v240, 4, v241
        v_lshl_add_u32 v{PV+5}, v1, 4, s54
        s_lshl_b32 s64, s52, 1
        s_mov_b32 s70, 0x05040100
        s_mov_b32 s71, 0x07060302""")
    def rds(R): return [f"ds_read_b128 {v4(R+4*i)}, v{PV+5} offset:{1040*i}" for i in range(8)]
    def sts(R, extra): return [x for i in range(8) for x in (f"s_add_u32 s54, s64, {8*TP*i + extra}", f"buffer_store_dwordx4 {v4(R+4*i)}, v{PV+3}, {sq(SRDWS)}, s54 offen sc1")]
    a(f"s_cmp_lt_u32 s{SW8}, 3\n s_cbranch_scc1 L_PQ")
    tag(a, 3)
    a(f"v_subrev_u32 v{PV+1}, 3840, v{PV}\n v_lshlrev_b32 v{PV+2}, 3, v243\n s_waitcnt lgkmcnt(0)")
    srd(a, SRD0, P_K, 2048 * 1280)
    K, V, C = 16, 60, 92
    for r in range(3): a(f"buffer_load_dwordx4 {v4(K+4*r)}, v{PV+1}, {sq(SRD0)}, 0 offen offset:{1280*r}")
    for r in range(8): a(f"buffer_load_dwordx4 {v4(K+12+4*r)}, v{PV}, {sq(SRD0)}, {'s55' if r >= 4 else '0'} offen offset:{1280*(r%4)}")
    srd(a, SRD1, P_V, 2048 * 1280); srd(a, SRD3, P_SH, 640 * 8)
    for r in range(4): a(f"buffer_load_dwordx4 {v4(C+4*r)}, v{PV+2}, {sq(SRD3)}, 0 offen offset:{16*r}")
    for r in range(8):
        a(f"buffer_load_dwordx4 {v4(V+4*r)}, v{PV}, {sq(SRD1)}, {'s55' if r >= 4 else '0'} offen offset:{1280*(r%4)}")
    args_ready(a)
    common2(True)
    a(f"s_sub_u32 s64, {WS_UT + 1984*2}, s64\n s_mov_b32 s62, 0xffff0000")
    stamp(a, 1)
    P, T, U, O = 108, 120, 184, 192
    for ch in range(8):
        dw, hi = ch // 2, ch % 2
        sel = "s71" if hi else "s70"
        for s_ in range(-2, 8):
            a(f"v_perm_b32 v{P+s_+2}, v{K+4*(s_+2)+dw}, v{K+4*(s_+3)+dw}, {sel}")
        for s_ in range(8): a(f"v_dot2_f32_bf16 v{T+8*ch+s_}, v{P+s_}, v{C+2*ch+1}, 0")
        for s_ in range(8): a(f"v_dot2_f32_bf16 v{T+8*ch+s_}, v{P+s_+2}, v{C+2*ch}, v{T+8*ch+s_}")
    for ch in range(8):
        dw, hi = ch // 2, ch % 2
        for s_ in range(8):
            a(f"v_and_b32 v{U+s_}, s62, v{V+4*s_+dw}" if hi else f"v_lshlrev_b32 v{U+s_}, 16, v{V+4*s_+dw}")
        for s_ in range(8): a(f"v_mul_f32 v{T+8*ch+s_}, v{T+8*ch+s_}, v{U+s_}")
        o = O + 4 * ch
        for j in range(4): a(f"v_cvt_pk_bf16_f32 v{o+j}, v{T+8*ch+7-2*j}, v{T+8*ch+6-2*j}")
        a(f"ds_write_b128 v{PV+4}, {v4(o)} offset:{128*ch}")
    a.extend(rds(16) + sts(16, 0))
    stamp(a, 2)
    zero_probe(a, 3, 4)
    zero_check(a, "pu", 3, 4)
    a("s_waitcnt vmcnt(0)\n s_barrier")
    stamp(a, 3)
    a(f"s_cmp_eq_u32 s{SGRP}, 1\n s_cbranch_scc1 L_CONV")
    a(f"""s_lshl_b32 s65, s65, 10
    s_add_u32 s65, s65, {WS_UFLG}
    s_add_u32 s68, s{P_WS}, s65
    s_addc_u32 s69, s{P_WS+1}, 0
    s_mov_b32 s78, 1
    s_mov_b32 s79, 1
    s_atomic_add s79, s[68:69], {WS_CNT} glc
    s_waitcnt lgkmcnt(0)
    s_cmp_lg_u32 s79, 31
    s_cbranch_scc1 L_B2""")
    for r in range(8): a(f"s_atomic_add s78, s[68:69], {128*r}")
    a("s_waitcnt lgkmcnt(0)\n s_branch L_B2")
    a.label("L_PQ")
    tag(a, 6)
    a(f"s_cmp_lg_u32 s{SW8}, 2\n s_cbranch_scc1 L_PQ0")
    init_wave(a, "p")
    a.label("L_PQ0")
    args_ready(a)
    a("s_waitcnt vmcnt(0)\n s_barrier")
    if cfg.pwait:
        a(f"s_and_b32 s61, s2, 7\n s_lshl_b32 s61, s61, 7\n s_bfe_u32 s54, s2, 0x10002\n s_lshl_b32 s54, s54, 10\n s_add_u32 s61, s61, s54\n s_add_u32 s61, s61, {WS_UFLG}\n v_mov_b32 v12, 0")
        a(probe(15, 12, "s61")); check(a, "pw", 15, 12, "s61", 1)
    stamp(a, 3)
    a("s_branch L_B2")

def conv_head(a, pr=False):
    a(f"""s_and_b32 s52, s2, 7
    s_mul_i32 s52, s52, 20
    s_lshr_b32 s53, s2, 3
    s_and_b32 s61, s2, 7
    s_sub_u32 s53, s53, 12
    s_add_u32 s57, s52, s53
    s_lshl_b32 s58, s57, 2
    s_add_u32 s58, s58, s{SW}
    s_lshl_b32 s59, s58, 12
    s_mul_i32 s60, s{SW}, {C_WAVE}
    s_add_u32 s60, s60, {HALF}
    s_add_u32 s52, s{P_H}, s59
    s_addc_u32 s53, s{P_H+1}, 0
    s_load_dword s66, s[52:53], 0
    s_lshr_b32 s54, s58, 1
    s_lshl_b32 s54, s54, 2
    s_load_dword s67, s[{P_D}:{P_D+1}], s54
    s_lshl_b32 s61, s61, 7
    s_cmp_ge_u32 s57, 80
    s_cselect_b32 s54, 1024, 0
    s_add_u32 s61, s61, s54
    s_add_u32 s61, s61, {WS_UFLG}
    s_lshr_b32 s63, s57, 4
    s_lshl_b32 s63, s63, 10
    s_add_u32 s63, s63, {WS_YFLG}
    v_lshlrev_b32 v2, 4, v1
    v_add_u32 v3, 4, v2
    v_mov_b32 v12, 0""")
    if pr: a(probe(15, 12, "s61"))
    srd(a, SRD0, P_H, 640 * 4096)
    a(f"s_add_u32 m0, s60, 32")
    for i in range(4): a(f"buffer_load_dwordx4 v2, {sq(SRD0)}, s59 offen offset:{1024*i} lds ; tag=H")
    a(f"s_add_u32 m0, s60, {C_HCOPY + 32}")
    for i in range(4): a(f"buffer_load_dwordx4 v3, {sq(SRD0)}, s59 offen offset:{1024*i} lds ; tag=H")
    a("s_waitcnt lgkmcnt(0)")

def role_conv(a):
    ACC, A, RAW, B, QV, UL = 16, 48, 80, 128, 192, 208
    conv_head(a, True)
    last_barrier(a, "conv", 9)
    tag(a, 4)
    stamp(a, 4)
    check(a, "convu", 15, 12, "s61", 1)
    stamp(a, 5)
    a(f"s_mul_i32 s55, s58, {TP}\n s_add_u32 s54, s55, {WS_UT}\n s_add_u32 s55, s55, {WS_YT}")
    for i in range(4): a(f"buffer_load_dwordx4 {v4(UL+4*i)}, v2, {sq(SRDWS)}, s54 offen offset:{1024*i} sc1")
    a(f"""v_and_b32 v8, 15, v1
    v_lshrrev_b32 v9, 4, v1
    v_add_u32 v10, 1, v8
    v_bfe_u32 v11, v10, 1, 1
    v_mul_u32_u24 v11, {C_HCOPY}, v11
    v_lshrrev_b32 v13, 2, v10
    v_lshl_add_u32 v13, v9, 3, v13
    v_lshl_add_u32 v11, v13, 3, v11
    v_add_u32 v4, s60, v11
    v_and_b32 v10, 1, v10
    v_lshlrev_b32 v5, 4, v10
    v_lshlrev_b32 v10, 1, v9
    v_sub_u32 v10, v10, v8
    v_add_u32 v10, 15, v10
    v_lshlrev_b32 v10, 4, v10
    v_add_u32 v6, s60, v10
    v_lshrrev_b32 v10, 1, v1
    v_and_b32 v11, 1, v1
    v_mul_u32_u24 v11, {C_UH}, v11
    v_add_u32 v10, v10, v11
    v_lshlrev_b32 v10, 4, v10
    v_add_u32 v7, s60, v10
    v_mov_b32 v16, 0
    v_mov_b32 v17, 0
    v_mov_b32 v18, 0
    v_mov_b32 v19, 0
    v_and_b32 v10, 1, v9
    v_mul_u32_u24 v10, {C_UH}, v10
    v_add_u32 v10, v10, v8
    v_lshl_add_u32 v20, v10, 4, s60
    v_and_b32 v10, 1, v1
    v_lshlrev_b32 v10, 4, v10
    v_bfe_u32 v11, v1, 1, 1
    v_mul_u32_u24 v11, {C_HCOPY}, v11
    v_add3_u32 v21, v10, v11, s60
    v_lshlrev_b32 v10, 5, v8
    v_lshl_add_u32 v8, v9, 3, v10""")
    a(f"""s_waitcnt lgkmcnt(0)
    s_lshl_b32 s52, s66, 16
    s_lshl_b32 s53, s67, 16
    s_and_b32 s54, s67, 0xffff0000
    s_bitcmp1_b32 s58, 0
    s_cselect_b32 s53, s54, s53
    s_and_b32 s54, s66, 0xffff0000
    v_mov_b32 v10, s52
    v_add_f32 v10, s53, v10
    v_mov_b32 v11, s54
    v_cvt_pk_bf16_f32 v10, v10, v11
    v_mov_b32 v11, s60
    WAITTAG H
    ds_write_b128 v21, v[16:19]
    ds_write_b32 v11, v10 offset:32
    ds_write_b32 v11, v10 offset:{C_HCOPY+28}
    ds_write_b128 v20, v[16:19] offset:{2*C_HCOPY + 128*16}""")
    def raw_slots(i):
        return [(0, 1, 2), (2, 0, 1), (1, 2, 0), (0, 1, 2)][i]
    def raw_reads(it, N1):
        N0, i = it >> 2, it & 3
        sl = raw_slots(i)
        return [f"ds_read_b64 {v2(RAW + N1*6 + 2*sl[k])}, v4 offset:{(2*N1+N0)*256 + (2*i+k)*8}" for k in range(0 if i == 0 else 1, 3)]
    def aligns(it, N1):
        sl = raw_slots(it & 3)
        d = [RAW + N1 * 6 + 2 * sl[0], RAW + N1 * 6 + 2 * sl[0] + 1, RAW + N1 * 6 + 2 * sl[1], RAW + N1 * 6 + 2 * sl[1] + 1, RAW + N1 * 6 + 2 * sl[2]]
        return [f"v_alignbit_b32 v{A + 4*N1 + k}, v{d[k+1]}, v{d[k]}, v5" for k in range(4)]
    def b_reads(it):
        N0, i = it >> 2, it & 3
        return [f"ds_read_b128 {v4(B + (it&1)*32 + 4*dl)}, v6 offset:{2*C_HCOPY + (14-(2*dl-N0))*128 + (i>>1)*16 + (i&1)*C_UH*16}" for dl in range(8)]
    for N1 in range(8): a.extend(raw_reads(0, N1))
    for N1 in range(8):
        a.extend(aligns(0, N1)); a.extend(raw_reads(1, N1))
    for i in range(4): a(f"ds_write_b128 v7, {v4(UL+4*i)} offset:{2*C_HCOPY + 512*i}")
    a.extend(b_reads(0))
    stamp(a, 6)
    queue = []
    for it in range(8):
        if it < 7: queue += b_reads(it + 1)
        for N1 in range(8):
            tg = f"v_alignbit_b32 v{A+4*N1+3},"
            pos = max((k for k, q in enumerate(queue) if q.startswith(tg)), default=-1)
            for q in queue[:pos + 1]: a(q)
            queue = queue[pos + 1:]
            for J in range(N1, 8):
                acc = v4(ACC + 4 * J)
                c = "0" if (it == 0 and N1 == 0) else acc
                a(f"v_mfma_f32_16x16x32_bf16 {acc}, {v4(A+4*N1)}, {v4(B + (it&1)*32 + 4*(J-N1))}, {c}")
                for _ in range(2):
                    if queue: a(queue.pop(0))
            if it < 7: queue += aligns(it + 1, N1)
            if it < 6: queue += raw_reads(it + 2, N1)
        assert not any(q.startswith("ds_read_b128") for q in queue)
    assert not queue
    stamp(a, 7)
    a(f"s_setprio {cfg.eprio}\n v_add_u32 v9, s60, v8\n v_add_u32 v10, s60, v2")
    for J in range(8):
        T = 48 + 2 * J
        a(f"v_cvt_pk_bf16_f32 v{T}, v{ACC+4*J}, v{ACC+4*J+1}\n v_cvt_pk_bf16_f32 v{T+1}, v{ACC+4*J+2}, v{ACC+4*J+3}")
        a(f"ds_write_b64 v9, {v2(T)} offset:{512*J}")
    for i in range(4): a(f"ds_read_b128 {v4(64+4*i)}, v10 offset:{1024*i}")
    for i in range(4): a(f"buffer_store_dwordx4 {v4(64+4*i)}, v2, {sq(SRDWS)}, s55 offen offset:{1024*i} sc1")
    stamp(a, 8)
    signal(a, 63, 4, HALF + L_SIG, 16)

def role_fin(a):
    srd(a, SRD2, P_Q, 2048 * 1280); srd(a, SRD1, P_OUT, 2048 * 2560)
    a(f"""s_setprio {cfg.fprio}
    s_and_b32 s61, s2, 7
    s_lshl_b32 s52, s61, 2
    s_add_u32 s52, s52, s{SW}
    s_lshl_b32 s52, s52, 6
    s_lshr_b32 s53, s2, 3
    s_lshl_b32 s61, s61, 7
    s_lshl_b32 s54, s53, 10
    s_add_u32 s61, s61, s54
    s_add_u32 s61, s61, {WS_YFLG}
    s_lshl_b32 s53, s53, 6
    v_lshrrev_b32 v2, 3, v1
    v_lshl_add_u32 v3, v2, 3, s52
    v_and_b32 v4, 7, v1
    v_lshl_add_u32 v5, v4, 3, s53
    v_mul_u32_u24 v3, 1280, v3
    v_lshl_add_u32 v6, v5, 1, v3
    v_add_u32 v7, v6, v3
    s_movk_i32 s55, 5120""")
    Q, QF, Y, T = 16, 48, 112, 144
    for r in range(8): a(f"buffer_load_dwordx4 {v4(Q+4*r)}, v6, {sq(SRD2)}, {'s55' if r >= 4 else '0'} offen offset:{1280*(r%4)}")
    a(f"""v_add_u32 v3, s53, v2
    v_mul_u32_u24 v3, {TP}, v3
    v_lshl_add_u32 v8, v4, 4, v3
    s_mul_i32 s54, s{SW}, 8448
    s_add_u32 s54, s54, 16384
    v_lshl_add_u32 v9, v1, 4, s54
    v_mul_u32_u24 v3, 1040, v4
    v_lshl_add_u32 v3, v2, 4, v3
    v_add_u32 v10, s54, v3
    s_lshl_b32 s64, s52, 1
    s_add_u32 s64, s64, {WS_YT}
    s_mov_b32 s62, 0xffff0000
    v_mov_b32 v12, 0""")
    for r in range(8):
        for d in range(4):
            a(f"v_lshlrev_b32 v{QF+8*r+2*d}, 16, v{Q+4*r+d}\n v_and_b32 v{QF+8*r+2*d+1}, s62, v{Q+4*r+d}")
    bar_wait(a)
    a(probe(15, 12, "s61"))
    stamp(a, 5)
    check(a, "fin", 15, 12, "s61", 1)
    stamp(a, 6)
    for i in range(8): a(f"s_add_u32 s54, s64, {8*TP*i}\n buffer_load_dwordx4 {v4(Q+4*i)}, v8, {sq(SRDWS)}, s54 offen sc1")
    for i in range(8): a(f"ds_write_b128 v9, {v4(Q+4*i)} offset:{1040*i}")
    for ch in range(8): a(f"ds_read_b128 {v4(Y+4*ch)}, v10 offset:{128*ch}")
    stamp(a, 7)
    a("s_mov_b32 s54, 0")
    for r in range(8):
        t = T + 8 * (r & 1)
        for ch in range(8):
            src = Y + 4 * ch + r // 2
            a(f"v_and_b32 v{t+ch}, s62, v{src}" if r & 1 else f"v_lshlrev_b32 v{t+ch}, 16, v{src}")
        for ch in range(8): a(f"v_mul_f32 v{t+ch}, v{t+ch}, v{QF+8*r+ch}")
        o = 160 + 4 * r
        for d in range(4): a(f"v_cvt_pk_bf16_f32 v{o+d}, v{t+2*d}, v{t+2*d+1}")
        a(f"buffer_store_dwordx4 {v4(o)}, v7, {sq(SRD1)}, s54 offen{OSC()}")
        if r < 7: a("s_add_u32 s54, s54, 2560")

def b2_tables(hf):
    num = {}
    for t in range(5 * hf, 5 * hf + 5):
        hs = {e // 20 for e in range(16 * t, 16 * t + 16)}
        dts = [dt for dt in range(10) if hs & {d // 20 for d in range(16 * dt, 16 * dt + 16)}]
        ch = {}
        for dt in dts: ch.setdefault(dt // 2, []).append(dt)
        num[t] = sorted(ch.items())
    ch = {}
    for dt in range(5 * hf, 5 * hf + 5): ch.setdefault(dt // 2, []).append(dt)
    return num, sorted(ch.items())

B_KS = 8416
NS = 3
def role_b2(a):
    PQ, KV, RAW = 16, 108, 180
    WA = [76 + 4 * n for n in range(8)]
    WB = [228 + 4 * n for n in range(7)] + [8]
    ACC = 108
    U = [180, 204]
    a(f"""s_mul_i32 s57, s56, 205
    s_lshr_b32 s57, s57, 10
    s_mul_i32 s54, s57, 5
    s_sub_u32 s58, s56, s54""")
    assert all((v * 205) >> 10 == v // 5 for v in range(216))
    srd(a, SRD0, P_WO, 640 * 1280)
    a(f"""s_lshl_b32 s59, s58, 8
    s_mul_i32 s52, s{SW}, {160*1280}
    s_add_u32 s59, s59, s52
    s_lshl_b32 s53, s{SW}, 6
    s_mul_i32 s65, s{SW}, 20480
    s_add_u32 s65, s65, s{SLB}
    v_and_b32 v8, 15, v1
    v_lshrrev_b32 v9, 4, v1
    v_lshlrev_b32 v2, 4, v8
    v_xor_b32 v2, s53, v2
    v_mul_u32_u24 v10, {8*1280}, v9
    v_add3_u32 v2, v2, v10, s59""")
    def dma(kstep, slot):
        return [[f"s_add_u32 m0, s65, {slot*B_KS + i*1056}", f"s_mov_b32 s63, {(32*kstep + i)*1280}",
                 f"buffer_load_dwordx4 v2, {sq(SRD0)}, s63 offen lds ; tag=K{kstep}"] for i in range(8)]
    def wreads(slot, dst):
        return [f"ds_read_b64_tr_b16 {v2(dst[n] + 2*h)}, v0 offset:{slot*B_KS + h*512 + 32*n}" for n in range(8) for h in range(2)]
    bar_wait(a)
    for g in dma(0, 0): a.extend(g)
    last_barrier(a, "b2", 8)
    if cfg.gate:
        a(f"s_cmp_eq_u32 s{SLD}, 0\n s_cbranch_scc1 L_GT\n v_mov_b32 v13, {L_BAR}")
        a.label("L_GTW")
        a("s_sleep 4\n ds_read_b32 v14, v13\n s_waitcnt lgkmcnt(0)\n v_cmp_gt_u32 vcc, 8, v14\n s_nop 1\n s_cbranch_vccnz L_GTW")
        a.label("L_GT")
    for g in dma(1, 1): a.extend(g)
    a(f"s_setprio {cfg.cprio}")
    srd(a, SRD1, P_OUT, 2048 * 2560)
    a(f"""v_bfe_u32 v10, v1, 2, 3
    v_mul_u32_u24 v10, 1056, v10
    v_lshrrev_b32 v11, 5, v1
    v_lshl_add_u32 v10, v11, 8, v10
    v_and_b32 v11, 3, v1
    v_lshl_add_u32 v10, v11, 3, v10
    v_add_u32 v0, s65, v10
    s_add_u32 s64, s65, {2*B_KS}
    v_lshlrev_b32 v9, 3, v9
    v_mul_u32_u24 v3, 40, v8
    v_add3_u32 v3, v3, v9, s64
    v_mul_u32_u24 v4, 800, v11
    v_add3_u32 v4, v4, v9, s64
    v_lshlrev_b32 v5, 4, v1
    v_lshlrev_b32 v6, 3, v1
    v_add_u32 v6, s64, v6
    v_add_u32 v7, 4096, v5
    s_mul_i32 s52, s57, 3
    s_lshr_b32 s53, s52, 3
    s_add_u32 s54, s52, 2
    s_min_u32 s54, s54, 127
    s_lshr_b32 s54, s54, 3
    s_sub_u32 s54, s54, s53
    s_lshl_b32 s54, s54, 7
    v_and_b32 v12, 1, v1
    v_lshlrev_b32 v13, 7, v12
    v_mul_u32_u24 v12, s54, v12
    s_mul_i32 s60, s{SW}, 17
    s_add_u32 s60, s60, s53
    s_lshl_b32 s60, s60, 7
    s_add_u32 s60, s60, {WS_QFLAG}
    s_and_b32 s61, s2, 7
    s_lshl_b32 s61, s61, 10
    s_lshl_b32 s53, s{SW}, 8
    s_add_u32 s61, s61, s53
    s_mul_i32 s52, s52, 20480
    s_mul_i32 s53, s{SW}, 5120
    s_add_u32 s52, s52, s53
    s_add_u32 s52, s52, {WS_PQ}
    s_mul_i32 s62, s{SW}, {8*1680}
    s_add_u32 s62, s62, {WS_KV}
    s_mov_b32 s73, {EPS}
    s_mov_b32 s66, 0xffff0000
    s_mov_b32 s67, -1
    s_mov_b32 s68, 0
    s_mov_b32 s69, -1
    s_mov_b32 s70, 0
    s_mov_b32 s71, 0xffff0000""")
    for r in range(KV, KV + 72): a(f"v_mov_b32 v{r}, 0")
    a("WAITTAG K0")
    a.extend(wreads(0, WA))
    a("s_waitcnt lgkmcnt(0)")
    for g in dma(2, 0): a.extend(g)
    a("WAITTAG K1")
    a.extend(wreads(1, WB))
    a("s_waitcnt lgkmcnt(0)")
    for g in dma(3, 1): a.extend(g)
    a(probe(14, 12, "s60"))
    stamp(a, 5)
    check(a, "b2q", 14, 12, "s60", 1)
    for sub in range(NS):
        for c in range(5):
            a(f"buffer_load_dwordx4 {v4(PQ + (sub*5+c)*4)}, v{5 if c < 4 else 7}, {sq(SRDWS)}, s52 offen offset:{1024*(c%4)} sc1")
        if sub < NS - 1: a("s_add_u32 s52, s52, 20480")
    a(probe(14, 13, "s61"))
    check(a, "b2kv", 14, 13, "s61", 1)
    stamp(a, 6)
    raw = [RAW + 4 * i for i in range(12)] + [KV + 64, KV + 68]
    for hf in range(2):
        for i in range(7):
            a(f"buffer_load_dwordx4 {v4(raw[hf*7+i])}, v{5 if i < 4 else 7}, {sq(SRDWS)}, s62 offen offset:{1024*(i%4)} sc1")
        if hf == 0: a("s_add_u32 s62, s62, 6720")
    for r in range(4): a(f"v_mov_b32 v{12+r}, s73")
    qi = {}
    tabs = [b2_tables(0), b2_tables(1)]
    def build_half(hf):
        o = []
        for i in range(7):
            r = raw[hf * 7 + i]
            o += [f"v_cvt_pk_bf16_f32 v{r}, v{r}, v{r+1}", f"v_cvt_pk_bf16_f32 v{r+1}, v{r+2}, v{r+3}", f"ds_write_b64 v6, {v2(r)} offset:{512*i}"]
        if hf == 1: o += [f"v_mov_b32 v{KV+64+k}, 0" for k in range(8)]
        num, den = tabs[hf]
        quads = [("z", hf, dt) for c, dts in den for dt in dts] + [("n", t, dt) for t in num for c, dts in num[t] for dt in dts]
        assert len(quads) == 18
        rd = []
        for (kind, t, dt) in quads:
            q = len(qi); qi[(kind, t, dt)] = q
            mask = 0
            for l in range(64):
                i, g = l & 15, l >> 4
                hd = (16 * dt + 4 * g) // 20
                he = (16 * t + i) // 20 if kind == "n" else (i & 3) + 4 * t
                if hd == he: mask |= 1 << l
            off = 640 * (t - 5 * hf) + 32 * (dt - 5 * hf) if kind == "n" else 800 + 32 * (dt - 5 * hf)
            rd.append([f"s_mov_b32 exec_lo, {mask & 0xffffffff:#x}", f"s_mov_b32 exec_hi, {mask >> 32:#x}", f"ds_read_b64 {v2(KV + 2*q)}, v{3 if kind == 'n' else 4} offset:{off}"])
        return o, rd
    def omf(sub, hf, T):
        o = []
        num, den = tabs[hf]
        def one(kind, t, lst, acc):
            lst = sorted(lst, key=lambda x: len(x[1]))
            for k, (c, dts) in enumerate(lst):
                src = v4(acc) if k else ("v[12:15]" if kind == "z" else "0")
                kv = KV + 2 * qi[(kind, t, dts[0])]
                pq = PQ + (sub * 5 + c) * 4
                key = (min(k, 1), 0 if kind == "z" else 1, t, k)
                if len(dts) == 2: o.append((key, f"v_mfma_f32_16x16x32_bf16 {v4(acc)}, {v4(kv)}, {v4(pq)}, {src}"))
                else: o.append((key, f"v_mfma_f32_16x16x16_bf16 {v4(acc)}, {v2(kv)}, {v2(pq + 2*(dts[0]&1))}, {src}"))
        one("z", hf, den, T)
        for t in num: one("n", t, num[t], T + 4 + 4 * (t - 5 * hf))
        return [x for _, x in sorted(o)]
    def ovalu(sub, hf, T):
        o = []
        for r in range(4): o.append(f"v_rcp_f32 v{T+r}, v{T+r}")
        for tl in range(5):
            t = tl + 5 * hf
            h0 = (16 * tl) // 20; h1 = (16 * tl + 12) // 20
            rc = T + h0; n = T + 4 + 4 * tl
            if h0 != h1:
                g0 = min(g for g in range(4) if (16 * tl + 4 * g) // 20 == h1)
                o.append(f"v_cndmask_b32 v{rc}, v{T+h0}, v{T+h1}, s[{64+2*g0}:{65+2*g0}]")
            for r in range(4): o.append(f"v_mul_f32 v{n+r}, v{n+r}, v{rc}")
            d = PQ + (sub * 5 + t // 2) * 4 + 2 * (t & 1)
            o.append(f"v_cvt_pk_bf16_f32 v{d}, v{n}, v{n+1}")
            o.append(f"v_cvt_pk_bf16_f32 v{d+1}, v{n+2}, v{n+3}")
        return o
    def acc(sub, n): return ACC + (n * NS + sub) * 4
    def g2(k, W, ns=range(8)):
        return [f"v_mfma_f32_16x16x32_bf16 {v4(acc(sub, n))}, {v4(W[n])}, {v4(PQ + (sub*5+k)*4)}, {'0' if k == 0 else v4(acc(sub, n))}" for n in ns for sub in range(NS)]
    units = [(s_, h) for h in range(2) for s_ in range(NS)]
    nu = len(units)
    w0, r0 = build_half(0)
    a.extend(w0)
    for g in r0: a.extend(g)
    a("s_mov_b64 exec, -1")
    w1, r1 = build_half(1)
    a.extend(w1)
    r1g = [r1[k] + r1[k + 1] + ["s_mov_b64 exec, -1"] for k in range(0, 18, 2)]
    a.extend(interleave(omf(*units[0], U[0]), r1g, 1, 11))
    stamp(a, 7)
    for u in range(1, nu):
        a.extend(interleave(omf(*units[u], U[u & 1]), ovalu(*units[u - 1], U[(u - 1) & 1]), 2))
    a.extend(interleave(g2(0, WA), ovalu(*units[nu - 1], U[(nu - 1) & 1]), 2))
    k1 = g2(1, WB)
    a.extend(interleave(k1[:10], wreads(0, WA), 0, 8))
    a("s_waitcnt lgkmcnt(0)")
    a.extend(interleave(k1[10:], dma(4, 0), 0, 10))
    ad = []
    for gam in range(1, 4):
        ad += [f"s_xor_b32 s52, s{SW}, {gam}", "s_mul_i32 s52, s52, 20480", f"s_add_u32 s52, s52, {(gam-1)*6144}", f"s_add_u32 s52, s52, s{SLB}", f"v_add_u32 v{203+gam}, s52, v5"]
    ad += f"""v_add_u32 v207, s65, v5
    s_add_u32 s53, s65, 18432
    v_and_b32 v12, 15, v1
    v_mul_u32_u24 v12, 80, v12
    v_lshrrev_b32 v3, 4, v1
    v_lshl_add_u32 v12, v3, 3, v12
    v_add_u32 v12, s53, v12
    v_lshrrev_b32 v3, 2, v1
    v_and_b32 v4, 3, v1
    v_lshlrev_b32 v4, 4, v4
    v_mul_u32_u24 v15, 80, v3
    v_add3_u32 v15, v15, v4, s53
    s_mul_i32 s52, s57, 48
    v_add_u32 v3, s52, v3
    v_mul_u32_u24 v3, 2560, v3
    v_add_u32 v3, v3, v4
    s_lshl_b32 s52, s58, 8
    s_lshl_b32 s54, s{SW}, 6
    s_add_u32 s52, s52, s54
    s_add_u32 s52, s52, 1280""".split("\n")
    a.extend(interleave(interleave(g2(2, WA), wreads(1, WB), 0, 16), ad))
    pre = g2(3, WB, [0, 1, 2, 3])
    a.extend(pre[:4]); a("WAITTAG K4")
    rd4 = wreads(0, WA); rd4 = rd4[4:] + rd4[:4]
    a.extend(interleave(pre[4:], rd4))
    def wr(gam): return [f"ds_write_b128 v207, {v4(ACC + (gam*6+k)*4)} offset:{(gam-1)*6144 + 1024*k}" for k in range(6)]
    a.extend(g2(4, WA, [2, 3]))
    a.extend(interleave(g2(3, WB, [4, 5]) + g2(4, WA, [4, 5]), wr(1), 2))
    a.extend(interleave(g2(3, WB, [6, 7]) + g2(4, WA, [6, 7]), wr(2), 2))
    a.extend(interleave(g2(4, WA, [0, 1]), wr(3), 2))
    stamp(a, 8)
    bar_arrive(a); bar_wait(a, True)
    R = 16
    order = [n * NS + sub for sub in range(NS) for n in range(2)]
    for k in order:
        for gam in range(3): a(f"ds_read_b128 {v4(R + (k*3+gam)*4)}, v{204+gam} offset:{1024*k}")
    for k in order:
        n, sub = k // NS, k % NS
        for r in range(4): a(f"v_add_f32 v{ACC+4*k+r}, v{ACC+4*k+r}, v{R+(k*3)*4+r}")
        for r in range(4): a(f"v_add_f32 v{R+(k*3+1)*4+r}, v{R+(k*3+1)*4+r}, v{R+(k*3+2)*4+r}")
        for r in range(4): a(f"v_add_f32 v{ACC+4*k+r}, v{ACC+4*k+r}, v{R+(k*3+1)*4+r}")
        a(f"v_cvt_pk_bf16_f32 v{140+2*k}, v{ACC+4*k}, v{ACC+4*k+1}\n v_cvt_pk_bf16_f32 v{141+2*k}, v{ACC+4*k+2}, v{ACC+4*k+3}")
        a(f"ds_write_b64 v12, {v2(140+2*k)} offset:{32*n}")
        if n == 1:
            a(f"ds_read_b128 {v4(160+4*sub)}, v15")
            if sub > 0:
                a(f"buffer_store_dwordx4 {v4(160+4*(sub-1))}, v3, {sq(SRD1)}, s52 offen{OSC()}\n s_add_u32 s52, s52, {16*2560}")
    a(f"buffer_store_dwordx4 {v4(160+4*(NS-1))}, v3, {sq(SRD1)}, s52 offen{OSC()}")

def OSC(): return ["", " sc1", " nt", " sc0 sc1"][cfg.osc]

def kd(name):
    return f""".p2align 6
.amdhsa_kernel {name}
  .amdhsa_next_free_vgpr 256
  .amdhsa_next_free_sgpr 102
  .amdhsa_accum_offset 256
  .amdhsa_group_segment_fixed_size 0
  .amdhsa_kernarg_size 96
  .amdhsa_user_sgpr_count 2
  .amdhsa_user_sgpr_kernarg_segment_ptr 1
  .amdhsa_system_sgpr_workgroup_id_x 1
  .amdhsa_float_denorm_mode_32 3
.end_amdhsa_kernel"""

def head(name): return f".globl {name}\n.p2align 8\n.type {name},@function"

def build():
    k = KN + "_kernel"
    a = Asm()
    a(head(k)); prologue(a, k, 256)
    a("s_cmp_ge_u32 s2, 192\n s_cbranch_scc1 L_P")
    g_ids(a)
    a(f"s_cmp_eq_u32 s{SGRP}, 0\n s_cbranch_scc1 L_CONS")
    tag(a, 7)
    role_loader(a)
    a("s_cmp_ge_u32 s2, 96\n s_cbranch_scc1 L_CONV\n s_branch L_B2")
    a.label("L_CONS")
    a(f"s_cmp_lg_u32 s{SW}, 0\n s_cbranch_scc1 L_ZW\n s_cmp_ge_u32 s2, {NZERO}\n s_cbranch_scc1 L_ZW")
    zero_wave(a)
    a(f"s_cmp_lg_u32 s{SW}, 3\n s_cbranch_scc1 L_CONS1")
    init_wave(a, "g")
    a.label("L_CONS1")
    a(f"s_setprio {cfg.cprio}")
    args_ready(a)
    g_setup2(a)
    a("s_cmp_ge_u32 s58, 8\n s_cbranch_scc1 L_Q")
    tag(a, 1); role_kv(a)
    a("s_cmp_ge_u32 s2, 80\n s_cbranch_scc1 L_FIN")
    tag(a, 8); role_fin(a)
    if cfg.enc == 89: a("s_waitcnt vmcnt(0)"); stamp(a, 9)
    a("s_branch L_FIN")
    a.label("L_Q"); tag(a, 2); role_q(a); a("s_branch L_B2")
    a.label("L_P"); role_prep(a)
    a.label("L_CONV"); role_conv(a)
    if cfg.enc == 49: a("s_waitcnt vmcnt(0)"); stamp(a, 9)
    a("s_branch L_FIN")
    a.label("L_B2")
    a("""s_lshr_b32 s53, s2, 3
    s_sub_u32 s54, s53, 4
    s_cmp_lt_u32 s53, 12
    s_cselect_b32 s53, s53, s54
    s_cmp_ge_u32 s53, 27
    s_cbranch_scc1 L_FIN
    s_and_b32 s56, s2, 7
    s_mul_i32 s56, s56, 27
    s_add_u32 s56, s56, s53
    s_cmp_ge_u32 s56, 215
    s_cbranch_scc1 L_FIN""")
    tag(a, 5); role_b2(a)
    if cfg.enc == 59: a("s_waitcnt vmcnt(0)"); stamp(a, 9)
    a.label("L_FIN"); stamps_out(a)
    if cfg.enc:
        a("s_waitcnt vmcnt(0) lgkmcnt(0)")
        a.label("L_SPIN")
        a("s_sleep 1\n s_memrealtime s[94:95]\n s_waitcnt lgkmcnt(0)\n s_sub_u32 s94, s94, s96\n s_cmp_lt_u32 s94, 2500\n s_cbranch_scc1 L_SPIN")
    a.label("L_END"); a("s_endpgm")
    launch = [f"; @launch grid=(256,1,1) block=(512,1,1) lds={LDS_BYTES}"]
    return launch, a, [k]

def emit(path, launch, a, kernels, verbose=False):
    body = fix_hazards(insert_waits(a.lines), verbose)
    out = list(launch) + ['.amdgcn_target "amdgcn-amd-amdhsa--gfx950"', ".text", ".p2align 8", "L_CODE_BEGIN:"]
    out += [(l if l.endswith(":") or l.startswith(".") else "    " + l) for l in body]
    out += ["L_CODE_END:", "    s_endpgm", '.section .rodata,"a"'] + [kd(k) for k in kernels]
    open(path, "w").write("\n".join(out) + "\n")

if __name__ == "__main__":
    cfg.stamps = "stamps" in sys.argv[2:]
    cfg.rot = "norot" not in sys.argv[2:]
    for x in sys.argv[2:]:
        if "=" in x: setattr(cfg, x.split("=")[0], int(x.split("=")[1]))
    emit(sys.argv[1], *build(), verbose="-v" in sys.argv)
```

```python
import sys
sys.path.insert(0, "dev")
from asmlib import *

KN = "concat_heads__ssm_conv_h3__linear_attn_block__prompt"
WS_KVFLG = 0x0000
WS_YFLG  = 0x2000
WS_UFLG  = 0x4800
WS_QFLAG = 0x5000
WS_CNT   = 0x8000
WS_KV    = 0xD000
NZERO    = 56
TP = 4224
WS_UT    = 0x100000
WS_YT    = 0x400000
WS_PQ    = 0x700000
WS_STAMP = 0xA00000
WS_SIZE  = 0xB00000
LDS_BYTES = 163840
HALF = 81920
L_BAR = HALF - 64
L_SIG = HALF - 60
SGRP, SLB, SBT, SW8, SLD = 74, 75, 76, 77, 72
LOG2E = 0x3FB8AA3B
EPS = 0x358637BD

P_Q, P_K, P_V, P_SH, P_H, P_D, P_X, P_W, P_WO, P_OUT, P_DBG, P_WS = [4 + 2 * i for i in range(12)]
SRD0, SRD1, SRD2, SRD3, SRD4, SRDWS = 28, 32, 36, 40, 44, 48
SW = 3

def srd(a, d, p, nbytes):
    a(f"s_mov_b32 s{d}, s{p}\n s_and_b32 s{d+1}, s{p+1}, 0xffff\n s_mov_b32 s{d+2}, {nbytes}\n s_mov_b32 s{d+3}, 0x20000")
def sq(d): return f"s[{d}:{d+3}]"
def v4(r): return f"v[{r}:{r+3}]"
def v2(r): return f"v[{r}:{r+1}]"

class Cfg:
    stamps = False
    rot = False
    gonly = 0
    ahead0 = 4
    ahead = 4
    bpos = 3
    lprio = 3
    cprio = 2
    psleep = 4
    qlate = 3
    pprio = 0
    qit = 6
    tlb = 0
    pwait = 1
    eprio = 3
    fprio = 3
    qrel = 8
    qst = 1
    osc = 0
    gate = 1
    usig = 4
    qbar = 1
    spf = 0
    slab = 0
    enc = 0
    role = 0
    pmode = 0
    x_noq = 0
    x_plain = 0
    x_pend = 0
    x_nost = 0
cfg = Cfg()

NSTAMP = 10
def stamp(a, i, force=False):
    if cfg.slab and not force and i != NSTAMP - 1 and cfg.role in (7, 4, 5): return
    if cfg.enc and cfg.enc == cfg.role * 10 + i:
        a("s_memrealtime s[96:97]\n s_waitcnt lgkmcnt(0)")
    if cfg.stamps:
        a(f"s_memrealtime s[{80+2*i}:{81+2*i}]\n s_waitcnt lgkmcnt(0)")
def stamps_out(a):
    if not cfg.stamps: return
    a("s_waitcnt vmcnt(0) lgkmcnt(0)")
    stamp(a, NSTAMP - 1)
    a("s_memtime s[70:71]\n s_waitcnt lgkmcnt(0)\n s_sub_u32 s101, s70, s101")
    a(f"s_getreg_b32 s52, hwreg(HW_REG_HW_ID)\n s_getreg_b32 s53, hwreg(HW_REG_XCC_ID)")
    for i in range(NSTAMP): a(f"v_mov_b32 v{16+i}, s{80+2*i}")
    a(f"v_mov_b32 v26, s52\n v_mov_b32 v27, s53\n v_mov_b32 v28, s100\n v_mov_b32 v29, s2\n v_mov_b32 v30, s101\n v_mov_b32 v31, 0")
    a(f"s_lshl_b32 s54, s2, 9\n s_lshl_b32 s55, s{SW8}, 6\n s_add_u32 s54, s54, s55\n s_add_u32 s54, s54, {WS_STAMP}")
    a(f"v_mov_b32 v32, 0\n s_mov_b64 exec, 1")
    for i in range(4): a(f"buffer_store_dwordx4 {v4(16+4*i)}, v32, {sq(SRDWS)}, s54 offen offset:{16*i}")
    a("s_mov_b64 exec, -1")
def tag(a, t):
    cfg.role = t
    if cfg.stamps: a(f"s_lshl_b32 s100, s100, 4\n s_add_u32 s100, s100, {t}")

def prologue(a, name, nwg):
    a.label(name)
    if cfg.enc: a("s_memrealtime s[98:99]\n s_memrealtime s[96:97]")
    a(f"""s_load_dwordx16 s[4:19], s[0:1], 0
    s_load_dwordx8 s[20:27], s[0:1], 64
    s_cmp_ge_u32 s2, {nwg}
    s_cbranch_scc1 L_END
    v_and_b32 v1, 63, v0
    v_lshrrev_b32 v2, 6, v0
    s_mov_b32 s{SBT}, 0
    v_readfirstlane_b32 s{SW8}, v2
    v_mov_b32 v12, 0
    s_mov_b32 s{SLD}, 0""")
    if cfg.stamps:
        for i in range(NSTAMP): a(f"s_mov_b32 s{80+2*i}, 0")
        a("s_mov_b32 s100, 0\n s_memrealtime s[80:81]\n s_memtime s[98:99]")
    a(f"""s_and_b32 s{SW}, s{SW8}, 3
    s_lshr_b32 s{SGRP}, s{SW8}, 2
    s_mul_i32 s{SLB}, s{SGRP}, {HALF}""")

def init_wave(a, name):
    a("s_getpc_b64 s[52:53]")
    a.label(f"L_PC{name}")
    a(f"""s_lshr_b32 s54, s2, 3
    s_and_b32 s54, s54, 7
    s_lshl_b32 s54, s54, 13
    v_lshlrev_b32 v3, 7, v1
    v_add_u32 v3, s54, v3
    s_sub_u32 s52, s52, L_PC{name}-L_CODE_BEGIN
    s_subb_u32 s53, s53, 0
    v_min_u32 v3, L_CODE_END-L_CODE_BEGIN-4, v3
    global_load_dword v15, v3, s[52:53]""")
    lds_init(a)
    if cfg.tlb:
        n = cfg.tlb
        a(f"s_waitcnt lgkmcnt(0)\n s_mov_b64 exec, {(1 << n) - 1}")
        for k, (p, size) in enumerate(((P_WS, WS_STAMP), (P_OUT, 2048 * 2560), (P_Q, 2048 * 1280), (P_H, 640 * 4096), (P_WO, 640 * 1280))):
            st = (size - 128) // (n - 1) // 128 * 128
            a(f"s_mov_b32 s54, {st}\n v_mul_lo_u32 v3, v1, s54\n global_load_dword v{250+k}, v3, s[{p}:{p+1}]")
        a("s_mov_b64 exec, -1")

def lds_init(a):
    a(f"""v_and_b32 v4, 15, v1
    v_lshlrev_b32 v4, 2, v4
    v_bfe_u32 v5, v1, 4, 1
    v_mul_u32_u24 v5, {HALF}, v5
    v_add_u32 v4, v4, v5
    v_add_u32 v4, {L_BAR}, v4
    v_mov_b32 v5, 0
    ds_write_b32 v4, v5""")

def args_ready(a):
    a("s_waitcnt lgkmcnt(0)")
    if cfg.stamps: a("s_mov_b32 s101, s98")
    srd(a, SRDWS, P_WS, WS_SIZE if cfg.stamps else WS_STAMP)
    srd(a, SRD4, P_DBG, 256)

def bar_arrive(a):
    a(f"""v_mov_b32 v13, s{SLB}
    v_mov_b32 v14, 1
    v_add_u32 v13, {L_BAR}, v13
    s_add_u32 s{SBT}, s{SBT}, 4
    s_mov_b64 exec, 1
    ds_add_u32 v13, v14
    s_mov_b64 exec, -1""")
def bar_wait(a, addr_ok=False):
    n = bar_wait.n; bar_wait.n += 1
    if not addr_ok: a(f"v_mov_b32 v13, s{SLB}\n v_add_u32 v13, {L_BAR}, v13")
    a.label(f"L_BW_{n}")
    a(f"""ds_read_b32 v14, v13
    s_waitcnt lgkmcnt(0)
    v_cmp_gt_u32 vcc, s{SBT}, v14
    s_nop 1
    s_cbranch_vccnz L_BW_{n}""")
bar_wait.n = 0

def phi_block(regs_, temps):
    out = []
    n = len(temps)
    for g in range(0, len(regs_), n):
        grp = regs_[g:g + n]
        for r, t in zip(grp, temps): out.append(f"v_mul_f32 v{t}, s70, v{r}")
        for r, t in zip(grp, temps): out.append(f"v_exp_f32 v{t}, v{t} clamp"); out.append(f"v_max_f32 v{r}, s71, v{r}")
        for r, t in zip(grp, temps): out.append(f"v_add_f32 v{r}, v{r}, v{t}")
    return out

def probe(vdst, voff, s_off, srdq=SRDWS):
    if cfg.pmode == 3:
        return f"v_mov_b32 v{vdst}, -1\n s_mov_b64 exec, 3\n v_mov_b32 v{vdst}, 0\n buffer_atomic_add v{vdst}, v{voff}, {sq(srdq)}, {s_off} offen sc0 sc1\n s_mov_b64 exec, -1"
    return f"buffer_load_dword v{vdst}, v{voff}, {sq(srdq)}, {s_off} offen " + ["sc1", "sc0 sc1", "sc0 sc1 nt"][cfg.pmode]
def check(a, name, vdst, voff, s_off, target, srdq=SRDWS):
    a(f"v_cmp_gt_u32 vcc, {target}, v{vdst}\n s_mov_b32 s78, 0\n s_nop 0\n s_cbranch_vccz L_OK_{name}")
    a("PUSHSTATE")
    a.label(f"L_POLL_{name}")
    a(f"""s_sleep {cfg.psleep}
    {probe(vdst, voff, s_off, srdq)}
    s_add_u32 s78, s78, 1
    s_waitcnt vmcnt(0)
    v_cmp_gt_u32 vcc, {target}, v{vdst}
    s_cmp_ge_u32 s78, 0x20000
    s_cbranch_scc1 L_OK_{name}
    s_cbranch_vccnz L_POLL_{name}""")
    a("POPSTATE")
    a.label(f"L_OK_{name}")
def zero_probe(a, vd, vz): a(f"v_mov_b32 v{vz}, 128\n" + probe(vd, vz, "0", SRD4))
def zero_check(a, name, vd, vz): check(a, "z" + name, vd, vz, "0", 1, SRD4)
def zero_wave(a):
    a(f"""v_lshlrev_b32 v8, 4, v1
    v_mov_b32 v16, 0
    v_mov_b32 v17, 0
    v_mov_b32 v18, 0
    v_mov_b32 v19, 0
    s_lshl_b32 s54, s2, 11
    s_mov_b32 s79, 1
    s_mov_b32 s78, 1""")
    args_ready(a)
    a(f"""buffer_store_dwordx4 v[16:19], v8, {sq(SRDWS)}, s54 offen sc1
    buffer_store_dwordx4 v[16:19], v8, {sq(SRDWS)}, s54 offen offset:1024 sc1
    s_waitcnt vmcnt(0)
    s_atomic_add s79, s[{P_DBG}:{P_DBG+1}], 0 glc
    s_waitcnt lgkmcnt(0)
    s_cmp_lg_u32 s79, {NZERO-1}
    s_cbranch_scc1 L_ZW
    s_atomic_add s78, s[{P_DBG}:{P_DBG+1}], 128
    s_waitcnt lgkmcnt(0)""")
    a.label("L_ZW")

def signal(a, s_off, nwaves, ldsaddr, narr=1, rstride=128):
    n = signal.n; signal.n += 1
    a(f"""v_mov_b32 v13, {ldsaddr}
    v_mov_b32 v14, 1
    s_add_u32 s68, s{P_WS}, s{s_off}
    s_addc_u32 s69, s{P_WS+1}, 0
    s_mov_b32 s78, 1
    s_waitcnt vmcnt(0)
    s_mov_b64 exec, 1
    ds_add_rtn_u32 v12, v13, v14
    s_mov_b64 exec, -1
    s_waitcnt lgkmcnt(0)
    v_readfirstlane_b32 s79, v12
    s_cmp_lg_u32 s79, {nwaves-1}
    s_cbranch_scc1 L_SIG_{n}""")
    if narr > 1:
        a(f"""s_mov_b32 s79, 1
        s_atomic_add s79, s[68:69], {WS_CNT} glc
        s_waitcnt lgkmcnt(0)
        s_cmp_lg_u32 s79, {narr-1}
        s_cbranch_scc1 L_SIG_{n}""")
    for r in range(8 if narr > 1 else 1): a(f"s_atomic_add s78, s[68:69], {r*rstride}")
    a("s_waitcnt lgkmcnt(0)")
    a.label(f"L_SIG_{n}")
signal.n = 0

def conv_ids(a):
    a("""s_and_b32 s52, s2, 7
    s_mul_i32 s52, s52, 20
    s_lshr_b32 s53, s2, 3
    s_sub_u32 s53, s53, 12
    s_add_u32 s52, s52, s53""")
def sprefetch(a, p, s_off, n):
    a(f"s_add_u32 s68, s{p}, s{s_off}\n s_addc_u32 s69, s{p+1}, 0")
    for i in range(n): a(f"s_load_dword s79, s[68:69], {128*i}")
    a("s_waitcnt lgkmcnt(0)")

def last_barrier(a, name, n_younger):
    a(f"s_cmp_eq_u32 s{SLD}, 0\n s_cbranch_scc1 L_LB_{name}\n PUSHSTATE\n s_waitcnt vmcnt({n_younger})\n s_barrier\n s_setprio 0\n POPSTATE")
    a.label(f"L_LB_{name}")

G_ACC, G_B, G_X = 16, 96, 176
G_SLOT = 36864
def slot_off(j): return ((j & 1) ^ 1) * G_SLOT
def slot_half(j): return (j % 4) >> 1
def g_ids(a):
    a(f"""s_and_b32 s52, s2, 7
    s_lshr_b32 s53, s2, 3
    s_and_b32 s57, s52, 3
    s_lshl_b32 s57, s57, 2
    s_and_b32 s54, s53, 3
    s_add_u32 s57, s57, s54
    s_lshr_b32 s52, s52, 2
    s_lshr_b32 s54, s53, 2
    s_lshl_b32 s58, s52, 2
    s_add_u32 s58, s58, s54
    s_lshl_b32 s52, s52, 1
    s_add_u32 s52, s52, s54
    s_add_u32 s52, s52, 4
    s_cmp_ge_u32 s54, 4
    s_cselect_b32 s58, s52, s58
    s_lshl_b32 s66, s{SW}, 12
    s_add_u32 s66, s66, 20480""")

def g_setup_x(a):
    if cfg.rot:
        a(f"""s_mul_i32 s62, s57, 3
        s_lshl_b32 s59, s58, 1
        s_add_u32 s62, s62, s59
        s_mul_i32 s59, s62, 205
        s_lshr_b32 s59, s59, 11
        s_mul_i32 s59, s59, 10
        s_sub_u32 s62, s62, s59
        s_lshl_b32 s64, s62, 7
        s_mul_i32 s63, s62, {64*3840}""")
    else:
        a("s_mov_b32 s64, 0\n s_mov_b32 s63, 0")
    a(f"""v_lshrrev_b32 v240, 3, v1
    s_lshl_b32 s59, s57, 7
    s_lshl_b32 s54, s{SW}, 5
    s_add_u32 s59, s59, s54
    v_add_u32 v240, s59, v240
    v_mul_u32_u24 v240, 1280, v240
    v_lshrrev_b32 v241, 4, v1
    v_and_b32 v242, 7, v1
    v_xor_b32 v242, v242, v241
    v_lshl_add_u32 v7, v242, 4, v240
    v_xor_b32 v242, 4, v242
    v_lshl_add_u32 v8, v242, 4, v240
    v_add_u32 v8, {10240-1024}, v8
    v_add_u32 v9, {20480-2048}, v7
    v_add_u32 v10, {20480-2048}, v8""")

def g_setup_w(a):
    a(f"""s_mul_i32 s59, s58, 160
    s_add_u32 s60, s59, 1280
    s_add_u32 s61, s59, {2560-160}
    s_sub_u32 s59, s58, 8
    s_mul_i32 s59, s59, 320
    s_cmp_ge_u32 s58, 8
    s_cselect_b32 s60, s59, s60
    s_cselect_b32 s61, s59, s61
    s_mul_i32 s59, s{SW}, {16*3840}
    s_add_u32 s60, s60, s59
    s_add_u32 s61, s61, s59
    s_mul_i32 s65, s{SW}, 5120""")
    a(f"v_mov_b32 v244, s60\n v_mov_b32 v245, s61")
    for i in range(5):
        assert all(((64 * i + l) * 3277) >> 16 == (64 * i + l) // 20 for l in range(64))
        a(f"""v_add_u32 v240, {64*i}, v1
        v_mul_u32_u24 v241, 3277, v240
        v_lshrrev_b32 v241, 16, v241
        v_mul_u32_u24 v242, 20, v241
        v_sub_u32 v240, v240, v242""")
        if i == 2: a("v_lshrrev_b32 v242, 4, v1\n v_and_b32 v242, 2, v242\n v_xor_b32 v240, v240, v242")
        if i > 2: a("v_xor_b32 v240, 2, v240")
        a(f"""v_cmp_gt_u32 vcc, 10, v240
        v_mul_u32_u24 v241, 3840, v241
        v_lshl_add_u32 v240, v240, 4, v241
        v_cndmask_b32 v242, v245, v244, vcc""")
        if i in (0, 4): a(f"v_add_u32 v{2+i}, v240, v242")
        else: a(f"v_add_u32 v240, v240, v242\n v_subrev_u32 v{2+i}, {1024*i}, v240")

def g_setup2(a):
    a(f"""v_lshrrev_b32 v241, 4, v1
    v_bfe_u32 v242, v1, 2, 2
    v_lshl_add_u32 v242, v241, 3, v242
    v_mul_u32_u24 v242, 320, v242
    v_and_b32 v243, 3, v1
    v_lshl_add_u32 v242, v243, 3, v242
    v_and_b32 v243, 1, v241
    v_lshlrev_b32 v243, 5, v243
    v_add_u32 v9, v242, v243
    v_sub_u32 v10, v242, v243
    v_and_b32 v240, 15, v1
    v_lshrrev_b32 v242, 1, v240
    v_xor_b32 v242, v242, v241
    v_lshlrev_b32 v240, 7, v240
    v_add_u32 v240, s66, v240
    v_lshl_add_u32 v11, v242, 4, v240
    v_xor_b32 v242, 4, v242
    v_lshl_add_u32 v12, v242, 4, v240
    s_mov_b32 s70, {LOG2E}
    s_mov_b32 s71, {EPS}""")
    for k in range(4): a(f"v_add_u32 v{2+k}, {HALF}, v{9+k}")

def g_loadx(j):
    o = [f"s_add_u32 m0, s66, {slot_half(j) * HALF + slot_off(j)}", "s_nop 0"]
    for i in range(4): o.append(f"buffer_load_dwordx4 v{7+i}, {sq(SRD0)}, s64 offen offset:{1024*i} lds ; tag=S{j}")
    o += ["s_add_u32 s64, s64, 128"]
    if cfg.rot: o += ["s_cmp_eq_u32 s64, 1280", "s_cselect_b32 s64, 0, s64"]
    return o
def g_loadw(j):
    base = slot_half(j) * HALF + slot_off(j)
    o = [f"s_add_u32 m0, s65, {base}", "s_nop 0"]
    for i in range(4): o.append(f"buffer_load_dwordx4 v{2+i}, {sq(SRD1)}, s63 offen offset:{1024*i} lds ; tag=S{j}")
    o += [f"s_add_u32 m0, s65, {base + 4096}", "s_nop 0", f"buffer_load_dwordx4 v6, {sq(SRD1)}, s63 offen lds ; tag=S{j}"]
    o += [f"s_add_u32 s63, s63, {64*3840}"]
    if cfg.rot: o += [f"s_cmp_eq_u32 s63, {640*3840}", "s_cselect_b32 s63, 0, s63"]
    return o
def g_xreads(j):
    return [f"ds_read_b128 {v4(G_X + (j&1)*16 + ks*8 + sub*4)}, v{(4 if slot_half(j) else 11)+ks} offset:{slot_off(j) + sub*2048}" for ks in range(2) for sub in range(2)]
def g_reads(t):
    j = t // 2
    o = []
    for n in range(10):
        for h in range(2):
            off = slot_off(j) + (t & 1) * 10240 + h * 1280 + 32 * n
            o.append(f"ds_read_b64_tr_b16 {v2(G_B + (t & 1) * 40 + n * 4 + 2 * h)}, v{(2 if slot_half(j) else 9) + (n & 1)} offset:{off}")
    return o

def role_loader(a):
    a(f"s_setprio {cfg.lprio}")
    g_setup_x(a)
    a("s_waitcnt lgkmcnt(0)")
    srd(a, SRD0, P_X, 2048 * 1280)
    a.extend(g_loadx(0))
    g_setup_w(a)
    srd(a, SRD1, P_W, 640 * 3840)
    seq = []
    for j in range(10): seq += [g_loadx(j), g_loadw(j)]
    pos = 1
    def upto(n):
        nonlocal pos
        while pos < min(n, 20): a.extend(seq[pos]); pos += 1
    upto(cfg.ahead0)
    args_ready(a)
    stamp(a, 1)
    for j in range(9):
        a(f"WAITTAG S{j}")
        if cfg.slab == 2 and j < 8: stamp(a, j + 1, True)
        a("s_barrier")
        if cfg.slab == 1 and j < 8: stamp(a, j + 1, True)
        if j == 0: stamp(a, 2)
        if j == 6: zero_probe(a, 14, 13)
        upto(min(2 * (j + 1) + cfg.ahead, 2 * (j + 4)))
    zero_check(a, "ld", 14, 13)
    a(f"s_mov_b32 s{SLD}, 1")
    stamp(a, 3)

def g_main(a, transposed, tail):
    a("s_waitcnt vmcnt(0) lgkmcnt(0)\n s_barrier")
    stamp(a, 1)
    a.extend(g_xreads(0) + g_reads(0))
    def mfma(t, n, sub):
        j, ks = t // 2, t % 2
        acc = v4(G_ACC + (sub * 10 + n) * 4)
        x = v4(G_X + (j & 1) * 16 + ks * 8 + sub * 4)
        b = v4(G_B + (t & 1) * 40 + n * 4)
        c = "0" if t == 0 else acc
        return f"v_mfma_f32_16x16x32_bf16 {acc}, {b}, {x}, {c}" if transposed else f"v_mfma_f32_16x16x32_bf16 {acc}, {x}, {b}, {c}"
    for t in range(19):
        j, ks = t // 2, t % 2
        mf = [mfma(t, n, sub) for n in range(10) for sub in range(2)]
        rd = g_reads(t + 1)
        if ks == 1:
            rd = g_xreads(j + 1) + rd
            a.extend(mf[:cfg.bpos]); a("s_waitcnt lgkmcnt(0)" + "\n s_barrier")
            a.extend(interleave(mf[cfg.bpos:], rd))
        else:
            a.extend(interleave(mf, rd))
    tail([mfma(19, n, sub) for n in range(10) for sub in range(2)])

def role_q(a):
    a(f"""s_lshl_b32 s52, s57, 3
    s_lshl_b32 s53, s{SW}, 1
    s_add_u32 s52, s52, s53
    s_mul_i32 s52, s52, 20
    s_sub_u32 s53, s58, 8
    s_mul_i32 s54, s53, 5
    s_add_u32 s52, s52, s54
    s_lshl_b32 s52, s52, 10
    s_add_u32 s52, s52, {WS_PQ}
    s_mul_i32 s55, s53, 17
    s_add_u32 s55, s55, s57
    s_lshl_b32 s55, s55, 7
    s_add_u32 s55, s55, {WS_QFLAG}
    v_lshlrev_b32 v6, 4, v1""")
    def tail(mf):
        bar_arrive(a)
        ep = []
        for c in range(5):
            for sub in range(2):
                r0 = G_ACC + (sub * 10 + 2 * c) * 4
                ep += phi_block(list(range(r0, r0 + 8)), list(range(240, 248)))
                d = G_B + (sub * 5 + c) * 4
                ep += [f"v_cvt_pk_bf16_f32 v{d+k}, v{r0+2*k}, v{r0+2*k+1}" for k in range(4)]
                ep += [f"s_add_u32 s54, s52, {(sub*20+c)*1024}", f"buffer_store_dwordx4 {v4(d)}, v6, {sq(SRDWS)}, s54 offen sc1"]
        a.extend(mf[:8])
        a.extend(interleave(mf[8:], ep[:24]))
        stamp(a, 2)
        zero_probe(a, 7, 8)
        a.extend(ep[24:])
    g_main(a, True, tail)
    stamp(a, 3)
    zero_check(a, "q", 7, 8)
    signal(a, 55, 4, L_SIG)
    stamp(a, 4)

def role_kv(a):
    EX, HB = G_SLOT, 0
    DUMP = HB + 4 * 2048
    AD = 208
    a(f"""v_lshlrev_b32 v240, 4, v1
    s_mul_i32 s52, s{SW}, 10240
    s_add_u32 s52, s52, {EX}
    v_add_u32 v{AD+6}, s52, v240
    s_lshl_b32 s52, s{SW}, 10
    s_add_u32 s52, s52, {EX}
    v_add_u32 v{AD+7}, s52, v240
    v_and_b32 v246, 15, v1
    v_lshrrev_b32 v247, 4, v1
    v_lshlrev_b32 v247, 2, v247
    s_lshl_b32 s52, s{SW}, 2
    v_subrev_u32 v246, s52, v246
    v_subrev_u32 v247, s52, v247
    s_lshl_b32 s53, s{SW}, 11
    v_mov_b32 v245, {DUMP}
    v_lshlrev_b32 v{AD+8}, 2, v1
    v_add_u32 v{AD+9}, s53, v{AD+8}""")
    for k in range(4): a(f"v_mov_b32 v{AD+12+k}, 0x3f803f80")
    k = 0
    for dt in range(2):
        for et in range(2):
            a(f"""v_add_u32 v240, {16*dt}, v247
            v_add_u32 v241, {16*et}, v246
            v_max_u32 v242, v240, v241
            v_cmp_gt_u32 vcc, 20, v242
            v_mul_u32_u24 v241, 80, v241
            v_lshl_add_u32 v241, v240, 2, v241
            v_add_u32 v241, s53, v241
            v_cndmask_b32 v{AD+k}, v245, v241, vcc""")
            k += 1
        a(f"""v_add_u32 v240, {16*dt}, v247
        v_and_b32 v241, 15, v1
        v_mul_u32_u24 v241, 20, v241
        v_max_u32 v242, v240, v241
        v_cmp_gt_u32 vcc, 20, v242
        v_lshlrev_b32 v240, 2, v240
        v_add_u32 v240, s53, v240
        v_add_u32 v240, 1600, v240
        v_cndmask_b32 v{AD+4+dt}, v245, v240, vcc""")
    a(f"""s_lshl_b32 s52, s58, 2
    s_add_u32 s52, s52, s{SW}
    s_mul_i32 s52, s52, 1680
    s_add_u32 s52, s52, {WS_KV}
    s_lshl_b32 s55, s58, 7""")
    def tail(mf):
        ep = []
        for t in [0, 1, 5, 2, 6, 7, 3, 8, 9, 4]:
            r0 = G_ACC + t * 4; r1 = G_ACC + (10 + t) * 4
            if t < 5: ep += phi_block(list(range(r0, r0 + 4)) + list(range(r1, r1 + 4)), list(range(240, 248)))
            d = G_B + t * 4
            ep += [f"v_cvt_pk_bf16_f32 v{d}, v{r0}, v{r0+1}", f"v_cvt_pk_bf16_f32 v{d+1}, v{r0+2}, v{r0+3}",
                   f"v_cvt_pk_bf16_f32 v{d+2}, v{r1}, v{r1+1}", f"v_cvt_pk_bf16_f32 v{d+3}, v{r1+2}, v{r1+3}",
                   f"ds_write_b128 v{AD+6}, {v4(d)} offset:{t*1024}"]
        a.extend(mf[:6])
        a.extend(interleave(mf[6:], ep[:28]))
        stamp(a, 2)
        zero_probe(a, 7, 8)
        a.extend(ep[28:])
    g_main(a, False, tail)
    bar_arrive(a); bar_wait(a, True)
    F = 136
    for rg in range(4):
        for q, off in enumerate([0, 5120, 1024, 6144]):
            a(f"ds_read_b128 {v4(F + rg*16 + [0, 2, 1, 3][q]*4)}, v{AD+7} offset:{rg*10240 + off}")
    D = 16
    for rg in range(4):
        for dt in range(2):
            A = v4(F + rg * 16 + dt * 4)
            acc = v4(D + 16 + dt * 4)
            a(f"v_mfma_f32_16x16x32_bf16 {acc}, {A}, {v4(AD+12)}, {'0' if rg == 0 else acc}")
            for et in range(2):
                acc = v4(D + (dt * 2 + et) * 4)
                a(f"v_mfma_f32_16x16x32_bf16 {acc}, {A}, {v4(F + rg*16 + 8 + et*4)}, {'0' if rg == 0 else acc}")
    zero_check(a, "kv", 7, 8)
    for k in [4, 0, 1, 5, 2, 3]: a(f"ds_write_b128 v{AD+k}, {v4(D + 4*k)}")
    for i in range(7): a(f"ds_read_b32 v{48+i}, v{AD+9} offset:{256*i}")
    bar_arrive(a)
    stamp(a, 3)
    for i in range(7):
        if i == 6: a("s_mov_b32 exec_hi, 0xf")
        a(f"buffer_atomic_add_f32 v{48+i}, v{AD+8}, {sq(SRDWS)}, s52 offen offset:{256*i}")
    a("s_mov_b64 exec, -1")
    signal(a, 55, 4, L_SIG, 16, 1024)
    stamp(a, 4)

C_HCOPY = 4224; C_UH = 148; C_WAVE = 2 * C_HCOPY + 2 * C_UH * 16
C_STG = HALF + 4 * C_WAVE; C_STGP = 4160
PV = 224
def role_prep(a):
    a(f"""s_and_b32 s52, s2, 7
    s_lshl_b32 s52, s52, 2
    s_bfe_u32 s53, s2, 0x20004
    s_add_u32 s52, s52, s53
    s_lshl_b32 s52, s52, 6
    s_bfe_u32 s65, s2, 0x10003
    s_mul_i32 s53, s65, 320
    s_sub_u32 s54, s{SW8}, 3
    s_lshl_b32 s55, s{SW8}, 1
    s_cmp_ge_u32 s{SW8}, 3
    s_cselect_b32 s54, s54, s55
    s_lshl_b32 s54, s54, 6
    s_add_u32 s53, s53, s54
    v_lshrrev_b32 v240, 3, v1
    v_lshl_add_u32 v241, v240, 3, s52
    v_and_b32 v242, 7, v1
    v_lshl_add_u32 v243, v242, 3, s53
    v_mul_u32_u24 v241, 1280, v241
    v_lshl_add_u32 v{PV}, v243, 1, v241
    s_movk_i32 s55, 5120""")
    def common2(rev):
        a(f"""v_add_u32 v241, s53, v240
        v_mul_u32_u24 v241, {TP}, v241
        v_lshl_add_u32 v{PV+3}, v242, 4, v241
        s_mul_i32 s54, s{SW}, 20480
        s_mul_i32 s63, s{SGRP}, 10240
        s_add_u32 s54, s54, s63
        v_mul_u32_u24 v241, 1040, v242
        v_add_u32 v241, s54, v241""")
        if rev: a("v_sub_u32 v240, 7, v240")
        a(f"""v_lshl_add_u32 v{PV+4}, v240, 4, v241
        v_lshl_add_u32 v{PV+5}, v1, 4, s54
        s_lshl_b32 s64, s52, 1
        s_mov_b32 s70, 0x05040100
        s_mov_b32 s71, 0x07060302""")
    def rds(R): return [f"ds_read_b128 {v4(R+4*i)}, v{PV+5} offset:{1040*i}" for i in range(8)]
    def sts(R, extra): return [x for i in range(8) for x in (f"s_add_u32 s54, s64, {8*TP*i + extra}", f"buffer_store_dwordx4 {v4(R+4*i)}, v{PV+3}, {sq(SRDWS)}, s54 offen sc1")]
    a(f"s_cmp_lt_u32 s{SW8}, 3\n s_cbranch_scc1 L_PQ")
    tag(a, 3)
    a(f"v_subrev_u32 v{PV+1}, 3840, v{PV}\n v_lshlrev_b32 v{PV+2}, 3, v243\n s_waitcnt lgkmcnt(0)")
    srd(a, SRD0, P_K, 2048 * 1280)
    K, V, C = 16, 60, 92
    for r in range(3): a(f"buffer_load_dwordx4 {v4(K+4*r)}, v{PV+1}, {sq(SRD0)}, 0 offen offset:{1280*r}")
    for r in range(8): a(f"buffer_load_dwordx4 {v4(K+12+4*r)}, v{PV}, {sq(SRD0)}, {'s55' if r >= 4 else '0'} offen offset:{1280*(r%4)}")
    srd(a, SRD1, P_V, 2048 * 1280); srd(a, SRD3, P_SH, 640 * 8)
    for r in range(4): a(f"buffer_load_dwordx4 {v4(C+4*r)}, v{PV+2}, {sq(SRD3)}, 0 offen offset:{16*r}")
    for r in range(8):
        a(f"buffer_load_dwordx4 {v4(V+4*r)}, v{PV}, {sq(SRD1)}, {'s55' if r >= 4 else '0'} offen offset:{1280*(r%4)}")
    args_ready(a)
    common2(True)
    a(f"s_sub_u32 s64, {WS_UT + 1984*2}, s64\n s_mov_b32 s62, 0xffff0000")
    stamp(a, 1)
    P, T, U, O = 108, 120, 184, 192
    for ch in range(8):
        dw, hi = ch // 2, ch % 2
        sel = "s71" if hi else "s70"
        for s_ in range(-2, 8):
            a(f"v_perm_b32 v{P+s_+2}, v{K+4*(s_+2)+dw}, v{K+4*(s_+3)+dw}, {sel}")
        for s_ in range(8): a(f"v_dot2_f32_bf16 v{T+8*ch+s_}, v{P+s_}, v{C+2*ch+1}, 0")
        for s_ in range(8): a(f"v_dot2_f32_bf16 v{T+8*ch+s_}, v{P+s_+2}, v{C+2*ch}, v{T+8*ch+s_}")
    for ch in range(8):
        dw, hi = ch // 2, ch % 2
        for s_ in range(8):
            a(f"v_and_b32 v{U+s_}, s62, v{V+4*s_+dw}" if hi else f"v_lshlrev_b32 v{U+s_}, 16, v{V+4*s_+dw}")
        for s_ in range(8): a(f"v_mul_f32 v{T+8*ch+s_}, v{T+8*ch+s_}, v{U+s_}")
        o = O + 4 * ch
        for j in range(4): a(f"v_cvt_pk_bf16_f32 v{o+j}, v{T+8*ch+7-2*j}, v{T+8*ch+6-2*j}")
        a(f"ds_write_b128 v{PV+4}, {v4(o)} offset:{128*ch}")
    a.extend(rds(16) + sts(16, 0))
    stamp(a, 2)
    zero_probe(a, 3, 4)
    zero_check(a, "pu", 3, 4)
    a("s_waitcnt vmcnt(0)\n s_barrier")
    stamp(a, 3)
    a(f"s_cmp_eq_u32 s{SGRP}, 1\n s_cbranch_scc1 L_CONV")
    a(f"""s_lshl_b32 s65, s65, 10
    s_add_u32 s65, s65, {WS_UFLG}
    s_add_u32 s68, s{P_WS}, s65
    s_addc_u32 s69, s{P_WS+1}, 0
    s_mov_b32 s78, 1
    s_mov_b32 s79, 1
    s_atomic_add s79, s[68:69], {WS_CNT} glc
    s_waitcnt lgkmcnt(0)
    s_cmp_lg_u32 s79, 31
    s_cbranch_scc1 L_B2""")
    for r in range(8): a(f"s_atomic_add s78, s[68:69], {128*r}")
    a("s_waitcnt lgkmcnt(0)\n s_branch L_B2")
    a.label("L_PQ")
    tag(a, 6)
    a(f"s_cmp_lg_u32 s{SW8}, 2\n s_cbranch_scc1 L_PQ0")
    init_wave(a, "p")
    a.label("L_PQ0")
    args_ready(a)
    a("s_waitcnt vmcnt(0)\n s_barrier")
    if cfg.pwait:
        a(f"s_and_b32 s61, s2, 7\n s_lshl_b32 s61, s61, 7\n s_bfe_u32 s54, s2, 0x10002\n s_lshl_b32 s54, s54, 10\n s_add_u32 s61, s61, s54\n s_add_u32 s61, s61, {WS_UFLG}\n v_mov_b32 v12, 0")
        a(probe(15, 12, "s61")); check(a, "pw", 15, 12, "s61", 1)
    stamp(a, 3)
    a("s_branch L_B2")

def conv_head(a, pr=False):
    a(f"""s_and_b32 s52, s2, 7
    s_mul_i32 s52, s52, 20
    s_lshr_b32 s53, s2, 3
    s_and_b32 s61, s2, 7
    s_sub_u32 s53, s53, 12
    s_add_u32 s57, s52, s53
    s_lshl_b32 s58, s57, 2
    s_add_u32 s58, s58, s{SW}
    s_lshl_b32 s59, s58, 12
    s_mul_i32 s60, s{SW}, {C_WAVE}
    s_add_u32 s60, s60, {HALF}
    s_add_u32 s52, s{P_H}, s59
    s_addc_u32 s53, s{P_H+1}, 0
    s_load_dword s66, s[52:53], 0
    s_lshr_b32 s54, s58, 1
    s_lshl_b32 s54, s54, 2
    s_load_dword s67, s[{P_D}:{P_D+1}], s54
    s_lshl_b32 s61, s61, 7
    s_cmp_ge_u32 s57, 80
    s_cselect_b32 s54, 1024, 0
    s_add_u32 s61, s61, s54
    s_add_u32 s61, s61, {WS_UFLG}
    s_lshr_b32 s63, s57, 4
    s_lshl_b32 s63, s63, 10
    s_add_u32 s63, s63, {WS_YFLG}
    v_lshlrev_b32 v2, 4, v1
    v_add_u32 v3, 4, v2
    v_mov_b32 v12, 0""")
    if pr: a(probe(15, 12, "s61"))
    srd(a, SRD0, P_H, 640 * 4096)
    a(f"s_add_u32 m0, s60, 32")
    for i in range(4): a(f"buffer_load_dwordx4 v2, {sq(SRD0)}, s59 offen offset:{1024*i} lds ; tag=H")
    a(f"s_add_u32 m0, s60, {C_HCOPY + 32}")
    for i in range(4): a(f"buffer_load_dwordx4 v3, {sq(SRD0)}, s59 offen offset:{1024*i} lds ; tag=H")
    a("s_waitcnt lgkmcnt(0)")

def role_conv(a):
    ACC, A, RAW, B, UL = 16, 48, 80, 128, 224
    conv_head(a, True)
    last_barrier(a, "conv", 9)
    tag(a, 4)
    stamp(a, 4)
    check(a, "convu", 15, 12, "s61", 1)
    stamp(a, 5)
    a(f"s_mul_i32 s55, s58, {TP}\n s_add_u32 s54, s55, {WS_UT}\n s_add_u32 s55, s55, {WS_YT}")
    for i in range(4): a(f"buffer_load_dwordx4 {v4(UL+4*i)}, v2, {sq(SRDWS)}, s54 offen offset:{1024*i} sc1")
    a(f"""v_and_b32 v8, 15, v1
    v_lshrrev_b32 v9, 4, v1
    v_add_u32 v10, 1, v8
    v_bfe_u32 v11, v10, 1, 1
    v_mul_u32_u24 v11, {C_HCOPY}, v11
    v_lshrrev_b32 v13, 2, v10
    v_lshl_add_u32 v13, v9, 3, v13
    v_lshl_add_u32 v11, v13, 3, v11
    v_add_u32 v4, s60, v11
    v_and_b32 v10, 1, v10
    v_lshlrev_b32 v5, 4, v10
    v_lshlrev_b32 v10, 1, v9
    v_sub_u32 v10, v10, v8
    v_add_u32 v10, 15, v10
    v_lshlrev_b32 v10, 4, v10
    v_add_u32 v6, s60, v10
    v_lshrrev_b32 v10, 1, v1
    v_and_b32 v11, 1, v1
    v_mul_u32_u24 v11, {C_UH}, v11
    v_add_u32 v10, v10, v11
    v_lshlrev_b32 v10, 4, v10
    v_add_u32 v7, s60, v10
    v_mov_b32 v16, 0
    v_mov_b32 v17, 0
    v_mov_b32 v18, 0
    v_mov_b32 v19, 0
    v_and_b32 v10, 1, v9
    v_mul_u32_u24 v10, {C_UH}, v10
    v_add_u32 v10, v10, v8
    v_lshl_add_u32 v20, v10, 4, s60
    v_and_b32 v10, 1, v1
    v_lshlrev_b32 v10, 4, v10
    v_bfe_u32 v11, v1, 1, 1
    v_mul_u32_u24 v11, {C_HCOPY}, v11
    v_add3_u32 v21, v10, v11, s60
    v_lshlrev_b32 v10, 5, v8
    v_lshl_add_u32 v8, v9, 3, v10""")
    a(f"""s_waitcnt lgkmcnt(0)
    s_lshl_b32 s52, s66, 16
    s_lshl_b32 s53, s67, 16
    s_and_b32 s54, s67, 0xffff0000
    s_bitcmp1_b32 s58, 0
    s_cselect_b32 s53, s54, s53
    s_and_b32 s54, s66, 0xffff0000
    v_mov_b32 v10, s52
    v_add_f32 v10, s53, v10
    v_mov_b32 v11, s54
    v_cvt_pk_bf16_f32 v10, v10, v11
    v_mov_b32 v11, s60
    WAITTAG H
    ds_write_b128 v21, v[16:19]
    ds_write_b32 v11, v10 offset:32
    ds_write_b32 v11, v10 offset:{C_HCOPY+28}
    ds_write_b128 v20, v[16:19] offset:{2*C_HCOPY + 128*16}""")
    def raw_slots(i):
        return [(0, 1, 2), (2, 0, 1), (1, 2, 0), (0, 1, 2)][i]
    def raw_reads(it, N1):
        N0, i = it >> 2, it & 3
        sl = raw_slots(i)
        return [f"ds_read_b64 {v2(RAW + N1*6 + 2*sl[k])}, v4 offset:{(2*N1+N0)*256 + (2*i+k)*8}" for k in range(0 if i == 0 else 1, 3)]
    def aligns(it, N1):
        sl = raw_slots(it & 3)
        d = [RAW + N1 * 6 + 2 * sl[0], RAW + N1 * 6 + 2 * sl[0] + 1, RAW + N1 * 6 + 2 * sl[1], RAW + N1 * 6 + 2 * sl[1] + 1, RAW + N1 * 6 + 2 * sl[2]]
        return [f"v_alignbit_b32 v{A + 4*N1 + k}, v{d[k+1]}, v{d[k]}, v5" for k in range(4)]
    def b_reads(it):
        N0, i = it >> 2, it & 3
        return [f"ds_read_b128 {v4(B + (it&1)*32 + 4*dl)}, v6 offset:{2*C_HCOPY + (14-(2*dl-N0))*128 + (i>>1)*16 + (i&1)*C_UH*16}" for dl in range(8)]
    for N1 in range(8): a.extend(raw_reads(0, N1))
    for N1 in range(8):
        a.extend(aligns(0, N1)); a.extend(raw_reads(1, N1))
    for i in range(4): a(f"ds_write_b128 v7, {v4(UL+4*i)} offset:{2*C_HCOPY + 512*i}")
    a.extend(b_reads(0))
    fin_head(a)
    stamp(a, 6)
    queue = []
    for it in range(8):
        if it < 7: queue += b_reads(it + 1)
        for N1 in range(8):
            tg = f"v_alignbit_b32 v{A+4*N1+3},"
            pos = max((k for k, q in enumerate(queue) if q.startswith(tg)), default=-1)
            for q in queue[:pos + 1]: a(q)
            queue = queue[pos + 1:]
            for J in range(N1, 8):
                acc = v4(ACC + 4 * J)
                c = "0" if (it == 0 and N1 == 0) else acc
                a(f"v_mfma_f32_16x16x32_bf16 {acc}, {v4(A+4*N1)}, {v4(B + (it&1)*32 + 4*(J-N1))}, {c}")
                for _ in range(2):
                    if queue: a(queue.pop(0))
            if it < 7: queue += aligns(it + 1, N1)
            if it < 6: queue += raw_reads(it + 2, N1)
        assert not any(q.startswith("ds_read_b128") for q in queue)
    assert not queue
    stamp(a, 7)
    a(f"s_setprio {cfg.eprio}\n v_add_u32 v9, s60, v8\n v_add_u32 v10, s60, v2")
    for J in range(8):
        T = 48 + 2 * J
        a(f"v_cvt_pk_bf16_f32 v{T}, v{ACC+4*J}, v{ACC+4*J+1}\n v_cvt_pk_bf16_f32 v{T+1}, v{ACC+4*J+2}, v{ACC+4*J+3}")
        a(f"ds_write_b64 v9, {v2(T)} offset:{512*J}")
    for i in range(4): a(f"ds_read_b128 {v4(64+4*i)}, v10 offset:{1024*i}")
    for i in range(4): a(f"buffer_store_dwordx4 {v4(64+4*i)}, v2, {sq(SRDWS)}, s55 offen offset:{1024*i} sc1")
    stamp(a, 8)
    signal(a, 63, 4, HALF + L_SIG, 16)

FV = 240
def fin_head(a):
    a(f"""s_lshr_b32 s53, s2, 3
    s_sub_u32 s56, s53, 12
    s_sub_u32 s54, s53, 22
    s_cmp_ge_u32 s53, 26
    s_cselect_b32 s54, s54, 15
    s_cmp_lt_u32 s53, 16
    s_cselect_b32 s56, s56, s54
    s_and_b32 s52, s2, 7
    s_lshl_b32 s52, s52, 2
    s_add_u32 s52, s52, s{SW}
    s_lshl_b32 s52, s52, 6
    s_lshl_b32 s53, s56, 6
    v_lshrrev_b32 v244, 3, v1
    v_lshl_add_u32 v245, v244, 3, s52
    v_and_b32 v246, 7, v1
    v_lshl_add_u32 v247, v246, 3, s53
    v_mul_u32_u24 v245, 1280, v245
    v_lshl_add_u32 v247, v247, 1, v245
    v_add_u32 v{FV}, v247, v245
    v_add_u32 v245, s53, v244
    v_mul_u32_u24 v245, {TP}, v245
    v_lshl_add_u32 v{FV+1}, v246, 4, v245
    v_mul_u32_u24 v245, 1040, v246
    v_lshl_add_u32 v245, v244, 4, v245
    v_add_u32 v{FV+2}, s60, v245
    s_lshl_b32 s64, s52, 1
    s_add_u32 s64, s64, {WS_YT}
    s_movk_i32 s53, 5120""")
    srd(a, SRD2, P_Q, 2048 * 1280); srd(a, SRD1, P_OUT, 2048 * 2560)
    a("s_cmp_ge_u32 s56, 10\n s_cbranch_scc1 L_FH\n PUSHSTATE")
    for r in range(8): a(f"buffer_load_dwordx4 {v4(192+4*r)}, v247, {sq(SRD2)}, {'s53' if r >= 4 else '0'} offen offset:{1280*(r%4)}")
    a("POPSTATE"); a.label("L_FH")

def role_fin(a):
    Q, QF, Y, T, L = 192, 48, 112, 144, 16
    a(f"""s_setprio {cfg.fprio}
    s_and_b32 s61, s2, 7
    s_lshl_b32 s61, s61, 7
    s_lshl_b32 s54, s56, 10
    s_add_u32 s61, s61, s54
    s_add_u32 s61, s61, {WS_YFLG}
    s_mov_b32 s62, 0xffff0000
    v_mov_b32 v12, 0""")
    a(probe(15, 12, "s61"))
    for r in range(8):
        for d in range(4):
            a(f"v_lshlrev_b32 v{QF+8*r+2*d}, 16, v{Q+4*r+d}\n v_and_b32 v{QF+8*r+2*d+1}, s62, v{Q+4*r+d}")
    stamp(a, 1)
    check(a, "fin", 15, 12, "s61", 1)
    stamp(a, 2)
    for i in range(8): a(f"s_add_u32 s54, s64, {8*TP*i}\n buffer_load_dwordx4 {v4(L+4*i)}, v{FV+1}, {sq(SRDWS)}, s54 offen sc1")
    for i in range(8): a(f"ds_write_b128 v10, {v4(L+4*i)} offset:{1040*i}")
    for ch in range(8): a(f"ds_read_b128 {v4(Y+4*ch)}, v{FV+2} offset:{128*ch}")
    stamp(a, 3)
    a("s_mov_b32 s54, 0")
    for r in range(8):
        t = T + 8 * (r & 1)
        for ch in range(8):
            src = Y + 4 * ch + r // 2
            a(f"v_and_b32 v{t+ch}, s62, v{src}" if r & 1 else f"v_lshlrev_b32 v{t+ch}, 16, v{src}")
        for ch in range(8): a(f"v_mul_f32 v{t+ch}, v{t+ch}, v{QF+8*r+ch}")
        o = 160 + 4 * r
        for d in range(4): a(f"v_cvt_pk_bf16_f32 v{o+d}, v{t+2*d}, v{t+2*d+1}")
        a(f"buffer_store_dwordx4 {v4(o)}, v{FV}, {sq(SRD1)}, s54 offen{OSC()}")
        if r < 7: a("s_add_u32 s54, s54, 2560")

def b2_tables(hf):
    num = {}
    for t in range(5 * hf, 5 * hf + 5):
        hs = {e // 20 for e in range(16 * t, 16 * t + 16)}
        dts = [dt for dt in range(10) if hs & {d // 20 for d in range(16 * dt, 16 * dt + 16)}]
        ch = {}
        for dt in dts: ch.setdefault(dt // 2, []).append(dt)
        num[t] = sorted(ch.items())
    ch = {}
    for dt in range(5 * hf, 5 * hf + 5): ch.setdefault(dt // 2, []).append(dt)
    return num, sorted(ch.items())

B_KS = 8416
NS = 3
def role_b2(a):
    PQ, KV, RAW = 16, 108, 180
    WA = [76 + 4 * n for n in range(8)]
    WB = [228 + 4 * n for n in range(7)] + [8]
    ACC = 108
    U = [180, 204]
    a(f"""s_mul_i32 s57, s56, 205
    s_lshr_b32 s57, s57, 10
    s_mul_i32 s54, s57, 5
    s_sub_u32 s58, s56, s54""")
    assert all((v * 205) >> 10 == v // 5 for v in range(216))
    srd(a, SRD0, P_WO, 640 * 1280)
    a(f"""s_lshl_b32 s59, s58, 8
    s_mul_i32 s52, s{SW}, {160*1280}
    s_add_u32 s59, s59, s52
    s_lshl_b32 s53, s{SW}, 6
    s_mul_i32 s65, s{SW}, 20480
    s_add_u32 s65, s65, s{SLB}
    v_and_b32 v8, 15, v1
    v_lshrrev_b32 v9, 4, v1
    v_lshlrev_b32 v2, 4, v8
    v_xor_b32 v2, s53, v2
    v_mul_u32_u24 v10, {8*1280}, v9
    v_add3_u32 v2, v2, v10, s59""")
    def dma(kstep, slot):
        return [[f"s_add_u32 m0, s65, {slot*B_KS + i*1056}", f"s_mov_b32 s63, {(32*kstep + i)*1280}",
                 f"buffer_load_dwordx4 v2, {sq(SRD0)}, s63 offen lds ; tag=K{kstep}"] for i in range(8)]
    def wreads(slot, dst):
        return [f"ds_read_b64_tr_b16 {v2(dst[n] + 2*h)}, v0 offset:{slot*B_KS + h*512 + 32*n}" for n in range(8) for h in range(2)]
    bar_wait(a)
    for g in dma(0, 0): a.extend(g)
    last_barrier(a, "b2", 8)
    for g in dma(1, 1): a.extend(g)
    a(f"s_setprio {cfg.cprio}")
    srd(a, SRD1, P_OUT, 2048 * 2560)
    a(f"""v_bfe_u32 v10, v1, 2, 3
    v_mul_u32_u24 v10, 1056, v10
    v_lshrrev_b32 v11, 5, v1
    v_lshl_add_u32 v10, v11, 8, v10
    v_and_b32 v11, 3, v1
    v_lshl_add_u32 v10, v11, 3, v10
    v_add_u32 v0, s65, v10
    s_add_u32 s64, s65, {2*B_KS}
    v_lshlrev_b32 v9, 3, v9
    v_mul_u32_u24 v3, 40, v8
    v_add3_u32 v3, v3, v9, s64
    v_mul_u32_u24 v4, 800, v11
    v_add3_u32 v4, v4, v9, s64
    v_lshlrev_b32 v5, 4, v1
    v_lshlrev_b32 v6, 3, v1
    v_add_u32 v6, s64, v6
    v_add_u32 v7, 4096, v5
    s_mul_i32 s52, s57, 3
    s_lshr_b32 s53, s52, 3
    s_add_u32 s54, s52, 2
    s_min_u32 s54, s54, 127
    s_lshr_b32 s54, s54, 3
    s_sub_u32 s54, s54, s53
    s_lshl_b32 s54, s54, 7
    v_and_b32 v12, 1, v1
    v_lshlrev_b32 v13, 7, v12
    v_mul_u32_u24 v12, s54, v12
    s_mul_i32 s60, s{SW}, 17
    s_add_u32 s60, s60, s53
    s_lshl_b32 s60, s60, 7
    s_add_u32 s60, s60, {WS_QFLAG}
    s_and_b32 s61, s2, 7
    s_lshl_b32 s61, s61, 10
    s_lshl_b32 s53, s{SW}, 8
    s_add_u32 s61, s61, s53
    s_mul_i32 s52, s52, 20480
    s_mul_i32 s53, s{SW}, 5120
    s_add_u32 s52, s52, s53
    s_add_u32 s52, s52, {WS_PQ}
    s_mul_i32 s62, s{SW}, {8*1680}
    s_add_u32 s62, s62, {WS_KV}
    s_mov_b32 s73, {EPS}
    s_mov_b32 s66, 0xffff0000
    s_mov_b32 s67, -1
    s_mov_b32 s68, 0
    s_mov_b32 s69, -1
    s_mov_b32 s70, 0
    s_mov_b32 s71, 0xffff0000""")
    for r in range(KV, KV + 72): a(f"v_mov_b32 v{r}, 0")
    a("WAITTAG K0")
    a.extend(wreads(0, WA))
    a("WAITTAG K1")
    a.extend(wreads(1, WB))
    a("s_waitcnt lgkmcnt(0)")
    if cfg.gate:
        a(f"s_cmp_eq_u32 s{SLD}, 0\n s_cbranch_scc1 L_GT\n v_mov_b32 v15, {L_BAR}")
        a.label("L_GTW")
        a("s_sleep 4\n ds_read_b32 v14, v15\n s_waitcnt lgkmcnt(0)\n v_cmp_gt_u32 vcc, 8, v14\n s_nop 1\n s_cbranch_vccnz L_GTW")
        a.label("L_GT")
    for g in dma(2, 0) + dma(3, 1): a.extend(g)
    a(probe(14, 12, "s60"))
    stamp(a, 5)
    check(a, "b2q", 14, 12, "s60", 1)
    for sub in range(NS):
        for c in range(5):
            a(f"buffer_load_dwordx4 {v4(PQ + (sub*5+c)*4)}, v{5 if c < 4 else 7}, {sq(SRDWS)}, s52 offen offset:{1024*(c%4)} sc1")
        if sub < NS - 1: a("s_add_u32 s52, s52, 20480")
    a(probe(14, 13, "s61"))
    check(a, "b2kv", 14, 13, "s61", 1)
    stamp(a, 6)
    raw = [RAW + 4 * i for i in range(12)] + [KV + 64, KV + 68]
    for hf in range(2):
        for i in range(7):
            a(f"buffer_load_dwordx4 {v4(raw[hf*7+i])}, v{5 if i < 4 else 7}, {sq(SRDWS)}, s62 offen offset:{1024*(i%4)} sc1")
        if hf == 0: a("s_add_u32 s62, s62, 6720")
    for r in range(4): a(f"v_mov_b32 v{12+r}, s73")
    qi = {}
    tabs = [b2_tables(0), b2_tables(1)]
    def build_half(hf):
        o = []
        for i in range(7):
            r = raw[hf * 7 + i]
            o += [f"v_cvt_pk_bf16_f32 v{r}, v{r}, v{r+1}", f"v_cvt_pk_bf16_f32 v{r+1}, v{r+2}, v{r+3}", f"ds_write_b64 v6, {v2(r)} offset:{512*i}"]
        if hf == 1: o += [f"v_mov_b32 v{KV+64+k}, 0" for k in range(8)]
        num, den = tabs[hf]
        quads = [("z", hf, dt) for c, dts in den for dt in dts] + [("n", t, dt) for t in num for c, dts in num[t] for dt in dts]
        assert len(quads) == 18
        rd = []
        for (kind, t, dt) in quads:
            q = len(qi); qi[(kind, t, dt)] = q
            mask = 0
            for l in range(64):
                i, g = l & 15, l >> 4
                hd = (16 * dt + 4 * g) // 20
                he = (16 * t + i) // 20 if kind == "n" else (i & 3) + 4 * t
                if hd == he: mask |= 1 << l
            off = 640 * (t - 5 * hf) + 32 * (dt - 5 * hf) if kind == "n" else 800 + 32 * (dt - 5 * hf)
            rd.append([f"s_mov_b32 exec_lo, {mask & 0xffffffff:#x}", f"s_mov_b32 exec_hi, {mask >> 32:#x}", f"ds_read_b64 {v2(KV + 2*q)}, v{3 if kind == 'n' else 4} offset:{off}"])
        return o, rd
    def omf(sub, hf, T):
        o = []
        num, den = tabs[hf]
        def one(kind, t, lst, acc):
            lst = sorted(lst, key=lambda x: len(x[1]))
            for k, (c, dts) in enumerate(lst):
                src = v4(acc) if k else ("v[12:15]" if kind == "z" else "0")
                kv = KV + 2 * qi[(kind, t, dts[0])]
                pq = PQ + (sub * 5 + c) * 4
                key = (min(k, 1), 0 if kind == "z" else 1, t, k)
                if len(dts) == 2: o.append((key, f"v_mfma_f32_16x16x32_bf16 {v4(acc)}, {v4(kv)}, {v4(pq)}, {src}"))
                else: o.append((key, f"v_mfma_f32_16x16x16_bf16 {v4(acc)}, {v2(kv)}, {v2(pq + 2*(dts[0]&1))}, {src}"))
        one("z", hf, den, T)
        for t in num: one("n", t, num[t], T + 4 + 4 * (t - 5 * hf))
        return [x for _, x in sorted(o)]
    def ovalu(sub, hf, T):
        o = []
        for r in range(4): o.append(f"v_rcp_f32 v{T+r}, v{T+r}")
        for tl in range(5):
            t = tl + 5 * hf
            h0 = (16 * tl) // 20; h1 = (16 * tl + 12) // 20
            rc = T + h0; n = T + 4 + 4 * tl
            if h0 != h1:
                g0 = min(g for g in range(4) if (16 * tl + 4 * g) // 20 == h1)
                o.append(f"v_cndmask_b32 v{rc}, v{T+h0}, v{T+h1}, s[{64+2*g0}:{65+2*g0}]")
            for r in range(4): o.append(f"v_mul_f32 v{n+r}, v{n+r}, v{rc}")
            d = PQ + (sub * 5 + t // 2) * 4 + 2 * (t & 1)
            o.append(f"v_cvt_pk_bf16_f32 v{d}, v{n}, v{n+1}")
            o.append(f"v_cvt_pk_bf16_f32 v{d+1}, v{n+2}, v{n+3}")
        return o
    def acc(sub, n): return ACC + (n * NS + sub) * 4
    def g2(k, W, ns=range(8)):
        return [f"v_mfma_f32_16x16x32_bf16 {v4(acc(sub, n))}, {v4(W[n])}, {v4(PQ + (sub*5+k)*4)}, {'0' if k == 0 else v4(acc(sub, n))}" for n in ns for sub in range(NS)]
    units = [(s_, h) for h in range(2) for s_ in range(NS)]
    nu = len(units)
    w0, r0 = build_half(0)
    a.extend(w0)
    for g in r0: a.extend(g)
    a("s_mov_b64 exec, -1")
    w1, r1 = build_half(1)
    a.extend(w1)
    r1g = [r1[k] + r1[k + 1] + ["s_mov_b64 exec, -1"] for k in range(0, 18, 2)]
    a.extend(interleave(omf(*units[0], U[0]), r1g, 1, 11))
    stamp(a, 7)
    for u in range(1, nu):
        a.extend(interleave(omf(*units[u], U[u & 1]), ovalu(*units[u - 1], U[(u - 1) & 1]), 2))
    a.extend(interleave(g2(0, WA), ovalu(*units[nu - 1], U[(nu - 1) & 1]), 2))
    k1 = g2(1, WB)
    a.extend(interleave(k1[:10], wreads(0, WA), 0, 8))
    a("s_waitcnt lgkmcnt(0)")
    a.extend(interleave(k1[10:], dma(4, 0), 0, 10))
    ad = []
    for gam in range(1, 4):
        ad += [f"s_xor_b32 s52, s{SW}, {gam}", "s_mul_i32 s52, s52, 20480", f"s_add_u32 s52, s52, {(gam-1)*6144}", f"s_add_u32 s52, s52, s{SLB}", f"v_add_u32 v{203+gam}, s52, v5"]
    ad += f"""v_add_u32 v207, s65, v5
    s_add_u32 s53, s65, 18432
    v_and_b32 v12, 15, v1
    v_mul_u32_u24 v12, 80, v12
    v_lshrrev_b32 v3, 4, v1
    v_lshl_add_u32 v12, v3, 3, v12
    v_add_u32 v12, s53, v12
    v_lshrrev_b32 v3, 2, v1
    v_and_b32 v4, 3, v1
    v_lshlrev_b32 v4, 4, v4
    v_mul_u32_u24 v15, 80, v3
    v_add3_u32 v15, v15, v4, s53
    s_mul_i32 s52, s57, 48
    v_add_u32 v3, s52, v3
    v_mul_u32_u24 v3, 2560, v3
    v_add_u32 v3, v3, v4
    s_lshl_b32 s52, s58, 8
    s_lshl_b32 s54, s{SW}, 6
    s_add_u32 s52, s52, s54
    s_add_u32 s52, s52, 1280""".split("\n")
    a.extend(interleave(interleave(g2(2, WA), wreads(1, WB), 0, 16), ad))
    pre = g2(3, WB, [0, 1, 2, 3])
    a.extend(pre[:4]); a("WAITTAG K4")
    rd4 = wreads(0, WA); rd4 = rd4[4:] + rd4[:4]
    a.extend(interleave(pre[4:], rd4))
    def wr(gam): return [f"ds_write_b128 v207, {v4(ACC + (gam*6+k)*4)} offset:{(gam-1)*6144 + 1024*k}" for k in range(6)]
    a.extend(g2(4, WA, [2, 3]))
    a.extend(interleave(g2(3, WB, [4, 5]) + g2(4, WA, [4, 5]), wr(1), 2))
    a.extend(interleave(g2(3, WB, [6, 7]) + g2(4, WA, [6, 7]), wr(2), 2))
    a.extend(interleave(g2(4, WA, [0, 1]), wr(3), 2))
    stamp(a, 8)
    bar_arrive(a); bar_wait(a, True)
    R = 16
    order = [n * NS + sub for sub in range(NS) for n in range(2)]
    for k in order:
        for gam in range(3): a(f"ds_read_b128 {v4(R + (k*3+gam)*4)}, v{204+gam} offset:{1024*k}")
    for k in order:
        n, sub = k // NS, k % NS
        for r in range(4): a(f"v_add_f32 v{ACC+4*k+r}, v{ACC+4*k+r}, v{R+(k*3)*4+r}")
        for r in range(4): a(f"v_add_f32 v{R+(k*3+1)*4+r}, v{R+(k*3+1)*4+r}, v{R+(k*3+2)*4+r}")
        for r in range(4): a(f"v_add_f32 v{ACC+4*k+r}, v{ACC+4*k+r}, v{R+(k*3+1)*4+r}")
        a(f"v_cvt_pk_bf16_f32 v{140+2*k}, v{ACC+4*k}, v{ACC+4*k+1}\n v_cvt_pk_bf16_f32 v{141+2*k}, v{ACC+4*k+2}, v{ACC+4*k+3}")
        a(f"ds_write_b64 v12, {v2(140+2*k)} offset:{32*n}")
        if n == 1:
            a(f"ds_read_b128 {v4(160+4*sub)}, v15")
            if sub > 0:
                a(f"buffer_store_dwordx4 {v4(160+4*(sub-1))}, v3, {sq(SRD1)}, s52 offen{OSC()}\n s_add_u32 s52, s52, {16*2560}")
    a(f"buffer_store_dwordx4 {v4(160+4*(NS-1))}, v3, {sq(SRD1)}, s52 offen{OSC()}")

def OSC(): return ["", " sc1", " nt", " sc0 sc1"][cfg.osc]

def kd(name):
    return f""".p2align 6
.amdhsa_kernel {name}
  .amdhsa_next_free_vgpr 256
  .amdhsa_next_free_sgpr 102
  .amdhsa_accum_offset 256
  .amdhsa_group_segment_fixed_size 0
  .amdhsa_kernarg_size 96
  .amdhsa_user_sgpr_count 2
  .amdhsa_user_sgpr_kernarg_segment_ptr 1
  .amdhsa_system_sgpr_workgroup_id_x 1
  .amdhsa_float_denorm_mode_32 3
.end_amdhsa_kernel"""

def head(name): return f".globl {name}\n.p2align 8\n.type {name},@function"

def build():
    k = KN + "_kernel"
    a = Asm()
    a(head(k)); prologue(a, k, 256)
    a("s_cmp_ge_u32 s2, 192\n s_cbranch_scc1 L_P")
    g_ids(a)
    a(f"s_cmp_eq_u32 s{SGRP}, 0\n s_cbranch_scc1 L_CONS")
    tag(a, 7)
    role_loader(a)
    a("s_cmp_ge_u32 s2, 96\n s_cbranch_scc1 L_CONV\n s_branch L_B2")
    a.label("L_CONS")
    a(f"s_cmp_lg_u32 s{SW}, 0\n s_cbranch_scc1 L_ZW\n s_cmp_ge_u32 s2, {NZERO}\n s_cbranch_scc1 L_ZW")
    zero_wave(a)
    a(f"s_cmp_lg_u32 s{SW}, 3\n s_cbranch_scc1 L_CONS1")
    init_wave(a, "g")
    a.label("L_CONS1")
    a(f"s_setprio {cfg.cprio}")
    args_ready(a)
    g_setup2(a)
    a("s_cmp_ge_u32 s58, 8\n s_cbranch_scc1 L_Q")
    tag(a, 1); role_kv(a); a("s_branch L_FIN")
    a.label("L_Q"); tag(a, 2); role_q(a); a("s_branch L_B2")
    a.label("L_P"); role_prep(a)
    a.label("L_CONV"); role_conv(a)
    a("s_cmp_ge_u32 s56, 10\n s_cbranch_scc1 L_FIN")
    tag(a, 8); role_fin(a)
    if cfg.enc == 89: a("s_waitcnt vmcnt(0)"); stamp(a, 9)
    a("s_branch L_FIN")
    a.label("L_B2")
    a("""s_lshr_b32 s53, s2, 3
    s_sub_u32 s54, s53, 4
    s_cmp_lt_u32 s53, 12
    s_cselect_b32 s53, s53, s54
    s_cmp_ge_u32 s53, 27
    s_cbranch_scc1 L_FIN
    s_and_b32 s56, s2, 7
    s_mul_i32 s56, s56, 27
    s_add_u32 s56, s56, s53
    s_cmp_ge_u32 s56, 215
    s_cbranch_scc1 L_FIN""")
    tag(a, 5); role_b2(a)
    if cfg.enc == 59: a("s_waitcnt vmcnt(0)"); stamp(a, 9)
    a.label("L_FIN"); stamps_out(a)
    if cfg.enc:
        a("s_waitcnt vmcnt(0) lgkmcnt(0)")
        a.label("L_SPIN")
        a("s_sleep 1\n s_memrealtime s[94:95]\n s_waitcnt lgkmcnt(0)\n s_sub_u32 s94, s94, s96\n s_cmp_lt_u32 s94, 2500\n s_cbranch_scc1 L_SPIN")
    a.label("L_END"); a("s_endpgm")
    launch = [f"; @launch grid=(256,1,1) block=(512,1,1) lds={LDS_BYTES}"]
    return launch, a, [k]

def emit(path, launch, a, kernels, verbose=False):
    body = fix_hazards(insert_waits(a.lines), verbose)
    out = list(launch) + ['.amdgcn_target "amdgcn-amd-amdhsa--gfx950"', ".text", ".p2align 8", "L_CODE_BEGIN:"]
    out += [(l if l.endswith(":") or l.startswith(".") else "    " + l) for l in body]
    out += ["L_CODE_END:", "    s_endpgm", '.section .rodata,"a"'] + [kd(k) for k in kernels]
    open(path, "w").write("\n".join(out) + "\n")

if __name__ == "__main__":
    cfg.stamps = "stamps" in sys.argv[2:]
    cfg.rot = "norot" not in sys.argv[2:]
    for x in sys.argv[2:]:
        if "=" in x: setattr(cfg, x.split("=")[0], int(x.split("=")[1]))
    emit(sys.argv[1], *build(), verbose="-v" in sys.argv)
```

```python
import sys
sys.path.insert(0, "dev")
from asmlib import *

KN = "concat_heads__ssm_conv_h3__linear_attn_block__prompt"
WS_KVFLG = 0x0000
WS_YFLG  = 0x2000
WS_UFLG  = 0x4800
WS_QFLAG = 0x5000
WS_CNT   = 0x8000
WS_KV    = 0xD000
NZERO    = 56
TP = 4224
WS_UT    = 0x100000
WS_YT    = 0x400000
WS_PQ    = 0x700000
WS_STAMP = 0xA00000
WS_SIZE  = 0xB00000
LDS_BYTES = 163840
HALF = 81920
L_BAR = HALF - 64
L_SIG = HALF - 60
SGRP, SLB, SBT, SW8, SLD = 74, 75, 76, 77, 72
LOG2E = 0x3FB8AA3B
EPS = 0x358637BD

P_Q, P_K, P_V, P_SH, P_H, P_D, P_X, P_W, P_WO, P_OUT, P_DBG, P_WS = [4 + 2 * i for i in range(12)]
SRD0, SRD1, SRD2, SRD3, SRD4, SRDWS = 28, 32, 36, 40, 44, 48
SW = 3

def srd(a, d, p, nbytes):
    a(f"s_mov_b32 s{d}, s{p}\n s_and_b32 s{d+1}, s{p+1}, 0xffff\n s_mov_b32 s{d+2}, {nbytes}\n s_mov_b32 s{d+3}, 0x20000")
def sq(d): return f"s[{d}:{d+3}]"
def v4(r): return f"v[{r}:{r+3}]"
def v2(r): return f"v[{r}:{r+1}]"

class Cfg:
    stamps = False
    rot = False
    gonly = 0
    ahead0 = 4
    ahead = 4
    bpos = 3
    lprio = 3
    cprio = 2
    psleep = 4
    qlate = 3
    pprio = 0
    qit = 5
    cgate = 8
    vprio = 3
    fbase = 22
    tail2 = 1
    tlb = 0
    pwait = 1
    eprio = 3
    fprio = 3
    qrel = 8
    qst = 1
    osc = 1
    gate = 1
    usig = 4
    qbar = 1
    spf = 0
    slab = 0
    enc = 0
    role = 0
    pmode = 0
    x_noq = 0
    x_plain = 0
    x_pend = 0
    x_nost = 0
cfg = Cfg()

NSTAMP = 10
def stamp(a, i, force=False):
    if cfg.slab and not force and i != NSTAMP - 1 and cfg.role in (7, 4, 5): return
    if cfg.enc and cfg.enc == cfg.role * 10 + i:
        a("s_memrealtime s[96:97]\n s_waitcnt lgkmcnt(0)")
    if cfg.stamps:
        a(f"s_memrealtime s[{80+2*i}:{81+2*i}]\n s_waitcnt lgkmcnt(0)")
def stamps_out(a):
    if not cfg.stamps: return
    a("s_waitcnt vmcnt(0) lgkmcnt(0)")
    stamp(a, NSTAMP - 1)
    a("s_memtime s[70:71]\n s_waitcnt lgkmcnt(0)\n s_sub_u32 s101, s70, s101")
    a(f"s_getreg_b32 s52, hwreg(HW_REG_HW_ID)\n s_getreg_b32 s53, hwreg(HW_REG_XCC_ID)")
    for i in range(NSTAMP): a(f"v_mov_b32 v{16+i}, s{80+2*i}")
    a(f"v_mov_b32 v26, s52\n v_mov_b32 v27, s53\n v_mov_b32 v28, s100\n v_mov_b32 v29, s2\n v_mov_b32 v30, s101\n v_mov_b32 v31, 0")
    a(f"s_lshl_b32 s54, s2, 9\n s_lshl_b32 s55, s{SW8}, 6\n s_add_u32 s54, s54, s55\n s_add_u32 s54, s54, {WS_STAMP}")
    a(f"v_mov_b32 v32, 0\n s_mov_b64 exec, 1")
    for i in range(4): a(f"buffer_store_dwordx4 {v4(16+4*i)}, v32, {sq(SRDWS)}, s54 offen offset:{16*i}")
    a("s_mov_b64 exec, -1")
def tag(a, t):
    cfg.role = t
    if cfg.stamps: a(f"s_lshl_b32 s100, s100, 4\n s_add_u32 s100, s100, {t}")

def prologue(a, name, nwg):
    a.label(name)
    if cfg.enc: a("s_memrealtime s[98:99]\n s_memrealtime s[96:97]")
    a(f"""s_load_dwordx16 s[4:19], s[0:1], 0
    s_load_dwordx8 s[20:27], s[0:1], 64
    s_cmp_ge_u32 s2, {nwg}
    s_cbranch_scc1 L_END
    v_and_b32 v1, 63, v0
    v_lshrrev_b32 v2, 6, v0
    s_mov_b32 s{SBT}, 0
    v_readfirstlane_b32 s{SW8}, v2
    v_mov_b32 v12, 0
    s_mov_b32 s{SLD}, 0""")
    if cfg.stamps:
        for i in range(NSTAMP): a(f"s_mov_b32 s{80+2*i}, 0")
        a("s_mov_b32 s100, 0\n s_memrealtime s[80:81]\n s_memtime s[98:99]")
    a(f"""s_and_b32 s{SW}, s{SW8}, 3
    s_lshr_b32 s{SGRP}, s{SW8}, 2
    s_mul_i32 s{SLB}, s{SGRP}, {HALF}""")

def init_wave(a, name):
    a("s_getpc_b64 s[52:53]")
    a.label(f"L_PC{name}")
    a(f"""s_lshr_b32 s54, s2, 3
    s_and_b32 s54, s54, 7
    s_lshl_b32 s54, s54, 13
    v_lshlrev_b32 v3, 7, v1
    v_add_u32 v3, s54, v3
    s_sub_u32 s52, s52, L_PC{name}-L_CODE_BEGIN
    s_subb_u32 s53, s53, 0
    v_min_u32 v3, L_CODE_END-L_CODE_BEGIN-4, v3
    global_load_dword v15, v3, s[52:53]""")
    lds_init(a)
    if cfg.tlb:
        n = cfg.tlb
        a(f"s_waitcnt lgkmcnt(0)\n s_mov_b64 exec, {(1 << n) - 1}")
        for k, (p, size) in enumerate(((P_WS, WS_STAMP), (P_OUT, 2048 * 2560), (P_Q, 2048 * 1280), (P_H, 640 * 4096), (P_WO, 640 * 1280))):
            st = (size - 128) // (n - 1) // 128 * 128
            a(f"s_mov_b32 s54, {st}\n v_mul_lo_u32 v3, v1, s54\n global_load_dword v{250+k}, v3, s[{p}:{p+1}]")
        a("s_mov_b64 exec, -1")

def lds_init(a):
    a(f"""v_and_b32 v4, 15, v1
    v_lshlrev_b32 v4, 2, v4
    v_bfe_u32 v5, v1, 4, 1
    v_mul_u32_u24 v5, {HALF}, v5
    v_add_u32 v4, v4, v5
    v_add_u32 v4, {L_BAR}, v4
    v_mov_b32 v5, 0
    ds_write_b32 v4, v5""")

def args_ready(a):
    a("s_waitcnt lgkmcnt(0)")
    if cfg.stamps: a("s_mov_b32 s101, s98")
    srd(a, SRDWS, P_WS, WS_SIZE if cfg.stamps else WS_STAMP)
    srd(a, SRD4, P_DBG, 256)

def bar_arrive(a):
    a(f"""v_mov_b32 v13, s{SLB}
    v_mov_b32 v14, 1
    v_add_u32 v13, {L_BAR}, v13
    s_add_u32 s{SBT}, s{SBT}, 4
    s_mov_b64 exec, 1
    ds_add_u32 v13, v14
    s_mov_b64 exec, -1""")
def bar_wait(a, addr_ok=False):
    n = bar_wait.n; bar_wait.n += 1
    if not addr_ok: a(f"v_mov_b32 v13, s{SLB}\n v_add_u32 v13, {L_BAR}, v13")
    a.label(f"L_BW_{n}")
    a(f"""ds_read_b32 v14, v13
    s_waitcnt lgkmcnt(0)
    v_cmp_gt_u32 vcc, s{SBT}, v14
    s_nop 1
    s_cbranch_vccnz L_BW_{n}""")
bar_wait.n = 0

def phi_block(regs_, temps):
    out = []
    n = len(temps)
    for g in range(0, len(regs_), n):
        grp = regs_[g:g + n]
        for r, t in zip(grp, temps): out.append(f"v_mul_f32 v{t}, s70, v{r}")
        for r, t in zip(grp, temps): out.append(f"v_exp_f32 v{t}, v{t} clamp"); out.append(f"v_max_f32 v{r}, s71, v{r}")
        for r, t in zip(grp, temps): out.append(f"v_add_f32 v{r}, v{r}, v{t}")
    return out

def probe(vdst, voff, s_off, srdq=SRDWS):
    if cfg.pmode == 3:
        return f"v_mov_b32 v{vdst}, -1\n s_mov_b64 exec, 3\n v_mov_b32 v{vdst}, 0\n buffer_atomic_add v{vdst}, v{voff}, {sq(srdq)}, {s_off} offen sc0 sc1\n s_mov_b64 exec, -1"
    return f"buffer_load_dword v{vdst}, v{voff}, {sq(srdq)}, {s_off} offen " + ["sc1", "sc0 sc1", "sc0 sc1 nt"][cfg.pmode]
def check(a, name, vdst, voff, s_off, target, srdq=SRDWS):
    a(f"v_cmp_gt_u32 vcc, {target}, v{vdst}\n s_mov_b32 s78, 0\n s_nop 0\n s_cbranch_vccz L_OK_{name}")
    a("PUSHSTATE")
    a.label(f"L_POLL_{name}")
    a(f"""s_sleep {cfg.psleep}
    {probe(vdst, voff, s_off, srdq)}
    s_add_u32 s78, s78, 1
    s_waitcnt vmcnt(0)
    v_cmp_gt_u32 vcc, {target}, v{vdst}
    s_cmp_ge_u32 s78, 0x20000
    s_cbranch_scc1 L_OK_{name}
    s_cbranch_vccnz L_POLL_{name}""")
    a("POPSTATE")
    a.label(f"L_OK_{name}")
def zero_probe(a, vd, vz): a(f"v_mov_b32 v{vz}, 128\n" + probe(vd, vz, "0", SRD4))
def zero_check(a, name, vd, vz): check(a, "z" + name, vd, vz, "0", 1, SRD4)
def zero_wave(a):
    a(f"""v_lshlrev_b32 v8, 4, v1
    v_mov_b32 v16, 0
    v_mov_b32 v17, 0
    v_mov_b32 v18, 0
    v_mov_b32 v19, 0
    s_lshl_b32 s54, s2, 11
    s_mov_b32 s79, 1
    s_mov_b32 s78, 1""")
    args_ready(a)
    a(f"""buffer_store_dwordx4 v[16:19], v8, {sq(SRDWS)}, s54 offen sc1
    buffer_store_dwordx4 v[16:19], v8, {sq(SRDWS)}, s54 offen offset:1024 sc1
    s_waitcnt vmcnt(0)
    s_atomic_add s79, s[{P_DBG}:{P_DBG+1}], 0 glc
    s_waitcnt lgkmcnt(0)
    s_cmp_lg_u32 s79, {NZERO-1}
    s_cbranch_scc1 L_ZW
    s_atomic_add s78, s[{P_DBG}:{P_DBG+1}], 128
    s_waitcnt lgkmcnt(0)""")
    a.label("L_ZW")

def signal(a, s_off, nwaves, ldsaddr, narr=1, rstride=128):
    n = signal.n; signal.n += 1
    a(f"""v_mov_b32 v13, {ldsaddr}
    v_mov_b32 v14, 1
    s_add_u32 s68, s{P_WS}, s{s_off}
    s_addc_u32 s69, s{P_WS+1}, 0
    s_mov_b32 s78, 1
    s_waitcnt vmcnt(0)
    s_mov_b64 exec, 1
    ds_add_rtn_u32 v12, v13, v14
    s_mov_b64 exec, -1
    s_waitcnt lgkmcnt(0)
    v_readfirstlane_b32 s79, v12
    s_cmp_lg_u32 s79, {nwaves-1}
    s_cbranch_scc1 L_SIG_{n}""")
    if narr > 1:
        a(f"""s_mov_b32 s79, 1
        s_atomic_add s79, s[68:69], {WS_CNT} glc
        s_waitcnt lgkmcnt(0)
        s_cmp_lg_u32 s79, {narr-1}
        s_cbranch_scc1 L_SIG_{n}""")
    for r in range(8 if narr > 1 else 1): a(f"s_atomic_add s78, s[68:69], {r*rstride}")
    a("s_waitcnt lgkmcnt(0)")
    a.label(f"L_SIG_{n}")
signal.n = 0

def conv_ids(a):
    a("""s_and_b32 s52, s2, 7
    s_mul_i32 s52, s52, 20
    s_lshr_b32 s53, s2, 3
    s_sub_u32 s53, s53, 12
    s_add_u32 s52, s52, s53""")
def sprefetch(a, p, s_off, n):
    a(f"s_add_u32 s68, s{p}, s{s_off}\n s_addc_u32 s69, s{p+1}, 0")
    for i in range(n): a(f"s_load_dword s79, s[68:69], {128*i}")
    a("s_waitcnt lgkmcnt(0)")

def last_barrier(a, name, n_younger):
    a(f"s_cmp_eq_u32 s{SLD}, 0\n s_cbranch_scc1 L_LB_{name}\n PUSHSTATE\n s_waitcnt vmcnt({n_younger})\n s_barrier\n s_setprio 0\n POPSTATE")
    a.label(f"L_LB_{name}")

G_ACC, G_B, G_X = 16, 96, 176
G_SLOT = 36864
def slot_off(j): return ((j & 1) ^ 1) * G_SLOT
def slot_half(j): return (j % 4) >> 1
def g_ids(a):
    a(f"""s_and_b32 s52, s2, 7
    s_lshr_b32 s53, s2, 3
    s_and_b32 s57, s52, 3
    s_lshl_b32 s57, s57, 2
    s_and_b32 s54, s53, 3
    s_add_u32 s57, s57, s54
    s_lshr_b32 s52, s52, 2
    s_lshr_b32 s54, s53, 2
    s_lshl_b32 s58, s52, 2
    s_add_u32 s58, s58, s54
    s_lshl_b32 s52, s52, 1
    s_add_u32 s52, s52, s54
    s_add_u32 s52, s52, 4
    s_cmp_ge_u32 s54, 4
    s_cselect_b32 s58, s52, s58
    s_lshl_b32 s66, s{SW}, 12
    s_add_u32 s66, s66, 20480""")

def g_setup_x(a):
    if cfg.rot:
        a(f"""s_mul_i32 s62, s57, 3
        s_lshl_b32 s59, s58, 1
        s_add_u32 s62, s62, s59
        s_mul_i32 s59, s62, 205
        s_lshr_b32 s59, s59, 11
        s_mul_i32 s59, s59, 10
        s_sub_u32 s62, s62, s59
        s_lshl_b32 s64, s62, 7
        s_mul_i32 s63, s62, {64*3840}""")
    else:
        a("s_mov_b32 s64, 0\n s_mov_b32 s63, 0")
    a(f"""v_lshrrev_b32 v240, 3, v1
    s_lshl_b32 s59, s57, 7
    s_lshl_b32 s54, s{SW}, 5
    s_add_u32 s59, s59, s54
    v_add_u32 v240, s59, v240
    v_mul_u32_u24 v240, 1280, v240
    v_lshrrev_b32 v241, 4, v1
    v_and_b32 v242, 7, v1
    v_xor_b32 v242, v242, v241
    v_lshl_add_u32 v7, v242, 4, v240
    v_xor_b32 v242, 4, v242
    v_lshl_add_u32 v8, v242, 4, v240
    v_add_u32 v8, {10240-1024}, v8
    v_add_u32 v9, {20480-2048}, v7
    v_add_u32 v10, {20480-2048}, v8""")

def g_setup_w(a):
    a(f"""s_mul_i32 s59, s58, 160
    s_add_u32 s60, s59, 1280
    s_add_u32 s61, s59, {2560-160}
    s_sub_u32 s59, s58, 8
    s_mul_i32 s59, s59, 320
    s_cmp_ge_u32 s58, 8
    s_cselect_b32 s60, s59, s60
    s_cselect_b32 s61, s59, s61
    s_mul_i32 s59, s{SW}, {16*3840}
    s_add_u32 s60, s60, s59
    s_add_u32 s61, s61, s59
    s_mul_i32 s65, s{SW}, 5120""")
    a(f"v_mov_b32 v244, s60\n v_mov_b32 v245, s61")
    for i in range(5):
        assert all(((64 * i + l) * 3277) >> 16 == (64 * i + l) // 20 for l in range(64))
        a(f"""v_add_u32 v240, {64*i}, v1
        v_mul_u32_u24 v241, 3277, v240
        v_lshrrev_b32 v241, 16, v241
        v_mul_u32_u24 v242, 20, v241
        v_sub_u32 v240, v240, v242""")
        if i == 2: a("v_lshrrev_b32 v242, 4, v1\n v_and_b32 v242, 2, v242\n v_xor_b32 v240, v240, v242")
        if i > 2: a("v_xor_b32 v240, 2, v240")
        a(f"""v_cmp_gt_u32 vcc, 10, v240
        v_mul_u32_u24 v241, 3840, v241
        v_lshl_add_u32 v240, v240, 4, v241
        v_cndmask_b32 v242, v245, v244, vcc""")
        if i in (0, 4): a(f"v_add_u32 v{2+i}, v240, v242")
        else: a(f"v_add_u32 v240, v240, v242\n v_subrev_u32 v{2+i}, {1024*i}, v240")

def g_setup2(a):
    a(f"""v_lshrrev_b32 v241, 4, v1
    v_bfe_u32 v242, v1, 2, 2
    v_lshl_add_u32 v242, v241, 3, v242
    v_mul_u32_u24 v242, 320, v242
    v_and_b32 v243, 3, v1
    v_lshl_add_u32 v242, v243, 3, v242
    v_and_b32 v243, 1, v241
    v_lshlrev_b32 v243, 5, v243
    v_add_u32 v9, v242, v243
    v_sub_u32 v10, v242, v243
    v_and_b32 v240, 15, v1
    v_lshrrev_b32 v242, 1, v240
    v_xor_b32 v242, v242, v241
    v_lshlrev_b32 v240, 7, v240
    v_add_u32 v240, s66, v240
    v_lshl_add_u32 v11, v242, 4, v240
    v_xor_b32 v242, 4, v242
    v_lshl_add_u32 v12, v242, 4, v240
    s_mov_b32 s70, {LOG2E}
    s_mov_b32 s71, {EPS}""")
    for k in range(4): a(f"v_add_u32 v{2+k}, {HALF}, v{9+k}")

def g_loadx(j):
    o = [f"s_add_u32 m0, s66, {slot_half(j) * HALF + slot_off(j)}", "s_nop 0"]
    for i in range(4): o.append(f"buffer_load_dwordx4 v{7+i}, {sq(SRD0)}, s64 offen offset:{1024*i} lds ; tag=S{j}")
    o += ["s_add_u32 s64, s64, 128"]
    if cfg.rot: o += ["s_cmp_eq_u32 s64, 1280", "s_cselect_b32 s64, 0, s64"]
    return o
def g_loadw(j):
    base = slot_half(j) * HALF + slot_off(j)
    o = [f"s_add_u32 m0, s65, {base}", "s_nop 0"]
    for i in range(4): o.append(f"buffer_load_dwordx4 v{2+i}, {sq(SRD1)}, s63 offen offset:{1024*i} lds ; tag=S{j}")
    o += [f"s_add_u32 m0, s65, {base + 4096}", "s_nop 0", f"buffer_load_dwordx4 v6, {sq(SRD1)}, s63 offen lds ; tag=S{j}"]
    o += [f"s_add_u32 s63, s63, {64*3840}"]
    if cfg.rot: o += [f"s_cmp_eq_u32 s63, {640*3840}", "s_cselect_b32 s63, 0, s63"]
    return o
def g_xreads(j):
    return [f"ds_read_b128 {v4(G_X + (j&1)*16 + ks*8 + sub*4)}, v{(4 if slot_half(j) else 11)+ks} offset:{slot_off(j) + sub*2048}" for ks in range(2) for sub in range(2)]
def g_reads(t):
    j = t // 2
    o = []
    for n in range(10):
        for h in range(2):
            off = slot_off(j) + (t & 1) * 10240 + h * 1280 + 32 * n
            o.append(f"ds_read_b64_tr_b16 {v2(G_B + (t & 1) * 40 + n * 4 + 2 * h)}, v{(2 if slot_half(j) else 9) + (n & 1)} offset:{off}")
    return o

def role_loader(a):
    a(f"s_setprio {cfg.lprio}")
    g_setup_x(a)
    a("s_waitcnt lgkmcnt(0)")
    srd(a, SRD0, P_X, 2048 * 1280)
    a.extend(g_loadx(0))
    g_setup_w(a)
    srd(a, SRD1, P_W, 640 * 3840)
    seq = []
    for j in range(10): seq += [g_loadx(j), g_loadw(j)]
    pos = 1
    def upto(n):
        nonlocal pos
        while pos < min(n, 20): a.extend(seq[pos]); pos += 1
    upto(cfg.ahead0)
    args_ready(a)
    stamp(a, 1)
    for j in range(9):
        a(f"WAITTAG S{j}")
        if cfg.slab == 2 and j < 8: stamp(a, j + 1, True)
        a("s_barrier")
        if cfg.slab == 1 and j < 8: stamp(a, j + 1, True)
        if j == 0: stamp(a, 2)
        if j == 6: zero_probe(a, 14, 13)
        upto(min(2 * (j + 1) + cfg.ahead, 2 * (j + 4)))
    zero_check(a, "ld", 14, 13)
    a(f"s_mov_b32 s{SLD}, 1")
    stamp(a, 3)

def g_main(a, transposed, tail):
    a("s_waitcnt vmcnt(0) lgkmcnt(0)\n s_barrier")
    stamp(a, 1)
    a.extend(g_xreads(0) + g_reads(0))
    def mfma(t, n, sub):
        j, ks = t // 2, t % 2
        acc = v4(G_ACC + (sub * 10 + n) * 4)
        x = v4(G_X + (j & 1) * 16 + ks * 8 + sub * 4)
        b = v4(G_B + (t & 1) * 40 + n * 4)
        c = "0" if t == 0 else acc
        return f"v_mfma_f32_16x16x32_bf16 {acc}, {b}, {x}, {c}" if transposed else f"v_mfma_f32_16x16x32_bf16 {acc}, {x}, {b}, {c}"
    for t in range(18 if cfg.tail2 else 19):
        j, ks = t // 2, t % 2
        mf = [mfma(t, n, sub) for n in range(10) for sub in range(2)]
        rd = g_reads(t + 1)
        if ks == 1:
            rd = g_xreads(j + 1) + rd
            a.extend(mf[:cfg.bpos]); a("s_waitcnt lgkmcnt(0)" + "\n s_barrier")
            a.extend(interleave(mf[cfg.bpos:], rd))
        else:
            a.extend(interleave(mf, rd))
    if cfg.tail2:
        a.extend(interleave([mfma(18, n, sub) for n in range(5) for sub in range(2)], g_reads(19)))
        tail([mfma(19, n, sub) for n in range(5) for sub in range(2)] + [mfma(t, n, sub) for t in (18, 19) for n in range(5, 10) for sub in range(2)])
    else:
        tail([mfma(19, n, sub) for n in range(10) for sub in range(2)])

def role_q(a):
    a(f"""s_lshl_b32 s52, s57, 3
    s_lshl_b32 s53, s{SW}, 1
    s_add_u32 s52, s52, s53
    s_mul_i32 s52, s52, 20
    s_sub_u32 s53, s58, 8
    s_mul_i32 s54, s53, 5
    s_add_u32 s52, s52, s54
    s_lshl_b32 s52, s52, 10
    s_add_u32 s52, s52, {WS_PQ}
    s_mul_i32 s55, s53, 17
    s_add_u32 s55, s55, s57
    s_lshl_b32 s55, s55, 7
    s_add_u32 s55, s55, {WS_QFLAG}
    v_lshlrev_b32 v6, 4, v1""")
    def tail(mf):
        bar_arrive(a)
        ep = []
        for c in range(5):
            for sub in range(2):
                r0 = G_ACC + (sub * 10 + 2 * c) * 4
                ep += phi_block(list(range(r0, r0 + 8)), list(range(240, 248)))
                d = G_B + (sub * 5 + c) * 4
                ep += [f"v_cvt_pk_bf16_f32 v{d+k}, v{r0+2*k}, v{r0+2*k+1}" for k in range(4)]
                ep += [f"s_add_u32 s54, s52, {(sub*20+c)*1024}", f"buffer_store_dwordx4 {v4(d)}, v6, {sq(SRDWS)}, s54 offen sc1"]
        n = 2 * (len(mf) - 8)
        a.extend(mf[:8])
        a.extend(interleave(mf[8:], ep[:n]))
        stamp(a, 2)
        zero_probe(a, 7, 8)
        a.extend(ep[n:])
    g_main(a, True, tail)
    stamp(a, 3)
    zero_check(a, "q", 7, 8)
    signal(a, 55, 4, L_SIG)
    stamp(a, 4)

def role_kv(a):
    EX, HB = G_SLOT, 0
    DUMP = HB + 4 * 2048
    AD = 208
    a(f"""v_lshlrev_b32 v240, 4, v1
    s_mul_i32 s52, s{SW}, 10240
    s_add_u32 s52, s52, {EX}
    v_add_u32 v{AD+6}, s52, v240
    s_lshl_b32 s52, s{SW}, 10
    s_add_u32 s52, s52, {EX}
    v_add_u32 v{AD+7}, s52, v240
    v_and_b32 v246, 15, v1
    v_lshrrev_b32 v247, 4, v1
    v_lshlrev_b32 v247, 2, v247
    s_lshl_b32 s52, s{SW}, 2
    v_subrev_u32 v246, s52, v246
    v_subrev_u32 v247, s52, v247
    s_lshl_b32 s53, s{SW}, 11
    v_mov_b32 v245, {DUMP}
    v_lshlrev_b32 v{AD+8}, 2, v1
    v_add_u32 v{AD+9}, s53, v{AD+8}""")
    for k in range(4): a(f"v_mov_b32 v{AD+12+k}, 0x3f803f80")
    k = 0
    for dt in range(2):
        for et in range(2):
            a(f"""v_add_u32 v240, {16*dt}, v247
            v_add_u32 v241, {16*et}, v246
            v_max_u32 v242, v240, v241
            v_cmp_gt_u32 vcc, 20, v242
            v_mul_u32_u24 v241, 80, v241
            v_lshl_add_u32 v241, v240, 2, v241
            v_add_u32 v241, s53, v241
            v_cndmask_b32 v{AD+k}, v245, v241, vcc""")
            k += 1
        a(f"""v_add_u32 v240, {16*dt}, v247
        v_and_b32 v241, 15, v1
        v_mul_u32_u24 v241, 20, v241
        v_max_u32 v242, v240, v241
        v_cmp_gt_u32 vcc, 20, v242
        v_lshlrev_b32 v240, 2, v240
        v_add_u32 v240, s53, v240
        v_add_u32 v240, 1600, v240
        v_cndmask_b32 v{AD+4+dt}, v245, v240, vcc""")
    a(f"""s_lshl_b32 s52, s58, 2
    s_add_u32 s52, s52, s{SW}
    s_mul_i32 s52, s52, 1680
    s_add_u32 s52, s52, {WS_KV}
    s_lshl_b32 s55, s58, 7""")
    def tail(mf):
        ep = []
        for t in [0, 1, 5, 2, 6, 7, 3, 8, 9, 4]:
            r0 = G_ACC + t * 4; r1 = G_ACC + (10 + t) * 4
            if t < 5: ep += phi_block(list(range(r0, r0 + 4)) + list(range(r1, r1 + 4)), list(range(240, 248)))
            d = G_B + t * 4
            ep += [f"v_cvt_pk_bf16_f32 v{d}, v{r0}, v{r0+1}", f"v_cvt_pk_bf16_f32 v{d+1}, v{r0+2}, v{r0+3}",
                   f"v_cvt_pk_bf16_f32 v{d+2}, v{r1}, v{r1+1}", f"v_cvt_pk_bf16_f32 v{d+3}, v{r1+2}, v{r1+3}",
                   f"ds_write_b128 v{AD+6}, {v4(d)} offset:{t*1024}"]
        n = 2 * (len(mf) - 6)
        a.extend(mf[:6])
        a.extend(interleave(mf[6:], ep[:n]))
        stamp(a, 2)
        zero_probe(a, 7, 8)
        a.extend(ep[n:])
    g_main(a, False, tail)
    bar_arrive(a); bar_wait(a, True)
    F = 136
    for rg in range(4):
        for q, off in enumerate([0, 5120, 1024, 6144]):
            a(f"ds_read_b128 {v4(F + rg*16 + [0, 2, 1, 3][q]*4)}, v{AD+7} offset:{rg*10240 + off}")
    D = 16
    for rg in range(4):
        for dt in range(2):
            A = v4(F + rg * 16 + dt * 4)
            acc = v4(D + 16 + dt * 4)
            a(f"v_mfma_f32_16x16x32_bf16 {acc}, {A}, {v4(AD+12)}, {'0' if rg == 0 else acc}")
            for et in range(2):
                acc = v4(D + (dt * 2 + et) * 4)
                a(f"v_mfma_f32_16x16x32_bf16 {acc}, {A}, {v4(F + rg*16 + 8 + et*4)}, {'0' if rg == 0 else acc}")
    zero_check(a, "kv", 7, 8)
    for k in [4, 0, 1, 5, 2, 3]: a(f"ds_write_b128 v{AD+k}, {v4(D + 4*k)}")
    for i in range(7): a(f"ds_read_b32 v{48+i}, v{AD+9} offset:{256*i}")
    bar_arrive(a)
    stamp(a, 3)
    for i in range(7):
        if i == 6: a("s_mov_b32 exec_hi, 0xf")
        a(f"buffer_atomic_add_f32 v{48+i}, v{AD+8}, {sq(SRDWS)}, s52 offen offset:{256*i}")
    a("s_mov_b64 exec, -1")
    signal(a, 55, 4, L_SIG, 16, 1024)
    stamp(a, 4)

C_HCOPY = 4224; C_UH = 148; C_WAVE = 2 * C_HCOPY + 2 * C_UH * 16
C_STG = HALF + 4 * C_WAVE; C_STGP = 4160
PV = 224
def role_prep(a):
    a(f"""s_and_b32 s52, s2, 7
    s_lshl_b32 s52, s52, 2
    s_bfe_u32 s53, s2, 0x20004
    s_add_u32 s52, s52, s53
    s_lshl_b32 s52, s52, 6
    s_bfe_u32 s65, s2, 0x10003
    s_mul_i32 s53, s65, 320
    s_sub_u32 s54, s{SW8}, 3
    s_lshl_b32 s55, s{SW8}, 1
    s_cmp_ge_u32 s{SW8}, 3
    s_cselect_b32 s54, s54, s55
    s_lshl_b32 s54, s54, 6
    s_add_u32 s53, s53, s54
    v_lshrrev_b32 v240, 3, v1
    v_lshl_add_u32 v241, v240, 3, s52
    v_and_b32 v242, 7, v1
    v_lshl_add_u32 v243, v242, 3, s53
    v_mul_u32_u24 v241, 1280, v241
    v_lshl_add_u32 v{PV}, v243, 1, v241
    s_movk_i32 s55, 5120""")
    def common2(rev):
        a(f"""v_add_u32 v241, s53, v240
        v_mul_u32_u24 v241, {TP}, v241
        v_lshl_add_u32 v{PV+3}, v242, 4, v241
        s_mul_i32 s54, s{SW}, 20480
        s_mul_i32 s63, s{SGRP}, 10240
        s_add_u32 s54, s54, s63
        v_mul_u32_u24 v241, 1040, v242
        v_add_u32 v241, s54, v241""")
        if rev: a("v_sub_u32 v240, 7, v240")
        a(f"""v_lshl_add_u32 v{PV+4}, v240, 4, v241
        v_lshl_add_u32 v{PV+5}, v1, 4, s54
        s_lshl_b32 s64, s52, 1
        s_mov_b32 s70, 0x05040100
        s_mov_b32 s71, 0x07060302""")
    def rds(R): return [f"ds_read_b128 {v4(R+4*i)}, v{PV+5} offset:{1040*i}" for i in range(8)]
    def sts(R, extra): return [x for i in range(8) for x in (f"s_add_u32 s54, s64, {8*TP*i + extra}", f"buffer_store_dwordx4 {v4(R+4*i)}, v{PV+3}, {sq(SRDWS)}, s54 offen sc1")]
    a(f"s_cmp_lt_u32 s{SW8}, 3\n s_cbranch_scc1 L_PQ")
    tag(a, 3)
    a("s_barrier")
    a(f"v_subrev_u32 v{PV+1}, 3840, v{PV}\n v_lshlrev_b32 v{PV+2}, 3, v243\n s_waitcnt lgkmcnt(0)")
    srd(a, SRD0, P_K, 2048 * 1280)
    K, V, C = 16, 60, 92
    for r in range(3): a(f"buffer_load_dwordx4 {v4(K+4*r)}, v{PV+1}, {sq(SRD0)}, 0 offen offset:{1280*r}")
    for r in range(8): a(f"buffer_load_dwordx4 {v4(K+12+4*r)}, v{PV}, {sq(SRD0)}, {'s55' if r >= 4 else '0'} offen offset:{1280*(r%4)}")
    srd(a, SRD1, P_V, 2048 * 1280); srd(a, SRD3, P_SH, 640 * 8)
    for r in range(4): a(f"buffer_load_dwordx4 {v4(C+4*r)}, v{PV+2}, {sq(SRD3)}, 0 offen offset:{16*r}")
    for r in range(8):
        a(f"buffer_load_dwordx4 {v4(V+4*r)}, v{PV}, {sq(SRD1)}, {'s55' if r >= 4 else '0'} offen offset:{1280*(r%4)}")
    args_ready(a)
    common2(True)
    a(f"s_sub_u32 s64, {WS_UT + 1984*2}, s64\n s_mov_b32 s62, 0xffff0000")
    stamp(a, 1)
    P, T, U, O = 108, 120, 184, 192
    for ch in range(8):
        dw, hi = ch // 2, ch % 2
        sel = "s71" if hi else "s70"
        for s_ in range(-2, 8):
            a(f"v_perm_b32 v{P+s_+2}, v{K+4*(s_+2)+dw}, v{K+4*(s_+3)+dw}, {sel}")
        for s_ in range(8): a(f"v_dot2_f32_bf16 v{T+8*ch+s_}, v{P+s_}, v{C+2*ch+1}, 0")
        for s_ in range(8): a(f"v_dot2_f32_bf16 v{T+8*ch+s_}, v{P+s_+2}, v{C+2*ch}, v{T+8*ch+s_}")
    for ch in range(8):
        dw, hi = ch // 2, ch % 2
        for s_ in range(8):
            a(f"v_and_b32 v{U+s_}, s62, v{V+4*s_+dw}" if hi else f"v_lshlrev_b32 v{U+s_}, 16, v{V+4*s_+dw}")
        for s_ in range(8): a(f"v_mul_f32 v{T+8*ch+s_}, v{T+8*ch+s_}, v{U+s_}")
        o = O + 4 * ch
        for j in range(4): a(f"v_cvt_pk_bf16_f32 v{o+j}, v{T+8*ch+7-2*j}, v{T+8*ch+6-2*j}")
        a(f"ds_write_b128 v{PV+4}, {v4(o)} offset:{128*ch}")
    a.extend(rds(16) + sts(16, 0))
    stamp(a, 2)
    zero_probe(a, 3, 4)
    zero_check(a, "pu", 3, 4)
    a(f"s_lshl_b32 s65, s65, 10\n s_add_u32 s65, s65, {WS_UFLG}")
    signal(a, 65, 5, L_SIG, 32)
    stamp(a, 3)
    a(f"s_cmp_eq_u32 s{SGRP}, 1\n s_cbranch_scc1 L_CONV\n s_branch L_PW")
    a.label("L_PQ")
    tag(a, 6)
    a(f"s_cmp_lg_u32 s{SW8}, 2\n s_cbranch_scc1 L_PQ0")
    init_wave(a, "p")
    a.label("L_PQ0")
    args_ready(a)
    a("s_barrier")
    a(f"""s_and_b32 s52, s2, 7
    s_lshl_b32 s52, s52, 8
    s_mul_i32 s53, s{SW8}, 85
    s_add_u32 s52, s52, s53
    s_mul_i32 s52, s52, 1280
    s_lshr_b32 s53, s2, 3
    s_sub_u32 s53, s53, 24
    s_lshl_b32 s53, s53, 7
    s_add_u32 s52, s52, s53
    s_add_u32 s68, s{P_Q}, s52
    s_addc_u32 s69, s{P_Q+1}, 0""")
    for i in range(86): a(f"s_load_dword s79, s[68:69], {1280*i}")
    a("s_waitcnt lgkmcnt(0)")
    stamp(a, 2)
    zero_probe(a, 3, 4)
    zero_check(a, "pq", 3, 4)
    a.label("L_PW")
    if cfg.pwait:
        a(f"s_and_b32 s61, s2, 7\n s_lshl_b32 s61, s61, 7\n s_bfe_u32 s54, s2, 0x10002\n s_lshl_b32 s54, s54, 10\n s_add_u32 s61, s61, s54\n s_add_u32 s61, s61, {WS_UFLG}\n v_mov_b32 v12, 0")
        a(probe(15, 12, "s61")); check(a, "pw", 15, 12, "s61", 1)
    stamp(a, 3)
    a("s_branch L_B2")

def conv_head(a, pr=False):
    a(f"""s_and_b32 s52, s2, 7
    s_mul_i32 s52, s52, 20
    s_lshr_b32 s53, s2, 3
    s_and_b32 s61, s2, 7
    s_sub_u32 s53, s53, 12
    s_add_u32 s57, s52, s53
    s_lshl_b32 s58, s57, 2
    s_add_u32 s58, s58, s{SW}
    s_lshl_b32 s59, s58, 12
    s_mul_i32 s60, s{SW}, {C_WAVE}
    s_add_u32 s60, s60, {HALF}
    s_add_u32 s52, s{P_H}, s59
    s_addc_u32 s53, s{P_H+1}, 0
    s_load_dword s66, s[52:53], 0
    s_lshr_b32 s54, s58, 1
    s_lshl_b32 s54, s54, 2
    s_load_dword s67, s[{P_D}:{P_D+1}], s54
    s_lshl_b32 s61, s61, 7
    s_cmp_ge_u32 s57, 80
    s_cselect_b32 s54, 1024, 0
    s_add_u32 s61, s61, s54
    s_add_u32 s61, s61, {WS_UFLG}
    s_lshr_b32 s63, s57, 4
    s_lshl_b32 s63, s63, 10
    s_add_u32 s63, s63, {WS_YFLG}
    v_lshlrev_b32 v2, 4, v1
    v_add_u32 v3, 4, v2
    v_mov_b32 v12, 0""")
    if pr: a(probe(15, 12, "s61"))
    srd(a, SRD0, P_H, 640 * 4096)
    a(f"s_add_u32 m0, s60, 32")
    for i in range(4): a(f"buffer_load_dwordx4 v2, {sq(SRD0)}, s59 offen offset:{1024*i} lds ; tag=H")
    a(f"s_add_u32 m0, s60, {C_HCOPY + 32}")
    for i in range(4): a(f"buffer_load_dwordx4 v3, {sq(SRD0)}, s59 offen offset:{1024*i} lds ; tag=H")

def role_conv(a):
    ACC, A, RAW, B, UL = 16, 48, 80, 128, 224
    conv_head(a, True)
    last_barrier(a, "conv", 9)
    tag(a, 4)
    stamp(a, 4)
    a(f"s_mul_i32 s55, s58, {TP}\n s_add_u32 s65, s55, {WS_UT}\n s_add_u32 s55, s55, {WS_YT}")
    uld = [f"buffer_load_dwordx4 {v4(UL+4*i)}, v2, {sq(SRDWS)}, s65 offen offset:{1024*i} sc1" for i in range(4)]
    a(f"""v_and_b32 v8, 15, v1
    v_lshrrev_b32 v9, 4, v1
    v_add_u32 v10, 1, v8
    v_bfe_u32 v11, v10, 1, 1
    v_mul_u32_u24 v11, {C_HCOPY}, v11
    v_lshrrev_b32 v13, 2, v10
    v_lshl_add_u32 v13, v9, 3, v13
    v_lshl_add_u32 v11, v13, 3, v11
    v_add_u32 v4, s60, v11
    v_and_b32 v10, 1, v10
    v_lshlrev_b32 v5, 4, v10
    v_lshlrev_b32 v10, 1, v9
    v_sub_u32 v10, v10, v8
    v_add_u32 v10, 15, v10
    v_lshlrev_b32 v10, 4, v10
    v_add_u32 v6, s60, v10
    v_lshrrev_b32 v10, 1, v1
    v_and_b32 v11, 1, v1
    v_mul_u32_u24 v11, {C_UH}, v11
    v_add_u32 v10, v10, v11
    v_lshlrev_b32 v10, 4, v10
    v_add_u32 v7, s60, v10
    v_mov_b32 v16, 0
    v_mov_b32 v17, 0
    v_mov_b32 v18, 0
    v_mov_b32 v19, 0
    v_and_b32 v10, 1, v9
    v_mul_u32_u24 v10, {C_UH}, v10
    v_add_u32 v10, v10, v8
    v_lshl_add_u32 v20, v10, 4, s60
    v_and_b32 v10, 1, v1
    v_lshlrev_b32 v10, 4, v10
    v_bfe_u32 v11, v1, 1, 1
    v_mul_u32_u24 v11, {C_HCOPY}, v11
    v_add3_u32 v21, v10, v11, s60
    v_lshlrev_b32 v10, 5, v8
    v_lshl_add_u32 v8, v9, 3, v10""")
    a(f"""s_waitcnt lgkmcnt(0)
    s_lshl_b32 s52, s66, 16
    s_lshl_b32 s53, s67, 16
    s_and_b32 s54, s67, 0xffff0000
    s_bitcmp1_b32 s58, 0
    s_cselect_b32 s53, s54, s53
    s_and_b32 s54, s66, 0xffff0000
    v_mov_b32 v10, s52
    v_add_f32 v10, s53, v10
    v_mov_b32 v11, s54
    v_cvt_pk_bf16_f32 v10, v10, v11
    v_mov_b32 v11, s60
    WAITTAG H
    v_cmp_gt_u32 vcc, 1, v15
    s_mov_b32 s62, 0
    s_nop 0
    s_cbranch_vccnz L_CU0
    PUSHSTATE
    {chr(10).join(uld)}
    s_mov_b32 s62, 1
    s_branch L_CU1
    POPSTATE
    L_CU0:
    {probe(15, 12, "s61")}
    L_CU1:
    ds_write_b128 v21, v[16:19]
    ds_write_b32 v11, v10 offset:32
    ds_write_b32 v11, v10 offset:{C_HCOPY+28}
    ds_write_b128 v20, v[16:19] offset:{2*C_HCOPY + 128*16}""")
    def raw_slots(i):
        return [(0, 1, 2), (2, 0, 1), (1, 2, 0), (0, 1, 2)][i]
    def raw_reads(it, N1):
        N0, i = it >> 2, it & 3
        sl = raw_slots(i)
        return [f"ds_read_b64 {v2(RAW + N1*6 + 2*sl[k])}, v4 offset:{(2*N1+N0)*256 + (2*i+k)*8}" for k in range(0 if i == 0 else 1, 3)]
    def aligns(it, N1):
        sl = raw_slots(it & 3)
        d = [RAW + N1 * 6 + 2 * sl[0], RAW + N1 * 6 + 2 * sl[0] + 1, RAW + N1 * 6 + 2 * sl[1], RAW + N1 * 6 + 2 * sl[1] + 1, RAW + N1 * 6 + 2 * sl[2]]
        return [f"v_alignbit_b32 v{A + 4*N1 + k}, v{d[k+1]}, v{d[k]}, v5" for k in range(4)]
    def b_reads(it):
        N0, i = it >> 2, it & 3
        return [f"ds_read_b128 {v4(B + (it&1)*32 + 4*dl)}, v6 offset:{2*C_HCOPY + (14-(2*dl-N0))*128 + (i>>1)*16 + (i&1)*C_UH*16}" for dl in range(8)]
    for N1 in range(8): a.extend(raw_reads(0, N1))
    for N1 in range(8):
        a.extend(aligns(0, N1)); a.extend(raw_reads(1, N1))
    a("s_cmp_eq_u32 s62, 1\n s_cbranch_scc1 L_CU2\n PUSHSTATE")
    check(a, "convu", 15, 12, "s61", 1)
    a.extend(uld)
    a("POPSTATE"); a.label("L_CU2")
    stamp(a, 5)
    if cfg.cgate:
        a(f"s_cmp_ge_u32 s2, 128\n s_cbranch_scc1 L_CG\n PUSHSTATE\n v_mov_b32 v13, {L_BAR}")
        a.label("L_CGW")
        a(f"s_sleep 2\n ds_read_b32 v14, v13\n s_waitcnt lgkmcnt(0)\n v_cmp_gt_u32 vcc, {cfg.cgate}, v14\n s_nop 1\n s_cbranch_vccnz L_CGW\n POPSTATE")
        a.label("L_CG")
    a("s_waitcnt vmcnt(0)")
    for i in range(4): a(f"ds_write_b128 v7, {v4(UL+4*i)} offset:{2*C_HCOPY + 512*i}")
    a.extend(b_reads(0))
    a(f"s_setprio {cfg.vprio}")
    stamp(a, 6)
    queue = []
    for it in range(8):
        if it < 7: queue += b_reads(it + 1)
        for N1 in range(8):
            tg = f"v_alignbit_b32 v{A+4*N1+3},"
            pos = max((k for k, q in enumerate(queue) if q.startswith(tg)), default=-1)
            for q in queue[:pos + 1]: a(q)
            queue = queue[pos + 1:]
            for J in range(N1, 8):
                acc = v4(ACC + 4 * J)
                c = "0" if (it == 0 and N1 == 0) else acc
                a(f"v_mfma_f32_16x16x32_bf16 {acc}, {v4(A+4*N1)}, {v4(B + (it&1)*32 + 4*(J-N1))}, {c}")
                for _ in range(2):
                    if queue: a(queue.pop(0))
            if it < 7: queue += aligns(it + 1, N1)
            if it < 6: queue += raw_reads(it + 2, N1)
        assert not any(q.startswith("ds_read_b128") for q in queue)
    assert not queue
    stamp(a, 7)
    a(f"s_setprio {cfg.eprio}\n v_add_u32 v9, s60, v8\n v_add_u32 v10, s60, v2")
    for J in range(8):
        T = 48 + 2 * J
        a(f"v_cvt_pk_bf16_f32 v{T}, v{ACC+4*J}, v{ACC+4*J+1}\n v_cvt_pk_bf16_f32 v{T+1}, v{ACC+4*J+2}, v{ACC+4*J+3}")
        a(f"ds_write_b64 v9, {v2(T)} offset:{512*J}")
    for i in range(4): a(f"ds_read_b128 {v4(64+4*i)}, v10 offset:{1024*i}")
    for i in range(4): a(f"buffer_store_dwordx4 {v4(64+4*i)}, v2, {sq(SRDWS)}, s55 offen offset:{1024*i} sc1")
    stamp(a, 8)
    signal(a, 63, 4, HALF + L_SIG, 16)

FV = 240
def fin_head(a):
    a(f"""s_and_b32 s52, s2, 7
    s_lshl_b32 s52, s52, 2
    s_add_u32 s52, s52, s{SW}
    s_lshl_b32 s52, s52, 6
    s_lshl_b32 s53, s56, 6
    v_lshrrev_b32 v244, 3, v1
    v_lshl_add_u32 v245, v244, 3, s52
    v_and_b32 v246, 7, v1
    v_lshl_add_u32 v247, v246, 3, s53
    v_mul_u32_u24 v245, 1280, v245
    v_lshl_add_u32 v247, v247, 1, v245
    v_add_u32 v{FV}, v247, v245
    v_add_u32 v245, s53, v244
    v_mul_u32_u24 v245, {TP}, v245
    v_lshl_add_u32 v{FV+1}, v246, 4, v245
    v_mul_u32_u24 v245, 1040, v246
    v_lshl_add_u32 v245, v244, 4, v245
    v_add_u32 v{FV+2}, s60, v245
    s_lshl_b32 s64, s52, 1
    s_add_u32 s64, s64, {WS_YT}
    s_movk_i32 s53, 5120""")
    srd(a, SRD2, P_Q, 2048 * 1280); srd(a, SRD1, P_OUT, 2048 * 2560)
    for r in range(8): a(f"buffer_load_dwordx4 {v4(192+4*r)}, v247, {sq(SRD2)}, {'s53' if r >= 4 else '0'} offen offset:{1280*(r%4)}")

def role_fin(a):
    Q, QF, Y, T, L = 192, 48, 112, 144, 16
    a(f"""s_setprio {cfg.fprio}
    s_and_b32 s61, s2, 7
    s_lshl_b32 s61, s61, 7
    s_lshl_b32 s54, s56, 10
    s_add_u32 s61, s61, s54
    s_add_u32 s61, s61, {WS_YFLG}
    s_mov_b32 s62, 0xffff0000
    v_mov_b32 v12, 0""")
    a(probe(15, 12, "s61"))
    for r in range(8):
        for d in range(4):
            a(f"v_lshlrev_b32 v{QF+8*r+2*d}, 16, v{Q+4*r+d}\n v_and_b32 v{QF+8*r+2*d+1}, s62, v{Q+4*r+d}")
    stamp(a, 1)
    check(a, "fin", 15, 12, "s61", 1)
    stamp(a, 2)
    for i in range(8): a(f"s_add_u32 s54, s64, {8*TP*i}\n buffer_load_dwordx4 {v4(L+4*i)}, v{FV+1}, {sq(SRDWS)}, s54 offen sc1")
    for i in range(8): a(f"ds_write_b128 v10, {v4(L+4*i)} offset:{1040*i}")
    for ch in range(8): a(f"ds_read_b128 {v4(Y+4*ch)}, v{FV+2} offset:{128*ch}")
    stamp(a, 3)
    a("s_mov_b32 s54, 0")
    for r in range(8):
        t = T + 8 * (r & 1)
        for ch in range(8):
            src = Y + 4 * ch + r // 2
            a(f"v_and_b32 v{t+ch}, s62, v{src}" if r & 1 else f"v_lshlrev_b32 v{t+ch}, 16, v{src}")
        for ch in range(8): a(f"v_mul_f32 v{t+ch}, v{t+ch}, v{QF+8*r+ch}")
        o = 160 + 4 * r
        for d in range(4): a(f"v_cvt_pk_bf16_f32 v{o+d}, v{t+2*d}, v{t+2*d+1}")
        a(f"buffer_store_dwordx4 {v4(o)}, v{FV}, {sq(SRD1)}, s54 offen{OSC()}")
        if r < 7: a("s_add_u32 s54, s54, 2560")

def b2_tables(hf):
    num = {}
    for t in range(5 * hf, 5 * hf + 5):
        hs = {e // 20 for e in range(16 * t, 16 * t + 16)}
        dts = [dt for dt in range(10) if hs & {d // 20 for d in range(16 * dt, 16 * dt + 16)}]
        ch = {}
        for dt in dts: ch.setdefault(dt // 2, []).append(dt)
        num[t] = sorted(ch.items())
    ch = {}
    for dt in range(5 * hf, 5 * hf + 5): ch.setdefault(dt // 2, []).append(dt)
    return num, sorted(ch.items())

B_KS = 8416
NS = 3
def role_b2(a):
    PQ, KV, RAW = 16, 108, 180
    WA = [76 + 4 * n for n in range(8)]
    WB = [228 + 4 * n for n in range(7)] + [8]
    ACC = 108
    U = [180, 204]
    a(f"""s_mul_i32 s57, s56, 205
    s_lshr_b32 s57, s57, 10
    s_mul_i32 s54, s57, 5
    s_sub_u32 s58, s56, s54""")
    assert all((v * 205) >> 10 == v // 5 for v in range(216))
    srd(a, SRD0, P_WO, 640 * 1280)
    a(f"""s_lshl_b32 s59, s58, 8
    s_mul_i32 s52, s{SW}, {160*1280}
    s_add_u32 s59, s59, s52
    s_lshl_b32 s53, s{SW}, 6
    s_mul_i32 s65, s{SW}, 20480
    s_add_u32 s65, s65, s{SLB}
    v_and_b32 v8, 15, v1
    v_lshrrev_b32 v9, 4, v1
    v_lshlrev_b32 v2, 4, v8
    v_xor_b32 v2, s53, v2
    v_mul_u32_u24 v10, {8*1280}, v9
    v_add3_u32 v2, v2, v10, s59""")
    def dma(kstep, slot):
        return [[f"s_add_u32 m0, s65, {slot*B_KS + i*1056}", f"s_mov_b32 s63, {(32*kstep + i)*1280}",
                 f"buffer_load_dwordx4 v2, {sq(SRD0)}, s63 offen lds ; tag=K{kstep}"] for i in range(8)]
    def wreads(slot, dst):
        return [f"ds_read_b64_tr_b16 {v2(dst[n] + 2*h)}, v0 offset:{slot*B_KS + h*512 + 32*n}" for n in range(8) for h in range(2)]
    bar_wait(a)
    for g in dma(0, 0): a.extend(g)
    last_barrier(a, "b2", 8)
    for g in dma(1, 1): a.extend(g)
    a(f"s_setprio {cfg.cprio}")
    srd(a, SRD1, P_OUT, 2048 * 2560)
    a(f"""v_bfe_u32 v10, v1, 2, 3
    v_mul_u32_u24 v10, 1056, v10
    v_lshrrev_b32 v11, 5, v1
    v_lshl_add_u32 v10, v11, 8, v10
    v_and_b32 v11, 3, v1
    v_lshl_add_u32 v10, v11, 3, v10
    v_add_u32 v0, s65, v10
    s_add_u32 s64, s65, {2*B_KS}
    v_lshlrev_b32 v9, 3, v9
    v_mul_u32_u24 v3, 40, v8
    v_add3_u32 v3, v3, v9, s64
    v_mul_u32_u24 v4, 800, v11
    v_add3_u32 v4, v4, v9, s64
    v_lshlrev_b32 v5, 4, v1
    v_lshlrev_b32 v6, 3, v1
    v_add_u32 v6, s64, v6
    v_add_u32 v7, 4096, v5
    s_mul_i32 s52, s57, 3
    s_lshr_b32 s53, s52, 3
    s_add_u32 s54, s52, 2
    s_min_u32 s54, s54, 127
    s_lshr_b32 s54, s54, 3
    s_sub_u32 s54, s54, s53
    s_lshl_b32 s54, s54, 7
    v_and_b32 v12, 1, v1
    v_lshlrev_b32 v13, 7, v12
    v_mul_u32_u24 v12, s54, v12
    s_mul_i32 s60, s{SW}, 17
    s_add_u32 s60, s60, s53
    s_lshl_b32 s60, s60, 7
    s_add_u32 s60, s60, {WS_QFLAG}
    s_and_b32 s61, s2, 7
    s_lshl_b32 s61, s61, 10
    s_lshl_b32 s53, s{SW}, 8
    s_add_u32 s61, s61, s53
    s_mul_i32 s52, s52, 20480
    s_mul_i32 s53, s{SW}, 5120
    s_add_u32 s52, s52, s53
    s_add_u32 s52, s52, {WS_PQ}
    s_mul_i32 s62, s{SW}, {8*1680}
    s_add_u32 s62, s62, {WS_KV}
    s_mov_b32 s73, {EPS}
    s_mov_b32 s66, 0xffff0000
    s_mov_b32 s67, -1
    s_mov_b32 s68, 0
    s_mov_b32 s69, -1
    s_mov_b32 s70, 0
    s_mov_b32 s71, 0xffff0000""")
    for r in range(KV, KV + 72): a(f"v_mov_b32 v{r}, 0")
    a("WAITTAG K0")
    a.extend(wreads(0, WA))
    a("WAITTAG K1")
    a.extend(wreads(1, WB))
    a("s_waitcnt lgkmcnt(0)")
    if cfg.gate:
        a(f"s_cmp_eq_u32 s{SLD}, 0\n s_cbranch_scc1 L_GT\n v_mov_b32 v15, {L_BAR}")
        a.label("L_GTW")
        a("s_sleep 4\n ds_read_b32 v14, v15\n s_waitcnt lgkmcnt(0)\n v_cmp_gt_u32 vcc, 8, v14\n s_nop 1\n s_cbranch_vccnz L_GTW")
        a.label("L_GT")
    for g in dma(2, 0) + dma(3, 1): a.extend(g)
    a(probe(14, 12, "s60"))
    stamp(a, 5)
    check(a, "b2q", 14, 12, "s60", 1)
    for sub in range(NS):
        for c in range(5):
            a(f"buffer_load_dwordx4 {v4(PQ + (sub*5+c)*4)}, v{5 if c < 4 else 7}, {sq(SRDWS)}, s52 offen offset:{1024*(c%4)} sc1")
        if sub < NS - 1: a("s_add_u32 s52, s52, 20480")
    a(probe(14, 13, "s61"))
    check(a, "b2kv", 14, 13, "s61", 1)
    stamp(a, 6)
    raw = [RAW + 4 * i for i in range(12)] + [KV + 64, KV + 68]
    for hf in range(2):
        for i in range(7):
            a(f"buffer_load_dwordx4 {v4(raw[hf*7+i])}, v{5 if i < 4 else 7}, {sq(SRDWS)}, s62 offen offset:{1024*(i%4)} sc1")
        if hf == 0: a("s_add_u32 s62, s62, 6720")
    for r in range(4): a(f"v_mov_b32 v{12+r}, s73")
    qi = {}
    tabs = [b2_tables(0), b2_tables(1)]
    def build_half(hf):
        o = []
        for i in range(7):
            r = raw[hf * 7 + i]
            o += [f"v_cvt_pk_bf16_f32 v{r}, v{r}, v{r+1}", f"v_cvt_pk_bf16_f32 v{r+1}, v{r+2}, v{r+3}", f"ds_write_b64 v6, {v2(r)} offset:{512*i}"]
        if hf == 1: o += [f"v_mov_b32 v{KV+64+k}, 0" for k in range(8)]
        num, den = tabs[hf]
        quads = [("z", hf, dt) for c, dts in den for dt in dts] + [("n", t, dt) for t in num for c, dts in num[t] for dt in dts]
        assert len(quads) == 18
        rd = []
        for (kind, t, dt) in quads:
            q = len(qi); qi[(kind, t, dt)] = q
            mask = 0
            for l in range(64):
                i, g = l & 15, l >> 4
                hd = (16 * dt + 4 * g) // 20
                he = (16 * t + i) // 20 if kind == "n" else (i & 3) + 4 * t
                if hd == he: mask |= 1 << l
            off = 640 * (t - 5 * hf) + 32 * (dt - 5 * hf) if kind == "n" else 800 + 32 * (dt - 5 * hf)
            rd.append([f"s_mov_b32 exec_lo, {mask & 0xffffffff:#x}", f"s_mov_b32 exec_hi, {mask >> 32:#x}", f"ds_read_b64 {v2(KV + 2*q)}, v{3 if kind == 'n' else 4} offset:{off}"])
        return o, rd
    def omf(sub, hf, T):
        o = []
        num, den = tabs[hf]
        def one(kind, t, lst, acc):
            lst = sorted(lst, key=lambda x: len(x[1]))
            for k, (c, dts) in enumerate(lst):
                src = v4(acc) if k else ("v[12:15]" if kind == "z" else "0")
                kv = KV + 2 * qi[(kind, t, dts[0])]
                pq = PQ + (sub * 5 + c) * 4
                key = (min(k, 1), 0 if kind == "z" else 1, t, k)
                if len(dts) == 2: o.append((key, f"v_mfma_f32_16x16x32_bf16 {v4(acc)}, {v4(kv)}, {v4(pq)}, {src}"))
                else: o.append((key, f"v_mfma_f32_16x16x16_bf16 {v4(acc)}, {v2(kv)}, {v2(pq + 2*(dts[0]&1))}, {src}"))
        one("z", hf, den, T)
        for t in num: one("n", t, num[t], T + 4 + 4 * (t - 5 * hf))
        return [x for _, x in sorted(o)]
    def ovalu(sub, hf, T):
        o = []
        for r in range(4): o.append(f"v_rcp_f32 v{T+r}, v{T+r}")
        for tl in range(5):
            t = tl + 5 * hf
            h0 = (16 * tl) // 20; h1 = (16 * tl + 12) // 20
            rc = T + h0; n = T + 4 + 4 * tl
            if h0 != h1:
                g0 = min(g for g in range(4) if (16 * tl + 4 * g) // 20 == h1)
                o.append(f"v_cndmask_b32 v{rc}, v{T+h0}, v{T+h1}, s[{64+2*g0}:{65+2*g0}]")
            for r in range(4): o.append(f"v_mul_f32 v{n+r}, v{n+r}, v{rc}")
            d = PQ + (sub * 5 + t // 2) * 4 + 2 * (t & 1)
            o.append(f"v_cvt_pk_bf16_f32 v{d}, v{n}, v{n+1}")
            o.append(f"v_cvt_pk_bf16_f32 v{d+1}, v{n+2}, v{n+3}")
        return o
    def acc(sub, n): return ACC + (n * NS + sub) * 4
    def g2(k, W, ns=range(8)):
        return [f"v_mfma_f32_16x16x32_bf16 {v4(acc(sub, n))}, {v4(W[n])}, {v4(PQ + (sub*5+k)*4)}, {'0' if k == 0 else v4(acc(sub, n))}" for n in ns for sub in range(NS)]
    units = [(s_, h) for h in range(2) for s_ in range(NS)]
    nu = len(units)
    w0, r0 = build_half(0)
    a.extend(w0)
    for g in r0: a.extend(g)
    a("s_mov_b64 exec, -1")
    w1, r1 = build_half(1)
    a.extend(w1)
    r1g = [r1[k] + r1[k + 1] + ["s_mov_b64 exec, -1"] for k in range(0, 18, 2)]
    a.extend(interleave(omf(*units[0], U[0]), r1g, 1, 11))
    stamp(a, 7)
    for u in range(1, nu):
        a.extend(interleave(omf(*units[u], U[u & 1]), ovalu(*units[u - 1], U[(u - 1) & 1]), 2))
    a.extend(interleave(g2(0, WA), ovalu(*units[nu - 1], U[(nu - 1) & 1]), 2))
    k1 = g2(1, WB)
    a.extend(interleave(k1[:10], wreads(0, WA), 0, 8))
    a("s_waitcnt lgkmcnt(0)")
    a.extend(interleave(k1[10:], dma(4, 0), 0, 10))
    ad = []
    for gam in range(1, 4):
        ad += [f"s_xor_b32 s52, s{SW}, {gam}", "s_mul_i32 s52, s52, 20480", f"s_add_u32 s52, s52, {(gam-1)*6144}", f"s_add_u32 s52, s52, s{SLB}", f"v_add_u32 v{203+gam}, s52, v5"]
    ad += f"""v_add_u32 v207, s65, v5
    s_add_u32 s53, s65, 18432
    v_and_b32 v12, 15, v1
    v_mul_u32_u24 v12, 80, v12
    v_lshrrev_b32 v3, 4, v1
    v_lshl_add_u32 v12, v3, 3, v12
    v_add_u32 v12, s53, v12
    v_lshrrev_b32 v3, 2, v1
    v_and_b32 v4, 3, v1
    v_lshlrev_b32 v4, 4, v4
    v_mul_u32_u24 v15, 80, v3
    v_add3_u32 v15, v15, v4, s53
    s_mul_i32 s52, s57, 48
    v_add_u32 v3, s52, v3
    v_mul_u32_u24 v3, 2560, v3
    v_add_u32 v3, v3, v4
    s_lshl_b32 s52, s58, 8
    s_lshl_b32 s54, s{SW}, 6
    s_add_u32 s52, s52, s54
    s_add_u32 s52, s52, 1280""".split("\n")
    a.extend(interleave(interleave(g2(2, WA), wreads(1, WB), 0, 16), ad))
    pre = g2(3, WB, [0, 1, 2, 3])
    a.extend(pre[:4]); a("WAITTAG K4")
    rd4 = wreads(0, WA); rd4 = rd4[4:] + rd4[:4]
    a.extend(interleave(pre[4:], rd4))
    def wr(gam): return [f"ds_write_b128 v207, {v4(ACC + (gam*6+k)*4)} offset:{(gam-1)*6144 + 1024*k}" for k in range(6)]
    a.extend(g2(4, WA, [2, 3]))
    a.extend(interleave(g2(3, WB, [4, 5]) + g2(4, WA, [4, 5]), wr(1), 2))
    a.extend(interleave(g2(3, WB, [6, 7]) + g2(4, WA, [6, 7]), wr(2), 2))
    a.extend(interleave(g2(4, WA, [0, 1]), wr(3), 2))
    stamp(a, 8)
    bar_arrive(a); bar_wait(a, True)
    R = 16
    order = [n * NS + sub for sub in range(NS) for n in range(2)]
    for k in order:
        for gam in range(3): a(f"ds_read_b128 {v4(R + (k*3+gam)*4)}, v{204+gam} offset:{1024*k}")
    for k in order:
        n, sub = k // NS, k % NS
        for r in range(4): a(f"v_add_f32 v{ACC+4*k+r}, v{ACC+4*k+r}, v{R+(k*3)*4+r}")
        for r in range(4): a(f"v_add_f32 v{R+(k*3+1)*4+r}, v{R+(k*3+1)*4+r}, v{R+(k*3+2)*4+r}")
        for r in range(4): a(f"v_add_f32 v{ACC+4*k+r}, v{ACC+4*k+r}, v{R+(k*3+1)*4+r}")
        a(f"v_cvt_pk_bf16_f32 v{140+2*k}, v{ACC+4*k}, v{ACC+4*k+1}\n v_cvt_pk_bf16_f32 v{141+2*k}, v{ACC+4*k+2}, v{ACC+4*k+3}")
        a(f"ds_write_b64 v12, {v2(140+2*k)} offset:{32*n}")
        if n == 1:
            a(f"ds_read_b128 {v4(160+4*sub)}, v15")
            if sub > 0:
                a(f"buffer_store_dwordx4 {v4(160+4*(sub-1))}, v3, {sq(SRD1)}, s52 offen{OSC()}\n s_add_u32 s52, s52, {16*2560}")
    a(f"buffer_store_dwordx4 {v4(160+4*(NS-1))}, v3, {sq(SRD1)}, s52 offen{OSC()}")

def OSC(): return ["", " sc1", " nt", " sc0 sc1"][cfg.osc]

def kd(name):
    return f""".p2align 6
.amdhsa_kernel {name}
  .amdhsa_next_free_vgpr 256
  .amdhsa_next_free_sgpr 102
  .amdhsa_accum_offset 256
  .amdhsa_group_segment_fixed_size 0
  .amdhsa_kernarg_size 96
  .amdhsa_user_sgpr_count 2
  .amdhsa_user_sgpr_kernarg_segment_ptr 1
  .amdhsa_system_sgpr_workgroup_id_x 1
  .amdhsa_float_denorm_mode_32 3
.end_amdhsa_kernel"""

def head(name): return f".globl {name}\n.p2align 8\n.type {name},@function"

def build():
    k = KN + "_kernel"
    a = Asm()
    a(head(k)); prologue(a, k, 256)
    a("s_cmp_ge_u32 s2, 192\n s_cbranch_scc1 L_P")
    g_ids(a)
    a(f"s_cmp_eq_u32 s{SGRP}, 0\n s_cbranch_scc1 L_CONS")
    tag(a, 7)
    role_loader(a)
    a("s_cmp_ge_u32 s2, 96\n s_cbranch_scc1 L_CONV\n s_branch L_B2")
    a.label("L_CONS")
    a(f"s_cmp_lg_u32 s{SW}, 0\n s_cbranch_scc1 L_ZW\n s_cmp_ge_u32 s2, {NZERO}\n s_cbranch_scc1 L_ZW")
    zero_wave(a)
    a(f"s_cmp_lg_u32 s{SW}, 3\n s_cbranch_scc1 L_CONS1")
    init_wave(a, "g")
    a.label("L_CONS1")
    a(f"s_setprio {cfg.cprio}")
    args_ready(a)
    g_setup2(a)
    a("s_cmp_ge_u32 s58, 8\n s_cbranch_scc1 L_Q")
    tag(a, 1); role_kv(a)
    a(f"s_lshr_b32 s56, s2, 3\n s_sub_u32 s56, s56, 12\n s_cmp_ge_u32 s56, 2\n s_cbranch_scc1 L_FIN\n s_add_u32 s56, s56, 8\n s_mul_i32 s60, s{SW}, 8448\n s_add_u32 s60, s60, 16384\n v_lshl_add_u32 v10, v1, 4, s60")
    bar_wait(a)
    a("s_branch L_FINR")
    a.label("L_Q"); tag(a, 2); role_q(a); a("s_branch L_B2")
    a.label("L_P"); role_prep(a)
    a.label("L_CONV"); role_conv(a)
    a("s_cmp_lt_u32 s2, 192\n s_cbranch_scc1 L_FIN\n s_lshr_b32 s56, s2, 3\n s_sub_u32 s56, s56, 24")
    a.label("L_FINR")
    tag(a, 8); fin_head(a); role_fin(a)
    if cfg.enc == 89: a("s_waitcnt vmcnt(0)"); stamp(a, 9)
    a("s_branch L_FIN")
    a.label("L_B2")
    a("""s_lshr_b32 s53, s2, 3
    s_sub_u32 s54, s53, 4
    s_cmp_lt_u32 s53, 12
    s_cselect_b32 s53, s53, s54
    s_cmp_ge_u32 s53, 27
    s_cbranch_scc1 L_FIN
    s_and_b32 s56, s2, 7
    s_mul_i32 s56, s56, 27
    s_add_u32 s56, s56, s53
    s_cmp_ge_u32 s56, 215
    s_cbranch_scc1 L_FIN""")
    tag(a, 5); role_b2(a)
    if cfg.enc == 59: a("s_waitcnt vmcnt(0)"); stamp(a, 9)
    a.label("L_FIN"); stamps_out(a)
    if cfg.enc:
        a("s_waitcnt vmcnt(0) lgkmcnt(0)")
        a.label("L_SPIN")
        a("s_sleep 1\n s_memrealtime s[94:95]\n s_waitcnt lgkmcnt(0)\n s_sub_u32 s94, s94, s96\n s_cmp_lt_u32 s94, 2500\n s_cbranch_scc1 L_SPIN")
    a.label("L_END"); a("s_endpgm")
    launch = [f"; @launch grid=(256,1,1) block=(512,1,1) lds={LDS_BYTES}"]
    return launch, a, [k]

def emit(path, launch, a, kernels, verbose=False):
    body = fix_hazards(insert_waits(a.lines), verbose)
    out = list(launch) + ['.amdgcn_target "amdgcn-amd-amdhsa--gfx950"', ".text", ".p2align 8", "L_CODE_BEGIN:"]
    out += [(l if l.endswith(":") or l.startswith(".") else "    " + l) for l in body]
    out += ["L_CODE_END:", "    s_endpgm", '.section .rodata,"a"'] + [kd(k) for k in kernels]
    open(path, "w").write("\n".join(out) + "\n")

if __name__ == "__main__":
    cfg.stamps = "stamps" in sys.argv[2:]
    cfg.rot = "norot" not in sys.argv[2:]
    for x in sys.argv[2:]:
        if "=" in x: setattr(cfg, x.split("=")[0], int(x.split("=")[1]))
    emit(sys.argv[1], *build(), verbose="-v" in sys.argv)
```

```python
import sys
sys.path.insert(0, "dev")
from asmlib import *

KN = "concat_heads__ssm_conv_h3__linear_attn_block__prompt"
WS_KVFLG = 0x0000
WS_YFLG  = 0x2000
WS_UFLG  = 0x4800
WS_QFLAG = 0x5000
WS_CNT   = 0x8000
WS_KV    = 0xD000
NZERO    = 56
TP = 4224
WS_UT    = 0x100000
WS_YT    = 0x400000
WS_PQ    = 0x700000
WS_STAMP = 0xA00000
WS_SIZE  = 0xB00000
LDS_BYTES = 163840
HALF = 81920
L_BAR = HALF - 64
L_SIG = HALF - 60
SGRP, SLB, SBT, SW8, SLD = 74, 75, 76, 77, 72
LOG2E = 0x3FB8AA3B
EPS = 0x358637BD

P_Q, P_K, P_V, P_SH, P_H, P_D, P_X, P_W, P_WO, P_OUT, P_DBG, P_WS = [4 + 2 * i for i in range(12)]
SRD0, SRD1, SRD2, SRD3, SRD4, SRDWS = 28, 32, 36, 40, 44, 48
SW = 3

def srd(a, d, p, nbytes):
    a(f"s_mov_b32 s{d}, s{p}\n s_and_b32 s{d+1}, s{p+1}, 0xffff\n s_mov_b32 s{d+2}, {nbytes}\n s_mov_b32 s{d+3}, 0x20000")
def sq(d): return f"s[{d}:{d+3}]"
def v4(r): return f"v[{r}:{r+3}]"
def v2(r): return f"v[{r}:{r+1}]"

class Cfg:
    stamps = False
    rot = False
    gonly = 0
    ahead0 = 4
    ahead = 4
    bpos = 3
    lprio = 3
    cprio = 2
    psleep = 4
    qlate = 3
    pprio = 0
    qit = 4
    cgate = 8
    vprio = 0
    fbase = 22
    tail2 = 1
    tlb = 0
    pwait = 1
    eprio = 3
    fprio = 3
    qrel = 8
    qst = 1
    osc = 1
    gate = 1
    usig = 4
    qbar = 1
    spf = 0
    slab = 0
    enc = 0
    role = 0
    pmode = 0
    x_noq = 0
    x_plain = 0
    x_pend = 0
    x_nost = 0
cfg = Cfg()

NSTAMP = 10
def stamp(a, i, force=False):
    if cfg.slab and not force and i != NSTAMP - 1 and cfg.role in (7, 4, 5): return
    if cfg.enc and cfg.enc == cfg.role * 10 + i:
        a("s_memrealtime s[96:97]\n s_waitcnt lgkmcnt(0)")
    if cfg.stamps:
        a(f"s_memrealtime s[{80+2*i}:{81+2*i}]\n s_waitcnt lgkmcnt(0)")
def stamps_out(a):
    if not cfg.stamps: return
    a("s_waitcnt vmcnt(0) lgkmcnt(0)")
    stamp(a, NSTAMP - 1)
    a("s_memtime s[70:71]\n s_waitcnt lgkmcnt(0)\n s_sub_u32 s101, s70, s101")
    a(f"s_getreg_b32 s52, hwreg(HW_REG_HW_ID)\n s_getreg_b32 s53, hwreg(HW_REG_XCC_ID)")
    for i in range(NSTAMP): a(f"v_mov_b32 v{16+i}, s{80+2*i}")
    a(f"v_mov_b32 v26, s52\n v_mov_b32 v27, s53\n v_mov_b32 v28, s100\n v_mov_b32 v29, s2\n v_mov_b32 v30, s101\n v_mov_b32 v31, 0")
    a(f"s_lshl_b32 s54, s2, 9\n s_lshl_b32 s55, s{SW8}, 6\n s_add_u32 s54, s54, s55\n s_add_u32 s54, s54, {WS_STAMP}")
    a(f"v_mov_b32 v32, 0\n s_mov_b64 exec, 1")
    for i in range(4): a(f"buffer_store_dwordx4 {v4(16+4*i)}, v32, {sq(SRDWS)}, s54 offen offset:{16*i}")
    a("s_mov_b64 exec, -1")
def tag(a, t):
    cfg.role = t
    if cfg.stamps: a(f"s_lshl_b32 s100, s100, 4\n s_add_u32 s100, s100, {t}")

def prologue(a, name, nwg):
    a.label(name)
    if cfg.enc: a("s_memrealtime s[98:99]\n s_memrealtime s[96:97]")
    a(f"""s_load_dwordx16 s[4:19], s[0:1], 0
    s_load_dwordx8 s[20:27], s[0:1], 64
    s_cmp_ge_u32 s2, {nwg}
    s_cbranch_scc1 L_END
    v_and_b32 v1, 63, v0
    v_lshrrev_b32 v2, 6, v0
    s_mov_b32 s{SBT}, 0
    v_readfirstlane_b32 s{SW8}, v2
    v_mov_b32 v12, 0
    s_mov_b32 s{SLD}, 0""")
    if cfg.stamps:
        for i in range(NSTAMP): a(f"s_mov_b32 s{80+2*i}, 0")
        a("s_mov_b32 s100, 0\n s_memrealtime s[80:81]\n s_memtime s[98:99]")
    a(f"""s_and_b32 s{SW}, s{SW8}, 3
    s_lshr_b32 s{SGRP}, s{SW8}, 2
    s_mul_i32 s{SLB}, s{SGRP}, {HALF}""")

def init_wave(a, name):
    a("s_getpc_b64 s[52:53]")
    a.label(f"L_PC{name}")
    a(f"""s_lshr_b32 s54, s2, 3
    s_and_b32 s54, s54, 7
    s_lshl_b32 s54, s54, 13
    v_lshlrev_b32 v3, 7, v1
    v_add_u32 v3, s54, v3
    s_sub_u32 s52, s52, L_PC{name}-L_CODE_BEGIN
    s_subb_u32 s53, s53, 0
    v_min_u32 v3, L_CODE_END-L_CODE_BEGIN-4, v3
    global_load_dword v15, v3, s[52:53]""")
    lds_init(a)
    if cfg.tlb:
        n = cfg.tlb
        a(f"s_waitcnt lgkmcnt(0)\n s_mov_b64 exec, {(1 << n) - 1}")
        for k, (p, size) in enumerate(((P_WS, WS_STAMP), (P_OUT, 2048 * 2560), (P_Q, 2048 * 1280), (P_H, 640 * 4096), (P_WO, 640 * 1280))):
            st = (size - 128) // (n - 1) // 128 * 128
            a(f"s_mov_b32 s54, {st}\n v_mul_lo_u32 v3, v1, s54\n global_load_dword v{250+k}, v3, s[{p}:{p+1}]")
        a("s_mov_b64 exec, -1")

def lds_init(a):
    a(f"""v_and_b32 v4, 15, v1
    v_lshlrev_b32 v4, 2, v4
    v_bfe_u32 v5, v1, 4, 1
    v_mul_u32_u24 v5, {HALF}, v5
    v_add_u32 v4, v4, v5
    v_add_u32 v4, {L_BAR}, v4
    v_mov_b32 v5, 0
    ds_write_b32 v4, v5""")

def args_ready(a):
    a("s_waitcnt lgkmcnt(0)")
    if cfg.stamps: a("s_mov_b32 s101, s98")
    srd(a, SRDWS, P_WS, WS_SIZE if cfg.stamps else WS_STAMP)
    srd(a, SRD4, P_DBG, 256)

def bar_arrive(a):
    a(f"""v_mov_b32 v13, s{SLB}
    v_mov_b32 v14, 1
    v_add_u32 v13, {L_BAR}, v13
    s_add_u32 s{SBT}, s{SBT}, 4
    s_mov_b64 exec, 1
    ds_add_u32 v13, v14
    s_mov_b64 exec, -1""")
def bar_wait(a, addr_ok=False):
    n = bar_wait.n; bar_wait.n += 1
    if not addr_ok: a(f"v_mov_b32 v13, s{SLB}\n v_add_u32 v13, {L_BAR}, v13")
    a.label(f"L_BW_{n}")
    a(f"""ds_read_b32 v14, v13
    s_waitcnt lgkmcnt(0)
    v_cmp_gt_u32 vcc, s{SBT}, v14
    s_nop 1
    s_cbranch_vccnz L_BW_{n}""")
bar_wait.n = 0

def phi_block(regs_, temps):
    out = []
    n = len(temps)
    for g in range(0, len(regs_), n):
        grp = regs_[g:g + n]
        for r, t in zip(grp, temps): out.append(f"v_mul_f32 v{t}, s70, v{r}")
        for r, t in zip(grp, temps): out.append(f"v_exp_f32 v{t}, v{t} clamp"); out.append(f"v_max_f32 v{r}, s71, v{r}")
        for r, t in zip(grp, temps): out.append(f"v_add_f32 v{r}, v{r}, v{t}")
    return out

def probe(vdst, voff, s_off, srdq=SRDWS):
    if cfg.pmode == 3:
        return f"v_mov_b32 v{vdst}, -1\n s_mov_b64 exec, 3\n v_mov_b32 v{vdst}, 0\n buffer_atomic_add v{vdst}, v{voff}, {sq(srdq)}, {s_off} offen sc0 sc1\n s_mov_b64 exec, -1"
    return f"buffer_load_dword v{vdst}, v{voff}, {sq(srdq)}, {s_off} offen " + ["sc1", "sc0 sc1", "sc0 sc1 nt"][cfg.pmode]
def check(a, name, vdst, voff, s_off, target, srdq=SRDWS):
    a(f"v_cmp_gt_u32 vcc, {target}, v{vdst}\n s_mov_b32 s78, 0\n s_nop 0\n s_cbranch_vccz L_OK_{name}")
    a("PUSHSTATE")
    a.label(f"L_POLL_{name}")
    a(f"""s_sleep {cfg.psleep}
    {probe(vdst, voff, s_off, srdq)}
    s_add_u32 s78, s78, 1
    s_waitcnt vmcnt(0)
    v_cmp_gt_u32 vcc, {target}, v{vdst}
    s_cmp_ge_u32 s78, 0x20000
    s_cbranch_scc1 L_OK_{name}
    s_cbranch_vccnz L_POLL_{name}""")
    a("POPSTATE")
    a.label(f"L_OK_{name}")
def zero_probe(a, vd, vz): a(f"v_mov_b32 v{vz}, 128\n" + probe(vd, vz, "0", SRD4))
def zero_check(a, name, vd, vz): check(a, "z" + name, vd, vz, "0", 1, SRD4)
def zero_wave(a):
    a(f"""v_lshlrev_b32 v8, 4, v1
    v_mov_b32 v16, 0
    v_mov_b32 v17, 0
    v_mov_b32 v18, 0
    v_mov_b32 v19, 0
    s_lshl_b32 s54, s2, 11
    s_mov_b32 s79, 1
    s_mov_b32 s78, 1""")
    args_ready(a)
    a(f"""buffer_store_dwordx4 v[16:19], v8, {sq(SRDWS)}, s54 offen sc1
    buffer_store_dwordx4 v[16:19], v8, {sq(SRDWS)}, s54 offen offset:1024 sc1
    s_waitcnt vmcnt(0)
    s_atomic_add s79, s[{P_DBG}:{P_DBG+1}], 0 glc
    s_waitcnt lgkmcnt(0)
    s_cmp_lg_u32 s79, {NZERO-1}
    s_cbranch_scc1 L_ZW
    s_atomic_add s78, s[{P_DBG}:{P_DBG+1}], 128
    s_waitcnt lgkmcnt(0)""")
    a.label("L_ZW")

def signal(a, s_off, nwaves, ldsaddr, narr=1, rstride=128):
    n = signal.n; signal.n += 1
    a(f"""v_mov_b32 v13, {ldsaddr}
    v_mov_b32 v14, 1
    s_add_u32 s68, s{P_WS}, s{s_off}
    s_addc_u32 s69, s{P_WS+1}, 0
    s_mov_b32 s78, 1
    s_waitcnt vmcnt(0)
    s_mov_b64 exec, 1
    ds_add_rtn_u32 v12, v13, v14
    s_mov_b64 exec, -1
    s_waitcnt lgkmcnt(0)
    v_readfirstlane_b32 s79, v12
    s_cmp_lg_u32 s79, {nwaves-1}
    s_cbranch_scc1 L_SIG_{n}""")
    if narr > 1:
        a(f"""s_mov_b32 s79, 1
        s_atomic_add s79, s[68:69], {WS_CNT} glc
        s_waitcnt lgkmcnt(0)
        s_cmp_lg_u32 s79, {narr-1}
        s_cbranch_scc1 L_SIG_{n}""")
    for r in range(8 if narr > 1 else 1): a(f"s_atomic_add s78, s[68:69], {r*rstride}")
    a("s_waitcnt lgkmcnt(0)")
    a.label(f"L_SIG_{n}")
signal.n = 0

def conv_ids(a):
    a("""s_and_b32 s52, s2, 7
    s_mul_i32 s52, s52, 20
    s_lshr_b32 s53, s2, 3
    s_sub_u32 s53, s53, 12
    s_add_u32 s52, s52, s53""")
def sprefetch(a, p, s_off, n):
    a(f"s_add_u32 s68, s{p}, s{s_off}\n s_addc_u32 s69, s{p+1}, 0")
    for i in range(n): a(f"s_load_dword s79, s[68:69], {128*i}")
    a("s_waitcnt lgkmcnt(0)")

def last_barrier(a, name, n_younger):
    a(f"s_cmp_eq_u32 s{SLD}, 0\n s_cbranch_scc1 L_LB_{name}\n PUSHSTATE\n s_waitcnt vmcnt({n_younger})\n s_barrier\n s_setprio 0\n POPSTATE")
    a.label(f"L_LB_{name}")

G_ACC, G_B, G_X = 16, 96, 176
G_SLOT = 36864
def slot_off(j): return ((j & 1) ^ 1) * G_SLOT
def slot_half(j): return (j % 4) >> 1
def g_ids(a):
    a(f"""s_and_b32 s52, s2, 7
    s_lshr_b32 s53, s2, 3
    s_and_b32 s57, s52, 3
    s_lshl_b32 s57, s57, 2
    s_and_b32 s54, s53, 3
    s_add_u32 s57, s57, s54
    s_lshr_b32 s52, s52, 2
    s_lshr_b32 s54, s53, 2
    s_lshl_b32 s58, s52, 2
    s_add_u32 s58, s58, s54
    s_lshl_b32 s52, s52, 1
    s_add_u32 s52, s52, s54
    s_add_u32 s52, s52, 4
    s_cmp_ge_u32 s54, 4
    s_cselect_b32 s58, s52, s58
    s_lshl_b32 s66, s{SW}, 12
    s_add_u32 s66, s66, 20480""")

def g_setup_x(a):
    if cfg.rot:
        a(f"""s_mul_i32 s62, s57, 3
        s_lshl_b32 s59, s58, 1
        s_add_u32 s62, s62, s59
        s_mul_i32 s59, s62, 205
        s_lshr_b32 s59, s59, 11
        s_mul_i32 s59, s59, 10
        s_sub_u32 s62, s62, s59
        s_lshl_b32 s64, s62, 7
        s_mul_i32 s63, s62, {64*3840}""")
    else:
        a("s_mov_b32 s64, 0\n s_mov_b32 s63, 0")
    a(f"""v_lshrrev_b32 v240, 3, v1
    s_lshl_b32 s59, s57, 7
    s_lshl_b32 s54, s{SW}, 5
    s_add_u32 s59, s59, s54
    v_add_u32 v240, s59, v240
    v_mul_u32_u24 v240, 1280, v240
    v_lshrrev_b32 v241, 4, v1
    v_and_b32 v242, 7, v1
    v_xor_b32 v242, v242, v241
    v_lshl_add_u32 v7, v242, 4, v240
    v_xor_b32 v242, 4, v242
    v_lshl_add_u32 v8, v242, 4, v240
    v_add_u32 v8, {10240-1024}, v8
    v_add_u32 v9, {20480-2048}, v7
    v_add_u32 v10, {20480-2048}, v8""")

def g_setup_w(a):
    a(f"""s_mul_i32 s59, s58, 160
    s_add_u32 s60, s59, 1280
    s_add_u32 s61, s59, {2560-160}
    s_sub_u32 s59, s58, 8
    s_mul_i32 s59, s59, 320
    s_cmp_ge_u32 s58, 8
    s_cselect_b32 s60, s59, s60
    s_cselect_b32 s61, s59, s61
    s_mul_i32 s59, s{SW}, {16*3840}
    s_add_u32 s60, s60, s59
    s_add_u32 s61, s61, s59
    s_mul_i32 s65, s{SW}, 5120""")
    a(f"v_mov_b32 v244, s60\n v_mov_b32 v245, s61")
    for i in range(5):
        assert all(((64 * i + l) * 3277) >> 16 == (64 * i + l) // 20 for l in range(64))
        a(f"""v_add_u32 v240, {64*i}, v1
        v_mul_u32_u24 v241, 3277, v240
        v_lshrrev_b32 v241, 16, v241
        v_mul_u32_u24 v242, 20, v241
        v_sub_u32 v240, v240, v242""")
        if i == 2: a("v_lshrrev_b32 v242, 4, v1\n v_and_b32 v242, 2, v242\n v_xor_b32 v240, v240, v242")
        if i > 2: a("v_xor_b32 v240, 2, v240")
        a(f"""v_cmp_gt_u32 vcc, 10, v240
        v_mul_u32_u24 v241, 3840, v241
        v_lshl_add_u32 v240, v240, 4, v241
        v_cndmask_b32 v242, v245, v244, vcc""")
        if i in (0, 4): a(f"v_add_u32 v{2+i}, v240, v242")
        else: a(f"v_add_u32 v240, v240, v242\n v_subrev_u32 v{2+i}, {1024*i}, v240")

def g_setup2(a):
    a(f"""v_lshrrev_b32 v241, 4, v1
    v_bfe_u32 v242, v1, 2, 2
    v_lshl_add_u32 v242, v241, 3, v242
    v_mul_u32_u24 v242, 320, v242
    v_and_b32 v243, 3, v1
    v_lshl_add_u32 v242, v243, 3, v242
    v_and_b32 v243, 1, v241
    v_lshlrev_b32 v243, 5, v243
    v_add_u32 v9, v242, v243
    v_sub_u32 v10, v242, v243
    v_and_b32 v240, 15, v1
    v_lshrrev_b32 v242, 1, v240
    v_xor_b32 v242, v242, v241
    v_lshlrev_b32 v240, 7, v240
    v_add_u32 v240, s66, v240
    v_lshl_add_u32 v11, v242, 4, v240
    v_xor_b32 v242, 4, v242
    v_lshl_add_u32 v12, v242, 4, v240
    s_mov_b32 s70, {LOG2E}
    s_mov_b32 s71, {EPS}""")
    for k in range(4): a(f"v_add_u32 v{2+k}, {HALF}, v{9+k}")

def g_loadx(j):
    o = [f"s_add_u32 m0, s66, {slot_half(j) * HALF + slot_off(j)}", "s_nop 0"]
    for i in range(4): o.append(f"buffer_load_dwordx4 v{7+i}, {sq(SRD0)}, s64 offen offset:{1024*i} lds ; tag=S{j}")
    o += ["s_add_u32 s64, s64, 128"]
    if cfg.rot: o += ["s_cmp_eq_u32 s64, 1280", "s_cselect_b32 s64, 0, s64"]
    return o
def g_loadw(j):
    base = slot_half(j) * HALF + slot_off(j)
    o = [f"s_add_u32 m0, s65, {base}", "s_nop 0"]
    for i in range(4): o.append(f"buffer_load_dwordx4 v{2+i}, {sq(SRD1)}, s63 offen offset:{1024*i} lds ; tag=S{j}")
    o += [f"s_add_u32 m0, s65, {base + 4096}", "s_nop 0", f"buffer_load_dwordx4 v6, {sq(SRD1)}, s63 offen lds ; tag=S{j}"]
    o += [f"s_add_u32 s63, s63, {64*3840}"]
    if cfg.rot: o += [f"s_cmp_eq_u32 s63, {640*3840}", "s_cselect_b32 s63, 0, s63"]
    return o
def g_xreads(j):
    return [f"ds_read_b128 {v4(G_X + (j&1)*16 + ks*8 + sub*4)}, v{(4 if slot_half(j) else 11)+ks} offset:{slot_off(j) + sub*2048}" for ks in range(2) for sub in range(2)]
def g_reads(t):
    j = t // 2
    o = []
    for n in range(10):
        for h in range(2):
            off = slot_off(j) + (t & 1) * 10240 + h * 1280 + 32 * n
            o.append(f"ds_read_b64_tr_b16 {v2(G_B + (t & 1) * 40 + n * 4 + 2 * h)}, v{(2 if slot_half(j) else 9) + (n & 1)} offset:{off}")
    return o

def role_loader(a):
    a(f"s_setprio {cfg.lprio}")
    g_setup_x(a)
    a("s_waitcnt lgkmcnt(0)")
    srd(a, SRD0, P_X, 2048 * 1280)
    a.extend(g_loadx(0))
    g_setup_w(a)
    srd(a, SRD1, P_W, 640 * 3840)
    seq = []
    for j in range(10): seq += [g_loadx(j), g_loadw(j)]
    pos = 1
    def upto(n):
        nonlocal pos
        while pos < min(n, 20): a.extend(seq[pos]); pos += 1
    upto(cfg.ahead0)
    args_ready(a)
    stamp(a, 1)
    for j in range(9):
        a(f"WAITTAG S{j}")
        if cfg.slab == 2 and j < 8: stamp(a, j + 1, True)
        a("s_barrier")
        if cfg.slab == 1 and j < 8: stamp(a, j + 1, True)
        if j == 0: stamp(a, 2)
        if j == 6: zero_probe(a, 14, 13)
        upto(min(2 * (j + 1) + cfg.ahead, 2 * (j + 4)))
    zero_check(a, "ld", 14, 13)
    a(f"s_mov_b32 s{SLD}, 1")
    stamp(a, 3)

def g_main(a, transposed, tail):
    a("s_waitcnt vmcnt(0) lgkmcnt(0)\n s_barrier")
    stamp(a, 1)
    a.extend(g_xreads(0) + g_reads(0))
    def mfma(t, n, sub):
        j, ks = t // 2, t % 2
        acc = v4(G_ACC + (sub * 10 + n) * 4)
        x = v4(G_X + (j & 1) * 16 + ks * 8 + sub * 4)
        b = v4(G_B + (t & 1) * 40 + n * 4)
        c = "0" if t == 0 else acc
        return f"v_mfma_f32_16x16x32_bf16 {acc}, {b}, {x}, {c}" if transposed else f"v_mfma_f32_16x16x32_bf16 {acc}, {x}, {b}, {c}"
    for t in range(18 if cfg.tail2 else 19):
        j, ks = t // 2, t % 2
        mf = [mfma(t, n, sub) for n in range(10) for sub in range(2)]
        rd = g_reads(t + 1)
        if ks == 1:
            rd = g_xreads(j + 1) + rd
            a.extend(mf[:cfg.bpos]); a("s_waitcnt lgkmcnt(0)" + "\n s_barrier")
            a.extend(interleave(mf[cfg.bpos:], rd))
        else:
            a.extend(interleave(mf, rd))
    if cfg.tail2:
        a.extend(interleave([mfma(18, n, sub) for n in range(5) for sub in range(2)], g_reads(19)))
        tail([mfma(19, n, sub) for n in range(5) for sub in range(2)] + [mfma(t, n, sub) for t in (18, 19) for n in range(5, 10) for sub in range(2)])
    else:
        tail([mfma(19, n, sub) for n in range(10) for sub in range(2)])

def role_q(a):
    a(f"""s_lshl_b32 s52, s57, 3
    s_lshl_b32 s53, s{SW}, 1
    s_add_u32 s52, s52, s53
    s_mul_i32 s52, s52, 20
    s_sub_u32 s53, s58, 8
    s_mul_i32 s54, s53, 5
    s_add_u32 s52, s52, s54
    s_lshl_b32 s52, s52, 10
    s_add_u32 s52, s52, {WS_PQ}
    s_mul_i32 s55, s53, 17
    s_add_u32 s55, s55, s57
    s_lshl_b32 s55, s55, 7
    s_add_u32 s55, s55, {WS_QFLAG}
    v_lshlrev_b32 v6, 4, v1""")
    def tail(mf):
        bar_arrive(a)
        ep = []
        for c in range(5):
            for sub in range(2):
                r0 = G_ACC + (sub * 10 + 2 * c) * 4
                ep += phi_block(list(range(r0, r0 + 8)), list(range(240, 248)))
                d = G_B + (sub * 5 + c) * 4
                ep += [f"v_cvt_pk_bf16_f32 v{d+k}, v{r0+2*k}, v{r0+2*k+1}" for k in range(4)]
                ep += [f"s_add_u32 s54, s52, {(sub*20+c)*1024}", f"buffer_store_dwordx4 {v4(d)}, v6, {sq(SRDWS)}, s54 offen sc1"]
        n = 2 * (len(mf) - 8)
        a.extend(mf[:8])
        a.extend(interleave(mf[8:], ep[:n]))
        stamp(a, 2)
        zero_probe(a, 7, 8)
        a.extend(ep[n:])
    g_main(a, True, tail)
    stamp(a, 3)
    zero_check(a, "q", 7, 8)
    signal(a, 55, 4, L_SIG)
    stamp(a, 4)

def role_kv(a):
    EX, HB = G_SLOT, 0
    DUMP = HB + 4 * 2048
    AD = 208
    a(f"""v_lshlrev_b32 v240, 4, v1
    s_mul_i32 s52, s{SW}, 10240
    s_add_u32 s52, s52, {EX}
    v_add_u32 v{AD+6}, s52, v240
    s_lshl_b32 s52, s{SW}, 10
    s_add_u32 s52, s52, {EX}
    v_add_u32 v{AD+7}, s52, v240
    v_and_b32 v246, 15, v1
    v_lshrrev_b32 v247, 4, v1
    v_lshlrev_b32 v247, 2, v247
    s_lshl_b32 s52, s{SW}, 2
    v_subrev_u32 v246, s52, v246
    v_subrev_u32 v247, s52, v247
    s_lshl_b32 s53, s{SW}, 11
    v_mov_b32 v245, {DUMP}
    v_lshlrev_b32 v{AD+8}, 2, v1
    v_add_u32 v{AD+9}, s53, v{AD+8}""")
    for k in range(4): a(f"v_mov_b32 v{AD+12+k}, 0x3f803f80")
    k = 0
    for dt in range(2):
        for et in range(2):
            a(f"""v_add_u32 v240, {16*dt}, v247
            v_add_u32 v241, {16*et}, v246
            v_max_u32 v242, v240, v241
            v_cmp_gt_u32 vcc, 20, v242
            v_mul_u32_u24 v241, 80, v241
            v_lshl_add_u32 v241, v240, 2, v241
            v_add_u32 v241, s53, v241
            v_cndmask_b32 v{AD+k}, v245, v241, vcc""")
            k += 1
        a(f"""v_add_u32 v240, {16*dt}, v247
        v_and_b32 v241, 15, v1
        v_mul_u32_u24 v241, 20, v241
        v_max_u32 v242, v240, v241
        v_cmp_gt_u32 vcc, 20, v242
        v_lshlrev_b32 v240, 2, v240
        v_add_u32 v240, s53, v240
        v_add_u32 v240, 1600, v240
        v_cndmask_b32 v{AD+4+dt}, v245, v240, vcc""")
    a(f"""s_lshl_b32 s52, s58, 2
    s_add_u32 s52, s52, s{SW}
    s_mul_i32 s52, s52, 1680
    s_add_u32 s52, s52, {WS_KV}
    s_lshl_b32 s55, s58, 7""")
    def tail(mf):
        ep = []
        for t in [0, 1, 5, 2, 6, 7, 3, 8, 9, 4]:
            r0 = G_ACC + t * 4; r1 = G_ACC + (10 + t) * 4
            if t < 5: ep += phi_block(list(range(r0, r0 + 4)) + list(range(r1, r1 + 4)), list(range(240, 248)))
            d = G_B + t * 4
            ep += [f"v_cvt_pk_bf16_f32 v{d}, v{r0}, v{r0+1}", f"v_cvt_pk_bf16_f32 v{d+1}, v{r0+2}, v{r0+3}",
                   f"v_cvt_pk_bf16_f32 v{d+2}, v{r1}, v{r1+1}", f"v_cvt_pk_bf16_f32 v{d+3}, v{r1+2}, v{r1+3}",
                   f"ds_write_b128 v{AD+6}, {v4(d)} offset:{t*1024}"]
        n = 2 * (len(mf) - 6)
        a.extend(mf[:6])
        a.extend(interleave(mf[6:], ep[:n]))
        stamp(a, 2)
        zero_probe(a, 7, 8)
        a.extend(ep[n:])
    g_main(a, False, tail)
    bar_arrive(a); bar_wait(a, True)
    F = 136
    for rg in range(4):
        for q, off in enumerate([0, 5120, 1024, 6144]):
            a(f"ds_read_b128 {v4(F + rg*16 + [0, 2, 1, 3][q]*4)}, v{AD+7} offset:{rg*10240 + off}")
    D = 16
    for rg in range(4):
        for dt in range(2):
            A = v4(F + rg * 16 + dt * 4)
            acc = v4(D + 16 + dt * 4)
            a(f"v_mfma_f32_16x16x32_bf16 {acc}, {A}, {v4(AD+12)}, {'0' if rg == 0 else acc}")
            for et in range(2):
                acc = v4(D + (dt * 2 + et) * 4)
                a(f"v_mfma_f32_16x16x32_bf16 {acc}, {A}, {v4(F + rg*16 + 8 + et*4)}, {'0' if rg == 0 else acc}")
    zero_check(a, "kv", 7, 8)
    for k in [4, 0, 1, 5, 2, 3]: a(f"ds_write_b128 v{AD+k}, {v4(D + 4*k)}")
    for i in range(7): a(f"ds_read_b32 v{48+i}, v{AD+9} offset:{256*i}")
    bar_arrive(a)
    stamp(a, 3)
    for i in range(7):
        if i == 6: a("s_mov_b32 exec_hi, 0xf")
        a(f"buffer_atomic_add_f32 v{48+i}, v{AD+8}, {sq(SRDWS)}, s52 offen offset:{256*i}")
    a("s_mov_b64 exec, -1")
    signal(a, 55, 4, L_SIG, 16, 1024)
    stamp(a, 4)

C_HCOPY = 4224; C_UH = 148; C_WAVE = 2 * C_HCOPY + 2 * C_UH * 16
C_STG = HALF + 4 * C_WAVE; C_STGP = 4160
PV = 224
def role_prep(a):
    a(f"""s_and_b32 s52, s2, 7
    s_lshl_b32 s52, s52, 2
    s_bfe_u32 s53, s2, 0x20004
    s_add_u32 s52, s52, s53
    s_lshl_b32 s52, s52, 6
    s_bfe_u32 s65, s2, 0x10003
    s_mul_i32 s53, s65, 320
    s_sub_u32 s54, s{SW8}, 3
    s_lshl_b32 s55, s{SW8}, 1
    s_cmp_ge_u32 s{SW8}, 3
    s_cselect_b32 s54, s54, s55
    s_lshl_b32 s54, s54, 6
    s_add_u32 s53, s53, s54
    v_lshrrev_b32 v240, 3, v1
    v_lshl_add_u32 v241, v240, 3, s52
    v_and_b32 v242, 7, v1
    v_lshl_add_u32 v243, v242, 3, s53
    v_mul_u32_u24 v241, 1280, v241
    v_lshl_add_u32 v{PV}, v243, 1, v241
    s_movk_i32 s55, 5120""")
    def common2(rev):
        a(f"""v_add_u32 v241, s53, v240
        v_mul_u32_u24 v241, {TP}, v241
        v_lshl_add_u32 v{PV+3}, v242, 4, v241
        s_mul_i32 s54, s{SW}, 20480
        s_mul_i32 s63, s{SGRP}, 10240
        s_add_u32 s54, s54, s63
        v_mul_u32_u24 v241, 1040, v242
        v_add_u32 v241, s54, v241""")
        if rev: a("v_sub_u32 v240, 7, v240")
        a(f"""v_lshl_add_u32 v{PV+4}, v240, 4, v241
        v_lshl_add_u32 v{PV+5}, v1, 4, s54
        s_lshl_b32 s64, s52, 1
        s_mov_b32 s70, 0x05040100
        s_mov_b32 s71, 0x07060302""")
    def rds(R): return [f"ds_read_b128 {v4(R+4*i)}, v{PV+5} offset:{1040*i}" for i in range(8)]
    def sts(R, extra): return [x for i in range(8) for x in (f"s_add_u32 s54, s64, {8*TP*i + extra}", f"buffer_store_dwordx4 {v4(R+4*i)}, v{PV+3}, {sq(SRDWS)}, s54 offen sc1")]
    a(f"s_cmp_lt_u32 s{SW8}, 3\n s_cbranch_scc1 L_PQ")
    tag(a, 3)
    a("s_barrier")
    a(f"v_subrev_u32 v{PV+1}, 3840, v{PV}\n v_lshlrev_b32 v{PV+2}, 3, v243\n s_waitcnt lgkmcnt(0)")
    srd(a, SRD0, P_K, 2048 * 1280)
    K, V, C = 16, 60, 92
    for r in range(3): a(f"buffer_load_dwordx4 {v4(K+4*r)}, v{PV+1}, {sq(SRD0)}, 0 offen offset:{1280*r}")
    for r in range(8): a(f"buffer_load_dwordx4 {v4(K+12+4*r)}, v{PV}, {sq(SRD0)}, {'s55' if r >= 4 else '0'} offen offset:{1280*(r%4)}")
    srd(a, SRD1, P_V, 2048 * 1280); srd(a, SRD3, P_SH, 640 * 8)
    for r in range(4): a(f"buffer_load_dwordx4 {v4(C+4*r)}, v{PV+2}, {sq(SRD3)}, 0 offen offset:{16*r}")
    for r in range(8):
        a(f"buffer_load_dwordx4 {v4(V+4*r)}, v{PV}, {sq(SRD1)}, {'s55' if r >= 4 else '0'} offen offset:{1280*(r%4)}")
    args_ready(a)
    common2(True)
    a(f"s_sub_u32 s64, {WS_UT + 1984*2}, s64\n s_mov_b32 s62, 0xffff0000")
    stamp(a, 1)
    P, T, U, O = 108, 120, 184, 192
    for ch in range(8):
        dw, hi = ch // 2, ch % 2
        sel = "s71" if hi else "s70"
        for s_ in range(-2, 8):
            a(f"v_perm_b32 v{P+s_+2}, v{K+4*(s_+2)+dw}, v{K+4*(s_+3)+dw}, {sel}")
        for s_ in range(8): a(f"v_dot2_f32_bf16 v{T+8*ch+s_}, v{P+s_}, v{C+2*ch+1}, 0")
        for s_ in range(8): a(f"v_dot2_f32_bf16 v{T+8*ch+s_}, v{P+s_+2}, v{C+2*ch}, v{T+8*ch+s_}")
    for ch in range(8):
        dw, hi = ch // 2, ch % 2
        for s_ in range(8):
            a(f"v_and_b32 v{U+s_}, s62, v{V+4*s_+dw}" if hi else f"v_lshlrev_b32 v{U+s_}, 16, v{V+4*s_+dw}")
        for s_ in range(8): a(f"v_mul_f32 v{T+8*ch+s_}, v{T+8*ch+s_}, v{U+s_}")
        o = O + 4 * ch
        for j in range(4): a(f"v_cvt_pk_bf16_f32 v{o+j}, v{T+8*ch+7-2*j}, v{T+8*ch+6-2*j}")
        a(f"ds_write_b128 v{PV+4}, {v4(o)} offset:{128*ch}")
    a.extend(rds(16) + sts(16, 0))
    stamp(a, 2)
    zero_probe(a, 3, 4)
    zero_check(a, "pu", 3, 4)
    a(f"s_lshl_b32 s65, s65, 10\n s_add_u32 s65, s65, {WS_UFLG}")
    signal(a, 65, 5, L_SIG, 32)
    stamp(a, 3)
    a(f"s_cmp_eq_u32 s{SGRP}, 1\n s_cbranch_scc1 L_CONV\n s_branch L_PW")
    a.label("L_PQ")
    tag(a, 6)
    a(f"s_cmp_lg_u32 s{SW8}, 2\n s_cbranch_scc1 L_PQ0")
    init_wave(a, "p")
    a.label("L_PQ0")
    args_ready(a)
    a("s_barrier")
    stamp(a, 2)
    zero_probe(a, 3, 4)
    zero_check(a, "pq", 3, 4)
    a.label("L_PW")
    if cfg.pwait:
        a(f"s_and_b32 s61, s2, 7\n s_lshl_b32 s61, s61, 7\n s_bfe_u32 s54, s2, 0x10002\n s_lshl_b32 s54, s54, 10\n s_add_u32 s61, s61, s54\n s_add_u32 s61, s61, {WS_UFLG}\n v_mov_b32 v12, 0")
        a(probe(15, 12, "s61")); check(a, "pw", 15, 12, "s61", 1)
    stamp(a, 3)
    a("s_branch L_B2")

def conv_head(a, pr=False):
    a(f"""s_and_b32 s52, s2, 7
    s_mul_i32 s52, s52, 20
    s_lshr_b32 s53, s2, 3
    s_and_b32 s61, s2, 7
    s_sub_u32 s53, s53, 12
    s_add_u32 s57, s52, s53
    s_lshl_b32 s58, s57, 2
    s_add_u32 s58, s58, s{SW}
    s_lshl_b32 s59, s58, 12
    s_mul_i32 s60, s{SW}, {C_WAVE}
    s_add_u32 s60, s60, {HALF}
    s_add_u32 s52, s{P_H}, s59
    s_addc_u32 s53, s{P_H+1}, 0
    s_load_dword s66, s[52:53], 0
    s_lshr_b32 s54, s58, 1
    s_lshl_b32 s54, s54, 2
    s_load_dword s67, s[{P_D}:{P_D+1}], s54
    s_lshl_b32 s61, s61, 7
    s_cmp_ge_u32 s57, 80
    s_cselect_b32 s54, 1024, 0
    s_add_u32 s61, s61, s54
    s_add_u32 s61, s61, {WS_UFLG}
    s_lshr_b32 s63, s57, 4
    s_lshl_b32 s63, s63, 10
    s_add_u32 s63, s63, {WS_YFLG}
    v_lshlrev_b32 v2, 4, v1
    v_add_u32 v3, 4, v2
    v_mov_b32 v12, 0""")
    if pr: a(probe(15, 12, "s61"))
    srd(a, SRD0, P_H, 640 * 4096)
    a(f"s_add_u32 m0, s60, 32")
    for i in range(4): a(f"buffer_load_dwordx4 v2, {sq(SRD0)}, s59 offen offset:{1024*i} lds ; tag=H")
    a(f"s_add_u32 m0, s60, {C_HCOPY + 32}")
    for i in range(4): a(f"buffer_load_dwordx4 v3, {sq(SRD0)}, s59 offen offset:{1024*i} lds ; tag=H")

def role_conv(a):
    ACC, A, RAW, B, UL = 16, 48, 80, 128, 224
    conv_head(a, True)
    last_barrier(a, "conv", 9)
    tag(a, 4)
    stamp(a, 4)
    a(f"s_mul_i32 s55, s58, {TP}\n s_add_u32 s65, s55, {WS_UT}\n s_add_u32 s55, s55, {WS_YT}")
    uld = [f"buffer_load_dwordx4 {v4(UL+4*i)}, v2, {sq(SRDWS)}, s65 offen offset:{1024*i} sc1" for i in range(4)]
    fin_strip(a); fin_head(a)
    a(f"""v_and_b32 v8, 15, v1
    v_lshrrev_b32 v9, 4, v1
    v_add_u32 v10, 1, v8
    v_bfe_u32 v11, v10, 1, 1
    v_mul_u32_u24 v11, {C_HCOPY}, v11
    v_lshrrev_b32 v13, 2, v10
    v_lshl_add_u32 v13, v9, 3, v13
    v_lshl_add_u32 v11, v13, 3, v11
    v_add_u32 v4, s60, v11
    v_and_b32 v10, 1, v10
    v_lshlrev_b32 v5, 4, v10
    v_lshlrev_b32 v10, 1, v9
    v_sub_u32 v10, v10, v8
    v_add_u32 v10, 15, v10
    v_lshlrev_b32 v10, 4, v10
    v_add_u32 v6, s60, v10
    v_lshrrev_b32 v10, 1, v1
    v_and_b32 v11, 1, v1
    v_mul_u32_u24 v11, {C_UH}, v11
    v_add_u32 v10, v10, v11
    v_lshlrev_b32 v10, 4, v10
    v_add_u32 v7, s60, v10
    v_mov_b32 v16, 0
    v_mov_b32 v17, 0
    v_mov_b32 v18, 0
    v_mov_b32 v19, 0
    v_and_b32 v10, 1, v9
    v_mul_u32_u24 v10, {C_UH}, v10
    v_add_u32 v10, v10, v8
    v_lshl_add_u32 v20, v10, 4, s60
    v_and_b32 v10, 1, v1
    v_lshlrev_b32 v10, 4, v10
    v_bfe_u32 v11, v1, 1, 1
    v_mul_u32_u24 v11, {C_HCOPY}, v11
    v_add3_u32 v21, v10, v11, s60
    v_lshlrev_b32 v10, 5, v8
    v_lshl_add_u32 v8, v9, 3, v10""")
    a(f"""s_waitcnt lgkmcnt(0)
    s_lshl_b32 s52, s66, 16
    s_lshl_b32 s53, s67, 16
    s_and_b32 s54, s67, 0xffff0000
    s_bitcmp1_b32 s58, 0
    s_cselect_b32 s53, s54, s53
    s_and_b32 s54, s66, 0xffff0000
    v_mov_b32 v10, s52
    v_add_f32 v10, s53, v10
    v_mov_b32 v11, s54
    v_cvt_pk_bf16_f32 v10, v10, v11
    v_mov_b32 v11, s60
    WAITTAG H
    v_cmp_gt_u32 vcc, 1, v15
    s_mov_b32 s62, 0
    s_nop 0
    s_cbranch_vccnz L_CU0
    PUSHSTATE
    {chr(10).join(uld)}
    s_mov_b32 s62, 1
    s_branch L_CU1
    POPSTATE
    L_CU0:
    {probe(15, 12, "s61")}
    L_CU1:
    ds_write_b128 v21, v[16:19]
    ds_write_b32 v11, v10 offset:32
    ds_write_b32 v11, v10 offset:{C_HCOPY+28}
    ds_write_b128 v20, v[16:19] offset:{2*C_HCOPY + 128*16}""")
    def raw_slots(i):
        return [(0, 1, 2), (2, 0, 1), (1, 2, 0), (0, 1, 2)][i]
    def raw_reads(it, N1):
        N0, i = it >> 2, it & 3
        sl = raw_slots(i)
        return [f"ds_read_b64 {v2(RAW + N1*6 + 2*sl[k])}, v4 offset:{(2*N1+N0)*256 + (2*i+k)*8}" for k in range(0 if i == 0 else 1, 3)]
    def aligns(it, N1):
        sl = raw_slots(it & 3)
        d = [RAW + N1 * 6 + 2 * sl[0], RAW + N1 * 6 + 2 * sl[0] + 1, RAW + N1 * 6 + 2 * sl[1], RAW + N1 * 6 + 2 * sl[1] + 1, RAW + N1 * 6 + 2 * sl[2]]
        return [f"v_alignbit_b32 v{A + 4*N1 + k}, v{d[k+1]}, v{d[k]}, v5" for k in range(4)]
    def b_reads(it):
        N0, i = it >> 2, it & 3
        return [f"ds_read_b128 {v4(B + (it&1)*32 + 4*dl)}, v6 offset:{2*C_HCOPY + (14-(2*dl-N0))*128 + (i>>1)*16 + (i&1)*C_UH*16}" for dl in range(8)]
    for N1 in range(8): a.extend(raw_reads(0, N1))
    for N1 in range(8):
        a.extend(aligns(0, N1)); a.extend(raw_reads(1, N1))
    a("s_cmp_eq_u32 s62, 1\n s_cbranch_scc1 L_CU2\n PUSHSTATE")
    check(a, "convu", 15, 12, "s61", 1)
    a.extend(uld)
    a("POPSTATE"); a.label("L_CU2")
    stamp(a, 5)
    if cfg.cgate:
        a(f"s_cmp_ge_u32 s2, 128\n s_cbranch_scc1 L_CG\n PUSHSTATE\n v_mov_b32 v13, {L_BAR}")
        a.label("L_CGW")
        a(f"s_sleep 2\n ds_read_b32 v14, v13\n s_waitcnt lgkmcnt(0)\n v_cmp_gt_u32 vcc, {cfg.cgate}, v14\n s_nop 1\n s_cbranch_vccnz L_CGW\n POPSTATE")
        a.label("L_CG")
    a("s_waitcnt vmcnt(0)")
    for i in range(4): a(f"ds_write_b128 v7, {v4(UL+4*i)} offset:{2*C_HCOPY + 512*i}")
    a.extend(b_reads(0))
    a(f"s_setprio {cfg.vprio}")
    stamp(a, 6)
    queue = []
    for it in range(8):
        if it < 7: queue += b_reads(it + 1)
        if it == cfg.qit:
            a("s_cmp_ge_u32 s56, 10\n s_cbranch_scc1 L_NQ\n PUSHSTATE"); a.extend(fin_qloads()); a("POPSTATE"); a.label("L_NQ")
        for N1 in range(8):
            tg = f"v_alignbit_b32 v{A+4*N1+3},"
            pos = max((k for k, q in enumerate(queue) if q.startswith(tg)), default=-1)
            for q in queue[:pos + 1]: a(q)
            queue = queue[pos + 1:]
            for J in range(N1, 8):
                acc = v4(ACC + 4 * J)
                c = "0" if (it == 0 and N1 == 0) else acc
                a(f"v_mfma_f32_16x16x32_bf16 {acc}, {v4(A+4*N1)}, {v4(B + (it&1)*32 + 4*(J-N1))}, {c}")
                for _ in range(2):
                    if queue: a(queue.pop(0))
            if it < 7: queue += aligns(it + 1, N1)
            if it < 6: queue += raw_reads(it + 2, N1)
        assert not any(q.startswith("ds_read_b128") for q in queue)
    assert not queue
    stamp(a, 7)
    a(f"s_setprio {cfg.eprio}\n v_add_u32 v9, s60, v8\n v_add_u32 v10, s60, v2")
    for J in range(8):
        T = 48 + 2 * J
        a(f"v_cvt_pk_bf16_f32 v{T}, v{ACC+4*J}, v{ACC+4*J+1}\n v_cvt_pk_bf16_f32 v{T+1}, v{ACC+4*J+2}, v{ACC+4*J+3}")
        a(f"ds_write_b64 v9, {v2(T)} offset:{512*J}")
    for i in range(4): a(f"ds_read_b128 {v4(64+4*i)}, v10 offset:{1024*i}")
    for i in range(4): a(f"buffer_store_dwordx4 {v4(64+4*i)}, v2, {sq(SRDWS)}, s55 offen offset:{1024*i} sc1")
    stamp(a, 8)
    signal(a, 63, 4, HALF + L_SIG, 16)

FV = 240
def fin_head(a):
    a(f"""s_and_b32 s52, s2, 7
    s_lshl_b32 s52, s52, 2
    s_add_u32 s52, s52, s{SW}
    s_lshl_b32 s52, s52, 6
    s_lshl_b32 s53, s56, 6
    v_lshrrev_b32 v244, 3, v1
    v_lshl_add_u32 v245, v244, 3, s52
    v_and_b32 v246, 7, v1
    v_lshl_add_u32 v247, v246, 3, s53
    v_mul_u32_u24 v245, 1280, v245
    v_lshl_add_u32 v247, v247, 1, v245
    v_add_u32 v{FV}, v247, v245
    v_add_u32 v245, s53, v244
    v_mul_u32_u24 v245, {TP}, v245
    v_lshl_add_u32 v{FV+1}, v246, 4, v245
    v_mul_u32_u24 v245, 1040, v246
    v_lshl_add_u32 v245, v244, 4, v245
    v_add_u32 v{FV+2}, s60, v245
    s_lshl_b32 s64, s52, 1
    s_add_u32 s64, s64, {WS_YT}
    s_movk_i32 s53, 5120""")
    srd(a, SRD2, P_Q, 2048 * 1280); srd(a, SRD1, P_OUT, 2048 * 2560)
    a("s_cmp_ge_u32 s56, 10\n s_cselect_b32 s70, 0x40000000, 0\n s_add_u32 s71, s70, 5120")
def fin_qloads(): return [f"buffer_load_dwordx4 {v4(192+4*r)}, v247, {sq(SRD2)}, {'s71' if r >= 4 else 's70'} offen offset:{1280*(r%4)}" for r in range(8)]
def fin_strip(a):
    a(f"""s_lshr_b32 s53, s2, 3
    s_lshl_b32 s54, s{SGRP}, 2
    s_add_u32 s56, s53, s54
    s_sub_u32 s56, s56, 12
    s_cmp_lt_u32 s53, 16
    s_cselect_b32 s56, s56, 15
    s_add_u32 s54, s{SGRP}, 8
    s_cmp_eq_u32 s53, 31
    s_cselect_b32 s56, s54, s56""")
def fin_g0(a):
    fin_strip(a)
    a(f"s_mul_i32 s60, s{SW}, 8448\n s_add_u32 s60, s60, 16384\n v_lshl_add_u32 v10, v1, 4, s60")
    fin_head(a)
    a.extend(fin_qloads())
    bar_wait(a)
    a("s_waitcnt vmcnt(0)\n s_branch L_FINR")

def role_fin(a):
    Q, QF, Y, T, L = 192, 48, 112, 144, 16
    a(f"""s_setprio {cfg.fprio}
    s_and_b32 s61, s2, 7
    s_lshl_b32 s61, s61, 7
    s_lshl_b32 s54, s56, 10
    s_add_u32 s61, s61, s54
    s_add_u32 s61, s61, {WS_YFLG}
    s_mov_b32 s62, 0xffff0000
    v_mov_b32 v12, 0""")
    a(probe(15, 12, "s61"))
    for r in range(8):
        for d in range(4):
            a(f"v_lshlrev_b32 v{QF+8*r+2*d}, 16, v{Q+4*r+d}\n v_and_b32 v{QF+8*r+2*d+1}, s62, v{Q+4*r+d}")
    stamp(a, 1)
    check(a, "fin", 15, 12, "s61", 1)
    stamp(a, 2)
    for i in range(8): a(f"s_add_u32 s54, s64, {8*TP*i}\n buffer_load_dwordx4 {v4(L+4*i)}, v{FV+1}, {sq(SRDWS)}, s54 offen sc1")
    for i in range(8): a(f"ds_write_b128 v10, {v4(L+4*i)} offset:{1040*i}")
    for ch in range(8): a(f"ds_read_b128 {v4(Y+4*ch)}, v{FV+2} offset:{128*ch}")
    stamp(a, 3)
    a("s_mov_b32 s54, 0")
    for r in range(8):
        t = T + 8 * (r & 1)
        for ch in range(8):
            src = Y + 4 * ch + r // 2
            a(f"v_and_b32 v{t+ch}, s62, v{src}" if r & 1 else f"v_lshlrev_b32 v{t+ch}, 16, v{src}")
        for ch in range(8): a(f"v_mul_f32 v{t+ch}, v{t+ch}, v{QF+8*r+ch}")
        o = 160 + 4 * r
        for d in range(4): a(f"v_cvt_pk_bf16_f32 v{o+d}, v{t+2*d}, v{t+2*d+1}")
        a(f"buffer_store_dwordx4 {v4(o)}, v{FV}, {sq(SRD1)}, s54 offen{OSC()}")
        if r < 7: a("s_add_u32 s54, s54, 2560")

def b2_tables(hf):
    num = {}
    for t in range(5 * hf, 5 * hf + 5):
        hs = {e // 20 for e in range(16 * t, 16 * t + 16)}
        dts = [dt for dt in range(10) if hs & {d // 20 for d in range(16 * dt, 16 * dt + 16)}]
        ch = {}
        for dt in dts: ch.setdefault(dt // 2, []).append(dt)
        num[t] = sorted(ch.items())
    ch = {}
    for dt in range(5 * hf, 5 * hf + 5): ch.setdefault(dt // 2, []).append(dt)
    return num, sorted(ch.items())

B_KS = 8416
NS = 3
def role_b2(a):
    PQ, KV, RAW = 16, 108, 180
    WA = [76 + 4 * n for n in range(8)]
    WB = [228 + 4 * n for n in range(7)] + [8]
    ACC = 108
    U = [180, 204]
    a(f"""s_mul_i32 s57, s56, 205
    s_lshr_b32 s57, s57, 10
    s_mul_i32 s54, s57, 5
    s_sub_u32 s58, s56, s54""")
    assert all((v * 205) >> 10 == v // 5 for v in range(216))
    srd(a, SRD0, P_WO, 640 * 1280)
    a(f"""s_lshl_b32 s59, s58, 8
    s_mul_i32 s52, s{SW}, {160*1280}
    s_add_u32 s59, s59, s52
    s_lshl_b32 s53, s{SW}, 6
    s_mul_i32 s65, s{SW}, 20480
    s_add_u32 s65, s65, s{SLB}
    v_and_b32 v8, 15, v1
    v_lshrrev_b32 v9, 4, v1
    v_lshlrev_b32 v2, 4, v8
    v_xor_b32 v2, s53, v2
    v_mul_u32_u24 v10, {8*1280}, v9
    v_add3_u32 v2, v2, v10, s59""")
    def dma(kstep, slot):
        return [[f"s_add_u32 m0, s65, {slot*B_KS + i*1056}", f"s_mov_b32 s63, {(32*kstep + i)*1280}",
                 f"buffer_load_dwordx4 v2, {sq(SRD0)}, s63 offen lds ; tag=K{kstep}"] for i in range(8)]
    def wreads(slot, dst):
        return [f"ds_read_b64_tr_b16 {v2(dst[n] + 2*h)}, v0 offset:{slot*B_KS + h*512 + 32*n}" for n in range(8) for h in range(2)]
    bar_wait(a)
    for g in dma(0, 0): a.extend(g)
    last_barrier(a, "b2", 8)
    for g in dma(1, 1): a.extend(g)
    a(f"s_setprio {cfg.cprio}")
    srd(a, SRD1, P_OUT, 2048 * 2560)
    a(f"""v_bfe_u32 v10, v1, 2, 3
    v_mul_u32_u24 v10, 1056, v10
    v_lshrrev_b32 v11, 5, v1
    v_lshl_add_u32 v10, v11, 8, v10
    v_and_b32 v11, 3, v1
    v_lshl_add_u32 v10, v11, 3, v10
    v_add_u32 v0, s65, v10
    s_add_u32 s64, s65, {2*B_KS}
    v_lshlrev_b32 v9, 3, v9
    v_mul_u32_u24 v3, 40, v8
    v_add3_u32 v3, v3, v9, s64
    v_mul_u32_u24 v4, 800, v11
    v_add3_u32 v4, v4, v9, s64
    v_lshlrev_b32 v5, 4, v1
    v_lshlrev_b32 v6, 3, v1
    v_add_u32 v6, s64, v6
    v_add_u32 v7, 4096, v5
    s_mul_i32 s52, s57, 3
    s_lshr_b32 s53, s52, 3
    s_add_u32 s54, s52, 2
    s_min_u32 s54, s54, 127
    s_lshr_b32 s54, s54, 3
    s_sub_u32 s54, s54, s53
    s_lshl_b32 s54, s54, 7
    v_and_b32 v12, 1, v1
    v_lshlrev_b32 v13, 7, v12
    v_mul_u32_u24 v12, s54, v12
    s_mul_i32 s60, s{SW}, 17
    s_add_u32 s60, s60, s53
    s_lshl_b32 s60, s60, 7
    s_add_u32 s60, s60, {WS_QFLAG}
    s_and_b32 s61, s2, 7
    s_lshl_b32 s61, s61, 10
    s_lshl_b32 s53, s{SW}, 8
    s_add_u32 s61, s61, s53
    s_mul_i32 s52, s52, 20480
    s_mul_i32 s53, s{SW}, 5120
    s_add_u32 s52, s52, s53
    s_add_u32 s52, s52, {WS_PQ}
    s_mul_i32 s62, s{SW}, {8*1680}
    s_add_u32 s62, s62, {WS_KV}
    s_mov_b32 s73, {EPS}
    s_mov_b32 s66, 0xffff0000
    s_mov_b32 s67, -1
    s_mov_b32 s68, 0
    s_mov_b32 s69, -1
    s_mov_b32 s70, 0
    s_mov_b32 s71, 0xffff0000""")
    for r in range(KV, KV + 72): a(f"v_mov_b32 v{r}, 0")
    a("WAITTAG K0")
    a.extend(wreads(0, WA))
    a("WAITTAG K1")
    a.extend(wreads(1, WB))
    a("s_waitcnt lgkmcnt(0)")
    if cfg.gate:
        a(f"s_cmp_eq_u32 s{SLD}, 0\n s_cbranch_scc1 L_GT\n v_mov_b32 v15, {L_BAR}")
        a.label("L_GTW")
        a("s_sleep 4\n ds_read_b32 v14, v15\n s_waitcnt lgkmcnt(0)\n v_cmp_gt_u32 vcc, 8, v14\n s_nop 1\n s_cbranch_vccnz L_GTW")
        a.label("L_GT")
    for g in dma(2, 0) + dma(3, 1): a.extend(g)
    a(probe(14, 12, "s60"))
    stamp(a, 5)
    check(a, "b2q", 14, 12, "s60", 1)
    for sub in range(NS):
        for c in range(5):
            a(f"buffer_load_dwordx4 {v4(PQ + (sub*5+c)*4)}, v{5 if c < 4 else 7}, {sq(SRDWS)}, s52 offen offset:{1024*(c%4)} sc1")
        if sub < NS - 1: a("s_add_u32 s52, s52, 20480")
    a(probe(14, 13, "s61"))
    check(a, "b2kv", 14, 13, "s61", 1)
    stamp(a, 6)
    raw = [RAW + 4 * i for i in range(12)] + [KV + 64, KV + 68]
    for hf in range(2):
        for i in range(7):
            a(f"buffer_load_dwordx4 {v4(raw[hf*7+i])}, v{5 if i < 4 else 7}, {sq(SRDWS)}, s62 offen offset:{1024*(i%4)} sc1")
        if hf == 0: a("s_add_u32 s62, s62, 6720")
    for r in range(4): a(f"v_mov_b32 v{12+r}, s73")
    qi = {}
    tabs = [b2_tables(0), b2_tables(1)]
    def build_half(hf):
        o = []
        for i in range(7):
            r = raw[hf * 7 + i]
            o += [f"v_cvt_pk_bf16_f32 v{r}, v{r}, v{r+1}", f"v_cvt_pk_bf16_f32 v{r+1}, v{r+2}, v{r+3}", f"ds_write_b64 v6, {v2(r)} offset:{512*i}"]
        if hf == 1: o += [f"v_mov_b32 v{KV+64+k}, 0" for k in range(8)]
        num, den = tabs[hf]
        quads = [("z", hf, dt) for c, dts in den for dt in dts] + [("n", t, dt) for t in num for c, dts in num[t] for dt in dts]
        assert len(quads) == 18
        rd = []
        for (kind, t, dt) in quads:
            q = len(qi); qi[(kind, t, dt)] = q
            mask = 0
            for l in range(64):
                i, g = l & 15, l >> 4
                hd = (16 * dt + 4 * g) // 20
                he = (16 * t + i) // 20 if kind == "n" else (i & 3) + 4 * t
                if hd == he: mask |= 1 << l
            off = 640 * (t - 5 * hf) + 32 * (dt - 5 * hf) if kind == "n" else 800 + 32 * (dt - 5 * hf)
            rd.append([f"s_mov_b32 exec_lo, {mask & 0xffffffff:#x}", f"s_mov_b32 exec_hi, {mask >> 32:#x}", f"ds_read_b64 {v2(KV + 2*q)}, v{3 if kind == 'n' else 4} offset:{off}"])
        return o, rd
    def omf(sub, hf, T):
        o = []
        num, den = tabs[hf]
        def one(kind, t, lst, acc):
            lst = sorted(lst, key=lambda x: len(x[1]))
            for k, (c, dts) in enumerate(lst):
                src = v4(acc) if k else ("v[12:15]" if kind == "z" else "0")
                kv = KV + 2 * qi[(kind, t, dts[0])]
                pq = PQ + (sub * 5 + c) * 4
                key = (min(k, 1), 0 if kind == "z" else 1, t, k)
                if len(dts) == 2: o.append((key, f"v_mfma_f32_16x16x32_bf16 {v4(acc)}, {v4(kv)}, {v4(pq)}, {src}"))
                else: o.append((key, f"v_mfma_f32_16x16x16_bf16 {v4(acc)}, {v2(kv)}, {v2(pq + 2*(dts[0]&1))}, {src}"))
        one("z", hf, den, T)
        for t in num: one("n", t, num[t], T + 4 + 4 * (t - 5 * hf))
        return [x for _, x in sorted(o)]
    def ovalu(sub, hf, T):
        o = []
        for r in range(4): o.append(f"v_rcp_f32 v{T+r}, v{T+r}")
        for tl in range(5):
            t = tl + 5 * hf
            h0 = (16 * tl) // 20; h1 = (16 * tl + 12) // 20
            rc = T + h0; n = T + 4 + 4 * tl
            if h0 != h1:
                g0 = min(g for g in range(4) if (16 * tl + 4 * g) // 20 == h1)
                o.append(f"v_cndmask_b32 v{rc}, v{T+h0}, v{T+h1}, s[{64+2*g0}:{65+2*g0}]")
            for r in range(4): o.append(f"v_mul_f32 v{n+r}, v{n+r}, v{rc}")
            d = PQ + (sub * 5 + t // 2) * 4 + 2 * (t & 1)
            o.append(f"v_cvt_pk_bf16_f32 v{d}, v{n}, v{n+1}")
            o.append(f"v_cvt_pk_bf16_f32 v{d+1}, v{n+2}, v{n+3}")
        return o
    def acc(sub, n): return ACC + (n * NS + sub) * 4
    def g2(k, W, ns=range(8)):
        return [f"v_mfma_f32_16x16x32_bf16 {v4(acc(sub, n))}, {v4(W[n])}, {v4(PQ + (sub*5+k)*4)}, {'0' if k == 0 else v4(acc(sub, n))}" for n in ns for sub in range(NS)]
    units = [(s_, h) for h in range(2) for s_ in range(NS)]
    nu = len(units)
    w0, r0 = build_half(0)
    a.extend(w0)
    for g in r0: a.extend(g)
    a("s_mov_b64 exec, -1")
    w1, r1 = build_half(1)
    a.extend(w1)
    r1g = [r1[k] + r1[k + 1] + ["s_mov_b64 exec, -1"] for k in range(0, 18, 2)]
    a.extend(interleave(omf(*units[0], U[0]), r1g, 1, 11))
    stamp(a, 7)
    for u in range(1, nu):
        a.extend(interleave(omf(*units[u], U[u & 1]), ovalu(*units[u - 1], U[(u - 1) & 1]), 2))
    a.extend(interleave(g2(0, WA), ovalu(*units[nu - 1], U[(nu - 1) & 1]), 2))
    k1 = g2(1, WB)
    a.extend(interleave(k1[:10], wreads(0, WA), 0, 8))
    a("s_waitcnt lgkmcnt(0)")
    a.extend(interleave(k1[10:], dma(4, 0), 0, 10))
    ad = []
    for gam in range(1, 4):
        ad += [f"s_xor_b32 s52, s{SW}, {gam}", "s_mul_i32 s52, s52, 20480", f"s_add_u32 s52, s52, {(gam-1)*6144}", f"s_add_u32 s52, s52, s{SLB}", f"v_add_u32 v{203+gam}, s52, v5"]
    ad += f"""v_add_u32 v207, s65, v5
    s_add_u32 s53, s65, 18432
    v_and_b32 v12, 15, v1
    v_mul_u32_u24 v12, 80, v12
    v_lshrrev_b32 v3, 4, v1
    v_lshl_add_u32 v12, v3, 3, v12
    v_add_u32 v12, s53, v12
    v_lshrrev_b32 v3, 2, v1
    v_and_b32 v4, 3, v1
    v_lshlrev_b32 v4, 4, v4
    v_mul_u32_u24 v15, 80, v3
    v_add3_u32 v15, v15, v4, s53
    s_mul_i32 s52, s57, 48
    v_add_u32 v3, s52, v3
    v_mul_u32_u24 v3, 2560, v3
    v_add_u32 v3, v3, v4
    s_lshl_b32 s52, s58, 8
    s_lshl_b32 s54, s{SW}, 6
    s_add_u32 s52, s52, s54
    s_add_u32 s52, s52, 1280""".split("\n")
    a.extend(interleave(interleave(g2(2, WA), wreads(1, WB), 0, 16), ad))
    pre = g2(3, WB, [0, 1, 2, 3])
    a.extend(pre[:4]); a("WAITTAG K4")
    rd4 = wreads(0, WA); rd4 = rd4[4:] + rd4[:4]
    a.extend(interleave(pre[4:], rd4))
    def wr(gam): return [f"ds_write_b128 v207, {v4(ACC + (gam*6+k)*4)} offset:{(gam-1)*6144 + 1024*k}" for k in range(6)]
    a.extend(g2(4, WA, [2, 3]))
    a.extend(interleave(g2(3, WB, [4, 5]) + g2(4, WA, [4, 5]), wr(1), 2))
    a.extend(interleave(g2(3, WB, [6, 7]) + g2(4, WA, [6, 7]), wr(2), 2))
    a.extend(interleave(g2(4, WA, [0, 1]), wr(3), 2))
    stamp(a, 8)
    bar_arrive(a); bar_wait(a, True)
    R = 16
    order = [n * NS + sub for sub in range(NS) for n in range(2)]
    for k in order:
        for gam in range(3): a(f"ds_read_b128 {v4(R + (k*3+gam)*4)}, v{204+gam} offset:{1024*k}")
    for k in order:
        n, sub = k // NS, k % NS
        for r in range(4): a(f"v_add_f32 v{ACC+4*k+r}, v{ACC+4*k+r}, v{R+(k*3)*4+r}")
        for r in range(4): a(f"v_add_f32 v{R+(k*3+1)*4+r}, v{R+(k*3+1)*4+r}, v{R+(k*3+2)*4+r}")
        for r in range(4): a(f"v_add_f32 v{ACC+4*k+r}, v{ACC+4*k+r}, v{R+(k*3+1)*4+r}")
        a(f"v_cvt_pk_bf16_f32 v{140+2*k}, v{ACC+4*k}, v{ACC+4*k+1}\n v_cvt_pk_bf16_f32 v{141+2*k}, v{ACC+4*k+2}, v{ACC+4*k+3}")
        a(f"ds_write_b64 v12, {v2(140+2*k)} offset:{32*n}")
        if n == 1:
            a(f"ds_read_b128 {v4(160+4*sub)}, v15")
            if sub > 0:
                a(f"buffer_store_dwordx4 {v4(160+4*(sub-1))}, v3, {sq(SRD1)}, s52 offen{OSC()}\n s_add_u32 s52, s52, {16*2560}")
    a(f"buffer_store_dwordx4 {v4(160+4*(NS-1))}, v3, {sq(SRD1)}, s52 offen{OSC()}")

def OSC(): return ["", " sc1", " nt", " sc0 sc1"][cfg.osc]

def kd(name):
    return f""".p2align 6
.amdhsa_kernel {name}
  .amdhsa_next_free_vgpr 256
  .amdhsa_next_free_sgpr 102
  .amdhsa_accum_offset 256
  .amdhsa_group_segment_fixed_size 0
  .amdhsa_kernarg_size 96
  .amdhsa_user_sgpr_count 2
  .amdhsa_user_sgpr_kernarg_segment_ptr 1
  .amdhsa_system_sgpr_workgroup_id_x 1
  .amdhsa_float_denorm_mode_32 3
.end_amdhsa_kernel"""

def head(name): return f".globl {name}\n.p2align 8\n.type {name},@function"

def build():
    k = KN + "_kernel"
    a = Asm()
    a(head(k)); prologue(a, k, 256)
    a("s_cmp_ge_u32 s2, 192\n s_cbranch_scc1 L_P")
    g_ids(a)
    a(f"s_cmp_eq_u32 s{SGRP}, 0\n s_cbranch_scc1 L_CONS")
    tag(a, 7)
    role_loader(a)
    a("s_cmp_ge_u32 s2, 96\n s_cbranch_scc1 L_CONV\n s_branch L_B2")
    a.label("L_CONS")
    a(f"s_cmp_lg_u32 s{SW}, 0\n s_cbranch_scc1 L_ZW\n s_cmp_ge_u32 s2, {NZERO}\n s_cbranch_scc1 L_ZW")
    zero_wave(a)
    a(f"s_cmp_lg_u32 s{SW}, 3\n s_cbranch_scc1 L_CONS1")
    init_wave(a, "g")
    a.label("L_CONS1")
    a(f"s_setprio {cfg.cprio}")
    args_ready(a)
    g_setup2(a)
    a("s_cmp_ge_u32 s58, 8\n s_cbranch_scc1 L_Q")
    tag(a, 1); role_kv(a)
    a("s_cmp_lt_u32 s2, 96\n s_cbranch_scc1 L_FIN")
    a.label("L_FG0")
    fin_g0(a)
    a.label("L_Q"); tag(a, 2); role_q(a); a("s_branch L_B2")
    a.label("L_P"); role_prep(a)
    a.label("L_CONV"); role_conv(a)
    a("s_cmp_ge_u32 s56, 10\n s_cbranch_scc1 L_FIN")
    a.label("L_FINR")
    tag(a, 8); role_fin(a)
    if cfg.enc == 89: a("s_waitcnt vmcnt(0)"); stamp(a, 9)
    a("s_branch L_FIN")
    a.label("L_B2")
    a("""s_lshr_b32 s53, s2, 3
    s_sub_u32 s54, s53, 4
    s_cmp_lt_u32 s53, 12
    s_cselect_b32 s53, s53, s54
    s_cmp_ge_u32 s53, 27
    s_cbranch_scc1 L_FG0
    s_and_b32 s56, s2, 7
    s_mul_i32 s56, s56, 27
    s_add_u32 s56, s56, s53
    s_cmp_ge_u32 s56, 215
    s_cbranch_scc1 L_FIN""")
    tag(a, 5); role_b2(a)
    if cfg.enc == 59: a("s_waitcnt vmcnt(0)"); stamp(a, 9)
    a.label("L_FIN"); stamps_out(a)
    if cfg.enc:
        a("s_waitcnt vmcnt(0) lgkmcnt(0)")
        a.label("L_SPIN")
        a("s_sleep 1\n s_memrealtime s[94:95]\n s_waitcnt lgkmcnt(0)\n s_sub_u32 s94, s94, s96\n s_cmp_lt_u32 s94, 2500\n s_cbranch_scc1 L_SPIN")
    a.label("L_END"); a("s_endpgm")
    launch = [f"; @launch grid=(256,1,1) block=(512,1,1) lds={LDS_BYTES}"]
    return launch, a, [k]

def emit(path, launch, a, kernels, verbose=False):
    body = fix_hazards(insert_waits(a.lines), verbose)
    out = list(launch) + ['.amdgcn_target "amdgcn-amd-amdhsa--gfx950"', ".text", ".p2align 8", "L_CODE_BEGIN:"]
    out += [(l if l.endswith(":") or l.startswith(".") else "    " + l) for l in body]
    out += ["L_CODE_END:", "    s_endpgm", '.section .rodata,"a"'] + [kd(k) for k in kernels]
    open(path, "w").write("\n".join(out) + "\n")

if __name__ == "__main__":
    cfg.stamps = "stamps" in sys.argv[2:]
    cfg.rot = "norot" not in sys.argv[2:]
    for x in sys.argv[2:]:
        if "=" in x: setattr(cfg, x.split("=")[0], int(x.split("=")[1]))
    emit(sys.argv[1], *build(), verbose="-v" in sys.argv)
```

```python
import sys
sys.path.insert(0, "dev")
from asmlib import *

KN = "concat_heads__ssm_conv_h3__linear_attn_block__prompt"
WS_KVFLG = 0x0000
WS_YFLG  = 0x2000
WS_UFLG  = 0x4800
WS_QFLAG = 0x5000
WS_CNT   = 0x8000
WS_KV    = 0xD000
NZERO    = 56
TP = 4224
WS_UT    = 0x100000
WS_YT    = 0x400000
WS_PQ    = 0x700000
WS_STAMP = 0xA00000
WS_SIZE  = 0xB00000
LDS_BYTES = 163840
HALF = 81920
L_BAR = HALF - 64
L_SIG = HALF - 60
SGRP, SLB, SBT, SW8, SLD = 74, 75, 76, 77, 72
LOG2E = 0x3FB8AA3B
EPS = 0x358637BD

P_Q, P_K, P_V, P_SH, P_H, P_D, P_X, P_W, P_WO, P_OUT, P_DBG, P_WS = [4 + 2 * i for i in range(12)]
SRD0, SRD1, SRD2, SRD3, SRD4, SRDWS = 28, 32, 36, 40, 44, 48
SW = 3

def srd(a, d, p, nbytes):
    a(f"s_mov_b32 s{d}, s{p}\n s_and_b32 s{d+1}, s{p+1}, 0xffff\n s_mov_b32 s{d+2}, {nbytes}\n s_mov_b32 s{d+3}, 0x20000")
def sq(d): return f"s[{d}:{d+3}]"
def v4(r): return f"v[{r}:{r+3}]"
def v2(r): return f"v[{r}:{r+1}]"

class Cfg:
    stamps = False
    rot = False
    gonly = 0
    ahead0 = 4
    ahead = 4
    bpos = 3
    lprio = 3
    cprio = 2
    psleep = 4
    qlate = 3
    pprio = 0
    qit = 4
    cgate = 8
    nrep = 1
    kvall = 1
    yall = 1
    uall = 1
    vprio = 0
    fbase = 22
    tail2 = 1
    tlb = 0
    pwait = 1
    eprio = 3
    fprio = 3
    qrel = 8
    qst = 1
    osc = 1
    gate = 1
    usig = 4
    qbar = 1
    spf = 0
    slab = 0
    enc = 0
    role = 0
    pmode = 0
    x_noq = 0
    x_plain = 0
    x_pend = 0
    x_nost = 0
cfg = Cfg()

NSTAMP = 10
def stamp(a, i, force=False):
    if cfg.slab and not force and i != NSTAMP - 1 and cfg.role in (7, 4, 5): return
    if cfg.enc and cfg.enc == cfg.role * 10 + i:
        a("s_memrealtime s[96:97]\n s_waitcnt lgkmcnt(0)")
    if cfg.stamps:
        a(f"s_memrealtime s[{80+2*i}:{81+2*i}]\n s_waitcnt lgkmcnt(0)")
def stamps_out(a):
    if not cfg.stamps: return
    a("s_waitcnt vmcnt(0) lgkmcnt(0)")
    stamp(a, NSTAMP - 1)
    a("s_memtime s[70:71]\n s_waitcnt lgkmcnt(0)\n s_sub_u32 s101, s70, s101")
    a(f"s_getreg_b32 s52, hwreg(HW_REG_HW_ID)\n s_getreg_b32 s53, hwreg(HW_REG_XCC_ID)")
    for i in range(NSTAMP): a(f"v_mov_b32 v{16+i}, s{80+2*i}")
    a(f"v_mov_b32 v26, s52\n v_mov_b32 v27, s53\n v_mov_b32 v28, s100\n v_mov_b32 v29, s2\n v_mov_b32 v30, s101\n v_mov_b32 v31, 0")
    a(f"s_lshl_b32 s54, s2, 9\n s_lshl_b32 s55, s{SW8}, 6\n s_add_u32 s54, s54, s55\n s_add_u32 s54, s54, {WS_STAMP}")
    a(f"v_mov_b32 v32, 0\n s_mov_b64 exec, 1")
    for i in range(4): a(f"buffer_store_dwordx4 {v4(16+4*i)}, v32, {sq(SRDWS)}, s54 offen offset:{16*i}")
    a("s_mov_b64 exec, -1")
def tag(a, t):
    cfg.role = t
    if cfg.stamps: a(f"s_lshl_b32 s100, s100, 4\n s_add_u32 s100, s100, {t}")

def prologue(a, name, nwg):
    a.label(name)
    if cfg.enc: a("s_memrealtime s[98:99]\n s_memrealtime s[96:97]")
    a(f"""s_load_dwordx16 s[4:19], s[0:1], 0
    s_load_dwordx8 s[20:27], s[0:1], 64
    s_cmp_ge_u32 s2, {nwg}
    s_cbranch_scc1 L_END
    v_and_b32 v1, 63, v0
    v_lshrrev_b32 v2, 6, v0
    s_mov_b32 s{SBT}, 0
    v_readfirstlane_b32 s{SW8}, v2
    v_mov_b32 v12, 0
    s_mov_b32 s{SLD}, 0""")
    if cfg.stamps:
        for i in range(NSTAMP): a(f"s_mov_b32 s{80+2*i}, 0")
        a("s_mov_b32 s100, 0\n s_memrealtime s[80:81]\n s_memtime s[98:99]")
    a(f"""s_and_b32 s{SW}, s{SW8}, 3
    s_lshr_b32 s{SGRP}, s{SW8}, 2
    s_mul_i32 s{SLB}, s{SGRP}, {HALF}""")

def init_wave(a, name):
    a("s_getpc_b64 s[52:53]")
    a.label(f"L_PC{name}")
    a(f"""s_lshr_b32 s54, s2, 3
    s_and_b32 s54, s54, 7
    s_lshl_b32 s54, s54, 13
    v_lshlrev_b32 v3, 7, v1
    v_add_u32 v3, s54, v3
    s_sub_u32 s52, s52, L_PC{name}-L_CODE_BEGIN
    s_subb_u32 s53, s53, 0
    v_min_u32 v3, L_CODE_END-L_CODE_BEGIN-4, v3
    global_load_dword v15, v3, s[52:53]""")
    lds_init(a)
    if cfg.tlb:
        n = cfg.tlb
        a(f"s_waitcnt lgkmcnt(0)\n s_mov_b64 exec, {(1 << n) - 1}")
        for k, (p, size) in enumerate(((P_WS, WS_STAMP), (P_OUT, 2048 * 2560), (P_Q, 2048 * 1280), (P_H, 640 * 4096), (P_WO, 640 * 1280))):
            st = (size - 128) // (n - 1) // 128 * 128
            a(f"s_mov_b32 s54, {st}\n v_mul_lo_u32 v3, v1, s54\n global_load_dword v{250+k}, v3, s[{p}:{p+1}]")
        a("s_mov_b64 exec, -1")

def lds_init(a):
    a(f"""v_and_b32 v4, 15, v1
    v_lshlrev_b32 v4, 2, v4
    v_bfe_u32 v5, v1, 4, 1
    v_mul_u32_u24 v5, {HALF}, v5
    v_add_u32 v4, v4, v5
    v_add_u32 v4, {L_BAR}, v4
    v_mov_b32 v5, 0
    ds_write_b32 v4, v5""")

def args_ready(a):
    a("s_waitcnt lgkmcnt(0)")
    if cfg.stamps: a("s_mov_b32 s101, s98")
    srd(a, SRDWS, P_WS, WS_SIZE if cfg.stamps else WS_STAMP)
    srd(a, SRD4, P_DBG, 256)

def bar_arrive(a):
    a(f"""v_mov_b32 v13, s{SLB}
    v_mov_b32 v14, 1
    v_add_u32 v13, {L_BAR}, v13
    s_add_u32 s{SBT}, s{SBT}, 4
    s_mov_b64 exec, 1
    ds_add_u32 v13, v14
    s_mov_b64 exec, -1""")
def bar_wait(a, addr_ok=False):
    n = bar_wait.n; bar_wait.n += 1
    if not addr_ok: a(f"v_mov_b32 v13, s{SLB}\n v_add_u32 v13, {L_BAR}, v13")
    a.label(f"L_BW_{n}")
    a(f"""ds_read_b32 v14, v13
    s_waitcnt lgkmcnt(0)
    v_cmp_gt_u32 vcc, s{SBT}, v14
    s_nop 1
    s_cbranch_vccnz L_BW_{n}""")
bar_wait.n = 0

def phi_block(regs_, temps):
    out = []
    n = len(temps)
    for g in range(0, len(regs_), n):
        grp = regs_[g:g + n]
        for r, t in zip(grp, temps): out.append(f"v_mul_f32 v{t}, s70, v{r}")
        for r, t in zip(grp, temps): out.append(f"v_exp_f32 v{t}, v{t} clamp"); out.append(f"v_max_f32 v{r}, s71, v{r}")
        for r, t in zip(grp, temps): out.append(f"v_add_f32 v{r}, v{r}, v{t}")
    return out

def probe(vdst, voff, s_off, srdq=SRDWS):
    if cfg.pmode == 3:
        return f"v_mov_b32 v{vdst}, -1\n s_mov_b64 exec, 3\n v_mov_b32 v{vdst}, 0\n buffer_atomic_add v{vdst}, v{voff}, {sq(srdq)}, {s_off} offen sc0 sc1\n s_mov_b64 exec, -1"
    return f"buffer_load_dword v{vdst}, v{voff}, {sq(srdq)}, {s_off} offen " + ["sc1", "sc0 sc1", "sc0 sc1 nt"][cfg.pmode]
def check(a, name, vdst, voff, s_off, target, srdq=SRDWS):
    a(f"v_cmp_gt_u32 vcc, {target}, v{vdst}\n s_mov_b32 s78, 0\n s_nop 0\n s_cbranch_vccz L_OK_{name}")
    a("PUSHSTATE")
    a.label(f"L_POLL_{name}")
    a(f"""s_sleep {cfg.psleep}
    {probe(vdst, voff, s_off, srdq)}
    s_add_u32 s78, s78, 1
    s_waitcnt vmcnt(0)
    v_cmp_gt_u32 vcc, {target}, v{vdst}
    s_cmp_ge_u32 s78, 0x20000
    s_cbranch_scc1 L_OK_{name}
    s_cbranch_vccnz L_POLL_{name}""")
    a("POPSTATE")
    a.label(f"L_OK_{name}")
def zero_probe(a, vd, vz): a(f"v_mov_b32 v{vz}, 128\n" + probe(vd, vz, "0", SRD4))
def zero_check(a, name, vd, vz): check(a, "z" + name, vd, vz, "0", 1, SRD4)
def zero_wave(a):
    a(f"""v_lshlrev_b32 v8, 4, v1
    v_mov_b32 v16, 0
    v_mov_b32 v17, 0
    v_mov_b32 v18, 0
    v_mov_b32 v19, 0
    s_lshl_b32 s54, s2, 11
    s_mov_b32 s79, 1
    s_mov_b32 s78, 1""")
    args_ready(a)
    a(f"""buffer_store_dwordx4 v[16:19], v8, {sq(SRDWS)}, s54 offen sc1
    buffer_store_dwordx4 v[16:19], v8, {sq(SRDWS)}, s54 offen offset:1024 sc1
    s_waitcnt vmcnt(0)
    s_atomic_add s79, s[{P_DBG}:{P_DBG+1}], 0 glc
    s_waitcnt lgkmcnt(0)
    s_cmp_lg_u32 s79, {NZERO-1}
    s_cbranch_scc1 L_ZW
    s_atomic_add s78, s[{P_DBG}:{P_DBG+1}], 128
    s_waitcnt lgkmcnt(0)""")
    a.label("L_ZW")

def signal(a, s_off, nwaves, ldsaddr, narr=1, rstride=128):
    n = signal.n; signal.n += 1
    a(f"""v_mov_b32 v13, {ldsaddr}
    v_mov_b32 v14, 1
    s_add_u32 s68, s{P_WS}, s{s_off}
    s_addc_u32 s69, s{P_WS+1}, 0
    s_mov_b32 s78, 1
    s_waitcnt vmcnt(0)
    s_mov_b64 exec, 1
    ds_add_rtn_u32 v12, v13, v14
    s_mov_b64 exec, -1
    s_waitcnt lgkmcnt(0)
    v_readfirstlane_b32 s79, v12
    s_cmp_lg_u32 s79, {nwaves-1}
    s_cbranch_scc1 L_SIG_{n}""")
    if narr > 1:
        a(f"""s_mov_b32 s79, 1
        s_atomic_add s79, s[68:69], {WS_CNT} glc
        s_waitcnt lgkmcnt(0)
        s_cmp_lg_u32 s79, {narr-1}
        s_cbranch_scc1 L_SIG_{n}""")
    for r in range(cfg.nrep if narr > 1 else 1): a(f"s_atomic_add s78, s[68:69], {r*rstride}")
    a("s_waitcnt lgkmcnt(0)")
    a.label(f"L_SIG_{n}")
signal.n = 0

def conv_ids(a):
    a("""s_and_b32 s52, s2, 7
    s_mul_i32 s52, s52, 20
    s_lshr_b32 s53, s2, 3
    s_sub_u32 s53, s53, 12
    s_add_u32 s52, s52, s53""")
def sprefetch(a, p, s_off, n):
    a(f"s_add_u32 s68, s{p}, s{s_off}\n s_addc_u32 s69, s{p+1}, 0")
    for i in range(n): a(f"s_load_dword s79, s[68:69], {128*i}")
    a("s_waitcnt lgkmcnt(0)")

def last_barrier(a, name, n_younger):
    a(f"s_cmp_eq_u32 s{SLD}, 0\n s_cbranch_scc1 L_LB_{name}\n PUSHSTATE\n s_waitcnt vmcnt({n_younger})\n s_barrier\n s_setprio 0\n POPSTATE")
    a.label(f"L_LB_{name}")

G_ACC, G_B, G_X = 16, 96, 176
G_SLOT = 36864
def slot_off(j): return ((j & 1) ^ 1) * G_SLOT
def slot_half(j): return (j % 4) >> 1
def g_ids(a):
    a(f"""s_and_b32 s52, s2, 7
    s_lshr_b32 s53, s2, 3
    s_and_b32 s57, s52, 3
    s_lshl_b32 s57, s57, 2
    s_and_b32 s54, s53, 3
    s_add_u32 s57, s57, s54
    s_lshr_b32 s52, s52, 2
    s_lshr_b32 s54, s53, 2
    s_lshl_b32 s58, s52, 2
    s_add_u32 s58, s58, s54
    s_lshl_b32 s52, s52, 1
    s_add_u32 s52, s52, s54
    s_add_u32 s52, s52, 4
    s_cmp_ge_u32 s54, 4
    s_cselect_b32 s58, s52, s58
    s_lshl_b32 s66, s{SW}, 12
    s_add_u32 s66, s66, 20480""")

def g_setup_x(a):
    if cfg.rot:
        a(f"""s_mul_i32 s62, s57, 3
        s_lshl_b32 s59, s58, 1
        s_add_u32 s62, s62, s59
        s_mul_i32 s59, s62, 205
        s_lshr_b32 s59, s59, 11
        s_mul_i32 s59, s59, 10
        s_sub_u32 s62, s62, s59
        s_lshl_b32 s64, s62, 7
        s_mul_i32 s63, s62, {64*3840}""")
    else:
        a("s_mov_b32 s64, 0\n s_mov_b32 s63, 0")
    a(f"""v_lshrrev_b32 v240, 3, v1
    s_lshl_b32 s59, s57, 7
    s_lshl_b32 s54, s{SW}, 5
    s_add_u32 s59, s59, s54
    v_add_u32 v240, s59, v240
    v_mul_u32_u24 v240, 1280, v240
    v_lshrrev_b32 v241, 4, v1
    v_and_b32 v242, 7, v1
    v_xor_b32 v242, v242, v241
    v_lshl_add_u32 v7, v242, 4, v240
    v_xor_b32 v242, 4, v242
    v_lshl_add_u32 v8, v242, 4, v240
    v_add_u32 v8, {10240-1024}, v8
    v_add_u32 v9, {20480-2048}, v7
    v_add_u32 v10, {20480-2048}, v8""")

def g_setup_w(a):
    a(f"""s_mul_i32 s59, s58, 160
    s_add_u32 s60, s59, 1280
    s_add_u32 s61, s59, {2560-160}
    s_sub_u32 s59, s58, 8
    s_mul_i32 s59, s59, 320
    s_cmp_ge_u32 s58, 8
    s_cselect_b32 s60, s59, s60
    s_cselect_b32 s61, s59, s61
    s_mul_i32 s59, s{SW}, {16*3840}
    s_add_u32 s60, s60, s59
    s_add_u32 s61, s61, s59
    s_mul_i32 s65, s{SW}, 5120""")
    a(f"v_mov_b32 v244, s60\n v_mov_b32 v245, s61")
    for i in range(5):
        assert all(((64 * i + l) * 3277) >> 16 == (64 * i + l) // 20 for l in range(64))
        a(f"""v_add_u32 v240, {64*i}, v1
        v_mul_u32_u24 v241, 3277, v240
        v_lshrrev_b32 v241, 16, v241
        v_mul_u32_u24 v242, 20, v241
        v_sub_u32 v240, v240, v242""")
        if i == 2: a("v_lshrrev_b32 v242, 4, v1\n v_and_b32 v242, 2, v242\n v_xor_b32 v240, v240, v242")
        if i > 2: a("v_xor_b32 v240, 2, v240")
        a(f"""v_cmp_gt_u32 vcc, 10, v240
        v_mul_u32_u24 v241, 3840, v241
        v_lshl_add_u32 v240, v240, 4, v241
        v_cndmask_b32 v242, v245, v244, vcc""")
        if i in (0, 4): a(f"v_add_u32 v{2+i}, v240, v242")
        else: a(f"v_add_u32 v240, v240, v242\n v_subrev_u32 v{2+i}, {1024*i}, v240")

def g_setup2(a):
    a(f"""v_lshrrev_b32 v241, 4, v1
    v_bfe_u32 v242, v1, 2, 2
    v_lshl_add_u32 v242, v241, 3, v242
    v_mul_u32_u24 v242, 320, v242
    v_and_b32 v243, 3, v1
    v_lshl_add_u32 v242, v243, 3, v242
    v_and_b32 v243, 1, v241
    v_lshlrev_b32 v243, 5, v243
    v_add_u32 v9, v242, v243
    v_sub_u32 v10, v242, v243
    v_and_b32 v240, 15, v1
    v_lshrrev_b32 v242, 1, v240
    v_xor_b32 v242, v242, v241
    v_lshlrev_b32 v240, 7, v240
    v_add_u32 v240, s66, v240
    v_lshl_add_u32 v11, v242, 4, v240
    v_xor_b32 v242, 4, v242
    v_lshl_add_u32 v12, v242, 4, v240
    s_mov_b32 s70, {LOG2E}
    s_mov_b32 s71, {EPS}""")
    for k in range(4): a(f"v_add_u32 v{2+k}, {HALF}, v{9+k}")

def g_loadx(j):
    o = [f"s_add_u32 m0, s66, {slot_half(j) * HALF + slot_off(j)}", "s_nop 0"]
    for i in range(4): o.append(f"buffer_load_dwordx4 v{7+i}, {sq(SRD0)}, s64 offen offset:{1024*i} lds ; tag=S{j}")
    o += ["s_add_u32 s64, s64, 128"]
    if cfg.rot: o += ["s_cmp_eq_u32 s64, 1280", "s_cselect_b32 s64, 0, s64"]
    return o
def g_loadw(j):
    base = slot_half(j) * HALF + slot_off(j)
    o = [f"s_add_u32 m0, s65, {base}", "s_nop 0"]
    for i in range(4): o.append(f"buffer_load_dwordx4 v{2+i}, {sq(SRD1)}, s63 offen offset:{1024*i} lds ; tag=S{j}")
    o += [f"s_add_u32 m0, s65, {base + 4096}", "s_nop 0", f"buffer_load_dwordx4 v6, {sq(SRD1)}, s63 offen lds ; tag=S{j}"]
    o += [f"s_add_u32 s63, s63, {64*3840}"]
    if cfg.rot: o += [f"s_cmp_eq_u32 s63, {640*3840}", "s_cselect_b32 s63, 0, s63"]
    return o
def g_xreads(j):
    return [f"ds_read_b128 {v4(G_X + (j&1)*16 + ks*8 + sub*4)}, v{(4 if slot_half(j) else 11)+ks} offset:{slot_off(j) + sub*2048}" for ks in range(2) for sub in range(2)]
def g_reads(t):
    j = t // 2
    o = []
    for n in range(10):
        for h in range(2):
            off = slot_off(j) + (t & 1) * 10240 + h * 1280 + 32 * n
            o.append(f"ds_read_b64_tr_b16 {v2(G_B + (t & 1) * 40 + n * 4 + 2 * h)}, v{(2 if slot_half(j) else 9) + (n & 1)} offset:{off}")
    return o

def role_loader(a):
    a(f"s_setprio {cfg.lprio}")
    g_setup_x(a)
    a("s_waitcnt lgkmcnt(0)")
    srd(a, SRD0, P_X, 2048 * 1280)
    a.extend(g_loadx(0))
    g_setup_w(a)
    srd(a, SRD1, P_W, 640 * 3840)
    seq = []
    for j in range(10): seq += [g_loadx(j), g_loadw(j)]
    pos = 1
    def upto(n):
        nonlocal pos
        while pos < min(n, 20): a.extend(seq[pos]); pos += 1
    upto(cfg.ahead0)
    args_ready(a)
    stamp(a, 1)
    for j in range(9):
        a(f"WAITTAG S{j}")
        if cfg.slab == 2 and j < 8: stamp(a, j + 1, True)
        a("s_barrier")
        if cfg.slab == 1 and j < 8: stamp(a, j + 1, True)
        if j == 0: stamp(a, 2)
        if j == 6: zero_probe(a, 14, 13)
        upto(min(2 * (j + 1) + cfg.ahead, 2 * (j + 4)))
    zero_check(a, "ld", 14, 13)
    a(f"s_mov_b32 s{SLD}, 1")
    stamp(a, 3)

def g_main(a, transposed, tail):
    a("s_waitcnt vmcnt(0) lgkmcnt(0)\n s_barrier")
    stamp(a, 1)
    a.extend(g_xreads(0) + g_reads(0))
    def mfma(t, n, sub):
        j, ks = t // 2, t % 2
        acc = v4(G_ACC + (sub * 10 + n) * 4)
        x = v4(G_X + (j & 1) * 16 + ks * 8 + sub * 4)
        b = v4(G_B + (t & 1) * 40 + n * 4)
        c = "0" if t == 0 else acc
        return f"v_mfma_f32_16x16x32_bf16 {acc}, {b}, {x}, {c}" if transposed else f"v_mfma_f32_16x16x32_bf16 {acc}, {x}, {b}, {c}"
    for t in range(18 if cfg.tail2 else 19):
        j, ks = t // 2, t % 2
        mf = [mfma(t, n, sub) for n in range(10) for sub in range(2)]
        rd = g_reads(t + 1)
        if ks == 1:
            rd = g_xreads(j + 1) + rd
            a.extend(mf[:cfg.bpos]); a("s_waitcnt lgkmcnt(0)" + "\n s_barrier")
            a.extend(interleave(mf[cfg.bpos:], rd))
        else:
            a.extend(interleave(mf, rd))
    if cfg.tail2:
        a.extend(interleave([mfma(18, n, sub) for n in range(5) for sub in range(2)], g_reads(19)))
        tail([mfma(19, n, sub) for n in range(5) for sub in range(2)] + [mfma(t, n, sub) for t in (18, 19) for n in range(5, 10) for sub in range(2)])
    else:
        tail([mfma(19, n, sub) for n in range(10) for sub in range(2)])

def role_q(a):
    a(f"""s_lshl_b32 s52, s57, 3
    s_lshl_b32 s53, s{SW}, 1
    s_add_u32 s52, s52, s53
    s_mul_i32 s52, s52, 20
    s_sub_u32 s53, s58, 8
    s_mul_i32 s54, s53, 5
    s_add_u32 s52, s52, s54
    s_lshl_b32 s52, s52, 10
    s_add_u32 s52, s52, {WS_PQ}
    s_mul_i32 s55, s53, 17
    s_add_u32 s55, s55, s57
    s_lshl_b32 s55, s55, 7
    s_add_u32 s55, s55, {WS_QFLAG}
    v_lshlrev_b32 v6, 4, v1""")
    def tail(mf):
        bar_arrive(a)
        ep = []
        for c in range(5):
            for sub in range(2):
                r0 = G_ACC + (sub * 10 + 2 * c) * 4
                ep += phi_block(list(range(r0, r0 + 8)), list(range(240, 248)))
                d = G_B + (sub * 5 + c) * 4
                ep += [f"v_cvt_pk_bf16_f32 v{d+k}, v{r0+2*k}, v{r0+2*k+1}" for k in range(4)]
                ep += [f"s_add_u32 s54, s52, {(sub*20+c)*1024}", f"buffer_store_dwordx4 {v4(d)}, v6, {sq(SRDWS)}, s54 offen sc1"]
        n = 2 * (len(mf) - 8)
        a.extend(mf[:8])
        a.extend(interleave(mf[8:], ep[:n]))
        stamp(a, 2)
        zero_probe(a, 7, 8)
        a.extend(ep[n:])
    g_main(a, True, tail)
    stamp(a, 3)
    zero_check(a, "q", 7, 8)
    signal(a, 55, 4, L_SIG)
    stamp(a, 4)

def role_kv(a):
    EX, HB = G_SLOT, 0
    DUMP = HB + 4 * 2048
    AD = 208
    a(f"""v_lshlrev_b32 v240, 4, v1
    s_mul_i32 s52, s{SW}, 10240
    s_add_u32 s52, s52, {EX}
    v_add_u32 v{AD+6}, s52, v240
    s_lshl_b32 s52, s{SW}, 10
    s_add_u32 s52, s52, {EX}
    v_add_u32 v{AD+7}, s52, v240
    v_and_b32 v246, 15, v1
    v_lshrrev_b32 v247, 4, v1
    v_lshlrev_b32 v247, 2, v247
    s_lshl_b32 s52, s{SW}, 2
    v_subrev_u32 v246, s52, v246
    v_subrev_u32 v247, s52, v247
    s_lshl_b32 s53, s{SW}, 11
    v_mov_b32 v245, {DUMP}
    v_lshlrev_b32 v{AD+8}, 2, v1
    v_add_u32 v{AD+9}, s53, v{AD+8}""")
    for k in range(4): a(f"v_mov_b32 v{AD+12+k}, 0x3f803f80")
    k = 0
    for dt in range(2):
        for et in range(2):
            a(f"""v_add_u32 v240, {16*dt}, v247
            v_add_u32 v241, {16*et}, v246
            v_max_u32 v242, v240, v241
            v_cmp_gt_u32 vcc, 20, v242
            v_mul_u32_u24 v241, 80, v241
            v_lshl_add_u32 v241, v240, 2, v241
            v_add_u32 v241, s53, v241
            v_cndmask_b32 v{AD+k}, v245, v241, vcc""")
            k += 1
        a(f"""v_add_u32 v240, {16*dt}, v247
        v_and_b32 v241, 15, v1
        v_mul_u32_u24 v241, 20, v241
        v_max_u32 v242, v240, v241
        v_cmp_gt_u32 vcc, 20, v242
        v_lshlrev_b32 v240, 2, v240
        v_add_u32 v240, s53, v240
        v_add_u32 v240, 1600, v240
        v_cndmask_b32 v{AD+4+dt}, v245, v240, vcc""")
    a(f"""s_lshl_b32 s52, s58, 2
    s_add_u32 s52, s52, s{SW}
    s_mul_i32 s52, s52, 1680
    s_add_u32 s52, s52, {WS_KV}
    s_lshl_b32 s55, s58, 7""")
    if cfg.kvall: a("s_mov_b32 s55, 0")
    def tail(mf):
        ep = []
        for t in [0, 1, 5, 2, 6, 7, 3, 8, 9, 4]:
            r0 = G_ACC + t * 4; r1 = G_ACC + (10 + t) * 4
            if t < 5: ep += phi_block(list(range(r0, r0 + 4)) + list(range(r1, r1 + 4)), list(range(240, 248)))
            d = G_B + t * 4
            ep += [f"v_cvt_pk_bf16_f32 v{d}, v{r0}, v{r0+1}", f"v_cvt_pk_bf16_f32 v{d+1}, v{r0+2}, v{r0+3}",
                   f"v_cvt_pk_bf16_f32 v{d+2}, v{r1}, v{r1+1}", f"v_cvt_pk_bf16_f32 v{d+3}, v{r1+2}, v{r1+3}",
                   f"ds_write_b128 v{AD+6}, {v4(d)} offset:{t*1024}"]
        n = 2 * (len(mf) - 6)
        a.extend(mf[:6])
        a.extend(interleave(mf[6:], ep[:n]))
        stamp(a, 2)
        zero_probe(a, 7, 8)
        a.extend(ep[n:])
    g_main(a, False, tail)
    bar_arrive(a); bar_wait(a, True)
    F = 136
    for rg in range(4):
        for q, off in enumerate([0, 5120, 1024, 6144]):
            a(f"ds_read_b128 {v4(F + rg*16 + [0, 2, 1, 3][q]*4)}, v{AD+7} offset:{rg*10240 + off}")
    D = 16
    for rg in range(4):
        for dt in range(2):
            A = v4(F + rg * 16 + dt * 4)
            acc = v4(D + 16 + dt * 4)
            a(f"v_mfma_f32_16x16x32_bf16 {acc}, {A}, {v4(AD+12)}, {'0' if rg == 0 else acc}")
            for et in range(2):
                acc = v4(D + (dt * 2 + et) * 4)
                a(f"v_mfma_f32_16x16x32_bf16 {acc}, {A}, {v4(F + rg*16 + 8 + et*4)}, {'0' if rg == 0 else acc}")
    zero_check(a, "kv", 7, 8)
    for k in [4, 0, 1, 5, 2, 3]: a(f"ds_write_b128 v{AD+k}, {v4(D + 4*k)}")
    for i in range(7): a(f"ds_read_b32 v{48+i}, v{AD+9} offset:{256*i}")
    bar_arrive(a)
    stamp(a, 3)
    for i in range(7):
        if i == 6: a("s_mov_b32 exec_hi, 0xf")
        a(f"buffer_atomic_add_f32 v{48+i}, v{AD+8}, {sq(SRDWS)}, s52 offen offset:{256*i}")
    a("s_mov_b64 exec, -1")
    signal(a, 55, 4, L_SIG, 128 if cfg.kvall else 16, 1024)
    stamp(a, 4)

C_HCOPY = 4224; C_UH = 148; C_WAVE = 2 * C_HCOPY + 2 * C_UH * 16
C_STG = HALF + 4 * C_WAVE; C_STGP = 4160
PV = 224
def role_prep(a):
    a(f"""s_and_b32 s52, s2, 7
    s_lshl_b32 s52, s52, 2
    s_bfe_u32 s53, s2, 0x20004
    s_add_u32 s52, s52, s53
    s_lshl_b32 s52, s52, 6
    s_bfe_u32 s65, s2, 0x10003
    s_mul_i32 s53, s65, 320
    s_sub_u32 s54, s{SW8}, 3
    s_lshl_b32 s55, s{SW8}, 1
    s_cmp_ge_u32 s{SW8}, 3
    s_cselect_b32 s54, s54, s55
    s_lshl_b32 s54, s54, 6
    s_add_u32 s53, s53, s54
    v_lshrrev_b32 v240, 3, v1
    v_lshl_add_u32 v241, v240, 3, s52
    v_and_b32 v242, 7, v1
    v_lshl_add_u32 v243, v242, 3, s53
    v_mul_u32_u24 v241, 1280, v241
    v_lshl_add_u32 v{PV}, v243, 1, v241
    s_movk_i32 s55, 5120""")
    def common2(rev):
        a(f"""v_add_u32 v241, s53, v240
        v_mul_u32_u24 v241, {TP}, v241
        v_lshl_add_u32 v{PV+3}, v242, 4, v241
        s_mul_i32 s54, s{SW}, 20480
        s_mul_i32 s63, s{SGRP}, 10240
        s_add_u32 s54, s54, s63
        v_mul_u32_u24 v241, 1040, v242
        v_add_u32 v241, s54, v241""")
        if rev: a("v_sub_u32 v240, 7, v240")
        a(f"""v_lshl_add_u32 v{PV+4}, v240, 4, v241
        v_lshl_add_u32 v{PV+5}, v1, 4, s54
        s_lshl_b32 s64, s52, 1
        s_mov_b32 s70, 0x05040100
        s_mov_b32 s71, 0x07060302""")
    def rds(R): return [f"ds_read_b128 {v4(R+4*i)}, v{PV+5} offset:{1040*i}" for i in range(8)]
    def sts(R, extra): return [x for i in range(8) for x in (f"s_add_u32 s54, s64, {8*TP*i + extra}", f"buffer_store_dwordx4 {v4(R+4*i)}, v{PV+3}, {sq(SRDWS)}, s54 offen sc1")]
    a(f"s_cmp_lt_u32 s{SW8}, 3\n s_cbranch_scc1 L_PQ")
    tag(a, 3)
    a("s_barrier")
    a(f"v_subrev_u32 v{PV+1}, 3840, v{PV}\n v_lshlrev_b32 v{PV+2}, 3, v243\n s_waitcnt lgkmcnt(0)")
    srd(a, SRD0, P_K, 2048 * 1280)
    K, V, C = 16, 60, 92
    for r in range(3): a(f"buffer_load_dwordx4 {v4(K+4*r)}, v{PV+1}, {sq(SRD0)}, 0 offen offset:{1280*r}")
    for r in range(8): a(f"buffer_load_dwordx4 {v4(K+12+4*r)}, v{PV}, {sq(SRD0)}, {'s55' if r >= 4 else '0'} offen offset:{1280*(r%4)}")
    srd(a, SRD1, P_V, 2048 * 1280); srd(a, SRD3, P_SH, 640 * 8)
    for r in range(4): a(f"buffer_load_dwordx4 {v4(C+4*r)}, v{PV+2}, {sq(SRD3)}, 0 offen offset:{16*r}")
    for r in range(8):
        a(f"buffer_load_dwordx4 {v4(V+4*r)}, v{PV}, {sq(SRD1)}, {'s55' if r >= 4 else '0'} offen offset:{1280*(r%4)}")
    args_ready(a)
    common2(True)
    a(f"s_sub_u32 s64, {WS_UT + 1984*2}, s64\n s_mov_b32 s62, 0xffff0000")
    stamp(a, 1)
    P, T, U, O = 108, 120, 184, 192
    for ch in range(8):
        dw, hi = ch // 2, ch % 2
        sel = "s71" if hi else "s70"
        for s_ in range(-2, 8):
            a(f"v_perm_b32 v{P+s_+2}, v{K+4*(s_+2)+dw}, v{K+4*(s_+3)+dw}, {sel}")
        for s_ in range(8): a(f"v_dot2_f32_bf16 v{T+8*ch+s_}, v{P+s_}, v{C+2*ch+1}, 0")
        for s_ in range(8): a(f"v_dot2_f32_bf16 v{T+8*ch+s_}, v{P+s_+2}, v{C+2*ch}, v{T+8*ch+s_}")
    for ch in range(8):
        dw, hi = ch // 2, ch % 2
        for s_ in range(8):
            a(f"v_and_b32 v{U+s_}, s62, v{V+4*s_+dw}" if hi else f"v_lshlrev_b32 v{U+s_}, 16, v{V+4*s_+dw}")
        for s_ in range(8): a(f"v_mul_f32 v{T+8*ch+s_}, v{T+8*ch+s_}, v{U+s_}")
        o = O + 4 * ch
        for j in range(4): a(f"v_cvt_pk_bf16_f32 v{o+j}, v{T+8*ch+7-2*j}, v{T+8*ch+6-2*j}")
        a(f"ds_write_b128 v{PV+4}, {v4(o)} offset:{128*ch}")
    a.extend(rds(16) + sts(16, 0))
    stamp(a, 2)
    zero_probe(a, 3, 4)
    zero_check(a, "pu", 3, 4)
    a(f"s_mul_i32 s65, s65, {0 if cfg.uall else 1024}\n s_add_u32 s65, s65, {WS_UFLG}")
    signal(a, 65, 5, L_SIG, 64 if cfg.uall else 32)
    stamp(a, 3)
    a(f"s_cmp_eq_u32 s{SGRP}, 1\n s_cbranch_scc1 L_CONV\n s_branch L_PW")
    a.label("L_PQ")
    tag(a, 6)
    a(f"s_cmp_lg_u32 s{SW8}, 2\n s_cbranch_scc1 L_PQ0")
    init_wave(a, "p")
    a.label("L_PQ0")
    args_ready(a)
    a("s_barrier")
    stamp(a, 2)
    zero_probe(a, 3, 4)
    zero_check(a, "pq", 3, 4)
    a.label("L_PW")
    if cfg.pwait:
        a(f"s_and_b32 s61, s2, {7 if cfg.nrep == 8 else 0}\n s_lshl_b32 s61, s61, 7\n s_bfe_u32 s54, s2, 0x10003\n s_mul_i32 s54, s54, {0 if cfg.uall else 1024}\n s_add_u32 s61, s61, s54\n s_add_u32 s61, s61, {WS_UFLG}\n v_mov_b32 v12, 0")
        a(probe(15, 12, "s61")); check(a, "pw", 15, 12, "s61", 1)
    stamp(a, 3)
    a("s_branch L_B2")

def conv_head(a, pr=False):
    a(f"""s_and_b32 s52, s2, 7
    s_mul_i32 s52, s52, 20
    s_lshr_b32 s53, s2, 3
    s_and_b32 s61, s2, {7 if cfg.nrep == 8 else 0}
    s_sub_u32 s53, s53, 12
    s_add_u32 s57, s52, s53
    s_lshl_b32 s58, s57, 2
    s_add_u32 s58, s58, s{SW}
    s_lshl_b32 s59, s58, 12
    s_mul_i32 s60, s{SW}, {C_WAVE}
    s_add_u32 s60, s60, {HALF}
    s_add_u32 s52, s{P_H}, s59
    s_addc_u32 s53, s{P_H+1}, 0
    s_load_dword s66, s[52:53], 0
    s_lshr_b32 s54, s58, 1
    s_lshl_b32 s54, s54, 2
    s_load_dword s67, s[{P_D}:{P_D+1}], s54
    s_lshl_b32 s61, s61, 7
    s_cmp_ge_u32 s57, 80
    s_cselect_b32 s54, {0 if cfg.uall else 1024}, 0
    s_add_u32 s61, s61, s54
    s_add_u32 s61, s61, {WS_UFLG}
    s_lshr_b32 s63, s57, 4
    s_mul_i32 s63, s63, {0 if cfg.yall else 1024}
    s_add_u32 s63, s63, {WS_YFLG}
    v_lshlrev_b32 v2, 4, v1
    v_add_u32 v3, 4, v2
    v_mov_b32 v12, 0""")
    if pr: a(probe(15, 12, "s61"))
    srd(a, SRD0, P_H, 640 * 4096)
    a(f"s_add_u32 m0, s60, 32")
    for i in range(4): a(f"buffer_load_dwordx4 v2, {sq(SRD0)}, s59 offen offset:{1024*i} lds ; tag=H")
    a(f"s_add_u32 m0, s60, {C_HCOPY + 32}")
    for i in range(4): a(f"buffer_load_dwordx4 v3, {sq(SRD0)}, s59 offen offset:{1024*i} lds ; tag=H")

def role_conv(a):
    ACC, A, RAW, B, UL = 16, 48, 80, 128, 224
    conv_head(a, True)
    last_barrier(a, "conv", 9)
    tag(a, 4)
    stamp(a, 4)
    a(f"s_mul_i32 s55, s58, {TP}\n s_add_u32 s65, s55, {WS_UT}\n s_add_u32 s55, s55, {WS_YT}")
    uld = [f"buffer_load_dwordx4 {v4(UL+4*i)}, v2, {sq(SRDWS)}, s65 offen offset:{1024*i} sc1" for i in range(4)]
    fin_strip(a); fin_head(a)
    a(f"""v_and_b32 v8, 15, v1
    v_lshrrev_b32 v9, 4, v1
    v_add_u32 v10, 1, v8
    v_bfe_u32 v11, v10, 1, 1
    v_mul_u32_u24 v11, {C_HCOPY}, v11
    v_lshrrev_b32 v13, 2, v10
    v_lshl_add_u32 v13, v9, 3, v13
    v_lshl_add_u32 v11, v13, 3, v11
    v_add_u32 v4, s60, v11
    v_and_b32 v10, 1, v10
    v_lshlrev_b32 v5, 4, v10
    v_lshlrev_b32 v10, 1, v9
    v_sub_u32 v10, v10, v8
    v_add_u32 v10, 15, v10
    v_lshlrev_b32 v10, 4, v10
    v_add_u32 v6, s60, v10
    v_lshrrev_b32 v10, 1, v1
    v_and_b32 v11, 1, v1
    v_mul_u32_u24 v11, {C_UH}, v11
    v_add_u32 v10, v10, v11
    v_lshlrev_b32 v10, 4, v10
    v_add_u32 v7, s60, v10
    v_mov_b32 v16, 0
    v_mov_b32 v17, 0
    v_mov_b32 v18, 0
    v_mov_b32 v19, 0
    v_and_b32 v10, 1, v9
    v_mul_u32_u24 v10, {C_UH}, v10
    v_add_u32 v10, v10, v8
    v_lshl_add_u32 v20, v10, 4, s60
    v_and_b32 v10, 1, v1
    v_lshlrev_b32 v10, 4, v10
    v_bfe_u32 v11, v1, 1, 1
    v_mul_u32_u24 v11, {C_HCOPY}, v11
    v_add3_u32 v21, v10, v11, s60
    v_lshlrev_b32 v10, 5, v8
    v_lshl_add_u32 v8, v9, 3, v10""")
    a(f"""s_waitcnt lgkmcnt(0)
    s_lshl_b32 s52, s66, 16
    s_lshl_b32 s53, s67, 16
    s_and_b32 s54, s67, 0xffff0000
    s_bitcmp1_b32 s58, 0
    s_cselect_b32 s53, s54, s53
    s_and_b32 s54, s66, 0xffff0000
    v_mov_b32 v10, s52
    v_add_f32 v10, s53, v10
    v_mov_b32 v11, s54
    v_cvt_pk_bf16_f32 v10, v10, v11
    v_mov_b32 v11, s60
    WAITTAG H
    v_cmp_gt_u32 vcc, 1, v15
    s_mov_b32 s62, 0
    s_nop 0
    s_cbranch_vccnz L_CU0
    PUSHSTATE
    {chr(10).join(uld)}
    s_mov_b32 s62, 1
    s_branch L_CU1
    POPSTATE
    L_CU0:
    {probe(15, 12, "s61")}
    L_CU1:
    ds_write_b128 v21, v[16:19]
    ds_write_b32 v11, v10 offset:32
    ds_write_b32 v11, v10 offset:{C_HCOPY+28}
    ds_write_b128 v20, v[16:19] offset:{2*C_HCOPY + 128*16}""")
    def raw_slots(i):
        return [(0, 1, 2), (2, 0, 1), (1, 2, 0), (0, 1, 2)][i]
    def raw_reads(it, N1):
        N0, i = it >> 2, it & 3
        sl = raw_slots(i)
        return [f"ds_read_b64 {v2(RAW + N1*6 + 2*sl[k])}, v4 offset:{(2*N1+N0)*256 + (2*i+k)*8}" for k in range(0 if i == 0 else 1, 3)]
    def aligns(it, N1):
        sl = raw_slots(it & 3)
        d = [RAW + N1 * 6 + 2 * sl[0], RAW + N1 * 6 + 2 * sl[0] + 1, RAW + N1 * 6 + 2 * sl[1], RAW + N1 * 6 + 2 * sl[1] + 1, RAW + N1 * 6 + 2 * sl[2]]
        return [f"v_alignbit_b32 v{A + 4*N1 + k}, v{d[k+1]}, v{d[k]}, v5" for k in range(4)]
    def b_reads(it):
        N0, i = it >> 2, it & 3
        return [f"ds_read_b128 {v4(B + (it&1)*32 + 4*dl)}, v6 offset:{2*C_HCOPY + (14-(2*dl-N0))*128 + (i>>1)*16 + (i&1)*C_UH*16}" for dl in range(8)]
    for N1 in range(8): a.extend(raw_reads(0, N1))
    for N1 in range(8):
        a.extend(aligns(0, N1)); a.extend(raw_reads(1, N1))
    a("s_cmp_eq_u32 s62, 1\n s_cbranch_scc1 L_CU2\n PUSHSTATE")
    check(a, "convu", 15, 12, "s61", 1)
    a.extend(uld)
    a("POPSTATE"); a.label("L_CU2")
    stamp(a, 5)
    if cfg.cgate:
        a(f"s_cmp_ge_u32 s2, 128\n s_cbranch_scc1 L_CG\n PUSHSTATE\n v_mov_b32 v13, {L_BAR}")
        a.label("L_CGW")
        a(f"s_sleep 2\n ds_read_b32 v14, v13\n s_waitcnt lgkmcnt(0)\n v_cmp_gt_u32 vcc, {cfg.cgate}, v14\n s_nop 1\n s_cbranch_vccnz L_CGW\n POPSTATE")
        a.label("L_CG")
    a("s_waitcnt vmcnt(0)")
    for i in range(4): a(f"ds_write_b128 v7, {v4(UL+4*i)} offset:{2*C_HCOPY + 512*i}")
    a.extend(b_reads(0))
    a(f"s_setprio {cfg.vprio}")
    stamp(a, 6)
    queue = []
    for it in range(8):
        if it < 7: queue += b_reads(it + 1)
        if it == cfg.qit:
            a("s_cmp_ge_u32 s56, 10\n s_cbranch_scc1 L_NQ\n PUSHSTATE"); a.extend(fin_qloads()); a("POPSTATE"); a.label("L_NQ")
        for N1 in range(8):
            tg = f"v_alignbit_b32 v{A+4*N1+3},"
            pos = max((k for k, q in enumerate(queue) if q.startswith(tg)), default=-1)
            for q in queue[:pos + 1]: a(q)
            queue = queue[pos + 1:]
            for J in range(N1, 8):
                acc = v4(ACC + 4 * J)
                c = "0" if (it == 0 and N1 == 0) else acc
                a(f"v_mfma_f32_16x16x32_bf16 {acc}, {v4(A+4*N1)}, {v4(B + (it&1)*32 + 4*(J-N1))}, {c}")
                for _ in range(2):
                    if queue: a(queue.pop(0))
            if it < 7: queue += aligns(it + 1, N1)
            if it < 6: queue += raw_reads(it + 2, N1)
        assert not any(q.startswith("ds_read_b128") for q in queue)
    assert not queue
    stamp(a, 7)
    a(f"s_setprio {cfg.eprio}\n v_add_u32 v9, s60, v8\n v_add_u32 v10, s60, v2")
    for J in range(8):
        T = 48 + 2 * J
        a(f"v_cvt_pk_bf16_f32 v{T}, v{ACC+4*J}, v{ACC+4*J+1}\n v_cvt_pk_bf16_f32 v{T+1}, v{ACC+4*J+2}, v{ACC+4*J+3}")
        a(f"ds_write_b64 v9, {v2(T)} offset:{512*J}")
    for i in range(4): a(f"ds_read_b128 {v4(64+4*i)}, v10 offset:{1024*i}")
    for i in range(4): a(f"buffer_store_dwordx4 {v4(64+4*i)}, v2, {sq(SRDWS)}, s55 offen offset:{1024*i} sc1")
    stamp(a, 8)
    signal(a, 63, 4, HALF + L_SIG, 160 if cfg.yall else 16)

FV = 240
def fin_head(a):
    a(f"""s_and_b32 s52, s2, 7
    s_lshl_b32 s52, s52, 2
    s_add_u32 s52, s52, s{SW}
    s_lshl_b32 s52, s52, 6
    s_lshl_b32 s53, s56, 6
    v_lshrrev_b32 v244, 3, v1
    v_lshl_add_u32 v245, v244, 3, s52
    v_and_b32 v246, 7, v1
    v_lshl_add_u32 v247, v246, 3, s53
    v_mul_u32_u24 v245, 1280, v245
    v_lshl_add_u32 v247, v247, 1, v245
    v_add_u32 v{FV}, v247, v245
    v_add_u32 v245, s53, v244
    v_mul_u32_u24 v245, {TP}, v245
    v_lshl_add_u32 v{FV+1}, v246, 4, v245
    v_mul_u32_u24 v245, 1040, v246
    v_lshl_add_u32 v245, v244, 4, v245
    v_add_u32 v{FV+2}, s60, v245
    s_lshl_b32 s64, s52, 1
    s_add_u32 s64, s64, {WS_YT}
    s_movk_i32 s53, 5120""")
    srd(a, SRD2, P_Q, 2048 * 1280); srd(a, SRD1, P_OUT, 2048 * 2560)
    a("s_cmp_ge_u32 s56, 10\n s_cselect_b32 s70, 0x40000000, 0\n s_add_u32 s71, s70, 5120")
def fin_qloads(): return [f"buffer_load_dwordx4 {v4(192+4*r)}, v247, {sq(SRD2)}, {'s71' if r >= 4 else 's70'} offen offset:{1280*(r%4)}" for r in range(8)]
def fin_strip(a):
    a(f"""s_lshr_b32 s53, s2, 3
    s_lshl_b32 s54, s{SGRP}, 2
    s_add_u32 s56, s53, s54
    s_sub_u32 s56, s56, 12
    s_cmp_lt_u32 s53, 16
    s_cselect_b32 s56, s56, 15
    s_add_u32 s54, s{SGRP}, 8
    s_cmp_eq_u32 s53, 31
    s_cselect_b32 s56, s54, s56""")
def fin_g0(a):
    fin_strip(a)
    a(f"s_mul_i32 s60, s{SW}, 8448\n s_add_u32 s60, s60, 16384\n v_lshl_add_u32 v10, v1, 4, s60")
    fin_head(a)
    a.extend(fin_qloads())
    bar_wait(a)
    a("s_waitcnt vmcnt(0)\n s_branch L_FINR")

def role_fin(a):
    Q, QF, Y, T, L = 192, 48, 112, 144, 16
    a(f"""s_setprio {cfg.fprio}
    s_and_b32 s61, s2, {7 if cfg.nrep == 8 else 0}
    s_lshl_b32 s61, s61, 7
    s_mul_i32 s54, s56, {0 if cfg.yall else 1024}
    s_add_u32 s61, s61, s54
    s_add_u32 s61, s61, {WS_YFLG}
    s_mov_b32 s62, 0xffff0000
    v_mov_b32 v12, 0""")
    a(probe(15, 12, "s61"))
    for r in range(8):
        for d in range(4):
            a(f"v_lshlrev_b32 v{QF+8*r+2*d}, 16, v{Q+4*r+d}\n v_and_b32 v{QF+8*r+2*d+1}, s62, v{Q+4*r+d}")
    stamp(a, 1)
    check(a, "fin", 15, 12, "s61", 1)
    stamp(a, 2)
    for i in range(8): a(f"s_add_u32 s54, s64, {8*TP*i}\n buffer_load_dwordx4 {v4(L+4*i)}, v{FV+1}, {sq(SRDWS)}, s54 offen sc1")
    for i in range(8): a(f"ds_write_b128 v10, {v4(L+4*i)} offset:{1040*i}")
    for ch in range(8): a(f"ds_read_b128 {v4(Y+4*ch)}, v{FV+2} offset:{128*ch}")
    stamp(a, 3)
    a("s_mov_b32 s54, 0")
    for r in range(8):
        t = T + 8 * (r & 1)
        for ch in range(8):
            src = Y + 4 * ch + r // 2
            a(f"v_and_b32 v{t+ch}, s62, v{src}" if r & 1 else f"v_lshlrev_b32 v{t+ch}, 16, v{src}")
        for ch in range(8): a(f"v_mul_f32 v{t+ch}, v{t+ch}, v{QF+8*r+ch}")
        o = 160 + 4 * r
        for d in range(4): a(f"v_cvt_pk_bf16_f32 v{o+d}, v{t+2*d}, v{t+2*d+1}")
        a(f"buffer_store_dwordx4 {v4(o)}, v{FV}, {sq(SRD1)}, s54 offen{OSC()}")
        if r < 7: a("s_add_u32 s54, s54, 2560")

def b2_tables(hf):
    num = {}
    for t in range(5 * hf, 5 * hf + 5):
        hs = {e // 20 for e in range(16 * t, 16 * t + 16)}
        dts = [dt for dt in range(10) if hs & {d // 20 for d in range(16 * dt, 16 * dt + 16)}]
        ch = {}
        for dt in dts: ch.setdefault(dt // 2, []).append(dt)
        num[t] = sorted(ch.items())
    ch = {}
    for dt in range(5 * hf, 5 * hf + 5): ch.setdefault(dt // 2, []).append(dt)
    return num, sorted(ch.items())

B_KS = 8416
NS = 3
def role_b2(a):
    PQ, KV, RAW = 16, 108, 180
    WA = [76 + 4 * n for n in range(8)]
    WB = [228 + 4 * n for n in range(7)] + [8]
    ACC = 108
    U = [180, 204]
    a(f"""s_mul_i32 s57, s56, 205
    s_lshr_b32 s57, s57, 10
    s_mul_i32 s54, s57, 5
    s_sub_u32 s58, s56, s54""")
    assert all((v * 205) >> 10 == v // 5 for v in range(216))
    srd(a, SRD0, P_WO, 640 * 1280)
    a(f"""s_lshl_b32 s59, s58, 8
    s_mul_i32 s52, s{SW}, {160*1280}
    s_add_u32 s59, s59, s52
    s_lshl_b32 s53, s{SW}, 6
    s_mul_i32 s65, s{SW}, 20480
    s_add_u32 s65, s65, s{SLB}
    v_and_b32 v8, 15, v1
    v_lshrrev_b32 v9, 4, v1
    v_lshlrev_b32 v2, 4, v8
    v_xor_b32 v2, s53, v2
    v_mul_u32_u24 v10, {8*1280}, v9
    v_add3_u32 v2, v2, v10, s59""")
    def dma(kstep, slot):
        return [[f"s_add_u32 m0, s65, {slot*B_KS + i*1056}", f"s_mov_b32 s63, {(32*kstep + i)*1280}",
                 f"buffer_load_dwordx4 v2, {sq(SRD0)}, s63 offen lds ; tag=K{kstep}"] for i in range(8)]
    def wreads(slot, dst):
        return [f"ds_read_b64_tr_b16 {v2(dst[n] + 2*h)}, v0 offset:{slot*B_KS + h*512 + 32*n}" for n in range(8) for h in range(2)]
    bar_wait(a)
    for g in dma(0, 0): a.extend(g)
    last_barrier(a, "b2", 8)
    for g in dma(1, 1): a.extend(g)
    a(f"s_setprio {cfg.cprio}")
    srd(a, SRD1, P_OUT, 2048 * 2560)
    a(f"""v_bfe_u32 v10, v1, 2, 3
    v_mul_u32_u24 v10, 1056, v10
    v_lshrrev_b32 v11, 5, v1
    v_lshl_add_u32 v10, v11, 8, v10
    v_and_b32 v11, 3, v1
    v_lshl_add_u32 v10, v11, 3, v10
    v_add_u32 v0, s65, v10
    s_add_u32 s64, s65, {2*B_KS}
    v_lshlrev_b32 v9, 3, v9
    v_mul_u32_u24 v3, 40, v8
    v_add3_u32 v3, v3, v9, s64
    v_mul_u32_u24 v4, 800, v11
    v_add3_u32 v4, v4, v9, s64
    v_lshlrev_b32 v5, 4, v1
    v_lshlrev_b32 v6, 3, v1
    v_add_u32 v6, s64, v6
    v_add_u32 v7, 4096, v5
    s_mul_i32 s52, s57, 3
    s_lshr_b32 s53, s52, 3
    s_add_u32 s54, s52, 2
    s_min_u32 s54, s54, 127
    s_lshr_b32 s54, s54, 3
    s_sub_u32 s54, s54, s53
    s_lshl_b32 s54, s54, 7
    v_and_b32 v12, 1, v1
    v_mul_u32_u24 v13, {0 if cfg.kvall else 128}, v12
    v_mul_u32_u24 v12, s54, v12
    s_mul_i32 s60, s{SW}, 17
    s_add_u32 s60, s60, s53
    s_lshl_b32 s60, s60, 7
    s_add_u32 s60, s60, {WS_QFLAG}
    s_and_b32 s61, s2, {7 if cfg.nrep == 8 else 0}
    s_lshl_b32 s61, s61, 10
    s_mul_i32 s53, s{SW}, {0 if cfg.kvall else 256}
    s_add_u32 s61, s61, s53
    s_mul_i32 s52, s52, 20480
    s_mul_i32 s53, s{SW}, 5120
    s_add_u32 s52, s52, s53
    s_add_u32 s52, s52, {WS_PQ}
    s_mul_i32 s62, s{SW}, {8*1680}
    s_add_u32 s62, s62, {WS_KV}
    s_mov_b32 s73, {EPS}
    s_mov_b32 s66, 0xffff0000
    s_mov_b32 s67, -1
    s_mov_b32 s68, 0
    s_mov_b32 s69, -1
    s_mov_b32 s70, 0
    s_mov_b32 s71, 0xffff0000""")
    for r in range(KV, KV + 72): a(f"v_mov_b32 v{r}, 0")
    a("WAITTAG K0")
    a.extend(wreads(0, WA))
    a("WAITTAG K1")
    a.extend(wreads(1, WB))
    a("s_waitcnt lgkmcnt(0)")
    if cfg.gate:
        a(f"s_cmp_eq_u32 s{SLD}, 0\n s_cbranch_scc1 L_GT\n v_mov_b32 v15, {L_BAR}")
        a.label("L_GTW")
        a("s_sleep 4\n ds_read_b32 v14, v15\n s_waitcnt lgkmcnt(0)\n v_cmp_gt_u32 vcc, 8, v14\n s_nop 1\n s_cbranch_vccnz L_GTW")
        a.label("L_GT")
    for g in dma(2, 0) + dma(3, 1): a.extend(g)
    a(probe(14, 12, "s60"))
    stamp(a, 5)
    check(a, "b2q", 14, 12, "s60", 1)
    for sub in range(NS):
        for c in range(5):
            a(f"buffer_load_dwordx4 {v4(PQ + (sub*5+c)*4)}, v{5 if c < 4 else 7}, {sq(SRDWS)}, s52 offen offset:{1024*(c%4)} sc1")
        if sub < NS - 1: a("s_add_u32 s52, s52, 20480")
    a(probe(14, 13, "s61"))
    check(a, "b2kv", 14, 13, "s61", 1)
    stamp(a, 6)
    raw = [RAW + 4 * i for i in range(12)] + [KV + 64, KV + 68]
    for hf in range(2):
        for i in range(7):
            a(f"buffer_load_dwordx4 {v4(raw[hf*7+i])}, v{5 if i < 4 else 7}, {sq(SRDWS)}, s62 offen offset:{1024*(i%4)} sc1")
        if hf == 0: a("s_add_u32 s62, s62, 6720")
    for r in range(4): a(f"v_mov_b32 v{12+r}, s73")
    qi = {}
    tabs = [b2_tables(0), b2_tables(1)]
    def build_half(hf):
        o = []
        for i in range(7):
            r = raw[hf * 7 + i]
            o += [f"v_cvt_pk_bf16_f32 v{r}, v{r}, v{r+1}", f"v_cvt_pk_bf16_f32 v{r+1}, v{r+2}, v{r+3}", f"ds_write_b64 v6, {v2(r)} offset:{512*i}"]
        if hf == 1: o += [f"v_mov_b32 v{KV+64+k}, 0" for k in range(8)]
        num, den = tabs[hf]
        quads = [("z", hf, dt) for c, dts in den for dt in dts] + [("n", t, dt) for t in num for c, dts in num[t] for dt in dts]
        assert len(quads) == 18
        rd = []
        for (kind, t, dt) in quads:
            q = len(qi); qi[(kind, t, dt)] = q
            mask = 0
            for l in range(64):
                i, g = l & 15, l >> 4
                hd = (16 * dt + 4 * g) // 20
                he = (16 * t + i) // 20 if kind == "n" else (i & 3) + 4 * t
                if hd == he: mask |= 1 << l
            off = 640 * (t - 5 * hf) + 32 * (dt - 5 * hf) if kind == "n" else 800 + 32 * (dt - 5 * hf)
            rd.append([f"s_mov_b32 exec_lo, {mask & 0xffffffff:#x}", f"s_mov_b32 exec_hi, {mask >> 32:#x}", f"ds_read_b64 {v2(KV + 2*q)}, v{3 if kind == 'n' else 4} offset:{off}"])
        return o, rd
    def omf(sub, hf, T):
        o = []
        num, den = tabs[hf]
        def one(kind, t, lst, acc):
            lst = sorted(lst, key=lambda x: len(x[1]))
            for k, (c, dts) in enumerate(lst):
                src = v4(acc) if k else ("v[12:15]" if kind == "z" else "0")
                kv = KV + 2 * qi[(kind, t, dts[0])]
                pq = PQ + (sub * 5 + c) * 4
                key = (min(k, 1), 0 if kind == "z" else 1, t, k)
                if len(dts) == 2: o.append((key, f"v_mfma_f32_16x16x32_bf16 {v4(acc)}, {v4(kv)}, {v4(pq)}, {src}"))
                else: o.append((key, f"v_mfma_f32_16x16x16_bf16 {v4(acc)}, {v2(kv)}, {v2(pq + 2*(dts[0]&1))}, {src}"))
        one("z", hf, den, T)
        for t in num: one("n", t, num[t], T + 4 + 4 * (t - 5 * hf))
        return [x for _, x in sorted(o)]
    def ovalu(sub, hf, T):
        o = []
        for r in range(4): o.append(f"v_rcp_f32 v{T+r}, v{T+r}")
        for tl in range(5):
            t = tl + 5 * hf
            h0 = (16 * tl) // 20; h1 = (16 * tl + 12) // 20
            rc = T + h0; n = T + 4 + 4 * tl
            if h0 != h1:
                g0 = min(g for g in range(4) if (16 * tl + 4 * g) // 20 == h1)
                o.append(f"v_cndmask_b32 v{rc}, v{T+h0}, v{T+h1}, s[{64+2*g0}:{65+2*g0}]")
            for r in range(4): o.append(f"v_mul_f32 v{n+r}, v{n+r}, v{rc}")
            d = PQ + (sub * 5 + t // 2) * 4 + 2 * (t & 1)
            o.append(f"v_cvt_pk_bf16_f32 v{d}, v{n}, v{n+1}")
            o.append(f"v_cvt_pk_bf16_f32 v{d+1}, v{n+2}, v{n+3}")
        return o
    def acc(sub, n): return ACC + (n * NS + sub) * 4
    def g2(k, W, ns=range(8)):
        return [f"v_mfma_f32_16x16x32_bf16 {v4(acc(sub, n))}, {v4(W[n])}, {v4(PQ + (sub*5+k)*4)}, {'0' if k == 0 else v4(acc(sub, n))}" for n in ns for sub in range(NS)]
    units = [(s_, h) for h in range(2) for s_ in range(NS)]
    nu = len(units)
    w0, r0 = build_half(0)
    a.extend(w0)
    for g in r0: a.extend(g)
    a("s_mov_b64 exec, -1")
    w1, r1 = build_half(1)
    a.extend(w1)
    r1g = [r1[k] + r1[k + 1] + ["s_mov_b64 exec, -1"] for k in range(0, 18, 2)]
    a.extend(interleave(omf(*units[0], U[0]), r1g, 1, 11))
    stamp(a, 7)
    for u in range(1, nu):
        a.extend(interleave(omf(*units[u], U[u & 1]), ovalu(*units[u - 1], U[(u - 1) & 1]), 2))
    a.extend(interleave(g2(0, WA), ovalu(*units[nu - 1], U[(nu - 1) & 1]), 2))
    k1 = g2(1, WB)
    a.extend(interleave(k1[:10], wreads(0, WA), 0, 8))
    a("s_waitcnt lgkmcnt(0)")
    a.extend(interleave(k1[10:], dma(4, 0), 0, 10))
    ad = []
    for gam in range(1, 4):
        ad += [f"s_xor_b32 s52, s{SW}, {gam}", "s_mul_i32 s52, s52, 20480", f"s_add_u32 s52, s52, {(gam-1)*6144}", f"s_add_u32 s52, s52, s{SLB}", f"v_add_u32 v{203+gam}, s52, v5"]
    ad += f"""v_add_u32 v207, s65, v5
    s_add_u32 s53, s65, 18432
    v_and_b32 v12, 15, v1
    v_mul_u32_u24 v12, 80, v12
    v_lshrrev_b32 v3, 4, v1
    v_lshl_add_u32 v12, v3, 3, v12
    v_add_u32 v12, s53, v12
    v_lshrrev_b32 v3, 2, v1
    v_and_b32 v4, 3, v1
    v_lshlrev_b32 v4, 4, v4
    v_mul_u32_u24 v15, 80, v3
    v_add3_u32 v15, v15, v4, s53
    s_mul_i32 s52, s57, 48
    v_add_u32 v3, s52, v3
    v_mul_u32_u24 v3, 2560, v3
    v_add_u32 v3, v3, v4
    s_lshl_b32 s52, s58, 8
    s_lshl_b32 s54, s{SW}, 6
    s_add_u32 s52, s52, s54
    s_add_u32 s52, s52, 1280""".split("\n")
    a.extend(interleave(interleave(g2(2, WA), wreads(1, WB), 0, 16), ad))
    pre = g2(3, WB, [0, 1, 2, 3])
    a.extend(pre[:4]); a("WAITTAG K4")
    rd4 = wreads(0, WA); rd4 = rd4[4:] + rd4[:4]
    a.extend(interleave(pre[4:], rd4))
    def wr(gam): return [f"ds_write_b128 v207, {v4(ACC + (gam*6+k)*4)} offset:{(gam-1)*6144 + 1024*k}" for k in range(6)]
    a.extend(g2(4, WA, [2, 3]))
    a.extend(interleave(g2(3, WB, [4, 5]) + g2(4, WA, [4, 5]), wr(1), 2))
    a.extend(interleave(g2(3, WB, [6, 7]) + g2(4, WA, [6, 7]), wr(2), 2))
    a.extend(interleave(g2(4, WA, [0, 1]), wr(3), 2))
    stamp(a, 8)
    bar_arrive(a); bar_wait(a, True)
    R = 16
    order = [n * NS + sub for sub in range(NS) for n in range(2)]
    for k in order:
        for gam in range(3): a(f"ds_read_b128 {v4(R + (k*3+gam)*4)}, v{204+gam} offset:{1024*k}")
    for k in order:
        n, sub = k // NS, k % NS
        for r in range(4): a(f"v_add_f32 v{ACC+4*k+r}, v{ACC+4*k+r}, v{R+(k*3)*4+r}")
        for r in range(4): a(f"v_add_f32 v{R+(k*3+1)*4+r}, v{R+(k*3+1)*4+r}, v{R+(k*3+2)*4+r}")
        for r in range(4): a(f"v_add_f32 v{ACC+4*k+r}, v{ACC+4*k+r}, v{R+(k*3+1)*4+r}")
        a(f"v_cvt_pk_bf16_f32 v{140+2*k}, v{ACC+4*k}, v{ACC+4*k+1}\n v_cvt_pk_bf16_f32 v{141+2*k}, v{ACC+4*k+2}, v{ACC+4*k+3}")
        a(f"ds_write_b64 v12, {v2(140+2*k)} offset:{32*n}")
        if n == 1:
            a(f"ds_read_b128 {v4(160+4*sub)}, v15")
            if sub > 0:
                a(f"buffer_store_dwordx4 {v4(160+4*(sub-1))}, v3, {sq(SRD1)}, s52 offen{OSC()}\n s_add_u32 s52, s52, {16*2560}")
    a(f"buffer_store_dwordx4 {v4(160+4*(NS-1))}, v3, {sq(SRD1)}, s52 offen{OSC()}")

def OSC(): return ["", " sc1", " nt", " sc0 sc1"][cfg.osc]

def kd(name):
    return f""".p2align 6
.amdhsa_kernel {name}
  .amdhsa_next_free_vgpr 256
  .amdhsa_next_free_sgpr 102
  .amdhsa_accum_offset 256
  .amdhsa_group_segment_fixed_size 0
  .amdhsa_kernarg_size 96
  .amdhsa_user_sgpr_count 2
  .amdhsa_user_sgpr_kernarg_segment_ptr 1
  .amdhsa_system_sgpr_workgroup_id_x 1
  .amdhsa_float_denorm_mode_32 3
.end_amdhsa_kernel"""

def head(name): return f".globl {name}\n.p2align 8\n.type {name},@function"

def build():
    k = KN + "_kernel"
    a = Asm()
    a(head(k)); prologue(a, k, 256)
    a("s_cmp_ge_u32 s2, 192\n s_cbranch_scc1 L_P")
    g_ids(a)
    a(f"s_cmp_eq_u32 s{SGRP}, 0\n s_cbranch_scc1 L_CONS")
    tag(a, 7)
    role_loader(a)
    a("s_cmp_ge_u32 s2, 96\n s_cbranch_scc1 L_CONV\n s_branch L_B2")
    a.label("L_CONS")
    a(f"s_cmp_lg_u32 s{SW}, 0\n s_cbranch_scc1 L_ZW\n s_cmp_ge_u32 s2, {NZERO}\n s_cbranch_scc1 L_ZW")
    zero_wave(a)
    a(f"s_cmp_lg_u32 s{SW}, 3\n s_cbranch_scc1 L_CONS1")
    init_wave(a, "g")
    a.label("L_CONS1")
    a(f"s_setprio {cfg.cprio}")
    args_ready(a)
    g_setup2(a)
    a("s_cmp_ge_u32 s58, 8\n s_cbranch_scc1 L_Q")
    tag(a, 1); role_kv(a)
    a("s_cmp_lt_u32 s2, 96\n s_cbranch_scc1 L_FIN")
    a.label("L_FG0")
    fin_g0(a)
    a.label("L_Q"); tag(a, 2); role_q(a); a("s_branch L_B2")
    a.label("L_P"); role_prep(a)
    a.label("L_CONV"); role_conv(a)
    a("s_cmp_ge_u32 s56, 10\n s_cbranch_scc1 L_FIN")
    a.label("L_FINR")
    tag(a, 8); role_fin(a)
    if cfg.enc == 89: a("s_waitcnt vmcnt(0)"); stamp(a, 9)
    a("s_branch L_FIN")
    a.label("L_B2")
    a("""s_lshr_b32 s53, s2, 3
    s_sub_u32 s54, s53, 4
    s_cmp_lt_u32 s53, 12
    s_cselect_b32 s53, s53, s54
    s_cmp_ge_u32 s53, 27
    s_cbranch_scc1 L_FG0
    s_and_b32 s56, s2, 7
    s_mul_i32 s56, s56, 27
    s_add_u32 s56, s56, s53
    s_cmp_ge_u32 s56, 215
    s_cbranch_scc1 L_FIN""")
    tag(a, 5); role_b2(a)
    if cfg.enc == 59: a("s_waitcnt vmcnt(0)"); stamp(a, 9)
    a.label("L_FIN"); stamps_out(a)
    if cfg.enc:
        a("s_waitcnt vmcnt(0) lgkmcnt(0)")
        a.label("L_SPIN")
        a("s_sleep 1\n s_memrealtime s[94:95]\n s_waitcnt lgkmcnt(0)\n s_sub_u32 s94, s94, s96\n s_cmp_lt_u32 s94, 2500\n s_cbranch_scc1 L_SPIN")
    a.label("L_END"); a("s_endpgm")
    launch = [f"; @launch grid=(256,1,1) block=(512,1,1) lds={LDS_BYTES}"]
    return launch, a, [k]

def emit(path, launch, a, kernels, verbose=False):
    body = fix_hazards(insert_waits(a.lines), verbose)
    out = list(launch) + ['.amdgcn_target "amdgcn-amd-amdhsa--gfx950"', ".text", ".p2align 8", "L_CODE_BEGIN:"]
    out += [(l if l.endswith(":") or l.startswith(".") else "    " + l) for l in body]
    out += ["L_CODE_END:", "    s_endpgm", '.section .rodata,"a"'] + [kd(k) for k in kernels]
    open(path, "w").write("\n".join(out) + "\n")

if __name__ == "__main__":
    cfg.stamps = "stamps" in sys.argv[2:]
    cfg.rot = "norot" not in sys.argv[2:]
    for x in sys.argv[2:]:
        if "=" in x: setattr(cfg, x.split("=")[0], int(x.split("=")[1]))
    emit(sys.argv[1], *build(), verbose="-v" in sys.argv)
```

```python
import re

class Asm:
    def __init__(self):
        self.lines = []
    def __call__(self, s):
        for ln in s.split("\n"):
            ln = ln.strip()
            if ln: self.lines.append(ln)
    def label(self, n): self.lines.append(n + ":")
    def extend(self, ls):
        for l in ls: self(l)

def interleave(main, fill, start=0, end=None, per=None):
    n = len(main); end = n if end is None else end
    slots = end - start
    out = []; k = 0; nf = len(fill)
    for i, m in enumerate(main):
        out.append(m)
        if start <= i < end:
            tgt = ((i - start + 1) * nf + slots - 1) // slots if per is None else min(nf, (i - start + 1) * per)
            while k < tgt:
                f = fill[k]; k += 1
                out.extend(f if isinstance(f, list) else [f])
    while k < nf:
        f = fill[k]; k += 1
        out.extend(f if isinstance(f, list) else [f])
    return out

_R = re.compile(r"^(-|abs\()?([vas])(?:(\d+)|\[(\d+):(\d+)\])\)?$")
def regs(tok):
    tok = tok.strip()
    if tok in ("vcc",): return {("s", 106), ("s", 107)}
    if tok == "vcc_lo": return {("s", 106)}
    if tok == "vcc_hi": return {("s", 107)}
    if tok == "exec": return {("s", 126), ("s", 127)}
    if tok == "exec_lo": return {("s", 126)}
    if tok == "exec_hi": return {("s", 127)}
    if tok == "m0": return {("s", 124)}
    m = _R.match(tok)
    if not m: return set()
    k = m.group(2)
    if m.group(3) is not None: return {(k, int(m.group(3)))}
    return {(k, i) for i in range(int(m.group(4)), int(m.group(5)) + 1)}

TRANS = ("v_exp_f32", "v_log_f32", "v_rcp_f32", "v_rsq_f32", "v_sqrt_f32", "v_sin_f32", "v_cos_f32", "v_rcp_iflag_f32")
class I:
    def __init__(self, text):
        self.text = text
        t = text.split(";")[0].strip()
        p = t.split(None, 1)
        self.mn = p[0]
        ops = []
        if len(p) > 1:
            for o in p[1].split(","):
                o = o.strip()
                ops.append(o.split()[0] if o else o)
            self.mods = p[1]
        else: self.mods = ""
        self.ops = ops
        mn = self.mn
        self.w = set(); self.r = set(); self.srcc = set(); self.srcab = set(); self.stdata = set()
        self.kind = "other"
        R = [regs(o) for o in ops]
        if mn.startswith("v_mfma"):
            self.kind = "mfma"; self.w = R[0]; self.srcab = R[1] | R[2]; self.srcc = R[3]; self.r = self.srcab | self.srcc
            self.passes = 8 if "32x32" in mn else 4
        elif mn.startswith("v_"):
            self.kind = "valu"
            if mn.startswith("v_cmp"):
                self.w = R[0]; self.r = set().union(*R[1:])
                if mn.startswith("v_cmpx"): self.w |= regs("exec")
            elif mn.startswith(("v_add_co", "v_sub_co", "v_addc_co", "v_subb_co")):
                self.w = R[0] | R[1]; self.r = set().union(*R[2:])
            elif mn.startswith("v_permlane") and "swap" in mn:
                self.w = R[0] | R[1]; self.r = R[0] | R[1]
            else:
                self.w = R[0]; self.r = set().union(*R[1:]) if len(R) > 1 else set()
                if mn.startswith(("v_fmac", "v_dot2c", "v_pk_fmac", "v_writelane")): self.r |= R[0]
        elif mn.startswith("ds_"):
            self.kind = "ds"
            if mn.startswith(("ds_read", "ds_bpermute", "ds_swizzle")) or "_rtn" in mn:
                self.w = R[0]; self.r = set().union(*R[1:])
            else:
                self.r = set().union(*R)
        elif mn.startswith(("buffer_", "global_")):
            self.kind = "vmem"
            lds = bool(re.search(r"\blds\b", self.mods)) or "_lds_" in mn
            self.lds = lds
            if mn in ("buffer_wbl2", "buffer_inv"): pass
            elif lds:
                self.r = set().union(*R) | regs("m0")
            elif "_load" in mn:
                self.w = R[0]; self.r = set().union(*R[1:])
            elif mn.startswith("buffer_"):
                self.r = set().union(*R); self.stdata = R[0] if len(R[0]) >= 3 else set()
                if "atomic" in mn and " sc0" in self.mods: self.w = R[0]
            else:
                if "atomic" in mn and " sc0" in self.mods:
                    self.w = R[0]; self.r = set().union(*R[1:])
                else:
                    self.r = set().union(*R); self.stdata = R[1] if len(R[1]) >= 3 else set()
        elif mn.startswith("s_"):
            self.kind = "salu"
            if mn.startswith(("s_cmp", "s_cbranch", "s_branch", "s_waitcnt", "s_barrier", "s_nop", "s_endpgm", "s_sleep", "s_setprio", "s_bitcmp")):
                self.r = set().union(*R) if R else set()
            else:
                self.w = R[0] if R else set(); self.r = set().union(*R[1:]) if len(R) > 1 else set()
                if "saveexec" in mn: self.w |= regs("exec")
    def states(self):
        if self.mn == "s_nop": return int(self.ops[0], 0) + 1
        return 1

def need(p, c):
    n = 0
    vw = {x for x in p.w if x[0] != "s"}; sw = {x for x in p.w if x[0] == "s"}
    if p.kind == "valu":
        isdot = p.mn.startswith("v_dot")
        if c.kind == "mfma" and vw & c.r: n = max(n, 3 if isdot else 2)
        if c.kind == "mfma" and sw & regs("exec"): n = max(n, 4)
        if c.kind == "valu":
            if sw & c.r: n = max(n, 4 if c.mn.startswith(("v_readlane", "v_writelane", "v_div_fmas")) else 2)
            if sw & regs("vcc") and c.mn.startswith("v_cndmask") : n = max(n, 2)
            if sw & regs("exec") and c.mn.startswith(("v_readlane", "v_readfirstlane", "v_writelane", "v_permlane")): n = max(n, 4)
            if sw & regs("exec") and "dpp" in c.mn: n = max(n, 5)
            if vw & c.r:
                if c.mn.startswith(("v_readlane", "v_readfirstlane")): n = max(n, 1)
                if c.mn.startswith("v_permlane") or "dpp" in c.mn: n = max(n, 2)
                if p.mn.startswith(TRANS) and not c.mn.startswith(TRANS): n = max(n, 1)
                if "sdwa" in p.mn or "op_sel" in p.mods: n = max(n, 1)
            if isdot and (vw & (c.r | c.w)):
                same = c.mn == p.mn
                if same:
                    ab = regs(c.ops[1]) | regs(c.ops[2])
                    if vw & ab: n = max(n, 3)
                else: n = max(n, 3)
        elif isdot and vw & (c.r | c.w): n = max(n, 3)
        if c.kind == "vmem" and sw & c.r: n = max(n, 5)
        if c.kind == "salu" and sw & c.r: n = max(n, 1)
    if p.kind == "mfma":
        big = {4: 8, 8: 12}[p.passes]; ovl = {4: 6, 8: 10}[p.passes]; war = {4: 3, 8: 7}[p.passes]
        if c.kind == "mfma":
            if p.w & c.srcab: n = max(n, big)
            if p.w & c.srcc and not (p.w == c.srcc and p.mn == c.mn): n = max(n, big)
            if p.w & c.w and not (p.w == c.srcc): n = max(n, ovl)
        else:
            if p.w & (c.r | c.w): n = max(n, big)
            if c.kind == "valu" and p.srcc & c.w: n = max(n, war)
    if p.kind == "vmem" and p.stdata and (p.stdata & c.w): n = max(n, 2)
    if p.kind == "salu" and (sw & regs("m0")) and c.kind == "vmem" and getattr(c, "lds", False): n = max(n, 1)
    return n

def fix_hazards(lines, verbose=False):
    out = []; hist = []; ins = 0
    for ln in lines:
        t = ln.split(";")[0].strip()
        if not t or t.endswith(":") or t.startswith("."):
            out.append(ln); continue
        c = I(ln)
        dist = 0; req = 0
        for p in reversed(hist):
            nd = need(p, c) - dist
            if nd > req: req = nd; why = p
            dist += p.states()
            if dist > 20: break
        if req > 0:
            nop = I(f"s_nop {req-1}")
            out.append(f"s_nop {req-1}"); hist.append(nop); ins += 1
            if verbose: print(f"nop {req}: [{why.text}] -> [{c.text}]")
        out.append(ln); hist.append(c)
        if len(hist) > 40: hist = hist[-30:]
    return out

_WC = re.compile(r"(vmcnt|lgkmcnt)\((\d+)\)")
def insert_waits(lines, slack_ds=20, verbose=False):
    out = []
    vm = []
    lg = []
    idx = 0; stack = []
    for ln in lines:
        t = ln.split(";")[0].strip()
        if not t or t.endswith(":") or t.startswith("."):
            out.append(ln); continue
        if t == "PUSHSTATE": stack.append((list(vm), list(lg))); continue
        if t == "POPSTATE": vm, lg = stack.pop(); continue
        if t.startswith("WAITTAG"):
            names = t.split()[1:]
            last = max((i for i, e in enumerate(vm) if e[2] in names), default=-1)
            w = []
            if last >= 0:
                n = min(len(vm) - 1 - last, 63); w.append(f"vmcnt({n})"); vm = vm[len(vm) - n:] if n else []
            if "lgkm0" in names: w.append("lgkmcnt(0)"); lg = []
            if w: out.append("s_waitcnt " + " ".join(w))
            continue
        c = I(ln); idx += 1
        if c.mn == "s_waitcnt":
            for k, n in _WC.findall(t):
                n = int(n)
                if k == "vmcnt": vm = vm[len(vm) - n:] if n < len(vm) and n > 0 else ([] if n == 0 else vm)
                else: lg = lg[len(lg) - n:] if n < len(lg) and n > 0 else ([] if n == 0 else lg)
            out.append(ln); continue
        if c.mn == "s_endpgm" or c.mn == "s_branch":
            out.append(ln); vm = []; lg = []; continue
        touch = c.r | c.w
        w = []
        last = max((i for i, e in enumerate(vm) if e[0] & touch), default=-1)
        if last >= 0:
            n = len(vm) - 1 - last
            n = min(n, 63); w.append(f"vmcnt({n})"); vm = vm[len(vm) - n:] if n else []
        last = max((i for i, (d, _) in enumerate(lg) if d & touch), default=-1)
        if last >= 0:
            while last + 1 < len(lg) and idx - lg[last + 1][1] >= slack_ds: last += 1
            n = min(len(lg) - 1 - last, 15); w.append(f"lgkmcnt({n})"); lg = lg[len(lg) - n:] if n else []
        if w: out.append("s_waitcnt " + " ".join(w))
        out.append(ln)
        if c.kind == "vmem" and c.mn not in ("buffer_wbl2x",): vm.append((set(c.w), idx, (re.search(r"tag=(\w+)", ln) or [None, None])[1]))
        elif c.kind == "ds": lg.append((set(c.w), idx))
        elif c.mn.startswith(("s_load", "s_memtime", "s_memrealtime", "s_buffer_load")):
            assert not lg or True
    return out

import subprocess, tempfile, os
def inst_sizes(lines):
    src = '.amdgcn_target "amdgcn-amd-amdhsa--gfx950"\n.text\nL_CODE_BEGIN:\n' + "\n".join(l for l in lines if not l.startswith(".")) + "\nL_CODE_END:\n"
    d = tempfile.mkdtemp()
    open(d + "/a.s", "w").write(src)
    subprocess.run(["clang", "-x", "assembler", "-target", "amdgcn-amd-amdhsa", "-mcpu=gfx950", "-c", d + "/a.s", "-o", d + "/a.o"], check=True)
    out = subprocess.run(["llvm-objdump", "-d", "--mcpu=gfx950", d + "/a.o"], capture_output=True, text=True).stdout
    sz = []
    for l in out.split("\n"):
        m = re.search(r"//\s*[0-9A-F]+:\s*((?:[0-9A-F]{8}\s*)+)", l)
        if m: sz.append(4 * len(m.group(1).split()))
    return sz

_NOPROMO = ("v_readfirstlane", "v_nop", "v_accvgpr", "v_permlane")
def align8(lines, minrun=3):
    idx = [i for i, l in enumerate(lines) if not (l.endswith(":") or l.startswith("."))]
    sz = inst_sizes(lines)
    assert len(sz) == len(idx), (len(sz), len(idx))
    out = list(lines); ins = {}
    par = 0; cand = None; npro = nnop = 0
    for k, i in enumerate(idx):
        mn = lines[i].split()[0]
        if sz[k] == 4:
            if mn.startswith("v_") and not mn.startswith(_NOPROMO) and not mn.endswith(("_e64", "_dpp", "_sdwa")): cand = i
            par ^= 1
        else:
            if par:
                run = 0
                while k + run < len(idx) and sz[k + run] == 8: run += 1
                if cand is not None:
                    p = out[cand].split(None, 1); out[cand] = p[0] + "_e64 " + p[1]; par = 0; npro += 1
                elif run >= minrun:
                    prev = lines[idx[k - 1]].split()[0]
                    ins[i] = "s_nop 0"; par = 0; nnop += 1
            cand = None
    res = []
    for i, l in enumerate(out):
        if i in ins: res.append(ins[i])
        res.append(l)
    return res, npro, nnop
```

```python
import sys
sys.path.insert(0, "dev")
from asmlib import *

KN = "concat_heads__ssm_conv_h3__linear_attn_block__prompt"
WS_KVFLG = 0x0000
WS_YFLG  = 0x2000
WS_UFLG  = 0x4800
WS_QFLAG = 0x5000
WS_CNT   = 0x8000
WS_KV    = 0xD000
NZERO    = 56
TP = 4224
WS_UT    = 0x100000
WS_YT    = 0x400000
WS_PQ    = 0x700000
WS_STAMP = 0xA00000
WS_SIZE  = 0xB00000
LDS_BYTES = 163840
HALF = 81920
L_BAR = HALF - 64
L_SIG = HALF - 60
SGRP, SLB, SBT, SW8, SLD = 74, 75, 76, 77, 72
LOG2E = 0x3FB8AA3B
EPS = 0x358637BD

P_Q, P_K, P_V, P_SH, P_H, P_D, P_X, P_W, P_WO, P_OUT, P_DBG, P_WS = [4 + 2 * i for i in range(12)]
SRD0, SRD1, SRD2, SRD3, SRD4, SRDWS = 28, 32, 36, 40, 44, 48
SW = 3

def srd(a, d, p, nbytes):
    a(f"s_mov_b32 s{d}, s{p}\n s_and_b32 s{d+1}, s{p+1}, 0xffff\n s_mov_b32 s{d+2}, {nbytes}\n s_mov_b32 s{d+3}, 0x20000")
def sq(d): return f"s[{d}:{d+3}]"
def v4(r): return f"v[{r}:{r+3}]"
def v2(r): return f"v[{r}:{r+1}]"

class Cfg:
    stamps = False
    rot = False
    gonly = 0
    ahead0 = 4
    ahead = 4
    bpos = 3
    lprio = 3
    cprio = 2
    psleep = 4
    qlate = 3
    pprio = 0
    qit = 4
    cgate = 4
    gpos = 2
    wowarm = 0
    pqfirst = 2
    pearly = 1
    mprio = 3
    sig0 = 1
    krep = 1
    fmode = 0
    sdel = 10
    x_qd = 0
    x_pd = 0
    al = 0
    zp = 1
    wpipe = 1
    mix = 0
    qearly = 0
    pk = 0
    lite = 0
    nrep = 1
    kvall = 0
    yall = 0
    uall = 0
    vprio = 0
    fbase = 22
    tail2 = 1
    tlb = 0
    pwait = 1
    eprio = 3
    fprio = 3
    qrel = 8
    qst = 1
    osc = 1
    gate = 1
    usig = 4
    qbar = 1
    spf = 0
    slab = 0
    enc = 0
    role = 0
    pmode = 0
    x_noq = 0
    x_plain = 0
    x_pend = 0
    x_nost = 0
cfg = Cfg()

NSTAMP = 10
def stamp(a, i, force=False):
    if cfg.lite and i != NSTAMP - 1: return
    if cfg.slab and not force and i != NSTAMP - 1 and cfg.role in (7, 4, 5): return
    if cfg.enc and cfg.enc == cfg.role * 10 + i:
        a("s_memrealtime s[96:97]\n s_waitcnt lgkmcnt(0)")
    if cfg.stamps:
        a(f"s_memrealtime s[{80+2*i}:{81+2*i}]\n s_waitcnt lgkmcnt(0)")
def stamps_out(a):
    if not cfg.stamps: return
    a("s_waitcnt vmcnt(0) lgkmcnt(0)")
    stamp(a, NSTAMP - 1)
    a("s_memtime s[70:71]\n s_waitcnt lgkmcnt(0)\n s_sub_u32 s101, s70, s101")
    a(f"s_getreg_b32 s52, hwreg(HW_REG_HW_ID)\n s_getreg_b32 s53, hwreg(HW_REG_XCC_ID)")
    for i in range(NSTAMP): a(f"v_mov_b32 v{16+i}, s{80+2*i}")
    a(f"v_mov_b32 v26, s52\n v_mov_b32 v27, s53\n v_mov_b32 v28, s100\n v_mov_b32 v29, s2\n v_mov_b32 v30, s101\n v_mov_b32 v31, 0")
    a(f"s_lshl_b32 s54, s2, 9\n s_lshl_b32 s55, s{SW8}, 6\n s_add_u32 s54, s54, s55\n s_add_u32 s54, s54, {WS_STAMP}")
    a(f"v_mov_b32 v32, 0\n s_mov_b64 exec, 1")
    for i in range(4): a(f"buffer_store_dwordx4 {v4(16+4*i)}, v32, {sq(SRDWS)}, s54 offen offset:{16*i}")
    a("s_mov_b64 exec, -1")
def tag(a, t):
    cfg.role = t
    if cfg.stamps: a(f"s_lshl_b32 s100, s100, 4\n s_add_u32 s100, s100, {t}")

def prologue(a, name, nwg):
    a.label(name)
    if cfg.enc: a("s_memrealtime s[98:99]\n s_memrealtime s[96:97]")
    a(f"""s_load_dwordx16 s[4:19], s[0:1], 0
    s_load_dwordx8 s[20:27], s[0:1], 64
    s_cmp_ge_u32 s2, {nwg}
    s_cbranch_scc1 L_END
    v_and_b32 v1, 63, v0
    v_lshrrev_b32 v2, 6, v0
    s_mov_b32 s{SBT}, 0
    v_readfirstlane_b32 s{SW8}, v2
    v_mov_b32 v12, 0
    s_mov_b32 s{SLD}, 0""")
    if cfg.stamps:
        for i in range(NSTAMP): a(f"s_mov_b32 s{80+2*i}, 0")
        a("s_mov_b32 s100, 0\n s_memrealtime s[80:81]\n s_memtime s[98:99]")
    a(f"""s_and_b32 s{SW}, s{SW8}, 3
    s_lshr_b32 s{SGRP}, s{SW8}, 2
    s_mul_i32 s{SLB}, s{SGRP}, {HALF}""")

def init_wave(a, name):
    a("s_getpc_b64 s[52:53]")
    a.label(f"L_PC{name}")
    a(f"""s_lshr_b32 s54, s2, 3
    s_and_b32 s54, s54, 7
    s_lshl_b32 s54, s54, 13
    v_lshlrev_b32 v3, 7, v1
    v_add_u32 v3, s54, v3
    s_sub_u32 s52, s52, L_PC{name}-L_CODE_BEGIN
    s_subb_u32 s53, s53, 0
    v_min_u32 v3, L_CODE_END-L_CODE_BEGIN-4, v3
    global_load_dword v15, v3, s[52:53]""")
    lds_init(a)
    if cfg.tlb:
        n = cfg.tlb
        a(f"s_waitcnt lgkmcnt(0)\n s_mov_b64 exec, {(1 << n) - 1}")
        for k, (p, size) in enumerate(((P_WS, WS_STAMP), (P_OUT, 2048 * 2560), (P_Q, 2048 * 1280), (P_H, 640 * 4096), (P_WO, 640 * 1280))):
            st = (size - 128) // (n - 1) // 128 * 128
            a(f"s_mov_b32 s54, {st}\n v_mul_lo_u32 v3, v1, s54\n global_load_dword v{250+k}, v3, s[{p}:{p+1}]")
        a("s_mov_b64 exec, -1")

def lds_init(a):
    a(f"""v_and_b32 v4, 15, v1
    v_lshlrev_b32 v4, 2, v4
    v_bfe_u32 v5, v1, 4, 1
    v_mul_u32_u24 v5, {HALF}, v5
    v_add_u32 v4, v4, v5
    v_add_u32 v4, {L_BAR}, v4
    v_mov_b32 v5, 0
    ds_write_b32 v4, v5""")

def args_ready(a):
    a("s_waitcnt lgkmcnt(0)")
    if cfg.stamps: a("s_mov_b32 s101, s98")
    srd(a, SRDWS, P_WS, WS_SIZE if cfg.stamps else WS_STAMP)
    srd(a, SRD4, P_DBG, 256)

def bar_arrive(a):
    a(f"""v_mov_b32 v13, s{SLB}
    v_mov_b32 v14, 1
    v_add_u32 v13, {L_BAR}, v13
    s_add_u32 s{SBT}, s{SBT}, 4
    s_mov_b64 exec, 1
    ds_add_u32 v13, v14
    s_mov_b64 exec, -1""")
def gate_arrive(a):
    a(f"""v_mov_b32 v13, s{SLB}
    v_mov_b32 v14, 1
    v_add_u32 v13, {L_BAR}, v13
    s_mov_b64 exec, 1
    ds_add_u32 v13, v14 offset:8
    s_mov_b64 exec, -1""")
def bar_wait(a, addr_ok=False):
    n = bar_wait.n; bar_wait.n += 1
    if not addr_ok: a(f"v_mov_b32 v13, s{SLB}\n v_add_u32 v13, {L_BAR}, v13")
    a.label(f"L_BW_{n}")
    a(f"""ds_read_b32 v14, v13
    s_waitcnt lgkmcnt(0)
    v_cmp_gt_u32 vcc, s{SBT}, v14
    s_nop 1
    s_cbranch_vccnz L_BW_{n}""")
bar_wait.n = 0

def phi_block(regs_, temps):
    out = []
    n = len(temps)
    for g in range(0, len(regs_), n):
        grp = regs_[g:g + n]
        if cfg.pk:
            for k in range(0, len(grp), 2): out.append(f"v_pk_mul_f32 {v2(temps[k])}, {v2(grp[k])}, s[70:71] op_sel_hi:[1,0]")
            for r, t in zip(grp, temps): out.append(f"v_exp_f32 v{t}, v{t} clamp"); out.append(f"v_max_f32 v{r}, s71, v{r}")
            for k in range(0, len(grp), 2): out.append(f"v_pk_add_f32 {v2(grp[k])}, {v2(grp[k])}, {v2(temps[k])}")
            continue
        for r, t in zip(grp, temps): out.append(f"v_mul_f32 v{t}, s70, v{r}")
        for r, t in zip(grp, temps): out.append(f"v_exp_f32 v{t}, v{t} clamp"); out.append(f"v_max_f32 v{r}, s71, v{r}")
        for r, t in zip(grp, temps): out.append(f"v_add_f32 v{r}, v{r}, v{t}")
    return out

def probe(vdst, voff, s_off, srdq=SRDWS):
    if cfg.pmode == 3:
        return f"v_mov_b32 v{vdst}, -1\n s_mov_b64 exec, 3\n v_mov_b32 v{vdst}, 0\n buffer_atomic_add v{vdst}, v{voff}, {sq(srdq)}, {s_off} offen sc0 sc1\n s_mov_b64 exec, -1"
    return f"buffer_load_dword v{vdst}, v{voff}, {sq(srdq)}, {s_off} offen " + ["sc1", "sc0 sc1", "sc0 sc1 nt"][cfg.pmode]
def check(a, name, vdst, voff, s_off, target, srdq=SRDWS):
    a(f"v_cmp_gt_u32 vcc, {target}, v{vdst}\n s_mov_b32 s78, 0\n s_nop 0\n s_cbranch_vccz L_OK_{name}")
    a("PUSHSTATE")
    a.label(f"L_POLL_{name}")
    a(f"""s_sleep {cfg.psleep}
    {probe(vdst, voff, s_off, srdq)}
    s_add_u32 s78, s78, 1
    s_waitcnt vmcnt(0)
    v_cmp_gt_u32 vcc, {target}, v{vdst}
    s_cmp_ge_u32 s78, 0x20000
    s_cbranch_scc1 L_OK_{name}
    s_cbranch_vccnz L_POLL_{name}""")
    a("POPSTATE")
    a.label(f"L_OK_{name}")
def zero_probe(a, vd, vz): a(f"v_mov_b32 v{vz}, 128\n" + probe(vd, vz, "0", SRD4))
def zero_check(a, name, vd, vz): check(a, "z" + name, vd, vz, "0", 1, SRD4)
def zero_wave(a):
    a(f"""v_lshlrev_b32 v8, 4, v1
    v_mov_b32 v16, 0
    v_mov_b32 v17, 0
    v_mov_b32 v18, 0
    v_mov_b32 v19, 0
    s_and_b32 s54, s2, 63
    s_lshl_b32 s54, s54, 11
    s_mov_b32 s79, 1
    s_mov_b32 s78, 1""")
    args_ready(a)
    if cfg.slab == 5: stamp(a, 5, True)
    a(f"""buffer_store_dwordx4 v[16:19], v8, {sq(SRDWS)}, s54 offen sc1
    buffer_store_dwordx4 v[16:19], v8, {sq(SRDWS)}, s54 offen offset:1024 sc1
    s_waitcnt vmcnt(0)
    s_atomic_add s79, s[{P_DBG}:{P_DBG+1}], 0 glc
    s_waitcnt lgkmcnt(0)
    s_cmp_lg_u32 s79, {NZERO-1}
    s_cbranch_scc1 L_ZW
    s_atomic_add s78, s[{P_DBG}:{P_DBG+1}], 128
    s_waitcnt lgkmcnt(0)""")
    a.label("L_ZW")
    if cfg.slab == 5: stamp(a, 6, True)

def signal(a, s_off, nwaves, ldsaddr, narr=1, rstride=128):
    n = signal.n; signal.n += 1
    a(f"""v_mov_b32 v13, {ldsaddr}
    v_mov_b32 v14, 1
    s_add_u32 s68, s{P_WS}, s{s_off}
    s_addc_u32 s69, s{P_WS+1}, 0
    s_mov_b32 s78, 1
    s_waitcnt vmcnt(0)
    s_mov_b64 exec, 1
    ds_add_rtn_u32 v12, v13, v14
    s_mov_b64 exec, -1
    s_waitcnt lgkmcnt(0)
    v_readfirstlane_b32 s79, v12
    s_cmp_lg_u32 s79, {nwaves-1}
    s_cbranch_scc1 L_SIG_{n}""")
    if narr > 1:
        a(f"""s_mov_b32 s79, 1
        s_atomic_add s79, s[68:69], {WS_CNT} glc
        s_waitcnt lgkmcnt(0)
        s_cmp_lg_u32 s79, {narr-1}
        s_cbranch_scc1 L_SIG_{n}""")
    for r in range(cfg.nrep if narr > 1 else 1): a(f"s_atomic_add s78, s[68:69], {r*rstride}")
    a("s_waitcnt lgkmcnt(0)")
    a.label(f"L_SIG_{n}")
signal.n = 0

def conv_ids(a):
    a("""s_and_b32 s52, s2, 7
    s_mul_i32 s52, s52, 20
    s_lshr_b32 s53, s2, 3
    s_sub_u32 s53, s53, 12
    s_add_u32 s52, s52, s53""")
def sprefetch(a, p, s_off, n):
    a(f"s_add_u32 s68, s{p}, s{s_off}\n s_addc_u32 s69, s{p+1}, 0")
    for i in range(n): a(f"s_load_dword s79, s[68:69], {128*i}")
    a("s_waitcnt lgkmcnt(0)")

def last_barrier(a, name, n_younger):
    a(f"s_cmp_eq_u32 s{SLD}, 0\n s_cbranch_scc1 L_LB_{name}\n PUSHSTATE\n s_waitcnt vmcnt({n_younger})\n s_barrier\n s_setprio 0\n POPSTATE")
    a.label(f"L_LB_{name}")

G_ACC, G_B, G_X = 16, 96, 176
G_SLOT = 36864
def slot_off(j): return ((j & 1) ^ 1) * G_SLOT
def slot_half(j): return (j % 4) >> 1
def g_ids(a):
    a(f"""s_and_b32 s52, s2, 7
    s_lshr_b32 s53, s2, 3
    s_and_b32 s57, s52, 3
    s_lshl_b32 s57, s57, 2
    s_and_b32 s54, s53, 3
    s_add_u32 s57, s57, s54
    s_lshr_b32 s52, s52, 2
    s_lshr_b32 s54, s53, 2
    s_lshl_b32 s58, s52, 2
    s_add_u32 s58, s58, s54
    s_lshl_b32 s52, s52, 1
    s_add_u32 s52, s52, s54
    s_add_u32 s52, s52, 4
    s_cmp_ge_u32 s54, 4
    s_cselect_b32 s58, s52, s58
    s_lshl_b32 s66, s{SW}, 12
    s_add_u32 s66, s66, 20480""")

def g_setup_x(a):
    if cfg.rot:
        a(f"""s_mul_i32 s62, s57, 3
        s_lshl_b32 s59, s58, 1
        s_add_u32 s62, s62, s59
        s_mul_i32 s59, s62, 205
        s_lshr_b32 s59, s59, 11
        s_mul_i32 s59, s59, 10
        s_sub_u32 s62, s62, s59
        s_lshl_b32 s64, s62, 7
        s_mul_i32 s63, s62, {64*3840}""")
    else:
        a("s_mov_b32 s64, 0\n s_mov_b32 s63, 0")
    a(f"""v_lshrrev_b32 v240, 3, v1
    s_lshl_b32 s59, s57, 7
    s_lshl_b32 s54, s{SW}, 5
    s_add_u32 s59, s59, s54
    v_add_u32 v240, s59, v240
    v_mul_u32_u24 v240, 1280, v240
    v_lshrrev_b32 v241, 4, v1
    v_and_b32 v242, 7, v1
    v_xor_b32 v242, v242, v241
    v_lshl_add_u32 v7, v242, 4, v240
    v_xor_b32 v242, 4, v242
    v_lshl_add_u32 v8, v242, 4, v240
    v_add_u32 v8, {10240-1024}, v8
    v_add_u32 v9, {20480-2048}, v7
    v_add_u32 v10, {20480-2048}, v8""")

def g_setup_w(a, hook=None):
    a(f"""s_mul_i32 s59, s58, 160
    s_add_u32 s60, s59, 1280
    s_add_u32 s61, s59, {2560-160}
    s_sub_u32 s59, s58, 8
    s_mul_i32 s59, s59, 320
    s_cmp_ge_u32 s58, 8
    s_cselect_b32 s60, s59, s60
    s_cselect_b32 s61, s59, s61
    s_mul_i32 s59, s{SW}, {16*3840}
    s_add_u32 s60, s60, s59
    s_add_u32 s61, s61, s59
    s_mul_i32 s65, s{SW}, 5120""")
    a(f"v_mov_b32 v244, s60\n v_mov_b32 v245, s61")
    for i in range(5):
        assert all(((64 * i + l) * 3277) >> 16 == (64 * i + l) // 20 for l in range(64))
        a(f"""v_add_u32 v240, {64*i}, v1
        v_mul_u32_u24 v241, 3277, v240
        v_lshrrev_b32 v241, 16, v241
        v_mul_u32_u24 v242, 20, v241
        v_sub_u32 v240, v240, v242""")
        if i == 2: a("v_lshrrev_b32 v242, 4, v1\n v_and_b32 v242, 2, v242\n v_xor_b32 v240, v240, v242")
        if i > 2: a("v_xor_b32 v240, 2, v240")
        a(f"""v_cmp_gt_u32 vcc, 10, v240
        v_mul_u32_u24 v241, 3840, v241
        v_lshl_add_u32 v240, v240, 4, v241
        v_cndmask_b32 v242, v245, v244, vcc""")
        if i in (0, 4): a(f"v_add_u32 v{2+i}, v240, v242")
        else: a(f"v_add_u32 v240, v240, v242\n v_subrev_u32 v{2+i}, {1024*i}, v240")
        if hook: hook(i)

def g_setup2(a):
    a(f"""v_lshrrev_b32 v241, 4, v1
    v_bfe_u32 v242, v1, 2, 2
    v_lshl_add_u32 v242, v241, 3, v242
    v_mul_u32_u24 v242, 320, v242
    v_and_b32 v243, 3, v1
    v_lshl_add_u32 v242, v243, 3, v242
    v_and_b32 v243, 1, v241
    v_lshlrev_b32 v243, 5, v243
    v_add_u32 v9, v242, v243
    v_sub_u32 v10, v242, v243
    v_and_b32 v240, 15, v1
    v_lshrrev_b32 v242, 1, v240
    v_xor_b32 v242, v242, v241
    v_lshlrev_b32 v240, 7, v240
    v_add_u32 v240, s66, v240
    v_lshl_add_u32 v11, v242, 4, v240
    v_xor_b32 v242, 4, v242
    v_lshl_add_u32 v12, v242, 4, v240
    s_mov_b32 s70, {LOG2E}
    s_mov_b32 s71, {EPS}""")
    for k in range(4): a(f"v_add_u32 v{2+k}, {HALF}, v{9+k}")

def g_loadx(j):
    o = [f"s_add_u32 m0, s66, {slot_half(j) * HALF + slot_off(j)}", "s_nop 0"]
    for i in range(4): o.append(f"buffer_load_dwordx4 v{7+i}, {sq(SRD0)}, s64 offen offset:{1024*i} lds ; tag=S{j}")
    o += ["s_add_u32 s64, s64, 128"]
    if cfg.rot: o += ["s_cmp_eq_u32 s64, 1280", "s_cselect_b32 s64, 0, s64"]
    return o
def g_loadw(j):
    base = slot_half(j) * HALF + slot_off(j)
    o = [f"s_add_u32 m0, s65, {base}", "s_nop 0"]
    for i in range(4): o.append(f"buffer_load_dwordx4 v{2+i}, {sq(SRD1)}, s63 offen offset:{1024*i} lds ; tag=S{j}")
    o += [f"s_add_u32 m0, s65, {base + 4096}", "s_nop 0", f"buffer_load_dwordx4 v6, {sq(SRD1)}, s63 offen lds ; tag=S{j}"]
    o += [f"s_add_u32 s63, s63, {64*3840}"]
    if cfg.rot: o += [f"s_cmp_eq_u32 s63, {640*3840}", "s_cselect_b32 s63, 0, s63"]
    return o
def g_xreads(j):
    return [f"ds_read_b128 {v4(G_X + (j&1)*16 + ks*8 + sub*4)}, v{(4 if slot_half(j) else 11)+ks} offset:{slot_off(j) + sub*2048}" for ks in range(2) for sub in range(2)]
def g_reads(t):
    j = t // 2
    o = []
    for n in range(10):
        for h in range(2):
            off = slot_off(j) + (t & 1) * 10240 + h * 1280 + 32 * n
            o.append(f"ds_read_b64_tr_b16 {v2(G_B + (t & 1) * 40 + n * 4 + 2 * h)}, v{(2 if slot_half(j) else 9) + (n & 1)} offset:{off}")
    return o

def role_loader(a):
    a(f"s_setprio {cfg.lprio}")
    g_setup_x(a)
    a("s_waitcnt lgkmcnt(0)")
    srd(a, SRD0, P_X, 2048 * 1280)
    if cfg.slab == 5: stamp(a, 5, True)
    if cfg.x_qd: a(f"s_cmp_lt_u32 s58, 8\n s_cbranch_scc1 L_XQD\n s_sleep {cfg.x_qd}"); a.label("L_XQD")
    a.extend(g_loadx(0))
    srd(a, SRD1, P_W, 640 * 3840)
    seq = []
    for j in range(10): seq += [g_loadx(j), g_loadw(j)]
    pos = 1
    if cfg.wpipe:
        w0 = g_loadw(0)
        parts = [w0[0:3], w0[3:4], w0[4:5], w0[5:6], w0[6:]]
        g_setup_w(a, lambda i: a.extend(parts[i]))
        pos = 2
    else: g_setup_w(a)
    def upto(n):
        nonlocal pos
        while pos < min(n, 20): a.extend(seq[pos]); pos += 1
    upto(cfg.ahead0)
    args_ready(a)
    stamp(a, 1)
    for j in range(9):
        a(f"WAITTAG S{j}")
        if cfg.slab == 2 and j < 8: stamp(a, j + 1, True)
        a("s_barrier")
        if cfg.slab == 1 and j < 8: stamp(a, j + 1, True)
        if j == 0: stamp(a, 2)
        if j == 6: zero_probe(a, 14, 13)
        upto(min(2 * (j + 1) + cfg.ahead, 2 * (j + 4)))
    zero_check(a, "ld", 14, 13)
    a(f"s_lshl_b32 s53, s58, 7\n s_add_u32 s6, s{P_WS}, s53\n s_addc_u32 s7, s{P_WS+1}, 0")
    a(f"s_mov_b32 s{SLD}, 1")
    stamp(a, 3)

def g_main(a, transposed, tail):
    a("s_waitcnt lgkmcnt(0)\n s_barrier")
    stamp(a, 1)
    a.extend(g_xreads(0) + g_reads(0))
    def mfma(t, n, sub):
        j, ks = t // 2, t % 2
        acc = v4(G_ACC + (sub * 10 + n) * 4)
        x = v4(G_X + (j & 1) * 16 + ks * 8 + sub * 4)
        b = v4(G_B + (t & 1) * 40 + n * 4)
        c = "0" if t == 0 else acc
        return f"v_mfma_f32_16x16x32_bf16 {acc}, {b}, {x}, {c}" if transposed else f"v_mfma_f32_16x16x32_bf16 {acc}, {x}, {b}, {c}"
    for t in range(18 if cfg.tail2 else 19):
        j, ks = t // 2, t % 2
        mf = [mfma(t, n, sub) for n in range(10) for sub in range(2)]
        rd = g_reads(t + 1)
        if ks == 1:
            rd = g_xreads(j + 1) + rd
            a.extend(mf[:cfg.bpos]); a("s_waitcnt lgkmcnt(0)" + "\n s_barrier")
            a.extend(interleave(mf[cfg.bpos:], rd))
        else:
            a.extend(interleave(mf, rd))
    if cfg.tail2:
        a.extend(interleave([mfma(18, n, sub) for n in range(5) for sub in range(2)], g_reads(19)))
        tail([mfma(19, n, sub) for n in range(5) for sub in range(2)] + [mfma(t, n, sub) for t in (18, 19) for n in range(5, 10) for sub in range(2)])
    else:
        tail([mfma(19, n, sub) for n in range(10) for sub in range(2)])

B_KS = 8416
def b2_head(a, vd):
    a(f"""s_mul_i32 s57, s56, 205
    s_lshr_b32 s57, s57, 10
    s_mul_i32 s54, s57, 5
    s_sub_u32 s58, s56, s54""")
    assert all((v * 205) >> 10 == v // 5 for v in range(216))
    srd(a, SRD0, P_WO, 640 * 1280)
    a(f"""s_lshl_b32 s59, s58, 8
    s_mul_i32 s53, s{SW}, {160*1280}
    s_add_u32 s59, s59, s53
    s_lshl_b32 s53, s{SW}, 6
    s_mul_i32 s65, s{SW}, 20480
    s_add_u32 s65, s65, s{SLB}
    v_and_b32 v240, 15, v1
    v_lshrrev_b32 v241, 4, v1
    v_lshlrev_b32 v240, 4, v240
    v_xor_b32 v240, s53, v240
    v_mul_u32_u24 v241, {8*1280}, v241
    v_add3_u32 v{vd}, v240, v241, s59""")
def b2_dma(kstep, slot, vd=2):
    return [[f"s_add_u32 m0, s65, {slot*B_KS + i*1056}", f"s_mov_b32 s63, {(32*kstep + i)*1280}",
             f"buffer_load_dwordx4 v{vd}, {sq(SRD0)}, s63 offen lds ; tag=K{kstep}"] for i in range(8)]

def role_q(a):
    a(f"""s_lshl_b32 s52, s57, 3
    s_lshl_b32 s53, s{SW}, 1
    s_add_u32 s52, s52, s53
    s_mul_i32 s52, s52, 20
    s_sub_u32 s53, s58, 8
    s_mul_i32 s54, s53, 5
    s_add_u32 s52, s52, s54
    s_lshl_b32 s52, s52, 10
    s_add_u32 s52, s52, {WS_PQ}
    s_mul_i32 s55, s53, 17
    s_add_u32 s55, s55, s57
    s_lshl_b32 s55, s55, 7
    s_add_u32 s55, s55, {WS_QFLAG}
    v_lshlrev_b32 v6, 4, v1""")
    if cfg.qearly:
        a("s_lshr_b32 s53, s2, 3\n s_sub_u32 s53, s53, 4\n s_and_b32 s56, s2, 7\n s_mul_i32 s56, s56, 27\n s_add_u32 s56, s56, s53")
        b2_head(a, 208)
    def tail(mf):
        bar_arrive(a)
        ep = []
        for c in range(5):
            for sub in range(2):
                r0 = G_ACC + (sub * 10 + 2 * c) * 4
                ep += phi_block(list(range(r0, r0 + 8)), list(range(240, 248)))
                d = G_B + (sub * 5 + c) * 4
                ep += [f"v_cvt_pk_bf16_f32 v{d+k}, v{r0+2*k}, v{r0+2*k+1}" for k in range(4)]
                ep += [f"s_add_u32 s54, s52, {(sub*20+c)*1024}", f"buffer_store_dwordx4 {v4(d)}, v6, {sq(SRDWS)}, s54 offen sc1"]
        n = 2 * (len(mf) - 8)
        a.extend(mf[:8])
        a.extend(interleave(mf[8:], ep[:n]))
        stamp(a, 2)
        if cfg.qearly:
            bar_wait(a, True)
            a.extend(interleave(ep[n:], b2_dma(0, 0, 208) + b2_dma(1, 1, 208), 0, 200))
        else: a.extend(ep[n:])
    g_main(a, True, tail)
    stamp(a, 3)
    signal(a, 55, 4, L_SIG)
    stamp(a, 4)

MV = 224
M_IMG = 8448
def mini_head(a):
    srd(a, SRD0, P_H, 640 * 4096)
    a(f"""s_add_u32 s59, s2, 512
    s_lshl_b32 s60, s59, 12
    s_add_u32 s62, s{P_H}, s60
    s_addc_u32 s63, s{P_H+1}, 0
    s_load_dword s64, s[62:63], 0
    s_lshr_b32 s54, s59, 1
    s_lshl_b32 s54, s54, 2
    s_load_dword s65, s[{P_D}:{P_D+1}], s54
    s_lshl_b32 s54, s{SW}, 10
    v_lshl_add_u32 v6, v1, 4, s54
    buffer_load_dwordx4 {v4(MV)}, v6, {sq(SRD0)}, s60 offen
    buffer_load_dwordx4 {v4(MV+4)}, v6, {sq(SRD0)}, s60 offen offset:4
    v_mov_b32 v8, 0
    s_mov_b32 s61, {WS_UFLG + 1024}
    s_mul_i32 s55, s59, {TP}
    s_waitcnt lgkmcnt(0)
    s_add_u32 s62, s55, {WS_UT}
    s_add_u32 s55, s55, {WS_YT}
    s_lshr_b32 s63, s59, 6
    s_lshl_b32 s63, s63, 10
    s_add_u32 s63, s63, {WS_YFLG}
    s_lshl_b32 s53, s65, 16
    s_and_b32 s54, s65, 0xffff0000
    s_bitcmp1_b32 s59, 0
    s_cselect_b32 s53, s54, s53
    s_lshl_b32 s54, s64, 16
    v_mov_b32 v240, s54
    v_add_f32 v240, s53, v240
    s_and_b32 s54, s64, 0xffff0000
    v_mov_b32 v241, s54
    v_cvt_pk_bf16_f32 v{MV+12}, v240, v241
    v_and_b32 v240, 15, v1
    v_lshrrev_b32 v241, 4, v1
    v_add_u32 v242, 1, v240
    v_bfe_u32 v243, v242, 1, 1
    v_mul_u32_u24 v243, {C_HCOPY}, v243
    v_lshrrev_b32 v244, 2, v242
    v_lshl_add_u32 v244, v241, 3, v244
    v_lshl_add_u32 v243, v244, 3, v243
    s_lshr_b32 s53, s{SW}, 1
    s_and_b32 s54, s{SW}, 1
    s_lshl_b32 s53, s53, 7
    s_lshl_b32 s54, s54, 4
    s_add_u32 s53, s53, s54
    s_lshl_b32 s54, s53, 1
    s_add_u32 s54, s54, {M_IMG}
    v_add_u32 v{MV+13}, s54, v243
    v_and_b32 v242, 1, v242
    v_lshlrev_b32 v{MV+14}, 4, v242
    v_lshlrev_b32 v242, 1, v241
    v_sub_u32 v242, v242, v240
    v_add_u32 v242, 15, v242
    s_add_u32 s53, s53, {M_IMG + 2*C_HCOPY}
    v_lshl_add_u32 v{MV+15}, v242, 4, s53
    v_lshrrev_b32 v242, 1, v1
    v_and_b32 v243, 1, v1
    v_mul_u32_u24 v243, {C_UH}, v243
    v_add_u32 v242, v242, v243
    s_lshl_b32 s53, s{SW}, 9
    s_add_u32 s53, s53, {M_IMG + 2*C_HCOPY}
    v_lshl_add_u32 v248, v242, 4, s53
    v_and_b32 v242, 1, v241
    v_mul_u32_u24 v242, {C_UH}, v242
    v_add_u32 v242, v242, v240
    v_lshlrev_b32 v249, 4, v242
    v_and_b32 v242, 1, v1
    v_lshlrev_b32 v242, 4, v242
    v_bfe_u32 v243, v1, 1, 1
    v_mul_u32_u24 v243, {C_HCOPY}, v243
    v_add_u32 v250, v242, v243
    s_lshl_b32 s53, s{SW}, 13
    s_add_u32 s53, s53, {21504 - 8192}
    s_cmp_eq_u32 s{SW}, 0
    s_cselect_b32 s53, 0, s53
    v_lshlrev_b32 v240, 6, v240
    v_lshl_add_u32 v240, v241, 4, v240
    v_add_u32 v251, s53, v240
    v_lshlrev_b32 v252, 1, v6""")

def mini_conv(a, uld):
    ACC, A, RAW, B = 16, 48, 80, 160
    a(f"""ds_write_b128 v6, {v4(MV)} offset:{M_IMG + 32}
    ds_write_b128 v6, {v4(MV+4)} offset:{M_IMG + C_HCOPY + 32}
    s_cmp_lg_u32 s{SW}, 0
    s_cbranch_scc1 L_MC0
    v_mov_b32 v56, 0
    v_mov_b32 v57, 0
    v_mov_b32 v58, 0
    v_mov_b32 v59, 0
    ds_write_b128 v250, v[56:59] offset:{M_IMG}
    ds_write_b32 v8, v{MV+12} offset:{M_IMG + 32}
    ds_write_b32 v8, v{MV+12} offset:{M_IMG + C_HCOPY + 28}
    ds_write_b128 v249, v[56:59] offset:{M_IMG + 2*C_HCOPY + 128*16}""")
    a.label("L_MC0")
    a("s_waitcnt vmcnt(0)")
    if cfg.sig0:
        a(f"""v_mov_b32 v13, {L_BAR}
        v_mov_b32 v14, 1
        s_mov_b64 exec, 1
        ds_add_rtn_u32 v12, v13, v14 offset:8
        s_mov_b64 exec, -1
        s_mov_b32 s79, 1
        s_waitcnt lgkmcnt(0)
        v_readfirstlane_b32 s53, v12
        s_cmp_lg_u32 s53, 3
        s_cbranch_scc1 L_MS0
        s_atomic_add s79, s[6:7], {WS_CNT} glc""")
        a.label("L_MS0")
    else: gate_arrive(a)
    stamp(a, 4)
    a("s_cmp_eq_u32 s67, 1\n s_cbranch_scc1 L_MU1")
    check(a, "mu", 7, 8, "s61", 1)
    a(uld + "\n s_waitcnt vmcnt(0)")
    a.label("L_MU1")
    a(f"ds_write_b128 v248, {v4(MV+8)}")
    bar_arrive(a)
    if cfg.sig0:
        a("s_waitcnt lgkmcnt(0)\n s_cmp_lg_u32 s79, 15\n s_cbranch_scc1 L_MS1\n s_mov_b32 s79, 1")
        if cfg.fmode == 0:
            for r in range(cfg.krep): a(f"s_atomic_add s79, s[6:7], {1024*r}")
        else:
            a(f"v_lshlrev_b32 v12, 10, v1\n s_mov_b64 exec, {(1 << cfg.krep) - 1}\n global_store_dword v12, v14, s[6:7] sc1\n s_mov_b64 exec, -1")
        a.label("L_MS1")
    bar_wait(a, True)
    a(f"s_setprio {cfg.mprio}")
    stamp(a, 5)
    def raw(N1, k): return RAW + N1 * 10 + 2 * k
    rr = [[f"ds_read_b64 {v2(raw(N1, k))}, v{MV+13} offset:{N1*512 + k*8}" for k in ks] for ks in ((0, 1, 2), (3, 4)) for N1 in range(8)]
    br = [[f"ds_read_b128 {v4(B + i*32 + 4*dl)}, v{MV+15} offset:{(14-2*dl)*128 + i*C_UH*16}" for dl in range(8)] for i in range(2)]
    def al(i, N1): return [f"v_alignbit_b32 v{A + 4*N1 + k}, v{raw(N1, 2*i) + k + 1}, v{raw(N1, 2*i) + k}, v{MV+14}" for k in range(4)]
    a.extend(rr[0] + br[0])
    for N1 in range(1, 8): a.extend(rr[N1])
    a.extend(al(0, 0))
    queue = [x for N1 in range(1, 8) for x in al(0, N1)]
    queue = queue[:4] + interleave(queue[4:], br[1] + [x for N1 in range(8) for x in rr[8 + N1]])
    def wr(J): return f"ds_write_b128 v251, {v4(ACC + 4*J)} offset:{1024*J}"
    for i in range(2):
        for N1 in range(8):
            tg = f"v_alignbit_b32 v{A+4*N1+3},"
            pos = min((k for k, q in enumerate(queue) if q.startswith(tg)), default=-1) if not (i == 0 and N1 == 0) else -1
            for q in queue[:pos + 1]: a(q)
            queue = queue[pos + 1:]
            for J in range(N1, 8):
                acc = v4(ACC + 4 * J)
                a(f"v_mfma_f32_16x16x32_bf16 {acc}, {v4(A+4*N1)}, {v4(B + i*32 + 4*(J-N1))}, {'0' if (i == 0 and N1 == 0) else acc}")
                for _ in range(2):
                    if queue: a(queue.pop(0))
            if i == 0: queue += al(1, N1)
            elif N1 >= 2: queue.append(wr(N1 - 2))
    a.extend(queue + [wr(6), wr(7)])
    bar_arrive(a); bar_wait(a, True)
    stamp(a, 6)
    for src in range(4):
        base = 0 if src == 0 else 21504 + 8192 * (src - 1)
        for h in range(2): a(f"ds_read_b128 {v4(48 + 8*src + 4*h)}, v252 offset:{base + 16*h}")
    for r in range(8): a(f"v_add_f32 v{48+r}, v{48+r}, v{56+r}")
    for r in range(8): a(f"v_add_f32 v{64+r}, v{64+r}, v{72+r}")
    for r in range(8): a(f"v_add_f32 v{48+r}, v{48+r}, v{64+r}")
    for d in range(4): a(f"v_cvt_pk_bf16_f32 v{80+d}, v{48+2*d}, v{49+2*d}")
    a(f"buffer_store_dwordx4 v[80:83], v6, {sq(SRDWS)}, s55 offen sc1")
    signal(a, 63, 4, L_SIG, 64)
    stamp(a, 7)

def role_kv(a):
    EX, HB = G_SLOT, 0
    DUMP = HB + 4 * 2048
    AD = 208
    a(f"""v_lshlrev_b32 v240, 4, v1
    s_mul_i32 s52, s{SW}, 10240
    s_add_u32 s52, s52, {EX}
    v_add_u32 v{AD+6}, s52, v240
    s_lshl_b32 s52, s{SW}, 10
    s_add_u32 s52, s52, {EX}
    v_add_u32 v{AD+7}, s52, v240
    v_and_b32 v246, 15, v1
    v_lshrrev_b32 v247, 4, v1
    v_lshlrev_b32 v247, 2, v247
    s_lshl_b32 s52, s{SW}, 2
    v_subrev_u32 v246, s52, v246
    v_subrev_u32 v247, s52, v247
    s_lshl_b32 s53, s{SW}, 11
    v_mov_b32 v245, {DUMP}
    v_lshlrev_b32 v{AD+8}, 2, v1
    v_add_u32 v{AD+9}, s53, v{AD+8}""")
    for k in range(4): a(f"v_mov_b32 v{AD+12+k}, 0x3f803f80")
    k = 0
    for dt in range(2):
        for et in range(2):
            a(f"""v_add_u32 v240, {16*dt}, v247
            v_add_u32 v241, {16*et}, v246
            v_max_u32 v242, v240, v241
            v_cmp_gt_u32 vcc, 20, v242
            v_mul_u32_u24 v241, 80, v241
            v_lshl_add_u32 v241, v240, 2, v241
            v_add_u32 v241, s53, v241
            v_cndmask_b32 v{AD+k}, v245, v241, vcc""")
            k += 1
        a(f"""v_add_u32 v240, {16*dt}, v247
        v_and_b32 v241, 15, v1
        v_mul_u32_u24 v241, 20, v241
        v_max_u32 v242, v240, v241
        v_cmp_gt_u32 vcc, 20, v242
        v_lshlrev_b32 v240, 2, v240
        v_add_u32 v240, s53, v240
        v_add_u32 v240, 1600, v240
        v_cndmask_b32 v{AD+4+dt}, v245, v240, vcc""")
    a(f"""s_lshl_b32 s52, s58, 2
    s_add_u32 s52, s52, s{SW}
    s_mul_i32 s52, s52, 1680
    s_add_u32 s52, s52, {WS_KV}
""")
    a(f"s_lshl_b32 s53, s58, 7\n s_add_u32 s6, s{P_WS}, s53\n s_addc_u32 s7, s{P_WS+1}, 0")
    mini_head(a)
    def tail(mf):
        ep = []
        for t in [0, 1, 5, 2, 6, 7, 3, 8, 9, 4]:
            r0 = G_ACC + t * 4; r1 = G_ACC + (10 + t) * 4
            if t < 5: ep += phi_block(list(range(r0, r0 + 4)) + list(range(r1, r1 + 4)), list(range(240, 248)))
            d = G_B + t * 4
            ep += [f"v_cvt_pk_bf16_f32 v{d}, v{r0}, v{r0+1}", f"v_cvt_pk_bf16_f32 v{d+1}, v{r0+2}, v{r0+3}",
                   f"v_cvt_pk_bf16_f32 v{d+2}, v{r1}, v{r1+1}", f"v_cvt_pk_bf16_f32 v{d+3}, v{r1+2}, v{r1+3}",
                   f"ds_write_b128 v{AD+6}, {v4(d)} offset:{t*1024}"]
        n = 2 * (len(mf) - 6)
        a.extend(mf[:6])
        a.extend(interleave(mf[6:], ep[:n]))
        stamp(a, 2)
        a(probe(7, 8, "s61"))
        a.extend(ep[n:])
    g_main(a, False, tail)
    uld = f"buffer_load_dwordx4 {v4(MV+8)}, v6, {sq(SRDWS)}, s62 offen sc1"
    bar_arrive(a)
    a(f"v_cmp_gt_u32 vcc, 1, v7\n s_mov_b32 s67, 0\n s_nop 0\n s_cbranch_vccnz L_MU0\n PUSHSTATE\n {uld}\n s_mov_b32 s67, 1\n POPSTATE")
    a.label("L_MU0")
    bar_wait(a, True)
    F = 136
    for rg in range(4):
        for q, off in enumerate([0, 5120, 1024, 6144]):
            a(f"ds_read_b128 {v4(F + rg*16 + [0, 2, 1, 3][q]*4)}, v{AD+7} offset:{rg*10240 + off}")
    D = 16
    for rg in range(4):
        for dt in range(2):
            A = v4(F + rg * 16 + dt * 4)
            acc = v4(D + 16 + dt * 4)
            a(f"v_mfma_f32_16x16x32_bf16 {acc}, {A}, {v4(AD+12)}, {'0' if rg == 0 else acc}")
            for et in range(2):
                acc = v4(D + (dt * 2 + et) * 4)
                a(f"v_mfma_f32_16x16x32_bf16 {acc}, {A}, {v4(F + rg*16 + 8 + et*4)}, {'0' if rg == 0 else acc}")
    for k in [4, 0, 1, 5, 2, 3]: a(f"ds_write_b128 v{AD+k}, {v4(D + 4*k)}")
    for i in range(7): a(f"ds_read_b32 v{48+i}, v{AD+9} offset:{256*i}")
    stamp(a, 3)
    for i in range(7):
        if i == 6: a("s_mov_b32 exec_hi, 0xf")
        a(f"buffer_atomic_add_f32 v{48+i}, v{AD+8}, {sq(SRDWS)}, s52 offen offset:{256*i}")
    a("s_mov_b64 exec, -1")
    mini_conv(a, uld)

C_HCOPY = 4224; C_UH = 144; C_WAVE = 2 * C_HCOPY + 2 * C_UH * 16
C_STG = HALF + 4 * C_WAVE; C_STGP = 4160
PV = 224
def WOW():
    if not cfg.wowarm: return ""
    return f"""s_cmp_eq_u32 s{SW8}, 0
    s_cbranch_scc1 L_WW
    s_sub_u32 s52, s2, 192
    s_lshl_b32 s52, s52, 1
    s_add_u32 s52, s52, s{SW8}
    s_sub_u32 s52, s52, 1
    s_mul_i32 s52, s52, 6400
    v_lshlrev_b32 v3, 7, v1
    v_min_u32 v3, 6272, v3
    v_add_u32 v3, s52, v3
    global_load_dword v15, v3, s[{P_WO}:{P_WO+1}]
    s_waitcnt vmcnt(0)
    L_WW:"""
def role_prep(a):
    a(f"""s_and_b32 s52, s2, 7
    s_lshl_b32 s52, s52, 2
    s_bfe_u32 s53, s2, 0x20004
    s_add_u32 s52, s52, s53
    s_lshl_b32 s52, s52, 6
    s_bfe_u32 s65, s2, 0x10003
    s_mul_i32 s53, s65, 320
    s_sub_u32 s54, s{SW8}, 3
    s_lshl_b32 s55, s{SW8}, 1
    s_cmp_ge_u32 s{SW8}, 3
    s_cselect_b32 s54, s54, s55
    s_lshl_b32 s54, s54, 6
    s_add_u32 s53, s53, s54
    v_lshrrev_b32 v240, 3, v1
    v_lshl_add_u32 v241, v240, 3, s52
    v_and_b32 v242, 7, v1
    v_lshl_add_u32 v243, v242, 3, s53
    v_mul_u32_u24 v241, 1280, v241
    v_lshl_add_u32 v{PV}, v243, 1, v241
    s_movk_i32 s55, 5120""")
    def common2(rev):
        a(f"""v_add_u32 v241, s53, v240
        v_mul_u32_u24 v241, {TP}, v241
        v_lshl_add_u32 v{PV+3}, v242, 4, v241
        s_mul_i32 s54, s{SW}, 20480
        s_mul_i32 s63, s{SGRP}, 10240
        s_add_u32 s54, s54, s63
        v_mul_u32_u24 v241, 1040, v242
        v_add_u32 v241, s54, v241""")
        if rev: a("v_sub_u32 v240, 7, v240")
        a(f"""v_lshl_add_u32 v{PV+4}, v240, 4, v241
        v_lshl_add_u32 v{PV+5}, v1, 4, s54
        s_lshl_b32 s64, s52, 1
        s_mov_b32 s70, 0x05040100
        s_mov_b32 s71, 0x07060302""")
    def rds(R): return [f"ds_read_b128 {v4(R+4*i)}, v{PV+5} offset:{1040*i}" for i in range(8)]
    def sts(R, extra): return [x for i in range(8) for x in (f"s_add_u32 s54, s64, {8*TP*i + extra}", f"buffer_store_dwordx4 {v4(R+4*i)}, v{PV+3}, {sq(SRDWS)}, s54 offen sc1")]
    a(f"s_cmp_lt_u32 s{SW8}, 3\n s_cbranch_scc1 L_PQ")
    tag(a, 3)
    a(f"v_subrev_u32 v{PV+1}, 3840, v{PV}\n v_lshlrev_b32 v{PV+2}, 3, v243\n s_waitcnt lgkmcnt(0)")
    srd(a, SRD0, P_K, 2048 * 1280)
    if cfg.x_pd: a(f"s_sleep {cfg.x_pd}")
    K, V, C = 16, 60, 92
    for r in range(3): a(f"buffer_load_dwordx4 {v4(K+4*r)}, v{PV+1}, {sq(SRD0)}, 0 offen offset:{1280*r}")
    for r in range(8): a(f"buffer_load_dwordx4 {v4(K+12+4*r)}, v{PV}, {sq(SRD0)}, {'s55' if r >= 4 else '0'} offen offset:{1280*(r%4)}")
    srd(a, SRD1, P_V, 2048 * 1280); srd(a, SRD3, P_SH, 640 * 8)
    for r in range(4): a(f"buffer_load_dwordx4 {v4(C+4*r)}, v{PV+2}, {sq(SRD3)}, 0 offen offset:{16*r}")
    for r in range(8):
        a(f"buffer_load_dwordx4 {v4(V+4*r)}, v{PV}, {sq(SRD1)}, {'s55' if r >= 4 else '0'} offen offset:{1280*(r%4)}")
    args_ready(a)
    common2(True)
    a(f"s_sub_u32 s64, {WS_UT + 1984*2}, s64\n s_mov_b32 s62, 0xffff0000")
    stamp(a, 1)
    P, T, U, O = 108, 120, 184, 192
    for ch in range(8):
        dw, hi = ch // 2, ch % 2
        sel = "s71" if hi else "s70"
        for s_ in range(-2, 8):
            a(f"v_perm_b32 v{P+s_+2}, v{K+4*(s_+2)+dw}, v{K+4*(s_+3)+dw}, {sel}")
        for s_ in range(8): a(f"v_dot2_f32_bf16 v{T+8*ch+s_}, v{P+s_}, v{C+2*ch+1}, 0")
        for s_ in range(8): a(f"v_dot2_f32_bf16 v{T+8*ch+s_}, v{P+s_+2}, v{C+2*ch}, v{T+8*ch+s_}")
    for ch in range(8):
        dw, hi = ch // 2, ch % 2
        for s_ in range(8):
            a(f"v_and_b32 v{U+s_}, s62, v{V+4*s_+dw}" if hi else f"v_lshlrev_b32 v{U+s_}, 16, v{V+4*s_+dw}")
        for s_ in range(8): a(f"v_mul_f32 v{T+8*ch+s_}, v{T+8*ch+s_}, v{U+s_}")
        o = O + 4 * ch
        for j in range(4): a(f"v_cvt_pk_bf16_f32 v{o+j}, v{T+8*ch+7-2*j}, v{T+8*ch+6-2*j}")
        a(f"ds_write_b128 v{PV+4}, {v4(o)} offset:{128*ch}")
    a.extend(rds(16) + sts(16, 0))
    stamp(a, 2)
    zero_probe(a, 3, 4)
    zero_check(a, "pu", 3, 4)
    a("s_waitcnt vmcnt(0)\n s_barrier")
    stamp(a, 3)
    a(f"s_cmp_eq_u32 s{SGRP}, 1\n s_cbranch_scc1 L_CONV\n s_branch L_PW")
    a.label("L_PQ")
    tag(a, 6)
    a(f"s_cmp_lg_u32 s{SW8}, 2\n s_cbranch_scc1 L_PQ0")
    init_wave(a, "p")
    a.label("L_PQ0")
    args_ready(a)
    a(f"""s_lshl_b32 s65, s65, 10
    s_add_u32 s65, s65, {WS_UFLG}
    s_add_u32 s68, s{P_WS}, s65
    s_addc_u32 s69, s{P_WS+1}, 0
    s_mov_b32 s78, 1
    s_mov_b32 s79, 1
    s_waitcnt vmcnt(0)
    s_barrier
    {WOW()}
    s_cmp_lg_u32 s{SW8}, 0
    s_cbranch_scc1 L_PW
    s_atomic_add s79, s[68:69], {WS_CNT} glc
    s_waitcnt lgkmcnt(0)
    s_cmp_lg_u32 s79, 31
    s_cbranch_scc1 L_PW""")
    for r in range(cfg.nrep): a(f"s_atomic_add s78, s[68:69], {128*r}")
    a("s_waitcnt lgkmcnt(0)")
    a.label("L_PW")
    if cfg.pearly: a("s_branch L_B2")
    a(f"v_mov_b32 v13, {HALF + L_BAR + 8}")
    a.label("L_PWW")
    a("s_sleep 4\n ds_read_b32 v14, v13\n s_waitcnt lgkmcnt(0)\n v_cmp_gt_u32 vcc, 4, v14\n s_nop 1\n s_cbranch_vccnz L_PWW")
    stamp(a, 3)
    a("s_branch L_B2")

def conv_head(a, pr=False):
    a(f"""s_and_b32 s52, s2, 7
    s_lshl_b32 s52, s52, 4
    s_lshr_b32 s53, s2, 3
    s_and_b32 s61, s2, {7 if cfg.nrep == 8 else 0}
    s_sub_u32 s53, s53, 16
    s_add_u32 s57, s52, s53
    s_lshl_b32 s58, s57, 2
    s_add_u32 s58, s58, s{SW}
    s_lshl_b32 s59, s58, 12
    s_mul_i32 s60, s{SW}, {C_WAVE}
    s_add_u32 s60, s60, {HALF}
    s_add_u32 s52, s{P_H}, s59
    s_addc_u32 s53, s{P_H+1}, 0
    s_load_dword s66, s[52:53], 0
    s_lshr_b32 s54, s58, 1
    s_lshl_b32 s54, s54, 2
    s_load_dword s67, s[{P_D}:{P_D+1}], s54
    s_lshl_b32 s61, s61, 7
    s_cmp_ge_u32 s57, 80
    s_cselect_b32 s54, {0 if cfg.uall else 1024}, 0
    s_add_u32 s61, s61, s54
    s_add_u32 s61, s61, {WS_UFLG}
    s_lshr_b32 s63, s57, 4
    s_mul_i32 s63, s63, {0 if cfg.yall else 1024}
    s_add_u32 s63, s63, {WS_YFLG}
    v_lshlrev_b32 v2, 4, v1
    v_add_u32 v3, 4, v2
    v_mov_b32 v12, 0""")
    if pr: a(probe(15, 12, "s61"))
    srd(a, SRD0, P_H, 640 * 4096)
    a(f"s_add_u32 m0, s60, 32")
    for i in range(4): a(f"buffer_load_dwordx4 v2, {sq(SRD0)}, s59 offen offset:{1024*i} lds ; tag=H")
    a(f"s_add_u32 m0, s60, {C_HCOPY + 32}")
    for i in range(4): a(f"buffer_load_dwordx4 v3, {sq(SRD0)}, s59 offen offset:{1024*i} lds ; tag=H")

def role_conv(a):
    ACC, A, RAW, B, UL = 16, 48, 80, 128, 224
    conv_head(a, True)
    last_barrier(a, "conv", 9)
    tag(a, 4)
    stamp(a, 4)
    a(f"s_mul_i32 s55, s58, {TP}\n s_add_u32 s65, s55, {WS_UT}\n s_add_u32 s55, s55, {WS_YT}")
    uld = [f"buffer_load_dwordx4 {v4(UL+4*i)}, v2, {sq(SRDWS)}, s65 offen offset:{1024*i} sc1" for i in range(4)]
    fin_strip(a); fin_head(a)
    a(f"""v_and_b32 v8, 15, v1
    v_lshrrev_b32 v9, 4, v1
    v_add_u32 v10, 1, v8
    v_bfe_u32 v11, v10, 1, 1
    v_mul_u32_u24 v11, {C_HCOPY}, v11
    v_lshrrev_b32 v13, 2, v10
    v_lshl_add_u32 v13, v9, 3, v13
    v_lshl_add_u32 v11, v13, 3, v11
    v_add_u32 v4, s60, v11
    v_and_b32 v10, 1, v10
    v_lshlrev_b32 v5, 4, v10
    v_lshlrev_b32 v10, 1, v9
    v_sub_u32 v10, v10, v8
    v_add_u32 v10, 15, v10
    v_lshlrev_b32 v10, 4, v10
    v_add_u32 v6, s60, v10
    v_lshrrev_b32 v10, 1, v1
    v_and_b32 v11, 1, v1
    v_mul_u32_u24 v11, {C_UH}, v11
    v_add_u32 v10, v10, v11
    v_lshlrev_b32 v10, 4, v10
    v_add_u32 v7, s60, v10
    v_mov_b32 v16, 0
    v_mov_b32 v17, 0
    v_mov_b32 v18, 0
    v_mov_b32 v19, 0
    v_and_b32 v10, 1, v9
    v_mul_u32_u24 v10, {C_UH}, v10
    v_add_u32 v10, v10, v8
    v_lshl_add_u32 v20, v10, 4, s60
    v_and_b32 v10, 1, v1
    v_lshlrev_b32 v10, 4, v10
    v_bfe_u32 v11, v1, 1, 1
    v_mul_u32_u24 v11, {C_HCOPY}, v11
    v_add3_u32 v21, v10, v11, s60
    v_lshlrev_b32 v10, 5, v8
    v_lshl_add_u32 v8, v9, 3, v10""")
    a(f"""s_waitcnt lgkmcnt(0)
    s_lshl_b32 s52, s66, 16
    s_lshl_b32 s53, s67, 16
    s_and_b32 s54, s67, 0xffff0000
    s_bitcmp1_b32 s58, 0
    s_cselect_b32 s53, s54, s53
    s_and_b32 s54, s66, 0xffff0000
    v_mov_b32 v10, s52
    v_add_f32 v10, s53, v10
    v_mov_b32 v11, s54
    v_cvt_pk_bf16_f32 v10, v10, v11
    v_mov_b32 v11, s60
    WAITTAG H
    v_cmp_gt_u32 vcc, 1, v15
    s_mov_b32 s62, 0
    s_nop 0
    s_cbranch_vccnz L_CU0
    PUSHSTATE
    {chr(10).join(uld)}
    s_mov_b32 s62, 1
    s_branch L_CU1
    POPSTATE
    L_CU0:
    {probe(15, 12, "s61")}
    L_CU1:
    ds_write_b128 v21, v[16:19]
    ds_write_b32 v11, v10 offset:32
    ds_write_b32 v11, v10 offset:{C_HCOPY+28}
    ds_write_b128 v20, v[16:19] offset:{2*C_HCOPY + 128*16}""")
    def raw_slots(i):
        return [(0, 1, 2), (2, 0, 1), (1, 2, 0), (0, 1, 2)][i]
    def raw_reads(it, N1):
        N0, i = it >> 2, it & 3
        sl = raw_slots(i)
        return [f"ds_read_b64 {v2(RAW + N1*6 + 2*sl[k])}, v4 offset:{(2*N1+N0)*256 + (2*i+k)*8}" for k in range(0 if i == 0 else 1, 3)]
    def aligns(it, N1):
        sl = raw_slots(it & 3)
        d = [RAW + N1 * 6 + 2 * sl[0], RAW + N1 * 6 + 2 * sl[0] + 1, RAW + N1 * 6 + 2 * sl[1], RAW + N1 * 6 + 2 * sl[1] + 1, RAW + N1 * 6 + 2 * sl[2]]
        return [f"v_alignbit_b32 v{A + 4*N1 + k}, v{d[k+1]}, v{d[k]}, v5" for k in range(4)]
    def b_reads(it):
        N0, i = it >> 2, it & 3
        return [f"ds_read_b128 {v4(B + (it&1)*32 + 4*dl)}, v6 offset:{2*C_HCOPY + (14-(2*dl-N0))*128 + (i>>1)*16 + (i&1)*C_UH*16}" for dl in range(8)]
    for N1 in range(8): a.extend(raw_reads(0, N1))
    for N1 in range(8):
        a.extend(aligns(0, N1)); a.extend(raw_reads(1, N1))
    a("s_cmp_eq_u32 s62, 1\n s_cbranch_scc1 L_CU2\n PUSHSTATE")
    check(a, "convu", 15, 12, "s61", 1)
    a.extend(uld)
    a("POPSTATE"); a.label("L_CU2")
    stamp(a, 5)
    a("s_waitcnt vmcnt(0)")
    for i in range(4): a(f"ds_write_b128 v7, {v4(UL+4*i)} offset:{2*C_HCOPY + 512*i}")
    a.extend(b_reads(0))
    gate_arrive(a)
    a(f"s_setprio {cfg.vprio}")
    stamp(a, 6)
    def epi(J):
        T = 80 + 2 * J
        o = [f"v_cvt_pk_bf16_f32 v{T}, v{ACC+4*J}, v{ACC+4*J+1}", f"v_cvt_pk_bf16_f32 v{T+1}, v{ACC+4*J+2}, v{ACC+4*J+3}", f"ds_write_b64 v9, {v2(T)} offset:{512*J}"]
        if J & 1: o.append(f"ds_read_b128 {v4(96+2*(J-1))}, v10 offset:{512*(J-1)} ; y")
        if J in (3, 5): o.append(ysto((J - 3) // 2))
        return o
    def ysto(i): return f"buffer_store_dwordx4 {v4(96+4*i)}, v2, {sq(SRDWS)}, s55 offen offset:{1024*i} sc1"
    a("v_add_u32 v9, s60, v8\n v_add_u32 v10, s60, v2")
    queue = []
    for it in range(8):
        if it == 7: a(f"s_setprio {cfg.eprio}")
        if it < 7: queue += b_reads(it + 1)
        if it == cfg.qit:
            a("s_cmp_ge_u32 s56, 10\n s_cbranch_scc1 L_NQ\n PUSHSTATE"); a.extend(fin_qloads()); a("POPSTATE"); a.label("L_NQ")
        for N1 in range(8):
            tg = f"v_alignbit_b32 v{A+4*N1+3},"
            pos = max((k for k, q in enumerate(queue) if q.startswith(tg)), default=-1)
            for q in queue[:pos + 1]: a(q)
            queue = queue[pos + 1:]
            for J in range(N1, 8):
                acc = v4(ACC + 4 * J)
                c = "0" if (it == 0 and N1 == 0) else acc
                a(f"v_mfma_f32_16x16x32_bf16 {acc}, {v4(A+4*N1)}, {v4(B + (it&1)*32 + 4*(J-N1))}, {c}")
                if not cfg.mix:
                    for _ in range(2):
                        if queue: a(queue.pop(0))
                elif queue:
                    q = queue.pop(0); a(q)
                    if queue:
                        if q.startswith("ds_") and queue[0].startswith("ds_"):
                            k = next((k for k, x in enumerate(queue) if x.startswith("v_alignbit")), None)
                            if k is not None: a(queue.pop(k))
                            elif len(queue) > cfg.mix * 6: a(queue.pop(0))
                        elif q.startswith("v_alignbit") and queue[0].startswith("v_alignbit"):
                            k = next((k for k, x in enumerate(queue) if x.startswith("ds_read_b128") and not x.endswith("; y")), None)
                            a(queue.pop(k if k is not None else 0))
                        else: a(queue.pop(0))
            if it == 7 and N1 >= 2: queue += epi(N1 - 2)
            if it < 7: queue += aligns(it + 1, N1)
            if it < 6: queue += raw_reads(it + 2, N1)
        assert not any(q.startswith("ds_read_b128") and not q.endswith("; y") for q in queue)
    a.extend(queue)
    stamp(a, 7)
    a.extend(epi(6) + epi(7) + [ysto(2), ysto(3)])
    stamp(a, 8)
    signal(a, 63, 4, HALF + L_SIG, 160 if cfg.yall else 16)

FV = 240
def fin_head(a):
    a(f"""s_and_b32 s52, s2, 7
    s_lshl_b32 s52, s52, 2
    s_add_u32 s52, s52, s{SW}
    s_lshl_b32 s52, s52, 6
    s_lshl_b32 s53, s56, 6
    v_lshrrev_b32 v244, 3, v1
    v_lshl_add_u32 v245, v244, 3, s52
    v_and_b32 v246, 7, v1
    v_lshl_add_u32 v247, v246, 3, s53
    v_mul_u32_u24 v245, 1280, v245
    v_lshl_add_u32 v247, v247, 1, v245
    v_add_u32 v{FV}, v247, v245
    v_add_u32 v245, s53, v244
    v_mul_u32_u24 v245, {TP}, v245
    v_lshl_add_u32 v{FV+1}, v246, 4, v245
    v_mul_u32_u24 v245, 1040, v246
    v_lshl_add_u32 v245, v244, 4, v245
    v_add_u32 v{FV+2}, s60, v245
    s_lshl_b32 s64, s52, 1
    s_add_u32 s64, s64, {WS_YT}
    s_movk_i32 s53, 5120""")
    srd(a, SRD2, P_Q, 2048 * 1280); srd(a, SRD1, P_OUT, 2048 * 2560)
    a("s_cmp_ge_u32 s56, 10\n s_cselect_b32 s70, 0x40000000, 0\n s_add_u32 s71, s70, 5120")
def fin_qloads(): return [f"buffer_load_dwordx4 {v4(192+4*r)}, v247, {sq(SRD2)}, {'s71' if r >= 4 else 's70'} offen offset:{1280*(r%4)}" for r in range(8)]
def fin_strip(a):
    a(f"""s_lshr_b32 s53, s2, 3
    s_mul_i32 s54, s{SGRP}, 5
    s_add_u32 s56, s53, s54
    s_sub_u32 s56, s56, 16
    s_cmp_lt_u32 s53, 21
    s_cselect_b32 s56, s56, 15""")
def fin_g0(a):
    fin_strip(a)
    a(f"s_mul_i32 s60, s{SW}, 8448\n s_add_u32 s60, s60, 16384\n v_lshl_add_u32 v10, v1, 4, s60")
    fin_head(a)
    a.extend(fin_qloads())
    bar_wait(a)
    a("s_waitcnt vmcnt(0)\n s_branch L_FINR")

def role_fin(a):
    Q, QF, Y, T, L = 192, 48, 112, 144, 16
    a(f"""s_setprio {cfg.fprio}
    s_and_b32 s61, s2, {7 if cfg.nrep == 8 else 0}
    s_lshl_b32 s61, s61, 7
    s_mul_i32 s54, s56, {0 if cfg.yall else 1024}
    s_add_u32 s61, s61, s54
    s_add_u32 s61, s61, {WS_YFLG}
    s_mov_b32 s62, 0xffff0000
    v_mov_b32 v12, 0""")
    a(probe(15, 12, "s61"))
    for r in range(8):
        for d in range(4):
            a(f"v_lshlrev_b32 v{QF+8*r+2*d}, 16, v{Q+4*r+d}\n v_and_b32 v{QF+8*r+2*d+1}, s62, v{Q+4*r+d}")
    stamp(a, 1)
    check(a, "fin", 15, 12, "s61", 1)
    stamp(a, 2)
    for i in range(8): a(f"s_add_u32 s54, s64, {8*TP*i}\n buffer_load_dwordx4 {v4(L+4*i)}, v{FV+1}, {sq(SRDWS)}, s54 offen sc1")
    for i in range(8): a(f"ds_write_b128 v10, {v4(L+4*i)} offset:{1040*i}")
    for ch in range(8): a(f"ds_read_b128 {v4(Y+4*ch)}, v{FV+2} offset:{128*ch}")
    stamp(a, 3)
    a("s_mov_b32 s54, 0")
    for r in range(8):
        t = T + 8 * (r & 1)
        for ch in range(8):
            src = Y + 4 * ch + r // 2
            a(f"v_and_b32 v{t+ch}, s62, v{src}" if r & 1 else f"v_lshlrev_b32 v{t+ch}, 16, v{src}")
        for ch in range(8): a(f"v_mul_f32 v{t+ch}, v{t+ch}, v{QF+8*r+ch}")
        o = 160 + 4 * r
        for d in range(4): a(f"v_cvt_pk_bf16_f32 v{o+d}, v{t+2*d}, v{t+2*d+1}")
        a(f"buffer_store_dwordx4 {v4(o)}, v{FV}, {sq(SRD1)}, s54 offen{OSC()}")
        if r < 7: a("s_add_u32 s54, s54, 2560")

def b2_tables(hf):
    num = {}
    for t in range(5 * hf, 5 * hf + 5):
        hs = {e // 20 for e in range(16 * t, 16 * t + 16)}
        dts = [dt for dt in range(10) if hs & {d // 20 for d in range(16 * dt, 16 * dt + 16)}]
        ch = {}
        for dt in dts: ch.setdefault(dt // 2, []).append(dt)
        num[t] = sorted(ch.items())
    ch = {}
    for dt in range(5 * hf, 5 * hf + 5): ch.setdefault(dt // 2, []).append(dt)
    return num, sorted(ch.items())

NS = 3
def role_b2(a):
    PQ, KV, RAW = 16, 108, 180
    WA = [76 + 4 * n for n in range(8)]
    WB = [228 + 4 * n for n in range(7)] + [8]
    ACC = 108
    U = [180, 204]
    b2_head(a, 2)
    dma = b2_dma
    def wreads(slot, dst):
        return [f"ds_read_b64_tr_b16 {v2(dst[n] + 2*h)}, v0 offset:{slot*B_KS + h*512 + 32*n}" for n in range(8) for h in range(2)]
    if not cfg.qearly: bar_wait(a)
    for g in dma(0, 0): a.extend(g)
    last_barrier(a, "b2", 8)
    for g in dma(1, 1): a.extend(g)
    a.label("L_B2Q")
    a("v_and_b32 v8, 15, v1\n v_lshrrev_b32 v9, 4, v1")
    a(f"s_setprio {cfg.cprio}")
    srd(a, SRD1, P_OUT, 2048 * 2560)
    a(f"""v_bfe_u32 v10, v1, 2, 3
    v_mul_u32_u24 v10, 1056, v10
    v_lshrrev_b32 v11, 5, v1
    v_lshl_add_u32 v10, v11, 8, v10
    v_and_b32 v11, 3, v1
    v_lshl_add_u32 v10, v11, 3, v10
    v_add_u32 v0, s65, v10
    s_add_u32 s64, s65, {2*B_KS}
    v_lshlrev_b32 v9, 3, v9
    v_mul_u32_u24 v3, 40, v8
    v_add3_u32 v3, v3, v9, s64
    v_mul_u32_u24 v4, 800, v11
    v_add3_u32 v4, v4, v9, s64
    v_lshlrev_b32 v5, 4, v1
    v_lshlrev_b32 v6, 3, v1
    v_add_u32 v6, s64, v6
    v_add_u32 v7, 4096, v5
    s_mul_i32 s52, s57, 3
    s_lshr_b32 s53, s52, 3
    s_add_u32 s54, s52, 2
    s_min_u32 s54, s54, 127
    s_lshr_b32 s54, s54, 3
    s_sub_u32 s54, s54, s53
    s_lshl_b32 s54, s54, 7
    v_and_b32 v12, 1, v1
    v_mul_u32_u24 v13, {0 if cfg.kvall else 128}, v12
    v_mul_u32_u24 v12, s54, v12
    s_mul_i32 s60, s{SW}, 17
    s_add_u32 s60, s60, s53
    s_lshl_b32 s60, s60, 7
    s_add_u32 s60, s60, {WS_QFLAG}
    s_and_b32 s61, s2, {cfg.krep - 1}
    s_lshl_b32 s61, s61, 10
    s_mul_i32 s53, s{SW}, {0 if cfg.kvall else 256}
    s_add_u32 s61, s61, s53
    s_mul_i32 s52, s52, 20480
    s_mul_i32 s53, s{SW}, 5120
    s_add_u32 s52, s52, s53
    s_add_u32 s52, s52, {WS_PQ}
    s_mul_i32 s62, s{SW}, {8*1680}
    s_add_u32 s62, s62, {WS_KV}
    s_mov_b32 s73, {EPS}
    s_mov_b32 s66, 0xffff0000
    s_mov_b32 s67, -1
    s_mov_b32 s68, 0
    s_mov_b32 s69, -1
    s_mov_b32 s70, 0
    s_mov_b32 s71, 0xffff0000""")
    for r in range(KV, KV + 72): a(f"v_mov_b32 v{r}, 0")
    def pqpart(sfx=""):
        a(probe(14, 12, "s60"))
        stamp(a, 5)
        check(a, "b2q" + sfx, 14, 12, "s60", 1)
        pqloads()
    def pqloads():
        for sub in range(NS):
            for c in range(5):
                a(f"buffer_load_dwordx4 {v4(PQ + (sub*5+c)*4)}, v{5 if c < 4 else 7}, {sq(SRDWS)}, s52 offen offset:{1024*(c%4)} sc1")
            if sub < NS - 1: a("s_add_u32 s52, s52, 20480")
    a("WAITTAG K0")
    a.extend(wreads(0, WA))
    a("WAITTAG K1")
    a.extend(wreads(1, WB))
    a("s_waitcnt lgkmcnt(0)")
    a(f"""s_mov_b32 s79, 1
    s_mov_b32 s8, 0
    s_sub_u32 s54, {HALF + L_BAR + 8}, s{SLB}
    v_mov_b32 v15, s54
    s_cmp_ge_u32 s2, 192
    s_cbranch_scc1 L_GTW
    s_cmp_eq_u32 s{SLD}, 0
    s_cbranch_scc1 L_GT
    PUSHSTATE""")
    a.label("L_GQ")
    a(f"""{probe(14, 12, "s60")}
    s_waitcnt vmcnt(0)
    ds_read_b32 v16, v15
    v_cmp_gt_u32 vcc, 1, v14
    s_nop 1
    s_cbranch_vccz L_GQ1
    s_waitcnt lgkmcnt(0)
    v_cmp_gt_u32 vcc, 4, v16
    s_nop 1
    s_cbranch_vccz L_GO
    s_sleep 1
    s_branch L_GQ""")
    a.label("L_GQ1")
    a("s_waitcnt lgkmcnt(0)\n s_mov_b32 s8, 1")
    pqloads()
    a("POPSTATE")
    a.label("L_GTW")
    a("ds_read_b32 v14, v15\n s_waitcnt lgkmcnt(0)\n v_cmp_gt_u32 vcc, 4, v14\n s_nop 1\n s_cbranch_vccz L_GO\n s_sleep 1\n s_branch L_GTW")
    a.label("L_GO")
    if not cfg.sig0:
        a(f"s_cmp_eq_u32 s{SLD}, 0\n s_cbranch_scc1 L_GT\n s_cmp_lg_u32 s{SW}, 0\n s_cbranch_scc1 L_GT")
        a(f"s_atomic_add s79, s[6:7], {WS_CNT} glc")
    a.label("L_GT")
    d23 = dma(2, 0) + dma(3, 1)
    for g in d23[:cfg.sdel]: a.extend(g)
    if not cfg.sig0: a(f"s_waitcnt lgkmcnt(0)\n s_cmp_lg_u32 s79, 15\n s_cbranch_scc1 L_GT2\n s_mov_b32 s79, 1\n s_atomic_add s79, s[6:7], 0")
    a.label("L_GT2")
    for g in d23[cfg.sdel:]: a.extend(g)
    S2 = 4 * C_WAVE; S2W = 7360
    assert S2 + 4 * S2W <= L_BAR
    a(f"s_sub_u32 s59, {HALF + S2}, s{SLB}\n s_mul_i32 s53, s{SW}, {S2W}\n s_add_u32 s59, s59, s53")
    a(f"s_add_u32 s55, s59, {7*1056}\n s_sub_u32 s55, s55, s64\n s_and_b32 s55, s55, 255\n s_add_u32 s55, s55, s64")
    for i in range(7): a(f"s_add_u32 m0, s59, {i*1056}\n s_mov_b32 s63, {(128 + i)*1280}\n buffer_load_dwordx4 v2, {sq(SRD0)}, s63 offen lds")
    a("s_waitcnt lgkmcnt(0)")
    if True:
        a(f"s_cmp_lg_u32 s8, 0\n s_cbranch_scc1 L_PQG\n PUSHSTATE"); pqpart("y"); a("POPSTATE"); a.label("L_PQG")
    a(probe(14, 13, "s61"))
    check(a, "b2kv", 14, 13, "s61", 1)
    stamp(a, 6)
    raw = [RAW + 4 * i for i in range(12)] + [KV + 64, KV + 68]
    for hf in range(2):
        for i in range(7):
            a(f"buffer_load_dwordx4 {v4(raw[hf*7+i])}, v{5 if i < 4 else 7}, {sq(SRDWS)}, s62 offen offset:{1024*(i%4)} sc1")
        if hf == 0: a("s_add_u32 s62, s62, 6720")
    for r in range(4): a(f"v_mov_b32 v{12+r}, s73")
    qi = {}
    tabs = [b2_tables(0), b2_tables(1)]
    def build_half(hf):
        o = []
        for i in range(7):
            r = raw[hf * 7 + i]
            o += [f"v_cvt_pk_bf16_f32 v{r}, v{r}, v{r+1}", f"v_cvt_pk_bf16_f32 v{r+1}, v{r+2}, v{r+3}", f"ds_write_b64 v6, {v2(r)} offset:{512*i}"]
        if hf == 1: o += [f"v_mov_b32 v{KV+64+k}, 0" for k in range(8)]
        num, den = tabs[hf]
        quads = [("z", hf, dt) for c, dts in den for dt in dts] + [("n", t, dt) for t in num for c, dts in num[t] for dt in dts]
        assert len(quads) == 18
        rd = []
        for (kind, t, dt) in quads:
            q = len(qi); qi[(kind, t, dt)] = q
            mask = 0
            for l in range(64):
                i, g = l & 15, l >> 4
                hd = (16 * dt + 4 * g) // 20
                he = (16 * t + i) // 20 if kind == "n" else (i & 3) + 4 * t
                if hd == he: mask |= 1 << l
            off = 640 * (t - 5 * hf) + 32 * (dt - 5 * hf) if kind == "n" else 800 + 32 * (dt - 5 * hf)
            rd.append([f"s_mov_b32 exec_lo, {mask & 0xffffffff:#x}", f"s_mov_b32 exec_hi, {mask >> 32:#x}", f"ds_read_b64 {v2(KV + 2*q)}, v{3 if kind == 'n' else 4} offset:{off}"])
        return o, rd
    def omf(sub, hf, T):
        o = []
        num, den = tabs[hf]
        def one(kind, t, lst, acc):
            lst = sorted(lst, key=lambda x: len(x[1]))
            for k, (c, dts) in enumerate(lst):
                src = v4(acc) if k else ("v[12:15]" if kind == "z" else "0")
                kv = KV + 2 * qi[(kind, t, dts[0])]
                pq = PQ + (sub * 5 + c) * 4
                key = (min(k, 1), 0 if kind == "z" else 1, t, k)
                if len(dts) == 2: o.append((key, f"v_mfma_f32_16x16x32_bf16 {v4(acc)}, {v4(kv)}, {v4(pq)}, {src}"))
                else: o.append((key, f"v_mfma_f32_16x16x16_bf16 {v4(acc)}, {v2(kv)}, {v2(pq + 2*(dts[0]&1))}, {src}"))
        one("z", hf, den, T)
        for t in num: one("n", t, num[t], T + 4 + 4 * (t - 5 * hf))
        return [x for _, x in sorted(o)]
    def ovalu(sub, hf, T):
        o = []
        for r in range(4): o.append(f"v_rcp_f32 v{T+r}, v{T+r}")
        for tl in range(5):
            t = tl + 5 * hf
            h0 = (16 * tl) // 20; h1 = (16 * tl + 12) // 20
            rc = T + h0; n = T + 4 + 4 * tl
            if h0 != h1:
                g0 = min(g for g in range(4) if (16 * tl + 4 * g) // 20 == h1)
                o.append(f"v_cndmask_b32 v{rc}, v{T+h0}, v{T+h1}, s[{64+2*g0}:{65+2*g0}]")
            for r in range(4): o.append(f"v_mul_f32 v{n+r}, v{n+r}, v{rc}")
            d = PQ + (sub * 5 + t // 2) * 4 + 2 * (t & 1)
            o.append(f"v_cvt_pk_bf16_f32 v{d}, v{n}, v{n+1}")
            o.append(f"v_cvt_pk_bf16_f32 v{d+1}, v{n+2}, v{n+3}")
        return o
    def acc(sub, n): return ACC + (n * NS + sub) * 4
    def g2(k, W, ns=range(8)):
        return [f"v_mfma_f32_16x16x32_bf16 {v4(acc(sub, n))}, {v4(W[n])}, {v4(PQ + (sub*5+k)*4)}, {'0' if k == 0 else v4(acc(sub, n))}" for n in ns for sub in range(NS)]
    units = [(s_, h) for h in range(2) for s_ in range(NS)]
    nu = len(units)
    w0, r0 = build_half(0)
    a.extend(w0)
    for g in r0: a.extend(g)
    a("s_mov_b64 exec, -1")
    w1, r1 = build_half(1)
    a.extend(w1)
    r1g = [r1[k] + r1[k + 1] + ["s_mov_b64 exec, -1"] for k in range(0, 18, 2)]
    a.extend(interleave(omf(*units[0], U[0]), r1g, 1, 11))
    stamp(a, 7)
    for u in range(1, nu):
        a.extend(interleave(omf(*units[u], U[u & 1]), ovalu(*units[u - 1], U[(u - 1) & 1]), 2))
        if u == 1: a(f"s_waitcnt lgkmcnt(0)\n s_mov_b32 m0, s55\n s_mov_b32 s63, {135*1280}\n buffer_load_dwordx4 v2, {sq(SRD0)}, s63 offen lds ; tag=K4")
    a.extend(interleave(g2(0, WA), ovalu(*units[nu - 1], U[(nu - 1) & 1]), 2))
    k1 = g2(1, WB)
    a.extend(interleave(k1, wreads(0, WA), 0, 18))
    ad = []
    for gam in range(1, 4):
        ad += [f"s_xor_b32 s52, s{SW}, {gam}", "s_mul_i32 s52, s52, 20480", f"s_add_u32 s52, s52, {(gam-1)*6144}", f"s_add_u32 s52, s52, s{SLB}", f"v_add_u32 v{203+gam}, s52, v5"]
    ad += f"""s_sub_u32 s59, s59, s65
    s_sub_u32 s55, s55, s65
    s_sub_u32 s55, s55, {7*1056}
    v_add_u32 v208, s59, v0
    v_add_u32 v209, s55, v0
    v_bfe_u32 v210, v1, 2, 3
    v_cmp_eq_u32 vcc, 7, v210
    v_mov_b32 v211, 0
    v_mov_b32 v211, 0
    v_cndmask_b32 v208, v208, v209, vcc
    v_add_u32 v207, s65, v5
    s_add_u32 s53, s65, 18432
    v_and_b32 v12, 15, v1
    v_mul_u32_u24 v12, 80, v12
    v_lshrrev_b32 v3, 4, v1
    v_lshl_add_u32 v12, v3, 3, v12
    v_add_u32 v12, s53, v12
    v_lshrrev_b32 v3, 2, v1
    v_and_b32 v4, 3, v1
    v_lshlrev_b32 v4, 4, v4
    v_mul_u32_u24 v15, 80, v3
    v_add3_u32 v15, v15, v4, s53
    s_mul_i32 s52, s57, 48
    v_add_u32 v3, s52, v3
    v_mul_u32_u24 v3, 2560, v3
    v_add_u32 v3, v3, v4
    s_lshl_b32 s52, s58, 8
    s_lshl_b32 s54, s{SW}, 6
    s_add_u32 s52, s52, s54
    s_add_u32 s52, s52, 1280""".split("\n")
    a.extend(interleave(interleave(g2(2, WA), wreads(1, WB), 0, 16), ad))
    pre = g2(3, WB, [0, 1, 2, 3])
    a("WAITTAG K4")
    rd4 = [x.replace(", v0 ", ", v208 ") for x in wreads(0, WA)]; rd4 = rd4[4:] + rd4[:4]
    a.extend(interleave(pre, rd4))
    def wr(gam): return [f"ds_write_b128 v207, {v4(ACC + (gam*6+k)*4)} offset:{(gam-1)*6144 + 1024*k}" for k in range(6)]
    a.extend(g2(4, WA, [2, 3]))
    a.extend(interleave(g2(3, WB, [4, 5]) + g2(4, WA, [4, 5]), wr(1), 2))
    a.extend(interleave(g2(3, WB, [6, 7]) + g2(4, WA, [6, 7]), wr(2), 2))
    a.extend(interleave(g2(4, WA, [0, 1]), wr(3), 2))
    stamp(a, 8)
    bar_arrive(a); bar_wait(a, True)
    R = 16
    order = [n * NS + sub for sub in range(NS) for n in range(2)]
    for k in order:
        for gam in range(3): a(f"ds_read_b128 {v4(R + (k*3+gam)*4)}, v{204+gam} offset:{1024*k}")
    for k in order:
        n, sub = k // NS, k % NS
        for r in range(4): a(f"v_add_f32 v{ACC+4*k+r}, v{ACC+4*k+r}, v{R+(k*3)*4+r}")
        for r in range(4): a(f"v_add_f32 v{R+(k*3+1)*4+r}, v{R+(k*3+1)*4+r}, v{R+(k*3+2)*4+r}")
        for r in range(4): a(f"v_add_f32 v{ACC+4*k+r}, v{ACC+4*k+r}, v{R+(k*3+1)*4+r}")
        a(f"v_cvt_pk_bf16_f32 v{140+2*k}, v{ACC+4*k}, v{ACC+4*k+1}\n v_cvt_pk_bf16_f32 v{141+2*k}, v{ACC+4*k+2}, v{ACC+4*k+3}")
        a(f"ds_write_b64 v12, {v2(140+2*k)} offset:{32*n}")
        if n == 1:
            a(f"ds_read_b128 {v4(160+4*sub)}, v15")
            if sub > 0:
                a(f"buffer_store_dwordx4 {v4(160+4*(sub-1))}, v3, {sq(SRD1)}, s52 offen{OSC()}\n s_add_u32 s52, s52, {16*2560}")
    a(f"buffer_store_dwordx4 {v4(160+4*(NS-1))}, v3, {sq(SRD1)}, s52 offen{OSC()}")

def OSC(): return ["", " sc1", " nt", " sc0 sc1"][cfg.osc]

def kd(name):
    return f""".p2align 6
.amdhsa_kernel {name}
  .amdhsa_next_free_vgpr 256
  .amdhsa_next_free_sgpr 102
  .amdhsa_accum_offset 256
  .amdhsa_group_segment_fixed_size 0
  .amdhsa_kernarg_size 96
  .amdhsa_user_sgpr_count 2
  .amdhsa_user_sgpr_kernarg_segment_ptr 1
  .amdhsa_system_sgpr_workgroup_id_x 1
  .amdhsa_float_denorm_mode_32 3
.end_amdhsa_kernel"""

def head(name): return f".globl {name}\n.p2align 8\n.type {name},@function"

def build():
    k = KN + "_kernel"
    a = Asm()
    a(head(k)); prologue(a, k, 256)
    a("s_cmp_ge_u32 s2, 192\n s_cbranch_scc1 L_P")
    g_ids(a)
    a(f"s_cmp_eq_u32 s{SGRP}, 0\n s_cbranch_scc1 L_CONS")
    tag(a, 7)
    role_loader(a)
    a("s_cmp_ge_u32 s2, 128\n s_cbranch_scc1 L_CONV\n s_branch L_B2")
    a.label("L_CONS")
    if not cfg.zp:
        a(f"s_cmp_lg_u32 s{SW}, 0\n s_cbranch_scc1 L_ZW\n s_cmp_ge_u32 s2, {NZERO}\n s_cbranch_scc1 L_ZW")
        zero_wave(a)
    a(f"s_cmp_lg_u32 s{SW}, 3\n s_cbranch_scc1 L_CONS1")
    init_wave(a, "g")
    a.label("L_CONS1")
    a(f"s_setprio {cfg.cprio}")
    args_ready(a)
    g_setup2(a)
    a("s_cmp_ge_u32 s58, 8\n s_cbranch_scc1 L_Q")
    tag(a, 1); role_kv(a)
    a("s_branch L_FIN")
    a.label("L_Q"); tag(a, 2); role_q(a)
    a("s_cmp_ge_u32 s2, 168\n s_cbranch_scc1 L_B2")
    fin_g0(a)
    a.label("L_P")
    if cfg.zp:
        a(f"s_cmp_lg_u32 s{SW8}, 1\n s_cbranch_scc1 L_ZW\n s_cmp_ge_u32 s2, {192 + NZERO}\n s_cbranch_scc1 L_ZW")
        zero_wave(a)
    role_prep(a)
    a.label("L_CONV"); role_conv(a)
    a("s_cmp_ge_u32 s56, 10\n s_cbranch_scc1 L_FIN")
    a.label("L_FINR")
    tag(a, 8); role_fin(a)
    if cfg.enc == 89: a("s_waitcnt vmcnt(0)"); stamp(a, 9)
    a("s_branch L_FIN")
    a.label("L_B2")
    a("""s_lshr_b32 s53, s2, 3
    s_sub_u32 s54, s53, 5
    s_cmp_lt_u32 s53, 16
    s_cselect_b32 s53, s53, s54
    s_and_b32 s56, s2, 7
    s_mul_i32 s56, s56, 27
    s_add_u32 s56, s56, s53
    s_cmp_ge_u32 s56, 215
    s_cbranch_scc1 L_FIN""")
    tag(a, 5); role_b2(a)
    if cfg.enc == 59: a("s_waitcnt vmcnt(0)"); stamp(a, 9)
    a.label("L_FIN"); stamps_out(a)
    if cfg.enc:
        a("s_waitcnt vmcnt(0) lgkmcnt(0)")
        a.label("L_SPIN")
        a("s_sleep 1\n s_memrealtime s[94:95]\n s_waitcnt lgkmcnt(0)\n s_sub_u32 s94, s94, s96\n s_cmp_lt_u32 s94, 2500\n s_cbranch_scc1 L_SPIN")
    a.label("L_END"); a("s_endpgm")
    launch = [f"; @launch grid=(256,1,1) block=(512,1,1) lds={LDS_BYTES}"]
    return launch, a, [k]

def emit(path, launch, a, kernels, verbose=False):
    body = fix_hazards(insert_waits(a.lines), verbose)
    if cfg.al:
        body, n1, n2 = align8(body, cfg.al)
        if verbose: print("align: promoted", n1, "nops", n2)
    out = list(launch) + ['.amdgcn_target "amdgcn-amd-amdhsa--gfx950"', ".text", ".p2align 8", "L_CODE_BEGIN:"]
    out += [(l if l.endswith(":") or l.startswith(".") else "    " + l) for l in body]
    out += ["L_CODE_END:", "    s_endpgm", '.section .rodata,"a"'] + [kd(k) for k in kernels]
    open(path, "w").write("\n".join(out) + "\n")

if __name__ == "__main__":
    cfg.stamps = "stamps" in sys.argv[2:]
    cfg.rot = "norot" not in sys.argv[2:]
    for x in sys.argv[2:]:
        if "=" in x: setattr(cfg, x.split("=")[0], int(x.split("=")[1]))
    emit(sys.argv[1], *build(), verbose="-v" in sys.argv)
```

```python
import sys
sys.path.insert(0, "dev")
from asmlib import *

KN = "concat_heads__ssm_conv_h3__linear_attn_block__prompt"
WS_KVFLG = 0x0000
WS_YFLG  = 0x2000
WS_UFLG  = 0x4800
WS_QFLAG = 0x5000
WS_CNT   = 0x8000
WS_KV    = 0xD000
NZERO    = 56
TP = 4224
WS_UT    = 0x100000
WS_YT    = 0x400000
WS_PQ    = 0x700000
WS_STAMP = 0xA00000
WS_SIZE  = 0xB00000
LDS_BYTES = 163840
HALF = 81920
L_BAR = HALF - 64
L_SIG = HALF - 60
SGRP, SLB, SBT, SW8, SLD = 74, 75, 76, 77, 72
LOG2E = 0x3FB8AA3B
EPS = 0x358637BD

P_Q, P_K, P_V, P_SH, P_H, P_D, P_X, P_W, P_WO, P_OUT, P_DBG, P_WS = [4 + 2 * i for i in range(12)]
SRD0, SRD1, SRD2, SRD3, SRD4, SRDWS = 28, 32, 36, 40, 44, 48
SW = 3

def srd(a, d, p, nbytes):
    a(f"s_mov_b32 s{d}, s{p}\n s_and_b32 s{d+1}, s{p+1}, 0xffff\n s_mov_b32 s{d+2}, {nbytes}\n s_mov_b32 s{d+3}, 0x20000")
def sq(d): return f"s[{d}:{d+3}]"
def v4(r): return f"v[{r}:{r+3}]"
def v2(r): return f"v[{r}:{r+1}]"

class Cfg:
    stamps = False
    rot = False
    gonly = 0
    ahead0 = 4
    ahead = 4
    bpos = 3
    lprio = 3
    cprio = 2
    psleep = 2
    qlate = 3
    pprio = 0
    qit = 4
    cgate = 4
    gpos = 2
    wowarm = 0
    pqfirst = 2
    pearly = 1
    mprio = 3
    sig0 = 1
    fsc = 1
    qpre = 0
    krep = 8
    fmode = 1
    smask = 1
    sdel = 10
    x_qd = 0
    x_pd = 0
    al = 0
    zp = 1
    wpipe = 1
    mix = 0
    qearly = 0
    pk = 0
    lite = 0
    nrep = 1
    kvall = 0
    yall = 0
    uall = 0
    vprio = 0
    fbase = 22
    tail2 = 1
    tlb = 0
    pwait = 1
    eprio = 3
    fprio = 3
    qrel = 8
    qst = 1
    osc = 1
    gate = 1
    usig = 4
    qbar = 1
    spf = 0
    slab = 0
    enc = 0
    role = 0
    pmode = 0
    x_noq = 0
    x_plain = 0
    x_pend = 0
    x_nost = 0
cfg = Cfg()

NSTAMP = 10
def stamp(a, i, force=False):
    if cfg.lite and i != NSTAMP - 1: return
    if cfg.slab and not force and i != NSTAMP - 1 and cfg.role in (7, 4, 5): return
    if cfg.enc and cfg.enc == cfg.role * 10 + i:
        a("s_memrealtime s[96:97]\n s_waitcnt lgkmcnt(0)")
    if cfg.stamps:
        a(f"s_memrealtime s[{80+2*i}:{81+2*i}]\n s_waitcnt lgkmcnt(0)")
def stamps_out(a):
    if not cfg.stamps: return
    a("s_waitcnt vmcnt(0) lgkmcnt(0)")
    stamp(a, NSTAMP - 1)
    a("s_memtime s[70:71]\n s_waitcnt lgkmcnt(0)\n s_sub_u32 s101, s70, s101")
    a(f"s_getreg_b32 s52, hwreg(HW_REG_HW_ID)\n s_getreg_b32 s53, hwreg(HW_REG_XCC_ID)")
    for i in range(NSTAMP): a(f"v_mov_b32 v{16+i}, s{80+2*i}")
    a(f"v_mov_b32 v26, s52\n v_mov_b32 v27, s53\n v_mov_b32 v28, s100\n v_mov_b32 v29, s2\n v_mov_b32 v30, s101\n v_mov_b32 v31, 0")
    a(f"s_lshl_b32 s54, s2, 9\n s_lshl_b32 s55, s{SW8}, 6\n s_add_u32 s54, s54, s55\n s_add_u32 s54, s54, {WS_STAMP}")
    a(f"v_mov_b32 v32, 0\n s_mov_b64 exec, 1")
    for i in range(4): a(f"buffer_store_dwordx4 {v4(16+4*i)}, v32, {sq(SRDWS)}, s54 offen offset:{16*i}")
    a("s_mov_b64 exec, -1")
def tag(a, t):
    cfg.role = t
    if cfg.stamps: a(f"s_lshl_b32 s100, s100, 4\n s_add_u32 s100, s100, {t}")

def prologue(a, name, nwg):
    a.label(name)
    if cfg.enc: a("s_memrealtime s[98:99]\n s_memrealtime s[96:97]")
    a(f"""s_load_dwordx16 s[4:19], s[0:1], 0
    s_load_dwordx8 s[20:27], s[0:1], 64
    s_cmp_ge_u32 s2, {nwg}
    s_cbranch_scc1 L_END
    v_and_b32 v1, 63, v0
    v_lshrrev_b32 v2, 6, v0
    s_mov_b32 s{SBT}, 0
    v_readfirstlane_b32 s{SW8}, v2
    v_mov_b32 v12, 0
    s_mov_b32 s{SLD}, 0""")
    if cfg.stamps:
        for i in range(NSTAMP): a(f"s_mov_b32 s{80+2*i}, 0")
        a("s_mov_b32 s100, 0\n s_memrealtime s[80:81]\n s_memtime s[98:99]")
    a(f"""s_and_b32 s{SW}, s{SW8}, 3
    s_lshr_b32 s{SGRP}, s{SW8}, 2
    s_mul_i32 s{SLB}, s{SGRP}, {HALF}""")

def init_wave(a, name):
    a("s_getpc_b64 s[52:53]")
    a.label(f"L_PC{name}")
    a(f"""s_lshr_b32 s54, s2, 3
    s_and_b32 s54, s54, 7
    s_lshl_b32 s54, s54, 13
    v_lshlrev_b32 v3, 7, v1
    v_add_u32 v3, s54, v3
    s_sub_u32 s52, s52, L_PC{name}-L_CODE_BEGIN
    s_subb_u32 s53, s53, 0
    v_min_u32 v3, L_CODE_END-L_CODE_BEGIN-4, v3
    global_load_dword v15, v3, s[52:53]""")
    lds_init(a)
    if cfg.tlb:
        n = cfg.tlb
        a(f"s_waitcnt lgkmcnt(0)\n s_mov_b64 exec, {(1 << n) - 1}")
        for k, (p, size) in enumerate(((P_WS, WS_STAMP), (P_OUT, 2048 * 2560), (P_Q, 2048 * 1280), (P_H, 640 * 4096), (P_WO, 640 * 1280))):
            st = (size - 128) // (n - 1) // 128 * 128
            a(f"s_mov_b32 s54, {st}\n v_mul_lo_u32 v3, v1, s54\n global_load_dword v{250+k}, v3, s[{p}:{p+1}]")
        a("s_mov_b64 exec, -1")

def lds_init(a):
    a(f"""v_and_b32 v4, 15, v1
    v_lshlrev_b32 v4, 2, v4
    v_bfe_u32 v5, v1, 4, 1
    v_mul_u32_u24 v5, {HALF}, v5
    v_add_u32 v4, v4, v5
    v_add_u32 v4, {L_BAR}, v4
    v_mov_b32 v5, 0
    ds_write_b32 v4, v5""")

def args_ready(a):
    a("s_waitcnt lgkmcnt(0)")
    if cfg.stamps: a("s_mov_b32 s101, s98")
    srd(a, SRDWS, P_WS, WS_SIZE if cfg.stamps else WS_STAMP)
    srd(a, SRD4, P_DBG, 256)

def bar_arrive(a):
    a(f"""v_mov_b32 v13, s{SLB}
    v_mov_b32 v14, 1
    v_add_u32 v13, {L_BAR}, v13
    s_add_u32 s{SBT}, s{SBT}, 4
    s_mov_b64 exec, 1
    ds_add_u32 v13, v14
    s_mov_b64 exec, -1""")
def gate_arrive(a):
    a(f"""v_mov_b32 v13, s{SLB}
    v_mov_b32 v14, 1
    v_add_u32 v13, {L_BAR}, v13
    s_mov_b64 exec, 1
    ds_add_u32 v13, v14 offset:8
    s_mov_b64 exec, -1""")
def bar_wait(a, addr_ok=False):
    n = bar_wait.n; bar_wait.n += 1
    if not addr_ok: a(f"v_mov_b32 v13, s{SLB}\n v_add_u32 v13, {L_BAR}, v13")
    a.label(f"L_BW_{n}")
    a(f"""ds_read_b32 v14, v13
    s_waitcnt lgkmcnt(0)
    v_cmp_gt_u32 vcc, s{SBT}, v14
    s_nop 1
    s_cbranch_vccnz L_BW_{n}""")
bar_wait.n = 0

def phi_block(regs_, temps):
    out = []
    n = len(temps)
    for g in range(0, len(regs_), n):
        grp = regs_[g:g + n]
        if cfg.pk:
            for k in range(0, len(grp), 2): out.append(f"v_pk_mul_f32 {v2(temps[k])}, {v2(grp[k])}, s[70:71] op_sel_hi:[1,0]")
            for r, t in zip(grp, temps): out.append(f"v_exp_f32 v{t}, v{t} clamp"); out.append(f"v_max_f32 v{r}, s71, v{r}")
            for k in range(0, len(grp), 2): out.append(f"v_pk_add_f32 {v2(grp[k])}, {v2(grp[k])}, {v2(temps[k])}")
            continue
        for r, t in zip(grp, temps): out.append(f"v_mul_f32 v{t}, s70, v{r}")
        for r, t in zip(grp, temps): out.append(f"v_exp_f32 v{t}, v{t} clamp"); out.append(f"v_max_f32 v{r}, s71, v{r}")
        for r, t in zip(grp, temps): out.append(f"v_add_f32 v{r}, v{r}, v{t}")
    return out

def probe(vdst, voff, s_off, srdq=SRDWS):
    if cfg.pmode == 3:
        return f"v_mov_b32 v{vdst}, -1\n s_mov_b64 exec, 3\n v_mov_b32 v{vdst}, 0\n buffer_atomic_add v{vdst}, v{voff}, {sq(srdq)}, {s_off} offen sc0 sc1\n s_mov_b64 exec, -1"
    return f"buffer_load_dword v{vdst}, v{voff}, {sq(srdq)}, {s_off} offen " + ["sc1", "sc0 sc1", "sc0 sc1 nt"][cfg.pmode]
def check(a, name, vdst, voff, s_off, target, srdq=SRDWS):
    a(f"v_cmp_gt_u32 vcc, {target}, v{vdst}\n s_mov_b32 s78, 0\n s_nop 0\n s_cbranch_vccz L_OK_{name}")
    a("PUSHSTATE")
    a.label(f"L_POLL_{name}")
    a(f"""s_sleep {cfg.psleep}
    {probe(vdst, voff, s_off, srdq)}
    s_add_u32 s78, s78, 1
    s_waitcnt vmcnt(0)
    v_cmp_gt_u32 vcc, {target}, v{vdst}
    s_cmp_ge_u32 s78, 0x20000
    s_cbranch_scc1 L_OK_{name}
    s_cbranch_vccnz L_POLL_{name}""")
    a("POPSTATE")
    a.label(f"L_OK_{name}")
def zero_probe(a, vd, vz): a(f"v_mov_b32 v{vz}, 128\n" + probe(vd, vz, "0", SRD4))
def zero_check(a, name, vd, vz): check(a, "z" + name, vd, vz, "0", 1, SRD4)
def zero_wave(a):
    a(f"""v_lshlrev_b32 v8, 4, v1
    v_mov_b32 v16, 0
    v_mov_b32 v17, 0
    v_mov_b32 v18, 0
    v_mov_b32 v19, 0
    s_and_b32 s54, s2, 63
    s_lshl_b32 s54, s54, 11
    s_mov_b32 s79, 1
    s_mov_b32 s78, 1""")
    args_ready(a)
    if cfg.slab == 5: stamp(a, 5, True)
    a(f"""buffer_store_dwordx4 v[16:19], v8, {sq(SRDWS)}, s54 offen sc1
    buffer_store_dwordx4 v[16:19], v8, {sq(SRDWS)}, s54 offen offset:1024 sc1
    s_waitcnt vmcnt(0)
    s_atomic_add s79, s[{P_DBG}:{P_DBG+1}], 0 glc
    s_waitcnt lgkmcnt(0)
    s_cmp_lg_u32 s79, {NZERO-1}
    s_cbranch_scc1 L_ZW
    s_atomic_add s78, s[{P_DBG}:{P_DBG+1}], 128
    s_waitcnt lgkmcnt(0)""")
    a.label("L_ZW")
    if cfg.slab == 5: stamp(a, 6, True)

def signal(a, s_off, nwaves, ldsaddr, narr=1, rstride=128):
    n = signal.n; signal.n += 1
    a(f"""v_mov_b32 v13, {ldsaddr}
    v_mov_b32 v14, 1
    s_add_u32 s68, s{P_WS}, s{s_off}
    s_addc_u32 s69, s{P_WS+1}, 0
    s_mov_b32 s78, 1
    s_waitcnt vmcnt(0)
    s_mov_b64 exec, 1
    ds_add_rtn_u32 v12, v13, v14
    s_mov_b64 exec, -1
    s_waitcnt lgkmcnt(0)
    v_readfirstlane_b32 s79, v12
    s_cmp_lg_u32 s79, {nwaves-1}
    s_cbranch_scc1 L_SIG_{n}""")
    if narr > 1:
        a(f"""s_mov_b32 s79, 1
        s_atomic_add s79, s[68:69], {WS_CNT} glc
        s_waitcnt lgkmcnt(0)
        s_cmp_lg_u32 s79, {narr-1}
        s_cbranch_scc1 L_SIG_{n}""")
    for r in range(cfg.nrep if narr > 1 else 1): a(f"s_atomic_add s78, s[68:69], {r*rstride}")
    a("s_waitcnt lgkmcnt(0)")
    a.label(f"L_SIG_{n}")
signal.n = 0

def conv_ids(a):
    a("""s_and_b32 s52, s2, 7
    s_mul_i32 s52, s52, 20
    s_lshr_b32 s53, s2, 3
    s_sub_u32 s53, s53, 12
    s_add_u32 s52, s52, s53""")
def sprefetch(a, p, s_off, n):
    a(f"s_add_u32 s68, s{p}, s{s_off}\n s_addc_u32 s69, s{p+1}, 0")
    for i in range(n): a(f"s_load_dword s79, s[68:69], {128*i}")
    a("s_waitcnt lgkmcnt(0)")

def last_barrier(a, name, n_younger):
    a(f"s_cmp_eq_u32 s{SLD}, 0\n s_cbranch_scc1 L_LB_{name}\n PUSHSTATE\n s_waitcnt vmcnt({n_younger})\n s_barrier\n s_setprio 0\n POPSTATE")
    a.label(f"L_LB_{name}")

G_ACC, G_B, G_X = 16, 96, 176
G_SLOT = 36864
def slot_off(j): return ((j & 1) ^ 1) * G_SLOT
def slot_half(j): return (j % 4) >> 1
def g_ids(a):
    a(f"""s_and_b32 s52, s2, 7
    s_lshr_b32 s53, s2, 3
    s_and_b32 s57, s52, 3
    s_lshl_b32 s57, s57, 2
    s_and_b32 s54, s53, 3
    s_add_u32 s57, s57, s54
    s_lshr_b32 s52, s52, 2
    s_lshr_b32 s54, s53, 2
    s_lshl_b32 s58, s52, 2
    s_add_u32 s58, s58, s54
    s_lshl_b32 s52, s52, 1
    s_add_u32 s52, s52, s54
    s_add_u32 s52, s52, 4
    s_cmp_ge_u32 s54, 4
    s_cselect_b32 s58, s52, s58
    s_lshl_b32 s66, s{SW}, 12
    s_add_u32 s66, s66, 20480""")

def g_setup_x(a):
    if cfg.rot:
        a(f"""s_mul_i32 s62, s57, 3
        s_lshl_b32 s59, s58, 1
        s_add_u32 s62, s62, s59
        s_mul_i32 s59, s62, 205
        s_lshr_b32 s59, s59, 11
        s_mul_i32 s59, s59, 10
        s_sub_u32 s62, s62, s59
        s_lshl_b32 s64, s62, 7
        s_mul_i32 s63, s62, {64*3840}""")
    else:
        a("s_mov_b32 s64, 0\n s_mov_b32 s63, 0")
    a(f"""v_lshrrev_b32 v240, 3, v1
    s_lshl_b32 s59, s57, 7
    s_lshl_b32 s54, s{SW}, 5
    s_add_u32 s59, s59, s54
    v_add_u32 v240, s59, v240
    v_mul_u32_u24 v240, 1280, v240
    v_lshrrev_b32 v241, 4, v1
    v_and_b32 v242, 7, v1
    v_xor_b32 v242, v242, v241
    v_lshl_add_u32 v7, v242, 4, v240
    v_xor_b32 v242, 4, v242
    v_lshl_add_u32 v8, v242, 4, v240
    v_add_u32 v8, {10240-1024}, v8
    v_add_u32 v9, {20480-2048}, v7
    v_add_u32 v10, {20480-2048}, v8""")

def g_setup_w(a, hook=None):
    a(f"""s_mul_i32 s59, s58, 160
    s_add_u32 s60, s59, 1280
    s_add_u32 s61, s59, {2560-160}
    s_sub_u32 s59, s58, 8
    s_mul_i32 s59, s59, 320
    s_cmp_ge_u32 s58, 8
    s_cselect_b32 s60, s59, s60
    s_cselect_b32 s61, s59, s61
    s_mul_i32 s59, s{SW}, {16*3840}
    s_add_u32 s60, s60, s59
    s_add_u32 s61, s61, s59
    s_mul_i32 s65, s{SW}, 5120""")
    a(f"v_mov_b32 v244, s60\n v_mov_b32 v245, s61")
    for i in range(5):
        assert all(((64 * i + l) * 3277) >> 16 == (64 * i + l) // 20 for l in range(64))
        a(f"""v_add_u32 v240, {64*i}, v1
        v_mul_u32_u24 v241, 3277, v240
        v_lshrrev_b32 v241, 16, v241
        v_mul_u32_u24 v242, 20, v241
        v_sub_u32 v240, v240, v242""")
        if i == 2: a("v_lshrrev_b32 v242, 4, v1\n v_and_b32 v242, 2, v242\n v_xor_b32 v240, v240, v242")
        if i > 2: a("v_xor_b32 v240, 2, v240")
        a(f"""v_cmp_gt_u32 vcc, 10, v240
        v_mul_u32_u24 v241, 3840, v241
        v_lshl_add_u32 v240, v240, 4, v241
        v_cndmask_b32 v242, v245, v244, vcc""")
        if i in (0, 4): a(f"v_add_u32 v{2+i}, v240, v242")
        else: a(f"v_add_u32 v240, v240, v242\n v_subrev_u32 v{2+i}, {1024*i}, v240")
        if hook: hook(i)

def g_setup2(a):
    a(f"""v_lshrrev_b32 v241, 4, v1
    v_bfe_u32 v242, v1, 2, 2
    v_lshl_add_u32 v242, v241, 3, v242
    v_mul_u32_u24 v242, 320, v242
    v_and_b32 v243, 3, v1
    v_lshl_add_u32 v242, v243, 3, v242
    v_and_b32 v243, 1, v241
    v_lshlrev_b32 v243, 5, v243
    v_add_u32 v9, v242, v243
    v_sub_u32 v10, v242, v243
    v_and_b32 v240, 15, v1
    v_lshrrev_b32 v242, 1, v240
    v_xor_b32 v242, v242, v241
    v_lshlrev_b32 v240, 7, v240
    v_add_u32 v240, s66, v240
    v_lshl_add_u32 v11, v242, 4, v240
    v_xor_b32 v242, 4, v242
    v_lshl_add_u32 v12, v242, 4, v240
    s_mov_b32 s70, {LOG2E}
    s_mov_b32 s71, {EPS}""")
    for k in range(4): a(f"v_add_u32 v{2+k}, {HALF}, v{9+k}")

def g_loadx(j):
    o = [f"s_add_u32 m0, s66, {slot_half(j) * HALF + slot_off(j)}", "s_nop 0"]
    for i in range(4): o.append(f"buffer_load_dwordx4 v{7+i}, {sq(SRD0)}, s64 offen offset:{1024*i} lds ; tag=S{j}")
    o += ["s_add_u32 s64, s64, 128"]
    if cfg.rot: o += ["s_cmp_eq_u32 s64, 1280", "s_cselect_b32 s64, 0, s64"]
    return o
def g_loadw(j):
    base = slot_half(j) * HALF + slot_off(j)
    o = [f"s_add_u32 m0, s65, {base}", "s_nop 0"]
    for i in range(4): o.append(f"buffer_load_dwordx4 v{2+i}, {sq(SRD1)}, s63 offen offset:{1024*i} lds ; tag=S{j}")
    o += [f"s_add_u32 m0, s65, {base + 4096}", "s_nop 0", f"buffer_load_dwordx4 v6, {sq(SRD1)}, s63 offen lds ; tag=S{j}"]
    o += [f"s_add_u32 s63, s63, {64*3840}"]
    if cfg.rot: o += [f"s_cmp_eq_u32 s63, {640*3840}", "s_cselect_b32 s63, 0, s63"]
    return o
def g_xreads(j):
    return [f"ds_read_b128 {v4(G_X + (j&1)*16 + ks*8 + sub*4)}, v{(4 if slot_half(j) else 11)+ks} offset:{slot_off(j) + sub*2048}" for ks in range(2) for sub in range(2)]
def g_reads(t):
    j = t // 2
    o = []
    for n in range(10):
        for h in range(2):
            off = slot_off(j) + (t & 1) * 10240 + h * 1280 + 32 * n
            o.append(f"ds_read_b64_tr_b16 {v2(G_B + (t & 1) * 40 + n * 4 + 2 * h)}, v{(2 if slot_half(j) else 9) + (n & 1)} offset:{off}")
    return o

def role_loader(a):
    a(f"s_setprio {cfg.lprio}")
    g_setup_x(a)
    a("s_waitcnt lgkmcnt(0)")
    srd(a, SRD0, P_X, 2048 * 1280)
    if cfg.slab == 5: stamp(a, 5, True)
    if cfg.x_qd: a(f"s_cmp_lt_u32 s58, 8\n s_cbranch_scc1 L_XQD\n s_sleep {cfg.x_qd}"); a.label("L_XQD")
    a.extend(g_loadx(0))
    srd(a, SRD1, P_W, 640 * 3840)
    seq = []
    for j in range(10): seq += [g_loadx(j), g_loadw(j)]
    pos = 1
    if cfg.wpipe:
        w0 = g_loadw(0)
        parts = [w0[0:3], w0[3:4], w0[4:5], w0[5:6], w0[6:]]
        g_setup_w(a, lambda i: a.extend(parts[i]))
        pos = 2
    else: g_setup_w(a)
    def upto(n):
        nonlocal pos
        while pos < min(n, 20): a.extend(seq[pos]); pos += 1
    upto(cfg.ahead0)
    args_ready(a)
    stamp(a, 1)
    for j in range(9):
        a(f"WAITTAG S{j}")
        if cfg.slab == 2 and j < 8: stamp(a, j + 1, True)
        a("s_barrier")
        if cfg.slab == 1 and j < 8: stamp(a, j + 1, True)
        if j == 0: stamp(a, 2)
        if j == 6: zero_probe(a, 14, 13)
        upto(min(2 * (j + 1) + cfg.ahead, 2 * (j + 4)))
    zero_check(a, "ld", 14, 13)
    a(f"s_lshl_b32 s53, s58, 7\n s_add_u32 s6, s{P_WS}, s53\n s_addc_u32 s7, s{P_WS+1}, 0")
    a(f"s_mov_b32 s{SLD}, 1")
    stamp(a, 3)

def g_main(a, transposed, tail):
    a("s_waitcnt lgkmcnt(0)\n s_barrier")
    stamp(a, 1)
    a.extend(g_xreads(0) + g_reads(0))
    def mfma(t, n, sub):
        j, ks = t // 2, t % 2
        acc = v4(G_ACC + (sub * 10 + n) * 4)
        x = v4(G_X + (j & 1) * 16 + ks * 8 + sub * 4)
        b = v4(G_B + (t & 1) * 40 + n * 4)
        c = "0" if t == 0 else acc
        return f"v_mfma_f32_16x16x32_bf16 {acc}, {b}, {x}, {c}" if transposed else f"v_mfma_f32_16x16x32_bf16 {acc}, {x}, {b}, {c}"
    for t in range(18 if cfg.tail2 else 19):
        j, ks = t // 2, t % 2
        mf = [mfma(t, n, sub) for n in range(10) for sub in range(2)]
        rd = g_reads(t + 1)
        if ks == 1:
            rd = g_xreads(j + 1) + rd
            a.extend(mf[:cfg.bpos]); a("s_waitcnt lgkmcnt(0)" + "\n s_barrier")
            a.extend(interleave(mf[cfg.bpos:], rd))
        else:
            a.extend(interleave(mf, rd))
    if cfg.tail2:
        a.extend(interleave([mfma(18, n, sub) for n in range(5) for sub in range(2)], g_reads(19)))
        tail([mfma(19, n, sub) for n in range(5) for sub in range(2)] + [mfma(t, n, sub) for t in (18, 19) for n in range(5, 10) for sub in range(2)])
    else:
        tail([mfma(19, n, sub) for n in range(10) for sub in range(2)])

B_KS = 8416
def b2_head(a, vd):
    a(f"""s_mul_i32 s57, s56, 205
    s_lshr_b32 s57, s57, 10
    s_mul_i32 s54, s57, 5
    s_sub_u32 s58, s56, s54""")
    assert all((v * 205) >> 10 == v // 5 for v in range(216))
    srd(a, SRD0, P_WO, 640 * 1280)
    a(f"""s_lshl_b32 s59, s58, 8
    s_mul_i32 s53, s{SW}, {160*1280}
    s_add_u32 s59, s59, s53
    s_lshl_b32 s53, s{SW}, 6
    s_mul_i32 s65, s{SW}, 20480
    s_add_u32 s65, s65, s{SLB}
    v_and_b32 v240, 15, v1
    v_lshrrev_b32 v241, 4, v1
    v_lshlrev_b32 v240, 4, v240
    v_xor_b32 v240, s53, v240
    v_mul_u32_u24 v241, {8*1280}, v241
    v_add3_u32 v{vd}, v240, v241, s59""")
def b2_dma(kstep, slot, vd=2):
    return [[f"s_add_u32 m0, s65, {slot*B_KS + i*1056}", f"s_mov_b32 s63, {(32*kstep + i)*1280}",
             f"buffer_load_dwordx4 v{vd}, {sq(SRD0)}, s63 offen lds ; tag=K{kstep}"] for i in range(8)]

def role_q(a):
    a(f"""s_lshl_b32 s52, s57, 3
    s_lshl_b32 s53, s{SW}, 1
    s_add_u32 s52, s52, s53
    s_mul_i32 s52, s52, 20
    s_sub_u32 s53, s58, 8
    s_mul_i32 s54, s53, 5
    s_add_u32 s52, s52, s54
    s_lshl_b32 s52, s52, 10
    s_add_u32 s52, s52, {WS_PQ}
    s_mul_i32 s55, s53, 17
    s_add_u32 s55, s55, s57
    s_lshl_b32 s55, s55, 7
    s_add_u32 s55, s55, {WS_QFLAG}
    v_lshlrev_b32 v6, 4, v1""")
    if cfg.qearly:
        a("s_lshr_b32 s53, s2, 3\n s_sub_u32 s53, s53, 5\n s_and_b32 s56, s2, 7\n s_mul_i32 s56, s56, 27\n s_add_u32 s56, s56, s53")
        b2_head(a, 208)
    def tail(mf):
        bar_arrive(a)
        ep = []
        for c in range(5):
            for sub in range(2):
                r0 = G_ACC + (sub * 10 + 2 * c) * 4
                ep += phi_block(list(range(r0, r0 + 8)), list(range(240, 248)))
                d = G_B + (sub * 5 + c) * 4
                ep += [f"v_cvt_pk_bf16_f32 v{d+k}, v{r0+2*k}, v{r0+2*k+1}" for k in range(4)]
                ep += [f"s_add_u32 s54, s52, {(sub*20+c)*1024}", f"buffer_store_dwordx4 {v4(d)}, v6, {sq(SRDWS)}, s54 offen sc1"]
        n = 2 * (len(mf) - 8)
        a.extend(mf[:8])
        a.extend(interleave(mf[8:], ep[:n]))
        stamp(a, 2)
        a.extend(ep[n:])
        if cfg.qearly:
            a("s_cmp_lt_u32 s2, 168\n s_cbranch_scc1 L_QE\n PUSHSTATE")
            bar_wait(a, True)
            for g in b2_dma(0, 0, 208) + b2_dma(1, 1, 208): a.extend(g)
            a("POPSTATE"); a.label("L_QE")
    g_main(a, True, tail)
    stamp(a, 3)
    signal(a, 55, 4, L_SIG)
    stamp(a, 4)

MV = 224
M_IMG = 8448
def mini_head(a):
    srd(a, SRD0, P_H, 640 * 4096)
    a(f"""s_add_u32 s59, s2, 512
    s_lshl_b32 s60, s59, 12
    s_add_u32 s62, s{P_H}, s60
    s_addc_u32 s63, s{P_H+1}, 0
    s_load_dword s64, s[62:63], 0
    s_lshr_b32 s54, s59, 1
    s_lshl_b32 s54, s54, 2
    s_load_dword s65, s[{P_D}:{P_D+1}], s54
    s_lshl_b32 s54, s{SW}, 10
    v_lshl_add_u32 v6, v1, 4, s54
    buffer_load_dwordx4 {v4(MV)}, v6, {sq(SRD0)}, s60 offen
    buffer_load_dwordx4 {v4(MV+4)}, v6, {sq(SRD0)}, s60 offen offset:4
    v_mov_b32 v8, 0
    s_mov_b32 s61, {WS_UFLG + 1024}
    s_mul_i32 s55, s59, {TP}
    s_waitcnt lgkmcnt(0)
    s_add_u32 s62, s55, {WS_UT}
    s_add_u32 s55, s55, {WS_YT}
    s_lshr_b32 s63, s59, 6
    s_lshl_b32 s63, s63, 10
    s_add_u32 s63, s63, {WS_YFLG}
    s_lshl_b32 s53, s65, 16
    s_and_b32 s54, s65, 0xffff0000
    s_bitcmp1_b32 s59, 0
    s_cselect_b32 s53, s54, s53
    s_lshl_b32 s54, s64, 16
    v_mov_b32 v240, s54
    v_add_f32 v240, s53, v240
    s_and_b32 s54, s64, 0xffff0000
    v_mov_b32 v241, s54
    v_cvt_pk_bf16_f32 v{MV+12}, v240, v241
    v_and_b32 v240, 15, v1
    v_lshrrev_b32 v241, 4, v1
    v_add_u32 v242, 1, v240
    v_bfe_u32 v243, v242, 1, 1
    v_mul_u32_u24 v243, {C_HCOPY}, v243
    v_lshrrev_b32 v244, 2, v242
    v_lshl_add_u32 v244, v241, 3, v244
    v_lshl_add_u32 v243, v244, 3, v243
    s_lshr_b32 s53, s{SW}, 1
    s_and_b32 s54, s{SW}, 1
    s_lshl_b32 s53, s53, 7
    s_lshl_b32 s54, s54, 4
    s_add_u32 s53, s53, s54
    s_lshl_b32 s54, s53, 1
    s_add_u32 s54, s54, {M_IMG}
    v_add_u32 v{MV+13}, s54, v243
    v_and_b32 v242, 1, v242
    v_lshlrev_b32 v{MV+14}, 4, v242
    v_lshlrev_b32 v242, 1, v241
    v_sub_u32 v242, v242, v240
    v_add_u32 v242, 15, v242
    s_add_u32 s53, s53, {M_IMG + 2*C_HCOPY}
    v_lshl_add_u32 v{MV+15}, v242, 4, s53
    v_lshrrev_b32 v242, 1, v1
    v_and_b32 v243, 1, v1
    v_mul_u32_u24 v243, {C_UH}, v243
    v_add_u32 v242, v242, v243
    s_lshl_b32 s53, s{SW}, 9
    s_add_u32 s53, s53, {M_IMG + 2*C_HCOPY}
    v_lshl_add_u32 v248, v242, 4, s53
    v_and_b32 v242, 1, v241
    v_mul_u32_u24 v242, {C_UH}, v242
    v_add_u32 v242, v242, v240
    v_lshlrev_b32 v249, 4, v242
    v_and_b32 v242, 1, v1
    v_lshlrev_b32 v242, 4, v242
    v_bfe_u32 v243, v1, 1, 1
    v_mul_u32_u24 v243, {C_HCOPY}, v243
    v_add_u32 v250, v242, v243
    s_lshl_b32 s53, s{SW}, 13
    s_add_u32 s53, s53, {21504 - 8192}
    s_cmp_eq_u32 s{SW}, 0
    s_cselect_b32 s53, 0, s53
    v_lshl_add_u32 v251, v1, 4, s53
    v_bfe_u32 v240, v1, 1, 4
    v_and_b32 v241, 1, v1
    v_lshlrev_b32 v240, 4, v240
    v_lshl_add_u32 v240, v241, 9, v240
    v_lshrrev_b32 v241, 5, v1
    v_lshl_add_u32 v240, v241, 10, v240
    s_lshl_b32 s53, s{SW}, 11
    v_add_u32 v252, s53, v240""")

def mini_conv(a, uld):
    ACC, A, RAW, B = 16, 48, 80, 160
    a(f"""ds_write_b128 v6, {v4(MV)} offset:{M_IMG + 32}
    ds_write_b128 v6, {v4(MV+4)} offset:{M_IMG + C_HCOPY + 32}
    s_cmp_lg_u32 s{SW}, 0
    s_cbranch_scc1 L_MC0
    v_mov_b32 v56, 0
    v_mov_b32 v57, 0
    v_mov_b32 v58, 0
    v_mov_b32 v59, 0
    ds_write_b128 v250, v[56:59] offset:{M_IMG}
    ds_write_b32 v8, v{MV+12} offset:{M_IMG + 32}
    ds_write_b32 v8, v{MV+12} offset:{M_IMG + C_HCOPY + 28}
    ds_write_b128 v249, v[56:59] offset:{M_IMG + 2*C_HCOPY + 128*16}""")
    a.label("L_MC0")
    a("s_waitcnt vmcnt(0)")
    if cfg.sig0:
        a(f"""v_mov_b32 v13, {L_BAR}
        v_mov_b32 v14, 1
        s_mov_b64 exec, 1
        ds_add_rtn_u32 v12, v13, v14 offset:8
        s_mov_b64 exec, -1
        s_mov_b32 s79, 1
        s_waitcnt lgkmcnt(0)
        v_readfirstlane_b32 s53, v12
        s_cmp_lg_u32 s53, 3
        s_cbranch_scc1 L_MS0
        s_atomic_add s79, s[6:7], {WS_CNT} glc""")
        a.label("L_MS0")
    else: gate_arrive(a)
    stamp(a, 4)
    a("s_cmp_eq_u32 s67, 1\n s_cbranch_scc1 L_MU1")
    check(a, "mu", 7, 8, "s61", 1)
    a(uld + "\n s_waitcnt vmcnt(0)")
    a.label("L_MU1")
    a(f"ds_write_b128 v248, {v4(MV+8)}")
    bar_arrive(a)
    if cfg.sig0:
        a("s_waitcnt lgkmcnt(0)\n s_cmp_lg_u32 s79, 15\n s_cbranch_scc1 L_MS1\n s_mov_b32 s79, 1")
        if cfg.fmode == 0:
            for r in range(cfg.krep): a(f"s_atomic_add s79, s[6:7], {1024*r}")
        else:
            a(f"v_lshlrev_b32 v12, 10, v1\n s_mov_b64 exec, {(1 << cfg.krep) - 1}\n global_store_dword v12, v14, s[6:7] sc1\n s_mov_b64 exec, -1")
        a.label("L_MS1")
    bar_wait(a, True)
    a(f"s_setprio {cfg.mprio}")
    stamp(a, 5)
    def raw(N1, k): return RAW + N1 * 10 + 2 * k
    rr = [[f"ds_read_b64 {v2(raw(N1, k))}, v{MV+13} offset:{N1*512 + k*8}" for k in ks] for ks in ((0, 1, 2), (3, 4)) for N1 in range(8)]
    br = [[f"ds_read_b128 {v4(B + i*32 + 4*dl)}, v{MV+15} offset:{(14-2*dl)*128 + i*C_UH*16}" for dl in range(8)] for i in range(2)]
    def al(i, N1): return [f"v_alignbit_b32 v{A + 4*N1 + k}, v{raw(N1, 2*i) + k + 1}, v{raw(N1, 2*i) + k}, v{MV+14}" for k in range(4)]
    a.extend(rr[0] + br[0])
    for N1 in range(1, 8): a.extend(rr[N1])
    a.extend(al(0, 0))
    queue = [x for N1 in range(1, 8) for x in al(0, N1)]
    queue = queue[:4] + interleave(queue[4:], br[1] + [x for N1 in range(8) for x in rr[8 + N1]])
    def wr(J): return f"ds_write_b128 v251, {v4(ACC + 4*J)} offset:{1024*J}"
    for i in range(2):
        for N1 in range(8):
            tg = f"v_alignbit_b32 v{A+4*N1+3},"
            pos = min((k for k, q in enumerate(queue) if q.startswith(tg)), default=-1) if not (i == 0 and N1 == 0) else -1
            for q in queue[:pos + 1]: a(q)
            queue = queue[pos + 1:]
            for J in range(N1, 8):
                acc = v4(ACC + 4 * J)
                a(f"v_mfma_f32_16x16x32_bf16 {acc}, {v4(A+4*N1)}, {v4(B + i*32 + 4*(J-N1))}, {'0' if (i == 0 and N1 == 0) else acc}")
                for _ in range(2):
                    if queue: a(queue.pop(0))
            if i == 0: queue += al(1, N1)
            elif N1 >= 2: queue.append(wr(N1 - 2))
    a.extend(queue + [wr(6), wr(7)])
    bar_arrive(a); bar_wait(a, True)
    stamp(a, 6)
    for src in range(4):
        base = 0 if src == 0 else 21504 + 8192 * (src - 1)
        for h in range(2): a(f"ds_read_b128 {v4(48 + 8*src + 4*h)}, v252 offset:{base + 256*h}")
    for r in range(8): a(f"v_add_f32 v{48+r}, v{48+r}, v{56+r}")
    for r in range(8): a(f"v_add_f32 v{64+r}, v{64+r}, v{72+r}")
    for r in range(8): a(f"v_add_f32 v{48+r}, v{48+r}, v{64+r}")
    for d in range(4): a(f"v_cvt_pk_bf16_f32 v{80+d}, v{48+2*d}, v{49+2*d}")
    a(f"buffer_store_dwordx4 v[80:83], v6, {sq(SRDWS)}, s55 offen sc1")
    signal(a, 63, 4, L_SIG, 64)
    stamp(a, 7)

def role_kv(a):
    EX, HB = G_SLOT, 0
    DUMP = HB + 4 * 2048
    AD = 208
    a(f"""v_lshlrev_b32 v240, 4, v1
    s_mul_i32 s52, s{SW}, 10240
    s_add_u32 s52, s52, {EX}
    v_add_u32 v{AD+6}, s52, v240
    s_lshl_b32 s52, s{SW}, 10
    s_add_u32 s52, s52, {EX}
    v_add_u32 v{AD+7}, s52, v240
    v_and_b32 v246, 15, v1
    v_lshrrev_b32 v247, 4, v1
    v_lshlrev_b32 v247, 2, v247
    s_lshl_b32 s52, s{SW}, 2
    v_subrev_u32 v246, s52, v246
    v_subrev_u32 v247, s52, v247
    s_lshl_b32 s53, s{SW}, 11
    v_mov_b32 v245, {DUMP}
    v_lshlrev_b32 v{AD+8}, 2, v1
    v_add_u32 v{AD+9}, s53, v{AD+8}""")
    for k in range(4): a(f"v_mov_b32 v{AD+12+k}, 0x3f803f80")
    k = 0
    for dt in range(2):
        for et in range(2):
            a(f"""v_add_u32 v240, {16*dt}, v247
            v_add_u32 v241, {16*et}, v246
            v_max_u32 v242, v240, v241
            v_cmp_gt_u32 vcc, 20, v242
            v_mul_u32_u24 v241, 80, v241
            v_lshl_add_u32 v241, v240, 2, v241
            v_add_u32 v241, s53, v241
            v_cndmask_b32 v{AD+k}, v245, v241, vcc""")
            k += 1
        a(f"""v_add_u32 v240, {16*dt}, v247
        v_and_b32 v241, 15, v1
        v_mul_u32_u24 v241, 20, v241
        v_max_u32 v242, v240, v241
        v_cmp_gt_u32 vcc, 20, v242
        v_lshlrev_b32 v240, 2, v240
        v_add_u32 v240, s53, v240
        v_add_u32 v240, 1600, v240
        v_cndmask_b32 v{AD+4+dt}, v245, v240, vcc""")
    a(f"""s_lshl_b32 s52, s58, 2
    s_add_u32 s52, s52, s{SW}
    s_mul_i32 s52, s52, 1680
    s_add_u32 s52, s52, {WS_KV}
""")
    a(f"s_lshl_b32 s53, s58, 7\n s_add_u32 s6, s{P_WS}, s53\n s_addc_u32 s7, s{P_WS+1}, 0")
    mini_head(a)
    def tail(mf):
        ep = []
        for t in [0, 1, 5, 2, 6, 7, 3, 8, 9, 4]:
            r0 = G_ACC + t * 4; r1 = G_ACC + (10 + t) * 4
            if t < 5: ep += phi_block(list(range(r0, r0 + 4)) + list(range(r1, r1 + 4)), list(range(240, 248)))
            d = G_B + t * 4
            ep += [f"v_cvt_pk_bf16_f32 v{d}, v{r0}, v{r0+1}", f"v_cvt_pk_bf16_f32 v{d+1}, v{r0+2}, v{r0+3}",
                   f"v_cvt_pk_bf16_f32 v{d+2}, v{r1}, v{r1+1}", f"v_cvt_pk_bf16_f32 v{d+3}, v{r1+2}, v{r1+3}",
                   f"ds_write_b128 v{AD+6}, {v4(d)} offset:{t*1024}"]
        n = 2 * (len(mf) - 6)
        a.extend(mf[:6])
        a.extend(interleave(mf[6:], ep[:n]))
        stamp(a, 2)
        a(probe(7, 8, "s61"))
        a.extend(ep[n:])
    g_main(a, False, tail)
    uld = f"buffer_load_dwordx4 {v4(MV+8)}, v6, {sq(SRDWS)}, s62 offen sc1"
    bar_arrive(a)
    a(f"v_cmp_gt_u32 vcc, 1, v7\n s_mov_b32 s67, 0\n s_nop 0\n s_cbranch_vccnz L_MU0\n PUSHSTATE\n {uld}\n s_mov_b32 s67, 1\n POPSTATE")
    a.label("L_MU0")
    bar_wait(a, True)
    F = 136
    for rg in range(4):
        for q, off in enumerate([0, 5120, 1024, 6144]):
            a(f"ds_read_b128 {v4(F + rg*16 + [0, 2, 1, 3][q]*4)}, v{AD+7} offset:{rg*10240 + off}")
    D = 16
    for rg in range(4):
        for dt in range(2):
            A = v4(F + rg * 16 + dt * 4)
            acc = v4(D + 16 + dt * 4)
            a(f"v_mfma_f32_16x16x32_bf16 {acc}, {A}, {v4(AD+12)}, {'0' if rg == 0 else acc}")
            for et in range(2):
                acc = v4(D + (dt * 2 + et) * 4)
                a(f"v_mfma_f32_16x16x32_bf16 {acc}, {A}, {v4(F + rg*16 + 8 + et*4)}, {'0' if rg == 0 else acc}")
    for k in [4, 0, 1, 5, 2, 3]: a(f"ds_write_b128 v{AD+k}, {v4(D + 4*k)}")
    for i in range(7): a(f"ds_read_b32 v{48+i}, v{AD+9} offset:{256*i}")
    stamp(a, 3)
    for i in range(7):
        if i == 6: a("s_mov_b32 exec_hi, 0xf")
        a(f"buffer_atomic_add_f32 v{48+i}, v{AD+8}, {sq(SRDWS)}, s52 offen offset:{256*i}")
    a("s_mov_b64 exec, -1")
    mini_conv(a, uld)

C_HCOPY = 4224; C_UH = 144; C_WAVE = 2 * C_HCOPY + 2 * C_UH * 16
C_STG = HALF + 4 * C_WAVE; C_STGP = 4160
PV = 224
def WOW():
    if not cfg.wowarm: return ""
    return f"""s_cmp_eq_u32 s{SW8}, 0
    s_cbranch_scc1 L_WW
    s_sub_u32 s52, s2, 192
    s_lshl_b32 s52, s52, 1
    s_add_u32 s52, s52, s{SW8}
    s_sub_u32 s52, s52, 1
    s_mul_i32 s52, s52, 6400
    v_lshlrev_b32 v3, 7, v1
    v_min_u32 v3, 6272, v3
    v_add_u32 v3, s52, v3
    global_load_dword v15, v3, s[{P_WO}:{P_WO+1}]
    s_waitcnt vmcnt(0)
    L_WW:"""
def role_prep(a):
    a(f"""s_and_b32 s52, s2, 7
    s_lshl_b32 s52, s52, 2
    s_bfe_u32 s53, s2, 0x20004
    s_add_u32 s52, s52, s53
    s_lshl_b32 s52, s52, 6
    s_bfe_u32 s65, s2, 0x10003
    s_mul_i32 s53, s65, 320
    s_sub_u32 s54, s{SW8}, 3
    s_lshl_b32 s55, s{SW8}, 1
    s_cmp_ge_u32 s{SW8}, 3
    s_cselect_b32 s54, s54, s55
    s_lshl_b32 s54, s54, 6
    s_add_u32 s53, s53, s54
    v_lshrrev_b32 v240, 3, v1
    v_lshl_add_u32 v241, v240, 3, s52
    v_and_b32 v242, 7, v1
    v_lshl_add_u32 v243, v242, 3, s53
    v_mul_u32_u24 v241, 1280, v241
    v_lshl_add_u32 v{PV}, v243, 1, v241
    s_movk_i32 s55, 5120""")
    def common2(rev):
        a(f"""v_add_u32 v241, s53, v240
        v_mul_u32_u24 v241, {TP}, v241
        v_lshl_add_u32 v{PV+3}, v242, 4, v241
        s_mul_i32 s54, s{SW}, 20480
        s_mul_i32 s63, s{SGRP}, 10240
        s_add_u32 s54, s54, s63
        v_mul_u32_u24 v241, 1040, v242
        v_add_u32 v241, s54, v241""")
        if rev: a("v_sub_u32 v240, 7, v240")
        a(f"""v_lshl_add_u32 v{PV+4}, v240, 4, v241
        v_lshl_add_u32 v{PV+5}, v1, 4, s54
        s_lshl_b32 s64, s52, 1
        s_mov_b32 s70, 0x05040100
        s_mov_b32 s71, 0x07060302""")
    def rds(R): return [f"ds_read_b128 {v4(R+4*i)}, v{PV+5} offset:{1040*i}" for i in range(8)]
    def sts(R, extra): return [x for i in range(8) for x in (f"s_add_u32 s54, s64, {8*TP*i + extra}", f"buffer_store_dwordx4 {v4(R+4*i)}, v{PV+3}, {sq(SRDWS)}, s54 offen sc1")]
    a(f"s_cmp_lt_u32 s{SW8}, 3\n s_cbranch_scc1 L_PQ")
    tag(a, 3)
    a(f"v_subrev_u32 v{PV+1}, 3840, v{PV}\n v_lshlrev_b32 v{PV+2}, 3, v243\n s_waitcnt lgkmcnt(0)")
    srd(a, SRD0, P_K, 2048 * 1280)
    if cfg.x_pd: a(f"s_sleep {cfg.x_pd}")
    K, V, C = 16, 60, 92
    for r in range(3): a(f"buffer_load_dwordx4 {v4(K+4*r)}, v{PV+1}, {sq(SRD0)}, 0 offen offset:{1280*r}")
    for r in range(8): a(f"buffer_load_dwordx4 {v4(K+12+4*r)}, v{PV}, {sq(SRD0)}, {'s55' if r >= 4 else '0'} offen offset:{1280*(r%4)}")
    srd(a, SRD1, P_V, 2048 * 1280); srd(a, SRD3, P_SH, 640 * 8)
    for r in range(4): a(f"buffer_load_dwordx4 {v4(C+4*r)}, v{PV+2}, {sq(SRD3)}, 0 offen offset:{16*r}")
    for r in range(8):
        a(f"buffer_load_dwordx4 {v4(V+4*r)}, v{PV}, {sq(SRD1)}, {'s55' if r >= 4 else '0'} offen offset:{1280*(r%4)}")
    args_ready(a)
    common2(True)
    a(f"s_sub_u32 s64, {WS_UT + 1984*2}, s64\n s_mov_b32 s62, 0xffff0000")
    stamp(a, 1)
    P, T, U, O = 108, 120, 184, 192
    for ch in range(8):
        dw, hi = ch // 2, ch % 2
        sel = "s71" if hi else "s70"
        for s_ in range(-2, 8):
            a(f"v_perm_b32 v{P+s_+2}, v{K+4*(s_+2)+dw}, v{K+4*(s_+3)+dw}, {sel}")
        for s_ in range(8): a(f"v_dot2_f32_bf16 v{T+8*ch+s_}, v{P+s_}, v{C+2*ch+1}, 0")
        for s_ in range(8): a(f"v_dot2_f32_bf16 v{T+8*ch+s_}, v{P+s_+2}, v{C+2*ch}, v{T+8*ch+s_}")
    for ch in range(8):
        dw, hi = ch // 2, ch % 2
        for s_ in range(8):
            a(f"v_and_b32 v{U+s_}, s62, v{V+4*s_+dw}" if hi else f"v_lshlrev_b32 v{U+s_}, 16, v{V+4*s_+dw}")
        for s_ in range(8): a(f"v_mul_f32 v{T+8*ch+s_}, v{T+8*ch+s_}, v{U+s_}")
        o = O + 4 * ch
        for j in range(4): a(f"v_cvt_pk_bf16_f32 v{o+j}, v{T+8*ch+7-2*j}, v{T+8*ch+6-2*j}")
        a(f"ds_write_b128 v{PV+4}, {v4(o)} offset:{128*ch}")
    a.extend(rds(16) + sts(16, 0))
    stamp(a, 2)
    zero_probe(a, 3, 4)
    zero_check(a, "pu", 3, 4)
    a("s_waitcnt vmcnt(0)\n s_barrier")
    stamp(a, 3)
    a(f"s_cmp_eq_u32 s{SGRP}, 1\n s_cbranch_scc1 L_CONV\n s_branch L_PW")
    a.label("L_PQ")
    tag(a, 6)
    a(f"s_cmp_lg_u32 s{SW8}, 2\n s_cbranch_scc1 L_PQ0")
    init_wave(a, "p")
    a.label("L_PQ0")
    args_ready(a)
    a(f"""s_lshl_b32 s65, s65, 10
    s_add_u32 s65, s65, {WS_UFLG}
    s_add_u32 s68, s{P_WS}, s65
    s_addc_u32 s69, s{P_WS+1}, 0
    s_mov_b32 s78, 1
    s_mov_b32 s79, 1
    s_waitcnt vmcnt(0)
    s_barrier
    {WOW()}
    s_cmp_lg_u32 s{SW8}, 0
    s_cbranch_scc1 L_PW
    s_atomic_add s79, s[68:69], {WS_CNT} glc
    s_waitcnt lgkmcnt(0)
    s_cmp_lg_u32 s79, 31
    s_cbranch_scc1 L_PW""")
    for r in range(cfg.nrep): a(f"s_atomic_add s78, s[68:69], {128*r}")
    a("s_waitcnt lgkmcnt(0)")
    a.label("L_PW")
    if cfg.pearly: a("s_branch L_B2")
    a(f"v_mov_b32 v13, {HALF + L_BAR + 8}")
    a.label("L_PWW")
    a("s_sleep 4\n ds_read_b32 v14, v13\n s_waitcnt lgkmcnt(0)\n v_cmp_gt_u32 vcc, 4, v14\n s_nop 1\n s_cbranch_vccnz L_PWW")
    stamp(a, 3)
    a("s_branch L_B2")

def conv_head(a, pr=False):
    a(f"""s_and_b32 s52, s2, 7
    s_lshl_b32 s52, s52, 4
    s_lshr_b32 s53, s2, 3
    s_and_b32 s61, s2, {7 if cfg.nrep == 8 else 0}
    s_sub_u32 s53, s53, 16
    s_add_u32 s57, s52, s53
    s_lshl_b32 s58, s57, 2
    s_add_u32 s58, s58, s{SW}
    s_lshl_b32 s59, s58, 12
    s_mul_i32 s60, s{SW}, {C_WAVE}
    s_add_u32 s60, s60, {HALF}
    s_add_u32 s52, s{P_H}, s59
    s_addc_u32 s53, s{P_H+1}, 0
    s_load_dword s66, s[52:53], 0
    s_lshr_b32 s54, s58, 1
    s_lshl_b32 s54, s54, 2
    s_load_dword s67, s[{P_D}:{P_D+1}], s54
    s_lshl_b32 s61, s61, 7
    s_cmp_ge_u32 s57, 80
    s_cselect_b32 s54, {0 if cfg.uall else 1024}, 0
    s_add_u32 s61, s61, s54
    s_add_u32 s61, s61, {WS_UFLG}
    s_lshr_b32 s63, s57, 4
    s_mul_i32 s63, s63, {0 if cfg.yall else 1024}
    s_add_u32 s63, s63, {WS_YFLG}
    v_lshlrev_b32 v2, 4, v1
    v_add_u32 v3, 4, v2
    v_mov_b32 v12, 0""")
    if pr: a(probe(15, 12, "s61"))
    srd(a, SRD0, P_H, 640 * 4096)
    a(f"s_add_u32 m0, s60, 32")
    for i in range(4): a(f"buffer_load_dwordx4 v2, {sq(SRD0)}, s59 offen offset:{1024*i} lds ; tag=H")
    a(f"s_add_u32 m0, s60, {C_HCOPY + 32}")
    for i in range(4): a(f"buffer_load_dwordx4 v3, {sq(SRD0)}, s59 offen offset:{1024*i} lds ; tag=H")

def role_conv(a):
    ACC, A, RAW, B, UL = 16, 48, 80, 128, 224
    conv_head(a, True)
    last_barrier(a, "conv", 9)
    tag(a, 4)
    stamp(a, 4)
    a(f"s_mul_i32 s55, s58, {TP}\n s_add_u32 s65, s55, {WS_UT}\n s_add_u32 s55, s55, {WS_YT}")
    uld = [f"buffer_load_dwordx4 {v4(UL+4*i)}, v2, {sq(SRDWS)}, s65 offen offset:{1024*i} sc1" for i in range(4)]
    fin_strip(a); fin_head(a)
    a(f"""v_and_b32 v8, 15, v1
    v_lshrrev_b32 v9, 4, v1
    v_add_u32 v10, 1, v8
    v_bfe_u32 v11, v10, 1, 1
    v_mul_u32_u24 v11, {C_HCOPY}, v11
    v_lshrrev_b32 v13, 2, v10
    v_lshl_add_u32 v13, v9, 3, v13
    v_lshl_add_u32 v11, v13, 3, v11
    v_add_u32 v4, s60, v11
    v_and_b32 v10, 1, v10
    v_lshlrev_b32 v5, 4, v10
    v_lshlrev_b32 v10, 1, v9
    v_sub_u32 v10, v10, v8
    v_add_u32 v10, 15, v10
    v_lshlrev_b32 v10, 4, v10
    v_add_u32 v6, s60, v10
    v_lshrrev_b32 v10, 1, v1
    v_and_b32 v11, 1, v1
    v_mul_u32_u24 v11, {C_UH}, v11
    v_add_u32 v10, v10, v11
    v_lshlrev_b32 v10, 4, v10
    v_add_u32 v7, s60, v10
    v_mov_b32 v16, 0
    v_mov_b32 v17, 0
    v_mov_b32 v18, 0
    v_mov_b32 v19, 0
    v_and_b32 v10, 1, v9
    v_mul_u32_u24 v10, {C_UH}, v10
    v_add_u32 v10, v10, v8
    v_lshl_add_u32 v20, v10, 4, s60
    v_and_b32 v10, 1, v1
    v_lshlrev_b32 v10, 4, v10
    v_bfe_u32 v11, v1, 1, 1
    v_mul_u32_u24 v11, {C_HCOPY}, v11
    v_add3_u32 v21, v10, v11, s60
    v_lshlrev_b32 v10, 5, v8
    v_lshl_add_u32 v8, v9, 3, v10""")
    a(f"""s_waitcnt lgkmcnt(0)
    s_lshl_b32 s52, s66, 16
    s_lshl_b32 s53, s67, 16
    s_and_b32 s54, s67, 0xffff0000
    s_bitcmp1_b32 s58, 0
    s_cselect_b32 s53, s54, s53
    s_and_b32 s54, s66, 0xffff0000
    v_mov_b32 v10, s52
    v_add_f32 v10, s53, v10
    v_mov_b32 v11, s54
    v_cvt_pk_bf16_f32 v10, v10, v11
    v_mov_b32 v11, s60
    WAITTAG H
    v_cmp_gt_u32 vcc, 1, v15
    s_mov_b32 s62, 0
    s_nop 0
    s_cbranch_vccnz L_CU0
    PUSHSTATE
    {chr(10).join(uld)}
    s_mov_b32 s62, 1
    s_branch L_CU1
    POPSTATE
    L_CU0:
    {probe(15, 12, "s61")}
    L_CU1:
    ds_write_b128 v21, v[16:19]
    ds_write_b32 v11, v10 offset:32
    ds_write_b32 v11, v10 offset:{C_HCOPY+28}
    ds_write_b128 v20, v[16:19] offset:{2*C_HCOPY + 128*16}""")
    def raw_slots(i):
        return [(0, 1, 2), (2, 0, 1), (1, 2, 0), (0, 1, 2)][i]
    def raw_reads(it, N1):
        N0, i = it >> 2, it & 3
        sl = raw_slots(i)
        return [f"ds_read_b64 {v2(RAW + N1*6 + 2*sl[k])}, v4 offset:{(2*N1+N0)*256 + (2*i+k)*8}" for k in range(0 if i == 0 else 1, 3)]
    def aligns(it, N1):
        sl = raw_slots(it & 3)
        d = [RAW + N1 * 6 + 2 * sl[0], RAW + N1 * 6 + 2 * sl[0] + 1, RAW + N1 * 6 + 2 * sl[1], RAW + N1 * 6 + 2 * sl[1] + 1, RAW + N1 * 6 + 2 * sl[2]]
        return [f"v_alignbit_b32 v{A + 4*N1 + k}, v{d[k+1]}, v{d[k]}, v5" for k in range(4)]
    def b_reads(it):
        N0, i = it >> 2, it & 3
        return [f"ds_read_b128 {v4(B + (it&1)*32 + 4*dl)}, v6 offset:{2*C_HCOPY + (14-(2*dl-N0))*128 + (i>>1)*16 + (i&1)*C_UH*16}" for dl in range(8)]
    for N1 in range(8): a.extend(raw_reads(0, N1))
    for N1 in range(8):
        a.extend(aligns(0, N1)); a.extend(raw_reads(1, N1))
    a("s_cmp_eq_u32 s62, 1\n s_cbranch_scc1 L_CU2\n PUSHSTATE")
    check(a, "convu", 15, 12, "s61", 1)
    a.extend(uld)
    a("POPSTATE"); a.label("L_CU2")
    stamp(a, 5)
    a("s_waitcnt vmcnt(0)")
    for i in range(4): a(f"ds_write_b128 v7, {v4(UL+4*i)} offset:{2*C_HCOPY + 512*i}")
    a.extend(b_reads(0))
    gate_arrive(a)
    a(f"s_setprio {cfg.vprio}")
    stamp(a, 6)
    def epi(J):
        T = 80 + 2 * J
        o = [f"v_cvt_pk_bf16_f32 v{T}, v{ACC+4*J}, v{ACC+4*J+1}", f"v_cvt_pk_bf16_f32 v{T+1}, v{ACC+4*J+2}, v{ACC+4*J+3}", f"ds_write_b64 v9, {v2(T)} offset:{512*J}"]
        if J & 1: o.append(f"ds_read_b128 {v4(96+2*(J-1))}, v10 offset:{512*(J-1)} ; y")
        if J in (3, 5): o.append(ysto((J - 3) // 2))
        return o
    def ysto(i): return f"buffer_store_dwordx4 {v4(96+4*i)}, v2, {sq(SRDWS)}, s55 offen offset:{1024*i} sc1"
    a("v_add_u32 v9, s60, v8\n v_add_u32 v10, s60, v2")
    queue = []
    for it in range(8):
        if it == 7: a(f"s_setprio {cfg.eprio}")
        if it < 7: queue += b_reads(it + 1)
        if it == cfg.qit:
            a("s_cmp_ge_u32 s56, 10\n s_cbranch_scc1 L_NQ\n PUSHSTATE"); a.extend(fin_qloads()); a("POPSTATE"); a.label("L_NQ")
        for N1 in range(8):
            tg = f"v_alignbit_b32 v{A+4*N1+3},"
            pos = max((k for k, q in enumerate(queue) if q.startswith(tg)), default=-1)
            for q in queue[:pos + 1]: a(q)
            queue = queue[pos + 1:]
            for J in range(N1, 8):
                acc = v4(ACC + 4 * J)
                c = "0" if (it == 0 and N1 == 0) else acc
                a(f"v_mfma_f32_16x16x32_bf16 {acc}, {v4(A+4*N1)}, {v4(B + (it&1)*32 + 4*(J-N1))}, {c}")
                if not cfg.mix:
                    for _ in range(2):
                        if queue: a(queue.pop(0))
                elif queue:
                    q = queue.pop(0); a(q)
                    if queue:
                        if q.startswith("ds_") and queue[0].startswith("ds_"):
                            k = next((k for k, x in enumerate(queue) if x.startswith("v_alignbit")), None)
                            if k is not None: a(queue.pop(k))
                            elif len(queue) > cfg.mix * 6: a(queue.pop(0))
                        elif q.startswith("v_alignbit") and queue[0].startswith("v_alignbit"):
                            k = next((k for k, x in enumerate(queue) if x.startswith("ds_read_b128") and not x.endswith("; y")), None)
                            a(queue.pop(k if k is not None else 0))
                        else: a(queue.pop(0))
            if it == 7 and N1 >= 2: queue += epi(N1 - 2)
            if it < 7: queue += aligns(it + 1, N1)
            if it < 6: queue += raw_reads(it + 2, N1)
        assert not any(q.startswith("ds_read_b128") and not q.endswith("; y") for q in queue)
    a.extend(queue)
    stamp(a, 7)
    a.extend(epi(6) + epi(7) + [ysto(2), ysto(3)])
    stamp(a, 8)
    signal(a, 63, 4, HALF + L_SIG, 160 if cfg.yall else 16)

FV = 240
def fin_head(a):
    a(f"""s_and_b32 s52, s2, 7
    s_lshl_b32 s52, s52, 2
    s_add_u32 s52, s52, s{SW}
    s_lshl_b32 s52, s52, 6
    s_lshl_b32 s53, s56, 6
    v_lshrrev_b32 v244, 3, v1
    v_lshl_add_u32 v245, v244, 3, s52
    v_and_b32 v246, 7, v1
    v_lshl_add_u32 v247, v246, 3, s53
    v_mul_u32_u24 v245, 1280, v245
    v_lshl_add_u32 v247, v247, 1, v245
    v_add_u32 v{FV}, v247, v245
    v_add_u32 v245, s53, v244
    v_mul_u32_u24 v245, {TP}, v245
    v_lshl_add_u32 v{FV+1}, v246, 4, v245
    v_mul_u32_u24 v245, 1040, v246
    v_lshl_add_u32 v245, v244, 4, v245
    v_add_u32 v{FV+2}, s60, v245
    s_lshl_b32 s64, s52, 1
    s_add_u32 s64, s64, {WS_YT}
    s_movk_i32 s53, 5120""")
    srd(a, SRD2, P_Q, 2048 * 1280); srd(a, SRD1, P_OUT, 2048 * 2560)
    a("s_cmp_ge_u32 s56, 10\n s_cselect_b32 s70, 0x40000000, 0\n s_add_u32 s71, s70, 5120")
def fin_qloads(): return [f"buffer_load_dwordx4 {v4(192+4*r)}, v247, {sq(SRD2)}, {'s71' if r >= 4 else 's70'} offen offset:{1280*(r%4)}" for r in range(8)]
def fin_strip(a):
    a(f"""s_lshr_b32 s53, s2, 3
    s_mul_i32 s54, s{SGRP}, 5
    s_add_u32 s56, s53, s54
    s_sub_u32 s56, s56, 16
    s_cmp_lt_u32 s53, 21
    s_cselect_b32 s56, s56, 15""")
def fin_g0(a):
    fin_strip(a)
    a(f"s_mul_i32 s60, s{SW}, 8448\n s_add_u32 s60, s60, 16384\n v_lshl_add_u32 v10, v1, 4, s60")
    fin_head(a)
    a.extend(fin_qloads())
    bar_wait(a)
    a("s_waitcnt vmcnt(0)\n s_branch L_FINR")

def role_fin(a):
    Q, QF, Y, T, L = 192, 48, 112, 144, 16
    a(f"""s_setprio {cfg.fprio}
    s_and_b32 s61, s2, {7 if cfg.nrep == 8 else 0}
    s_lshl_b32 s61, s61, 7
    s_mul_i32 s54, s56, {0 if cfg.yall else 1024}
    s_add_u32 s61, s61, s54
    s_add_u32 s61, s61, {WS_YFLG}
    s_mov_b32 s62, 0xffff0000
    v_mov_b32 v12, 0""")
    a(probe(15, 12, "s61"))
    for r in range(8):
        for d in range(4):
            a(f"v_lshlrev_b32 v{QF+8*r+2*d}, 16, v{Q+4*r+d}\n v_and_b32 v{QF+8*r+2*d+1}, s62, v{Q+4*r+d}")
    stamp(a, 1)
    check(a, "fin", 15, 12, "s61", 1)
    stamp(a, 2)
    for i in range(8): a(f"s_add_u32 s54, s64, {8*TP*i}\n buffer_load_dwordx4 {v4(L+4*i)}, v{FV+1}, {sq(SRDWS)}, s54 offen sc1")
    for i in range(8): a(f"ds_write_b128 v10, {v4(L+4*i)} offset:{1040*i}")
    for ch in range(8): a(f"ds_read_b128 {v4(Y+4*ch)}, v{FV+2} offset:{128*ch}")
    stamp(a, 3)
    a("s_mov_b32 s54, 0")
    for r in range(8):
        t = T + 8 * (r & 1)
        for ch in range(8):
            src = Y + 4 * ch + r // 2
            a(f"v_and_b32 v{t+ch}, s62, v{src}" if r & 1 else f"v_lshlrev_b32 v{t+ch}, 16, v{src}")
        for ch in range(8): a(f"v_mul_f32 v{t+ch}, v{t+ch}, v{QF+8*r+ch}")
        o = 160 + 4 * r
        for d in range(4): a(f"v_cvt_pk_bf16_f32 v{o+d}, v{t+2*d}, v{t+2*d+1}")
        a(f"buffer_store_dwordx4 {v4(o)}, v{FV}, {sq(SRD1)}, s54 offen{OSC(cfg.fsc)}")
        if r < 7: a("s_add_u32 s54, s54, 2560")

def b2_tables(hf):
    num = {}
    for t in range(5 * hf, 5 * hf + 5):
        hs = {e // 20 for e in range(16 * t, 16 * t + 16)}
        dts = [dt for dt in range(10) if hs & {d // 20 for d in range(16 * dt, 16 * dt + 16)}]
        ch = {}
        for dt in dts: ch.setdefault(dt // 2, []).append(dt)
        num[t] = sorted(ch.items())
    ch = {}
    for dt in range(5 * hf, 5 * hf + 5): ch.setdefault(dt // 2, []).append(dt)
    return num, sorted(ch.items())

NS = 3
def role_b2(a):
    PQ, KV, RAW = 16, 108, 180
    WA = [76 + 4 * n for n in range(8)]
    WB = [228 + 4 * n for n in range(7)] + [8]
    ACC = 108
    U = [180, 204]
    b2_head(a, 2)
    dma = b2_dma
    def wreads(slot, dst):
        return [f"ds_read_b64_tr_b16 {v2(dst[n] + 2*h)}, v0 offset:{slot*B_KS + h*512 + 32*n}" for n in range(8) for h in range(2)]
    if not cfg.qearly: bar_wait(a)
    for g in dma(0, 0): a.extend(g)
    last_barrier(a, "b2", 8)
    for g in dma(1, 1): a.extend(g)
    a.label("L_B2Q")
    a("v_and_b32 v8, 15, v1\n v_lshrrev_b32 v9, 4, v1")
    a(f"s_setprio {cfg.cprio}")
    srd(a, SRD1, P_OUT, 2048 * 2560)
    a(f"""v_bfe_u32 v10, v1, 2, 3
    v_mul_u32_u24 v10, 1056, v10
    v_lshrrev_b32 v11, 5, v1
    v_lshl_add_u32 v10, v11, 8, v10
    v_and_b32 v11, 3, v1
    v_lshl_add_u32 v10, v11, 3, v10
    v_add_u32 v0, s65, v10
    s_add_u32 s64, s65, {2*B_KS}
    v_lshlrev_b32 v9, 3, v9
    v_mul_u32_u24 v3, 40, v8
    v_add3_u32 v3, v3, v9, s64
    v_mul_u32_u24 v4, 800, v11
    v_add3_u32 v4, v4, v9, s64
    v_lshlrev_b32 v5, 4, v1
    v_lshlrev_b32 v6, 3, v1
    v_add_u32 v6, s64, v6
    v_add_u32 v7, 4096, v5
    s_mul_i32 s52, s57, 3
    s_lshr_b32 s53, s52, 3
    s_add_u32 s54, s52, 2
    s_min_u32 s54, s54, 127
    s_lshr_b32 s54, s54, 3
    s_sub_u32 s54, s54, s53
    s_lshl_b32 s54, s54, 7
    v_and_b32 v12, 1, v1
    v_mul_u32_u24 v13, {0 if cfg.kvall else 128}, v12
    v_mul_u32_u24 v12, s54, v12
    s_mul_i32 s60, s{SW}, 17
    s_add_u32 s60, s60, s53
    s_lshl_b32 s60, s60, 7
    s_add_u32 s60, s60, {WS_QFLAG}
    s_and_b32 s61, s2, {cfg.krep - 1}
    s_lshl_b32 s61, s61, 10
    s_mul_i32 s53, s{SW}, {0 if cfg.kvall else 256}
    s_add_u32 s61, s61, s53
    s_mul_i32 s52, s52, 20480
    s_mul_i32 s53, s{SW}, 5120
    s_add_u32 s52, s52, s53
    s_add_u32 s52, s52, {WS_PQ}
    s_mul_i32 s62, s{SW}, {8*1680}
    s_add_u32 s62, s62, {WS_KV}
    s_mov_b32 s73, {EPS}
    s_mov_b32 s66, 0xffff0000
    s_mov_b32 s67, -1
    s_mov_b32 s68, 0
    s_mov_b32 s69, -1
    s_mov_b32 s70, 0
    s_mov_b32 s71, 0xffff0000""")
    if cfg.qpre: a(probe(14, 12, "s60"))
    for r in range(KV, KV + 72): a(f"v_mov_b32 v{r}, 0")
    def allmasks():
        ms = []
        num, den = b2_tables(0)
        for (kind, t, dt) in [("z", 0, dt) for c, dts in den for dt in dts] + [("n", t, dt) for t in num for c, dts in num[t] for dt in dts]:
            m = sum(1 << l for l in range(64) if (16 * dt + 4 * (l >> 4)) // 20 == ((16 * t + (l & 15)) // 20 if kind == "n" else (l & 3)))
            if m not in ms and m != (1 << 64) - 1: ms.append(m)
        return ms
    free = [4, 10, 12, 14, 16, 18, 36, 38, 40, 42, 44, 46, 20, 24]
    mreg = dict(zip(allmasks(), free)) if cfg.smask else {}
    for m, r in mreg.items(): a(f"s_mov_b32 s{r}, {m & 0xffffffff:#x}\n s_mov_b32 s{r+1}, {m >> 32:#x}")
    def setmask(m):
        if m == (1 << 64) - 1: return ["s_mov_b64 exec, -1"]
        if m in mreg: return [f"s_mov_b64 exec, s[{mreg[m]}:{mreg[m]+1}]"]
        return [f"s_mov_b32 exec_lo, {m & 0xffffffff:#x}", f"s_mov_b32 exec_hi, {m >> 32:#x}"]
    def pqpart(sfx=""):
        a(probe(14, 12, "s60"))
        stamp(a, 5)
        check(a, "b2q" + sfx, 14, 12, "s60", 1)
        pqloads()
    def pqloads():
        for sub in range(NS):
            for c in range(5):
                a(f"buffer_load_dwordx4 {v4(PQ + (sub*5+c)*4)}, v{5 if c < 4 else 7}, {sq(SRDWS)}, s52 offen offset:{1024*(c%4)} sc1")
            if sub < NS - 1: a("s_add_u32 s52, s52, 20480")
    a("WAITTAG K0")
    a.extend(wreads(0, WA))
    a("WAITTAG K1")
    a.extend(wreads(1, WB))
    a("s_waitcnt lgkmcnt(0)")
    a(f"s_mov_b32 s79, 1\n s_mov_b32 s8, 0\n s_sub_u32 s54, {HALF + L_BAR + 8}, s{SLB}\n v_mov_b32 v15, s54")
    if cfg.qpre:
        a(f"v_cmp_gt_u32 vcc, 1, v14\n s_sub_u32 s53, s2, 128\n s_cmp_ge_u32 s53, 64\n s_cbranch_scc1 L_QP\n s_cbranch_vccnz L_GT\n PUSHSTATE\n s_mov_b32 s8, 1")
        pqloads()
        a("s_branch L_GT\n POPSTATE"); a.label("L_QP")
    a(f"""s_cmp_ge_u32 s2, 192
    s_cbranch_scc1 L_GTW
    s_cmp_eq_u32 s{SLD}, 0
    s_cbranch_scc1 L_GT
    PUSHSTATE""")
    a.label("L_GQ")
    a(f"""{probe(14, 12, "s60")}
    s_waitcnt vmcnt(0)
    ds_read_b32 v16, v15
    v_cmp_gt_u32 vcc, 1, v14
    s_nop 1
    s_cbranch_vccz L_GQ1
    s_waitcnt lgkmcnt(0)
    v_cmp_gt_u32 vcc, 4, v16
    s_nop 1
    s_cbranch_vccz L_GO
    s_sleep 1
    s_branch L_GQ""")
    a.label("L_GQ1")
    a("s_waitcnt lgkmcnt(0)\n s_mov_b32 s8, 1")
    pqloads()
    a("POPSTATE")
    a.label("L_GTW")
    a("ds_read_b32 v14, v15\n s_waitcnt lgkmcnt(0)\n v_cmp_gt_u32 vcc, 4, v14\n s_nop 1\n s_cbranch_vccz L_GO\n s_sleep 1\n s_branch L_GTW")
    a.label("L_GO")
    if not cfg.sig0:
        a(f"s_cmp_eq_u32 s{SLD}, 0\n s_cbranch_scc1 L_GT\n s_cmp_lg_u32 s{SW}, 0\n s_cbranch_scc1 L_GT")
        a(f"s_atomic_add s79, s[6:7], {WS_CNT} glc")
    a.label("L_GT")
    d23 = dma(2, 0) + dma(3, 1)
    for g in d23[:cfg.sdel]: a.extend(g)
    if not cfg.sig0: a(f"s_waitcnt lgkmcnt(0)\n s_cmp_lg_u32 s79, 15\n s_cbranch_scc1 L_GT2\n s_mov_b32 s79, 1\n s_atomic_add s79, s[6:7], 0")
    a.label("L_GT2")
    for g in d23[cfg.sdel:]: a.extend(g)
    S2 = 4 * C_WAVE; S2W = 7360
    assert S2 + 4 * S2W <= L_BAR
    a(f"s_sub_u32 s59, {HALF + S2}, s{SLB}\n s_mul_i32 s53, s{SW}, {S2W}\n s_add_u32 s59, s59, s53")
    a(f"s_add_u32 s55, s59, {7*1056}\n s_sub_u32 s55, s55, s64\n s_and_b32 s55, s55, 255\n s_add_u32 s55, s55, s64")
    for i in range(7): a(f"s_add_u32 m0, s59, {i*1056}\n s_mov_b32 s63, {(128 + i)*1280}\n buffer_load_dwordx4 v2, {sq(SRD0)}, s63 offen lds")
    a("s_waitcnt lgkmcnt(0)")
    if True:
        a(f"s_cmp_lg_u32 s8, 0\n s_cbranch_scc1 L_PQG\n PUSHSTATE"); pqpart("y"); a("POPSTATE"); a.label("L_PQG")
    a(probe(14, 13, "s61"))
    check(a, "b2kv", 14, 13, "s61", 1)
    stamp(a, 6)
    raw = [RAW + 4 * i for i in range(12)] + [KV + 64, KV + 68]
    for hf in range(2):
        for i in range(7):
            a(f"buffer_load_dwordx4 {v4(raw[hf*7+i])}, v{5 if i < 4 else 7}, {sq(SRDWS)}, s62 offen offset:{1024*(i%4)} sc1")
        if hf == 0: a("s_add_u32 s62, s62, 6720")
    for r in range(4): a(f"v_mov_b32 v{12+r}, s73")
    qi = {}
    tabs = [b2_tables(0), b2_tables(1)]
    def build_half(hf):
        o = []
        for i in range(7):
            r = raw[hf * 7 + i]
            o += [f"v_cvt_pk_bf16_f32 v{r}, v{r}, v{r+1}", f"v_cvt_pk_bf16_f32 v{r+1}, v{r+2}, v{r+3}", f"ds_write_b64 v6, {v2(r)} offset:{512*i}"]
        if hf == 1: o += [f"v_mov_b32 v{KV+64+k}, 0" for k in range(8)]
        num, den = tabs[hf]
        quads = [("z", hf, dt) for c, dts in den for dt in dts] + [("n", t, dt) for t in num for c, dts in num[t] for dt in dts]
        assert len(quads) == 18
        rd = []
        for (kind, t, dt) in quads:
            q = len(qi); qi[(kind, t, dt)] = q
            mask = 0
            for l in range(64):
                i, g = l & 15, l >> 4
                hd = (16 * dt + 4 * g) // 20
                he = (16 * t + i) // 20 if kind == "n" else (i & 3) + 4 * t
                if hd == he: mask |= 1 << l
            off = 640 * (t - 5 * hf) + 32 * (dt - 5 * hf) if kind == "n" else 800 + 32 * (dt - 5 * hf)
            rd.append(setmask(mask) + [f"ds_read_b64 {v2(KV + 2*q)}, v{3 if kind == 'n' else 4} offset:{off}"])
        return o, rd
    def omf(sub, hf, T):
        o = []
        num, den = tabs[hf]
        def one(kind, t, lst, acc):
            lst = sorted(lst, key=lambda x: len(x[1]))
            for k, (c, dts) in enumerate(lst):
                src = v4(acc) if k else ("v[12:15]" if kind == "z" else "0")
                kv = KV + 2 * qi[(kind, t, dts[0])]
                pq = PQ + (sub * 5 + c) * 4
                key = (min(k, 1), 0 if kind == "z" else 1, t, k)
                if len(dts) == 2: o.append((key, f"v_mfma_f32_16x16x32_bf16 {v4(acc)}, {v4(kv)}, {v4(pq)}, {src}"))
                else: o.append((key, f"v_mfma_f32_16x16x16_bf16 {v4(acc)}, {v2(kv)}, {v2(pq + 2*(dts[0]&1))}, {src}"))
        one("z", hf, den, T)
        for t in num: one("n", t, num[t], T + 4 + 4 * (t - 5 * hf))
        return [x for _, x in sorted(o)]
    def ovalu(sub, hf, T):
        o = []
        for r in range(4): o.append(f"v_rcp_f32 v{T+r}, v{T+r}")
        for tl in range(5):
            t = tl + 5 * hf
            h0 = (16 * tl) // 20; h1 = (16 * tl + 12) // 20
            rc = T + h0; n = T + 4 + 4 * tl
            if h0 != h1:
                g0 = min(g for g in range(4) if (16 * tl + 4 * g) // 20 == h1)
                o.append(f"v_cndmask_b32 v{rc}, v{T+h0}, v{T+h1}, s[{64+2*g0}:{65+2*g0}]")
            for r in range(4): o.append(f"v_mul_f32 v{n+r}, v{n+r}, v{rc}")
            d = PQ + (sub * 5 + t // 2) * 4 + 2 * (t & 1)
            o.append(f"v_cvt_pk_bf16_f32 v{d}, v{n}, v{n+1}")
            o.append(f"v_cvt_pk_bf16_f32 v{d+1}, v{n+2}, v{n+3}")
        return o
    def acc(sub, n): return ACC + (n * NS + sub) * 4
    def g2(k, W, ns=range(8)):
        return [f"v_mfma_f32_16x16x32_bf16 {v4(acc(sub, n))}, {v4(W[n])}, {v4(PQ + (sub*5+k)*4)}, {'0' if k == 0 else v4(acc(sub, n))}" for n in ns for sub in range(NS)]
    units = [(s_, h) for h in range(2) for s_ in range(NS)]
    nu = len(units)
    w0, r0 = build_half(0)
    a.extend(w0)
    for g in r0: a.extend(g)
    a("s_mov_b64 exec, -1")
    w1, r1 = build_half(1)
    a.extend(w1)
    r1g = [r1[k] + r1[k + 1] + ["s_mov_b64 exec, -1"] for k in range(0, 18, 2)]
    a.extend(interleave(omf(*units[0], U[0]), r1g, 1, 11))
    stamp(a, 7)
    for u in range(1, nu):
        a.extend(interleave(omf(*units[u], U[u & 1]), ovalu(*units[u - 1], U[(u - 1) & 1]), 2))
        if u == 1: a(f"s_waitcnt lgkmcnt(0)\n s_mov_b32 m0, s55\n s_mov_b32 s63, {135*1280}\n buffer_load_dwordx4 v2, {sq(SRD0)}, s63 offen lds ; tag=K4")
    a.extend(interleave(g2(0, WA), ovalu(*units[nu - 1], U[(nu - 1) & 1]), 2))
    k1 = g2(1, WB)
    a.extend(interleave(k1, wreads(0, WA), 0, 18))
    ad = []
    for gam in range(1, 4):
        ad += [f"s_xor_b32 s52, s{SW}, {gam}", "s_mul_i32 s52, s52, 20480", f"s_add_u32 s52, s52, {(gam-1)*6144}", f"s_add_u32 s52, s52, s{SLB}", f"v_add_u32 v{203+gam}, s52, v5"]
    ad += f"""s_sub_u32 s59, s59, s65
    s_sub_u32 s55, s55, s65
    s_sub_u32 s55, s55, {7*1056}
    v_add_u32 v208, s59, v0
    v_add_u32 v209, s55, v0
    v_bfe_u32 v210, v1, 2, 3
    v_cmp_eq_u32 vcc, 7, v210
    v_mov_b32 v211, 0
    v_mov_b32 v211, 0
    v_cndmask_b32 v208, v208, v209, vcc
    v_add_u32 v207, s65, v5
    s_add_u32 s53, s65, 18432
    v_and_b32 v12, 15, v1
    v_mul_u32_u24 v12, 80, v12
    v_lshrrev_b32 v3, 4, v1
    v_lshl_add_u32 v12, v3, 3, v12
    v_add_u32 v12, s53, v12
    v_lshrrev_b32 v3, 2, v1
    v_and_b32 v4, 3, v1
    v_lshlrev_b32 v4, 4, v4
    v_mul_u32_u24 v15, 80, v3
    v_add3_u32 v15, v15, v4, s53
    s_mul_i32 s52, s57, 48
    v_add_u32 v3, s52, v3
    v_mul_u32_u24 v3, 2560, v3
    v_add_u32 v3, v3, v4
    s_lshl_b32 s52, s58, 8
    s_lshl_b32 s54, s{SW}, 6
    s_add_u32 s52, s52, s54
    s_add_u32 s52, s52, 1280""".split("\n")
    a.extend(interleave(interleave(g2(2, WA), wreads(1, WB), 0, 16), ad))
    pre = g2(3, WB, [0, 1, 2, 3])
    a("WAITTAG K4")
    rd4 = [x.replace(", v0 ", ", v208 ") for x in wreads(0, WA)]; rd4 = rd4[4:] + rd4[:4]
    a.extend(interleave(pre, rd4))
    def wr(gam): return [f"ds_write_b128 v207, {v4(ACC + (gam*6+k)*4)} offset:{(gam-1)*6144 + 1024*k}" for k in range(6)]
    a.extend(g2(4, WA, [2, 3]))
    a.extend(interleave(g2(3, WB, [4, 5]) + g2(4, WA, [4, 5]), wr(1), 2))
    a.extend(interleave(g2(3, WB, [6, 7]) + g2(4, WA, [6, 7]), wr(2), 2))
    a.extend(interleave(g2(4, WA, [0, 1]), wr(3), 2))
    stamp(a, 8)
    bar_arrive(a); bar_wait(a, True)
    R = 16
    order = [n * NS + sub for sub in range(NS) for n in range(2)]
    for k in order:
        for gam in range(3): a(f"ds_read_b128 {v4(R + (k*3+gam)*4)}, v{204+gam} offset:{1024*k}")
    for k in order:
        n, sub = k // NS, k % NS
        for r in range(4): a(f"v_add_f32 v{ACC+4*k+r}, v{ACC+4*k+r}, v{R+(k*3)*4+r}")
        for r in range(4): a(f"v_add_f32 v{R+(k*3+1)*4+r}, v{R+(k*3+1)*4+r}, v{R+(k*3+2)*4+r}")
        for r in range(4): a(f"v_add_f32 v{ACC+4*k+r}, v{ACC+4*k+r}, v{R+(k*3+1)*4+r}")
        a(f"v_cvt_pk_bf16_f32 v{140+2*k}, v{ACC+4*k}, v{ACC+4*k+1}\n v_cvt_pk_bf16_f32 v{141+2*k}, v{ACC+4*k+2}, v{ACC+4*k+3}")
        a(f"ds_write_b64 v12, {v2(140+2*k)} offset:{32*n}")
        if n == 1:
            a(f"ds_read_b128 {v4(160+4*sub)}, v15")
            if sub > 0:
                a(f"buffer_store_dwordx4 {v4(160+4*(sub-1))}, v3, {sq(SRD1)}, s52 offen{OSC()}\n s_add_u32 s52, s52, {16*2560}")
    a(f"buffer_store_dwordx4 {v4(160+4*(NS-1))}, v3, {sq(SRD1)}, s52 offen{OSC()}")

def OSC(k=None): return ["", " sc1", " nt", " sc0 sc1"][cfg.osc if k is None else k]

def kd(name):
    return f""".p2align 6
.amdhsa_kernel {name}
  .amdhsa_next_free_vgpr 256
  .amdhsa_next_free_sgpr 102
  .amdhsa_accum_offset 256
  .amdhsa_group_segment_fixed_size 0
  .amdhsa_kernarg_size 96
  .amdhsa_user_sgpr_count 2
  .amdhsa_user_sgpr_kernarg_segment_ptr 1
  .amdhsa_system_sgpr_workgroup_id_x 1
  .amdhsa_float_denorm_mode_32 3
.end_amdhsa_kernel"""

def head(name): return f".globl {name}\n.p2align 8\n.type {name},@function"

def build():
    k = KN + "_kernel"
    a = Asm()
    a(head(k)); prologue(a, k, 256)
    a("s_cmp_ge_u32 s2, 192\n s_cbranch_scc1 L_P")
    g_ids(a)
    a(f"s_cmp_eq_u32 s{SGRP}, 0\n s_cbranch_scc1 L_CONS")
    tag(a, 7)
    role_loader(a)
    a("s_cmp_ge_u32 s2, 128\n s_cbranch_scc1 L_CONV\n s_branch L_B2")
    a.label("L_CONS")
    if not cfg.zp:
        a(f"s_cmp_lg_u32 s{SW}, 0\n s_cbranch_scc1 L_ZW\n s_cmp_ge_u32 s2, {NZERO}\n s_cbranch_scc1 L_ZW")
        zero_wave(a)
    a(f"s_cmp_lg_u32 s{SW}, 3\n s_cbranch_scc1 L_CONS1")
    init_wave(a, "g")
    a.label("L_CONS1")
    a(f"s_setprio {cfg.cprio}")
    args_ready(a)
    g_setup2(a)
    a("s_cmp_ge_u32 s58, 8\n s_cbranch_scc1 L_Q")
    tag(a, 1); role_kv(a)
    a("s_branch L_FIN")
    a.label("L_Q"); tag(a, 2); role_q(a)
    if cfg.qearly:
        a("s_cmp_lt_u32 s2, 168\n s_cbranch_scc1 L_FG0"); tag(a, 5); a("v_mov_b32 v2, v208\n s_branch L_B2Q"); a.label("L_FG0")
    else: a("s_cmp_ge_u32 s2, 168\n s_cbranch_scc1 L_B2")
    fin_g0(a)
    a.label("L_P")
    if cfg.zp:
        a(f"s_cmp_lg_u32 s{SW8}, 1\n s_cbranch_scc1 L_ZW\n s_cmp_ge_u32 s2, {192 + NZERO}\n s_cbranch_scc1 L_ZW")
        zero_wave(a)
    role_prep(a)
    a.label("L_CONV"); role_conv(a)
    a("s_cmp_ge_u32 s56, 10\n s_cbranch_scc1 L_FIN")
    a.label("L_FINR")
    tag(a, 8); role_fin(a)
    if cfg.enc == 89: a("s_waitcnt vmcnt(0)"); stamp(a, 9)
    a("s_branch L_FIN")
    a.label("L_B2")
    a("""s_lshr_b32 s53, s2, 3
    s_sub_u32 s54, s53, 5
    s_cmp_lt_u32 s53, 16
    s_cselect_b32 s53, s53, s54
    s_and_b32 s56, s2, 7
    s_mul_i32 s56, s56, 27
    s_add_u32 s56, s56, s53
    s_cmp_ge_u32 s56, 215
    s_cbranch_scc1 L_FIN""")
    tag(a, 5); role_b2(a)
    if cfg.enc == 59: a("s_waitcnt vmcnt(0)"); stamp(a, 9)
    a.label("L_FIN"); stamps_out(a)
    if cfg.enc:
        a("s_waitcnt vmcnt(0) lgkmcnt(0)")
        a.label("L_SPIN")
        a("s_sleep 1\n s_memrealtime s[94:95]\n s_waitcnt lgkmcnt(0)\n s_sub_u32 s94, s94, s96\n s_cmp_lt_u32 s94, 2500\n s_cbranch_scc1 L_SPIN")
    a.label("L_END"); a("s_endpgm")
    launch = [f"; @launch grid=(256,1,1) block=(512,1,1) lds={LDS_BYTES}"]
    return launch, a, [k]

def emit(path, launch, a, kernels, verbose=False):
    body = fix_hazards(insert_waits(a.lines), verbose)
    if cfg.al:
        body, n1, n2 = align8(body, cfg.al)
        if verbose: print("align: promoted", n1, "nops", n2)
    out = list(launch) + ['.amdgcn_target "amdgcn-amd-amdhsa--gfx950"', ".text", ".p2align 8", "L_CODE_BEGIN:"]
    out += [(l if l.endswith(":") or l.startswith(".") else "    " + l) for l in body]
    out += ["L_CODE_END:", "    s_endpgm", '.section .rodata,"a"'] + [kd(k) for k in kernels]
    open(path, "w").write("\n".join(out) + "\n")

if __name__ == "__main__":
    cfg.stamps = "stamps" in sys.argv[2:]
    cfg.rot = "norot" not in sys.argv[2:]
    for x in sys.argv[2:]:
        if "=" in x: setattr(cfg, x.split("=")[0], int(x.split("=")[1]))
    emit(sys.argv[1], *build(), verbose="-v" in sys.argv)
```

```python
import sys
sys.path.insert(0, "dev")
from asmlib import *

KN = "concat_heads__ssm_conv_h3__linear_attn_block__prompt"
WS_KVFLG = 0x0000
WS_YFLG  = 0x2000
WS_UFLG  = 0x4800
WS_QFLAG = 0x5000
WS_CNT   = 0x8000
WS_KV    = 0xD000
NZERO    = 56
TP = 4224
WS_UT    = 0x100000
WS_YT    = 0x400000
WS_PQ    = 0x700000
WS_STAMP = 0xA00000
WS_SIZE  = 0xB00000
LDS_BYTES = 163840
HALF = 81920
L_BAR = HALF - 64
L_SIG = HALF - 60
SGRP, SLB, SBT, SW8, SLD = 74, 75, 76, 77, 72
LOG2E = 0x3FB8AA3B
EPS = 0x358637BD

P_Q, P_K, P_V, P_SH, P_H, P_D, P_X, P_W, P_WO, P_OUT, P_DBG, P_WS = [4 + 2 * i for i in range(12)]
SRD0, SRD1, SRD2, SRD3, SRD4, SRDWS = 28, 32, 36, 40, 44, 48
SW = 3

def srd(a, d, p, nbytes):
    a(f"s_mov_b32 s{d}, s{p}\n s_and_b32 s{d+1}, s{p+1}, 0xffff\n s_mov_b32 s{d+2}, {nbytes}\n s_mov_b32 s{d+3}, 0x20000")
def sq(d): return f"s[{d}:{d+3}]"
def v4(r): return f"v[{r}:{r+3}]"
def v2(r): return f"v[{r}:{r+1}]"

class Cfg:
    stamps = False
    rot = False
    gonly = 0
    ahead0 = 4
    ahead = 4
    bpos = 3
    lprio = 3
    cprio = 2
    psleep = 2
    qlate = 3
    pprio = 0
    qit = 4
    cgate = 4
    gpos = 2
    wowarm = 0
    pqfirst = 2
    pearly = 1
    mprio = 3
    sig0 = 1
    rA = -1
    rB = 0
    rC = 0
    rD = 0
    fsc = 1
    qpre = 0
    krep = 8
    fmode = 1
    smask = 1
    sdel = 10
    x_qd = 0
    x_pd = 0
    al = 0
    zp = 1
    wpipe = 1
    mix = 0
    qearly = 0
    pk = 0
    lite = 0
    nrep = 1
    kvall = 0
    yall = 0
    uall = 0
    vprio = 0
    fbase = 22
    tail2 = 1
    tlb = 0
    pwait = 1
    eprio = 3
    fprio = 3
    qrel = 8
    qst = 1
    osc = 1
    gate = 1
    usig = 4
    qbar = 1
    spf = 0
    slab = 0
    enc = 0
    role = 0
    pmode = 0
    x_noq = 0
    x_plain = 0
    x_pend = 0
    x_nost = 0
cfg = Cfg()

NSTAMP = 10
def stamp(a, i, force=False):
    if cfg.lite and i != NSTAMP - 1: return
    if cfg.slab and not force and i != NSTAMP - 1 and cfg.role in (7, 4, 5): return
    if cfg.enc and cfg.enc == cfg.role * 10 + i:
        a("s_memrealtime s[96:97]\n s_waitcnt lgkmcnt(0)")
    if cfg.stamps:
        a(f"s_memrealtime s[{80+2*i}:{81+2*i}]\n s_waitcnt lgkmcnt(0)")
def stamps_out(a):
    if not cfg.stamps: return
    a("s_waitcnt vmcnt(0) lgkmcnt(0)")
    stamp(a, NSTAMP - 1)
    a("s_memtime s[70:71]\n s_waitcnt lgkmcnt(0)\n s_sub_u32 s101, s70, s101")
    a(f"s_getreg_b32 s52, hwreg(HW_REG_HW_ID)\n s_getreg_b32 s53, hwreg(HW_REG_XCC_ID)")
    for i in range(NSTAMP): a(f"v_mov_b32 v{16+i}, s{80+2*i}")
    a(f"v_mov_b32 v26, s52\n v_mov_b32 v27, s53\n v_mov_b32 v28, s100\n v_mov_b32 v29, s2\n v_mov_b32 v30, s101\n v_mov_b32 v31, 0")
    a(f"s_lshl_b32 s54, s2, 9\n s_lshl_b32 s55, s{SW8}, 6\n s_add_u32 s54, s54, s55\n s_add_u32 s54, s54, {WS_STAMP}")
    a(f"v_mov_b32 v32, 0\n s_mov_b64 exec, 1")
    for i in range(4): a(f"buffer_store_dwordx4 {v4(16+4*i)}, v32, {sq(SRDWS)}, s54 offen offset:{16*i}")
    a("s_mov_b64 exec, -1")
def tag(a, t):
    cfg.role = t
    if cfg.stamps: a(f"s_lshl_b32 s100, s100, 4\n s_add_u32 s100, s100, {t}")

def prologue(a, name, nwg):
    a.label(name)
    if cfg.enc: a("s_memrealtime s[98:99]\n s_memrealtime s[96:97]")
    a(f"""s_load_dwordx16 s[4:19], s[0:1], 0
    s_load_dwordx8 s[20:27], s[0:1], 64
    s_cmp_ge_u32 s2, {nwg}
    s_cbranch_scc1 L_END
    v_and_b32 v1, 63, v0
    v_lshrrev_b32 v2, 6, v0
    s_mov_b32 s{SBT}, 0
    v_readfirstlane_b32 s{SW8}, v2
    v_mov_b32 v12, 0
    s_mov_b32 s{SLD}, 0""")
    if cfg.stamps:
        for i in range(NSTAMP): a(f"s_mov_b32 s{80+2*i}, 0")
        a("s_mov_b32 s100, 0\n s_memrealtime s[80:81]\n s_memtime s[98:99]")
    a(f"""s_and_b32 s{SW}, s{SW8}, 3
    s_lshr_b32 s{SGRP}, s{SW8}, 2
    s_mul_i32 s{SLB}, s{SGRP}, {HALF}""")

def init_wave(a, name):
    a("s_getpc_b64 s[52:53]")
    a.label(f"L_PC{name}")
    a(f"""s_lshr_b32 s54, s2, 3
    s_and_b32 s54, s54, 7
    s_lshl_b32 s54, s54, 13
    v_lshlrev_b32 v3, 7, v1
    v_add_u32 v3, s54, v3
    s_sub_u32 s52, s52, L_PC{name}-L_CODE_BEGIN
    s_subb_u32 s53, s53, 0
    v_min_u32 v3, L_CODE_END-L_CODE_BEGIN-4, v3
    global_load_dword v15, v3, s[52:53]""")
    lds_init(a)
    if cfg.tlb:
        n = cfg.tlb
        a(f"s_waitcnt lgkmcnt(0)\n s_mov_b64 exec, {(1 << n) - 1}")
        for k, (p, size) in enumerate(((P_WS, WS_STAMP), (P_OUT, 2048 * 2560), (P_Q, 2048 * 1280), (P_H, 640 * 4096), (P_WO, 640 * 1280))):
            st = (size - 128) // (n - 1) // 128 * 128
            a(f"s_mov_b32 s54, {st}\n v_mul_lo_u32 v3, v1, s54\n global_load_dword v{250+k}, v3, s[{p}:{p+1}]")
        a("s_mov_b64 exec, -1")

def lds_init(a):
    a(f"""v_and_b32 v4, 15, v1
    v_lshlrev_b32 v4, 2, v4
    v_bfe_u32 v5, v1, 4, 1
    v_mul_u32_u24 v5, {HALF}, v5
    v_add_u32 v4, v4, v5
    v_add_u32 v4, {L_BAR}, v4
    v_mov_b32 v5, 0
    ds_write_b32 v4, v5""")

def args_ready(a):
    a("s_waitcnt lgkmcnt(0)")
    if cfg.stamps: a("s_mov_b32 s101, s98")
    srd(a, SRDWS, P_WS, WS_SIZE if cfg.stamps else WS_STAMP)
    srd(a, SRD4, P_DBG, 256)

def bar_arrive(a):
    a(f"""v_mov_b32 v13, s{SLB}
    v_mov_b32 v14, 1
    v_add_u32 v13, {L_BAR}, v13
    s_add_u32 s{SBT}, s{SBT}, 4
    s_mov_b64 exec, 1
    ds_add_u32 v13, v14
    s_mov_b64 exec, -1""")
def gate_arrive(a):
    a(f"""v_mov_b32 v13, s{SLB}
    v_mov_b32 v14, 1
    v_add_u32 v13, {L_BAR}, v13
    s_mov_b64 exec, 1
    ds_add_u32 v13, v14 offset:8
    s_mov_b64 exec, -1""")
def bar_wait(a, addr_ok=False):
    n = bar_wait.n; bar_wait.n += 1
    if not addr_ok: a(f"v_mov_b32 v13, s{SLB}\n v_add_u32 v13, {L_BAR}, v13")
    a.label(f"L_BW_{n}")
    a(f"""ds_read_b32 v14, v13
    s_waitcnt lgkmcnt(0)
    v_cmp_gt_u32 vcc, s{SBT}, v14
    s_nop 1
    s_cbranch_vccnz L_BW_{n}""")
bar_wait.n = 0

def phi_block(regs_, temps):
    out = []
    n = len(temps)
    for g in range(0, len(regs_), n):
        grp = regs_[g:g + n]
        if cfg.pk:
            for k in range(0, len(grp), 2): out.append(f"v_pk_mul_f32 {v2(temps[k])}, {v2(grp[k])}, s[70:71] op_sel_hi:[1,0]")
            for r, t in zip(grp, temps): out.append(f"v_exp_f32 v{t}, v{t} clamp"); out.append(f"v_max_f32 v{r}, s71, v{r}")
            for k in range(0, len(grp), 2): out.append(f"v_pk_add_f32 {v2(grp[k])}, {v2(grp[k])}, {v2(temps[k])}")
            continue
        for r, t in zip(grp, temps): out.append(f"v_mul_f32 v{t}, s70, v{r}")
        for r, t in zip(grp, temps): out.append(f"v_exp_f32 v{t}, v{t} clamp"); out.append(f"v_max_f32 v{r}, s71, v{r}")
        for r, t in zip(grp, temps): out.append(f"v_add_f32 v{r}, v{r}, v{t}")
    return out

def probe(vdst, voff, s_off, srdq=SRDWS):
    if cfg.pmode == 3:
        return f"v_mov_b32 v{vdst}, -1\n s_mov_b64 exec, 3\n v_mov_b32 v{vdst}, 0\n buffer_atomic_add v{vdst}, v{voff}, {sq(srdq)}, {s_off} offen sc0 sc1\n s_mov_b64 exec, -1"
    return f"buffer_load_dword v{vdst}, v{voff}, {sq(srdq)}, {s_off} offen " + ["sc1", "sc0 sc1", "sc0 sc1 nt"][cfg.pmode]
def check(a, name, vdst, voff, s_off, target, srdq=SRDWS):
    a(f"v_cmp_gt_u32 vcc, {target}, v{vdst}\n s_mov_b32 s78, 0\n s_nop 0\n s_cbranch_vccz L_OK_{name}")
    a("PUSHSTATE")
    a.label(f"L_POLL_{name}")
    a(f"""s_sleep {cfg.psleep}
    {probe(vdst, voff, s_off, srdq)}
    s_add_u32 s78, s78, 1
    s_waitcnt vmcnt(0)
    v_cmp_gt_u32 vcc, {target}, v{vdst}
    s_cmp_ge_u32 s78, 0x20000
    s_cbranch_scc1 L_OK_{name}
    s_cbranch_vccnz L_POLL_{name}""")
    a("POPSTATE")
    a.label(f"L_OK_{name}")
def zero_probe(a, vd, vz): a(f"v_mov_b32 v{vz}, 128\n" + probe(vd, vz, "0", SRD4))
def zero_check(a, name, vd, vz): check(a, "z" + name, vd, vz, "0", 1, SRD4)
def zero_wave(a):
    a(f"""v_lshlrev_b32 v8, 4, v1
    v_mov_b32 v16, 0
    v_mov_b32 v17, 0
    v_mov_b32 v18, 0
    v_mov_b32 v19, 0
    s_and_b32 s54, s2, 63
    s_lshl_b32 s54, s54, 11
    s_mov_b32 s79, 1
    s_mov_b32 s78, 1""")
    args_ready(a)
    if cfg.slab == 5: stamp(a, 5, True)
    a(f"""buffer_store_dwordx4 v[16:19], v8, {sq(SRDWS)}, s54 offen sc1
    buffer_store_dwordx4 v[16:19], v8, {sq(SRDWS)}, s54 offen offset:1024 sc1
    s_waitcnt vmcnt(0)
    s_atomic_add s79, s[{P_DBG}:{P_DBG+1}], 0 glc
    s_waitcnt lgkmcnt(0)
    s_cmp_lg_u32 s79, {NZERO-1}
    s_cbranch_scc1 L_ZW
    s_atomic_add s78, s[{P_DBG}:{P_DBG+1}], 128
    s_waitcnt lgkmcnt(0)""")
    a.label("L_ZW")
    if cfg.slab == 5: stamp(a, 6, True)

def signal(a, s_off, nwaves, ldsaddr, narr=1, rstride=128):
    n = signal.n; signal.n += 1
    a(f"""v_mov_b32 v13, {ldsaddr}
    v_mov_b32 v14, 1
    s_add_u32 s68, s{P_WS}, s{s_off}
    s_addc_u32 s69, s{P_WS+1}, 0
    s_mov_b32 s78, 1
    s_waitcnt vmcnt(0)
    s_mov_b64 exec, 1
    ds_add_rtn_u32 v12, v13, v14
    s_mov_b64 exec, -1
    s_waitcnt lgkmcnt(0)
    v_readfirstlane_b32 s79, v12
    s_cmp_lg_u32 s79, {nwaves-1}
    s_cbranch_scc1 L_SIG_{n}""")
    if narr > 1:
        a(f"""s_mov_b32 s79, 1
        s_atomic_add s79, s[68:69], {WS_CNT} glc
        s_waitcnt lgkmcnt(0)
        s_cmp_lg_u32 s79, {narr-1}
        s_cbranch_scc1 L_SIG_{n}""")
    for r in range(cfg.nrep if narr > 1 else 1): a(f"s_atomic_add s78, s[68:69], {r*rstride}")
    a("s_waitcnt lgkmcnt(0)")
    a.label(f"L_SIG_{n}")
signal.n = 0

def conv_ids(a):
    a("""s_and_b32 s52, s2, 7
    s_mul_i32 s52, s52, 20
    s_lshr_b32 s53, s2, 3
    s_sub_u32 s53, s53, 12
    s_add_u32 s52, s52, s53""")
def sprefetch(a, p, s_off, n):
    a(f"s_add_u32 s68, s{p}, s{s_off}\n s_addc_u32 s69, s{p+1}, 0")
    for i in range(n): a(f"s_load_dword s79, s[68:69], {128*i}")
    a("s_waitcnt lgkmcnt(0)")

def last_barrier(a, name, n_younger):
    a(f"s_cmp_eq_u32 s{SLD}, 0\n s_cbranch_scc1 L_LB_{name}\n PUSHSTATE\n s_waitcnt vmcnt({n_younger})\n s_barrier\n s_setprio 0\n POPSTATE")
    a.label(f"L_LB_{name}")

G_ACC, G_B, G_X = 16, 96, 176
G_SLOT = 36864
def slot_off(j): return ((j & 1) ^ 1) * G_SLOT
def slot_half(j): return (j % 4) >> 1
def g_ids(a):
    a(f"""s_and_b32 s52, s2, 7
    s_lshr_b32 s53, s2, 3
    s_and_b32 s57, s52, 3
    s_lshl_b32 s57, s57, 2
    s_and_b32 s54, s53, 3
    s_add_u32 s57, s57, s54
    s_lshr_b32 s52, s52, 2
    s_lshr_b32 s54, s53, 2
    s_lshl_b32 s58, s52, 2
    s_add_u32 s58, s58, s54
    s_lshl_b32 s52, s52, 1
    s_add_u32 s52, s52, s54
    s_add_u32 s52, s52, 4
    s_cmp_ge_u32 s54, 4
    s_cselect_b32 s58, s52, s58
    s_lshl_b32 s66, s{SW}, 12
    s_add_u32 s66, s66, 20480""")

def g_setup_x(a):
    if cfg.rot:
        if cfg.rA < 0:
            a("s_mul_i32 s62, s57, 3\n s_lshl_b32 s59, s58, 1\n s_add_u32 s62, s62, s59")
        else:
            a(f"""s_bfe_u32 s62, s2, 0x20003
            s_mul_i32 s62, s62, {cfg.rA}
            s_lshr_b32 s59, s2, 5
            s_mul_i32 s59, s59, {cfg.rB}
            s_add_u32 s62, s62, s59
            s_and_b32 s59, s2, 3
            s_mul_i32 s59, s59, {cfg.rC}
            s_add_u32 s62, s62, s59
            s_bfe_u32 s59, s2, 0x10002
            s_mul_i32 s59, s59, {cfg.rD}
            s_add_u32 s62, s62, s59""")
        assert all((v * 205) >> 11 == v // 10 for v in range(100))
        a(f"""s_mul_i32 s59, s62, 205
        s_lshr_b32 s59, s59, 11
        s_mul_i32 s59, s59, 10
        s_sub_u32 s62, s62, s59
        s_lshl_b32 s64, s62, 7
        s_mul_i32 s63, s62, {64*3840}""")
    else:
        a("s_mov_b32 s64, 0\n s_mov_b32 s63, 0")
    a(f"""v_lshrrev_b32 v240, 3, v1
    s_lshl_b32 s59, s57, 7
    s_lshl_b32 s54, s{SW}, 5
    s_add_u32 s59, s59, s54
    v_add_u32 v240, s59, v240
    v_mul_u32_u24 v240, 1280, v240
    v_lshrrev_b32 v241, 4, v1
    v_and_b32 v242, 7, v1
    v_xor_b32 v242, v242, v241
    v_lshl_add_u32 v7, v242, 4, v240
    v_xor_b32 v242, 4, v242
    v_lshl_add_u32 v8, v242, 4, v240
    v_add_u32 v8, {10240-1024}, v8
    v_add_u32 v9, {20480-2048}, v7
    v_add_u32 v10, {20480-2048}, v8""")

def g_setup_w(a, hook=None):
    a(f"""s_mul_i32 s59, s58, 160
    s_add_u32 s60, s59, 1280
    s_add_u32 s61, s59, {2560-160}
    s_sub_u32 s59, s58, 8
    s_mul_i32 s59, s59, 320
    s_cmp_ge_u32 s58, 8
    s_cselect_b32 s60, s59, s60
    s_cselect_b32 s61, s59, s61
    s_mul_i32 s59, s{SW}, {16*3840}
    s_add_u32 s60, s60, s59
    s_add_u32 s61, s61, s59
    s_mul_i32 s65, s{SW}, 5120""")
    a(f"v_mov_b32 v244, s60\n v_mov_b32 v245, s61")
    for i in range(5):
        assert all(((64 * i + l) * 3277) >> 16 == (64 * i + l) // 20 for l in range(64))
        a(f"""v_add_u32 v240, {64*i}, v1
        v_mul_u32_u24 v241, 3277, v240
        v_lshrrev_b32 v241, 16, v241
        v_mul_u32_u24 v242, 20, v241
        v_sub_u32 v240, v240, v242""")
        if i == 2: a("v_lshrrev_b32 v242, 4, v1\n v_and_b32 v242, 2, v242\n v_xor_b32 v240, v240, v242")
        if i > 2: a("v_xor_b32 v240, 2, v240")
        a(f"""v_cmp_gt_u32 vcc, 10, v240
        v_mul_u32_u24 v241, 3840, v241
        v_lshl_add_u32 v240, v240, 4, v241
        v_cndmask_b32 v242, v245, v244, vcc""")
        if i in (0, 4): a(f"v_add_u32 v{2+i}, v240, v242")
        else: a(f"v_add_u32 v240, v240, v242\n v_subrev_u32 v{2+i}, {1024*i}, v240")
        if hook: hook(i)

def g_setup2(a):
    a(f"""v_lshrrev_b32 v241, 4, v1
    v_bfe_u32 v242, v1, 2, 2
    v_lshl_add_u32 v242, v241, 3, v242
    v_mul_u32_u24 v242, 320, v242
    v_and_b32 v243, 3, v1
    v_lshl_add_u32 v242, v243, 3, v242
    v_and_b32 v243, 1, v241
    v_lshlrev_b32 v243, 5, v243
    v_add_u32 v9, v242, v243
    v_sub_u32 v10, v242, v243
    v_and_b32 v240, 15, v1
    v_lshrrev_b32 v242, 1, v240
    v_xor_b32 v242, v242, v241
    v_lshlrev_b32 v240, 7, v240
    v_add_u32 v240, s66, v240
    v_lshl_add_u32 v11, v242, 4, v240
    v_xor_b32 v242, 4, v242
    v_lshl_add_u32 v12, v242, 4, v240
    s_mov_b32 s70, {LOG2E}
    s_mov_b32 s71, {EPS}""")
    for k in range(4): a(f"v_add_u32 v{2+k}, {HALF}, v{9+k}")

def g_loadx(j):
    o = [f"s_add_u32 m0, s66, {slot_half(j) * HALF + slot_off(j)}", "s_nop 0"]
    for i in range(4): o.append(f"buffer_load_dwordx4 v{7+i}, {sq(SRD0)}, s64 offen offset:{1024*i} lds ; tag=S{j}")
    o += ["s_add_u32 s64, s64, 128"]
    if cfg.rot: o += ["s_cmp_eq_u32 s64, 1280", "s_cselect_b32 s64, 0, s64"]
    return o
def g_loadw(j):
    base = slot_half(j) * HALF + slot_off(j)
    o = [f"s_add_u32 m0, s65, {base}", "s_nop 0"]
    for i in range(4): o.append(f"buffer_load_dwordx4 v{2+i}, {sq(SRD1)}, s63 offen offset:{1024*i} lds ; tag=S{j}")
    o += [f"s_add_u32 m0, s65, {base + 4096}", "s_nop 0", f"buffer_load_dwordx4 v6, {sq(SRD1)}, s63 offen lds ; tag=S{j}"]
    o += [f"s_add_u32 s63, s63, {64*3840}"]
    if cfg.rot: o += [f"s_cmp_eq_u32 s63, {640*3840}", "s_cselect_b32 s63, 0, s63"]
    return o
def g_xreads(j):
    return [f"ds_read_b128 {v4(G_X + (j&1)*16 + ks*8 + sub*4)}, v{(4 if slot_half(j) else 11)+ks} offset:{slot_off(j) + sub*2048}" for ks in range(2) for sub in range(2)]
def g_reads(t):
    j = t // 2
    o = []
    for n in range(10):
        for h in range(2):
            off = slot_off(j) + (t & 1) * 10240 + h * 1280 + 32 * n
            o.append(f"ds_read_b64_tr_b16 {v2(G_B + (t & 1) * 40 + n * 4 + 2 * h)}, v{(2 if slot_half(j) else 9) + (n & 1)} offset:{off}")
    return o

def role_loader(a):
    a(f"s_setprio {cfg.lprio}")
    g_setup_x(a)
    a("s_waitcnt lgkmcnt(0)")
    srd(a, SRD0, P_X, 2048 * 1280)
    if cfg.slab == 5: stamp(a, 5, True)
    if cfg.x_qd: a(f"s_cmp_lt_u32 s58, 8\n s_cbranch_scc1 L_XQD\n s_sleep {cfg.x_qd}"); a.label("L_XQD")
    a.extend(g_loadx(0))
    srd(a, SRD1, P_W, 640 * 3840)
    seq = []
    for j in range(10): seq += [g_loadx(j), g_loadw(j)]
    pos = 1
    if cfg.wpipe:
        w0 = g_loadw(0)
        parts = [w0[0:3], w0[3:4], w0[4:5], w0[5:6], w0[6:]]
        g_setup_w(a, lambda i: a.extend(parts[i]))
        pos = 2
    else: g_setup_w(a)
    def upto(n):
        nonlocal pos
        while pos < min(n, 20): a.extend(seq[pos]); pos += 1
    upto(cfg.ahead0)
    args_ready(a)
    stamp(a, 1)
    for j in range(9):
        a(f"WAITTAG S{j}")
        if cfg.slab == 2 and j < 8: stamp(a, j + 1, True)
        a("s_barrier")
        if cfg.slab == 1 and j < 8: stamp(a, j + 1, True)
        if j == 0: stamp(a, 2)
        if j == 6: zero_probe(a, 14, 13)
        upto(min(2 * (j + 1) + cfg.ahead, 2 * (j + 4)))
    zero_check(a, "ld", 14, 13)
    a(f"s_lshl_b32 s53, s58, 7\n s_add_u32 s6, s{P_WS}, s53\n s_addc_u32 s7, s{P_WS+1}, 0")
    a(f"s_mov_b32 s{SLD}, 1")
    stamp(a, 3)

def g_main(a, transposed, tail):
    a("s_waitcnt lgkmcnt(0)\n s_barrier")
    stamp(a, 1)
    a.extend(g_xreads(0) + g_reads(0))
    def mfma(t, n, sub):
        j, ks = t // 2, t % 2
        acc = v4(G_ACC + (sub * 10 + n) * 4)
        x = v4(G_X + (j & 1) * 16 + ks * 8 + sub * 4)
        b = v4(G_B + (t & 1) * 40 + n * 4)
        c = "0" if t == 0 else acc
        return f"v_mfma_f32_16x16x32_bf16 {acc}, {b}, {x}, {c}" if transposed else f"v_mfma_f32_16x16x32_bf16 {acc}, {x}, {b}, {c}"
    for t in range(18 if cfg.tail2 else 19):
        j, ks = t // 2, t % 2
        mf = [mfma(t, n, sub) for n in range(10) for sub in range(2)]
        rd = g_reads(t + 1)
        if ks == 1:
            rd = g_xreads(j + 1) + rd
            a.extend(mf[:cfg.bpos]); a("s_waitcnt lgkmcnt(0)" + "\n s_barrier")
            a.extend(interleave(mf[cfg.bpos:], rd))
        else:
            a.extend(interleave(mf, rd))
    if cfg.tail2:
        a.extend(interleave([mfma(18, n, sub) for n in range(5) for sub in range(2)], g_reads(19)))
        tail([mfma(19, n, sub) for n in range(5) for sub in range(2)] + [mfma(t, n, sub) for t in (18, 19) for n in range(5, 10) for sub in range(2)])
    else:
        tail([mfma(19, n, sub) for n in range(10) for sub in range(2)])

B_KS = 8416
def b2_head(a, vd):
    a(f"""s_mul_i32 s57, s56, 205
    s_lshr_b32 s57, s57, 10
    s_mul_i32 s54, s57, 5
    s_sub_u32 s58, s56, s54""")
    assert all((v * 205) >> 10 == v // 5 for v in range(216))
    srd(a, SRD0, P_WO, 640 * 1280)
    a(f"""s_lshl_b32 s59, s58, 8
    s_mul_i32 s53, s{SW}, {160*1280}
    s_add_u32 s59, s59, s53
    s_lshl_b32 s53, s{SW}, 6
    s_mul_i32 s65, s{SW}, 20480
    s_add_u32 s65, s65, s{SLB}
    v_and_b32 v240, 15, v1
    v_lshrrev_b32 v241, 4, v1
    v_lshlrev_b32 v240, 4, v240
    v_xor_b32 v240, s53, v240
    v_mul_u32_u24 v241, {8*1280}, v241
    v_add3_u32 v{vd}, v240, v241, s59""")
def b2_dma(kstep, slot, vd=2):
    return [[f"s_add_u32 m0, s65, {slot*B_KS + i*1056}", f"s_mov_b32 s63, {(32*kstep + i)*1280}",
             f"buffer_load_dwordx4 v{vd}, {sq(SRD0)}, s63 offen lds ; tag=K{kstep}"] for i in range(8)]

def role_q(a):
    a(f"""s_lshl_b32 s52, s57, 3
    s_lshl_b32 s53, s{SW}, 1
    s_add_u32 s52, s52, s53
    s_mul_i32 s52, s52, 20
    s_sub_u32 s53, s58, 8
    s_mul_i32 s54, s53, 5
    s_add_u32 s52, s52, s54
    s_lshl_b32 s52, s52, 10
    s_add_u32 s52, s52, {WS_PQ}
    s_mul_i32 s55, s53, 17
    s_add_u32 s55, s55, s57
    s_lshl_b32 s55, s55, 7
    s_add_u32 s55, s55, {WS_QFLAG}
    v_lshlrev_b32 v6, 4, v1""")
    if cfg.qearly:
        a("s_lshr_b32 s53, s2, 3\n s_sub_u32 s53, s53, 5\n s_and_b32 s56, s2, 7\n s_mul_i32 s56, s56, 27\n s_add_u32 s56, s56, s53")
        b2_head(a, 208)
    def tail(mf):
        bar_arrive(a)
        ep = []
        for c in range(5):
            for sub in range(2):
                r0 = G_ACC + (sub * 10 + 2 * c) * 4
                ep += phi_block(list(range(r0, r0 + 8)), list(range(240, 248)))
                d = G_B + (sub * 5 + c) * 4
                ep += [f"v_cvt_pk_bf16_f32 v{d+k}, v{r0+2*k}, v{r0+2*k+1}" for k in range(4)]
                ep += [f"s_add_u32 s54, s52, {(sub*20+c)*1024}", f"buffer_store_dwordx4 {v4(d)}, v6, {sq(SRDWS)}, s54 offen sc1"]
        n = 2 * (len(mf) - 8)
        a.extend(mf[:8])
        a.extend(interleave(mf[8:], ep[:n]))
        stamp(a, 2)
        a.extend(ep[n:])
        if cfg.qearly:
            a("s_cmp_lt_u32 s2, 168\n s_cbranch_scc1 L_QE\n PUSHSTATE")
            bar_wait(a, True)
            for g in b2_dma(0, 0, 208) + b2_dma(1, 1, 208): a.extend(g)
            a("POPSTATE"); a.label("L_QE")
    g_main(a, True, tail)
    stamp(a, 3)
    signal(a, 55, 4, L_SIG)
    stamp(a, 4)

MV = 224
M_IMG = 8448
def mini_head(a):
    srd(a, SRD0, P_H, 640 * 4096)
    a(f"""s_add_u32 s59, s2, 512
    s_lshl_b32 s60, s59, 12
    s_add_u32 s62, s{P_H}, s60
    s_addc_u32 s63, s{P_H+1}, 0
    s_load_dword s64, s[62:63], 0
    s_lshr_b32 s54, s59, 1
    s_lshl_b32 s54, s54, 2
    s_load_dword s65, s[{P_D}:{P_D+1}], s54
    s_lshl_b32 s54, s{SW}, 10
    v_lshl_add_u32 v6, v1, 4, s54
    buffer_load_dwordx4 {v4(MV)}, v6, {sq(SRD0)}, s60 offen
    buffer_load_dwordx4 {v4(MV+4)}, v6, {sq(SRD0)}, s60 offen offset:4
    v_mov_b32 v8, 0
    s_mov_b32 s61, {WS_UFLG + 1024}
    s_mul_i32 s55, s59, {TP}
    s_waitcnt lgkmcnt(0)
    s_add_u32 s62, s55, {WS_UT}
    s_add_u32 s55, s55, {WS_YT}
    s_lshr_b32 s63, s59, 6
    s_lshl_b32 s63, s63, 10
    s_add_u32 s63, s63, {WS_YFLG}
    s_lshl_b32 s53, s65, 16
    s_and_b32 s54, s65, 0xffff0000
    s_bitcmp1_b32 s59, 0
    s_cselect_b32 s53, s54, s53
    s_lshl_b32 s54, s64, 16
    v_mov_b32 v240, s54
    v_add_f32 v240, s53, v240
    s_and_b32 s54, s64, 0xffff0000
    v_mov_b32 v241, s54
    v_cvt_pk_bf16_f32 v{MV+12}, v240, v241
    v_and_b32 v240, 15, v1
    v_lshrrev_b32 v241, 4, v1
    v_add_u32 v242, 1, v240
    v_bfe_u32 v243, v242, 1, 1
    v_mul_u32_u24 v243, {C_HCOPY}, v243
    v_lshrrev_b32 v244, 2, v242
    v_lshl_add_u32 v244, v241, 3, v244
    v_lshl_add_u32 v243, v244, 3, v243
    s_lshr_b32 s53, s{SW}, 1
    s_and_b32 s54, s{SW}, 1
    s_lshl_b32 s53, s53, 7
    s_lshl_b32 s54, s54, 4
    s_add_u32 s53, s53, s54
    s_lshl_b32 s54, s53, 1
    s_add_u32 s54, s54, {M_IMG}
    v_add_u32 v{MV+13}, s54, v243
    v_and_b32 v242, 1, v242
    v_lshlrev_b32 v{MV+14}, 4, v242
    v_lshlrev_b32 v242, 1, v241
    v_sub_u32 v242, v242, v240
    v_add_u32 v242, 15, v242
    s_add_u32 s53, s53, {M_IMG + 2*C_HCOPY}
    v_lshl_add_u32 v{MV+15}, v242, 4, s53
    v_lshrrev_b32 v242, 1, v1
    v_and_b32 v243, 1, v1
    v_mul_u32_u24 v243, {C_UH}, v243
    v_add_u32 v242, v242, v243
    s_lshl_b32 s53, s{SW}, 9
    s_add_u32 s53, s53, {M_IMG + 2*C_HCOPY}
    v_lshl_add_u32 v248, v242, 4, s53
    v_and_b32 v242, 1, v241
    v_mul_u32_u24 v242, {C_UH}, v242
    v_add_u32 v242, v242, v240
    v_lshlrev_b32 v249, 4, v242
    v_and_b32 v242, 1, v1
    v_lshlrev_b32 v242, 4, v242
    v_bfe_u32 v243, v1, 1, 1
    v_mul_u32_u24 v243, {C_HCOPY}, v243
    v_add_u32 v250, v242, v243
    s_lshl_b32 s53, s{SW}, 13
    s_add_u32 s53, s53, {21504 - 8192}
    s_cmp_eq_u32 s{SW}, 0
    s_cselect_b32 s53, 0, s53
    v_lshl_add_u32 v251, v1, 4, s53
    v_bfe_u32 v240, v1, 1, 4
    v_and_b32 v241, 1, v1
    v_lshlrev_b32 v240, 4, v240
    v_lshl_add_u32 v240, v241, 9, v240
    v_lshrrev_b32 v241, 5, v1
    v_lshl_add_u32 v240, v241, 10, v240
    s_lshl_b32 s53, s{SW}, 11
    v_add_u32 v252, s53, v240""")

def mini_conv(a, uld):
    ACC, A, RAW, B = 16, 48, 80, 160
    a(f"""ds_write_b128 v6, {v4(MV)} offset:{M_IMG + 32}
    ds_write_b128 v6, {v4(MV+4)} offset:{M_IMG + C_HCOPY + 32}
    s_cmp_lg_u32 s{SW}, 0
    s_cbranch_scc1 L_MC0
    v_mov_b32 v56, 0
    v_mov_b32 v57, 0
    v_mov_b32 v58, 0
    v_mov_b32 v59, 0
    ds_write_b128 v250, v[56:59] offset:{M_IMG}
    ds_write_b32 v8, v{MV+12} offset:{M_IMG + 32}
    ds_write_b32 v8, v{MV+12} offset:{M_IMG + C_HCOPY + 28}
    ds_write_b128 v249, v[56:59] offset:{M_IMG + 2*C_HCOPY + 128*16}""")
    a.label("L_MC0")
    a("s_waitcnt vmcnt(0)")
    if cfg.sig0:
        a(f"""v_mov_b32 v13, {L_BAR}
        v_mov_b32 v14, 1
        s_mov_b64 exec, 1
        ds_add_rtn_u32 v12, v13, v14 offset:8
        s_mov_b64 exec, -1
        s_mov_b32 s79, 1
        s_waitcnt lgkmcnt(0)
        v_readfirstlane_b32 s53, v12
        s_cmp_lg_u32 s53, 3
        s_cbranch_scc1 L_MS0
        s_atomic_add s79, s[6:7], {WS_CNT} glc""")
        a.label("L_MS0")
    else: gate_arrive(a)
    stamp(a, 4)
    a("s_cmp_eq_u32 s67, 1\n s_cbranch_scc1 L_MU1")
    check(a, "mu", 7, 8, "s61", 1)
    a(uld + "\n s_waitcnt vmcnt(0)")
    a.label("L_MU1")
    a(f"ds_write_b128 v248, {v4(MV+8)}")
    bar_arrive(a)
    if cfg.sig0:
        a("s_waitcnt lgkmcnt(0)\n s_cmp_lg_u32 s79, 15\n s_cbranch_scc1 L_MS1\n s_mov_b32 s79, 1")
        if cfg.fmode == 0:
            for r in range(cfg.krep): a(f"s_atomic_add s79, s[6:7], {1024*r}")
        else:
            a(f"v_lshlrev_b32 v12, 10, v1\n s_mov_b64 exec, {(1 << cfg.krep) - 1}\n global_store_dword v12, v14, s[6:7] sc1\n s_mov_b64 exec, -1")
        a.label("L_MS1")
    bar_wait(a, True)
    a(f"s_setprio {cfg.mprio}")
    stamp(a, 5)
    def raw(N1, k): return RAW + N1 * 10 + 2 * k
    rr = [[f"ds_read_b64 {v2(raw(N1, k))}, v{MV+13} offset:{N1*512 + k*8}" for k in ks] for ks in ((0, 1, 2), (3, 4)) for N1 in range(8)]
    br = [[f"ds_read_b128 {v4(B + i*32 + 4*dl)}, v{MV+15} offset:{(14-2*dl)*128 + i*C_UH*16}" for dl in range(8)] for i in range(2)]
    def al(i, N1): return [f"v_alignbit_b32 v{A + 4*N1 + k}, v{raw(N1, 2*i) + k + 1}, v{raw(N1, 2*i) + k}, v{MV+14}" for k in range(4)]
    a.extend(rr[0] + br[0])
    for N1 in range(1, 8): a.extend(rr[N1])
    a.extend(al(0, 0))
    queue = [x for N1 in range(1, 8) for x in al(0, N1)]
    queue = queue[:4] + interleave(queue[4:], br[1] + [x for N1 in range(8) for x in rr[8 + N1]])
    def wr(J): return f"ds_write_b128 v251, {v4(ACC + 4*J)} offset:{1024*J}"
    for i in range(2):
        for N1 in range(8):
            tg = f"v_alignbit_b32 v{A+4*N1+3},"
            pos = min((k for k, q in enumerate(queue) if q.startswith(tg)), default=-1) if not (i == 0 and N1 == 0) else -1
            for q in queue[:pos + 1]: a(q)
            queue = queue[pos + 1:]
            for J in range(N1, 8):
                acc = v4(ACC + 4 * J)
                a(f"v_mfma_f32_16x16x32_bf16 {acc}, {v4(A+4*N1)}, {v4(B + i*32 + 4*(J-N1))}, {'0' if (i == 0 and N1 == 0) else acc}")
                for _ in range(2):
                    if queue: a(queue.pop(0))
            if i == 0: queue += al(1, N1)
            elif N1 >= 2: queue.append(wr(N1 - 2))
    a.extend(queue + [wr(6), wr(7)])
    bar_arrive(a); bar_wait(a, True)
    stamp(a, 6)
    for src in range(4):
        base = 0 if src == 0 else 21504 + 8192 * (src - 1)
        for h in range(2): a(f"ds_read_b128 {v4(48 + 8*src + 4*h)}, v252 offset:{base + 256*h}")
    for r in range(8): a(f"v_add_f32 v{48+r}, v{48+r}, v{56+r}")
    for r in range(8): a(f"v_add_f32 v{64+r}, v{64+r}, v{72+r}")
    for r in range(8): a(f"v_add_f32 v{48+r}, v{48+r}, v{64+r}")
    for d in range(4): a(f"v_cvt_pk_bf16_f32 v{80+d}, v{48+2*d}, v{49+2*d}")
    a(f"buffer_store_dwordx4 v[80:83], v6, {sq(SRDWS)}, s55 offen sc1")
    signal(a, 63, 4, L_SIG, 64)
    stamp(a, 7)

def role_kv(a):
    EX, HB = G_SLOT, 0
    DUMP = HB + 4 * 2048
    AD = 208
    a(f"""v_lshlrev_b32 v240, 4, v1
    s_mul_i32 s52, s{SW}, 10240
    s_add_u32 s52, s52, {EX}
    v_add_u32 v{AD+6}, s52, v240
    s_lshl_b32 s52, s{SW}, 10
    s_add_u32 s52, s52, {EX}
    v_add_u32 v{AD+7}, s52, v240
    v_and_b32 v246, 15, v1
    v_lshrrev_b32 v247, 4, v1
    v_lshlrev_b32 v247, 2, v247
    s_lshl_b32 s52, s{SW}, 2
    v_subrev_u32 v246, s52, v246
    v_subrev_u32 v247, s52, v247
    s_lshl_b32 s53, s{SW}, 11
    v_mov_b32 v245, {DUMP}
    v_lshlrev_b32 v{AD+8}, 2, v1
    v_add_u32 v{AD+9}, s53, v{AD+8}""")
    for k in range(4): a(f"v_mov_b32 v{AD+12+k}, 0x3f803f80")
    k = 0
    for dt in range(2):
        for et in range(2):
            a(f"""v_add_u32 v240, {16*dt}, v247
            v_add_u32 v241, {16*et}, v246
            v_max_u32 v242, v240, v241
            v_cmp_gt_u32 vcc, 20, v242
            v_mul_u32_u24 v241, 80, v241
            v_lshl_add_u32 v241, v240, 2, v241
            v_add_u32 v241, s53, v241
            v_cndmask_b32 v{AD+k}, v245, v241, vcc""")
            k += 1
        a(f"""v_add_u32 v240, {16*dt}, v247
        v_and_b32 v241, 15, v1
        v_mul_u32_u24 v241, 20, v241
        v_max_u32 v242, v240, v241
        v_cmp_gt_u32 vcc, 20, v242
        v_lshlrev_b32 v240, 2, v240
        v_add_u32 v240, s53, v240
        v_add_u32 v240, 1600, v240
        v_cndmask_b32 v{AD+4+dt}, v245, v240, vcc""")
    a(f"""s_lshl_b32 s52, s58, 2
    s_add_u32 s52, s52, s{SW}
    s_mul_i32 s52, s52, 1680
    s_add_u32 s52, s52, {WS_KV}
""")
    a(f"s_lshl_b32 s53, s58, 7\n s_add_u32 s6, s{P_WS}, s53\n s_addc_u32 s7, s{P_WS+1}, 0")
    mini_head(a)
    def tail(mf):
        ep = []
        for t in [0, 1, 5, 2, 6, 7, 3, 8, 9, 4]:
            r0 = G_ACC + t * 4; r1 = G_ACC + (10 + t) * 4
            if t < 5: ep += phi_block(list(range(r0, r0 + 4)) + list(range(r1, r1 + 4)), list(range(240, 248)))
            d = G_B + t * 4
            ep += [f"v_cvt_pk_bf16_f32 v{d}, v{r0}, v{r0+1}", f"v_cvt_pk_bf16_f32 v{d+1}, v{r0+2}, v{r0+3}",
                   f"v_cvt_pk_bf16_f32 v{d+2}, v{r1}, v{r1+1}", f"v_cvt_pk_bf16_f32 v{d+3}, v{r1+2}, v{r1+3}",
                   f"ds_write_b128 v{AD+6}, {v4(d)} offset:{t*1024}"]
        n = 2 * (len(mf) - 6)
        a.extend(mf[:6])
        a.extend(interleave(mf[6:], ep[:n]))
        stamp(a, 2)
        a(probe(7, 8, "s61"))
        a.extend(ep[n:])
    g_main(a, False, tail)
    uld = f"buffer_load_dwordx4 {v4(MV+8)}, v6, {sq(SRDWS)}, s62 offen sc1"
    bar_arrive(a)
    a(f"v_cmp_gt_u32 vcc, 1, v7\n s_mov_b32 s67, 0\n s_nop 0\n s_cbranch_vccnz L_MU0\n PUSHSTATE\n {uld}\n s_mov_b32 s67, 1\n POPSTATE")
    a.label("L_MU0")
    bar_wait(a, True)
    F = 136
    for rg in range(4):
        for q, off in enumerate([0, 5120, 1024, 6144]):
            a(f"ds_read_b128 {v4(F + rg*16 + [0, 2, 1, 3][q]*4)}, v{AD+7} offset:{rg*10240 + off}")
    D = 16
    for rg in range(4):
        for dt in range(2):
            A = v4(F + rg * 16 + dt * 4)
            acc = v4(D + 16 + dt * 4)
            a(f"v_mfma_f32_16x16x32_bf16 {acc}, {A}, {v4(AD+12)}, {'0' if rg == 0 else acc}")
            for et in range(2):
                acc = v4(D + (dt * 2 + et) * 4)
                a(f"v_mfma_f32_16x16x32_bf16 {acc}, {A}, {v4(F + rg*16 + 8 + et*4)}, {'0' if rg == 0 else acc}")
    for k in [4, 0, 1, 5, 2, 3]: a(f"ds_write_b128 v{AD+k}, {v4(D + 4*k)}")
    for i in range(7): a(f"ds_read_b32 v{48+i}, v{AD+9} offset:{256*i}")
    stamp(a, 3)
    for i in range(7):
        if i == 6: a("s_mov_b32 exec_hi, 0xf")
        a(f"buffer_atomic_add_f32 v{48+i}, v{AD+8}, {sq(SRDWS)}, s52 offen offset:{256*i}")
    a("s_mov_b64 exec, -1")
    mini_conv(a, uld)

C_HCOPY = 4224; C_UH = 144; C_WAVE = 2 * C_HCOPY + 2 * C_UH * 16
C_STG = HALF + 4 * C_WAVE; C_STGP = 4160
PV = 224
def WOW():
    if not cfg.wowarm: return ""
    return f"""s_cmp_eq_u32 s{SW8}, 0
    s_cbranch_scc1 L_WW
    s_sub_u32 s52, s2, 192
    s_lshl_b32 s52, s52, 1
    s_add_u32 s52, s52, s{SW8}
    s_sub_u32 s52, s52, 1
    s_mul_i32 s52, s52, 6400
    v_lshlrev_b32 v3, 7, v1
    v_min_u32 v3, 6272, v3
    v_add_u32 v3, s52, v3
    global_load_dword v15, v3, s[{P_WO}:{P_WO+1}]
    s_waitcnt vmcnt(0)
    L_WW:"""
def role_prep(a):
    a(f"""s_and_b32 s52, s2, 7
    s_lshl_b32 s52, s52, 2
    s_bfe_u32 s53, s2, 0x20004
    s_add_u32 s52, s52, s53
    s_lshl_b32 s52, s52, 6
    s_bfe_u32 s65, s2, 0x10003
    s_mul_i32 s53, s65, 320
    s_sub_u32 s54, s{SW8}, 3
    s_lshl_b32 s55, s{SW8}, 1
    s_cmp_ge_u32 s{SW8}, 3
    s_cselect_b32 s54, s54, s55
    s_lshl_b32 s54, s54, 6
    s_add_u32 s53, s53, s54
    v_lshrrev_b32 v240, 3, v1
    v_lshl_add_u32 v241, v240, 3, s52
    v_and_b32 v242, 7, v1
    v_lshl_add_u32 v243, v242, 3, s53
    v_mul_u32_u24 v241, 1280, v241
    v_lshl_add_u32 v{PV}, v243, 1, v241
    s_movk_i32 s55, 5120""")
    def common2(rev):
        a(f"""v_add_u32 v241, s53, v240
        v_mul_u32_u24 v241, {TP}, v241
        v_lshl_add_u32 v{PV+3}, v242, 4, v241
        s_mul_i32 s54, s{SW}, 20480
        s_mul_i32 s63, s{SGRP}, 10240
        s_add_u32 s54, s54, s63
        v_mul_u32_u24 v241, 1040, v242
        v_add_u32 v241, s54, v241""")
        if rev: a("v_sub_u32 v240, 7, v240")
        a(f"""v_lshl_add_u32 v{PV+4}, v240, 4, v241
        v_lshl_add_u32 v{PV+5}, v1, 4, s54
        s_lshl_b32 s64, s52, 1
        s_mov_b32 s70, 0x05040100
        s_mov_b32 s71, 0x07060302""")
    def rds(R): return [f"ds_read_b128 {v4(R+4*i)}, v{PV+5} offset:{1040*i}" for i in range(8)]
    def sts(R, extra): return [x for i in range(8) for x in (f"s_add_u32 s54, s64, {8*TP*i + extra}", f"buffer_store_dwordx4 {v4(R+4*i)}, v{PV+3}, {sq(SRDWS)}, s54 offen sc1")]
    a(f"s_cmp_lt_u32 s{SW8}, 3\n s_cbranch_scc1 L_PQ")
    tag(a, 3)
    a(f"v_subrev_u32 v{PV+1}, 3840, v{PV}\n v_lshlrev_b32 v{PV+2}, 3, v243\n s_waitcnt lgkmcnt(0)")
    srd(a, SRD0, P_K, 2048 * 1280)
    if cfg.x_pd: a(f"s_sleep {cfg.x_pd}")
    K, V, C = 16, 60, 92
    for r in range(3): a(f"buffer_load_dwordx4 {v4(K+4*r)}, v{PV+1}, {sq(SRD0)}, 0 offen offset:{1280*r}")
    for r in range(8): a(f"buffer_load_dwordx4 {v4(K+12+4*r)}, v{PV}, {sq(SRD0)}, {'s55' if r >= 4 else '0'} offen offset:{1280*(r%4)}")
    srd(a, SRD1, P_V, 2048 * 1280); srd(a, SRD3, P_SH, 640 * 8)
    for r in range(4): a(f"buffer_load_dwordx4 {v4(C+4*r)}, v{PV+2}, {sq(SRD3)}, 0 offen offset:{16*r}")
    for r in range(8):
        a(f"buffer_load_dwordx4 {v4(V+4*r)}, v{PV}, {sq(SRD1)}, {'s55' if r >= 4 else '0'} offen offset:{1280*(r%4)}")
    args_ready(a)
    common2(True)
    a(f"s_sub_u32 s64, {WS_UT + 1984*2}, s64\n s_mov_b32 s62, 0xffff0000")
    stamp(a, 1)
    P, T, U, O = 108, 120, 184, 192
    for ch in range(8):
        dw, hi = ch // 2, ch % 2
        sel = "s71" if hi else "s70"
        for s_ in range(-2, 8):
            a(f"v_perm_b32 v{P+s_+2}, v{K+4*(s_+2)+dw}, v{K+4*(s_+3)+dw}, {sel}")
        for s_ in range(8): a(f"v_dot2_f32_bf16 v{T+8*ch+s_}, v{P+s_}, v{C+2*ch+1}, 0")
        for s_ in range(8): a(f"v_dot2_f32_bf16 v{T+8*ch+s_}, v{P+s_+2}, v{C+2*ch}, v{T+8*ch+s_}")
    for ch in range(8):
        dw, hi = ch // 2, ch % 2
        for s_ in range(8):
            a(f"v_and_b32 v{U+s_}, s62, v{V+4*s_+dw}" if hi else f"v_lshlrev_b32 v{U+s_}, 16, v{V+4*s_+dw}")
        for s_ in range(8): a(f"v_mul_f32 v{T+8*ch+s_}, v{T+8*ch+s_}, v{U+s_}")
        o = O + 4 * ch
        for j in range(4): a(f"v_cvt_pk_bf16_f32 v{o+j}, v{T+8*ch+7-2*j}, v{T+8*ch+6-2*j}")
        a(f"ds_write_b128 v{PV+4}, {v4(o)} offset:{128*ch}")
    a.extend(rds(16) + sts(16, 0))
    stamp(a, 2)
    zero_probe(a, 3, 4)
    zero_check(a, "pu", 3, 4)
    a("s_waitcnt vmcnt(0)\n s_barrier")
    stamp(a, 3)
    a(f"s_cmp_eq_u32 s{SGRP}, 1\n s_cbranch_scc1 L_CONV\n s_branch L_PW")
    a.label("L_PQ")
    tag(a, 6)
    a(f"s_cmp_lg_u32 s{SW8}, 2\n s_cbranch_scc1 L_PQ0")
    init_wave(a, "p")
    a.label("L_PQ0")
    args_ready(a)
    a(f"""s_lshl_b32 s65, s65, 10
    s_add_u32 s65, s65, {WS_UFLG}
    s_add_u32 s68, s{P_WS}, s65
    s_addc_u32 s69, s{P_WS+1}, 0
    s_mov_b32 s78, 1
    s_mov_b32 s79, 1
    s_waitcnt vmcnt(0)
    s_barrier
    {WOW()}
    s_cmp_lg_u32 s{SW8}, 0
    s_cbranch_scc1 L_PW
    s_atomic_add s79, s[68:69], {WS_CNT} glc
    s_waitcnt lgkmcnt(0)
    s_cmp_lg_u32 s79, 31
    s_cbranch_scc1 L_PW""")
    for r in range(cfg.nrep): a(f"s_atomic_add s78, s[68:69], {128*r}")
    a("s_waitcnt lgkmcnt(0)")
    a.label("L_PW")
    if cfg.pearly: a("s_branch L_B2")
    a(f"v_mov_b32 v13, {HALF + L_BAR + 8}")
    a.label("L_PWW")
    a("s_sleep 4\n ds_read_b32 v14, v13\n s_waitcnt lgkmcnt(0)\n v_cmp_gt_u32 vcc, 4, v14\n s_nop 1\n s_cbranch_vccnz L_PWW")
    stamp(a, 3)
    a("s_branch L_B2")

def conv_head(a, pr=False):
    a(f"""s_and_b32 s52, s2, 7
    s_lshl_b32 s52, s52, 4
    s_lshr_b32 s53, s2, 3
    s_and_b32 s61, s2, {7 if cfg.nrep == 8 else 0}
    s_sub_u32 s53, s53, 16
    s_add_u32 s57, s52, s53
    s_lshl_b32 s58, s57, 2
    s_add_u32 s58, s58, s{SW}
    s_lshl_b32 s59, s58, 12
    s_mul_i32 s60, s{SW}, {C_WAVE}
    s_add_u32 s60, s60, {HALF}
    s_add_u32 s52, s{P_H}, s59
    s_addc_u32 s53, s{P_H+1}, 0
    s_load_dword s66, s[52:53], 0
    s_lshr_b32 s54, s58, 1
    s_lshl_b32 s54, s54, 2
    s_load_dword s67, s[{P_D}:{P_D+1}], s54
    s_lshl_b32 s61, s61, 7
    s_cmp_ge_u32 s57, 80
    s_cselect_b32 s54, {0 if cfg.uall else 1024}, 0
    s_add_u32 s61, s61, s54
    s_add_u32 s61, s61, {WS_UFLG}
    s_lshr_b32 s63, s57, 4
    s_mul_i32 s63, s63, {0 if cfg.yall else 1024}
    s_add_u32 s63, s63, {WS_YFLG}
    v_lshlrev_b32 v2, 4, v1
    v_add_u32 v3, 4, v2
    v_mov_b32 v12, 0""")
    if pr: a(probe(15, 12, "s61"))
    srd(a, SRD0, P_H, 640 * 4096)
    a(f"s_add_u32 m0, s60, 32")
    for i in range(4): a(f"buffer_load_dwordx4 v2, {sq(SRD0)}, s59 offen offset:{1024*i} lds ; tag=H")
    a(f"s_add_u32 m0, s60, {C_HCOPY + 32}")
    for i in range(4): a(f"buffer_load_dwordx4 v3, {sq(SRD0)}, s59 offen offset:{1024*i} lds ; tag=H")

def role_conv(a):
    ACC, A, RAW, B, UL = 16, 48, 80, 128, 224
    conv_head(a, True)
    last_barrier(a, "conv", 9)
    tag(a, 4)
    stamp(a, 4)
    a(f"s_mul_i32 s55, s58, {TP}\n s_add_u32 s65, s55, {WS_UT}\n s_add_u32 s55, s55, {WS_YT}")
    uld = [f"buffer_load_dwordx4 {v4(UL+4*i)}, v2, {sq(SRDWS)}, s65 offen offset:{1024*i} sc1" for i in range(4)]
    fin_strip(a); fin_head(a)
    a(f"""v_and_b32 v8, 15, v1
    v_lshrrev_b32 v9, 4, v1
    v_add_u32 v10, 1, v8
    v_bfe_u32 v11, v10, 1, 1
    v_mul_u32_u24 v11, {C_HCOPY}, v11
    v_lshrrev_b32 v13, 2, v10
    v_lshl_add_u32 v13, v9, 3, v13
    v_lshl_add_u32 v11, v13, 3, v11
    v_add_u32 v4, s60, v11
    v_and_b32 v10, 1, v10
    v_lshlrev_b32 v5, 4, v10
    v_lshlrev_b32 v10, 1, v9
    v_sub_u32 v10, v10, v8
    v_add_u32 v10, 15, v10
    v_lshlrev_b32 v10, 4, v10
    v_add_u32 v6, s60, v10
    v_lshrrev_b32 v10, 1, v1
    v_and_b32 v11, 1, v1
    v_mul_u32_u24 v11, {C_UH}, v11
    v_add_u32 v10, v10, v11
    v_lshlrev_b32 v10, 4, v10
    v_add_u32 v7, s60, v10
    v_mov_b32 v16, 0
    v_mov_b32 v17, 0
    v_mov_b32 v18, 0
    v_mov_b32 v19, 0
    v_and_b32 v10, 1, v9
    v_mul_u32_u24 v10, {C_UH}, v10
    v_add_u32 v10, v10, v8
    v_lshl_add_u32 v20, v10, 4, s60
    v_and_b32 v10, 1, v1
    v_lshlrev_b32 v10, 4, v10
    v_bfe_u32 v11, v1, 1, 1
    v_mul_u32_u24 v11, {C_HCOPY}, v11
    v_add3_u32 v21, v10, v11, s60
    v_lshlrev_b32 v10, 5, v8
    v_lshl_add_u32 v8, v9, 3, v10""")
    a(f"""s_waitcnt lgkmcnt(0)
    s_lshl_b32 s52, s66, 16
    s_lshl_b32 s53, s67, 16
    s_and_b32 s54, s67, 0xffff0000
    s_bitcmp1_b32 s58, 0
    s_cselect_b32 s53, s54, s53
    s_and_b32 s54, s66, 0xffff0000
    v_mov_b32 v10, s52
    v_add_f32 v10, s53, v10
    v_mov_b32 v11, s54
    v_cvt_pk_bf16_f32 v10, v10, v11
    v_mov_b32 v11, s60
    WAITTAG H
    v_cmp_gt_u32 vcc, 1, v15
    s_mov_b32 s62, 0
    s_nop 0
    s_cbranch_vccnz L_CU0
    PUSHSTATE
    {chr(10).join(uld)}
    s_mov_b32 s62, 1
    s_branch L_CU1
    POPSTATE
    L_CU0:
    {probe(15, 12, "s61")}
    L_CU1:
    ds_write_b128 v21, v[16:19]
    ds_write_b32 v11, v10 offset:32
    ds_write_b32 v11, v10 offset:{C_HCOPY+28}
    ds_write_b128 v20, v[16:19] offset:{2*C_HCOPY + 128*16}""")
    def raw_slots(i):
        return [(0, 1, 2), (2, 0, 1), (1, 2, 0), (0, 1, 2)][i]
    def raw_reads(it, N1):
        N0, i = it >> 2, it & 3
        sl = raw_slots(i)
        return [f"ds_read_b64 {v2(RAW + N1*6 + 2*sl[k])}, v4 offset:{(2*N1+N0)*256 + (2*i+k)*8}" for k in range(0 if i == 0 else 1, 3)]
    def aligns(it, N1):
        sl = raw_slots(it & 3)
        d = [RAW + N1 * 6 + 2 * sl[0], RAW + N1 * 6 + 2 * sl[0] + 1, RAW + N1 * 6 + 2 * sl[1], RAW + N1 * 6 + 2 * sl[1] + 1, RAW + N1 * 6 + 2 * sl[2]]
        return [f"v_alignbit_b32 v{A + 4*N1 + k}, v{d[k+1]}, v{d[k]}, v5" for k in range(4)]
    def b_reads(it):
        N0, i = it >> 2, it & 3
        return [f"ds_read_b128 {v4(B + (it&1)*32 + 4*dl)}, v6 offset:{2*C_HCOPY + (14-(2*dl-N0))*128 + (i>>1)*16 + (i&1)*C_UH*16}" for dl in range(8)]
    for N1 in range(8): a.extend(raw_reads(0, N1))
    for N1 in range(8):
        a.extend(aligns(0, N1)); a.extend(raw_reads(1, N1))
    a("s_cmp_eq_u32 s62, 1\n s_cbranch_scc1 L_CU2\n PUSHSTATE")
    check(a, "convu", 15, 12, "s61", 1)
    a.extend(uld)
    a("POPSTATE"); a.label("L_CU2")
    stamp(a, 5)
    a("s_waitcnt vmcnt(0)")
    for i in range(4): a(f"ds_write_b128 v7, {v4(UL+4*i)} offset:{2*C_HCOPY + 512*i}")
    a.extend(b_reads(0))
    gate_arrive(a)
    a(f"s_setprio {cfg.vprio}")
    stamp(a, 6)
    def epi(J):
        T = 80 + 2 * J
        o = [f"v_cvt_pk_bf16_f32 v{T}, v{ACC+4*J}, v{ACC+4*J+1}", f"v_cvt_pk_bf16_f32 v{T+1}, v{ACC+4*J+2}, v{ACC+4*J+3}", f"ds_write_b64 v9, {v2(T)} offset:{512*J}"]
        if J & 1: o.append(f"ds_read_b128 {v4(96+2*(J-1))}, v10 offset:{512*(J-1)} ; y")
        if J in (3, 5): o.append(ysto((J - 3) // 2))
        return o
    def ysto(i): return f"buffer_store_dwordx4 {v4(96+4*i)}, v2, {sq(SRDWS)}, s55 offen offset:{1024*i} sc1"
    a("v_add_u32 v9, s60, v8\n v_add_u32 v10, s60, v2")
    queue = []
    for it in range(8):
        if it == 7: a(f"s_setprio {cfg.eprio}")
        if it < 7: queue += b_reads(it + 1)
        if it == cfg.qit:
            a("s_cmp_ge_u32 s56, 10\n s_cbranch_scc1 L_NQ\n PUSHSTATE"); a.extend(fin_qloads()); a("POPSTATE"); a.label("L_NQ")
        for N1 in range(8):
            tg = f"v_alignbit_b32 v{A+4*N1+3},"
            pos = max((k for k, q in enumerate(queue) if q.startswith(tg)), default=-1)
            for q in queue[:pos + 1]: a(q)
            queue = queue[pos + 1:]
            for J in range(N1, 8):
                acc = v4(ACC + 4 * J)
                c = "0" if (it == 0 and N1 == 0) else acc
                a(f"v_mfma_f32_16x16x32_bf16 {acc}, {v4(A+4*N1)}, {v4(B + (it&1)*32 + 4*(J-N1))}, {c}")
                if not cfg.mix:
                    for _ in range(2):
                        if queue: a(queue.pop(0))
                elif queue:
                    q = queue.pop(0); a(q)
                    if queue:
                        if q.startswith("ds_") and queue[0].startswith("ds_"):
                            k = next((k for k, x in enumerate(queue) if x.startswith("v_alignbit")), None)
                            if k is not None: a(queue.pop(k))
                            elif len(queue) > cfg.mix * 6: a(queue.pop(0))
                        elif q.startswith("v_alignbit") and queue[0].startswith("v_alignbit"):
                            k = next((k for k, x in enumerate(queue) if x.startswith("ds_read_b128") and not x.endswith("; y")), None)
                            a(queue.pop(k if k is not None else 0))
                        else: a(queue.pop(0))
            if it == 7 and N1 >= 2: queue += epi(N1 - 2)
            if it < 7: queue += aligns(it + 1, N1)
            if it < 6: queue += raw_reads(it + 2, N1)
        assert not any(q.startswith("ds_read_b128") and not q.endswith("; y") for q in queue)
    a.extend(queue)
    stamp(a, 7)
    a.extend(epi(6) + epi(7) + [ysto(2), ysto(3)])
    stamp(a, 8)
    signal(a, 63, 4, HALF + L_SIG, 160 if cfg.yall else 16)

FV = 240
def fin_head(a):
    a(f"""s_and_b32 s52, s2, 7
    s_lshl_b32 s52, s52, 2
    s_add_u32 s52, s52, s{SW}
    s_lshl_b32 s52, s52, 6
    s_lshl_b32 s53, s56, 6
    v_lshrrev_b32 v244, 3, v1
    v_lshl_add_u32 v245, v244, 3, s52
    v_and_b32 v246, 7, v1
    v_lshl_add_u32 v247, v246, 3, s53
    v_mul_u32_u24 v245, 1280, v245
    v_lshl_add_u32 v247, v247, 1, v245
    v_add_u32 v{FV}, v247, v245
    v_add_u32 v245, s53, v244
    v_mul_u32_u24 v245, {TP}, v245
    v_lshl_add_u32 v{FV+1}, v246, 4, v245
    v_mul_u32_u24 v245, 1040, v246
    v_lshl_add_u32 v245, v244, 4, v245
    v_add_u32 v{FV+2}, s60, v245
    s_lshl_b32 s64, s52, 1
    s_add_u32 s64, s64, {WS_YT}
    s_movk_i32 s53, 5120""")
    srd(a, SRD2, P_Q, 2048 * 1280); srd(a, SRD1, P_OUT, 2048 * 2560)
    a("s_cmp_ge_u32 s56, 10\n s_cselect_b32 s70, 0x40000000, 0\n s_add_u32 s71, s70, 5120")
def fin_qloads(): return [f"buffer_load_dwordx4 {v4(192+4*r)}, v247, {sq(SRD2)}, {'s71' if r >= 4 else 's70'} offen offset:{1280*(r%4)}" for r in range(8)]
def fin_strip(a):
    a(f"""s_lshr_b32 s53, s2, 3
    s_mul_i32 s54, s{SGRP}, 5
    s_add_u32 s56, s53, s54
    s_sub_u32 s56, s56, 16
    s_cmp_lt_u32 s53, 21
    s_cselect_b32 s56, s56, 15""")
def fin_g0(a):
    fin_strip(a)
    a(f"s_mul_i32 s60, s{SW}, 8448\n s_add_u32 s60, s60, 16384\n v_lshl_add_u32 v10, v1, 4, s60")
    fin_head(a)
    a.extend(fin_qloads())
    bar_wait(a)
    a("s_waitcnt vmcnt(0)\n s_branch L_FINR")

def role_fin(a):
    Q, QF, Y, T, L = 192, 48, 112, 144, 16
    a(f"""s_setprio {cfg.fprio}
    s_and_b32 s61, s2, {7 if cfg.nrep == 8 else 0}
    s_lshl_b32 s61, s61, 7
    s_mul_i32 s54, s56, {0 if cfg.yall else 1024}
    s_add_u32 s61, s61, s54
    s_add_u32 s61, s61, {WS_YFLG}
    s_mov_b32 s62, 0xffff0000
    v_mov_b32 v12, 0""")
    a(probe(15, 12, "s61"))
    for r in range(8):
        for d in range(4):
            a(f"v_lshlrev_b32 v{QF+8*r+2*d}, 16, v{Q+4*r+d}\n v_and_b32 v{QF+8*r+2*d+1}, s62, v{Q+4*r+d}")
    stamp(a, 1)
    check(a, "fin", 15, 12, "s61", 1)
    stamp(a, 2)
    for i in range(8): a(f"s_add_u32 s54, s64, {8*TP*i}\n buffer_load_dwordx4 {v4(L+4*i)}, v{FV+1}, {sq(SRDWS)}, s54 offen sc1")
    for i in range(8): a(f"ds_write_b128 v10, {v4(L+4*i)} offset:{1040*i}")
    for ch in range(8): a(f"ds_read_b128 {v4(Y+4*ch)}, v{FV+2} offset:{128*ch}")
    stamp(a, 3)
    a("s_mov_b32 s54, 0")
    for r in range(8):
        t = T + 8 * (r & 1)
        for ch in range(8):
            src = Y + 4 * ch + r // 2
            a(f"v_and_b32 v{t+ch}, s62, v{src}" if r & 1 else f"v_lshlrev_b32 v{t+ch}, 16, v{src}")
        for ch in range(8): a(f"v_mul_f32 v{t+ch}, v{t+ch}, v{QF+8*r+ch}")
        o = 160 + 4 * r
        for d in range(4): a(f"v_cvt_pk_bf16_f32 v{o+d}, v{t+2*d}, v{t+2*d+1}")
        a(f"buffer_store_dwordx4 {v4(o)}, v{FV}, {sq(SRD1)}, s54 offen{OSC(cfg.fsc)}")
        if r < 7: a("s_add_u32 s54, s54, 2560")

def b2_tables(hf):
    num = {}
    for t in range(5 * hf, 5 * hf + 5):
        hs = {e // 20 for e in range(16 * t, 16 * t + 16)}
        dts = [dt for dt in range(10) if hs & {d // 20 for d in range(16 * dt, 16 * dt + 16)}]
        ch = {}
        for dt in dts: ch.setdefault(dt // 2, []).append(dt)
        num[t] = sorted(ch.items())
    ch = {}
    for dt in range(5 * hf, 5 * hf + 5): ch.setdefault(dt // 2, []).append(dt)
    return num, sorted(ch.items())

NS = 3
def role_b2(a):
    PQ, KV, RAW = 16, 108, 180
    WA = [76 + 4 * n for n in range(8)]
    WB = [228 + 4 * n for n in range(7)] + [8]
    ACC = 108
    U = [180, 204]
    b2_head(a, 2)
    dma = b2_dma
    def wreads(slot, dst):
        return [f"ds_read_b64_tr_b16 {v2(dst[n] + 2*h)}, v0 offset:{slot*B_KS + h*512 + 32*n}" for n in range(8) for h in range(2)]
    if not cfg.qearly: bar_wait(a)
    for g in dma(0, 0): a.extend(g)
    last_barrier(a, "b2", 8)
    for g in dma(1, 1): a.extend(g)
    a.label("L_B2Q")
    a("v_and_b32 v8, 15, v1\n v_lshrrev_b32 v9, 4, v1")
    a(f"s_setprio {cfg.cprio}")
    srd(a, SRD1, P_OUT, 2048 * 2560)
    a(f"""v_bfe_u32 v10, v1, 2, 3
    v_mul_u32_u24 v10, 1056, v10
    v_lshrrev_b32 v11, 5, v1
    v_lshl_add_u32 v10, v11, 8, v10
    v_and_b32 v11, 3, v1
    v_lshl_add_u32 v10, v11, 3, v10
    v_add_u32 v0, s65, v10
    s_add_u32 s64, s65, {2*B_KS}
    v_lshlrev_b32 v9, 3, v9
    v_mul_u32_u24 v3, 40, v8
    v_add3_u32 v3, v3, v9, s64
    v_mul_u32_u24 v4, 800, v11
    v_add3_u32 v4, v4, v9, s64
    v_lshlrev_b32 v5, 4, v1
    v_lshlrev_b32 v6, 3, v1
    v_add_u32 v6, s64, v6
    v_add_u32 v7, 4096, v5
    s_mul_i32 s52, s57, 3
    s_lshr_b32 s53, s52, 3
    s_add_u32 s54, s52, 2
    s_min_u32 s54, s54, 127
    s_lshr_b32 s54, s54, 3
    s_sub_u32 s54, s54, s53
    s_lshl_b32 s54, s54, 7
    v_and_b32 v12, 1, v1
    v_mul_u32_u24 v13, {0 if cfg.kvall else 128}, v12
    v_mul_u32_u24 v12, s54, v12
    s_mul_i32 s60, s{SW}, 17
    s_add_u32 s60, s60, s53
    s_lshl_b32 s60, s60, 7
    s_add_u32 s60, s60, {WS_QFLAG}
    s_and_b32 s61, s2, {cfg.krep - 1}
    s_lshl_b32 s61, s61, 10
    s_mul_i32 s53, s{SW}, {0 if cfg.kvall else 256}
    s_add_u32 s61, s61, s53
    s_mul_i32 s52, s52, 20480
    s_mul_i32 s53, s{SW}, 5120
    s_add_u32 s52, s52, s53
    s_add_u32 s52, s52, {WS_PQ}
    s_mul_i32 s62, s{SW}, {8*1680}
    s_add_u32 s62, s62, {WS_KV}
    s_mov_b32 s73, {EPS}
    s_mov_b32 s66, 0xffff0000
    s_mov_b32 s67, -1
    s_mov_b32 s68, 0
    s_mov_b32 s69, -1
    s_mov_b32 s70, 0
    s_mov_b32 s71, 0xffff0000""")
    if cfg.qpre: a(probe(14, 12, "s60"))
    for r in range(KV, KV + 72): a(f"v_mov_b32 v{r}, 0")
    def allmasks():
        ms = []
        num, den = b2_tables(0)
        for (kind, t, dt) in [("z", 0, dt) for c, dts in den for dt in dts] + [("n", t, dt) for t in num for c, dts in num[t] for dt in dts]:
            m = sum(1 << l for l in range(64) if (16 * dt + 4 * (l >> 4)) // 20 == ((16 * t + (l & 15)) // 20 if kind == "n" else (l & 3)))
            if m not in ms and m != (1 << 64) - 1: ms.append(m)
        return ms
    free = [4, 10, 12, 14, 16, 18, 36, 38, 40, 42, 44, 46, 20, 24]
    mreg = dict(zip(allmasks(), free)) if cfg.smask else {}
    for m, r in mreg.items(): a(f"s_mov_b32 s{r}, {m & 0xffffffff:#x}\n s_mov_b32 s{r+1}, {m >> 32:#x}")
    def setmask(m):
        if m == (1 << 64) - 1: return ["s_mov_b64 exec, -1"]
        if m in mreg: return [f"s_mov_b64 exec, s[{mreg[m]}:{mreg[m]+1}]"]
        return [f"s_mov_b32 exec_lo, {m & 0xffffffff:#x}", f"s_mov_b32 exec_hi, {m >> 32:#x}"]
    def pqpart(sfx=""):
        a(probe(14, 12, "s60"))
        stamp(a, 5)
        check(a, "b2q" + sfx, 14, 12, "s60", 1)
        pqloads()
    def pqloads():
        for sub in range(NS):
            for c in range(5):
                a(f"buffer_load_dwordx4 {v4(PQ + (sub*5+c)*4)}, v{5 if c < 4 else 7}, {sq(SRDWS)}, s52 offen offset:{1024*(c%4)} sc1")
            if sub == 0: a("s_add_u32 s52, s52, 20480")
            if sub == 1: a("s_cmp_eq_u32 s57, 42\n s_cselect_b32 s53, 0, 20480\n s_add_u32 s52, s52, s53")
    a("WAITTAG K0")
    a.extend(wreads(0, WA))
    a("WAITTAG K1")
    a.extend(wreads(1, WB))
    a("s_waitcnt lgkmcnt(0)")
    a(f"s_mov_b32 s79, 1\n s_mov_b32 s8, 0\n s_sub_u32 s54, {HALF + L_BAR + 8}, s{SLB}\n v_mov_b32 v15, s54")
    if cfg.qpre:
        a(f"v_cmp_gt_u32 vcc, 1, v14\n s_sub_u32 s53, s2, 128\n s_cmp_ge_u32 s53, 64\n s_cbranch_scc1 L_QP\n s_cbranch_vccnz L_GT\n PUSHSTATE\n s_mov_b32 s8, 1")
        pqloads()
        a("s_branch L_GT\n POPSTATE"); a.label("L_QP")
    a(f"""s_cmp_ge_u32 s2, 192
    s_cbranch_scc1 L_GTW
    s_cmp_eq_u32 s{SLD}, 0
    s_cbranch_scc1 L_GT
    PUSHSTATE""")
    a.label("L_GQ")
    a(f"""{probe(14, 12, "s60")}
    s_waitcnt vmcnt(0)
    ds_read_b32 v16, v15
    v_cmp_gt_u32 vcc, 1, v14
    s_nop 1
    s_cbranch_vccz L_GQ1
    s_waitcnt lgkmcnt(0)
    v_cmp_gt_u32 vcc, 4, v16
    s_nop 1
    s_cbranch_vccz L_GO
    s_sleep 1
    s_branch L_GQ""")
    a.label("L_GQ1")
    a("s_waitcnt lgkmcnt(0)\n s_mov_b32 s8, 1")
    pqloads()
    a("POPSTATE")
    a.label("L_GTW")
    a("ds_read_b32 v14, v15\n s_waitcnt lgkmcnt(0)\n v_cmp_gt_u32 vcc, 4, v14\n s_nop 1\n s_cbranch_vccz L_GO\n s_sleep 1\n s_branch L_GTW")
    a.label("L_GO")
    if not cfg.sig0:
        a(f"s_cmp_eq_u32 s{SLD}, 0\n s_cbranch_scc1 L_GT\n s_cmp_lg_u32 s{SW}, 0\n s_cbranch_scc1 L_GT")
        a(f"s_atomic_add s79, s[6:7], {WS_CNT} glc")
    a.label("L_GT")
    d23 = dma(2, 0) + dma(3, 1)
    for g in d23[:cfg.sdel]: a.extend(g)
    if not cfg.sig0: a(f"s_waitcnt lgkmcnt(0)\n s_cmp_lg_u32 s79, 15\n s_cbranch_scc1 L_GT2\n s_mov_b32 s79, 1\n s_atomic_add s79, s[6:7], 0")
    a.label("L_GT2")
    for g in d23[cfg.sdel:]: a.extend(g)
    S2 = 4 * C_WAVE; S2W = 7360
    assert S2 + 4 * S2W <= L_BAR
    a(f"s_sub_u32 s59, {HALF + S2}, s{SLB}\n s_mul_i32 s53, s{SW}, {S2W}\n s_add_u32 s59, s59, s53")
    a(f"s_add_u32 s55, s59, {7*1056}\n s_sub_u32 s55, s55, s64\n s_and_b32 s55, s55, 255\n s_add_u32 s55, s55, s64")
    for i in range(7): a(f"s_add_u32 m0, s59, {i*1056}\n s_mov_b32 s63, {(128 + i)*1280}\n buffer_load_dwordx4 v2, {sq(SRD0)}, s63 offen lds")
    a("s_waitcnt lgkmcnt(0)")
    if True:
        a(f"s_cmp_lg_u32 s8, 0\n s_cbranch_scc1 L_PQG\n PUSHSTATE"); pqpart("y"); a("POPSTATE"); a.label("L_PQG")
    a(probe(14, 13, "s61"))
    check(a, "b2kv", 14, 13, "s61", 1)
    stamp(a, 6)
    raw = [RAW + 4 * i for i in range(12)] + [KV + 64, KV + 68]
    for hf in range(2):
        for i in range(7):
            a(f"buffer_load_dwordx4 {v4(raw[hf*7+i])}, v{5 if i < 4 else 7}, {sq(SRDWS)}, s62 offen offset:{1024*(i%4)} sc1")
        if hf == 0: a("s_add_u32 s62, s62, 6720")
    for r in range(4): a(f"v_mov_b32 v{12+r}, s73")
    qi = {}
    tabs = [b2_tables(0), b2_tables(1)]
    def build_half(hf):
        o = []
        for i in range(7):
            r = raw[hf * 7 + i]
            o += [f"v_cvt_pk_bf16_f32 v{r}, v{r}, v{r+1}", f"v_cvt_pk_bf16_f32 v{r+1}, v{r+2}, v{r+3}", f"ds_write_b64 v6, {v2(r)} offset:{512*i}"]
        if hf == 1: o += [f"v_mov_b32 v{KV+64+k}, 0" for k in range(8)]
        num, den = tabs[hf]
        quads = [("z", hf, dt) for c, dts in den for dt in dts] + [("n", t, dt) for t in num for c, dts in num[t] for dt in dts]
        assert len(quads) == 18
        rd = []
        for (kind, t, dt) in quads:
            q = len(qi); qi[(kind, t, dt)] = q
            mask = 0
            for l in range(64):
                i, g = l & 15, l >> 4
                hd = (16 * dt + 4 * g) // 20
                he = (16 * t + i) // 20 if kind == "n" else (i & 3) + 4 * t
                if hd == he: mask |= 1 << l
            off = 640 * (t - 5 * hf) + 32 * (dt - 5 * hf) if kind == "n" else 800 + 32 * (dt - 5 * hf)
            rd.append(setmask(mask) + [f"ds_read_b64 {v2(KV + 2*q)}, v{3 if kind == 'n' else 4} offset:{off}"])
        return o, rd
    def omf(sub, hf, T):
        o = []
        num, den = tabs[hf]
        def one(kind, t, lst, acc):
            lst = sorted(lst, key=lambda x: len(x[1]))
            for k, (c, dts) in enumerate(lst):
                src = v4(acc) if k else ("v[12:15]" if kind == "z" else "0")
                kv = KV + 2 * qi[(kind, t, dts[0])]
                pq = PQ + (sub * 5 + c) * 4
                key = (min(k, 1), 0 if kind == "z" else 1, t, k)
                if len(dts) == 2: o.append((key, f"v_mfma_f32_16x16x32_bf16 {v4(acc)}, {v4(kv)}, {v4(pq)}, {src}"))
                else: o.append((key, f"v_mfma_f32_16x16x16_bf16 {v4(acc)}, {v2(kv)}, {v2(pq + 2*(dts[0]&1))}, {src}"))
        one("z", hf, den, T)
        for t in num: one("n", t, num[t], T + 4 + 4 * (t - 5 * hf))
        return [x for _, x in sorted(o)]
    def ovalu(sub, hf, T):
        o = []
        for r in range(4): o.append(f"v_rcp_f32 v{T+r}, v{T+r}")
        for tl in range(5):
            t = tl + 5 * hf
            h0 = (16 * tl) // 20; h1 = (16 * tl + 12) // 20
            rc = T + h0; n = T + 4 + 4 * tl
            if h0 != h1:
                g0 = min(g for g in range(4) if (16 * tl + 4 * g) // 20 == h1)
                o.append(f"v_cndmask_b32 v{rc}, v{T+h0}, v{T+h1}, s[{64+2*g0}:{65+2*g0}]")
            for r in range(4): o.append(f"v_mul_f32 v{n+r}, v{n+r}, v{rc}")
            d = PQ + (sub * 5 + t // 2) * 4 + 2 * (t & 1)
            o.append(f"v_cvt_pk_bf16_f32 v{d}, v{n}, v{n+1}")
            o.append(f"v_cvt_pk_bf16_f32 v{d+1}, v{n+2}, v{n+3}")
        return o
    def acc(sub, n): return ACC + (n * NS + sub) * 4
    def g2(k, W, ns=range(8)):
        return [f"v_mfma_f32_16x16x32_bf16 {v4(acc(sub, n))}, {v4(W[n])}, {v4(PQ + (sub*5+k)*4)}, {'0' if k == 0 else v4(acc(sub, n))}" for n in ns for sub in range(NS)]
    units = [(s_, h) for h in range(2) for s_ in range(NS)]
    nu = len(units)
    w0, r0 = build_half(0)
    a.extend(w0)
    for g in r0: a.extend(g)
    a("s_mov_b64 exec, -1")
    w1, r1 = build_half(1)
    a.extend(w1)
    r1g = [r1[k] + r1[k + 1] + ["s_mov_b64 exec, -1"] for k in range(0, 18, 2)]
    a.extend(interleave(omf(*units[0], U[0]), r1g, 1, 11))
    stamp(a, 7)
    for u in range(1, nu):
        a.extend(interleave(omf(*units[u], U[u & 1]), ovalu(*units[u - 1], U[(u - 1) & 1]), 2))
        if u == 1: a(f"s_waitcnt lgkmcnt(0)\n s_mov_b32 m0, s55\n s_mov_b32 s63, {135*1280}\n buffer_load_dwordx4 v2, {sq(SRD0)}, s63 offen lds ; tag=K4")
    a.extend(interleave(g2(0, WA), ovalu(*units[nu - 1], U[(nu - 1) & 1]), 2))
    k1 = g2(1, WB)
    a.extend(interleave(k1, wreads(0, WA), 0, 18))
    ad = []
    for gam in range(1, 4):
        ad += [f"s_xor_b32 s52, s{SW}, {gam}", "s_mul_i32 s52, s52, 20480", f"s_add_u32 s52, s52, {(gam-1)*6144}", f"s_add_u32 s52, s52, s{SLB}", f"v_add_u32 v{203+gam}, s52, v5"]
    ad += f"""s_sub_u32 s59, s59, s65
    s_sub_u32 s55, s55, s65
    s_sub_u32 s55, s55, {7*1056}
    v_add_u32 v208, s59, v0
    v_add_u32 v209, s55, v0
    v_bfe_u32 v210, v1, 2, 3
    v_cmp_eq_u32 vcc, 7, v210
    v_mov_b32 v211, 0
    v_mov_b32 v211, 0
    v_cndmask_b32 v208, v208, v209, vcc
    v_add_u32 v207, s65, v5
    s_add_u32 s53, s65, 18432
    v_and_b32 v12, 15, v1
    v_mul_u32_u24 v12, 80, v12
    v_lshrrev_b32 v3, 4, v1
    v_lshl_add_u32 v12, v3, 3, v12
    v_add_u32 v12, s53, v12
    v_lshrrev_b32 v3, 2, v1
    v_and_b32 v4, 3, v1
    v_lshlrev_b32 v4, 4, v4
    v_mul_u32_u24 v15, 80, v3
    v_add3_u32 v15, v15, v4, s53
    s_mul_i32 s52, s57, 48
    v_add_u32 v3, s52, v3
    v_mul_u32_u24 v3, 2560, v3
    v_add_u32 v3, v3, v4
    s_lshl_b32 s52, s58, 8
    s_lshl_b32 s54, s{SW}, 6
    s_add_u32 s52, s52, s54
    s_add_u32 s52, s52, 1280""".split("\n")
    a.extend(interleave(interleave(g2(2, WA), wreads(1, WB), 0, 16), ad))
    pre = g2(3, WB, [0, 1, 2, 3])
    a("WAITTAG K4")
    rd4 = [x.replace(", v0 ", ", v208 ") for x in wreads(0, WA)]; rd4 = rd4[4:] + rd4[:4]
    a.extend(interleave(pre, rd4))
    def wr(gam): return [f"ds_write_b128 v207, {v4(ACC + (gam*6+k)*4)} offset:{(gam-1)*6144 + 1024*k}" for k in range(6)]
    a.extend(g2(4, WA, [2, 3]))
    a.extend(interleave(g2(3, WB, [4, 5]) + g2(4, WA, [4, 5]), wr(1), 2))
    a.extend(interleave(g2(3, WB, [6, 7]) + g2(4, WA, [6, 7]), wr(2), 2))
    a.extend(interleave(g2(4, WA, [0, 1]), wr(3), 2))
    stamp(a, 8)
    bar_arrive(a); bar_wait(a, True)
    R = 16
    order = [n * NS + sub for sub in range(NS) for n in range(2)]
    for k in order:
        for gam in range(3): a(f"ds_read_b128 {v4(R + (k*3+gam)*4)}, v{204+gam} offset:{1024*k}")
    for k in order:
        n, sub = k // NS, k % NS
        for r in range(4): a(f"v_add_f32 v{ACC+4*k+r}, v{ACC+4*k+r}, v{R+(k*3)*4+r}")
        for r in range(4): a(f"v_add_f32 v{R+(k*3+1)*4+r}, v{R+(k*3+1)*4+r}, v{R+(k*3+2)*4+r}")
        for r in range(4): a(f"v_add_f32 v{ACC+4*k+r}, v{ACC+4*k+r}, v{R+(k*3+1)*4+r}")
        a(f"v_cvt_pk_bf16_f32 v{140+2*k}, v{ACC+4*k}, v{ACC+4*k+1}\n v_cvt_pk_bf16_f32 v{141+2*k}, v{ACC+4*k+2}, v{ACC+4*k+3}")
        a(f"ds_write_b64 v12, {v2(140+2*k)} offset:{32*n}")
        if n == 1:
            a(f"ds_read_b128 {v4(160+4*sub)}, v15")
            if sub > 0:
                a(f"buffer_store_dwordx4 {v4(160+4*(sub-1))}, v3, {sq(SRD1)}, s52 offen{OSC()}\n s_add_u32 s52, s52, {16*2560}")
    a(f"buffer_store_dwordx4 {v4(160+4*(NS-1))}, v3, {sq(SRD1)}, s52 offen{OSC()}")

def OSC(k=None): return ["", " sc1", " nt", " sc0 sc1"][cfg.osc if k is None else k]

def kd(name):
    return f""".p2align 6
.amdhsa_kernel {name}
  .amdhsa_next_free_vgpr 256
  .amdhsa_next_free_sgpr 102
  .amdhsa_accum_offset 256
  .amdhsa_group_segment_fixed_size 0
  .amdhsa_kernarg_size 96
  .amdhsa_user_sgpr_count 2
  .amdhsa_user_sgpr_kernarg_segment_ptr 1
  .amdhsa_system_sgpr_workgroup_id_x 1
  .amdhsa_float_denorm_mode_32 3
.end_amdhsa_kernel"""

def head(name): return f".globl {name}\n.p2align 8\n.type {name},@function"

def build():
    k = KN + "_kernel"
    a = Asm()
    a(head(k)); prologue(a, k, 256)
    a("s_cmp_ge_u32 s2, 192\n s_cbranch_scc1 L_P")
    g_ids(a)
    a(f"s_cmp_eq_u32 s{SGRP}, 0\n s_cbranch_scc1 L_CONS")
    tag(a, 7)
    role_loader(a)
    a("s_cmp_ge_u32 s2, 128\n s_cbranch_scc1 L_CONV\n s_branch L_B2")
    a.label("L_CONS")
    if not cfg.zp:
        a(f"s_cmp_lg_u32 s{SW}, 0\n s_cbranch_scc1 L_ZW\n s_cmp_ge_u32 s2, {NZERO}\n s_cbranch_scc1 L_ZW")
        zero_wave(a)
    a(f"s_cmp_lg_u32 s{SW}, 3\n s_cbranch_scc1 L_CONS1")
    init_wave(a, "g")
    a.label("L_CONS1")
    a(f"s_setprio {cfg.cprio}")
    args_ready(a)
    g_setup2(a)
    a("s_cmp_ge_u32 s58, 8\n s_cbranch_scc1 L_Q")
    tag(a, 1); role_kv(a)
    a("s_branch L_FIN")
    a.label("L_Q"); tag(a, 2); role_q(a)
    if cfg.qearly:
        a("s_cmp_lt_u32 s2, 168\n s_cbranch_scc1 L_FG0"); tag(a, 5); a("v_mov_b32 v2, v208\n s_branch L_B2Q"); a.label("L_FG0")
    else: a("s_cmp_ge_u32 s2, 168\n s_cbranch_scc1 L_B2")
    fin_g0(a)
    a.label("L_P")
    if cfg.zp:
        a(f"s_cmp_lg_u32 s{SW8}, 1\n s_cbranch_scc1 L_ZW\n s_cmp_ge_u32 s2, {192 + NZERO}\n s_cbranch_scc1 L_ZW")
        zero_wave(a)
    role_prep(a)
    a.label("L_CONV"); role_conv(a)
    a("s_cmp_ge_u32 s56, 10\n s_cbranch_scc1 L_FIN")
    a.label("L_FINR")
    tag(a, 8); role_fin(a)
    if cfg.enc == 89: a("s_waitcnt vmcnt(0)"); stamp(a, 9)
    a("s_branch L_FIN")
    a.label("L_B2")
    a("""s_lshr_b32 s53, s2, 3
    s_sub_u32 s54, s53, 5
    s_cmp_lt_u32 s53, 16
    s_cselect_b32 s53, s53, s54
    s_and_b32 s56, s2, 7
    s_mul_i32 s56, s56, 27
    s_add_u32 s56, s56, s53
    s_cmp_ge_u32 s56, 215
    s_cbranch_scc1 L_FIN""")
    tag(a, 5); role_b2(a)
    if cfg.enc == 59: a("s_waitcnt vmcnt(0)"); stamp(a, 9)
    a.label("L_FIN"); stamps_out(a)
    if cfg.enc:
        a("s_waitcnt vmcnt(0) lgkmcnt(0)")
        a.label("L_SPIN")
        a("s_sleep 1\n s_memrealtime s[94:95]\n s_waitcnt lgkmcnt(0)\n s_sub_u32 s94, s94, s96\n s_cmp_lt_u32 s94, 2500\n s_cbranch_scc1 L_SPIN")
    a.label("L_END"); a("s_endpgm")
    launch = [f"; @launch grid=(256,1,1) block=(512,1,1) lds={LDS_BYTES}"]
    return launch, a, [k]

HDR = """; Fused H3 SSM-conv block + linear-attention block, one persistent launch: 256 workgroups x 8 waves, one per CU.
; generated by dev/gen.py"""
def emit(path, launch, a, kernels, verbose=False):
    body = fix_hazards(insert_waits(a.lines), verbose)
    if cfg.al:
        body, n1, n2 = align8(body, cfg.al)
        if verbose: print("align: promoted", n1, "nops", n2)
    out = HDR.split("\n") + list(launch) + ['.amdgcn_target "amdgcn-amd-amdhsa--gfx950"', ".text", ".p2align 8", "L_CODE_BEGIN:"]
    out += [(l if l.endswith(":") or l.startswith(".") else "    " + l) for l in body]
    out += ["L_CODE_END:", "    s_endpgm", '.section .rodata,"a"'] + [kd(k) for k in kernels]
    open(path, "w").write("\n".join(out) + "\n")

if __name__ == "__main__":
    cfg.stamps = "stamps" in sys.argv[2:]
    cfg.rot = "norot" not in sys.argv[2:]
    for x in sys.argv[2:]:
        if "=" in x: setattr(cfg, x.split("=")[0], int(x.split("=")[1]))
    emit(sys.argv[1], *build(), verbose="-v" in sys.argv)
```

```python
import sys
sys.path.insert(0, "dev")
from asmlib import *

KN = "concat_heads__ssm_conv_h3__linear_attn_block__prompt"
WS_KVFLG = 0x0000
WS_YFLG  = 0x2000
WS_UFLG  = 0x4800
WS_QFLAG = 0x5000
WS_CNT   = 0x8000
WS_KV    = 0xD000
NZERO    = 56
TP = 4224
WS_UT    = 0x100000
WS_YT    = 0x400000
WS_PQ    = 0x700000
WS_STAMP = 0xA00000
WS_SIZE  = 0xB00000
LDS_BYTES = 163840
HALF = 81920
L_BAR = HALF - 64
L_SIG = HALF - 60
SGRP, SLB, SBT, SW8, SLD = 74, 75, 76, 77, 72
LOG2E = 0x3FB8AA3B
EPS = 0x358637BD

P_Q, P_K, P_V, P_SH, P_H, P_D, P_X, P_W, P_WO, P_OUT, P_DBG, P_WS = [4 + 2 * i for i in range(12)]
SRD0, SRD1, SRD2, SRD3, SRD4, SRDWS = 28, 32, 36, 40, 44, 48
SW = 3

def srd(a, d, p, nbytes):
    a(f"s_mov_b32 s{d}, s{p}\n s_and_b32 s{d+1}, s{p+1}, 0xffff\n s_mov_b32 s{d+2}, {nbytes}\n s_mov_b32 s{d+3}, 0x20000")
def sq(d): return f"s[{d}:{d+3}]"
def v4(r): return f"v[{r}:{r+3}]"
def v2(r): return f"v[{r}:{r+1}]"

class Cfg:
    stamps = False
    rot = False
    gonly = 0
    ahead0 = 4
    ahead = 4
    bpos = 3
    lprio = 3
    cprio = 2
    psleep = 2
    qlate = 3
    pprio = 0
    qit = 4
    cgate = 4
    gpos = 2
    wowarm = 0
    pqfirst = 2
    pearly = 0
    qswap = 0
    mprio = 3
    sig0 = 1
    early23 = 0
    wlate = 0
    nb9 = 8
    jit = 0
    x_zd = 0
    nogq = 1
    rA = -1
    rB = 0
    rC = 0
    rD = 0
    fsc = 1
    qpre = 0
    krep = 8
    fmode = 1
    smask = 1
    sdel = 10
    x_qd = 0
    x_pd = 0
    al = 0
    zp = 1
    wpipe = 1
    mix = 0
    qearly = 0
    pk = 0
    lite = 0
    nrep = 1
    kvall = 0
    yall = 0
    uall = 0
    vprio = 0
    fbase = 22
    tail2 = 1
    tlb = 0
    pwait = 1
    eprio = 3
    fprio = 3
    qrel = 8
    qst = 1
    osc = 1
    gate = 1
    usig = 4
    qbar = 1
    spf = 0
    slab = 0
    enc = 0
    role = 0
    pmode = 0
    x_noq = 0
    x_plain = 0
    x_pend = 0
    x_nost = 0
cfg = Cfg()

NSTAMP = 10
def stamp(a, i, force=False):
    if cfg.jit and i != NSTAMP - 1:
        stamp.n += 1
        a(f"s_mul_i32 s96, s2, 37\n s_mul_i32 s97, s{SW8}, {11 + 2 * cfg.jit}\n s_add_u32 s96, s96, s97\n s_add_u32 s96, s96, {stamp.n * 5 + cfg.jit}\n s_and_b32 s96, s96, 7\n s_cmp_lg_u32 s96, 0\n s_cbranch_scc1 L_JIT{stamp.n}\n s_sleep {40 + 29 * (stamp.n % 4)}")
        a.label(f"L_JIT{stamp.n}")
    if cfg.lite and i != NSTAMP - 1: return
    if cfg.slab and not force and i != NSTAMP - 1 and cfg.role in (7, 4, 5): return
    if cfg.enc and cfg.enc == cfg.role * 10 + i:
        a("s_memrealtime s[96:97]\n s_waitcnt lgkmcnt(0)")
    if cfg.stamps:
        a(f"s_memrealtime s[{80+2*i}:{81+2*i}]\n s_waitcnt lgkmcnt(0)")
stamp.n = 0
def stamps_out(a):
    if not cfg.stamps: return
    a("s_waitcnt vmcnt(0) lgkmcnt(0)")
    stamp(a, NSTAMP - 1)
    a("s_memtime s[70:71]\n s_waitcnt lgkmcnt(0)\n s_sub_u32 s101, s70, s101")
    a(f"s_getreg_b32 s52, hwreg(HW_REG_HW_ID)\n s_getreg_b32 s53, hwreg(HW_REG_XCC_ID)")
    for i in range(NSTAMP): a(f"v_mov_b32 v{16+i}, s{80+2*i}")
    a(f"v_mov_b32 v26, s52\n v_mov_b32 v27, s53\n v_mov_b32 v28, s100\n v_mov_b32 v29, s2\n v_mov_b32 v30, s101\n v_mov_b32 v31, 0")
    a(f"s_lshl_b32 s54, s2, 9\n s_lshl_b32 s55, s{SW8}, 6\n s_add_u32 s54, s54, s55\n s_add_u32 s54, s54, {WS_STAMP}")
    a(f"v_mov_b32 v32, 0\n s_mov_b64 exec, 1")
    for i in range(4): a(f"buffer_store_dwordx4 {v4(16+4*i)}, v32, {sq(SRDWS)}, s54 offen offset:{16*i}")
    a("s_mov_b64 exec, -1")
def tag(a, t):
    cfg.role = t
    if cfg.stamps: a(f"s_lshl_b32 s100, s100, 4\n s_add_u32 s100, s100, {t}")

def prologue(a, name, nwg):
    a.label(name)
    if cfg.enc: a("s_memrealtime s[98:99]\n s_memrealtime s[96:97]")
    a(f"""s_load_dwordx16 s[4:19], s[0:1], 0
    s_load_dwordx8 s[20:27], s[0:1], 64
    s_cmp_ge_u32 s2, {nwg}
    s_cbranch_scc1 L_END
    v_and_b32 v1, 63, v0
    v_lshrrev_b32 v2, 6, v0
    s_mov_b32 s{SBT}, 0
    v_readfirstlane_b32 s{SW8}, v2
    v_mov_b32 v12, 0
    s_mov_b32 s{SLD}, 0""")
    if cfg.stamps:
        for i in range(NSTAMP): a(f"s_mov_b32 s{80+2*i}, 0")
        a("s_mov_b32 s100, 0\n s_memrealtime s[80:81]\n s_memtime s[98:99]")
    a(f"""s_and_b32 s{SW}, s{SW8}, 3
    s_lshr_b32 s{SGRP}, s{SW8}, 2
    s_mul_i32 s{SLB}, s{SGRP}, {HALF}""")

def init_wave(a, name):
    a("s_getpc_b64 s[52:53]")
    a.label(f"L_PC{name}")
    a(f"""s_lshr_b32 s54, s2, 3
    s_and_b32 s54, s54, 7
    s_lshl_b32 s54, s54, 13
    v_lshlrev_b32 v3, 7, v1
    v_add_u32 v3, s54, v3
    s_sub_u32 s52, s52, L_PC{name}-L_CODE_BEGIN
    s_subb_u32 s53, s53, 0
    v_min_u32 v3, L_CODE_END-L_CODE_BEGIN-4, v3
    global_load_dword v15, v3, s[52:53]""")
    lds_init(a)
    if cfg.tlb:
        n = cfg.tlb
        a(f"s_waitcnt lgkmcnt(0)\n s_mov_b64 exec, {(1 << n) - 1}")
        for k, (p, size) in enumerate(((P_WS, WS_STAMP), (P_OUT, 2048 * 2560), (P_Q, 2048 * 1280), (P_H, 640 * 4096), (P_WO, 640 * 1280))):
            st = (size - 128) // (n - 1) // 128 * 128
            a(f"s_mov_b32 s54, {st}\n v_mul_lo_u32 v3, v1, s54\n global_load_dword v{250+k}, v3, s[{p}:{p+1}]")
        a("s_mov_b64 exec, -1")

def lds_init(a):
    a(f"""v_and_b32 v4, 15, v1
    v_lshlrev_b32 v4, 2, v4
    v_bfe_u32 v5, v1, 4, 1
    v_mul_u32_u24 v5, {HALF}, v5
    v_add_u32 v4, v4, v5
    v_add_u32 v4, {L_BAR}, v4
    v_mov_b32 v5, 0
    ds_write_b32 v4, v5""")

def args_ready(a):
    a("s_waitcnt lgkmcnt(0)")
    if cfg.stamps: a("s_mov_b32 s101, s98")
    srd(a, SRDWS, P_WS, WS_SIZE if cfg.stamps else WS_STAMP)
    srd(a, SRD4, P_DBG, 256)

def bar_arrive(a):
    a(f"""v_mov_b32 v13, s{SLB}
    v_mov_b32 v14, 1
    v_add_u32 v13, {L_BAR}, v13
    s_add_u32 s{SBT}, s{SBT}, 4
    s_mov_b64 exec, 1
    ds_add_u32 v13, v14
    s_mov_b64 exec, -1""")
def gate_arrive(a):
    a(f"""v_mov_b32 v13, s{SLB}
    v_mov_b32 v14, 1
    v_add_u32 v13, {L_BAR}, v13
    s_mov_b64 exec, 1
    ds_add_u32 v13, v14 offset:8
    s_mov_b64 exec, -1""")
def bar_wait(a, addr_ok=False):
    n = bar_wait.n; bar_wait.n += 1
    if not addr_ok: a(f"v_mov_b32 v13, s{SLB}\n v_add_u32 v13, {L_BAR}, v13")
    a.label(f"L_BW_{n}")
    a(f"""ds_read_b32 v14, v13
    s_waitcnt lgkmcnt(0)
    v_cmp_gt_u32 vcc, s{SBT}, v14
    s_nop 1
    s_cbranch_vccnz L_BW_{n}""")
bar_wait.n = 0

def phi_block(regs_, temps):
    out = []
    n = len(temps)
    for g in range(0, len(regs_), n):
        grp = regs_[g:g + n]
        if cfg.pk:
            for k in range(0, len(grp), 2): out.append(f"v_pk_mul_f32 {v2(temps[k])}, {v2(grp[k])}, s[70:71] op_sel_hi:[1,0]")
            for r, t in zip(grp, temps): out.append(f"v_exp_f32 v{t}, v{t} clamp"); out.append(f"v_max_f32 v{r}, s71, v{r}")
            for k in range(0, len(grp), 2): out.append(f"v_pk_add_f32 {v2(grp[k])}, {v2(grp[k])}, {v2(temps[k])}")
            continue
        for r, t in zip(grp, temps): out.append(f"v_mul_f32 v{t}, s70, v{r}")
        for r, t in zip(grp, temps): out.append(f"v_exp_f32 v{t}, v{t} clamp"); out.append(f"v_max_f32 v{r}, s71, v{r}")
        for r, t in zip(grp, temps): out.append(f"v_add_f32 v{r}, v{r}, v{t}")
    return out

def probe(vdst, voff, s_off, srdq=SRDWS):
    if cfg.pmode == 3:
        return f"v_mov_b32 v{vdst}, -1\n s_mov_b64 exec, 3\n v_mov_b32 v{vdst}, 0\n buffer_atomic_add v{vdst}, v{voff}, {sq(srdq)}, {s_off} offen sc0 sc1\n s_mov_b64 exec, -1"
    return f"buffer_load_dword v{vdst}, v{voff}, {sq(srdq)}, {s_off} offen " + ["sc1", "sc0 sc1", "sc0 sc1 nt"][cfg.pmode]
def check(a, name, vdst, voff, s_off, target, srdq=SRDWS):
    a(f"v_cmp_gt_u32 vcc, {target}, v{vdst}\n s_mov_b32 s78, 0\n s_nop 0\n s_cbranch_vccz L_OK_{name}")
    a("PUSHSTATE")
    a.label(f"L_POLL_{name}")
    a(f"""s_sleep {cfg.psleep}
    {probe(vdst, voff, s_off, srdq)}
    s_add_u32 s78, s78, 1
    s_waitcnt vmcnt(0)
    v_cmp_gt_u32 vcc, {target}, v{vdst}
    s_cmp_ge_u32 s78, 0x20000
    s_cbranch_scc1 L_OK_{name}
    s_cbranch_vccnz L_POLL_{name}""")
    a("POPSTATE")
    a.label(f"L_OK_{name}")
def zero_probe(a, vd, vz): a(f"v_mov_b32 v{vz}, 128\n" + probe(vd, vz, "0", SRD4))
def zero_check(a, name, vd, vz): check(a, "z" + name, vd, vz, "0", 1, SRD4)
def zero_wave(a):
    a(f"""v_lshlrev_b32 v8, 4, v1
    v_mov_b32 v16, 0
    v_mov_b32 v17, 0
    v_mov_b32 v18, 0
    v_mov_b32 v19, 0
    s_and_b32 s54, s2, 63
    s_lshl_b32 s54, s54, 11
    s_mov_b32 s79, 1
    s_mov_b32 s78, 1""")
    args_ready(a)
    if cfg.x_zd: a("s_sleep 127\n s_sleep 127\n s_sleep 127")
    a(f"""buffer_store_dwordx4 v[16:19], v8, {sq(SRDWS)}, s54 offen sc1
    buffer_store_dwordx4 v[16:19], v8, {sq(SRDWS)}, s54 offen offset:1024 sc1
    s_waitcnt vmcnt(0)
    s_atomic_add s79, s[{P_DBG}:{P_DBG+1}], 0 glc
    s_waitcnt lgkmcnt(0)
    s_cmp_lg_u32 s79, {NZERO-1}
    s_cbranch_scc1 L_ZW
    s_atomic_add s78, s[{P_DBG}:{P_DBG+1}], 128
    s_waitcnt lgkmcnt(0)""")
    a.label("L_ZW")
    if cfg.slab == 5: stamp(a, 6, True)

def signal(a, s_off, nwaves, ldsaddr, narr=1, rstride=128):
    n = signal.n; signal.n += 1
    a(f"""v_mov_b32 v13, {ldsaddr}
    v_mov_b32 v14, 1
    s_add_u32 s68, s{P_WS}, s{s_off}
    s_addc_u32 s69, s{P_WS+1}, 0
    s_mov_b32 s78, 1
    s_waitcnt vmcnt(0)
    s_mov_b64 exec, 1
    ds_add_rtn_u32 v12, v13, v14
    s_mov_b64 exec, -1
    s_waitcnt lgkmcnt(0)
    v_readfirstlane_b32 s79, v12
    s_cmp_lg_u32 s79, {nwaves-1}
    s_cbranch_scc1 L_SIG_{n}""")
    if narr > 1:
        a(f"""s_mov_b32 s79, 1
        s_atomic_add s79, s[68:69], {WS_CNT} glc
        s_waitcnt lgkmcnt(0)
        s_cmp_lg_u32 s79, {narr-1}
        s_cbranch_scc1 L_SIG_{n}""")
    for r in range(cfg.nrep if narr > 1 else 1): a(f"s_atomic_add s78, s[68:69], {r*rstride}")
    a("s_waitcnt lgkmcnt(0)")
    a.label(f"L_SIG_{n}")
signal.n = 0

def conv_ids(a):
    a("""s_and_b32 s52, s2, 7
    s_mul_i32 s52, s52, 20
    s_lshr_b32 s53, s2, 3
    s_sub_u32 s53, s53, 12
    s_add_u32 s52, s52, s53""")
def sprefetch(a, p, s_off, n):
    a(f"s_add_u32 s68, s{p}, s{s_off}\n s_addc_u32 s69, s{p+1}, 0")
    for i in range(n): a(f"s_load_dword s79, s[68:69], {128*i}")
    a("s_waitcnt lgkmcnt(0)")

def last_barrier(a, name, n_younger):
    a(f"s_cmp_eq_u32 s{SLD}, 0\n s_cbranch_scc1 L_LB_{name}\n PUSHSTATE\n s_waitcnt vmcnt({n_younger})\n s_barrier\n s_setprio 0\n POPSTATE")
    a.label(f"L_LB_{name}")

G_ACC, G_B, G_X = 16, 96, 176
G_SLOT = 36864
def slot_off(j): return ((j & 1) ^ 1) * G_SLOT
def slot_half(j): return (j % 4) >> 1
def g_ids(a):
    a(f"""s_and_b32 s52, s2, 7
    s_lshr_b32 s53, s2, 3
    s_and_b32 s57, s52, 3
    s_lshl_b32 s57, s57, 2
    s_and_b32 s54, s53, 3
    s_add_u32 s57, s57, s54
    s_lshr_b32 s52, s52, 2
    s_lshr_b32 s54, s53, 2
    s_lshl_b32 s58, s52, 2
    s_add_u32 s58, s58, s54
    s_lshl_b32 s52, s52, 1
    s_add_u32 s52, s52, s54
    s_add_u32 s52, s52, 4
    s_cmp_ge_u32 s54, 4
    s_cselect_b32 s58, s52, s58
    s_lshl_b32 s66, s{SW}, 12
    s_add_u32 s66, s66, 20480""")

def g_setup_x(a):
    if cfg.rot:
        if cfg.rA < 0:
            a("s_mul_i32 s62, s57, 3\n s_lshl_b32 s59, s58, 1\n s_add_u32 s62, s62, s59")
        else:
            a(f"""s_bfe_u32 s62, s2, 0x20003
            s_mul_i32 s62, s62, {cfg.rA}
            s_lshr_b32 s59, s2, 5
            s_mul_i32 s59, s59, {cfg.rB}
            s_add_u32 s62, s62, s59
            s_and_b32 s59, s2, 3
            s_mul_i32 s59, s59, {cfg.rC}
            s_add_u32 s62, s62, s59
            s_bfe_u32 s59, s2, 0x10002
            s_mul_i32 s59, s59, {cfg.rD}
            s_add_u32 s62, s62, s59""")
        assert all((v * 205) >> 11 == v // 10 for v in range(100))
        a(f"""s_mul_i32 s59, s62, 205
        s_lshr_b32 s59, s59, 11
        s_mul_i32 s59, s59, 10
        s_sub_u32 s62, s62, s59
        s_lshl_b32 s64, s62, 7
        s_mul_i32 s63, s62, {64*3840}""")
    else:
        a("s_mov_b32 s64, 0\n s_mov_b32 s63, 0")
    a(f"""v_lshrrev_b32 v240, 3, v1
    s_lshl_b32 s59, s57, 7
    s_lshl_b32 s54, s{SW}, 5
    s_add_u32 s59, s59, s54
    v_add_u32 v240, s59, v240
    v_mul_u32_u24 v240, 1280, v240
    v_lshrrev_b32 v241, 4, v1
    v_and_b32 v242, 7, v1
    v_xor_b32 v242, v242, v241
    v_lshl_add_u32 v7, v242, 4, v240
    v_xor_b32 v242, 4, v242
    v_lshl_add_u32 v8, v242, 4, v240
    v_add_u32 v8, {10240-1024}, v8
    v_add_u32 v9, {20480-2048}, v7
    v_add_u32 v10, {20480-2048}, v8""")

def g_setup_w(a, hook=None):
    a(f"""s_mul_i32 s59, s58, 160
    s_add_u32 s60, s59, 1280
    s_add_u32 s61, s59, {2560-160}
    s_sub_u32 s59, s58, 8
    s_mul_i32 s59, s59, 320
    s_cmp_ge_u32 s58, 8
    s_cselect_b32 s60, s59, s60
    s_cselect_b32 s61, s59, s61
    s_mul_i32 s59, s{SW}, {16*3840}
    s_add_u32 s60, s60, s59
    s_add_u32 s61, s61, s59
    s_mul_i32 s65, s{SW}, 5120""")
    a(f"v_mov_b32 v244, s60\n v_mov_b32 v245, s61")
    for i in range(5):
        assert all(((64 * i + l) * 3277) >> 16 == (64 * i + l) // 20 for l in range(64))
        a(f"""v_add_u32 v240, {64*i}, v1
        v_mul_u32_u24 v241, 3277, v240
        v_lshrrev_b32 v241, 16, v241
        v_mul_u32_u24 v242, 20, v241
        v_sub_u32 v240, v240, v242""")
        if i == 2: a("v_lshrrev_b32 v242, 4, v1\n v_and_b32 v242, 2, v242\n v_xor_b32 v240, v240, v242")
        if i > 2: a("v_xor_b32 v240, 2, v240")
        a(f"""v_cmp_gt_u32 vcc, 10, v240
        v_mul_u32_u24 v241, 3840, v241
        v_lshl_add_u32 v240, v240, 4, v241
        v_cndmask_b32 v242, v245, v244, vcc""")
        if i in (0, 4): a(f"v_add_u32 v{2+i}, v240, v242")
        else: a(f"v_add_u32 v240, v240, v242\n v_subrev_u32 v{2+i}, {1024*i}, v240")
        if hook: hook(i)

def g_setup2(a):
    a(f"""v_lshrrev_b32 v241, 4, v1
    v_bfe_u32 v242, v1, 2, 2
    v_lshl_add_u32 v242, v241, 3, v242
    v_mul_u32_u24 v242, 320, v242
    v_and_b32 v243, 3, v1
    v_lshl_add_u32 v242, v243, 3, v242
    v_and_b32 v243, 1, v241
    v_lshlrev_b32 v243, 5, v243
    v_add_u32 v9, v242, v243
    v_sub_u32 v10, v242, v243
    v_and_b32 v240, 15, v1
    v_lshrrev_b32 v242, 1, v240
    v_xor_b32 v242, v242, v241
    v_lshlrev_b32 v240, 7, v240
    v_add_u32 v240, s66, v240
    v_lshl_add_u32 v11, v242, 4, v240
    v_xor_b32 v242, 4, v242
    v_lshl_add_u32 v12, v242, 4, v240
    s_mov_b32 s70, {LOG2E}
    s_mov_b32 s71, {EPS}""")
    for k in range(4): a(f"v_add_u32 v{2+k}, {HALF}, v{9+k}")

def g_loadx(j):
    o = [f"s_add_u32 m0, s66, {slot_half(j) * HALF + slot_off(j)}", "s_nop 0"]
    for i in range(4): o.append(f"buffer_load_dwordx4 v{7+i}, {sq(SRD0)}, s64 offen offset:{1024*i} lds ; tag=S{j}")
    o += ["s_add_u32 s64, s64, 128"]
    if cfg.rot: o += ["s_cmp_eq_u32 s64, 1280", "s_cselect_b32 s64, 0, s64"]
    return o
def g_loadw(j):
    base = slot_half(j) * HALF + slot_off(j)
    o = [f"s_add_u32 m0, s65, {base}", "s_nop 0"]
    for i in range(4): o.append(f"buffer_load_dwordx4 v{2+i}, {sq(SRD1)}, s63 offen offset:{1024*i} lds ; tag=S{j}")
    o += [f"s_add_u32 m0, s65, {base + 4096}", "s_nop 0", f"buffer_load_dwordx4 v6, {sq(SRD1)}, s63 offen lds ; tag=S{j}"]
    o += [f"s_add_u32 s63, s63, {64*3840}"]
    if cfg.rot: o += [f"s_cmp_eq_u32 s63, {640*3840}", "s_cselect_b32 s63, 0, s63"]
    return o
def g_xreads(j):
    return [f"ds_read_b128 {v4(G_X + (j&1)*16 + ks*8 + sub*4)}, v{(4 if slot_half(j) else 11)+ks} offset:{slot_off(j) + sub*2048}" for ks in range(2) for sub in range(2)]
def g_reads(t):
    j = t // 2
    o = []
    for n in range(10):
        for h in range(2):
            off = slot_off(j) + (t & 1) * 10240 + h * 1280 + 32 * n
            o.append(f"ds_read_b64_tr_b16 {v2(G_B + (t & 1) * 40 + n * 4 + 2 * h)}, v{(2 if slot_half(j) else 9) + (n & 1)} offset:{off}")
    return o

def role_loader(a):
    a(f"s_setprio {cfg.lprio}")
    g_setup_x(a)
    a("s_waitcnt lgkmcnt(0)")
    srd(a, SRD0, P_X, 2048 * 1280)
    if cfg.slab == 5: stamp(a, 5, True)
    if cfg.x_qd: a(f"s_cmp_lt_u32 s58, 8\n s_cbranch_scc1 L_XQD\n s_sleep {cfg.x_qd}"); a.label("L_XQD")
    a.extend(g_loadx(0))
    srd(a, SRD1, P_W, 640 * 3840)
    seq = []
    for j in range(10): seq += [g_loadx(j), g_loadw(j)]
    pos = 1
    if cfg.wpipe:
        w0 = g_loadw(0)
        parts = [w0[0:3], w0[3:4], w0[4:5], w0[5:6], w0[6:]]
        g_setup_w(a, lambda i: a.extend(parts[i]))
        pos = 2
    else: g_setup_w(a)
    def upto(n):
        nonlocal pos
        while pos < min(n, 20): a.extend(seq[pos]); pos += 1
    upto(cfg.ahead0)
    args_ready(a)
    stamp(a, 1)
    for j in range(9):
        a(f"WAITTAG S{j}")
        if cfg.slab == 2 and j < 8: stamp(a, j + 1, True)
        a("s_barrier")
        if cfg.slab == 1 and j < 8: stamp(a, j + 1, True)
        if j == 0: stamp(a, 2)
        if j == 6: zero_probe(a, 14, 13)
        upto(min(2 * (j + 1) + cfg.ahead, 2 * (j + 4)))
    zero_check(a, "ld", 14, 13)
    a(f"s_lshl_b32 s53, s58, 7\n s_add_u32 s6, s{P_WS}, s53\n s_addc_u32 s7, s{P_WS+1}, 0")
    a(f"s_mov_b32 s{SLD}, 1")
    stamp(a, 3)

def g_main(a, transposed, tail):
    a("s_waitcnt lgkmcnt(0)\n s_barrier")
    stamp(a, 1)
    a.extend(g_xreads(0) + g_reads(0))
    def mfma(t, n, sub):
        j, ks = t // 2, t % 2
        acc = v4(G_ACC + (sub * 10 + n) * 4)
        x = v4(G_X + (j & 1) * 16 + ks * 8 + sub * 4)
        b = v4(G_B + (t & 1) * 40 + n * 4)
        c = "0" if t == 0 else acc
        return f"v_mfma_f32_16x16x32_bf16 {acc}, {b}, {x}, {c}" if transposed else f"v_mfma_f32_16x16x32_bf16 {acc}, {x}, {b}, {c}"
    for t in range(18 if cfg.tail2 else 19):
        j, ks = t // 2, t % 2
        mf = [mfma(t, n, sub) for n in range(10) for sub in range(2)]
        rd = g_reads(t + 1)
        if ks == 1:
            rd = g_xreads(j + 1) + rd
            a.extend(mf[:cfg.bpos]); a("s_waitcnt lgkmcnt(0)" + "\n s_barrier")
            a.extend(interleave(mf[cfg.bpos:], rd))
        else:
            a.extend(interleave(mf, rd))
    if cfg.tail2:
        a.extend(interleave([mfma(18, n, sub) for n in range(5) for sub in range(2)], g_reads(19)))
        tail([mfma(19, n, sub) for n in range(5) for sub in range(2)] + [mfma(t, n, sub) for t in (18, 19) for n in range(5, 10) for sub in range(2)])
    else:
        tail([mfma(19, n, sub) for n in range(10) for sub in range(2)])

B_KS = 8416
def b2_head(a, vd):
    a(f"""s_mul_i32 s57, s56, 205
    s_lshr_b32 s57, s57, 10
    s_mul_i32 s54, s57, 5
    s_sub_u32 s58, s56, s54""")
    assert all((v * 205) >> 10 == v // 5 for v in range(216))
    srd(a, SRD0, P_WO, 640 * 1280)
    a(f"""s_lshl_b32 s59, s58, 8
    s_mul_i32 s53, s{SW}, {160*1280}
    s_add_u32 s59, s59, s53
    s_lshl_b32 s53, s{SW}, 6
    s_mul_i32 s65, s{SW}, 20480
    s_add_u32 s65, s65, s{SLB}
    v_and_b32 v240, 15, v1
    v_lshrrev_b32 v241, 4, v1
    v_lshlrev_b32 v240, 4, v240
    v_xor_b32 v240, s53, v240
    v_mul_u32_u24 v241, {8*1280}, v241
    v_add3_u32 v{vd}, v240, v241, s59""")
def b2_dma(kstep, slot, vd=2):
    return [[f"s_add_u32 m0, s65, {slot*B_KS + i*1056}", f"s_mov_b32 s63, {(32*kstep + i)*1280}",
             f"buffer_load_dwordx4 v{vd}, {sq(SRD0)}, s63 offen lds ; tag=K{kstep}"] for i in range(8)]

def role_q(a):
    a(f"""s_lshl_b32 s9, s57, 3
    s_lshl_b32 s53, s{SW}, 1
    s_add_u32 s9, s9, s53
    s_mul_i32 s9, s9, 20
    s_sub_u32 s53, s58, 8
    s_mul_i32 s54, s53, 5
    s_add_u32 s9, s9, s54
    s_lshl_b32 s9, s9, 10
    s_add_u32 s9, s9, {WS_PQ}
    s_mul_i32 s55, s53, 17
    s_add_u32 s55, s55, s57
    s_lshl_b32 s55, s55, 7
    s_add_u32 s55, s55, {WS_QFLAG}
    v_lshlrev_b32 v6, 4, v1""")
    if cfg.qearly:
        a("s_lshr_b32 s53, s2, 3\n s_sub_u32 s53, s53, 5\n s_and_b32 s56, s2, 7\n s_mul_i32 s56, s56, 27\n s_add_u32 s56, s56, s53")
        b2_head(a, 208)
    def tail(mf):
        bar_arrive(a)
        ep = []
        for c in range(5):
            for sub in range(2):
                r0 = G_ACC + (sub * 10 + 2 * c) * 4
                ep += phi_block(list(range(r0, r0 + 8)), list(range(240, 248)))
                d = G_B + (sub * 5 + c) * 4
                ep += [f"v_cvt_pk_bf16_f32 v{d+k}, v{r0+2*k}, v{r0+2*k+1}" for k in range(4)]
                ep += [f"s_add_u32 s54, s9, {(sub*20+c)*1024}", f"buffer_store_dwordx4 {v4(d)}, v6, {sq(SRDWS)}, s54 offen sc1"]
        n = 2 * (len(mf) - 8)
        a.extend(mf[:8])
        a.extend(interleave(mf[8:], ep[:n]))
        stamp(a, 2)
        if cfg.qswap:
            a("s_cmp_lt_u32 s2, 168\n s_cbranch_scc1 L_QS\n PUSHSTATE")
            bar_wait(a, True)
            conv_head(a, True)
            a("POPSTATE"); a.label("L_QS")
        a.extend(ep[n:])
        if cfg.qearly:
            a("s_cmp_lt_u32 s2, 168\n s_cbranch_scc1 L_QE\n PUSHSTATE")
            bar_wait(a, True)
            for g in b2_dma(0, 0, 208) + b2_dma(1, 1, 208): a.extend(g)
            a("POPSTATE"); a.label("L_QE")
    g_main(a, True, tail)
    stamp(a, 3)
    signal(a, 55, 4, L_SIG)
    stamp(a, 4)

MV = 224
M_IMG = 8448
def mini_head(a):
    srd(a, SRD0, P_H, 640 * 4096)
    a(f"""s_add_u32 s59, s2, 512
    s_lshl_b32 s60, s59, 12
    s_add_u32 s62, s{P_H}, s60
    s_addc_u32 s63, s{P_H+1}, 0
    s_load_dword s64, s[62:63], 0
    s_lshr_b32 s54, s59, 1
    s_lshl_b32 s54, s54, 2
    s_load_dword s65, s[{P_D}:{P_D+1}], s54
    s_lshl_b32 s54, s{SW}, 10
    v_lshl_add_u32 v6, v1, 4, s54
    buffer_load_dwordx4 {v4(MV)}, v6, {sq(SRD0)}, s60 offen
    buffer_load_dwordx4 {v4(MV+4)}, v6, {sq(SRD0)}, s60 offen offset:4
    v_mov_b32 v8, 0
    v_mov_b32 v7, 0
    s_mov_b32 s61, {WS_UFLG + 1024}
    s_mul_i32 s55, s59, {TP}
    s_waitcnt lgkmcnt(0)
    s_add_u32 s62, s55, {WS_UT}
    s_add_u32 s55, s55, {WS_YT}
    s_lshr_b32 s63, s59, 6
    s_lshl_b32 s63, s63, 10
    s_add_u32 s63, s63, {WS_YFLG}
    s_lshl_b32 s53, s65, 16
    s_and_b32 s54, s65, 0xffff0000
    s_bitcmp1_b32 s59, 0
    s_cselect_b32 s53, s54, s53
    s_lshl_b32 s54, s64, 16
    v_mov_b32 v240, s54
    v_add_f32 v240, s53, v240
    s_and_b32 s54, s64, 0xffff0000
    v_mov_b32 v241, s54
    v_cvt_pk_bf16_f32 v{MV+12}, v240, v241
    v_and_b32 v240, 15, v1
    v_lshrrev_b32 v241, 4, v1
    v_add_u32 v242, 1, v240
    v_bfe_u32 v243, v242, 1, 1
    v_mul_u32_u24 v243, {C_HCOPY}, v243
    v_lshrrev_b32 v244, 2, v242
    v_lshl_add_u32 v244, v241, 3, v244
    v_lshl_add_u32 v243, v244, 3, v243
    s_lshr_b32 s53, s{SW}, 1
    s_and_b32 s54, s{SW}, 1
    s_lshl_b32 s53, s53, 7
    s_lshl_b32 s54, s54, 4
    s_add_u32 s53, s53, s54
    s_lshl_b32 s54, s53, 1
    s_add_u32 s54, s54, {M_IMG}
    v_add_u32 v{MV+13}, s54, v243
    v_and_b32 v242, 1, v242
    v_lshlrev_b32 v{MV+14}, 4, v242
    v_lshlrev_b32 v242, 1, v241
    v_sub_u32 v242, v242, v240
    v_add_u32 v242, 15, v242
    s_add_u32 s53, s53, {M_IMG + 2*C_HCOPY}
    v_lshl_add_u32 v{MV+15}, v242, 4, s53
    v_lshrrev_b32 v242, 1, v1
    v_and_b32 v243, 1, v1
    v_mul_u32_u24 v243, {C_UH}, v243
    v_add_u32 v242, v242, v243
    s_lshl_b32 s53, s{SW}, 9
    s_add_u32 s53, s53, {M_IMG + 2*C_HCOPY}
    v_lshl_add_u32 v248, v242, 4, s53
    v_and_b32 v242, 1, v241
    v_mul_u32_u24 v242, {C_UH}, v242
    v_add_u32 v242, v242, v240
    v_lshlrev_b32 v249, 4, v242
    v_and_b32 v242, 1, v1
    v_lshlrev_b32 v242, 4, v242
    v_bfe_u32 v243, v1, 1, 1
    v_mul_u32_u24 v243, {C_HCOPY}, v243
    v_add_u32 v250, v242, v243
    s_lshl_b32 s53, s{SW}, 13
    s_add_u32 s53, s53, {21504 - 8192}
    s_cmp_eq_u32 s{SW}, 0
    s_cselect_b32 s53, 0, s53
    v_lshl_add_u32 v251, v1, 4, s53
    v_bfe_u32 v240, v1, 1, 4
    v_and_b32 v241, 1, v1
    v_lshlrev_b32 v240, 4, v240
    v_lshl_add_u32 v240, v241, 9, v240
    v_lshrrev_b32 v241, 5, v1
    v_lshl_add_u32 v240, v241, 10, v240
    s_lshl_b32 s53, s{SW}, 11
    v_add_u32 v252, s53, v240""")

def mini_conv(a, uld):
    ACC, A, RAW, B = 16, 48, 80, 160
    a(f"""ds_write_b128 v6, {v4(MV)} offset:{M_IMG + 32}
    ds_write_b128 v6, {v4(MV+4)} offset:{M_IMG + C_HCOPY + 32}
    s_cmp_lg_u32 s{SW}, 0
    s_cbranch_scc1 L_MC0
    v_mov_b32 v56, 0
    v_mov_b32 v57, 0
    v_mov_b32 v58, 0
    v_mov_b32 v59, 0
    ds_write_b128 v250, v[56:59] offset:{M_IMG}
    ds_write_b32 v8, v{MV+12} offset:{M_IMG + 32}
    ds_write_b32 v8, v{MV+12} offset:{M_IMG + C_HCOPY + 28}
    ds_write_b128 v249, v[56:59] offset:{M_IMG + 2*C_HCOPY + 128*16}""")
    a.label("L_MC0")
    a("s_waitcnt vmcnt(0)")
    if cfg.sig0:
        a(f"""v_mov_b32 v13, {L_BAR}
        v_mov_b32 v14, 1
        s_mov_b64 exec, 1
        ds_add_rtn_u32 v12, v13, v14 offset:8
        s_mov_b64 exec, -1
        s_mov_b32 s79, 1
        s_waitcnt lgkmcnt(0)
        v_readfirstlane_b32 s53, v12
        s_cmp_lg_u32 s53, 3
        s_cbranch_scc1 L_MS0
        s_atomic_add s79, s[6:7], {WS_CNT} glc""")
        a.label("L_MS0")
    else: gate_arrive(a)
    stamp(a, 4)
    def flag(n):
        a(f"s_waitcnt lgkmcnt(0)\n s_cmp_lg_u32 s79, 15\n s_cbranch_scc1 L_MS{n}\n s_mov_b32 s79, 1")
        if cfg.fmode == 0:
            for r in range(cfg.krep): a(f"s_atomic_add s79, s[6:7], {1024*r}")
            a("s_waitcnt lgkmcnt(0)")
        else:
            a(f"v_lshlrev_b32 v12, 10, v1\n s_mov_b64 exec, {(1 << cfg.krep) - 1}\n global_store_dword v12, v14, s[6:7] sc1\n s_mov_b64 exec, -1")
        a.label(f"L_MS{n}")
    a("s_cmp_eq_u32 s67, 1\n s_cbranch_scc1 L_MU1")
    flag(2)
    check(a, "mu", 7, 8, "s61", 1)
    a(uld + "\n s_waitcnt vmcnt(0)")
    a.label("L_MU1")
    a(f"ds_write_b128 v248, {v4(MV+8)}")
    bar_arrive(a)
    flag(1)
    bar_wait(a, True)
    a(f"s_setprio {cfg.mprio}")
    stamp(a, 5)
    def raw(N1, k): return RAW + N1 * 10 + 2 * k
    rr = [[f"ds_read_b64 {v2(raw(N1, k))}, v{MV+13} offset:{N1*512 + k*8}" for k in ks] for ks in ((0, 1, 2), (3, 4)) for N1 in range(8)]
    br = [[f"ds_read_b128 {v4(B + i*32 + 4*dl)}, v{MV+15} offset:{(14-2*dl)*128 + i*C_UH*16}" for dl in range(8)] for i in range(2)]
    def al(i, N1): return [f"v_alignbit_b32 v{A + 4*N1 + k}, v{raw(N1, 2*i) + k + 1}, v{raw(N1, 2*i) + k}, v{MV+14}" for k in range(4)]
    a.extend(rr[0] + br[0])
    for N1 in range(1, 8): a.extend(rr[N1])
    a.extend(al(0, 0))
    queue = [x for N1 in range(1, 8) for x in al(0, N1)]
    queue = queue[:4] + interleave(queue[4:], br[1] + [x for N1 in range(8) for x in rr[8 + N1]])
    def wr(J): return f"ds_write_b128 v251, {v4(ACC + 4*J)} offset:{1024*J}"
    for i in range(2):
        for N1 in range(8):
            tg = f"v_alignbit_b32 v{A+4*N1+3},"
            pos = min((k for k, q in enumerate(queue) if q.startswith(tg)), default=-1) if not (i == 0 and N1 == 0) else -1
            for q in queue[:pos + 1]: a(q)
            queue = queue[pos + 1:]
            for J in range(N1, 8):
                acc = v4(ACC + 4 * J)
                a(f"v_mfma_f32_16x16x32_bf16 {acc}, {v4(A+4*N1)}, {v4(B + i*32 + 4*(J-N1))}, {'0' if (i == 0 and N1 == 0) else acc}")
                for _ in range(2):
                    if queue: a(queue.pop(0))
            if i == 0: queue += al(1, N1)
            elif N1 >= 2: queue.append(wr(N1 - 2))
    a.extend(queue + [wr(6), wr(7)])
    bar_arrive(a); bar_wait(a, True)
    stamp(a, 6)
    for src in range(4):
        base = 0 if src == 0 else 21504 + 8192 * (src - 1)
        for h in range(2): a(f"ds_read_b128 {v4(48 + 8*src + 4*h)}, v252 offset:{base + 256*h}")
    for r in range(8): a(f"v_add_f32 v{48+r}, v{48+r}, v{56+r}")
    for r in range(8): a(f"v_add_f32 v{64+r}, v{64+r}, v{72+r}")
    for r in range(8): a(f"v_add_f32 v{48+r}, v{48+r}, v{64+r}")
    for d in range(4): a(f"v_cvt_pk_bf16_f32 v{80+d}, v{48+2*d}, v{49+2*d}")
    a(f"buffer_store_dwordx4 v[80:83], v6, {sq(SRDWS)}, s55 offen sc1")
    signal(a, 63, 4, L_SIG, 64)
    stamp(a, 7)

def role_kv(a):
    EX, HB = G_SLOT, 0
    DUMP = HB + 4 * 2048
    AD = 208
    a(f"""v_lshlrev_b32 v240, 4, v1
    s_mul_i32 s52, s{SW}, 10240
    s_add_u32 s52, s52, {EX}
    v_add_u32 v{AD+6}, s52, v240
    s_lshl_b32 s52, s{SW}, 10
    s_add_u32 s52, s52, {EX}
    v_add_u32 v{AD+7}, s52, v240
    v_and_b32 v246, 15, v1
    v_lshrrev_b32 v247, 4, v1
    v_lshlrev_b32 v247, 2, v247
    s_lshl_b32 s52, s{SW}, 2
    v_subrev_u32 v246, s52, v246
    v_subrev_u32 v247, s52, v247
    s_lshl_b32 s53, s{SW}, 11
    v_mov_b32 v245, {DUMP}
    v_lshlrev_b32 v{AD+8}, 2, v1
    v_add_u32 v{AD+9}, s53, v{AD+8}""")
    for k in range(4): a(f"v_mov_b32 v{AD+12+k}, 0x3f803f80")
    k = 0
    for dt in range(2):
        for et in range(2):
            a(f"""v_add_u32 v240, {16*dt}, v247
            v_add_u32 v241, {16*et}, v246
            v_max_u32 v242, v240, v241
            v_cmp_gt_u32 vcc, 20, v242
            v_mul_u32_u24 v241, 80, v241
            v_lshl_add_u32 v241, v240, 2, v241
            v_add_u32 v241, s53, v241
            v_cndmask_b32 v{AD+k}, v245, v241, vcc""")
            k += 1
        a(f"""v_add_u32 v240, {16*dt}, v247
        v_and_b32 v241, 15, v1
        v_mul_u32_u24 v241, 20, v241
        v_max_u32 v242, v240, v241
        v_cmp_gt_u32 vcc, 20, v242
        v_lshlrev_b32 v240, 2, v240
        v_add_u32 v240, s53, v240
        v_add_u32 v240, 1600, v240
        v_cndmask_b32 v{AD+4+dt}, v245, v240, vcc""")
    a(f"""s_lshl_b32 s52, s58, 2
    s_add_u32 s52, s52, s{SW}
    s_mul_i32 s52, s52, 1680
    s_add_u32 s52, s52, {WS_KV}
""")
    a(f"s_lshl_b32 s53, s58, 7\n s_add_u32 s6, s{P_WS}, s53\n s_addc_u32 s7, s{P_WS+1}, 0")
    mini_head(a)
    def tail(mf):
        ep = []
        for t in [0, 1, 5, 2, 6, 7, 3, 8, 9, 4]:
            r0 = G_ACC + t * 4; r1 = G_ACC + (10 + t) * 4
            if t < 5: ep += phi_block(list(range(r0, r0 + 4)) + list(range(r1, r1 + 4)), list(range(240, 248)))
            d = G_B + t * 4
            ep += [f"v_cvt_pk_bf16_f32 v{d}, v{r0}, v{r0+1}", f"v_cvt_pk_bf16_f32 v{d+1}, v{r0+2}, v{r0+3}",
                   f"v_cvt_pk_bf16_f32 v{d+2}, v{r1}, v{r1+1}", f"v_cvt_pk_bf16_f32 v{d+3}, v{r1+2}, v{r1+3}",
                   f"ds_write_b128 v{AD+6}, {v4(d)} offset:{t*1024}"]
        if cfg.wlate:
            wr = [x for x in ep if x.startswith("ds_write")]; ep = [x for x in ep if not x.startswith("ds_write")]
            ep = ep[:-cfg.wlate] + interleave(ep[-cfg.wlate:], wr[:9]) + wr[9:]
        n = 2 * (len(mf) - 6)
        a.extend(mf[:6])
        a.extend(interleave(mf[6:], ep[:n]))
        stamp(a, 2)
        a.extend(ep[n:])
    g_main(a, False, tail)
    uld = f"buffer_load_dwordx4 {v4(MV+8)}, v6, {sq(SRDWS)}, s62 offen sc1"
    bar_arrive(a)
    a("PUSHSTATE\n" + probe(7, 8, "s61") + "\n s_mov_b32 s67, 0\n POPSTATE")
    bar_wait(a, True)
    F = 136
    for rg in range(4):
        for q, off in enumerate([0, 5120, 1024, 6144]):
            a(f"ds_read_b128 {v4(F + rg*16 + [0, 2, 1, 3][q]*4)}, v{AD+7} offset:{rg*10240 + off}")
    D = 16
    for rg in range(4):
        for dt in range(2):
            A = v4(F + rg * 16 + dt * 4)
            acc = v4(D + 16 + dt * 4)
            a(f"v_mfma_f32_16x16x32_bf16 {acc}, {A}, {v4(AD+12)}, {'0' if rg == 0 else acc}")
            for et in range(2):
                acc = v4(D + (dt * 2 + et) * 4)
                a(f"v_mfma_f32_16x16x32_bf16 {acc}, {A}, {v4(F + rg*16 + 8 + et*4)}, {'0' if rg == 0 else acc}")
    for k in [4, 0, 1, 5, 2, 3]: a(f"ds_write_b128 v{AD+k}, {v4(D + 4*k)}")
    for i in range(7): a(f"ds_read_b32 v{48+i}, v{AD+9} offset:{256*i}")
    stamp(a, 3)
    for i in range(7):
        if i == 6: a("s_mov_b32 exec_hi, 0xf")
        a(f"buffer_atomic_add_f32 v{48+i}, v{AD+8}, {sq(SRDWS)}, s52 offen offset:{256*i}")
    a("s_mov_b64 exec, -1")
    a(f"s_waitcnt vmcnt(7)\n PUSHSTATE\n v_cmp_gt_u32 vcc, 1, v7\n s_nop 1\n s_cbranch_vccnz L_MU3\n {uld}\n s_mov_b32 s67, 1\n POPSTATE")
    a.label("L_MU3")
    mini_conv(a, uld)

C_HCOPY = 4224; C_UH = 144; C_WAVE = 2 * C_HCOPY + 2 * C_UH * 16
C_STG = HALF + 4 * C_WAVE; C_STGP = 4160
PV = 224
def WOW():
    if not cfg.wowarm: return ""
    if cfg.wowarm >= 2:
        o = f"""s_cmp_eq_u32 s{SW8}, 0
        s_cbranch_scc1 L_WW
        s_lshr_b32 s52, s2, 4
        s_sub_u32 s52, s52, 12
        s_mul_i32 s52, s52, {160*1280}
        s_bfe_u32 s53, s2, 0x10003
        s_mul_i32 s53, s53, 640
        s_add_u32 s52, s52, s53
        s_sub_u32 s53, s{SW8}, 1
        s_mul_i32 s53, s53, {64*1280}
        s_add_u32 s52, s52, s53
        v_mul_u32_u24 v3, 1280, v1
        v_add_u32 v3, s52, v3
        """
        if cfg.wowarm == 3: o += f"s_cmp_eq_u32 s{SW8}, 1\n s_cbranch_scc1 L_WW\n"
        for j in range(5): o += f"global_load_dword v{16+j}, v3, s[{P_WO}:{P_WO+1}] offset:{128*j}\n"
        return o + "s_waitcnt vmcnt(0)\n L_WW:"
    return f"""s_cmp_eq_u32 s{SW8}, 0
    s_cbranch_scc1 L_WW
    s_sub_u32 s52, s2, 192
    s_lshl_b32 s52, s52, 1
    s_add_u32 s52, s52, s{SW8}
    s_sub_u32 s52, s52, 1
    s_mul_i32 s52, s52, 6400
    v_lshlrev_b32 v3, 7, v1
    v_min_u32 v3, 6272, v3
    v_add_u32 v3, s52, v3
    global_load_dword v15, v3, s[{P_WO}:{P_WO+1}]
    s_waitcnt vmcnt(0)
    L_WW:"""
def role_prep(a):
    a(f"""s_and_b32 s52, s2, 7
    s_lshl_b32 s52, s52, 2
    s_bfe_u32 s53, s2, 0x20004
    s_add_u32 s52, s52, s53
    s_lshl_b32 s52, s52, 6
    s_bfe_u32 s65, s2, 0x10003
    s_mul_i32 s53, s65, 320
    s_sub_u32 s54, s{SW8}, 3
    s_lshl_b32 s55, s{SW8}, 1
    s_cmp_ge_u32 s{SW8}, 3
    s_cselect_b32 s54, s54, s55
    s_lshl_b32 s54, s54, 6
    s_add_u32 s53, s53, s54
    v_lshrrev_b32 v240, 3, v1
    v_lshl_add_u32 v241, v240, 3, s52
    v_and_b32 v242, 7, v1
    v_lshl_add_u32 v243, v242, 3, s53
    v_mul_u32_u24 v241, 1280, v241
    v_lshl_add_u32 v{PV}, v243, 1, v241
    s_movk_i32 s55, 5120""")
    def common2(rev):
        a(f"""v_add_u32 v241, s53, v240
        v_mul_u32_u24 v241, {TP}, v241
        v_lshl_add_u32 v{PV+3}, v242, 4, v241
        s_mul_i32 s54, s{SW}, 20480
        s_mul_i32 s63, s{SGRP}, 10240
        s_add_u32 s54, s54, s63
        v_mul_u32_u24 v241, 1040, v242
        v_add_u32 v241, s54, v241""")
        if rev: a("v_sub_u32 v240, 7, v240")
        a(f"""v_lshl_add_u32 v{PV+4}, v240, 4, v241
        v_lshl_add_u32 v{PV+5}, v1, 4, s54
        s_lshl_b32 s64, s52, 1
        s_mov_b32 s70, 0x05040100
        s_mov_b32 s71, 0x07060302""")
    def rds(R): return [f"ds_read_b128 {v4(R+4*i)}, v{PV+5} offset:{1040*i}" for i in range(8)]
    def sts(R, extra): return [x for i in range(8) for x in (f"s_add_u32 s54, s64, {8*TP*i + extra}", f"buffer_store_dwordx4 {v4(R+4*i)}, v{PV+3}, {sq(SRDWS)}, s54 offen sc1")]
    a(f"s_cmp_lt_u32 s{SW8}, 3\n s_cbranch_scc1 L_PQ")
    tag(a, 3)
    a(f"v_subrev_u32 v{PV+1}, 3840, v{PV}\n v_lshlrev_b32 v{PV+2}, 3, v243\n s_waitcnt lgkmcnt(0)")
    srd(a, SRD0, P_K, 2048 * 1280)
    if cfg.x_pd: a(f"s_sleep {cfg.x_pd}")
    K, V, C = 16, 60, 92
    for r in range(3): a(f"buffer_load_dwordx4 {v4(K+4*r)}, v{PV+1}, {sq(SRD0)}, 0 offen offset:{1280*r}")
    for r in range(8): a(f"buffer_load_dwordx4 {v4(K+12+4*r)}, v{PV}, {sq(SRD0)}, {'s55' if r >= 4 else '0'} offen offset:{1280*(r%4)}")
    srd(a, SRD1, P_V, 2048 * 1280); srd(a, SRD3, P_SH, 640 * 8)
    for r in range(4): a(f"buffer_load_dwordx4 {v4(C+4*r)}, v{PV+2}, {sq(SRD3)}, 0 offen offset:{16*r}")
    for r in range(8):
        a(f"buffer_load_dwordx4 {v4(V+4*r)}, v{PV}, {sq(SRD1)}, {'s55' if r >= 4 else '0'} offen offset:{1280*(r%4)}")
    args_ready(a)
    common2(True)
    a(f"s_sub_u32 s64, {WS_UT + 1984*2}, s64\n s_mov_b32 s62, 0xffff0000")
    stamp(a, 1)
    P, T, U, O = 108, 120, 184, 192
    for ch in range(8):
        dw, hi = ch // 2, ch % 2
        sel = "s71" if hi else "s70"
        for s_ in range(-2, 8):
            a(f"v_perm_b32 v{P+s_+2}, v{K+4*(s_+2)+dw}, v{K+4*(s_+3)+dw}, {sel}")
        for s_ in range(8): a(f"v_dot2_f32_bf16 v{T+8*ch+s_}, v{P+s_}, v{C+2*ch+1}, 0")
        for s_ in range(8): a(f"v_dot2_f32_bf16 v{T+8*ch+s_}, v{P+s_+2}, v{C+2*ch}, v{T+8*ch+s_}")
    for ch in range(8):
        dw, hi = ch // 2, ch % 2
        for s_ in range(8):
            a(f"v_and_b32 v{U+s_}, s62, v{V+4*s_+dw}" if hi else f"v_lshlrev_b32 v{U+s_}, 16, v{V+4*s_+dw}")
        for s_ in range(8): a(f"v_mul_f32 v{T+8*ch+s_}, v{T+8*ch+s_}, v{U+s_}")
        o = O + 4 * ch
        for j in range(4): a(f"v_cvt_pk_bf16_f32 v{o+j}, v{T+8*ch+7-2*j}, v{T+8*ch+6-2*j}")
        a(f"ds_write_b128 v{PV+4}, {v4(o)} offset:{128*ch}")
    a.extend(rds(16) + sts(16, 0))
    stamp(a, 2)
    zero_probe(a, 3, 4)
    zero_check(a, "pu", 3, 4)
    a("s_waitcnt vmcnt(0)\n s_barrier")
    stamp(a, 3)
    a(f"s_cmp_eq_u32 s{SGRP}, 1\n s_cbranch_scc1 L_CONV\n s_branch L_PW")
    a.label("L_PQ")
    tag(a, 6)
    a(f"s_cmp_lg_u32 s{SW8}, 2\n s_cbranch_scc1 L_PQ0")
    init_wave(a, "p")
    a.label("L_PQ0")
    args_ready(a)
    a(f"""s_lshl_b32 s65, s65, 10
    s_add_u32 s65, s65, {WS_UFLG}
    s_add_u32 s68, s{P_WS}, s65
    s_addc_u32 s69, s{P_WS+1}, 0
    s_mov_b32 s78, 1
    s_mov_b32 s79, 1
    s_waitcnt vmcnt(0)
    s_barrier
    {WOW()}
    s_cmp_lg_u32 s{SW8}, 0
    s_cbranch_scc1 L_PW
    s_atomic_add s79, s[68:69], {WS_CNT} glc
    s_waitcnt lgkmcnt(0)
    s_cmp_lg_u32 s79, 31
    s_cbranch_scc1 L_PW""")
    for r in range(cfg.nrep): a(f"s_atomic_add s78, s[68:69], {128*r}")
    a("s_waitcnt lgkmcnt(0)")
    a.label("L_PW")
    if cfg.pearly: a("s_branch L_B2")
    a(f"v_mov_b32 v13, {HALF + L_BAR + 8}")
    a.label("L_PWW")
    a("s_sleep 4\n ds_read_b32 v14, v13\n s_waitcnt lgkmcnt(0)\n v_cmp_gt_u32 vcc, 4, v14\n s_nop 1\n s_cbranch_vccnz L_PWW")
    stamp(a, 3)
    a("s_branch L_B2")

def conv_head(a, pr=False):
    a(f"""s_and_b32 s52, s2, 7
    s_lshl_b32 s52, s52, 4
    s_lshr_b32 s53, s2, 3
    s_and_b32 s61, s2, {7 if cfg.nrep == 8 else 0}
    s_sub_u32 s53, s53, 16
    s_add_u32 s57, s52, s53
    s_lshl_b32 s58, s57, 2
    s_add_u32 s58, s58, s{SW}
    s_lshl_b32 s59, s58, 12
    s_mul_i32 s60, s{SW}, {C_WAVE}
    s_add_u32 s60, s60, s{SLB}
    s_add_u32 s52, s{P_H}, s59
    s_addc_u32 s53, s{P_H+1}, 0
    s_load_dword s66, s[52:53], 0
    s_lshr_b32 s54, s58, 1
    s_lshl_b32 s54, s54, 2
    s_load_dword s67, s[{P_D}:{P_D+1}], s54
    s_lshl_b32 s61, s61, 7
    s_cmp_ge_u32 s57, 80
    s_cselect_b32 s54, {0 if cfg.uall else 1024}, 0
    s_add_u32 s61, s61, s54
    s_add_u32 s61, s61, {WS_UFLG}
    s_lshr_b32 s63, s57, 4
    s_mul_i32 s63, s63, {0 if cfg.yall else 1024}
    s_add_u32 s63, s63, {WS_YFLG}
    v_lshlrev_b32 v2, 4, v1
    v_add_u32 v3, 4, v2
    v_mov_b32 v12, 0""")
    if pr: a(probe(15, 12, "s61"))
    srd(a, SRD0, P_H, 640 * 4096)
    a(f"s_add_u32 m0, s60, 32")
    for i in range(4): a(f"buffer_load_dwordx4 v2, {sq(SRD0)}, s59 offen offset:{1024*i} lds ; tag=H")
    a(f"s_add_u32 m0, s60, {C_HCOPY + 32}")
    for i in range(4): a(f"buffer_load_dwordx4 v3, {sq(SRD0)}, s59 offen offset:{1024*i} lds ; tag=H")

def role_conv(a):
    ACC, A, RAW, B, UL = 16, 48, 80, 128, 224
    conv_head(a, True)
    last_barrier(a, "conv", 9)
    a.label("L_CONV2")
    tag(a, 4)
    stamp(a, 4)
    a(f"s_mul_i32 s55, s58, {TP}\n s_add_u32 s65, s55, {WS_UT}\n s_add_u32 s55, s55, {WS_YT}")
    uld = [f"buffer_load_dwordx4 {v4(UL+4*i)}, v2, {sq(SRDWS)}, s65 offen offset:{1024*i} sc1" for i in range(4)]
    fin_strip(a); fin_head(a)
    a(f"""v_and_b32 v8, 15, v1
    v_lshrrev_b32 v9, 4, v1
    v_add_u32 v10, 1, v8
    v_bfe_u32 v11, v10, 1, 1
    v_mul_u32_u24 v11, {C_HCOPY}, v11
    v_lshrrev_b32 v13, 2, v10
    v_lshl_add_u32 v13, v9, 3, v13
    v_lshl_add_u32 v11, v13, 3, v11
    v_add_u32 v4, s60, v11
    v_and_b32 v10, 1, v10
    v_lshlrev_b32 v5, 4, v10
    v_lshlrev_b32 v10, 1, v9
    v_sub_u32 v10, v10, v8
    v_add_u32 v10, 15, v10
    v_lshlrev_b32 v10, 4, v10
    v_add_u32 v6, s60, v10
    v_lshrrev_b32 v10, 1, v1
    v_and_b32 v11, 1, v1
    v_mul_u32_u24 v11, {C_UH}, v11
    v_add_u32 v10, v10, v11
    v_lshlrev_b32 v10, 4, v10
    v_add_u32 v7, s60, v10
    v_mov_b32 v16, 0
    v_mov_b32 v17, 0
    v_mov_b32 v18, 0
    v_mov_b32 v19, 0
    v_and_b32 v10, 1, v9
    v_mul_u32_u24 v10, {C_UH}, v10
    v_add_u32 v10, v10, v8
    v_lshl_add_u32 v20, v10, 4, s60
    v_and_b32 v10, 1, v1
    v_lshlrev_b32 v10, 4, v10
    v_bfe_u32 v11, v1, 1, 1
    v_mul_u32_u24 v11, {C_HCOPY}, v11
    v_add3_u32 v21, v10, v11, s60
    v_lshlrev_b32 v10, 5, v8
    v_lshl_add_u32 v8, v9, 3, v10""")
    a(f"""s_waitcnt lgkmcnt(0)
    s_lshl_b32 s52, s66, 16
    s_lshl_b32 s53, s67, 16
    s_and_b32 s54, s67, 0xffff0000
    s_bitcmp1_b32 s58, 0
    s_cselect_b32 s53, s54, s53
    s_and_b32 s54, s66, 0xffff0000
    v_mov_b32 v10, s52
    v_add_f32 v10, s53, v10
    v_mov_b32 v11, s54
    v_cvt_pk_bf16_f32 v10, v10, v11
    v_mov_b32 v11, s60
    WAITTAG H
    v_cmp_gt_u32 vcc, 1, v15
    s_mov_b32 s62, 0
    s_nop 0
    s_cbranch_vccnz L_CU0
    PUSHSTATE
    {chr(10).join(uld)}
    s_mov_b32 s62, 1
    s_branch L_CU1
    POPSTATE
    L_CU0:
    {probe(15, 12, "s61")}
    L_CU1:
    ds_write_b128 v21, v[16:19]
    ds_write_b32 v11, v10 offset:32
    ds_write_b32 v11, v10 offset:{C_HCOPY+28}
    ds_write_b128 v20, v[16:19] offset:{2*C_HCOPY + 128*16}""")
    def raw_slots(i):
        return [(0, 1, 2), (2, 0, 1), (1, 2, 0), (0, 1, 2)][i]
    def raw_reads(it, N1):
        N0, i = it >> 2, it & 3
        sl = raw_slots(i)
        return [f"ds_read_b64 {v2(RAW + N1*6 + 2*sl[k])}, v4 offset:{(2*N1+N0)*256 + (2*i+k)*8}" for k in range(0 if i == 0 else 1, 3)]
    def aligns(it, N1):
        sl = raw_slots(it & 3)
        d = [RAW + N1 * 6 + 2 * sl[0], RAW + N1 * 6 + 2 * sl[0] + 1, RAW + N1 * 6 + 2 * sl[1], RAW + N1 * 6 + 2 * sl[1] + 1, RAW + N1 * 6 + 2 * sl[2]]
        return [f"v_alignbit_b32 v{A + 4*N1 + k}, v{d[k+1]}, v{d[k]}, v5" for k in range(4)]
    def b_reads(it):
        N0, i = it >> 2, it & 3
        return [f"ds_read_b128 {v4(B + (it&1)*32 + 4*dl)}, v6 offset:{2*C_HCOPY + (14-(2*dl-N0))*128 + (i>>1)*16 + (i&1)*C_UH*16}" for dl in range(8)]
    for N1 in range(8): a.extend(raw_reads(0, N1))
    for N1 in range(8):
        a.extend(aligns(0, N1)); a.extend(raw_reads(1, N1))
    a("s_cmp_eq_u32 s62, 1\n s_cbranch_scc1 L_CU2\n PUSHSTATE")
    check(a, "convu", 15, 12, "s61", 1)
    a.extend(uld)
    a("POPSTATE"); a.label("L_CU2")
    stamp(a, 5)
    a("s_waitcnt vmcnt(0)")
    for i in range(4): a(f"ds_write_b128 v7, {v4(UL+4*i)} offset:{2*C_HCOPY + 512*i}")
    a.extend(b_reads(0))
    gate_arrive(a)
    a(f"s_setprio {cfg.vprio}")
    stamp(a, 6)
    def epi(J):
        T = 80 + 2 * J
        o = [f"v_cvt_pk_bf16_f32 v{T}, v{ACC+4*J}, v{ACC+4*J+1}", f"v_cvt_pk_bf16_f32 v{T+1}, v{ACC+4*J+2}, v{ACC+4*J+3}", f"ds_write_b64 v9, {v2(T)} offset:{512*J}"]
        if J & 1: o.append(f"ds_read_b128 {v4(96+2*(J-1))}, v10 offset:{512*(J-1)} ; y")
        if J in (3, 5): o.append(ysto((J - 3) // 2))
        return o
    def ysto(i): return f"buffer_store_dwordx4 {v4(96+4*i)}, v2, {sq(SRDWS)}, s55 offen offset:{1024*i} sc1"
    a("v_add_u32 v9, s60, v8\n v_add_u32 v10, s60, v2")
    queue = []
    for it in range(8):
        if it == 7: a(f"s_setprio {cfg.eprio}")
        if it < 7: queue += b_reads(it + 1)
        if it == cfg.qit:
            a("s_cmp_ge_u32 s56, 10\n s_cbranch_scc1 L_NQ\n PUSHSTATE"); a.extend(fin_qloads()); a("POPSTATE"); a.label("L_NQ")
        for N1 in range(8):
            tg = f"v_alignbit_b32 v{A+4*N1+3},"
            pos = max((k for k, q in enumerate(queue) if q.startswith(tg)), default=-1)
            for q in queue[:pos + 1]: a(q)
            queue = queue[pos + 1:]
            for J in range(N1, 8):
                acc = v4(ACC + 4 * J)
                c = "0" if (it == 0 and N1 == 0) else acc
                a(f"v_mfma_f32_16x16x32_bf16 {acc}, {v4(A+4*N1)}, {v4(B + (it&1)*32 + 4*(J-N1))}, {c}")
                if not cfg.mix:
                    for _ in range(2):
                        if queue: a(queue.pop(0))
                elif queue:
                    q = queue.pop(0); a(q)
                    if queue:
                        if q.startswith("ds_") and queue[0].startswith("ds_"):
                            k = next((k for k, x in enumerate(queue) if x.startswith("v_alignbit")), None)
                            if k is not None: a(queue.pop(k))
                            elif len(queue) > cfg.mix * 6: a(queue.pop(0))
                        elif q.startswith("v_alignbit") and queue[0].startswith("v_alignbit"):
                            k = next((k for k, x in enumerate(queue) if x.startswith("ds_read_b128") and not x.endswith("; y")), None)
                            a(queue.pop(k if k is not None else 0))
                        else: a(queue.pop(0))
            if it == 7 and N1 >= 2: queue += epi(N1 - 2)
            if it < 7: queue += aligns(it + 1, N1)
            if it < 6: queue += raw_reads(it + 2, N1)
        assert not any(q.startswith("ds_read_b128") and not q.endswith("; y") for q in queue)
    a.extend(queue)
    stamp(a, 7)
    a.extend(epi(6) + epi(7) + [ysto(2), ysto(3)])
    stamp(a, 8)
    signal(a, 63, 4, L_BAR + 12, 16)

FV = 240
def fin_head(a):
    a(f"""s_and_b32 s52, s2, 7
    s_lshl_b32 s52, s52, 2
    s_add_u32 s52, s52, s{SW}
    s_lshl_b32 s52, s52, 6
    s_lshl_b32 s53, s56, 6
    v_lshrrev_b32 v244, 3, v1
    v_lshl_add_u32 v245, v244, 3, s52
    v_and_b32 v246, 7, v1
    v_lshl_add_u32 v247, v246, 3, s53
    v_mul_u32_u24 v245, 1280, v245
    v_lshl_add_u32 v247, v247, 1, v245
    v_add_u32 v{FV}, v247, v245
    v_add_u32 v245, s53, v244
    v_mul_u32_u24 v245, {TP}, v245
    v_lshl_add_u32 v{FV+1}, v246, 4, v245
    v_mul_u32_u24 v245, 1040, v246
    v_lshl_add_u32 v245, v244, 4, v245
    v_add_u32 v{FV+2}, s60, v245
    s_lshl_b32 s64, s52, 1
    s_add_u32 s64, s64, {WS_YT}
    s_movk_i32 s53, 5120""")
    srd(a, SRD2, P_Q, 2048 * 1280); srd(a, SRD1, P_OUT, 2048 * 2560)
    a("s_cmp_ge_u32 s56, 10\n s_cselect_b32 s70, 0x40000000, 0\n s_add_u32 s71, s70, 5120")
def fin_qloads(): return [f"buffer_load_dwordx4 {v4(192+4*r)}, v247, {sq(SRD2)}, {'s71' if r >= 4 else 's70'} offen offset:{1280*(r%4)}" for r in range(8)]
def fin_strip(a):
    a(f"""s_lshr_b32 s53, s2, 3
    s_mul_i32 s54, s{SGRP}, 5
    s_add_u32 s56, s53, s54
    s_sub_u32 s56, s56, 16
    s_cmp_lt_u32 s53, 21
    s_cselect_b32 s56, s56, 15""")
def fin_g0(a):
    fin_strip(a)
    a(f"s_mul_i32 s60, s{SW}, 8448\n s_add_u32 s60, s60, 16384\n v_lshl_add_u32 v10, v1, 4, s60")
    fin_head(a)
    a.extend(fin_qloads())
    bar_wait(a)
    a("s_waitcnt vmcnt(0)\n s_branch L_FINR")

def role_fin(a):
    Q, QF, Y, T, L = 192, 48, 112, 144, 16
    a(f"""s_setprio {cfg.fprio}
    s_and_b32 s61, s2, {7 if cfg.nrep == 8 else 0}
    s_lshl_b32 s61, s61, 7
    s_mul_i32 s54, s56, {0 if cfg.yall else 1024}
    s_add_u32 s61, s61, s54
    s_add_u32 s61, s61, {WS_YFLG}
    s_mov_b32 s62, 0xffff0000
    v_mov_b32 v12, 0""")
    a(probe(15, 12, "s61"))
    for r in range(8):
        for d in range(4):
            a(f"v_lshlrev_b32 v{QF+8*r+2*d}, 16, v{Q+4*r+d}\n v_and_b32 v{QF+8*r+2*d+1}, s62, v{Q+4*r+d}")
    stamp(a, 1)
    check(a, "fin", 15, 12, "s61", 1)
    stamp(a, 2)
    for i in range(8): a(f"s_add_u32 s54, s64, {8*TP*i}\n buffer_load_dwordx4 {v4(L+4*i)}, v{FV+1}, {sq(SRDWS)}, s54 offen sc1")
    for i in range(8): a(f"ds_write_b128 v10, {v4(L+4*i)} offset:{1040*i}")
    for ch in range(8): a(f"ds_read_b128 {v4(Y+4*ch)}, v{FV+2} offset:{128*ch}")
    stamp(a, 3)
    a("s_mov_b32 s54, 0")
    for r in range(8):
        t = T + 8 * (r & 1)
        for ch in range(8):
            src = Y + 4 * ch + r // 2
            a(f"v_and_b32 v{t+ch}, s62, v{src}" if r & 1 else f"v_lshlrev_b32 v{t+ch}, 16, v{src}")
        for ch in range(8): a(f"v_mul_f32 v{t+ch}, v{t+ch}, v{QF+8*r+ch}")
        o = 160 + 4 * r
        for d in range(4): a(f"v_cvt_pk_bf16_f32 v{o+d}, v{t+2*d}, v{t+2*d+1}")
        a(f"buffer_store_dwordx4 {v4(o)}, v{FV}, {sq(SRD1)}, s54 offen{OSC(cfg.fsc)}")
        if r < 7: a("s_add_u32 s54, s54, 2560")

def b2_tables(hf):
    num = {}
    for t in range(5 * hf, 5 * hf + 5):
        hs = {e // 20 for e in range(16 * t, 16 * t + 16)}
        dts = [dt for dt in range(10) if hs & {d // 20 for d in range(16 * dt, 16 * dt + 16)}]
        ch = {}
        for dt in dts: ch.setdefault(dt // 2, []).append(dt)
        num[t] = sorted(ch.items())
    ch = {}
    for dt in range(5 * hf, 5 * hf + 5): ch.setdefault(dt // 2, []).append(dt)
    return num, sorted(ch.items())

NS = 3
def role_b2(a):
    PQ, KV, RAW = 16, 108, 180
    WA = [76 + 4 * n for n in range(8)]
    WB = [228 + 4 * n for n in range(7)] + [8]
    ACC = 108
    U = [180, 204]
    b2_head(a, 2)
    dma = b2_dma
    def wreads(slot, dst):
        return [f"ds_read_b64_tr_b16 {v2(dst[n] + 2*h)}, v0 offset:{slot*B_KS + h*512 + 32*n}" for n in range(8) for h in range(2)]
    if not cfg.qearly: bar_wait(a)
    d01 = dma(0, 0) + dma(1, 1)
    for g in d01[:cfg.nb9]: a.extend(g)
    last_barrier(a, "b2", cfg.nb9)
    for g in d01[cfg.nb9:]: a.extend(g)
    a.label("L_B2Q")
    a("v_and_b32 v8, 15, v1\n v_lshrrev_b32 v9, 4, v1")
    a(f"s_setprio {cfg.cprio}")
    srd(a, SRD1, P_OUT, 2048 * 2560)
    a(f"""v_bfe_u32 v10, v1, 2, 3
    v_mul_u32_u24 v10, 1056, v10
    v_lshrrev_b32 v11, 5, v1
    v_lshl_add_u32 v10, v11, 8, v10
    v_and_b32 v11, 3, v1
    v_lshl_add_u32 v10, v11, 3, v10
    v_add_u32 v0, s65, v10
    s_add_u32 s64, s65, {2*B_KS}
    v_lshlrev_b32 v9, 3, v9
    v_mul_u32_u24 v3, 40, v8
    v_add3_u32 v3, v3, v9, s64
    v_mul_u32_u24 v4, 800, v11
    v_add3_u32 v4, v4, v9, s64
    v_lshlrev_b32 v5, 4, v1
    v_lshlrev_b32 v6, 3, v1
    v_add_u32 v6, s64, v6
    v_add_u32 v7, 4096, v5
    s_mul_i32 s52, s57, 3
    s_lshr_b32 s53, s52, 3
    s_add_u32 s54, s52, 2
    s_min_u32 s54, s54, 127
    s_lshr_b32 s54, s54, 3
    s_sub_u32 s54, s54, s53
    s_lshl_b32 s54, s54, 7
    v_and_b32 v12, 1, v1
    v_mul_u32_u24 v13, {0 if cfg.kvall else 128}, v12
    v_mul_u32_u24 v12, s54, v12
    s_mul_i32 s60, s{SW}, 17
    s_add_u32 s60, s60, s53
    s_lshl_b32 s60, s60, 7
    s_add_u32 s60, s60, {WS_QFLAG}
    s_and_b32 s61, s2, {cfg.krep - 1}
    s_lshl_b32 s61, s61, 10
    s_mul_i32 s53, s{SW}, {0 if cfg.kvall else 256}
    s_add_u32 s61, s61, s53
    s_mul_i32 s52, s52, 20480
    s_mul_i32 s53, s{SW}, 5120
    s_add_u32 s52, s52, s53
    s_add_u32 s52, s52, {WS_PQ}
    s_mul_i32 s62, s{SW}, {8*1680}
    s_add_u32 s62, s62, {WS_KV}
    s_mov_b32 s73, {EPS}
    s_mov_b32 s66, 0xffff0000
    s_mov_b32 s67, -1
    s_mov_b32 s68, 0
    s_mov_b32 s69, -1
    s_mov_b32 s70, 0
    s_mov_b32 s71, 0xffff0000""")
    if cfg.qpre: a(probe(14, 12, "s60"))
    for r in range(KV, KV + 72): a(f"v_mov_b32 v{r}, 0")
    def allmasks():
        ms = []
        num, den = b2_tables(0)
        for (kind, t, dt) in [("z", 0, dt) for c, dts in den for dt in dts] + [("n", t, dt) for t in num for c, dts in num[t] for dt in dts]:
            m = sum(1 << l for l in range(64) if (16 * dt + 4 * (l >> 4)) // 20 == ((16 * t + (l & 15)) // 20 if kind == "n" else (l & 3)))
            if m not in ms and m != (1 << 64) - 1: ms.append(m)
        return ms
    free = [4, 10, 12, 14, 16, 18, 36, 38, 40, 42, 44, 46, 20, 24]
    mreg = dict(zip(allmasks(), free)) if cfg.smask else {}
    for m, r in mreg.items(): a(f"s_mov_b32 s{r}, {m & 0xffffffff:#x}\n s_mov_b32 s{r+1}, {m >> 32:#x}")
    def setmask(m):
        if m == (1 << 64) - 1: return ["s_mov_b64 exec, -1"]
        if m in mreg: return [f"s_mov_b64 exec, s[{mreg[m]}:{mreg[m]+1}]"]
        return [f"s_mov_b32 exec_lo, {m & 0xffffffff:#x}", f"s_mov_b32 exec_hi, {m >> 32:#x}"]
    def pqpart(sfx=""):
        a(probe(14, 12, "s60"))
        stamp(a, 5)
        check(a, "b2q" + sfx, 14, 12, "s60", 1)
        pqloads()
    def pqloads():
        for sub in range(NS):
            for c in range(5):
                a(f"buffer_load_dwordx4 {v4(PQ + (sub*5+c)*4)}, v{5 if c < 4 else 7}, {sq(SRDWS)}, s52 offen offset:{1024*(c%4)} sc1")
            if sub == 0: a("s_add_u32 s52, s52, 20480")
            if sub == 1: a("s_cmp_eq_u32 s57, 42\n s_cselect_b32 s53, 0, 20480\n s_add_u32 s52, s52, s53")
    a("WAITTAG K0")
    a.extend(wreads(0, WA))
    a("WAITTAG K1")
    a.extend(wreads(1, WB))
    a("s_waitcnt lgkmcnt(0)")
    if cfg.early23:
        a(f"s_cmp_eq_u32 s{SLD}, 0\n s_cbranch_scc1 L_E23\n PUSHSTATE")
        for g in dma(2, 0) + dma(3, 1): a.extend(g)
        a("POPSTATE"); a.label("L_E23")
    a(f"s_mov_b32 s79, 1\n s_mov_b32 s8, 0\n s_sub_u32 s54, {HALF + L_BAR + 8}, s{SLB}\n v_mov_b32 v15, s54")
    if cfg.qpre:
        a(f"v_cmp_gt_u32 vcc, 1, v14\n s_sub_u32 s53, s2, 128\n s_cmp_ge_u32 s53, 64\n s_cbranch_scc1 L_QP\n s_cbranch_vccnz L_GT\n PUSHSTATE\n s_mov_b32 s8, 1")
        pqloads()
        a("s_branch L_GT\n POPSTATE"); a.label("L_QP")
    a(f"""s_cmp_ge_u32 s2, 192
    s_cbranch_scc1 L_GTW
    s_cmp_eq_u32 s{SLD}, 0
    s_cbranch_scc1 L_GT
    {'s_branch L_GTW' if cfg.nogq & 1 else ''}
    PUSHSTATE""")
    a.label("L_GQ")
    a(f"""{probe(14, 12, "s60")}
    s_waitcnt vmcnt(0)
    ds_read_b32 v16, v15
    v_cmp_gt_u32 vcc, 1, v14
    s_nop 1
    s_cbranch_vccz L_GQ1
    s_waitcnt lgkmcnt(0)
    v_cmp_gt_u32 vcc, 4, v16
    s_nop 1
    s_cbranch_vccz L_GO
    s_sleep 1
    s_branch L_GQ""")
    a.label("L_GQ1")
    a("s_waitcnt lgkmcnt(0)\n s_mov_b32 s8, 1")
    pqloads()
    a("POPSTATE")
    a.label("L_GTW")
    a("ds_read_b32 v14, v15\n s_waitcnt lgkmcnt(0)\n v_cmp_gt_u32 vcc, 4, v14\n s_nop 1\n s_cbranch_vccz L_GO\n s_sleep 1\n s_branch L_GTW")
    a.label("L_GO")
    if not cfg.sig0:
        a(f"s_cmp_eq_u32 s{SLD}, 0\n s_cbranch_scc1 L_GT\n s_cmp_lg_u32 s{SW}, 0\n s_cbranch_scc1 L_GT")
        a(f"s_atomic_add s79, s[6:7], {WS_CNT} glc")
    if cfg.nogq & 2:
        a(f"s_cmp_eq_u32 s{SLD}, 0\n s_cbranch_scc1 L_GT\n PUSHSTATE\n s_mov_b32 s8, 1"); pqpart("z"); a("POPSTATE")
    a.label("L_GT")
    d23 = dma(2, 0) + dma(3, 1)
    if cfg.early23: a(f"s_cmp_lg_u32 s{SLD}, 0\n s_cbranch_scc1 L_E24")
    for g in d23[:cfg.sdel]: a.extend(g)
    if not cfg.sig0: a(f"s_waitcnt lgkmcnt(0)\n s_cmp_lg_u32 s79, 15\n s_cbranch_scc1 L_GT2\n s_mov_b32 s79, 1\n s_atomic_add s79, s[6:7], 0")
    a.label("L_GT2")
    for g in d23[cfg.sdel:]: a.extend(g)
    a.label("L_E24")
    S2 = 4 * C_WAVE; S2W = 7360
    assert S2 + 4 * S2W <= L_BAR
    a(f"s_sub_u32 s59, {HALF + S2}, s{SLB}\n s_mul_i32 s53, s{SW}, {S2W}\n s_add_u32 s59, s59, s53")
    a(f"s_add_u32 s55, s59, {7*1056}\n s_sub_u32 s55, s55, s64\n s_and_b32 s55, s55, 255\n s_add_u32 s55, s55, s64")
    for i in range(7): a(f"s_add_u32 m0, s59, {i*1056}\n s_mov_b32 s63, {(128 + i)*1280}\n buffer_load_dwordx4 v2, {sq(SRD0)}, s63 offen lds")
    a("s_waitcnt lgkmcnt(0)")
    if True:
        a(f"s_cmp_lg_u32 s8, 0\n s_cbranch_scc1 L_PQG\n PUSHSTATE"); pqpart("y"); a("POPSTATE"); a.label("L_PQG")
    a(probe(14, 13, "s61"))
    check(a, "b2kv", 14, 13, "s61", 1)
    stamp(a, 6)
    raw = [RAW + 4 * i for i in range(12)] + [KV + 64, KV + 68]
    for hf in range(2):
        for i in range(7):
            a(f"buffer_load_dwordx4 {v4(raw[hf*7+i])}, v{5 if i < 4 else 7}, {sq(SRDWS)}, s62 offen offset:{1024*(i%4)} sc1")
        if hf == 0: a("s_add_u32 s62, s62, 6720")
    for r in range(4): a(f"v_mov_b32 v{12+r}, s73")
    qi = {}
    tabs = [b2_tables(0), b2_tables(1)]
    def build_half(hf):
        o = []
        for i in range(7):
            r = raw[hf * 7 + i]
            o += [f"v_cvt_pk_bf16_f32 v{r}, v{r}, v{r+1}", f"v_cvt_pk_bf16_f32 v{r+1}, v{r+2}, v{r+3}", f"ds_write_b64 v6, {v2(r)} offset:{512*i}"]
        if hf == 1: o += [f"v_mov_b32 v{KV+64+k}, 0" for k in range(8)]
        num, den = tabs[hf]
        quads = [("z", hf, dt) for c, dts in den for dt in dts] + [("n", t, dt) for t in num for c, dts in num[t] for dt in dts]
        assert len(quads) == 18
        rd = []
        for (kind, t, dt) in quads:
            q = len(qi); qi[(kind, t, dt)] = q
            mask = 0
            for l in range(64):
                i, g = l & 15, l >> 4
                hd = (16 * dt + 4 * g) // 20
                he = (16 * t + i) // 20 if kind == "n" else (i & 3) + 4 * t
                if hd == he: mask |= 1 << l
            off = 640 * (t - 5 * hf) + 32 * (dt - 5 * hf) if kind == "n" else 800 + 32 * (dt - 5 * hf)
            rd.append(setmask(mask) + [f"ds_read_b64 {v2(KV + 2*q)}, v{3 if kind == 'n' else 4} offset:{off}"])
        return o, rd
    def omf(sub, hf, T):
        o = []
        num, den = tabs[hf]
        def one(kind, t, lst, acc):
            lst = sorted(lst, key=lambda x: len(x[1]))
            for k, (c, dts) in enumerate(lst):
                src = v4(acc) if k else ("v[12:15]" if kind == "z" else "0")
                kv = KV + 2 * qi[(kind, t, dts[0])]
                pq = PQ + (sub * 5 + c) * 4
                key = (min(k, 1), 0 if kind == "z" else 1, t, k)
                if len(dts) == 2: o.append((key, f"v_mfma_f32_16x16x32_bf16 {v4(acc)}, {v4(kv)}, {v4(pq)}, {src}"))
                else: o.append((key, f"v_mfma_f32_16x16x16_bf16 {v4(acc)}, {v2(kv)}, {v2(pq + 2*(dts[0]&1))}, {src}"))
        one("z", hf, den, T)
        for t in num: one("n", t, num[t], T + 4 + 4 * (t - 5 * hf))
        return [x for _, x in sorted(o)]
    def ovalu(sub, hf, T):
        o = []
        for r in range(4): o.append(f"v_rcp_f32 v{T+r}, v{T+r}")
        for tl in range(5):
            t = tl + 5 * hf
            h0 = (16 * tl) // 20; h1 = (16 * tl + 12) // 20
            rc = T + h0; n = T + 4 + 4 * tl
            if h0 != h1:
                g0 = min(g for g in range(4) if (16 * tl + 4 * g) // 20 == h1)
                o.append(f"v_cndmask_b32 v{rc}, v{T+h0}, v{T+h1}, s[{64+2*g0}:{65+2*g0}]")
            for r in range(4): o.append(f"v_mul_f32 v{n+r}, v{n+r}, v{rc}")
            d = PQ + (sub * 5 + t // 2) * 4 + 2 * (t & 1)
            o.append(f"v_cvt_pk_bf16_f32 v{d}, v{n}, v{n+1}")
            o.append(f"v_cvt_pk_bf16_f32 v{d+1}, v{n+2}, v{n+3}")
        return o
    def acc(sub, n): return ACC + (n * NS + sub) * 4
    def g2(k, W, ns=range(8)):
        return [f"v_mfma_f32_16x16x32_bf16 {v4(acc(sub, n))}, {v4(W[n])}, {v4(PQ + (sub*5+k)*4)}, {'0' if k == 0 else v4(acc(sub, n))}" for n in ns for sub in range(NS)]
    units = [(s_, h) for h in range(2) for s_ in range(NS)]
    nu = len(units)
    w0, r0 = build_half(0)
    a.extend(w0)
    for g in r0: a.extend(g)
    a("s_mov_b64 exec, -1")
    w1, r1 = build_half(1)
    a.extend(w1)
    r1g = [r1[k] + r1[k + 1] + ["s_mov_b64 exec, -1"] for k in range(0, 18, 2)]
    a.extend(interleave(omf(*units[0], U[0]), r1g, 1, 11))
    stamp(a, 7)
    for u in range(1, nu):
        a.extend(interleave(omf(*units[u], U[u & 1]), ovalu(*units[u - 1], U[(u - 1) & 1]), 2))
        if u == 1: a(f"s_waitcnt lgkmcnt(0)\n s_mov_b32 m0, s55\n s_mov_b32 s63, {135*1280}\n buffer_load_dwordx4 v2, {sq(SRD0)}, s63 offen lds ; tag=K4")
    a.extend(interleave(g2(0, WA), ovalu(*units[nu - 1], U[(nu - 1) & 1]), 2))
    k1 = g2(1, WB)
    a.extend(interleave(k1, wreads(0, WA), 0, 18))
    ad = []
    for gam in range(1, 4):
        ad += [f"s_xor_b32 s52, s{SW}, {gam}", "s_mul_i32 s52, s52, 20480", f"s_add_u32 s52, s52, {(gam-1)*6144}", f"s_add_u32 s52, s52, s{SLB}", f"v_add_u32 v{203+gam}, s52, v5"]
    ad += f"""s_sub_u32 s59, s59, s65
    s_sub_u32 s55, s55, s65
    s_sub_u32 s55, s55, {7*1056}
    v_add_u32 v208, s59, v0
    v_add_u32 v209, s55, v0
    v_bfe_u32 v210, v1, 2, 3
    v_cmp_eq_u32 vcc, 7, v210
    v_mov_b32 v211, 0
    v_mov_b32 v211, 0
    v_cndmask_b32 v208, v208, v209, vcc
    v_add_u32 v207, s65, v5
    s_add_u32 s53, s65, 18432
    v_and_b32 v12, 15, v1
    v_mul_u32_u24 v12, 80, v12
    v_lshrrev_b32 v3, 4, v1
    v_lshl_add_u32 v12, v3, 3, v12
    v_add_u32 v12, s53, v12
    v_lshrrev_b32 v3, 2, v1
    v_and_b32 v4, 3, v1
    v_lshlrev_b32 v4, 4, v4
    v_mul_u32_u24 v15, 80, v3
    v_add3_u32 v15, v15, v4, s53
    s_mul_i32 s52, s57, 48
    v_add_u32 v3, s52, v3
    v_mul_u32_u24 v3, 2560, v3
    v_add_u32 v3, v3, v4
    s_lshl_b32 s52, s58, 8
    s_lshl_b32 s54, s{SW}, 6
    s_add_u32 s52, s52, s54
    s_add_u32 s52, s52, 1280""".split("\n")
    a.extend(interleave(interleave(g2(2, WA), wreads(1, WB), 0, 16), ad))
    pre = g2(3, WB, [0, 1, 2, 3])
    a("WAITTAG K4")
    rd4 = [x.replace(", v0 ", ", v208 ") for x in wreads(0, WA)]; rd4 = rd4[4:] + rd4[:4]
    a.extend(interleave(pre, rd4))
    def wr(gam): return [f"ds_write_b128 v207, {v4(ACC + (gam*6+k)*4)} offset:{(gam-1)*6144 + 1024*k}" for k in range(6)]
    a.extend(g2(4, WA, [2, 3]))
    a.extend(interleave(g2(3, WB, [4, 5]) + g2(4, WA, [4, 5]), wr(1), 2))
    a.extend(interleave(g2(3, WB, [6, 7]) + g2(4, WA, [6, 7]), wr(2), 2))
    a.extend(interleave(g2(4, WA, [0, 1]), wr(3), 2))
    stamp(a, 8)
    bar_arrive(a); bar_wait(a, True)
    R = 16
    order = [n * NS + sub for sub in range(NS) for n in range(2)]
    for k in order:
        for gam in range(3): a(f"ds_read_b128 {v4(R + (k*3+gam)*4)}, v{204+gam} offset:{1024*k}")
    for k in order:
        n, sub = k // NS, k % NS
        for r in range(4): a(f"v_add_f32 v{ACC+4*k+r}, v{ACC+4*k+r}, v{R+(k*3)*4+r}")
        for r in range(4): a(f"v_add_f32 v{R+(k*3+1)*4+r}, v{R+(k*3+1)*4+r}, v{R+(k*3+2)*4+r}")
        for r in range(4): a(f"v_add_f32 v{ACC+4*k+r}, v{ACC+4*k+r}, v{R+(k*3+1)*4+r}")
        a(f"v_cvt_pk_bf16_f32 v{140+2*k}, v{ACC+4*k}, v{ACC+4*k+1}\n v_cvt_pk_bf16_f32 v{141+2*k}, v{ACC+4*k+2}, v{ACC+4*k+3}")
        a(f"ds_write_b64 v12, {v2(140+2*k)} offset:{32*n}")
        if n == 1:
            a(f"ds_read_b128 {v4(160+4*sub)}, v15")
            if sub > 0:
                a(f"buffer_store_dwordx4 {v4(160+4*(sub-1))}, v3, {sq(SRD1)}, s52 offen{OSC()}\n s_add_u32 s52, s52, {16*2560}")
    a(f"buffer_store_dwordx4 {v4(160+4*(NS-1))}, v3, {sq(SRD1)}, s52 offen{OSC()}")

def OSC(k=None): return ["", " sc1", " nt", " sc0 sc1"][cfg.osc if k is None else k]

def kd(name):
    return f""".p2align 6
.amdhsa_kernel {name}
  .amdhsa_next_free_vgpr 256
  .amdhsa_next_free_sgpr 102
  .amdhsa_accum_offset 256
  .amdhsa_group_segment_fixed_size 0
  .amdhsa_kernarg_size 96
  .amdhsa_user_sgpr_count 2
  .amdhsa_user_sgpr_kernarg_segment_ptr 1
  .amdhsa_system_sgpr_workgroup_id_x 1
  .amdhsa_float_denorm_mode_32 3
.end_amdhsa_kernel"""

def head(name): return f".globl {name}\n.p2align 8\n.type {name},@function"

def build():
    k = KN + "_kernel"
    a = Asm()
    a(head(k)); prologue(a, k, 256)
    a("s_cmp_ge_u32 s2, 192\n s_cbranch_scc1 L_P")
    g_ids(a)
    a(f"s_cmp_eq_u32 s{SGRP}, 0\n s_cbranch_scc1 L_CONS")
    tag(a, 7)
    role_loader(a)

    if cfg.qswap: a("s_cmp_ge_u32 s2, 168\n s_cbranch_scc1 L_B2")
    a("s_cmp_ge_u32 s2, 128\n s_cbranch_scc1 L_CONV\n s_branch L_B2")
    a.label("L_CONS")
    if not cfg.zp:
        a(f"s_cmp_lg_u32 s{SW}, 0\n s_cbranch_scc1 L_ZW\n s_cmp_ge_u32 s2, {NZERO}\n s_cbranch_scc1 L_ZW")
        zero_wave(a)
    a(f"s_cmp_lg_u32 s{SW}, 3\n s_cbranch_scc1 L_CONS1")
    init_wave(a, "g")
    a.label("L_CONS1")
    a(f"s_setprio {cfg.cprio}")
    args_ready(a)
    g_setup2(a)
    a("s_cmp_ge_u32 s58, 8\n s_cbranch_scc1 L_Q")
    tag(a, 1); role_kv(a)
    a("s_branch L_FIN")
    a.label("L_Q"); tag(a, 2); role_q(a)
    if cfg.qearly:
        a("s_cmp_lt_u32 s2, 168\n s_cbranch_scc1 L_FG0"); tag(a, 5); a("v_mov_b32 v2, v208\n s_branch L_B2Q"); a.label("L_FG0")
    elif cfg.qswap: a("v_mov_b32 v12, 0\n s_cmp_ge_u32 s2, 168\n s_cbranch_scc1 L_CONV2")
    else: a("s_cmp_ge_u32 s2, 168\n s_cbranch_scc1 L_B2")
    fin_g0(a)
    a.label("L_P")
    if cfg.zp:
        a(f"s_cmp_lg_u32 s{SW8}, 1\n s_cbranch_scc1 L_ZW\n s_cmp_ge_u32 s2, {192 + NZERO}\n s_cbranch_scc1 L_ZW")
        zero_wave(a)
    role_prep(a)
    a.label("L_CONV"); role_conv(a)
    a("s_cmp_ge_u32 s56, 10\n s_cbranch_scc1 L_FIN")
    a.label("L_FINR")
    tag(a, 8); role_fin(a)
    if cfg.enc == 89: a("s_waitcnt vmcnt(0)"); stamp(a, 9)
    a("s_branch L_FIN")
    a.label("L_B2")
    a("""s_lshr_b32 s53, s2, 3
    s_sub_u32 s54, s53, 5
    s_cmp_lt_u32 s53, 16
    s_cselect_b32 s53, s53, s54
    s_and_b32 s56, s2, 7
    s_mul_i32 s56, s56, 27
    s_add_u32 s56, s56, s53
    s_cmp_ge_u32 s56, 215
    s_cbranch_scc1 L_FIN""")
    tag(a, 5); role_b2(a)
    if cfg.enc == 59: a("s_waitcnt vmcnt(0)"); stamp(a, 9)
    a.label("L_FIN"); stamps_out(a)
    if cfg.enc:
        a("s_waitcnt vmcnt(0) lgkmcnt(0)")
        a.label("L_SPIN")
        a("s_sleep 1\n s_memrealtime s[94:95]\n s_waitcnt lgkmcnt(0)\n s_sub_u32 s94, s94, s96\n s_cmp_lt_u32 s94, 2500\n s_cbranch_scc1 L_SPIN")
    a.label("L_END"); a("s_endpgm")
    launch = [f"; @launch grid=(256,1,1) block=(512,1,1) lds={LDS_BYTES}"]
    return launch, a, [k]

HDR = """; Fused H3 SSM-conv block + linear-attention block, one persistent launch: 256 workgroups x 8 waves, one per CU.
; generated by dev/gen.py"""
def emit(path, launch, a, kernels, verbose=False):
    body = fix_hazards(insert_waits(a.lines), verbose)
    if cfg.al:
        body, n1, n2 = align8(body, cfg.al)
        if verbose: print("align: promoted", n1, "nops", n2)
    out = HDR.split("\n") + list(launch) + ['.amdgcn_target "amdgcn-amd-amdhsa--gfx950"', ".text", ".p2align 8", "L_CODE_BEGIN:"]
    out += [(l if l.endswith(":") or l.startswith(".") else "    " + l) for l in body]
    out += ["L_CODE_END:", "    s_endpgm", '.section .rodata,"a"'] + [kd(k) for k in kernels]
    open(path, "w").write("\n".join(out) + "\n")

if __name__ == "__main__":
    cfg.stamps = "stamps" in sys.argv[2:]
    cfg.rot = "norot" not in sys.argv[2:]
    for x in sys.argv[2:]:
        if "=" in x: setattr(cfg, x.split("=")[0], int(x.split("=")[1]))
    emit(sys.argv[1], *build(), verbose="-v" in sys.argv)
```

```python
import sys
sys.path.insert(0, "dev")
from asmlib import *

KN = "concat_heads__ssm_conv_h3__linear_attn_block__prompt"
WS_KVFLG = 0x0000
WS_YFLG  = 0x2000
WS_UFLG  = 0x4800
WS_QFLAG = 0x5000
WS_CNT   = 0x8000
WS_KV    = 0xD000
NZERO    = 56
TP = 4224
WS_UT    = 0x100000
WS_YT    = 0x400000
WS_PQ    = 0x700000
WS_STAMP = 0xA00000
WS_SIZE  = 0xB00000
LDS_BYTES = 163840
HALF = 81920
L_BAR = HALF - 64
L_SIG = HALF - 60
SGRP, SLB, SBT, SW8, SLD = 74, 75, 76, 77, 72
LOG2E = 0x3FB8AA3B
EPS = 0x358637BD

P_Q, P_K, P_V, P_SH, P_H, P_D, P_X, P_W, P_WO, P_OUT, P_DBG, P_WS = [4 + 2 * i for i in range(12)]
SRD0, SRD1, SRD2, SRD3, SRD4, SRDWS = 28, 32, 36, 40, 44, 48
SW = 3

def srd(a, d, p, nbytes):
    a(f"s_mov_b32 s{d}, s{p}\n s_and_b32 s{d+1}, s{p+1}, 0xffff\n s_mov_b32 s{d+2}, {nbytes}\n s_mov_b32 s{d+3}, 0x20000")
def sq(d): return f"s[{d}:{d+3}]"
def v4(r): return f"v[{r}:{r+3}]"
def v2(r): return f"v[{r}:{r+1}]"

class Cfg:
    stamps = False
    rot = False
    gonly = 0
    ahead0 = 4
    ahead = 4
    bpos = 3
    lprio = 3
    cprio = 2
    psleep = 4
    qlate = 3
    pprio = 0
    qit = 4
    cgate = 4
    gpos = 2
    wowarm = 0
    pqfirst = 2
    pearly = 1
    x_qd = 0
    x_pd = 0
    al = 0
    zp = 1
    wpipe = 1
    mix = 0
    qearly = 0
    pk = 0
    lite = 0
    nrep = 1
    kvall = 0
    yall = 0
    uall = 0
    vprio = 0
    fbase = 22
    tail2 = 1
    tlb = 0
    pwait = 1
    eprio = 3
    fprio = 3
    qrel = 8
    qst = 1
    osc = 1
    gate = 1
    usig = 4
    qbar = 1
    spf = 0
    slab = 0
    enc = 0
    role = 0
    pmode = 0
    x_noq = 0
    x_plain = 0
    x_pend = 0
    x_nost = 0
cfg = Cfg()

NSTAMP = 10
def stamp(a, i, force=False):
    if cfg.lite and i != NSTAMP - 1: return
    if cfg.slab and not force and i != NSTAMP - 1 and cfg.role in (7, 4, 5): return
    if cfg.enc and cfg.enc == cfg.role * 10 + i:
        a("s_memrealtime s[96:97]\n s_waitcnt lgkmcnt(0)")
    if cfg.stamps:
        a(f"s_memrealtime s[{80+2*i}:{81+2*i}]\n s_waitcnt lgkmcnt(0)")
def stamps_out(a):
    if not cfg.stamps: return
    a("s_waitcnt vmcnt(0) lgkmcnt(0)")
    stamp(a, NSTAMP - 1)
    a("s_memtime s[70:71]\n s_waitcnt lgkmcnt(0)\n s_sub_u32 s101, s70, s101")
    a(f"s_getreg_b32 s52, hwreg(HW_REG_HW_ID)\n s_getreg_b32 s53, hwreg(HW_REG_XCC_ID)")
    for i in range(NSTAMP): a(f"v_mov_b32 v{16+i}, s{80+2*i}")
    a(f"v_mov_b32 v26, s52\n v_mov_b32 v27, s53\n v_mov_b32 v28, s100\n v_mov_b32 v29, s2\n v_mov_b32 v30, s101\n v_mov_b32 v31, 0")
    a(f"s_lshl_b32 s54, s2, 9\n s_lshl_b32 s55, s{SW8}, 6\n s_add_u32 s54, s54, s55\n s_add_u32 s54, s54, {WS_STAMP}")
    a(f"v_mov_b32 v32, 0\n s_mov_b64 exec, 1")
    for i in range(4): a(f"buffer_store_dwordx4 {v4(16+4*i)}, v32, {sq(SRDWS)}, s54 offen offset:{16*i}")
    a("s_mov_b64 exec, -1")
def tag(a, t):
    cfg.role = t
    if cfg.stamps: a(f"s_lshl_b32 s100, s100, 4\n s_add_u32 s100, s100, {t}")

def prologue(a, name, nwg):
    a.label(name)
    if cfg.enc: a("s_memrealtime s[98:99]\n s_memrealtime s[96:97]")
    a(f"""s_load_dwordx16 s[4:19], s[0:1], 0
    s_load_dwordx8 s[20:27], s[0:1], 64
    s_cmp_ge_u32 s2, {nwg}
    s_cbranch_scc1 L_END
    v_and_b32 v1, 63, v0
    v_lshrrev_b32 v2, 6, v0
    s_mov_b32 s{SBT}, 0
    v_readfirstlane_b32 s{SW8}, v2
    v_mov_b32 v12, 0
    s_mov_b32 s{SLD}, 0""")
    if cfg.stamps:
        for i in range(NSTAMP): a(f"s_mov_b32 s{80+2*i}, 0")
        a("s_mov_b32 s100, 0\n s_memrealtime s[80:81]\n s_memtime s[98:99]")
    a(f"""s_and_b32 s{SW}, s{SW8}, 3
    s_lshr_b32 s{SGRP}, s{SW8}, 2
    s_mul_i32 s{SLB}, s{SGRP}, {HALF}""")

def init_wave(a, name):
    a("s_getpc_b64 s[52:53]")
    a.label(f"L_PC{name}")
    a(f"""s_lshr_b32 s54, s2, 3
    s_and_b32 s54, s54, 7
    s_lshl_b32 s54, s54, 13
    v_lshlrev_b32 v3, 7, v1
    v_add_u32 v3, s54, v3
    s_sub_u32 s52, s52, L_PC{name}-L_CODE_BEGIN
    s_subb_u32 s53, s53, 0
    v_min_u32 v3, L_CODE_END-L_CODE_BEGIN-4, v3
    global_load_dword v15, v3, s[52:53]""")
    lds_init(a)
    if cfg.tlb:
        n = cfg.tlb
        a(f"s_waitcnt lgkmcnt(0)\n s_mov_b64 exec, {(1 << n) - 1}")
        for k, (p, size) in enumerate(((P_WS, WS_STAMP), (P_OUT, 2048 * 2560), (P_Q, 2048 * 1280), (P_H, 640 * 4096), (P_WO, 640 * 1280))):
            st = (size - 128) // (n - 1) // 128 * 128
            a(f"s_mov_b32 s54, {st}\n v_mul_lo_u32 v3, v1, s54\n global_load_dword v{250+k}, v3, s[{p}:{p+1}]")
        a("s_mov_b64 exec, -1")

def lds_init(a):
    a(f"""v_and_b32 v4, 15, v1
    v_lshlrev_b32 v4, 2, v4
    v_bfe_u32 v5, v1, 4, 1
    v_mul_u32_u24 v5, {HALF}, v5
    v_add_u32 v4, v4, v5
    v_add_u32 v4, {L_BAR}, v4
    v_mov_b32 v5, 0
    ds_write_b32 v4, v5""")

def args_ready(a):
    a("s_waitcnt lgkmcnt(0)")
    if cfg.stamps: a("s_mov_b32 s101, s98")
    srd(a, SRDWS, P_WS, WS_SIZE if cfg.stamps else WS_STAMP)
    srd(a, SRD4, P_DBG, 256)

def bar_arrive(a):
    a(f"""v_mov_b32 v13, s{SLB}
    v_mov_b32 v14, 1
    v_add_u32 v13, {L_BAR}, v13
    s_add_u32 s{SBT}, s{SBT}, 4
    s_mov_b64 exec, 1
    ds_add_u32 v13, v14
    s_mov_b64 exec, -1""")
def bar_wait(a, addr_ok=False):
    n = bar_wait.n; bar_wait.n += 1
    if not addr_ok: a(f"v_mov_b32 v13, s{SLB}\n v_add_u32 v13, {L_BAR}, v13")
    a.label(f"L_BW_{n}")
    a(f"""ds_read_b32 v14, v13
    s_waitcnt lgkmcnt(0)
    v_cmp_gt_u32 vcc, s{SBT}, v14
    s_nop 1
    s_cbranch_vccnz L_BW_{n}""")
bar_wait.n = 0

def phi_block(regs_, temps):
    out = []
    n = len(temps)
    for g in range(0, len(regs_), n):
        grp = regs_[g:g + n]
        if cfg.pk:
            for k in range(0, len(grp), 2): out.append(f"v_pk_mul_f32 {v2(temps[k])}, {v2(grp[k])}, s[70:71] op_sel_hi:[1,0]")
            for r, t in zip(grp, temps): out.append(f"v_exp_f32 v{t}, v{t} clamp"); out.append(f"v_max_f32 v{r}, s71, v{r}")
            for k in range(0, len(grp), 2): out.append(f"v_pk_add_f32 {v2(grp[k])}, {v2(grp[k])}, {v2(temps[k])}")
            continue
        for r, t in zip(grp, temps): out.append(f"v_mul_f32 v{t}, s70, v{r}")
        for r, t in zip(grp, temps): out.append(f"v_exp_f32 v{t}, v{t} clamp"); out.append(f"v_max_f32 v{r}, s71, v{r}")
        for r, t in zip(grp, temps): out.append(f"v_add_f32 v{r}, v{r}, v{t}")
    return out

def probe(vdst, voff, s_off, srdq=SRDWS):
    if cfg.pmode == 3:
        return f"v_mov_b32 v{vdst}, -1\n s_mov_b64 exec, 3\n v_mov_b32 v{vdst}, 0\n buffer_atomic_add v{vdst}, v{voff}, {sq(srdq)}, {s_off} offen sc0 sc1\n s_mov_b64 exec, -1"
    return f"buffer_load_dword v{vdst}, v{voff}, {sq(srdq)}, {s_off} offen " + ["sc1", "sc0 sc1", "sc0 sc1 nt"][cfg.pmode]
def check(a, name, vdst, voff, s_off, target, srdq=SRDWS):
    a(f"v_cmp_gt_u32 vcc, {target}, v{vdst}\n s_mov_b32 s78, 0\n s_nop 0\n s_cbranch_vccz L_OK_{name}")
    a("PUSHSTATE")
    a.label(f"L_POLL_{name}")
    a(f"""s_sleep {cfg.psleep}
    {probe(vdst, voff, s_off, srdq)}
    s_add_u32 s78, s78, 1
    s_waitcnt vmcnt(0)
    v_cmp_gt_u32 vcc, {target}, v{vdst}
    s_cmp_ge_u32 s78, 0x20000
    s_cbranch_scc1 L_OK_{name}
    s_cbranch_vccnz L_POLL_{name}""")
    a("POPSTATE")
    a.label(f"L_OK_{name}")
def zero_probe(a, vd, vz): a(f"v_mov_b32 v{vz}, 128\n" + probe(vd, vz, "0", SRD4))
def zero_check(a, name, vd, vz): check(a, "z" + name, vd, vz, "0", 1, SRD4)
def zero_wave(a):
    a(f"""v_lshlrev_b32 v8, 4, v1
    v_mov_b32 v16, 0
    v_mov_b32 v17, 0
    v_mov_b32 v18, 0
    v_mov_b32 v19, 0
    s_and_b32 s54, s2, 63
    s_lshl_b32 s54, s54, 11
    s_mov_b32 s79, 1
    s_mov_b32 s78, 1""")
    args_ready(a)
    if cfg.slab == 5: stamp(a, 5, True)
    a(f"""buffer_store_dwordx4 v[16:19], v8, {sq(SRDWS)}, s54 offen sc1
    buffer_store_dwordx4 v[16:19], v8, {sq(SRDWS)}, s54 offen offset:1024 sc1
    s_waitcnt vmcnt(0)
    s_atomic_add s79, s[{P_DBG}:{P_DBG+1}], 0 glc
    s_waitcnt lgkmcnt(0)
    s_cmp_lg_u32 s79, {NZERO-1}
    s_cbranch_scc1 L_ZW
    s_atomic_add s78, s[{P_DBG}:{P_DBG+1}], 128
    s_waitcnt lgkmcnt(0)""")
    a.label("L_ZW")
    if cfg.slab == 5: stamp(a, 6, True)

def signal(a, s_off, nwaves, ldsaddr, narr=1, rstride=128):
    n = signal.n; signal.n += 1
    a(f"""v_mov_b32 v13, {ldsaddr}
    v_mov_b32 v14, 1
    s_add_u32 s68, s{P_WS}, s{s_off}
    s_addc_u32 s69, s{P_WS+1}, 0
    s_mov_b32 s78, 1
    s_waitcnt vmcnt(0)
    s_mov_b64 exec, 1
    ds_add_rtn_u32 v12, v13, v14
    s_mov_b64 exec, -1
    s_waitcnt lgkmcnt(0)
    v_readfirstlane_b32 s79, v12
    s_cmp_lg_u32 s79, {nwaves-1}
    s_cbranch_scc1 L_SIG_{n}""")
    if narr > 1:
        a(f"""s_mov_b32 s79, 1
        s_atomic_add s79, s[68:69], {WS_CNT} glc
        s_waitcnt lgkmcnt(0)
        s_cmp_lg_u32 s79, {narr-1}
        s_cbranch_scc1 L_SIG_{n}""")
    for r in range(cfg.nrep if narr > 1 else 1): a(f"s_atomic_add s78, s[68:69], {r*rstride}")
    a("s_waitcnt lgkmcnt(0)")
    a.label(f"L_SIG_{n}")
signal.n = 0

def conv_ids(a):
    a("""s_and_b32 s52, s2, 7
    s_mul_i32 s52, s52, 20
    s_lshr_b32 s53, s2, 3
    s_sub_u32 s53, s53, 12
    s_add_u32 s52, s52, s53""")
def sprefetch(a, p, s_off, n):
    a(f"s_add_u32 s68, s{p}, s{s_off}\n s_addc_u32 s69, s{p+1}, 0")
    for i in range(n): a(f"s_load_dword s79, s[68:69], {128*i}")
    a("s_waitcnt lgkmcnt(0)")

def last_barrier(a, name, n_younger):
    a(f"s_cmp_eq_u32 s{SLD}, 0\n s_cbranch_scc1 L_LB_{name}\n PUSHSTATE\n s_waitcnt vmcnt({n_younger})\n s_barrier\n s_setprio 0\n POPSTATE")
    a.label(f"L_LB_{name}")

G_ACC, G_B, G_X = 16, 96, 176
G_SLOT = 36864
def slot_off(j): return ((j & 1) ^ 1) * G_SLOT
def slot_half(j): return (j % 4) >> 1
def g_ids(a):
    a(f"""s_and_b32 s52, s2, 7
    s_lshr_b32 s53, s2, 3
    s_and_b32 s57, s52, 3
    s_lshl_b32 s57, s57, 2
    s_and_b32 s54, s53, 3
    s_add_u32 s57, s57, s54
    s_lshr_b32 s52, s52, 2
    s_lshr_b32 s54, s53, 2
    s_lshl_b32 s58, s52, 2
    s_add_u32 s58, s58, s54
    s_lshl_b32 s52, s52, 1
    s_add_u32 s52, s52, s54
    s_add_u32 s52, s52, 4
    s_cmp_ge_u32 s54, 4
    s_cselect_b32 s58, s52, s58
    s_lshl_b32 s66, s{SW}, 12
    s_add_u32 s66, s66, 20480""")

def g_setup_x(a):
    if cfg.rot:
        a(f"""s_mul_i32 s62, s57, 3
        s_lshl_b32 s59, s58, 1
        s_add_u32 s62, s62, s59
        s_mul_i32 s59, s62, 205
        s_lshr_b32 s59, s59, 11
        s_mul_i32 s59, s59, 10
        s_sub_u32 s62, s62, s59
        s_lshl_b32 s64, s62, 7
        s_mul_i32 s63, s62, {64*3840}""")
    else:
        a("s_mov_b32 s64, 0\n s_mov_b32 s63, 0")
    a(f"""v_lshrrev_b32 v240, 3, v1
    s_lshl_b32 s59, s57, 7
    s_lshl_b32 s54, s{SW}, 5
    s_add_u32 s59, s59, s54
    v_add_u32 v240, s59, v240
    v_mul_u32_u24 v240, 1280, v240
    v_lshrrev_b32 v241, 4, v1
    v_and_b32 v242, 7, v1
    v_xor_b32 v242, v242, v241
    v_lshl_add_u32 v7, v242, 4, v240
    v_xor_b32 v242, 4, v242
    v_lshl_add_u32 v8, v242, 4, v240
    v_add_u32 v8, {10240-1024}, v8
    v_add_u32 v9, {20480-2048}, v7
    v_add_u32 v10, {20480-2048}, v8""")

def g_setup_w(a, hook=None):
    a(f"""s_mul_i32 s59, s58, 160
    s_add_u32 s60, s59, 1280
    s_add_u32 s61, s59, {2560-160}
    s_sub_u32 s59, s58, 8
    s_mul_i32 s59, s59, 320
    s_cmp_ge_u32 s58, 8
    s_cselect_b32 s60, s59, s60
    s_cselect_b32 s61, s59, s61
    s_mul_i32 s59, s{SW}, {16*3840}
    s_add_u32 s60, s60, s59
    s_add_u32 s61, s61, s59
    s_mul_i32 s65, s{SW}, 5120""")
    a(f"v_mov_b32 v244, s60\n v_mov_b32 v245, s61")
    for i in range(5):
        assert all(((64 * i + l) * 3277) >> 16 == (64 * i + l) // 20 for l in range(64))
        a(f"""v_add_u32 v240, {64*i}, v1
        v_mul_u32_u24 v241, 3277, v240
        v_lshrrev_b32 v241, 16, v241
        v_mul_u32_u24 v242, 20, v241
        v_sub_u32 v240, v240, v242""")
        if i == 2: a("v_lshrrev_b32 v242, 4, v1\n v_and_b32 v242, 2, v242\n v_xor_b32 v240, v240, v242")
        if i > 2: a("v_xor_b32 v240, 2, v240")
        a(f"""v_cmp_gt_u32 vcc, 10, v240
        v_mul_u32_u24 v241, 3840, v241
        v_lshl_add_u32 v240, v240, 4, v241
        v_cndmask_b32 v242, v245, v244, vcc""")
        if i in (0, 4): a(f"v_add_u32 v{2+i}, v240, v242")
        else: a(f"v_add_u32 v240, v240, v242\n v_subrev_u32 v{2+i}, {1024*i}, v240")
        if hook: hook(i)

def g_setup2(a):
    a(f"""v_lshrrev_b32 v241, 4, v1
    v_bfe_u32 v242, v1, 2, 2
    v_lshl_add_u32 v242, v241, 3, v242
    v_mul_u32_u24 v242, 320, v242
    v_and_b32 v243, 3, v1
    v_lshl_add_u32 v242, v243, 3, v242
    v_and_b32 v243, 1, v241
    v_lshlrev_b32 v243, 5, v243
    v_add_u32 v9, v242, v243
    v_sub_u32 v10, v242, v243
    v_and_b32 v240, 15, v1
    v_lshrrev_b32 v242, 1, v240
    v_xor_b32 v242, v242, v241
    v_lshlrev_b32 v240, 7, v240
    v_add_u32 v240, s66, v240
    v_lshl_add_u32 v11, v242, 4, v240
    v_xor_b32 v242, 4, v242
    v_lshl_add_u32 v12, v242, 4, v240
    s_mov_b32 s70, {LOG2E}
    s_mov_b32 s71, {EPS}""")
    for k in range(4): a(f"v_add_u32 v{2+k}, {HALF}, v{9+k}")

def g_loadx(j):
    o = [f"s_add_u32 m0, s66, {slot_half(j) * HALF + slot_off(j)}", "s_nop 0"]
    for i in range(4): o.append(f"buffer_load_dwordx4 v{7+i}, {sq(SRD0)}, s64 offen offset:{1024*i} lds ; tag=S{j}")
    o += ["s_add_u32 s64, s64, 128"]
    if cfg.rot: o += ["s_cmp_eq_u32 s64, 1280", "s_cselect_b32 s64, 0, s64"]
    return o
def g_loadw(j):
    base = slot_half(j) * HALF + slot_off(j)
    o = [f"s_add_u32 m0, s65, {base}", "s_nop 0"]
    for i in range(4): o.append(f"buffer_load_dwordx4 v{2+i}, {sq(SRD1)}, s63 offen offset:{1024*i} lds ; tag=S{j}")
    o += [f"s_add_u32 m0, s65, {base + 4096}", "s_nop 0", f"buffer_load_dwordx4 v6, {sq(SRD1)}, s63 offen lds ; tag=S{j}"]
    o += [f"s_add_u32 s63, s63, {64*3840}"]
    if cfg.rot: o += [f"s_cmp_eq_u32 s63, {640*3840}", "s_cselect_b32 s63, 0, s63"]
    return o
def g_xreads(j):
    return [f"ds_read_b128 {v4(G_X + (j&1)*16 + ks*8 + sub*4)}, v{(4 if slot_half(j) else 11)+ks} offset:{slot_off(j) + sub*2048}" for ks in range(2) for sub in range(2)]
def g_reads(t):
    j = t // 2
    o = []
    for n in range(10):
        for h in range(2):
            off = slot_off(j) + (t & 1) * 10240 + h * 1280 + 32 * n
            o.append(f"ds_read_b64_tr_b16 {v2(G_B + (t & 1) * 40 + n * 4 + 2 * h)}, v{(2 if slot_half(j) else 9) + (n & 1)} offset:{off}")
    return o

def role_loader(a):
    a(f"s_setprio {cfg.lprio}")
    g_setup_x(a)
    a("s_waitcnt lgkmcnt(0)")
    srd(a, SRD0, P_X, 2048 * 1280)
    if cfg.slab == 5: stamp(a, 5, True)
    if cfg.x_qd: a(f"s_cmp_lt_u32 s58, 8\n s_cbranch_scc1 L_XQD\n s_sleep {cfg.x_qd}"); a.label("L_XQD")
    a.extend(g_loadx(0))
    srd(a, SRD1, P_W, 640 * 3840)
    seq = []
    for j in range(10): seq += [g_loadx(j), g_loadw(j)]
    pos = 1
    if cfg.wpipe:
        w0 = g_loadw(0)
        parts = [w0[0:3], w0[3:4], w0[4:5], w0[5:6], w0[6:]]
        g_setup_w(a, lambda i: a.extend(parts[i]))
        pos = 2
    else: g_setup_w(a)
    def upto(n):
        nonlocal pos
        while pos < min(n, 20): a.extend(seq[pos]); pos += 1
    upto(cfg.ahead0)
    args_ready(a)
    stamp(a, 1)
    for j in range(9):
        a(f"WAITTAG S{j}")
        if cfg.slab == 2 and j < 8: stamp(a, j + 1, True)
        a("s_barrier")
        if cfg.slab == 1 and j < 8: stamp(a, j + 1, True)
        if j == 0: stamp(a, 2)
        if j == 6: zero_probe(a, 14, 13)
        upto(min(2 * (j + 1) + cfg.ahead, 2 * (j + 4)))
    zero_check(a, "ld", 14, 13)
    a(f"s_mov_b32 s{SLD}, 1")
    stamp(a, 3)

def g_main(a, transposed, tail):
    a("s_waitcnt vmcnt(0) lgkmcnt(0)\n s_barrier")
    stamp(a, 1)
    a.extend(g_xreads(0) + g_reads(0))
    def mfma(t, n, sub):
        j, ks = t // 2, t % 2
        acc = v4(G_ACC + (sub * 10 + n) * 4)
        x = v4(G_X + (j & 1) * 16 + ks * 8 + sub * 4)
        b = v4(G_B + (t & 1) * 40 + n * 4)
        c = "0" if t == 0 else acc
        return f"v_mfma_f32_16x16x32_bf16 {acc}, {b}, {x}, {c}" if transposed else f"v_mfma_f32_16x16x32_bf16 {acc}, {x}, {b}, {c}"
    for t in range(18 if cfg.tail2 else 19):
        j, ks = t // 2, t % 2
        mf = [mfma(t, n, sub) for n in range(10) for sub in range(2)]
        rd = g_reads(t + 1)
        if ks == 1:
            rd = g_xreads(j + 1) + rd
            a.extend(mf[:cfg.bpos]); a("s_waitcnt lgkmcnt(0)" + "\n s_barrier")
            a.extend(interleave(mf[cfg.bpos:], rd))
        else:
            a.extend(interleave(mf, rd))
    if cfg.tail2:
        a.extend(interleave([mfma(18, n, sub) for n in range(5) for sub in range(2)], g_reads(19)))
        tail([mfma(19, n, sub) for n in range(5) for sub in range(2)] + [mfma(t, n, sub) for t in (18, 19) for n in range(5, 10) for sub in range(2)])
    else:
        tail([mfma(19, n, sub) for n in range(10) for sub in range(2)])

B_KS = 8416
def b2_head(a, vd):
    a(f"""s_mul_i32 s57, s56, 205
    s_lshr_b32 s57, s57, 10
    s_mul_i32 s54, s57, 5
    s_sub_u32 s58, s56, s54""")
    assert all((v * 205) >> 10 == v // 5 for v in range(216))
    srd(a, SRD0, P_WO, 640 * 1280)
    a(f"""s_lshl_b32 s59, s58, 8
    s_mul_i32 s53, s{SW}, {160*1280}
    s_add_u32 s59, s59, s53
    s_lshl_b32 s53, s{SW}, 6
    s_mul_i32 s65, s{SW}, 20480
    s_add_u32 s65, s65, s{SLB}
    v_and_b32 v240, 15, v1
    v_lshrrev_b32 v241, 4, v1
    v_lshlrev_b32 v240, 4, v240
    v_xor_b32 v240, s53, v240
    v_mul_u32_u24 v241, {8*1280}, v241
    v_add3_u32 v{vd}, v240, v241, s59""")
def b2_dma(kstep, slot, vd=2):
    return [[f"s_add_u32 m0, s65, {slot*B_KS + i*1056}", f"s_mov_b32 s63, {(32*kstep + i)*1280}",
             f"buffer_load_dwordx4 v{vd}, {sq(SRD0)}, s63 offen lds ; tag=K{kstep}"] for i in range(8)]

def role_q(a):
    a(f"""s_lshl_b32 s52, s57, 3
    s_lshl_b32 s53, s{SW}, 1
    s_add_u32 s52, s52, s53
    s_mul_i32 s52, s52, 20
    s_sub_u32 s53, s58, 8
    s_mul_i32 s54, s53, 5
    s_add_u32 s52, s52, s54
    s_lshl_b32 s52, s52, 10
    s_add_u32 s52, s52, {WS_PQ}
    s_mul_i32 s55, s53, 17
    s_add_u32 s55, s55, s57
    s_lshl_b32 s55, s55, 7
    s_add_u32 s55, s55, {WS_QFLAG}
    v_lshlrev_b32 v6, 4, v1""")
    if cfg.qearly:
        a("s_lshr_b32 s53, s2, 3\n s_sub_u32 s53, s53, 4\n s_and_b32 s56, s2, 7\n s_mul_i32 s56, s56, 27\n s_add_u32 s56, s56, s53")
        b2_head(a, 208)
    def tail(mf):
        bar_arrive(a)
        ep = []
        for c in range(5):
            for sub in range(2):
                r0 = G_ACC + (sub * 10 + 2 * c) * 4
                ep += phi_block(list(range(r0, r0 + 8)), list(range(240, 248)))
                d = G_B + (sub * 5 + c) * 4
                ep += [f"v_cvt_pk_bf16_f32 v{d+k}, v{r0+2*k}, v{r0+2*k+1}" for k in range(4)]
                ep += [f"s_add_u32 s54, s52, {(sub*20+c)*1024}", f"buffer_store_dwordx4 {v4(d)}, v6, {sq(SRDWS)}, s54 offen sc1"]
        n = 2 * (len(mf) - 8)
        a.extend(mf[:8])
        a.extend(interleave(mf[8:], ep[:n]))
        stamp(a, 2)
        zero_probe(a, 7, 8)
        if cfg.qearly:
            bar_wait(a, True)
            a.extend(interleave(ep[n:], b2_dma(0, 0, 208) + b2_dma(1, 1, 208), 0, 200))
        else: a.extend(ep[n:])
    g_main(a, True, tail)
    stamp(a, 3)
    zero_check(a, "q", 7, 8)
    signal(a, 55, 4, L_SIG)
    stamp(a, 4)

def role_kv(a):
    EX, HB = G_SLOT, 0
    DUMP = HB + 4 * 2048
    AD = 208
    a(f"""v_lshlrev_b32 v240, 4, v1
    s_mul_i32 s52, s{SW}, 10240
    s_add_u32 s52, s52, {EX}
    v_add_u32 v{AD+6}, s52, v240
    s_lshl_b32 s52, s{SW}, 10
    s_add_u32 s52, s52, {EX}
    v_add_u32 v{AD+7}, s52, v240
    v_and_b32 v246, 15, v1
    v_lshrrev_b32 v247, 4, v1
    v_lshlrev_b32 v247, 2, v247
    s_lshl_b32 s52, s{SW}, 2
    v_subrev_u32 v246, s52, v246
    v_subrev_u32 v247, s52, v247
    s_lshl_b32 s53, s{SW}, 11
    v_mov_b32 v245, {DUMP}
    v_lshlrev_b32 v{AD+8}, 2, v1
    v_add_u32 v{AD+9}, s53, v{AD+8}""")
    for k in range(4): a(f"v_mov_b32 v{AD+12+k}, 0x3f803f80")
    k = 0
    for dt in range(2):
        for et in range(2):
            a(f"""v_add_u32 v240, {16*dt}, v247
            v_add_u32 v241, {16*et}, v246
            v_max_u32 v242, v240, v241
            v_cmp_gt_u32 vcc, 20, v242
            v_mul_u32_u24 v241, 80, v241
            v_lshl_add_u32 v241, v240, 2, v241
            v_add_u32 v241, s53, v241
            v_cndmask_b32 v{AD+k}, v245, v241, vcc""")
            k += 1
        a(f"""v_add_u32 v240, {16*dt}, v247
        v_and_b32 v241, 15, v1
        v_mul_u32_u24 v241, 20, v241
        v_max_u32 v242, v240, v241
        v_cmp_gt_u32 vcc, 20, v242
        v_lshlrev_b32 v240, 2, v240
        v_add_u32 v240, s53, v240
        v_add_u32 v240, 1600, v240
        v_cndmask_b32 v{AD+4+dt}, v245, v240, vcc""")
    a(f"""s_lshl_b32 s52, s58, 2
    s_add_u32 s52, s52, s{SW}
    s_mul_i32 s52, s52, 1680
    s_add_u32 s52, s52, {WS_KV}
    s_lshl_b32 s55, s58, 7""")
    if cfg.kvall: a("s_mov_b32 s55, 0")
    def tail(mf):
        ep = []
        for t in [0, 1, 5, 2, 6, 7, 3, 8, 9, 4]:
            r0 = G_ACC + t * 4; r1 = G_ACC + (10 + t) * 4
            if t < 5: ep += phi_block(list(range(r0, r0 + 4)) + list(range(r1, r1 + 4)), list(range(240, 248)))
            d = G_B + t * 4
            ep += [f"v_cvt_pk_bf16_f32 v{d}, v{r0}, v{r0+1}", f"v_cvt_pk_bf16_f32 v{d+1}, v{r0+2}, v{r0+3}",
                   f"v_cvt_pk_bf16_f32 v{d+2}, v{r1}, v{r1+1}", f"v_cvt_pk_bf16_f32 v{d+3}, v{r1+2}, v{r1+3}",
                   f"ds_write_b128 v{AD+6}, {v4(d)} offset:{t*1024}"]
        n = 2 * (len(mf) - 6)
        a.extend(mf[:6])
        a.extend(interleave(mf[6:], ep[:n]))
        stamp(a, 2)
        zero_probe(a, 7, 8)
        a.extend(ep[n:])
    g_main(a, False, tail)
    bar_arrive(a); bar_wait(a, True)
    F = 136
    for rg in range(4):
        for q, off in enumerate([0, 5120, 1024, 6144]):
            a(f"ds_read_b128 {v4(F + rg*16 + [0, 2, 1, 3][q]*4)}, v{AD+7} offset:{rg*10240 + off}")
    D = 16
    for rg in range(4):
        for dt in range(2):
            A = v4(F + rg * 16 + dt * 4)
            acc = v4(D + 16 + dt * 4)
            a(f"v_mfma_f32_16x16x32_bf16 {acc}, {A}, {v4(AD+12)}, {'0' if rg == 0 else acc}")
            for et in range(2):
                acc = v4(D + (dt * 2 + et) * 4)
                a(f"v_mfma_f32_16x16x32_bf16 {acc}, {A}, {v4(F + rg*16 + 8 + et*4)}, {'0' if rg == 0 else acc}")
    zero_check(a, "kv", 7, 8)
    for k in [4, 0, 1, 5, 2, 3]: a(f"ds_write_b128 v{AD+k}, {v4(D + 4*k)}")
    for i in range(7): a(f"ds_read_b32 v{48+i}, v{AD+9} offset:{256*i}")
    if cfg.gpos == 0: bar_arrive(a)
    stamp(a, 3)
    for i in range(7):
        if i == 6: a("s_mov_b32 exec_hi, 0xf")
        a(f"buffer_atomic_add_f32 v{48+i}, v{AD+8}, {sq(SRDWS)}, s52 offen offset:{256*i}")
    a("s_mov_b64 exec, -1")
    if cfg.gpos == 1: bar_arrive(a)
    if cfg.gpos == 2: a("s_waitcnt vmcnt(0)"); bar_arrive(a)
    if cfg.slab == 4: stamp(a, 5, True); a("s_waitcnt vmcnt(0)"); stamp(a, 6, True)
    signal(a, 55, 4, L_SIG, 128 if cfg.kvall else 16, 1024)
    stamp(a, 4)

C_HCOPY = 4224; C_UH = 144; C_WAVE = 2 * C_HCOPY + 2 * C_UH * 16
C_STG = HALF + 4 * C_WAVE; C_STGP = 4160
PV = 224
def WOW():
    if not cfg.wowarm: return ""
    return f"""s_cmp_eq_u32 s{SW8}, 0
    s_cbranch_scc1 L_WW
    s_sub_u32 s52, s2, 192
    s_lshl_b32 s52, s52, 1
    s_add_u32 s52, s52, s{SW8}
    s_sub_u32 s52, s52, 1
    s_mul_i32 s52, s52, 6400
    v_lshlrev_b32 v3, 7, v1
    v_min_u32 v3, 6272, v3
    v_add_u32 v3, s52, v3
    global_load_dword v15, v3, s[{P_WO}:{P_WO+1}]
    s_waitcnt vmcnt(0)
    L_WW:"""
def role_prep(a):
    a(f"""s_and_b32 s52, s2, 7
    s_lshl_b32 s52, s52, 2
    s_bfe_u32 s53, s2, 0x20004
    s_add_u32 s52, s52, s53
    s_lshl_b32 s52, s52, 6
    s_bfe_u32 s65, s2, 0x10003
    s_mul_i32 s53, s65, 320
    s_sub_u32 s54, s{SW8}, 3
    s_lshl_b32 s55, s{SW8}, 1
    s_cmp_ge_u32 s{SW8}, 3
    s_cselect_b32 s54, s54, s55
    s_lshl_b32 s54, s54, 6
    s_add_u32 s53, s53, s54
    v_lshrrev_b32 v240, 3, v1
    v_lshl_add_u32 v241, v240, 3, s52
    v_and_b32 v242, 7, v1
    v_lshl_add_u32 v243, v242, 3, s53
    v_mul_u32_u24 v241, 1280, v241
    v_lshl_add_u32 v{PV}, v243, 1, v241
    s_movk_i32 s55, 5120""")
    def common2(rev):
        a(f"""v_add_u32 v241, s53, v240
        v_mul_u32_u24 v241, {TP}, v241
        v_lshl_add_u32 v{PV+3}, v242, 4, v241
        s_mul_i32 s54, s{SW}, 20480
        s_mul_i32 s63, s{SGRP}, 10240
        s_add_u32 s54, s54, s63
        v_mul_u32_u24 v241, 1040, v242
        v_add_u32 v241, s54, v241""")
        if rev: a("v_sub_u32 v240, 7, v240")
        a(f"""v_lshl_add_u32 v{PV+4}, v240, 4, v241
        v_lshl_add_u32 v{PV+5}, v1, 4, s54
        s_lshl_b32 s64, s52, 1
        s_mov_b32 s70, 0x05040100
        s_mov_b32 s71, 0x07060302""")
    def rds(R): return [f"ds_read_b128 {v4(R+4*i)}, v{PV+5} offset:{1040*i}" for i in range(8)]
    def sts(R, extra): return [x for i in range(8) for x in (f"s_add_u32 s54, s64, {8*TP*i + extra}", f"buffer_store_dwordx4 {v4(R+4*i)}, v{PV+3}, {sq(SRDWS)}, s54 offen sc1")]
    a(f"s_cmp_lt_u32 s{SW8}, 3\n s_cbranch_scc1 L_PQ")
    tag(a, 3)
    a(f"v_subrev_u32 v{PV+1}, 3840, v{PV}\n v_lshlrev_b32 v{PV+2}, 3, v243\n s_waitcnt lgkmcnt(0)")
    srd(a, SRD0, P_K, 2048 * 1280)
    if cfg.x_pd: a(f"s_sleep {cfg.x_pd}")
    K, V, C = 16, 60, 92
    for r in range(3): a(f"buffer_load_dwordx4 {v4(K+4*r)}, v{PV+1}, {sq(SRD0)}, 0 offen offset:{1280*r}")
    for r in range(8): a(f"buffer_load_dwordx4 {v4(K+12+4*r)}, v{PV}, {sq(SRD0)}, {'s55' if r >= 4 else '0'} offen offset:{1280*(r%4)}")
    srd(a, SRD1, P_V, 2048 * 1280); srd(a, SRD3, P_SH, 640 * 8)
    for r in range(4): a(f"buffer_load_dwordx4 {v4(C+4*r)}, v{PV+2}, {sq(SRD3)}, 0 offen offset:{16*r}")
    for r in range(8):
        a(f"buffer_load_dwordx4 {v4(V+4*r)}, v{PV}, {sq(SRD1)}, {'s55' if r >= 4 else '0'} offen offset:{1280*(r%4)}")
    args_ready(a)
    common2(True)
    a(f"s_sub_u32 s64, {WS_UT + 1984*2}, s64\n s_mov_b32 s62, 0xffff0000")
    stamp(a, 1)
    P, T, U, O = 108, 120, 184, 192
    for ch in range(8):
        dw, hi = ch // 2, ch % 2
        sel = "s71" if hi else "s70"
        for s_ in range(-2, 8):
            a(f"v_perm_b32 v{P+s_+2}, v{K+4*(s_+2)+dw}, v{K+4*(s_+3)+dw}, {sel}")
        for s_ in range(8): a(f"v_dot2_f32_bf16 v{T+8*ch+s_}, v{P+s_}, v{C+2*ch+1}, 0")
        for s_ in range(8): a(f"v_dot2_f32_bf16 v{T+8*ch+s_}, v{P+s_+2}, v{C+2*ch}, v{T+8*ch+s_}")
    for ch in range(8):
        dw, hi = ch // 2, ch % 2
        for s_ in range(8):
            a(f"v_and_b32 v{U+s_}, s62, v{V+4*s_+dw}" if hi else f"v_lshlrev_b32 v{U+s_}, 16, v{V+4*s_+dw}")
        for s_ in range(8): a(f"v_mul_f32 v{T+8*ch+s_}, v{T+8*ch+s_}, v{U+s_}")
        o = O + 4 * ch
        for j in range(4): a(f"v_cvt_pk_bf16_f32 v{o+j}, v{T+8*ch+7-2*j}, v{T+8*ch+6-2*j}")
        a(f"ds_write_b128 v{PV+4}, {v4(o)} offset:{128*ch}")
    a.extend(rds(16) + sts(16, 0))
    stamp(a, 2)
    zero_probe(a, 3, 4)
    zero_check(a, "pu", 3, 4)
    a("s_waitcnt vmcnt(0)\n s_barrier")
    stamp(a, 3)
    a(f"s_cmp_eq_u32 s{SGRP}, 1\n s_cbranch_scc1 L_CONV\n s_branch L_PW")
    a.label("L_PQ")
    tag(a, 6)
    a(f"s_cmp_lg_u32 s{SW8}, 2\n s_cbranch_scc1 L_PQ0")
    init_wave(a, "p")
    a.label("L_PQ0")
    args_ready(a)
    a(f"""s_lshl_b32 s65, s65, 10
    s_add_u32 s65, s65, {WS_UFLG}
    s_add_u32 s68, s{P_WS}, s65
    s_addc_u32 s69, s{P_WS+1}, 0
    s_mov_b32 s78, 1
    s_mov_b32 s79, 1
    s_waitcnt vmcnt(0)
    s_barrier
    {WOW()}
    s_cmp_lg_u32 s{SW8}, 0
    s_cbranch_scc1 L_PW
    s_atomic_add s79, s[68:69], {WS_CNT} glc
    s_waitcnt lgkmcnt(0)
    s_cmp_lg_u32 s79, 31
    s_cbranch_scc1 L_PW""")
    for r in range(cfg.nrep): a(f"s_atomic_add s78, s[68:69], {128*r}")
    a("s_waitcnt lgkmcnt(0)")
    a.label("L_PW")
    if cfg.pearly: a("s_cmp_lt_u32 s2, 248\n s_cbranch_scc1 L_B2")
    a(f"v_mov_b32 v13, {HALF + L_BAR}")
    a.label("L_PWW")
    a("s_sleep 4\n ds_read_b32 v14, v13\n s_waitcnt lgkmcnt(0)\n v_cmp_gt_u32 vcc, 4, v14\n s_nop 1\n s_cbranch_vccnz L_PWW")
    stamp(a, 3)
    a("s_branch L_B2")

def conv_head(a, pr=False):
    a(f"""s_and_b32 s52, s2, 7
    s_mul_i32 s52, s52, 20
    s_lshr_b32 s53, s2, 3
    s_and_b32 s61, s2, {7 if cfg.nrep == 8 else 0}
    s_sub_u32 s53, s53, 12
    s_add_u32 s57, s52, s53
    s_lshl_b32 s58, s57, 2
    s_add_u32 s58, s58, s{SW}
    s_lshl_b32 s59, s58, 12
    s_mul_i32 s60, s{SW}, {C_WAVE}
    s_add_u32 s60, s60, {HALF}
    s_add_u32 s52, s{P_H}, s59
    s_addc_u32 s53, s{P_H+1}, 0
    s_load_dword s66, s[52:53], 0
    s_lshr_b32 s54, s58, 1
    s_lshl_b32 s54, s54, 2
    s_load_dword s67, s[{P_D}:{P_D+1}], s54
    s_lshl_b32 s61, s61, 7
    s_cmp_ge_u32 s57, 80
    s_cselect_b32 s54, {0 if cfg.uall else 1024}, 0
    s_add_u32 s61, s61, s54
    s_add_u32 s61, s61, {WS_UFLG}
    s_lshr_b32 s63, s57, 4
    s_mul_i32 s63, s63, {0 if cfg.yall else 1024}
    s_add_u32 s63, s63, {WS_YFLG}
    v_lshlrev_b32 v2, 4, v1
    v_add_u32 v3, 4, v2
    v_mov_b32 v12, 0""")
    if pr: a(probe(15, 12, "s61"))
    srd(a, SRD0, P_H, 640 * 4096)
    a(f"s_add_u32 m0, s60, 32")
    for i in range(4): a(f"buffer_load_dwordx4 v2, {sq(SRD0)}, s59 offen offset:{1024*i} lds ; tag=H")
    a(f"s_add_u32 m0, s60, {C_HCOPY + 32}")
    for i in range(4): a(f"buffer_load_dwordx4 v3, {sq(SRD0)}, s59 offen offset:{1024*i} lds ; tag=H")

def role_conv(a):
    ACC, A, RAW, B, UL = 16, 48, 80, 128, 224
    conv_head(a, True)
    last_barrier(a, "conv", 9)
    tag(a, 4)
    stamp(a, 4)
    a(f"s_mul_i32 s55, s58, {TP}\n s_add_u32 s65, s55, {WS_UT}\n s_add_u32 s55, s55, {WS_YT}")
    uld = [f"buffer_load_dwordx4 {v4(UL+4*i)}, v2, {sq(SRDWS)}, s65 offen offset:{1024*i} sc1" for i in range(4)]
    fin_strip(a); fin_head(a)
    a(f"""v_and_b32 v8, 15, v1
    v_lshrrev_b32 v9, 4, v1
    v_add_u32 v10, 1, v8
    v_bfe_u32 v11, v10, 1, 1
    v_mul_u32_u24 v11, {C_HCOPY}, v11
    v_lshrrev_b32 v13, 2, v10
    v_lshl_add_u32 v13, v9, 3, v13
    v_lshl_add_u32 v11, v13, 3, v11
    v_add_u32 v4, s60, v11
    v_and_b32 v10, 1, v10
    v_lshlrev_b32 v5, 4, v10
    v_lshlrev_b32 v10, 1, v9
    v_sub_u32 v10, v10, v8
    v_add_u32 v10, 15, v10
    v_lshlrev_b32 v10, 4, v10
    v_add_u32 v6, s60, v10
    v_lshrrev_b32 v10, 1, v1
    v_and_b32 v11, 1, v1
    v_mul_u32_u24 v11, {C_UH}, v11
    v_add_u32 v10, v10, v11
    v_lshlrev_b32 v10, 4, v10
    v_add_u32 v7, s60, v10
    v_mov_b32 v16, 0
    v_mov_b32 v17, 0
    v_mov_b32 v18, 0
    v_mov_b32 v19, 0
    v_and_b32 v10, 1, v9
    v_mul_u32_u24 v10, {C_UH}, v10
    v_add_u32 v10, v10, v8
    v_lshl_add_u32 v20, v10, 4, s60
    v_and_b32 v10, 1, v1
    v_lshlrev_b32 v10, 4, v10
    v_bfe_u32 v11, v1, 1, 1
    v_mul_u32_u24 v11, {C_HCOPY}, v11
    v_add3_u32 v21, v10, v11, s60
    v_lshlrev_b32 v10, 5, v8
    v_lshl_add_u32 v8, v9, 3, v10""")
    a(f"""s_waitcnt lgkmcnt(0)
    s_lshl_b32 s52, s66, 16
    s_lshl_b32 s53, s67, 16
    s_and_b32 s54, s67, 0xffff0000
    s_bitcmp1_b32 s58, 0
    s_cselect_b32 s53, s54, s53
    s_and_b32 s54, s66, 0xffff0000
    v_mov_b32 v10, s52
    v_add_f32 v10, s53, v10
    v_mov_b32 v11, s54
    v_cvt_pk_bf16_f32 v10, v10, v11
    v_mov_b32 v11, s60
    WAITTAG H
    v_cmp_gt_u32 vcc, 1, v15
    s_mov_b32 s62, 0
    s_nop 0
    s_cbranch_vccnz L_CU0
    PUSHSTATE
    {chr(10).join(uld)}
    s_mov_b32 s62, 1
    s_branch L_CU1
    POPSTATE
    L_CU0:
    {probe(15, 12, "s61")}
    L_CU1:
    ds_write_b128 v21, v[16:19]
    ds_write_b32 v11, v10 offset:32
    ds_write_b32 v11, v10 offset:{C_HCOPY+28}
    ds_write_b128 v20, v[16:19] offset:{2*C_HCOPY + 128*16}""")
    def raw_slots(i):
        return [(0, 1, 2), (2, 0, 1), (1, 2, 0), (0, 1, 2)][i]
    def raw_reads(it, N1):
        N0, i = it >> 2, it & 3
        sl = raw_slots(i)
        return [f"ds_read_b64 {v2(RAW + N1*6 + 2*sl[k])}, v4 offset:{(2*N1+N0)*256 + (2*i+k)*8}" for k in range(0 if i == 0 else 1, 3)]
    def aligns(it, N1):
        sl = raw_slots(it & 3)
        d = [RAW + N1 * 6 + 2 * sl[0], RAW + N1 * 6 + 2 * sl[0] + 1, RAW + N1 * 6 + 2 * sl[1], RAW + N1 * 6 + 2 * sl[1] + 1, RAW + N1 * 6 + 2 * sl[2]]
        return [f"v_alignbit_b32 v{A + 4*N1 + k}, v{d[k+1]}, v{d[k]}, v5" for k in range(4)]
    def b_reads(it):
        N0, i = it >> 2, it & 3
        return [f"ds_read_b128 {v4(B + (it&1)*32 + 4*dl)}, v6 offset:{2*C_HCOPY + (14-(2*dl-N0))*128 + (i>>1)*16 + (i&1)*C_UH*16}" for dl in range(8)]
    for N1 in range(8): a.extend(raw_reads(0, N1))
    for N1 in range(8):
        a.extend(aligns(0, N1)); a.extend(raw_reads(1, N1))
    a("s_cmp_eq_u32 s62, 1\n s_cbranch_scc1 L_CU2\n PUSHSTATE")
    check(a, "convu", 15, 12, "s61", 1)
    a.extend(uld)
    a("POPSTATE"); a.label("L_CU2")
    stamp(a, 5)
    a("s_waitcnt vmcnt(0)")
    for i in range(4): a(f"ds_write_b128 v7, {v4(UL+4*i)} offset:{2*C_HCOPY + 512*i}")
    a.extend(b_reads(0))
    bar_arrive(a)
    if cfg.cgate:
        a(f"s_cmp_ge_u32 s2, 128\n s_cbranch_scc1 L_CG\n PUSHSTATE\n v_mov_b32 v13, {L_BAR}")
        a.label("L_CGW")
        a(f"s_sleep 2\n ds_read_b32 v14, v13\n s_waitcnt lgkmcnt(0)\n v_cmp_gt_u32 vcc, {cfg.cgate}, v14\n s_nop 1\n s_cbranch_vccnz L_CGW\n POPSTATE")
        a.label("L_CG")
    a(f"s_setprio {cfg.vprio}")
    stamp(a, 6)
    def epi(J):
        T = 80 + 2 * J
        o = [f"v_cvt_pk_bf16_f32 v{T}, v{ACC+4*J}, v{ACC+4*J+1}", f"v_cvt_pk_bf16_f32 v{T+1}, v{ACC+4*J+2}, v{ACC+4*J+3}", f"ds_write_b64 v9, {v2(T)} offset:{512*J}"]
        if J & 1: o.append(f"ds_read_b128 {v4(96+2*(J-1))}, v10 offset:{512*(J-1)} ; y")
        if J in (3, 5): o.append(ysto((J - 3) // 2))
        return o
    def ysto(i): return f"buffer_store_dwordx4 {v4(96+4*i)}, v2, {sq(SRDWS)}, s55 offen offset:{1024*i} sc1"
    a("v_add_u32 v9, s60, v8\n v_add_u32 v10, s60, v2")
    queue = []
    for it in range(8):
        if it == 7: a(f"s_setprio {cfg.eprio}")
        if it < 7: queue += b_reads(it + 1)
        if it == cfg.qit:
            a("s_cmp_ge_u32 s56, 10\n s_cbranch_scc1 L_NQ\n PUSHSTATE"); a.extend(fin_qloads()); a("POPSTATE"); a.label("L_NQ")
        for N1 in range(8):
            tg = f"v_alignbit_b32 v{A+4*N1+3},"
            pos = max((k for k, q in enumerate(queue) if q.startswith(tg)), default=-1)
            for q in queue[:pos + 1]: a(q)
            queue = queue[pos + 1:]
            for J in range(N1, 8):
                acc = v4(ACC + 4 * J)
                c = "0" if (it == 0 and N1 == 0) else acc
                a(f"v_mfma_f32_16x16x32_bf16 {acc}, {v4(A+4*N1)}, {v4(B + (it&1)*32 + 4*(J-N1))}, {c}")
                if not cfg.mix:
                    for _ in range(2):
                        if queue: a(queue.pop(0))
                elif queue:
                    q = queue.pop(0); a(q)
                    if queue:
                        if q.startswith("ds_") and queue[0].startswith("ds_"):
                            k = next((k for k, x in enumerate(queue) if x.startswith("v_alignbit")), None)
                            if k is not None: a(queue.pop(k))
                            elif len(queue) > cfg.mix * 6: a(queue.pop(0))
                        elif q.startswith("v_alignbit") and queue[0].startswith("v_alignbit"):
                            k = next((k for k, x in enumerate(queue) if x.startswith("ds_read_b128") and not x.endswith("; y")), None)
                            a(queue.pop(k if k is not None else 0))
                        else: a(queue.pop(0))
            if it == 7 and N1 >= 2: queue += epi(N1 - 2)
            if it < 7: queue += aligns(it + 1, N1)
            if it < 6: queue += raw_reads(it + 2, N1)
        assert not any(q.startswith("ds_read_b128") and not q.endswith("; y") for q in queue)
    a.extend(queue)
    stamp(a, 7)
    a.extend(epi(6) + epi(7) + [ysto(2), ysto(3)])
    stamp(a, 8)
    signal(a, 63, 4, HALF + L_SIG, 160 if cfg.yall else 16)

FV = 240
def fin_head(a):
    a(f"""s_and_b32 s52, s2, 7
    s_lshl_b32 s52, s52, 2
    s_add_u32 s52, s52, s{SW}
    s_lshl_b32 s52, s52, 6
    s_lshl_b32 s53, s56, 6
    v_lshrrev_b32 v244, 3, v1
    v_lshl_add_u32 v245, v244, 3, s52
    v_and_b32 v246, 7, v1
    v_lshl_add_u32 v247, v246, 3, s53
    v_mul_u32_u24 v245, 1280, v245
    v_lshl_add_u32 v247, v247, 1, v245
    v_add_u32 v{FV}, v247, v245
    v_add_u32 v245, s53, v244
    v_mul_u32_u24 v245, {TP}, v245
    v_lshl_add_u32 v{FV+1}, v246, 4, v245
    v_mul_u32_u24 v245, 1040, v246
    v_lshl_add_u32 v245, v244, 4, v245
    v_add_u32 v{FV+2}, s60, v245
    s_lshl_b32 s64, s52, 1
    s_add_u32 s64, s64, {WS_YT}
    s_movk_i32 s53, 5120""")
    srd(a, SRD2, P_Q, 2048 * 1280); srd(a, SRD1, P_OUT, 2048 * 2560)
    a("s_cmp_ge_u32 s56, 10\n s_cselect_b32 s70, 0x40000000, 0\n s_add_u32 s71, s70, 5120")
def fin_qloads(): return [f"buffer_load_dwordx4 {v4(192+4*r)}, v247, {sq(SRD2)}, {'s71' if r >= 4 else 's70'} offen offset:{1280*(r%4)}" for r in range(8)]
def fin_strip(a):
    a(f"""s_lshr_b32 s53, s2, 3
    s_lshl_b32 s54, s{SGRP}, 2
    s_add_u32 s56, s53, s54
    s_sub_u32 s56, s56, 12
    s_cmp_lt_u32 s53, 16
    s_cselect_b32 s56, s56, 15
    s_add_u32 s54, s{SGRP}, 8
    s_cmp_eq_u32 s53, 31
    s_cselect_b32 s56, s54, s56""")
def fin_g0(a):
    fin_strip(a)
    a(f"s_mul_i32 s60, s{SW}, 8448\n s_add_u32 s60, s60, 16384\n v_lshl_add_u32 v10, v1, 4, s60")
    fin_head(a)
    a.extend(fin_qloads())
    bar_wait(a)
    a("s_waitcnt vmcnt(0)\n s_branch L_FINR")

def role_fin(a):
    Q, QF, Y, T, L = 192, 48, 112, 144, 16
    a(f"""s_setprio {cfg.fprio}
    s_and_b32 s61, s2, {7 if cfg.nrep == 8 else 0}
    s_lshl_b32 s61, s61, 7
    s_mul_i32 s54, s56, {0 if cfg.yall else 1024}
    s_add_u32 s61, s61, s54
    s_add_u32 s61, s61, {WS_YFLG}
    s_mov_b32 s62, 0xffff0000
    v_mov_b32 v12, 0""")
    a(probe(15, 12, "s61"))
    for r in range(8):
        for d in range(4):
            a(f"v_lshlrev_b32 v{QF+8*r+2*d}, 16, v{Q+4*r+d}\n v_and_b32 v{QF+8*r+2*d+1}, s62, v{Q+4*r+d}")
    stamp(a, 1)
    check(a, "fin", 15, 12, "s61", 1)
    stamp(a, 2)
    for i in range(8): a(f"s_add_u32 s54, s64, {8*TP*i}\n buffer_load_dwordx4 {v4(L+4*i)}, v{FV+1}, {sq(SRDWS)}, s54 offen sc1")
    for i in range(8): a(f"ds_write_b128 v10, {v4(L+4*i)} offset:{1040*i}")
    for ch in range(8): a(f"ds_read_b128 {v4(Y+4*ch)}, v{FV+2} offset:{128*ch}")
    stamp(a, 3)
    a("s_mov_b32 s54, 0")
    for r in range(8):
        t = T + 8 * (r & 1)
        for ch in range(8):
            src = Y + 4 * ch + r // 2
            a(f"v_and_b32 v{t+ch}, s62, v{src}" if r & 1 else f"v_lshlrev_b32 v{t+ch}, 16, v{src}")
        for ch in range(8): a(f"v_mul_f32 v{t+ch}, v{t+ch}, v{QF+8*r+ch}")
        o = 160 + 4 * r
        for d in range(4): a(f"v_cvt_pk_bf16_f32 v{o+d}, v{t+2*d}, v{t+2*d+1}")
        a(f"buffer_store_dwordx4 {v4(o)}, v{FV}, {sq(SRD1)}, s54 offen{OSC()}")
        if r < 7: a("s_add_u32 s54, s54, 2560")

def b2_tables(hf):
    num = {}
    for t in range(5 * hf, 5 * hf + 5):
        hs = {e // 20 for e in range(16 * t, 16 * t + 16)}
        dts = [dt for dt in range(10) if hs & {d // 20 for d in range(16 * dt, 16 * dt + 16)}]
        ch = {}
        for dt in dts: ch.setdefault(dt // 2, []).append(dt)
        num[t] = sorted(ch.items())
    ch = {}
    for dt in range(5 * hf, 5 * hf + 5): ch.setdefault(dt // 2, []).append(dt)
    return num, sorted(ch.items())

NS = 3
def role_b2(a):
    PQ, KV, RAW = 16, 108, 180
    WA = [76 + 4 * n for n in range(8)]
    WB = [228 + 4 * n for n in range(7)] + [8]
    ACC = 108
    U = [180, 204]
    b2_head(a, 2)
    dma = b2_dma
    def wreads(slot, dst):
        return [f"ds_read_b64_tr_b16 {v2(dst[n] + 2*h)}, v0 offset:{slot*B_KS + h*512 + 32*n}" for n in range(8) for h in range(2)]
    if not cfg.qearly: bar_wait(a)
    for g in dma(0, 0): a.extend(g)
    last_barrier(a, "b2", 8)
    for g in dma(1, 1): a.extend(g)
    a.label("L_B2Q")
    a("v_and_b32 v8, 15, v1\n v_lshrrev_b32 v9, 4, v1")
    a(f"s_setprio {cfg.cprio}")
    srd(a, SRD1, P_OUT, 2048 * 2560)
    a(f"""v_bfe_u32 v10, v1, 2, 3
    v_mul_u32_u24 v10, 1056, v10
    v_lshrrev_b32 v11, 5, v1
    v_lshl_add_u32 v10, v11, 8, v10
    v_and_b32 v11, 3, v1
    v_lshl_add_u32 v10, v11, 3, v10
    v_add_u32 v0, s65, v10
    s_add_u32 s64, s65, {2*B_KS}
    v_lshlrev_b32 v9, 3, v9
    v_mul_u32_u24 v3, 40, v8
    v_add3_u32 v3, v3, v9, s64
    v_mul_u32_u24 v4, 800, v11
    v_add3_u32 v4, v4, v9, s64
    v_lshlrev_b32 v5, 4, v1
    v_lshlrev_b32 v6, 3, v1
    v_add_u32 v6, s64, v6
    v_add_u32 v7, 4096, v5
    s_mul_i32 s52, s57, 3
    s_lshr_b32 s53, s52, 3
    s_add_u32 s54, s52, 2
    s_min_u32 s54, s54, 127
    s_lshr_b32 s54, s54, 3
    s_sub_u32 s54, s54, s53
    s_lshl_b32 s54, s54, 7
    v_and_b32 v12, 1, v1
    v_mul_u32_u24 v13, {0 if cfg.kvall else 128}, v12
    v_mul_u32_u24 v12, s54, v12
    s_mul_i32 s60, s{SW}, 17
    s_add_u32 s60, s60, s53
    s_lshl_b32 s60, s60, 7
    s_add_u32 s60, s60, {WS_QFLAG}
    s_and_b32 s61, s2, {7 if cfg.nrep == 8 else 0}
    s_lshl_b32 s61, s61, 10
    s_mul_i32 s53, s{SW}, {0 if cfg.kvall else 256}
    s_add_u32 s61, s61, s53
    s_mul_i32 s52, s52, 20480
    s_mul_i32 s53, s{SW}, 5120
    s_add_u32 s52, s52, s53
    s_add_u32 s52, s52, {WS_PQ}
    s_mul_i32 s62, s{SW}, {8*1680}
    s_add_u32 s62, s62, {WS_KV}
    s_mov_b32 s73, {EPS}
    s_mov_b32 s66, 0xffff0000
    s_mov_b32 s67, -1
    s_mov_b32 s68, 0
    s_mov_b32 s69, -1
    s_mov_b32 s70, 0
    s_mov_b32 s71, 0xffff0000""")
    for r in range(KV, KV + 72): a(f"v_mov_b32 v{r}, 0")
    def pqpart(sfx=""):
        a(probe(14, 12, "s60"))
        stamp(a, 5)
        check(a, "b2q" + sfx, 14, 12, "s60", 1)
        for sub in range(NS):
            for c in range(5):
                a(f"buffer_load_dwordx4 {v4(PQ + (sub*5+c)*4)}, v{5 if c < 4 else 7}, {sq(SRDWS)}, s52 offen offset:{1024*(c%4)} sc1")
            if sub < NS - 1: a("s_add_u32 s52, s52, 20480")
    a("WAITTAG K0")
    a.extend(wreads(0, WA))
    a("WAITTAG K1")
    a.extend(wreads(1, WB))
    a("s_waitcnt lgkmcnt(0)")
    if cfg.pqfirst == 1: pqpart()
    if cfg.pqfirst == 2:
        a(f"s_cmp_eq_u32 s{SLD}, 0\n s_cbranch_scc1 L_PQF\n PUSHSTATE"); pqpart("x"); a("POPSTATE"); a.label("L_PQF")
    a(f"""s_cmp_ge_u32 s2, 192
    s_cselect_b32 s53, {4 if cfg.pearly else 0}, 0
    s_cmp_eq_u32 s{SLD}, 0
    s_cselect_b32 s53, s53, 8
    s_cmp_eq_u32 s53, 0
    s_cbranch_scc1 L_GT
    s_sub_u32 s54, {HALF + L_BAR}, s{SLB}
    v_mov_b32 v15, s54""")
    a.label("L_GTW")
    a("s_sleep 2\n ds_read_b32 v14, v15\n s_waitcnt lgkmcnt(0)\n v_cmp_gt_u32 vcc, s53, v14\n s_nop 1\n s_cbranch_vccnz L_GTW")
    a.label("L_GT")
    for g in dma(2, 0) + dma(3, 1): a.extend(g)
    S2 = 4 * C_WAVE; S2W = 7360
    assert S2 + 4 * S2W <= L_BAR
    a(f"s_sub_u32 s59, {HALF + S2}, s{SLB}\n s_mul_i32 s53, s{SW}, {S2W}\n s_add_u32 s59, s59, s53")
    a(f"s_add_u32 s55, s59, {7*1056}\n s_sub_u32 s55, s55, s64\n s_and_b32 s55, s55, 255\n s_add_u32 s55, s55, s64")
    for i in range(7): a(f"s_add_u32 m0, s59, {i*1056}\n s_mov_b32 s63, {(128 + i)*1280}\n buffer_load_dwordx4 v2, {sq(SRD0)}, s63 offen lds")
    if not cfg.pqfirst: pqpart()
    if cfg.pqfirst == 2:
        a(f"s_cmp_lg_u32 s{SLD}, 0\n s_cbranch_scc1 L_PQG\n PUSHSTATE"); pqpart("y"); a("POPSTATE"); a.label("L_PQG")
    a(probe(14, 13, "s61"))
    check(a, "b2kv", 14, 13, "s61", 1)
    stamp(a, 6)
    raw = [RAW + 4 * i for i in range(12)] + [KV + 64, KV + 68]
    for hf in range(2):
        for i in range(7):
            a(f"buffer_load_dwordx4 {v4(raw[hf*7+i])}, v{5 if i < 4 else 7}, {sq(SRDWS)}, s62 offen offset:{1024*(i%4)} sc1")
        if hf == 0: a("s_add_u32 s62, s62, 6720")
    for r in range(4): a(f"v_mov_b32 v{12+r}, s73")
    qi = {}
    tabs = [b2_tables(0), b2_tables(1)]
    def build_half(hf):
        o = []
        for i in range(7):
            r = raw[hf * 7 + i]
            o += [f"v_cvt_pk_bf16_f32 v{r}, v{r}, v{r+1}", f"v_cvt_pk_bf16_f32 v{r+1}, v{r+2}, v{r+3}", f"ds_write_b64 v6, {v2(r)} offset:{512*i}"]
        if hf == 1: o += [f"v_mov_b32 v{KV+64+k}, 0" for k in range(8)]
        num, den = tabs[hf]
        quads = [("z", hf, dt) for c, dts in den for dt in dts] + [("n", t, dt) for t in num for c, dts in num[t] for dt in dts]
        assert len(quads) == 18
        rd = []
        for (kind, t, dt) in quads:
            q = len(qi); qi[(kind, t, dt)] = q
            mask = 0
            for l in range(64):
                i, g = l & 15, l >> 4
                hd = (16 * dt + 4 * g) // 20
                he = (16 * t + i) // 20 if kind == "n" else (i & 3) + 4 * t
                if hd == he: mask |= 1 << l
            off = 640 * (t - 5 * hf) + 32 * (dt - 5 * hf) if kind == "n" else 800 + 32 * (dt - 5 * hf)
            rd.append([f"s_mov_b32 exec_lo, {mask & 0xffffffff:#x}", f"s_mov_b32 exec_hi, {mask >> 32:#x}", f"ds_read_b64 {v2(KV + 2*q)}, v{3 if kind == 'n' else 4} offset:{off}"])
        return o, rd
    def omf(sub, hf, T):
        o = []
        num, den = tabs[hf]
        def one(kind, t, lst, acc):
            lst = sorted(lst, key=lambda x: len(x[1]))
            for k, (c, dts) in enumerate(lst):
                src = v4(acc) if k else ("v[12:15]" if kind == "z" else "0")
                kv = KV + 2 * qi[(kind, t, dts[0])]
                pq = PQ + (sub * 5 + c) * 4
                key = (min(k, 1), 0 if kind == "z" else 1, t, k)
                if len(dts) == 2: o.append((key, f"v_mfma_f32_16x16x32_bf16 {v4(acc)}, {v4(kv)}, {v4(pq)}, {src}"))
                else: o.append((key, f"v_mfma_f32_16x16x16_bf16 {v4(acc)}, {v2(kv)}, {v2(pq + 2*(dts[0]&1))}, {src}"))
        one("z", hf, den, T)
        for t in num: one("n", t, num[t], T + 4 + 4 * (t - 5 * hf))
        return [x for _, x in sorted(o)]
    def ovalu(sub, hf, T):
        o = []
        for r in range(4): o.append(f"v_rcp_f32 v{T+r}, v{T+r}")
        for tl in range(5):
            t = tl + 5 * hf
            h0 = (16 * tl) // 20; h1 = (16 * tl + 12) // 20
            rc = T + h0; n = T + 4 + 4 * tl
            if h0 != h1:
                g0 = min(g for g in range(4) if (16 * tl + 4 * g) // 20 == h1)
                o.append(f"v_cndmask_b32 v{rc}, v{T+h0}, v{T+h1}, s[{64+2*g0}:{65+2*g0}]")
            for r in range(4): o.append(f"v_mul_f32 v{n+r}, v{n+r}, v{rc}")
            d = PQ + (sub * 5 + t // 2) * 4 + 2 * (t & 1)
            o.append(f"v_cvt_pk_bf16_f32 v{d}, v{n}, v{n+1}")
            o.append(f"v_cvt_pk_bf16_f32 v{d+1}, v{n+2}, v{n+3}")
        return o
    def acc(sub, n): return ACC + (n * NS + sub) * 4
    def g2(k, W, ns=range(8)):
        return [f"v_mfma_f32_16x16x32_bf16 {v4(acc(sub, n))}, {v4(W[n])}, {v4(PQ + (sub*5+k)*4)}, {'0' if k == 0 else v4(acc(sub, n))}" for n in ns for sub in range(NS)]
    units = [(s_, h) for h in range(2) for s_ in range(NS)]
    nu = len(units)
    w0, r0 = build_half(0)
    a.extend(w0)
    for g in r0: a.extend(g)
    a("s_mov_b64 exec, -1")
    w1, r1 = build_half(1)
    a.extend(w1)
    r1g = [r1[k] + r1[k + 1] + ["s_mov_b64 exec, -1"] for k in range(0, 18, 2)]
    a.extend(interleave(omf(*units[0], U[0]), r1g, 1, 11))
    stamp(a, 7)
    for u in range(1, nu):
        a.extend(interleave(omf(*units[u], U[u & 1]), ovalu(*units[u - 1], U[(u - 1) & 1]), 2))
        if u == 1: a(f"s_waitcnt lgkmcnt(0)\n s_mov_b32 m0, s55\n s_mov_b32 s63, {135*1280}\n buffer_load_dwordx4 v2, {sq(SRD0)}, s63 offen lds ; tag=K4")
    a.extend(interleave(g2(0, WA), ovalu(*units[nu - 1], U[(nu - 1) & 1]), 2))
    k1 = g2(1, WB)
    a.extend(interleave(k1, wreads(0, WA), 0, 18))
    ad = []
    for gam in range(1, 4):
        ad += [f"s_xor_b32 s52, s{SW}, {gam}", "s_mul_i32 s52, s52, 20480", f"s_add_u32 s52, s52, {(gam-1)*6144}", f"s_add_u32 s52, s52, s{SLB}", f"v_add_u32 v{203+gam}, s52, v5"]
    ad += f"""s_sub_u32 s59, s59, s65
    s_sub_u32 s55, s55, s65
    s_sub_u32 s55, s55, {7*1056}
    v_add_u32 v208, s59, v0
    v_add_u32 v209, s55, v0
    v_bfe_u32 v210, v1, 2, 3
    v_cmp_eq_u32 vcc, 7, v210
    v_mov_b32 v211, 0
    v_mov_b32 v211, 0
    v_cndmask_b32 v208, v208, v209, vcc
    v_add_u32 v207, s65, v5
    s_add_u32 s53, s65, 18432
    v_and_b32 v12, 15, v1
    v_mul_u32_u24 v12, 80, v12
    v_lshrrev_b32 v3, 4, v1
    v_lshl_add_u32 v12, v3, 3, v12
    v_add_u32 v12, s53, v12
    v_lshrrev_b32 v3, 2, v1
    v_and_b32 v4, 3, v1
    v_lshlrev_b32 v4, 4, v4
    v_mul_u32_u24 v15, 80, v3
    v_add3_u32 v15, v15, v4, s53
    s_mul_i32 s52, s57, 48
    v_add_u32 v3, s52, v3
    v_mul_u32_u24 v3, 2560, v3
    v_add_u32 v3, v3, v4
    s_lshl_b32 s52, s58, 8
    s_lshl_b32 s54, s{SW}, 6
    s_add_u32 s52, s52, s54
    s_add_u32 s52, s52, 1280""".split("\n")
    a.extend(interleave(interleave(g2(2, WA), wreads(1, WB), 0, 16), ad))
    pre = g2(3, WB, [0, 1, 2, 3])
    a("WAITTAG K4")
    rd4 = [x.replace(", v0 ", ", v208 ") for x in wreads(0, WA)]; rd4 = rd4[4:] + rd4[:4]
    a.extend(interleave(pre, rd4))
    def wr(gam): return [f"ds_write_b128 v207, {v4(ACC + (gam*6+k)*4)} offset:{(gam-1)*6144 + 1024*k}" for k in range(6)]
    a.extend(g2(4, WA, [2, 3]))
    a.extend(interleave(g2(3, WB, [4, 5]) + g2(4, WA, [4, 5]), wr(1), 2))
    a.extend(interleave(g2(3, WB, [6, 7]) + g2(4, WA, [6, 7]), wr(2), 2))
    a.extend(interleave(g2(4, WA, [0, 1]), wr(3), 2))
    stamp(a, 8)
    bar_arrive(a); bar_wait(a, True)
    R = 16
    order = [n * NS + sub for sub in range(NS) for n in range(2)]
    for k in order:
        for gam in range(3): a(f"ds_read_b128 {v4(R + (k*3+gam)*4)}, v{204+gam} offset:{1024*k}")
    for k in order:
        n, sub = k // NS, k % NS
        for r in range(4): a(f"v_add_f32 v{ACC+4*k+r}, v{ACC+4*k+r}, v{R+(k*3)*4+r}")
        for r in range(4): a(f"v_add_f32 v{R+(k*3+1)*4+r}, v{R+(k*3+1)*4+r}, v{R+(k*3+2)*4+r}")
        for r in range(4): a(f"v_add_f32 v{ACC+4*k+r}, v{ACC+4*k+r}, v{R+(k*3+1)*4+r}")
        a(f"v_cvt_pk_bf16_f32 v{140+2*k}, v{ACC+4*k}, v{ACC+4*k+1}\n v_cvt_pk_bf16_f32 v{141+2*k}, v{ACC+4*k+2}, v{ACC+4*k+3}")
        a(f"ds_write_b64 v12, {v2(140+2*k)} offset:{32*n}")
        if n == 1:
            a(f"ds_read_b128 {v4(160+4*sub)}, v15")
            if sub > 0:
                a(f"buffer_store_dwordx4 {v4(160+4*(sub-1))}, v3, {sq(SRD1)}, s52 offen{OSC()}\n s_add_u32 s52, s52, {16*2560}")
    a(f"buffer_store_dwordx4 {v4(160+4*(NS-1))}, v3, {sq(SRD1)}, s52 offen{OSC()}")

def OSC(): return ["", " sc1", " nt", " sc0 sc1"][cfg.osc]

def kd(name):
    return f""".p2align 6
.amdhsa_kernel {name}
  .amdhsa_next_free_vgpr 256
  .amdhsa_next_free_sgpr 102
  .amdhsa_accum_offset 256
  .amdhsa_group_segment_fixed_size 0
  .amdhsa_kernarg_size 96
  .amdhsa_user_sgpr_count 2
  .amdhsa_user_sgpr_kernarg_segment_ptr 1
  .amdhsa_system_sgpr_workgroup_id_x 1
  .amdhsa_float_denorm_mode_32 3
.end_amdhsa_kernel"""

def head(name): return f".globl {name}\n.p2align 8\n.type {name},@function"

def build():
    k = KN + "_kernel"
    a = Asm()
    a(head(k)); prologue(a, k, 256)
    a("s_cmp_ge_u32 s2, 192\n s_cbranch_scc1 L_P")
    g_ids(a)
    a(f"s_cmp_eq_u32 s{SGRP}, 0\n s_cbranch_scc1 L_CONS")
    tag(a, 7)
    role_loader(a)
    a("s_cmp_ge_u32 s2, 96\n s_cbranch_scc1 L_CONV\n s_branch L_B2")
    a.label("L_CONS")
    if not cfg.zp:
        a(f"s_cmp_lg_u32 s{SW}, 0\n s_cbranch_scc1 L_ZW\n s_cmp_ge_u32 s2, {NZERO}\n s_cbranch_scc1 L_ZW")
        zero_wave(a)
    a(f"s_cmp_lg_u32 s{SW}, 3\n s_cbranch_scc1 L_CONS1")
    init_wave(a, "g")
    a.label("L_CONS1")
    a(f"s_setprio {cfg.cprio}")
    args_ready(a)
    g_setup2(a)
    a("s_cmp_ge_u32 s58, 8\n s_cbranch_scc1 L_Q")
    tag(a, 1); role_kv(a)
    a("s_cmp_lt_u32 s2, 96\n s_cbranch_scc1 L_FIN")
    a.label("L_FG0")
    fin_g0(a)
    a.label("L_Q"); tag(a, 2); role_q(a)
    if cfg.qearly: tag(a, 5); a("v_mov_b32 v2, v208\n s_branch L_B2Q")
    else: a("s_branch L_B2")
    a.label("L_P")
    if cfg.zp:
        a(f"s_cmp_lg_u32 s{SW8}, 1\n s_cbranch_scc1 L_ZW\n s_cmp_ge_u32 s2, {192 + NZERO}\n s_cbranch_scc1 L_ZW")
        zero_wave(a)
    role_prep(a)
    a.label("L_CONV"); role_conv(a)
    a("s_cmp_ge_u32 s56, 10\n s_cbranch_scc1 L_FIN")
    a.label("L_FINR")
    tag(a, 8); role_fin(a)
    if cfg.enc == 89: a("s_waitcnt vmcnt(0)"); stamp(a, 9)
    a("s_branch L_FIN")
    a.label("L_B2")
    a("""s_lshr_b32 s53, s2, 3
    s_sub_u32 s54, s53, 4
    s_cmp_lt_u32 s53, 12
    s_cselect_b32 s53, s53, s54
    s_cmp_ge_u32 s53, 27
    s_cbranch_scc1 L_FG0
    s_and_b32 s56, s2, 7
    s_mul_i32 s56, s56, 27
    s_add_u32 s56, s56, s53
    s_cmp_ge_u32 s56, 215
    s_cbranch_scc1 L_FIN""")
    tag(a, 5); role_b2(a)
    if cfg.enc == 59: a("s_waitcnt vmcnt(0)"); stamp(a, 9)
    a.label("L_FIN"); stamps_out(a)
    if cfg.enc:
        a("s_waitcnt vmcnt(0) lgkmcnt(0)")
        a.label("L_SPIN")
        a("s_sleep 1\n s_memrealtime s[94:95]\n s_waitcnt lgkmcnt(0)\n s_sub_u32 s94, s94, s96\n s_cmp_lt_u32 s94, 2500\n s_cbranch_scc1 L_SPIN")
    a.label("L_END"); a("s_endpgm")
    launch = [f"; @launch grid=(256,1,1) block=(512,1,1) lds={LDS_BYTES}"]
    return launch, a, [k]

def emit(path, launch, a, kernels, verbose=False):
    body = fix_hazards(insert_waits(a.lines), verbose)
    if cfg.al:
        body, n1, n2 = align8(body, cfg.al)
        if verbose: print("align: promoted", n1, "nops", n2)
    out = list(launch) + ['.amdgcn_target "amdgcn-amd-amdhsa--gfx950"', ".text", ".p2align 8", "L_CODE_BEGIN:"]
    out += [(l if l.endswith(":") or l.startswith(".") else "    " + l) for l in body]
    out += ["L_CODE_END:", "    s_endpgm", '.section .rodata,"a"'] + [kd(k) for k in kernels]
    open(path, "w").write("\n".join(out) + "\n")

if __name__ == "__main__":
    cfg.stamps = "stamps" in sys.argv[2:]
    cfg.rot = "norot" not in sys.argv[2:]
    for x in sys.argv[2:]:
        if "=" in x: setattr(cfg, x.split("=")[0], int(x.split("=")[1]))
    emit(sys.argv[1], *build(), verbose="-v" in sys.argv)
```

```python
import sys
sys.path.insert(0, "dev")
from asmlib import *

KN = "concat_heads__ssm_conv_h3__linear_attn_block__prompt"
WS_KVFLG = 0x0000
WS_YFLG  = 0x2000
WS_UFLG  = 0x4800
WS_QFLAG = 0x5000
WS_CNT   = 0x8000
WS_KV    = 0xD000
NZERO    = 56
TP = 4224
WS_UT    = 0x100000
WS_YT    = 0x400000
WS_PQ    = 0x700000
WS_STAMP = 0xA00000
WS_SIZE  = 0xB00000
LDS_BYTES = 163840
HALF = 81920
L_BAR = HALF - 64
L_SIG = HALF - 60
SGRP, SLB, SBT, SW8, SLD = 74, 75, 76, 77, 72
LOG2E = 0x3FB8AA3B
EPS = 0x358637BD

P_Q, P_K, P_V, P_SH, P_H, P_D, P_X, P_W, P_WO, P_OUT, P_DBG, P_WS = [4 + 2 * i for i in range(12)]
SRD0, SRD1, SRD2, SRD3, SRD4, SRDWS = 28, 32, 36, 40, 44, 48
SW = 3

def srd(a, d, p, nbytes):
    a(f"s_mov_b32 s{d}, s{p}\n s_and_b32 s{d+1}, s{p+1}, 0xffff\n s_mov_b32 s{d+2}, {nbytes}\n s_mov_b32 s{d+3}, 0x20000")
def sq(d): return f"s[{d}:{d+3}]"
def v4(r): return f"v[{r}:{r+3}]"
def v2(r): return f"v[{r}:{r+1}]"

class Cfg:
    stamps = False
    rot = False
    gonly = 0
    ahead0 = 4
    ahead = 4
    bpos = 3
    lprio = 3
    cprio = 2
    psleep = 2
    qlate = 3
    pprio = 0
    qit = 4
    cgate = 4
    gpos = 2
    wowarm = 0
    pqfirst = 2
    pearly = 0
    qswap = 0
    mprio = 3
    sig0 = 1
    nogq = 1
    rA = -1
    rB = 0
    rC = 0
    rD = 0
    fsc = 1
    qpre = 0
    krep = 8
    fmode = 1
    smask = 1
    sdel = 10
    x_qd = 0
    x_pd = 0
    al = 0
    zp = 1
    wpipe = 1
    mix = 0
    qearly = 0
    pk = 0
    lite = 0
    nrep = 1
    kvall = 0
    yall = 0
    uall = 0
    vprio = 0
    fbase = 22
    tail2 = 1
    tlb = 0
    pwait = 1
    eprio = 3
    fprio = 3
    qrel = 8
    qst = 1
    osc = 1
    gate = 1
    usig = 4
    qbar = 1
    spf = 0
    slab = 0
    enc = 0
    role = 0
    pmode = 0
    x_noq = 0
    x_plain = 0
    x_pend = 0
    x_nost = 0
cfg = Cfg()

NSTAMP = 10
def stamp(a, i, force=False):
    if cfg.lite and i != NSTAMP - 1: return
    if cfg.slab and not force and i != NSTAMP - 1 and cfg.role in (7, 4, 5): return
    if cfg.enc and cfg.enc == cfg.role * 10 + i:
        a("s_memrealtime s[96:97]\n s_waitcnt lgkmcnt(0)")
    if cfg.stamps:
        a(f"s_memrealtime s[{80+2*i}:{81+2*i}]\n s_waitcnt lgkmcnt(0)")
def stamps_out(a):
    if not cfg.stamps: return
    a("s_waitcnt vmcnt(0) lgkmcnt(0)")
    stamp(a, NSTAMP - 1)
    a("s_memtime s[70:71]\n s_waitcnt lgkmcnt(0)\n s_sub_u32 s101, s70, s101")
    a(f"s_getreg_b32 s52, hwreg(HW_REG_HW_ID)\n s_getreg_b32 s53, hwreg(HW_REG_XCC_ID)")
    for i in range(NSTAMP): a(f"v_mov_b32 v{16+i}, s{80+2*i}")
    a(f"v_mov_b32 v26, s52\n v_mov_b32 v27, s53\n v_mov_b32 v28, s100\n v_mov_b32 v29, s2\n v_mov_b32 v30, s101\n v_mov_b32 v31, 0")
    a(f"s_lshl_b32 s54, s2, 9\n s_lshl_b32 s55, s{SW8}, 6\n s_add_u32 s54, s54, s55\n s_add_u32 s54, s54, {WS_STAMP}")
    a(f"v_mov_b32 v32, 0\n s_mov_b64 exec, 1")
    for i in range(4): a(f"buffer_store_dwordx4 {v4(16+4*i)}, v32, {sq(SRDWS)}, s54 offen offset:{16*i}")
    a("s_mov_b64 exec, -1")
def tag(a, t):
    cfg.role = t
    if cfg.stamps: a(f"s_lshl_b32 s100, s100, 4\n s_add_u32 s100, s100, {t}")

def prologue(a, name, nwg):
    a.label(name)
    if cfg.enc: a("s_memrealtime s[98:99]\n s_memrealtime s[96:97]")
    a(f"""s_load_dwordx16 s[4:19], s[0:1], 0
    s_load_dwordx8 s[20:27], s[0:1], 64
    s_cmp_ge_u32 s2, {nwg}
    s_cbranch_scc1 L_END
    v_and_b32 v1, 63, v0
    v_lshrrev_b32 v2, 6, v0
    s_mov_b32 s{SBT}, 0
    v_readfirstlane_b32 s{SW8}, v2
    v_mov_b32 v12, 0
    s_mov_b32 s{SLD}, 0""")
    if cfg.stamps:
        for i in range(NSTAMP): a(f"s_mov_b32 s{80+2*i}, 0")
        a("s_mov_b32 s100, 0\n s_memrealtime s[80:81]\n s_memtime s[98:99]")
    a(f"""s_and_b32 s{SW}, s{SW8}, 3
    s_lshr_b32 s{SGRP}, s{SW8}, 2
    s_mul_i32 s{SLB}, s{SGRP}, {HALF}""")

def init_wave(a, name):
    a("s_getpc_b64 s[52:53]")
    a.label(f"L_PC{name}")
    a(f"""s_lshr_b32 s54, s2, 3
    s_and_b32 s54, s54, 7
    s_lshl_b32 s54, s54, 13
    v_lshlrev_b32 v3, 7, v1
    v_add_u32 v3, s54, v3
    s_sub_u32 s52, s52, L_PC{name}-L_CODE_BEGIN
    s_subb_u32 s53, s53, 0
    v_min_u32 v3, L_CODE_END-L_CODE_BEGIN-4, v3
    global_load_dword v15, v3, s[52:53]""")
    lds_init(a)
    if cfg.tlb:
        n = cfg.tlb
        a(f"s_waitcnt lgkmcnt(0)\n s_mov_b64 exec, {(1 << n) - 1}")
        for k, (p, size) in enumerate(((P_WS, WS_STAMP), (P_OUT, 2048 * 2560), (P_Q, 2048 * 1280), (P_H, 640 * 4096), (P_WO, 640 * 1280))):
            st = (size - 128) // (n - 1) // 128 * 128
            a(f"s_mov_b32 s54, {st}\n v_mul_lo_u32 v3, v1, s54\n global_load_dword v{250+k}, v3, s[{p}:{p+1}]")
        a("s_mov_b64 exec, -1")

def lds_init(a):
    a(f"""v_and_b32 v4, 15, v1
    v_lshlrev_b32 v4, 2, v4
    v_bfe_u32 v5, v1, 4, 1
    v_mul_u32_u24 v5, {HALF}, v5
    v_add_u32 v4, v4, v5
    v_add_u32 v4, {L_BAR}, v4
    v_mov_b32 v5, 0
    ds_write_b32 v4, v5""")

def args_ready(a):
    a("s_waitcnt lgkmcnt(0)")
    if cfg.stamps: a("s_mov_b32 s101, s98")
    srd(a, SRDWS, P_WS, WS_SIZE if cfg.stamps else WS_STAMP)
    srd(a, SRD4, P_DBG, 256)

def bar_arrive(a):
    a(f"""v_mov_b32 v13, s{SLB}
    v_mov_b32 v14, 1
    v_add_u32 v13, {L_BAR}, v13
    s_add_u32 s{SBT}, s{SBT}, 4
    s_mov_b64 exec, 1
    ds_add_u32 v13, v14
    s_mov_b64 exec, -1""")
def gate_arrive(a):
    a(f"""v_mov_b32 v13, s{SLB}
    v_mov_b32 v14, 1
    v_add_u32 v13, {L_BAR}, v13
    s_mov_b64 exec, 1
    ds_add_u32 v13, v14 offset:8
    s_mov_b64 exec, -1""")
def bar_wait(a, addr_ok=False):
    n = bar_wait.n; bar_wait.n += 1
    if not addr_ok: a(f"v_mov_b32 v13, s{SLB}\n v_add_u32 v13, {L_BAR}, v13")
    a.label(f"L_BW_{n}")
    a(f"""ds_read_b32 v14, v13
    s_waitcnt lgkmcnt(0)
    v_cmp_gt_u32 vcc, s{SBT}, v14
    s_nop 1
    s_cbranch_vccnz L_BW_{n}""")
bar_wait.n = 0

def phi_block(regs_, temps):
    out = []
    n = len(temps)
    for g in range(0, len(regs_), n):
        grp = regs_[g:g + n]
        if cfg.pk:
            for k in range(0, len(grp), 2): out.append(f"v_pk_mul_f32 {v2(temps[k])}, {v2(grp[k])}, s[70:71] op_sel_hi:[1,0]")
            for r, t in zip(grp, temps): out.append(f"v_exp_f32 v{t}, v{t} clamp"); out.append(f"v_max_f32 v{r}, s71, v{r}")
            for k in range(0, len(grp), 2): out.append(f"v_pk_add_f32 {v2(grp[k])}, {v2(grp[k])}, {v2(temps[k])}")
            continue
        for r, t in zip(grp, temps): out.append(f"v_mul_f32 v{t}, s70, v{r}")
        for r, t in zip(grp, temps): out.append(f"v_exp_f32 v{t}, v{t} clamp"); out.append(f"v_max_f32 v{r}, s71, v{r}")
        for r, t in zip(grp, temps): out.append(f"v_add_f32 v{r}, v{r}, v{t}")
    return out

def probe(vdst, voff, s_off, srdq=SRDWS):
    if cfg.pmode == 3:
        return f"v_mov_b32 v{vdst}, -1\n s_mov_b64 exec, 3\n v_mov_b32 v{vdst}, 0\n buffer_atomic_add v{vdst}, v{voff}, {sq(srdq)}, {s_off} offen sc0 sc1\n s_mov_b64 exec, -1"
    return f"buffer_load_dword v{vdst}, v{voff}, {sq(srdq)}, {s_off} offen " + ["sc1", "sc0 sc1", "sc0 sc1 nt"][cfg.pmode]
def check(a, name, vdst, voff, s_off, target, srdq=SRDWS):
    a(f"v_cmp_gt_u32 vcc, {target}, v{vdst}\n s_mov_b32 s78, 0\n s_nop 0\n s_cbranch_vccz L_OK_{name}")
    a("PUSHSTATE")
    a.label(f"L_POLL_{name}")
    a(f"""s_sleep {cfg.psleep}
    {probe(vdst, voff, s_off, srdq)}
    s_add_u32 s78, s78, 1
    s_waitcnt vmcnt(0)
    v_cmp_gt_u32 vcc, {target}, v{vdst}
    s_cmp_ge_u32 s78, 0x20000
    s_cbranch_scc1 L_OK_{name}
    s_cbranch_vccnz L_POLL_{name}""")
    a("POPSTATE")
    a.label(f"L_OK_{name}")
def zero_probe(a, vd, vz): a(f"v_mov_b32 v{vz}, 128\n" + probe(vd, vz, "0", SRD4))
def zero_check(a, name, vd, vz): check(a, "z" + name, vd, vz, "0", 1, SRD4)
def zero_wave(a):
    a(f"""v_lshlrev_b32 v8, 4, v1
    v_mov_b32 v16, 0
    v_mov_b32 v17, 0
    v_mov_b32 v18, 0
    v_mov_b32 v19, 0
    s_and_b32 s54, s2, 63
    s_lshl_b32 s54, s54, 11
    s_mov_b32 s79, 1
    s_mov_b32 s78, 1""")
    args_ready(a)
    if cfg.slab == 5: stamp(a, 5, True)
    a(f"""buffer_store_dwordx4 v[16:19], v8, {sq(SRDWS)}, s54 offen sc1
    buffer_store_dwordx4 v[16:19], v8, {sq(SRDWS)}, s54 offen offset:1024 sc1
    s_waitcnt vmcnt(0)
    s_atomic_add s79, s[{P_DBG}:{P_DBG+1}], 0 glc
    s_waitcnt lgkmcnt(0)
    s_cmp_lg_u32 s79, {NZERO-1}
    s_cbranch_scc1 L_ZW
    s_atomic_add s78, s[{P_DBG}:{P_DBG+1}], 128
    s_waitcnt lgkmcnt(0)""")
    a.label("L_ZW")
    if cfg.slab == 5: stamp(a, 6, True)

def signal(a, s_off, nwaves, ldsaddr, narr=1, rstride=128):
    n = signal.n; signal.n += 1
    a(f"""v_mov_b32 v13, {ldsaddr}
    v_mov_b32 v14, 1
    s_add_u32 s68, s{P_WS}, s{s_off}
    s_addc_u32 s69, s{P_WS+1}, 0
    s_mov_b32 s78, 1
    s_waitcnt vmcnt(0)
    s_mov_b64 exec, 1
    ds_add_rtn_u32 v12, v13, v14
    s_mov_b64 exec, -1
    s_waitcnt lgkmcnt(0)
    v_readfirstlane_b32 s79, v12
    s_cmp_lg_u32 s79, {nwaves-1}
    s_cbranch_scc1 L_SIG_{n}""")
    if narr > 1:
        a(f"""s_mov_b32 s79, 1
        s_atomic_add s79, s[68:69], {WS_CNT} glc
        s_waitcnt lgkmcnt(0)
        s_cmp_lg_u32 s79, {narr-1}
        s_cbranch_scc1 L_SIG_{n}""")
    for r in range(cfg.nrep if narr > 1 else 1): a(f"s_atomic_add s78, s[68:69], {r*rstride}")
    a("s_waitcnt lgkmcnt(0)")
    a.label(f"L_SIG_{n}")
signal.n = 0

def conv_ids(a):
    a("""s_and_b32 s52, s2, 7
    s_mul_i32 s52, s52, 20
    s_lshr_b32 s53, s2, 3
    s_sub_u32 s53, s53, 12
    s_add_u32 s52, s52, s53""")
def sprefetch(a, p, s_off, n):
    a(f"s_add_u32 s68, s{p}, s{s_off}\n s_addc_u32 s69, s{p+1}, 0")
    for i in range(n): a(f"s_load_dword s79, s[68:69], {128*i}")
    a("s_waitcnt lgkmcnt(0)")

def last_barrier(a, name, n_younger):
    a(f"s_cmp_eq_u32 s{SLD}, 0\n s_cbranch_scc1 L_LB_{name}\n PUSHSTATE\n s_waitcnt vmcnt({n_younger})\n s_barrier\n s_setprio 0\n POPSTATE")
    a.label(f"L_LB_{name}")

G_ACC, G_B, G_X = 16, 96, 176
G_SLOT = 36864
def slot_off(j): return ((j & 1) ^ 1) * G_SLOT
def slot_half(j): return (j % 4) >> 1
def g_ids(a):
    a(f"""s_and_b32 s52, s2, 7
    s_lshr_b32 s53, s2, 3
    s_and_b32 s57, s52, 3
    s_lshl_b32 s57, s57, 2
    s_and_b32 s54, s53, 3
    s_add_u32 s57, s57, s54
    s_lshr_b32 s52, s52, 2
    s_lshr_b32 s54, s53, 2
    s_lshl_b32 s58, s52, 2
    s_add_u32 s58, s58, s54
    s_lshl_b32 s52, s52, 1
    s_add_u32 s52, s52, s54
    s_add_u32 s52, s52, 4
    s_cmp_ge_u32 s54, 4
    s_cselect_b32 s58, s52, s58
    s_lshl_b32 s66, s{SW}, 12
    s_add_u32 s66, s66, 20480""")

def g_setup_x(a):
    if cfg.rot:
        if cfg.rA < 0:
            a("s_mul_i32 s62, s57, 3\n s_lshl_b32 s59, s58, 1\n s_add_u32 s62, s62, s59")
        else:
            a(f"""s_bfe_u32 s62, s2, 0x20003
            s_mul_i32 s62, s62, {cfg.rA}
            s_lshr_b32 s59, s2, 5
            s_mul_i32 s59, s59, {cfg.rB}
            s_add_u32 s62, s62, s59
            s_and_b32 s59, s2, 3
            s_mul_i32 s59, s59, {cfg.rC}
            s_add_u32 s62, s62, s59
            s_bfe_u32 s59, s2, 0x10002
            s_mul_i32 s59, s59, {cfg.rD}
            s_add_u32 s62, s62, s59""")
        assert all((v * 205) >> 11 == v // 10 for v in range(100))
        a(f"""s_mul_i32 s59, s62, 205
        s_lshr_b32 s59, s59, 11
        s_mul_i32 s59, s59, 10
        s_sub_u32 s62, s62, s59
        s_lshl_b32 s64, s62, 7
        s_mul_i32 s63, s62, {64*3840}""")
    else:
        a("s_mov_b32 s64, 0\n s_mov_b32 s63, 0")
    a(f"""v_lshrrev_b32 v240, 3, v1
    s_lshl_b32 s59, s57, 7
    s_lshl_b32 s54, s{SW}, 5
    s_add_u32 s59, s59, s54
    v_add_u32 v240, s59, v240
    v_mul_u32_u24 v240, 1280, v240
    v_lshrrev_b32 v241, 4, v1
    v_and_b32 v242, 7, v1
    v_xor_b32 v242, v242, v241
    v_lshl_add_u32 v7, v242, 4, v240
    v_xor_b32 v242, 4, v242
    v_lshl_add_u32 v8, v242, 4, v240
    v_add_u32 v8, {10240-1024}, v8
    v_add_u32 v9, {20480-2048}, v7
    v_add_u32 v10, {20480-2048}, v8""")

def g_setup_w(a, hook=None):
    a(f"""s_mul_i32 s59, s58, 160
    s_add_u32 s60, s59, 1280
    s_add_u32 s61, s59, {2560-160}
    s_sub_u32 s59, s58, 8
    s_mul_i32 s59, s59, 320
    s_cmp_ge_u32 s58, 8
    s_cselect_b32 s60, s59, s60
    s_cselect_b32 s61, s59, s61
    s_mul_i32 s59, s{SW}, {16*3840}
    s_add_u32 s60, s60, s59
    s_add_u32 s61, s61, s59
    s_mul_i32 s65, s{SW}, 5120""")
    a(f"v_mov_b32 v244, s60\n v_mov_b32 v245, s61")
    for i in range(5):
        assert all(((64 * i + l) * 3277) >> 16 == (64 * i + l) // 20 for l in range(64))
        a(f"""v_add_u32 v240, {64*i}, v1
        v_mul_u32_u24 v241, 3277, v240
        v_lshrrev_b32 v241, 16, v241
        v_mul_u32_u24 v242, 20, v241
        v_sub_u32 v240, v240, v242""")
        if i == 2: a("v_lshrrev_b32 v242, 4, v1\n v_and_b32 v242, 2, v242\n v_xor_b32 v240, v240, v242")
        if i > 2: a("v_xor_b32 v240, 2, v240")
        a(f"""v_cmp_gt_u32 vcc, 10, v240
        v_mul_u32_u24 v241, 3840, v241
        v_lshl_add_u32 v240, v240, 4, v241
        v_cndmask_b32 v242, v245, v244, vcc""")
        if i in (0, 4): a(f"v_add_u32 v{2+i}, v240, v242")
        else: a(f"v_add_u32 v240, v240, v242\n v_subrev_u32 v{2+i}, {1024*i}, v240")
        if hook: hook(i)

def g_setup2(a):
    a(f"""v_lshrrev_b32 v241, 4, v1
    v_bfe_u32 v242, v1, 2, 2
    v_lshl_add_u32 v242, v241, 3, v242
    v_mul_u32_u24 v242, 320, v242
    v_and_b32 v243, 3, v1
    v_lshl_add_u32 v242, v243, 3, v242
    v_and_b32 v243, 1, v241
    v_lshlrev_b32 v243, 5, v243
    v_add_u32 v9, v242, v243
    v_sub_u32 v10, v242, v243
    v_and_b32 v240, 15, v1
    v_lshrrev_b32 v242, 1, v240
    v_xor_b32 v242, v242, v241
    v_lshlrev_b32 v240, 7, v240
    v_add_u32 v240, s66, v240
    v_lshl_add_u32 v11, v242, 4, v240
    v_xor_b32 v242, 4, v242
    v_lshl_add_u32 v12, v242, 4, v240
    s_mov_b32 s70, {LOG2E}
    s_mov_b32 s71, {EPS}""")
    for k in range(4): a(f"v_add_u32 v{2+k}, {HALF}, v{9+k}")

def g_loadx(j):
    o = [f"s_add_u32 m0, s66, {slot_half(j) * HALF + slot_off(j)}", "s_nop 0"]
    for i in range(4): o.append(f"buffer_load_dwordx4 v{7+i}, {sq(SRD0)}, s64 offen offset:{1024*i} lds ; tag=S{j}")
    o += ["s_add_u32 s64, s64, 128"]
    if cfg.rot: o += ["s_cmp_eq_u32 s64, 1280", "s_cselect_b32 s64, 0, s64"]
    return o
def g_loadw(j):
    base = slot_half(j) * HALF + slot_off(j)
    o = [f"s_add_u32 m0, s65, {base}", "s_nop 0"]
    for i in range(4): o.append(f"buffer_load_dwordx4 v{2+i}, {sq(SRD1)}, s63 offen offset:{1024*i} lds ; tag=S{j}")
    o += [f"s_add_u32 m0, s65, {base + 4096}", "s_nop 0", f"buffer_load_dwordx4 v6, {sq(SRD1)}, s63 offen lds ; tag=S{j}"]
    o += [f"s_add_u32 s63, s63, {64*3840}"]
    if cfg.rot: o += [f"s_cmp_eq_u32 s63, {640*3840}", "s_cselect_b32 s63, 0, s63"]
    return o
def g_xreads(j):
    return [f"ds_read_b128 {v4(G_X + (j&1)*16 + ks*8 + sub*4)}, v{(4 if slot_half(j) else 11)+ks} offset:{slot_off(j) + sub*2048}" for ks in range(2) for sub in range(2)]
def g_reads(t):
    j = t // 2
    o = []
    for n in range(10):
        for h in range(2):
            off = slot_off(j) + (t & 1) * 10240 + h * 1280 + 32 * n
            o.append(f"ds_read_b64_tr_b16 {v2(G_B + (t & 1) * 40 + n * 4 + 2 * h)}, v{(2 if slot_half(j) else 9) + (n & 1)} offset:{off}")
    return o

def role_loader(a):
    a(f"s_setprio {cfg.lprio}")
    g_setup_x(a)
    a("s_waitcnt lgkmcnt(0)")
    srd(a, SRD0, P_X, 2048 * 1280)
    if cfg.slab == 5: stamp(a, 5, True)
    if cfg.x_qd: a(f"s_cmp_lt_u32 s58, 8\n s_cbranch_scc1 L_XQD\n s_sleep {cfg.x_qd}"); a.label("L_XQD")
    a.extend(g_loadx(0))
    srd(a, SRD1, P_W, 640 * 3840)
    seq = []
    for j in range(10): seq += [g_loadx(j), g_loadw(j)]
    pos = 1
    if cfg.wpipe:
        w0 = g_loadw(0)
        parts = [w0[0:3], w0[3:4], w0[4:5], w0[5:6], w0[6:]]
        g_setup_w(a, lambda i: a.extend(parts[i]))
        pos = 2
    else: g_setup_w(a)
    def upto(n):
        nonlocal pos
        while pos < min(n, 20): a.extend(seq[pos]); pos += 1
    upto(cfg.ahead0)
    args_ready(a)
    stamp(a, 1)
    for j in range(9):
        a(f"WAITTAG S{j}")
        if cfg.slab == 2 and j < 8: stamp(a, j + 1, True)
        a("s_barrier")
        if cfg.slab == 1 and j < 8: stamp(a, j + 1, True)
        if j == 0: stamp(a, 2)
        if j == 6: zero_probe(a, 14, 13)
        upto(min(2 * (j + 1) + cfg.ahead, 2 * (j + 4)))
    zero_check(a, "ld", 14, 13)
    a(f"s_lshl_b32 s53, s58, 7\n s_add_u32 s6, s{P_WS}, s53\n s_addc_u32 s7, s{P_WS+1}, 0")
    a(f"s_mov_b32 s{SLD}, 1")
    stamp(a, 3)

def g_main(a, transposed, tail):
    a("s_waitcnt lgkmcnt(0)\n s_barrier")
    stamp(a, 1)
    a.extend(g_xreads(0) + g_reads(0))
    def mfma(t, n, sub):
        j, ks = t // 2, t % 2
        acc = v4(G_ACC + (sub * 10 + n) * 4)
        x = v4(G_X + (j & 1) * 16 + ks * 8 + sub * 4)
        b = v4(G_B + (t & 1) * 40 + n * 4)
        c = "0" if t == 0 else acc
        return f"v_mfma_f32_16x16x32_bf16 {acc}, {b}, {x}, {c}" if transposed else f"v_mfma_f32_16x16x32_bf16 {acc}, {x}, {b}, {c}"
    for t in range(18 if cfg.tail2 else 19):
        j, ks = t // 2, t % 2
        mf = [mfma(t, n, sub) for n in range(10) for sub in range(2)]
        rd = g_reads(t + 1)
        if ks == 1:
            rd = g_xreads(j + 1) + rd
            a.extend(mf[:cfg.bpos]); a("s_waitcnt lgkmcnt(0)" + "\n s_barrier")
            a.extend(interleave(mf[cfg.bpos:], rd))
        else:
            a.extend(interleave(mf, rd))
    if cfg.tail2:
        a.extend(interleave([mfma(18, n, sub) for n in range(5) for sub in range(2)], g_reads(19)))
        tail([mfma(19, n, sub) for n in range(5) for sub in range(2)] + [mfma(t, n, sub) for t in (18, 19) for n in range(5, 10) for sub in range(2)])
    else:
        tail([mfma(19, n, sub) for n in range(10) for sub in range(2)])

B_KS = 8416
def b2_head(a, vd):
    a(f"""s_mul_i32 s57, s56, 205
    s_lshr_b32 s57, s57, 10
    s_mul_i32 s54, s57, 5
    s_sub_u32 s58, s56, s54""")
    assert all((v * 205) >> 10 == v // 5 for v in range(216))
    srd(a, SRD0, P_WO, 640 * 1280)
    a(f"""s_lshl_b32 s59, s58, 8
    s_mul_i32 s53, s{SW}, {160*1280}
    s_add_u32 s59, s59, s53
    s_lshl_b32 s53, s{SW}, 6
    s_mul_i32 s65, s{SW}, 20480
    s_add_u32 s65, s65, s{SLB}
    v_and_b32 v240, 15, v1
    v_lshrrev_b32 v241, 4, v1
    v_lshlrev_b32 v240, 4, v240
    v_xor_b32 v240, s53, v240
    v_mul_u32_u24 v241, {8*1280}, v241
    v_add3_u32 v{vd}, v240, v241, s59""")
def b2_dma(kstep, slot, vd=2):
    return [[f"s_add_u32 m0, s65, {slot*B_KS + i*1056}", f"s_mov_b32 s63, {(32*kstep + i)*1280}",
             f"buffer_load_dwordx4 v{vd}, {sq(SRD0)}, s63 offen lds ; tag=K{kstep}"] for i in range(8)]

def role_q(a):
    a(f"""s_lshl_b32 s9, s57, 3
    s_lshl_b32 s53, s{SW}, 1
    s_add_u32 s9, s9, s53
    s_mul_i32 s9, s9, 20
    s_sub_u32 s53, s58, 8
    s_mul_i32 s54, s53, 5
    s_add_u32 s9, s9, s54
    s_lshl_b32 s9, s9, 10
    s_add_u32 s9, s9, {WS_PQ}
    s_mul_i32 s55, s53, 17
    s_add_u32 s55, s55, s57
    s_lshl_b32 s55, s55, 7
    s_add_u32 s55, s55, {WS_QFLAG}
    v_lshlrev_b32 v6, 4, v1""")
    if cfg.qearly:
        a("s_lshr_b32 s53, s2, 3\n s_sub_u32 s53, s53, 5\n s_and_b32 s56, s2, 7\n s_mul_i32 s56, s56, 27\n s_add_u32 s56, s56, s53")
        b2_head(a, 208)
    def tail(mf):
        bar_arrive(a)
        ep = []
        for c in range(5):
            for sub in range(2):
                r0 = G_ACC + (sub * 10 + 2 * c) * 4
                ep += phi_block(list(range(r0, r0 + 8)), list(range(240, 248)))
                d = G_B + (sub * 5 + c) * 4
                ep += [f"v_cvt_pk_bf16_f32 v{d+k}, v{r0+2*k}, v{r0+2*k+1}" for k in range(4)]
                ep += [f"s_add_u32 s54, s9, {(sub*20+c)*1024}", f"buffer_store_dwordx4 {v4(d)}, v6, {sq(SRDWS)}, s54 offen sc1"]
        n = 2 * (len(mf) - 8)
        a.extend(mf[:8])
        a.extend(interleave(mf[8:], ep[:n]))
        stamp(a, 2)
        if cfg.qswap:
            a("s_cmp_lt_u32 s2, 168\n s_cbranch_scc1 L_QS\n PUSHSTATE")
            bar_wait(a, True)
            conv_head(a, True)
            a("POPSTATE"); a.label("L_QS")
        a.extend(ep[n:])
        if cfg.qearly:
            a("s_cmp_lt_u32 s2, 168\n s_cbranch_scc1 L_QE\n PUSHSTATE")
            bar_wait(a, True)
            for g in b2_dma(0, 0, 208) + b2_dma(1, 1, 208): a.extend(g)
            a("POPSTATE"); a.label("L_QE")
    g_main(a, True, tail)
    stamp(a, 3)
    signal(a, 55, 4, L_SIG)
    stamp(a, 4)

MV = 224
M_IMG = 8448
def mini_head(a):
    srd(a, SRD0, P_H, 640 * 4096)
    a(f"""s_add_u32 s59, s2, 512
    s_lshl_b32 s60, s59, 12
    s_add_u32 s62, s{P_H}, s60
    s_addc_u32 s63, s{P_H+1}, 0
    s_load_dword s64, s[62:63], 0
    s_lshr_b32 s54, s59, 1
    s_lshl_b32 s54, s54, 2
    s_load_dword s65, s[{P_D}:{P_D+1}], s54
    s_lshl_b32 s54, s{SW}, 10
    v_lshl_add_u32 v6, v1, 4, s54
    buffer_load_dwordx4 {v4(MV)}, v6, {sq(SRD0)}, s60 offen
    buffer_load_dwordx4 {v4(MV+4)}, v6, {sq(SRD0)}, s60 offen offset:4
    v_mov_b32 v8, 0
    v_mov_b32 v7, 0
    s_mov_b32 s61, {WS_UFLG + 1024}
    s_mul_i32 s55, s59, {TP}
    s_waitcnt lgkmcnt(0)
    s_add_u32 s62, s55, {WS_UT}
    s_add_u32 s55, s55, {WS_YT}
    s_lshr_b32 s63, s59, 6
    s_lshl_b32 s63, s63, 10
    s_add_u32 s63, s63, {WS_YFLG}
    s_lshl_b32 s53, s65, 16
    s_and_b32 s54, s65, 0xffff0000
    s_bitcmp1_b32 s59, 0
    s_cselect_b32 s53, s54, s53
    s_lshl_b32 s54, s64, 16
    v_mov_b32 v240, s54
    v_add_f32 v240, s53, v240
    s_and_b32 s54, s64, 0xffff0000
    v_mov_b32 v241, s54
    v_cvt_pk_bf16_f32 v{MV+12}, v240, v241
    v_and_b32 v240, 15, v1
    v_lshrrev_b32 v241, 4, v1
    v_add_u32 v242, 1, v240
    v_bfe_u32 v243, v242, 1, 1
    v_mul_u32_u24 v243, {C_HCOPY}, v243
    v_lshrrev_b32 v244, 2, v242
    v_lshl_add_u32 v244, v241, 3, v244
    v_lshl_add_u32 v243, v244, 3, v243
    s_lshr_b32 s53, s{SW}, 1
    s_and_b32 s54, s{SW}, 1
    s_lshl_b32 s53, s53, 7
    s_lshl_b32 s54, s54, 4
    s_add_u32 s53, s53, s54
    s_lshl_b32 s54, s53, 1
    s_add_u32 s54, s54, {M_IMG}
    v_add_u32 v{MV+13}, s54, v243
    v_and_b32 v242, 1, v242
    v_lshlrev_b32 v{MV+14}, 4, v242
    v_lshlrev_b32 v242, 1, v241
    v_sub_u32 v242, v242, v240
    v_add_u32 v242, 15, v242
    s_add_u32 s53, s53, {M_IMG + 2*C_HCOPY}
    v_lshl_add_u32 v{MV+15}, v242, 4, s53
    v_lshrrev_b32 v242, 1, v1
    v_and_b32 v243, 1, v1
    v_mul_u32_u24 v243, {C_UH}, v243
    v_add_u32 v242, v242, v243
    s_lshl_b32 s53, s{SW}, 9
    s_add_u32 s53, s53, {M_IMG + 2*C_HCOPY}
    v_lshl_add_u32 v248, v242, 4, s53
    v_and_b32 v242, 1, v241
    v_mul_u32_u24 v242, {C_UH}, v242
    v_add_u32 v242, v242, v240
    v_lshlrev_b32 v249, 4, v242
    v_and_b32 v242, 1, v1
    v_lshlrev_b32 v242, 4, v242
    v_bfe_u32 v243, v1, 1, 1
    v_mul_u32_u24 v243, {C_HCOPY}, v243
    v_add_u32 v250, v242, v243
    s_lshl_b32 s53, s{SW}, 13
    s_add_u32 s53, s53, {21504 - 8192}
    s_cmp_eq_u32 s{SW}, 0
    s_cselect_b32 s53, 0, s53
    v_lshl_add_u32 v251, v1, 4, s53
    v_bfe_u32 v240, v1, 1, 4
    v_and_b32 v241, 1, v1
    v_lshlrev_b32 v240, 4, v240
    v_lshl_add_u32 v240, v241, 9, v240
    v_lshrrev_b32 v241, 5, v1
    v_lshl_add_u32 v240, v241, 10, v240
    s_lshl_b32 s53, s{SW}, 11
    v_add_u32 v252, s53, v240""")

def mini_conv(a, uld):
    ACC, A, RAW, B = 16, 48, 80, 160
    a(f"""ds_write_b128 v6, {v4(MV)} offset:{M_IMG + 32}
    ds_write_b128 v6, {v4(MV+4)} offset:{M_IMG + C_HCOPY + 32}
    s_cmp_lg_u32 s{SW}, 0
    s_cbranch_scc1 L_MC0
    v_mov_b32 v56, 0
    v_mov_b32 v57, 0
    v_mov_b32 v58, 0
    v_mov_b32 v59, 0
    ds_write_b128 v250, v[56:59] offset:{M_IMG}
    ds_write_b32 v8, v{MV+12} offset:{M_IMG + 32}
    ds_write_b32 v8, v{MV+12} offset:{M_IMG + C_HCOPY + 28}
    ds_write_b128 v249, v[56:59] offset:{M_IMG + 2*C_HCOPY + 128*16}""")
    a.label("L_MC0")
    a("s_waitcnt vmcnt(0)")
    if cfg.sig0:
        a(f"""v_mov_b32 v13, {L_BAR}
        v_mov_b32 v14, 1
        s_mov_b64 exec, 1
        ds_add_rtn_u32 v12, v13, v14 offset:8
        s_mov_b64 exec, -1
        s_mov_b32 s79, 1
        s_waitcnt lgkmcnt(0)
        v_readfirstlane_b32 s53, v12
        s_cmp_lg_u32 s53, 3
        s_cbranch_scc1 L_MS0
        s_atomic_add s79, s[6:7], {WS_CNT} glc""")
        a.label("L_MS0")
    else: gate_arrive(a)
    stamp(a, 4)
    def flag(n):
        a(f"s_waitcnt lgkmcnt(0)\n s_cmp_lg_u32 s79, 15\n s_cbranch_scc1 L_MS{n}\n s_mov_b32 s79, 1")
        if cfg.fmode == 0:
            for r in range(cfg.krep): a(f"s_atomic_add s79, s[6:7], {1024*r}")
            a("s_waitcnt lgkmcnt(0)")
        else:
            a(f"v_lshlrev_b32 v12, 10, v1\n s_mov_b64 exec, {(1 << cfg.krep) - 1}\n global_store_dword v12, v14, s[6:7] sc1\n s_mov_b64 exec, -1")
        a.label(f"L_MS{n}")
    a("s_cmp_eq_u32 s67, 1\n s_cbranch_scc1 L_MU1")
    flag(2)
    check(a, "mu", 7, 8, "s61", 1)
    a(uld + "\n s_waitcnt vmcnt(0)")
    a.label("L_MU1")
    a(f"ds_write_b128 v248, {v4(MV+8)}")
    bar_arrive(a)
    flag(1)
    bar_wait(a, True)
    a(f"s_setprio {cfg.mprio}")
    stamp(a, 5)
    def raw(N1, k): return RAW + N1 * 10 + 2 * k
    rr = [[f"ds_read_b64 {v2(raw(N1, k))}, v{MV+13} offset:{N1*512 + k*8}" for k in ks] for ks in ((0, 1, 2), (3, 4)) for N1 in range(8)]
    br = [[f"ds_read_b128 {v4(B + i*32 + 4*dl)}, v{MV+15} offset:{(14-2*dl)*128 + i*C_UH*16}" for dl in range(8)] for i in range(2)]
    def al(i, N1): return [f"v_alignbit_b32 v{A + 4*N1 + k}, v{raw(N1, 2*i) + k + 1}, v{raw(N1, 2*i) + k}, v{MV+14}" for k in range(4)]
    a.extend(rr[0] + br[0])
    for N1 in range(1, 8): a.extend(rr[N1])
    a.extend(al(0, 0))
    queue = [x for N1 in range(1, 8) for x in al(0, N1)]
    queue = queue[:4] + interleave(queue[4:], br[1] + [x for N1 in range(8) for x in rr[8 + N1]])
    def wr(J): return f"ds_write_b128 v251, {v4(ACC + 4*J)} offset:{1024*J}"
    for i in range(2):
        for N1 in range(8):
            tg = f"v_alignbit_b32 v{A+4*N1+3},"
            pos = min((k for k, q in enumerate(queue) if q.startswith(tg)), default=-1) if not (i == 0 and N1 == 0) else -1
            for q in queue[:pos + 1]: a(q)
            queue = queue[pos + 1:]
            for J in range(N1, 8):
                acc = v4(ACC + 4 * J)
                a(f"v_mfma_f32_16x16x32_bf16 {acc}, {v4(A+4*N1)}, {v4(B + i*32 + 4*(J-N1))}, {'0' if (i == 0 and N1 == 0) else acc}")
                for _ in range(2):
                    if queue: a(queue.pop(0))
            if i == 0: queue += al(1, N1)
            elif N1 >= 2: queue.append(wr(N1 - 2))
    a.extend(queue + [wr(6), wr(7)])
    bar_arrive(a); bar_wait(a, True)
    stamp(a, 6)
    for src in range(4):
        base = 0 if src == 0 else 21504 + 8192 * (src - 1)
        for h in range(2): a(f"ds_read_b128 {v4(48 + 8*src + 4*h)}, v252 offset:{base + 256*h}")
    for r in range(8): a(f"v_add_f32 v{48+r}, v{48+r}, v{56+r}")
    for r in range(8): a(f"v_add_f32 v{64+r}, v{64+r}, v{72+r}")
    for r in range(8): a(f"v_add_f32 v{48+r}, v{48+r}, v{64+r}")
    for d in range(4): a(f"v_cvt_pk_bf16_f32 v{80+d}, v{48+2*d}, v{49+2*d}")
    a(f"buffer_store_dwordx4 v[80:83], v6, {sq(SRDWS)}, s55 offen sc1")
    signal(a, 63, 4, L_SIG, 64)
    stamp(a, 7)

def role_kv(a):
    EX, HB = G_SLOT, 0
    DUMP = HB + 4 * 2048
    AD = 208
    a(f"""v_lshlrev_b32 v240, 4, v1
    s_mul_i32 s52, s{SW}, 10240
    s_add_u32 s52, s52, {EX}
    v_add_u32 v{AD+6}, s52, v240
    s_lshl_b32 s52, s{SW}, 10
    s_add_u32 s52, s52, {EX}
    v_add_u32 v{AD+7}, s52, v240
    v_and_b32 v246, 15, v1
    v_lshrrev_b32 v247, 4, v1
    v_lshlrev_b32 v247, 2, v247
    s_lshl_b32 s52, s{SW}, 2
    v_subrev_u32 v246, s52, v246
    v_subrev_u32 v247, s52, v247
    s_lshl_b32 s53, s{SW}, 11
    v_mov_b32 v245, {DUMP}
    v_lshlrev_b32 v{AD+8}, 2, v1
    v_add_u32 v{AD+9}, s53, v{AD+8}""")
    for k in range(4): a(f"v_mov_b32 v{AD+12+k}, 0x3f803f80")
    k = 0
    for dt in range(2):
        for et in range(2):
            a(f"""v_add_u32 v240, {16*dt}, v247
            v_add_u32 v241, {16*et}, v246
            v_max_u32 v242, v240, v241
            v_cmp_gt_u32 vcc, 20, v242
            v_mul_u32_u24 v241, 80, v241
            v_lshl_add_u32 v241, v240, 2, v241
            v_add_u32 v241, s53, v241
            v_cndmask_b32 v{AD+k}, v245, v241, vcc""")
            k += 1
        a(f"""v_add_u32 v240, {16*dt}, v247
        v_and_b32 v241, 15, v1
        v_mul_u32_u24 v241, 20, v241
        v_max_u32 v242, v240, v241
        v_cmp_gt_u32 vcc, 20, v242
        v_lshlrev_b32 v240, 2, v240
        v_add_u32 v240, s53, v240
        v_add_u32 v240, 1600, v240
        v_cndmask_b32 v{AD+4+dt}, v245, v240, vcc""")
    a(f"""s_lshl_b32 s52, s58, 2
    s_add_u32 s52, s52, s{SW}
    s_mul_i32 s52, s52, 1680
    s_add_u32 s52, s52, {WS_KV}
""")
    a(f"s_lshl_b32 s53, s58, 7\n s_add_u32 s6, s{P_WS}, s53\n s_addc_u32 s7, s{P_WS+1}, 0")
    mini_head(a)
    def tail(mf):
        ep = []
        for t in [0, 1, 5, 2, 6, 7, 3, 8, 9, 4]:
            r0 = G_ACC + t * 4; r1 = G_ACC + (10 + t) * 4
            if t < 5: ep += phi_block(list(range(r0, r0 + 4)) + list(range(r1, r1 + 4)), list(range(240, 248)))
            d = G_B + t * 4
            ep += [f"v_cvt_pk_bf16_f32 v{d}, v{r0}, v{r0+1}", f"v_cvt_pk_bf16_f32 v{d+1}, v{r0+2}, v{r0+3}",
                   f"v_cvt_pk_bf16_f32 v{d+2}, v{r1}, v{r1+1}", f"v_cvt_pk_bf16_f32 v{d+3}, v{r1+2}, v{r1+3}",
                   f"ds_write_b128 v{AD+6}, {v4(d)} offset:{t*1024}"]
        n = 2 * (len(mf) - 6)
        a.extend(mf[:6])
        a.extend(interleave(mf[6:], ep[:n]))
        stamp(a, 2)
        a.extend(ep[n:])
    g_main(a, False, tail)
    uld = f"buffer_load_dwordx4 {v4(MV+8)}, v6, {sq(SRDWS)}, s62 offen sc1"
    bar_arrive(a)
    a("PUSHSTATE\n" + probe(7, 8, "s61") + "\n s_mov_b32 s67, 0\n POPSTATE")
    bar_wait(a, True)
    F = 136
    for rg in range(4):
        for q, off in enumerate([0, 5120, 1024, 6144]):
            a(f"ds_read_b128 {v4(F + rg*16 + [0, 2, 1, 3][q]*4)}, v{AD+7} offset:{rg*10240 + off}")
    D = 16
    for rg in range(4):
        for dt in range(2):
            A = v4(F + rg * 16 + dt * 4)
            acc = v4(D + 16 + dt * 4)
            a(f"v_mfma_f32_16x16x32_bf16 {acc}, {A}, {v4(AD+12)}, {'0' if rg == 0 else acc}")
            for et in range(2):
                acc = v4(D + (dt * 2 + et) * 4)
                a(f"v_mfma_f32_16x16x32_bf16 {acc}, {A}, {v4(F + rg*16 + 8 + et*4)}, {'0' if rg == 0 else acc}")
    for k in [4, 0, 1, 5, 2, 3]: a(f"ds_write_b128 v{AD+k}, {v4(D + 4*k)}")
    for i in range(7): a(f"ds_read_b32 v{48+i}, v{AD+9} offset:{256*i}")
    stamp(a, 3)
    for i in range(7):
        if i == 6: a("s_mov_b32 exec_hi, 0xf")
        a(f"buffer_atomic_add_f32 v{48+i}, v{AD+8}, {sq(SRDWS)}, s52 offen offset:{256*i}")
    a("s_mov_b64 exec, -1")
    a(f"s_waitcnt vmcnt(7)\n PUSHSTATE\n v_cmp_gt_u32 vcc, 1, v7\n s_nop 1\n s_cbranch_vccnz L_MU3\n {uld}\n s_mov_b32 s67, 1\n POPSTATE")
    a.label("L_MU3")
    mini_conv(a, uld)

C_HCOPY = 4224; C_UH = 144; C_WAVE = 2 * C_HCOPY + 2 * C_UH * 16
C_STG = HALF + 4 * C_WAVE; C_STGP = 4160
PV = 224
def WOW():
    if not cfg.wowarm: return ""
    return f"""s_cmp_eq_u32 s{SW8}, 0
    s_cbranch_scc1 L_WW
    s_sub_u32 s52, s2, 192
    s_lshl_b32 s52, s52, 1
    s_add_u32 s52, s52, s{SW8}
    s_sub_u32 s52, s52, 1
    s_mul_i32 s52, s52, 6400
    v_lshlrev_b32 v3, 7, v1
    v_min_u32 v3, 6272, v3
    v_add_u32 v3, s52, v3
    global_load_dword v15, v3, s[{P_WO}:{P_WO+1}]
    s_waitcnt vmcnt(0)
    L_WW:"""
def role_prep(a):
    a(f"""s_and_b32 s52, s2, 7
    s_lshl_b32 s52, s52, 2
    s_bfe_u32 s53, s2, 0x20004
    s_add_u32 s52, s52, s53
    s_lshl_b32 s52, s52, 6
    s_bfe_u32 s65, s2, 0x10003
    s_mul_i32 s53, s65, 320
    s_sub_u32 s54, s{SW8}, 3
    s_lshl_b32 s55, s{SW8}, 1
    s_cmp_ge_u32 s{SW8}, 3
    s_cselect_b32 s54, s54, s55
    s_lshl_b32 s54, s54, 6
    s_add_u32 s53, s53, s54
    v_lshrrev_b32 v240, 3, v1
    v_lshl_add_u32 v241, v240, 3, s52
    v_and_b32 v242, 7, v1
    v_lshl_add_u32 v243, v242, 3, s53
    v_mul_u32_u24 v241, 1280, v241
    v_lshl_add_u32 v{PV}, v243, 1, v241
    s_movk_i32 s55, 5120""")
    def common2(rev):
        a(f"""v_add_u32 v241, s53, v240
        v_mul_u32_u24 v241, {TP}, v241
        v_lshl_add_u32 v{PV+3}, v242, 4, v241
        s_mul_i32 s54, s{SW}, 20480
        s_mul_i32 s63, s{SGRP}, 10240
        s_add_u32 s54, s54, s63
        v_mul_u32_u24 v241, 1040, v242
        v_add_u32 v241, s54, v241""")
        if rev: a("v_sub_u32 v240, 7, v240")
        a(f"""v_lshl_add_u32 v{PV+4}, v240, 4, v241
        v_lshl_add_u32 v{PV+5}, v1, 4, s54
        s_lshl_b32 s64, s52, 1
        s_mov_b32 s70, 0x05040100
        s_mov_b32 s71, 0x07060302""")
    def rds(R): return [f"ds_read_b128 {v4(R+4*i)}, v{PV+5} offset:{1040*i}" for i in range(8)]
    def sts(R, extra): return [x for i in range(8) for x in (f"s_add_u32 s54, s64, {8*TP*i + extra}", f"buffer_store_dwordx4 {v4(R+4*i)}, v{PV+3}, {sq(SRDWS)}, s54 offen sc1")]
    a(f"s_cmp_lt_u32 s{SW8}, 3\n s_cbranch_scc1 L_PQ")
    tag(a, 3)
    a(f"v_subrev_u32 v{PV+1}, 3840, v{PV}\n v_lshlrev_b32 v{PV+2}, 3, v243\n s_waitcnt lgkmcnt(0)")
    srd(a, SRD0, P_K, 2048 * 1280)
    if cfg.x_pd: a(f"s_sleep {cfg.x_pd}")
    K, V, C = 16, 60, 92
    for r in range(3): a(f"buffer_load_dwordx4 {v4(K+4*r)}, v{PV+1}, {sq(SRD0)}, 0 offen offset:{1280*r}")
    for r in range(8): a(f"buffer_load_dwordx4 {v4(K+12+4*r)}, v{PV}, {sq(SRD0)}, {'s55' if r >= 4 else '0'} offen offset:{1280*(r%4)}")
    srd(a, SRD1, P_V, 2048 * 1280); srd(a, SRD3, P_SH, 640 * 8)
    for r in range(4): a(f"buffer_load_dwordx4 {v4(C+4*r)}, v{PV+2}, {sq(SRD3)}, 0 offen offset:{16*r}")
    for r in range(8):
        a(f"buffer_load_dwordx4 {v4(V+4*r)}, v{PV}, {sq(SRD1)}, {'s55' if r >= 4 else '0'} offen offset:{1280*(r%4)}")
    args_ready(a)
    common2(True)
    a(f"s_sub_u32 s64, {WS_UT + 1984*2}, s64\n s_mov_b32 s62, 0xffff0000")
    stamp(a, 1)
    P, T, U, O = 108, 120, 184, 192
    for ch in range(8):
        dw, hi = ch // 2, ch % 2
        sel = "s71" if hi else "s70"
        for s_ in range(-2, 8):
            a(f"v_perm_b32 v{P+s_+2}, v{K+4*(s_+2)+dw}, v{K+4*(s_+3)+dw}, {sel}")
        for s_ in range(8): a(f"v_dot2_f32_bf16 v{T+8*ch+s_}, v{P+s_}, v{C+2*ch+1}, 0")
        for s_ in range(8): a(f"v_dot2_f32_bf16 v{T+8*ch+s_}, v{P+s_+2}, v{C+2*ch}, v{T+8*ch+s_}")
    for ch in range(8):
        dw, hi = ch // 2, ch % 2
        for s_ in range(8):
            a(f"v_and_b32 v{U+s_}, s62, v{V+4*s_+dw}" if hi else f"v_lshlrev_b32 v{U+s_}, 16, v{V+4*s_+dw}")
        for s_ in range(8): a(f"v_mul_f32 v{T+8*ch+s_}, v{T+8*ch+s_}, v{U+s_}")
        o = O + 4 * ch
        for j in range(4): a(f"v_cvt_pk_bf16_f32 v{o+j}, v{T+8*ch+7-2*j}, v{T+8*ch+6-2*j}")
        a(f"ds_write_b128 v{PV+4}, {v4(o)} offset:{128*ch}")
    a.extend(rds(16) + sts(16, 0))
    stamp(a, 2)
    zero_probe(a, 3, 4)
    zero_check(a, "pu", 3, 4)
    a("s_waitcnt vmcnt(0)\n s_barrier")
    stamp(a, 3)
    a(f"s_cmp_eq_u32 s{SGRP}, 1\n s_cbranch_scc1 L_CONV\n s_branch L_PW")
    a.label("L_PQ")
    tag(a, 6)
    a(f"s_cmp_lg_u32 s{SW8}, 2\n s_cbranch_scc1 L_PQ0")
    init_wave(a, "p")
    a.label("L_PQ0")
    args_ready(a)
    a(f"""s_lshl_b32 s65, s65, 10
    s_add_u32 s65, s65, {WS_UFLG}
    s_add_u32 s68, s{P_WS}, s65
    s_addc_u32 s69, s{P_WS+1}, 0
    s_mov_b32 s78, 1
    s_mov_b32 s79, 1
    s_waitcnt vmcnt(0)
    s_barrier
    {WOW()}
    s_cmp_lg_u32 s{SW8}, 0
    s_cbranch_scc1 L_PW
    s_atomic_add s79, s[68:69], {WS_CNT} glc
    s_waitcnt lgkmcnt(0)
    s_cmp_lg_u32 s79, 31
    s_cbranch_scc1 L_PW""")
    for r in range(cfg.nrep): a(f"s_atomic_add s78, s[68:69], {128*r}")
    a("s_waitcnt lgkmcnt(0)")
    a.label("L_PW")
    if cfg.pearly: a("s_branch L_B2")
    a(f"v_mov_b32 v13, {HALF + L_BAR + 8}")
    a.label("L_PWW")
    a("s_sleep 4\n ds_read_b32 v14, v13\n s_waitcnt lgkmcnt(0)\n v_cmp_gt_u32 vcc, 4, v14\n s_nop 1\n s_cbranch_vccnz L_PWW")
    stamp(a, 3)
    a("s_branch L_B2")

def conv_head(a, pr=False):
    a(f"""s_and_b32 s52, s2, 7
    s_lshl_b32 s52, s52, 4
    s_lshr_b32 s53, s2, 3
    s_and_b32 s61, s2, {7 if cfg.nrep == 8 else 0}
    s_sub_u32 s53, s53, 16
    s_add_u32 s57, s52, s53
    s_lshl_b32 s58, s57, 2
    s_add_u32 s58, s58, s{SW}
    s_lshl_b32 s59, s58, 12
    s_mul_i32 s60, s{SW}, {C_WAVE}
    s_add_u32 s60, s60, s{SLB}
    s_add_u32 s52, s{P_H}, s59
    s_addc_u32 s53, s{P_H+1}, 0
    s_load_dword s66, s[52:53], 0
    s_lshr_b32 s54, s58, 1
    s_lshl_b32 s54, s54, 2
    s_load_dword s67, s[{P_D}:{P_D+1}], s54
    s_lshl_b32 s61, s61, 7
    s_cmp_ge_u32 s57, 80
    s_cselect_b32 s54, {0 if cfg.uall else 1024}, 0
    s_add_u32 s61, s61, s54
    s_add_u32 s61, s61, {WS_UFLG}
    s_lshr_b32 s63, s57, 4
    s_mul_i32 s63, s63, {0 if cfg.yall else 1024}
    s_add_u32 s63, s63, {WS_YFLG}
    v_lshlrev_b32 v2, 4, v1
    v_add_u32 v3, 4, v2
    v_mov_b32 v12, 0""")
    if pr: a(probe(15, 12, "s61"))
    srd(a, SRD0, P_H, 640 * 4096)
    a(f"s_add_u32 m0, s60, 32")
    for i in range(4): a(f"buffer_load_dwordx4 v2, {sq(SRD0)}, s59 offen offset:{1024*i} lds ; tag=H")
    a(f"s_add_u32 m0, s60, {C_HCOPY + 32}")
    for i in range(4): a(f"buffer_load_dwordx4 v3, {sq(SRD0)}, s59 offen offset:{1024*i} lds ; tag=H")

def role_conv(a):
    ACC, A, RAW, B, UL = 16, 48, 80, 128, 224
    conv_head(a, True)
    last_barrier(a, "conv", 9)
    a.label("L_CONV2")
    tag(a, 4)
    stamp(a, 4)
    a(f"s_mul_i32 s55, s58, {TP}\n s_add_u32 s65, s55, {WS_UT}\n s_add_u32 s55, s55, {WS_YT}")
    uld = [f"buffer_load_dwordx4 {v4(UL+4*i)}, v2, {sq(SRDWS)}, s65 offen offset:{1024*i} sc1" for i in range(4)]
    fin_strip(a); fin_head(a)
    a(f"""v_and_b32 v8, 15, v1
    v_lshrrev_b32 v9, 4, v1
    v_add_u32 v10, 1, v8
    v_bfe_u32 v11, v10, 1, 1
    v_mul_u32_u24 v11, {C_HCOPY}, v11
    v_lshrrev_b32 v13, 2, v10
    v_lshl_add_u32 v13, v9, 3, v13
    v_lshl_add_u32 v11, v13, 3, v11
    v_add_u32 v4, s60, v11
    v_and_b32 v10, 1, v10
    v_lshlrev_b32 v5, 4, v10
    v_lshlrev_b32 v10, 1, v9
    v_sub_u32 v10, v10, v8
    v_add_u32 v10, 15, v10
    v_lshlrev_b32 v10, 4, v10
    v_add_u32 v6, s60, v10
    v_lshrrev_b32 v10, 1, v1
    v_and_b32 v11, 1, v1
    v_mul_u32_u24 v11, {C_UH}, v11
    v_add_u32 v10, v10, v11
    v_lshlrev_b32 v10, 4, v10
    v_add_u32 v7, s60, v10
    v_mov_b32 v16, 0
    v_mov_b32 v17, 0
    v_mov_b32 v18, 0
    v_mov_b32 v19, 0
    v_and_b32 v10, 1, v9
    v_mul_u32_u24 v10, {C_UH}, v10
    v_add_u32 v10, v10, v8
    v_lshl_add_u32 v20, v10, 4, s60
    v_and_b32 v10, 1, v1
    v_lshlrev_b32 v10, 4, v10
    v_bfe_u32 v11, v1, 1, 1
    v_mul_u32_u24 v11, {C_HCOPY}, v11
    v_add3_u32 v21, v10, v11, s60
    v_lshlrev_b32 v10, 5, v8
    v_lshl_add_u32 v8, v9, 3, v10""")
    a(f"""s_waitcnt lgkmcnt(0)
    s_lshl_b32 s52, s66, 16
    s_lshl_b32 s53, s67, 16
    s_and_b32 s54, s67, 0xffff0000
    s_bitcmp1_b32 s58, 0
    s_cselect_b32 s53, s54, s53
    s_and_b32 s54, s66, 0xffff0000
    v_mov_b32 v10, s52
    v_add_f32 v10, s53, v10
    v_mov_b32 v11, s54
    v_cvt_pk_bf16_f32 v10, v10, v11
    v_mov_b32 v11, s60
    WAITTAG H
    v_cmp_gt_u32 vcc, 1, v15
    s_mov_b32 s62, 0
    s_nop 0
    s_cbranch_vccnz L_CU0
    PUSHSTATE
    {chr(10).join(uld)}
    s_mov_b32 s62, 1
    s_branch L_CU1
    POPSTATE
    L_CU0:
    {probe(15, 12, "s61")}
    L_CU1:
    ds_write_b128 v21, v[16:19]
    ds_write_b32 v11, v10 offset:32
    ds_write_b32 v11, v10 offset:{C_HCOPY+28}
    ds_write_b128 v20, v[16:19] offset:{2*C_HCOPY + 128*16}""")
    def raw_slots(i):
        return [(0, 1, 2), (2, 0, 1), (1, 2, 0), (0, 1, 2)][i]
    def raw_reads(it, N1):
        N0, i = it >> 2, it & 3
        sl = raw_slots(i)
        return [f"ds_read_b64 {v2(RAW + N1*6 + 2*sl[k])}, v4 offset:{(2*N1+N0)*256 + (2*i+k)*8}" for k in range(0 if i == 0 else 1, 3)]
    def aligns(it, N1):
        sl = raw_slots(it & 3)
        d = [RAW + N1 * 6 + 2 * sl[0], RAW + N1 * 6 + 2 * sl[0] + 1, RAW + N1 * 6 + 2 * sl[1], RAW + N1 * 6 + 2 * sl[1] + 1, RAW + N1 * 6 + 2 * sl[2]]
        return [f"v_alignbit_b32 v{A + 4*N1 + k}, v{d[k+1]}, v{d[k]}, v5" for k in range(4)]
    def b_reads(it):
        N0, i = it >> 2, it & 3
        return [f"ds_read_b128 {v4(B + (it&1)*32 + 4*dl)}, v6 offset:{2*C_HCOPY + (14-(2*dl-N0))*128 + (i>>1)*16 + (i&1)*C_UH*16}" for dl in range(8)]
    for N1 in range(8): a.extend(raw_reads(0, N1))
    for N1 in range(8):
        a.extend(aligns(0, N1)); a.extend(raw_reads(1, N1))
    a("s_cmp_eq_u32 s62, 1\n s_cbranch_scc1 L_CU2\n PUSHSTATE")
    check(a, "convu", 15, 12, "s61", 1)
    a.extend(uld)
    a("POPSTATE"); a.label("L_CU2")
    stamp(a, 5)
    a("s_waitcnt vmcnt(0)")
    for i in range(4): a(f"ds_write_b128 v7, {v4(UL+4*i)} offset:{2*C_HCOPY + 512*i}")
    a.extend(b_reads(0))
    gate_arrive(a)
    a(f"s_setprio {cfg.vprio}")
    stamp(a, 6)
    def epi(J):
        T = 80 + 2 * J
        o = [f"v_cvt_pk_bf16_f32 v{T}, v{ACC+4*J}, v{ACC+4*J+1}", f"v_cvt_pk_bf16_f32 v{T+1}, v{ACC+4*J+2}, v{ACC+4*J+3}", f"ds_write_b64 v9, {v2(T)} offset:{512*J}"]
        if J & 1: o.append(f"ds_read_b128 {v4(96+2*(J-1))}, v10 offset:{512*(J-1)} ; y")
        if J in (3, 5): o.append(ysto((J - 3) // 2))
        return o
    def ysto(i): return f"buffer_store_dwordx4 {v4(96+4*i)}, v2, {sq(SRDWS)}, s55 offen offset:{1024*i} sc1"
    a("v_add_u32 v9, s60, v8\n v_add_u32 v10, s60, v2")
    queue = []
    for it in range(8):
        if it == 7: a(f"s_setprio {cfg.eprio}")
        if it < 7: queue += b_reads(it + 1)
        if it == cfg.qit:
            a("s_cmp_ge_u32 s56, 10\n s_cbranch_scc1 L_NQ\n PUSHSTATE"); a.extend(fin_qloads()); a("POPSTATE"); a.label("L_NQ")
        for N1 in range(8):
            tg = f"v_alignbit_b32 v{A+4*N1+3},"
            pos = max((k for k, q in enumerate(queue) if q.startswith(tg)), default=-1)
            for q in queue[:pos + 1]: a(q)
            queue = queue[pos + 1:]
            for J in range(N1, 8):
                acc = v4(ACC + 4 * J)
                c = "0" if (it == 0 and N1 == 0) else acc
                a(f"v_mfma_f32_16x16x32_bf16 {acc}, {v4(A+4*N1)}, {v4(B + (it&1)*32 + 4*(J-N1))}, {c}")
                if not cfg.mix:
                    for _ in range(2):
                        if queue: a(queue.pop(0))
                elif queue:
                    q = queue.pop(0); a(q)
                    if queue:
                        if q.startswith("ds_") and queue[0].startswith("ds_"):
                            k = next((k for k, x in enumerate(queue) if x.startswith("v_alignbit")), None)
                            if k is not None: a(queue.pop(k))
                            elif len(queue) > cfg.mix * 6: a(queue.pop(0))
                        elif q.startswith("v_alignbit") and queue[0].startswith("v_alignbit"):
                            k = next((k for k, x in enumerate(queue) if x.startswith("ds_read_b128") and not x.endswith("; y")), None)
                            a(queue.pop(k if k is not None else 0))
                        else: a(queue.pop(0))
            if it == 7 and N1 >= 2: queue += epi(N1 - 2)
            if it < 7: queue += aligns(it + 1, N1)
            if it < 6: queue += raw_reads(it + 2, N1)
        assert not any(q.startswith("ds_read_b128") and not q.endswith("; y") for q in queue)
    a.extend(queue)
    stamp(a, 7)
    a.extend(epi(6) + epi(7) + [ysto(2), ysto(3)])
    stamp(a, 8)
    signal(a, 63, 4, L_BAR + 12, 16)

FV = 240
def fin_head(a):
    a(f"""s_and_b32 s52, s2, 7
    s_lshl_b32 s52, s52, 2
    s_add_u32 s52, s52, s{SW}
    s_lshl_b32 s52, s52, 6
    s_lshl_b32 s53, s56, 6
    v_lshrrev_b32 v244, 3, v1
    v_lshl_add_u32 v245, v244, 3, s52
    v_and_b32 v246, 7, v1
    v_lshl_add_u32 v247, v246, 3, s53
    v_mul_u32_u24 v245, 1280, v245
    v_lshl_add_u32 v247, v247, 1, v245
    v_add_u32 v{FV}, v247, v245
    v_add_u32 v245, s53, v244
    v_mul_u32_u24 v245, {TP}, v245
    v_lshl_add_u32 v{FV+1}, v246, 4, v245
    v_mul_u32_u24 v245, 1040, v246
    v_lshl_add_u32 v245, v244, 4, v245
    v_add_u32 v{FV+2}, s60, v245
    s_lshl_b32 s64, s52, 1
    s_add_u32 s64, s64, {WS_YT}
    s_movk_i32 s53, 5120""")
    srd(a, SRD2, P_Q, 2048 * 1280); srd(a, SRD1, P_OUT, 2048 * 2560)
    a("s_cmp_ge_u32 s56, 10\n s_cselect_b32 s70, 0x40000000, 0\n s_add_u32 s71, s70, 5120")
def fin_qloads(): return [f"buffer_load_dwordx4 {v4(192+4*r)}, v247, {sq(SRD2)}, {'s71' if r >= 4 else 's70'} offen offset:{1280*(r%4)}" for r in range(8)]
def fin_strip(a):
    a(f"""s_lshr_b32 s53, s2, 3
    s_mul_i32 s54, s{SGRP}, 5
    s_add_u32 s56, s53, s54
    s_sub_u32 s56, s56, 16
    s_cmp_lt_u32 s53, 21
    s_cselect_b32 s56, s56, 15""")
def fin_g0(a):
    fin_strip(a)
    a(f"s_mul_i32 s60, s{SW}, 8448\n s_add_u32 s60, s60, 16384\n v_lshl_add_u32 v10, v1, 4, s60")
    fin_head(a)
    a.extend(fin_qloads())
    bar_wait(a)
    a("s_waitcnt vmcnt(0)\n s_branch L_FINR")

def role_fin(a):
    Q, QF, Y, T, L = 192, 48, 112, 144, 16
    a(f"""s_setprio {cfg.fprio}
    s_and_b32 s61, s2, {7 if cfg.nrep == 8 else 0}
    s_lshl_b32 s61, s61, 7
    s_mul_i32 s54, s56, {0 if cfg.yall else 1024}
    s_add_u32 s61, s61, s54
    s_add_u32 s61, s61, {WS_YFLG}
    s_mov_b32 s62, 0xffff0000
    v_mov_b32 v12, 0""")
    a(probe(15, 12, "s61"))
    for r in range(8):
        for d in range(4):
            a(f"v_lshlrev_b32 v{QF+8*r+2*d}, 16, v{Q+4*r+d}\n v_and_b32 v{QF+8*r+2*d+1}, s62, v{Q+4*r+d}")
    stamp(a, 1)
    check(a, "fin", 15, 12, "s61", 1)
    stamp(a, 2)
    for i in range(8): a(f"s_add_u32 s54, s64, {8*TP*i}\n buffer_load_dwordx4 {v4(L+4*i)}, v{FV+1}, {sq(SRDWS)}, s54 offen sc1")
    for i in range(8): a(f"ds_write_b128 v10, {v4(L+4*i)} offset:{1040*i}")
    for ch in range(8): a(f"ds_read_b128 {v4(Y+4*ch)}, v{FV+2} offset:{128*ch}")
    stamp(a, 3)
    a("s_mov_b32 s54, 0")
    for r in range(8):
        t = T + 8 * (r & 1)
        for ch in range(8):
            src = Y + 4 * ch + r // 2
            a(f"v_and_b32 v{t+ch}, s62, v{src}" if r & 1 else f"v_lshlrev_b32 v{t+ch}, 16, v{src}")
        for ch in range(8): a(f"v_mul_f32 v{t+ch}, v{t+ch}, v{QF+8*r+ch}")
        o = 160 + 4 * r
        for d in range(4): a(f"v_cvt_pk_bf16_f32 v{o+d}, v{t+2*d}, v{t+2*d+1}")
        a(f"buffer_store_dwordx4 {v4(o)}, v{FV}, {sq(SRD1)}, s54 offen{OSC(cfg.fsc)}")
        if r < 7: a("s_add_u32 s54, s54, 2560")

def b2_tables(hf):
    num = {}
    for t in range(5 * hf, 5 * hf + 5):
        hs = {e // 20 for e in range(16 * t, 16 * t + 16)}
        dts = [dt for dt in range(10) if hs & {d // 20 for d in range(16 * dt, 16 * dt + 16)}]
        ch = {}
        for dt in dts: ch.setdefault(dt // 2, []).append(dt)
        num[t] = sorted(ch.items())
    ch = {}
    for dt in range(5 * hf, 5 * hf + 5): ch.setdefault(dt // 2, []).append(dt)
    return num, sorted(ch.items())

NS = 3
def role_b2(a):
    PQ, KV, RAW = 16, 108, 180
    WA = [76 + 4 * n for n in range(8)]
    WB = [228 + 4 * n for n in range(7)] + [8]
    ACC = 108
    U = [180, 204]
    b2_head(a, 2)
    dma = b2_dma
    def wreads(slot, dst):
        return [f"ds_read_b64_tr_b16 {v2(dst[n] + 2*h)}, v0 offset:{slot*B_KS + h*512 + 32*n}" for n in range(8) for h in range(2)]
    if not cfg.qearly: bar_wait(a)
    for g in dma(0, 0): a.extend(g)
    last_barrier(a, "b2", 8)
    for g in dma(1, 1): a.extend(g)
    a.label("L_B2Q")
    a("v_and_b32 v8, 15, v1\n v_lshrrev_b32 v9, 4, v1")
    a(f"s_setprio {cfg.cprio}")
    srd(a, SRD1, P_OUT, 2048 * 2560)
    a(f"""v_bfe_u32 v10, v1, 2, 3
    v_mul_u32_u24 v10, 1056, v10
    v_lshrrev_b32 v11, 5, v1
    v_lshl_add_u32 v10, v11, 8, v10
    v_and_b32 v11, 3, v1
    v_lshl_add_u32 v10, v11, 3, v10
    v_add_u32 v0, s65, v10
    s_add_u32 s64, s65, {2*B_KS}
    v_lshlrev_b32 v9, 3, v9
    v_mul_u32_u24 v3, 40, v8
    v_add3_u32 v3, v3, v9, s64
    v_mul_u32_u24 v4, 800, v11
    v_add3_u32 v4, v4, v9, s64
    v_lshlrev_b32 v5, 4, v1
    v_lshlrev_b32 v6, 3, v1
    v_add_u32 v6, s64, v6
    v_add_u32 v7, 4096, v5
    s_mul_i32 s52, s57, 3
    s_lshr_b32 s53, s52, 3
    s_add_u32 s54, s52, 2
    s_min_u32 s54, s54, 127
    s_lshr_b32 s54, s54, 3
    s_sub_u32 s54, s54, s53
    s_lshl_b32 s54, s54, 7
    v_and_b32 v12, 1, v1
    v_mul_u32_u24 v13, {0 if cfg.kvall else 128}, v12
    v_mul_u32_u24 v12, s54, v12
    s_mul_i32 s60, s{SW}, 17
    s_add_u32 s60, s60, s53
    s_lshl_b32 s60, s60, 7
    s_add_u32 s60, s60, {WS_QFLAG}
    s_and_b32 s61, s2, {cfg.krep - 1}
    s_lshl_b32 s61, s61, 10
    s_mul_i32 s53, s{SW}, {0 if cfg.kvall else 256}
    s_add_u32 s61, s61, s53
    s_mul_i32 s52, s52, 20480
    s_mul_i32 s53, s{SW}, 5120
    s_add_u32 s52, s52, s53
    s_add_u32 s52, s52, {WS_PQ}
    s_mul_i32 s62, s{SW}, {8*1680}
    s_add_u32 s62, s62, {WS_KV}
    s_mov_b32 s73, {EPS}
    s_mov_b32 s66, 0xffff0000
    s_mov_b32 s67, -1
    s_mov_b32 s68, 0
    s_mov_b32 s69, -1
    s_mov_b32 s70, 0
    s_mov_b32 s71, 0xffff0000""")
    if cfg.qpre: a(probe(14, 12, "s60"))
    for r in range(KV, KV + 72): a(f"v_mov_b32 v{r}, 0")
    def allmasks():
        ms = []
        num, den = b2_tables(0)
        for (kind, t, dt) in [("z", 0, dt) for c, dts in den for dt in dts] + [("n", t, dt) for t in num for c, dts in num[t] for dt in dts]:
            m = sum(1 << l for l in range(64) if (16 * dt + 4 * (l >> 4)) // 20 == ((16 * t + (l & 15)) // 20 if kind == "n" else (l & 3)))
            if m not in ms and m != (1 << 64) - 1: ms.append(m)
        return ms
    free = [4, 10, 12, 14, 16, 18, 36, 38, 40, 42, 44, 46, 20, 24]
    mreg = dict(zip(allmasks(), free)) if cfg.smask else {}
    for m, r in mreg.items(): a(f"s_mov_b32 s{r}, {m & 0xffffffff:#x}\n s_mov_b32 s{r+1}, {m >> 32:#x}")
    def setmask(m):
        if m == (1 << 64) - 1: return ["s_mov_b64 exec, -1"]
        if m in mreg: return [f"s_mov_b64 exec, s[{mreg[m]}:{mreg[m]+1}]"]
        return [f"s_mov_b32 exec_lo, {m & 0xffffffff:#x}", f"s_mov_b32 exec_hi, {m >> 32:#x}"]
    def pqpart(sfx=""):
        a(probe(14, 12, "s60"))
        stamp(a, 5)
        check(a, "b2q" + sfx, 14, 12, "s60", 1)
        pqloads()
    def pqloads():
        for sub in range(NS):
            for c in range(5):
                a(f"buffer_load_dwordx4 {v4(PQ + (sub*5+c)*4)}, v{5 if c < 4 else 7}, {sq(SRDWS)}, s52 offen offset:{1024*(c%4)} sc1")
            if sub == 0: a("s_add_u32 s52, s52, 20480")
            if sub == 1: a("s_cmp_eq_u32 s57, 42\n s_cselect_b32 s53, 0, 20480\n s_add_u32 s52, s52, s53")
    a("WAITTAG K0")
    a.extend(wreads(0, WA))
    a("WAITTAG K1")
    a.extend(wreads(1, WB))
    a("s_waitcnt lgkmcnt(0)")
    a(f"s_mov_b32 s79, 1\n s_mov_b32 s8, 0\n s_sub_u32 s54, {HALF + L_BAR + 8}, s{SLB}\n v_mov_b32 v15, s54")
    if cfg.qpre:
        a(f"v_cmp_gt_u32 vcc, 1, v14\n s_sub_u32 s53, s2, 128\n s_cmp_ge_u32 s53, 64\n s_cbranch_scc1 L_QP\n s_cbranch_vccnz L_GT\n PUSHSTATE\n s_mov_b32 s8, 1")
        pqloads()
        a("s_branch L_GT\n POPSTATE"); a.label("L_QP")
    a(f"""s_cmp_ge_u32 s2, 192
    s_cbranch_scc1 L_GTW
    s_cmp_eq_u32 s{SLD}, 0
    s_cbranch_scc1 L_GT
    {'s_branch L_GTW' if cfg.nogq & 1 else ''}
    PUSHSTATE""")
    a.label("L_GQ")
    a(f"""{probe(14, 12, "s60")}
    s_waitcnt vmcnt(0)
    ds_read_b32 v16, v15
    v_cmp_gt_u32 vcc, 1, v14
    s_nop 1
    s_cbranch_vccz L_GQ1
    s_waitcnt lgkmcnt(0)
    v_cmp_gt_u32 vcc, 4, v16
    s_nop 1
    s_cbranch_vccz L_GO
    s_sleep 1
    s_branch L_GQ""")
    a.label("L_GQ1")
    a("s_waitcnt lgkmcnt(0)\n s_mov_b32 s8, 1")
    pqloads()
    a("POPSTATE")
    a.label("L_GTW")
    a("ds_read_b32 v14, v15\n s_waitcnt lgkmcnt(0)\n v_cmp_gt_u32 vcc, 4, v14\n s_nop 1\n s_cbranch_vccz L_GO\n s_sleep 1\n s_branch L_GTW")
    a.label("L_GO")
    if not cfg.sig0:
        a(f"s_cmp_eq_u32 s{SLD}, 0\n s_cbranch_scc1 L_GT\n s_cmp_lg_u32 s{SW}, 0\n s_cbranch_scc1 L_GT")
        a(f"s_atomic_add s79, s[6:7], {WS_CNT} glc")
    if cfg.nogq & 2:
        a(f"s_cmp_eq_u32 s{SLD}, 0\n s_cbranch_scc1 L_GT\n PUSHSTATE\n s_mov_b32 s8, 1"); pqpart("z"); a("POPSTATE")
    a.label("L_GT")
    d23 = dma(2, 0) + dma(3, 1)
    for g in d23[:cfg.sdel]: a.extend(g)
    if not cfg.sig0: a(f"s_waitcnt lgkmcnt(0)\n s_cmp_lg_u32 s79, 15\n s_cbranch_scc1 L_GT2\n s_mov_b32 s79, 1\n s_atomic_add s79, s[6:7], 0")
    a.label("L_GT2")
    for g in d23[cfg.sdel:]: a.extend(g)
    S2 = 4 * C_WAVE; S2W = 7360
    assert S2 + 4 * S2W <= L_BAR
    a(f"s_sub_u32 s59, {HALF + S2}, s{SLB}\n s_mul_i32 s53, s{SW}, {S2W}\n s_add_u32 s59, s59, s53")
    a(f"s_add_u32 s55, s59, {7*1056}\n s_sub_u32 s55, s55, s64\n s_and_b32 s55, s55, 255\n s_add_u32 s55, s55, s64")
    for i in range(7): a(f"s_add_u32 m0, s59, {i*1056}\n s_mov_b32 s63, {(128 + i)*1280}\n buffer_load_dwordx4 v2, {sq(SRD0)}, s63 offen lds")
    a("s_waitcnt lgkmcnt(0)")
    if True:
        a(f"s_cmp_lg_u32 s8, 0\n s_cbranch_scc1 L_PQG\n PUSHSTATE"); pqpart("y"); a("POPSTATE"); a.label("L_PQG")
    a(probe(14, 13, "s61"))
    check(a, "b2kv", 14, 13, "s61", 1)
    stamp(a, 6)
    raw = [RAW + 4 * i for i in range(12)] + [KV + 64, KV + 68]
    for hf in range(2):
        for i in range(7):
            a(f"buffer_load_dwordx4 {v4(raw[hf*7+i])}, v{5 if i < 4 else 7}, {sq(SRDWS)}, s62 offen offset:{1024*(i%4)} sc1")
        if hf == 0: a("s_add_u32 s62, s62, 6720")
    for r in range(4): a(f"v_mov_b32 v{12+r}, s73")
    qi = {}
    tabs = [b2_tables(0), b2_tables(1)]
    def build_half(hf):
        o = []
        for i in range(7):
            r = raw[hf * 7 + i]
            o += [f"v_cvt_pk_bf16_f32 v{r}, v{r}, v{r+1}", f"v_cvt_pk_bf16_f32 v{r+1}, v{r+2}, v{r+3}", f"ds_write_b64 v6, {v2(r)} offset:{512*i}"]
        if hf == 1: o += [f"v_mov_b32 v{KV+64+k}, 0" for k in range(8)]
        num, den = tabs[hf]
        quads = [("z", hf, dt) for c, dts in den for dt in dts] + [("n", t, dt) for t in num for c, dts in num[t] for dt in dts]
        assert len(quads) == 18
        rd = []
        for (kind, t, dt) in quads:
            q = len(qi); qi[(kind, t, dt)] = q
            mask = 0
            for l in range(64):
                i, g = l & 15, l >> 4
                hd = (16 * dt + 4 * g) // 20
                he = (16 * t + i) // 20 if kind == "n" else (i & 3) + 4 * t
                if hd == he: mask |= 1 << l
            off = 640 * (t - 5 * hf) + 32 * (dt - 5 * hf) if kind == "n" else 800 + 32 * (dt - 5 * hf)
            rd.append(setmask(mask) + [f"ds_read_b64 {v2(KV + 2*q)}, v{3 if kind == 'n' else 4} offset:{off}"])
        return o, rd
    def omf(sub, hf, T):
        o = []
        num, den = tabs[hf]
        def one(kind, t, lst, acc):
            lst = sorted(lst, key=lambda x: len(x[1]))
            for k, (c, dts) in enumerate(lst):
                src = v4(acc) if k else ("v[12:15]" if kind == "z" else "0")
                kv = KV + 2 * qi[(kind, t, dts[0])]
                pq = PQ + (sub * 5 + c) * 4
                key = (min(k, 1), 0 if kind == "z" else 1, t, k)
                if len(dts) == 2: o.append((key, f"v_mfma_f32_16x16x32_bf16 {v4(acc)}, {v4(kv)}, {v4(pq)}, {src}"))
                else: o.append((key, f"v_mfma_f32_16x16x16_bf16 {v4(acc)}, {v2(kv)}, {v2(pq + 2*(dts[0]&1))}, {src}"))
        one("z", hf, den, T)
        for t in num: one("n", t, num[t], T + 4 + 4 * (t - 5 * hf))
        return [x for _, x in sorted(o)]
    def ovalu(sub, hf, T):
        o = []
        for r in range(4): o.append(f"v_rcp_f32 v{T+r}, v{T+r}")
        for tl in range(5):
            t = tl + 5 * hf
            h0 = (16 * tl) // 20; h1 = (16 * tl + 12) // 20
            rc = T + h0; n = T + 4 + 4 * tl
            if h0 != h1:
                g0 = min(g for g in range(4) if (16 * tl + 4 * g) // 20 == h1)
                o.append(f"v_cndmask_b32 v{rc}, v{T+h0}, v{T+h1}, s[{64+2*g0}:{65+2*g0}]")
            for r in range(4): o.append(f"v_mul_f32 v{n+r}, v{n+r}, v{rc}")
            d = PQ + (sub * 5 + t // 2) * 4 + 2 * (t & 1)
            o.append(f"v_cvt_pk_bf16_f32 v{d}, v{n}, v{n+1}")
            o.append(f"v_cvt_pk_bf16_f32 v{d+1}, v{n+2}, v{n+3}")
        return o
    def acc(sub, n): return ACC + (n * NS + sub) * 4
    def g2(k, W, ns=range(8)):
        return [f"v_mfma_f32_16x16x32_bf16 {v4(acc(sub, n))}, {v4(W[n])}, {v4(PQ + (sub*5+k)*4)}, {'0' if k == 0 else v4(acc(sub, n))}" for n in ns for sub in range(NS)]
    units = [(s_, h) for h in range(2) for s_ in range(NS)]
    nu = len(units)
    w0, r0 = build_half(0)
    a.extend(w0)
    for g in r0: a.extend(g)
    a("s_mov_b64 exec, -1")
    w1, r1 = build_half(1)
    a.extend(w1)
    r1g = [r1[k] + r1[k + 1] + ["s_mov_b64 exec, -1"] for k in range(0, 18, 2)]
    a.extend(interleave(omf(*units[0], U[0]), r1g, 1, 11))
    stamp(a, 7)
    for u in range(1, nu):
        a.extend(interleave(omf(*units[u], U[u & 1]), ovalu(*units[u - 1], U[(u - 1) & 1]), 2))
        if u == 1: a(f"s_waitcnt lgkmcnt(0)\n s_mov_b32 m0, s55\n s_mov_b32 s63, {135*1280}\n buffer_load_dwordx4 v2, {sq(SRD0)}, s63 offen lds ; tag=K4")
    a.extend(interleave(g2(0, WA), ovalu(*units[nu - 1], U[(nu - 1) & 1]), 2))
    k1 = g2(1, WB)
    a.extend(interleave(k1, wreads(0, WA), 0, 18))
    ad = []
    for gam in range(1, 4):
        ad += [f"s_xor_b32 s52, s{SW}, {gam}", "s_mul_i32 s52, s52, 20480", f"s_add_u32 s52, s52, {(gam-1)*6144}", f"s_add_u32 s52, s52, s{SLB}", f"v_add_u32 v{203+gam}, s52, v5"]
    ad += f"""s_sub_u32 s59, s59, s65
    s_sub_u32 s55, s55, s65
    s_sub_u32 s55, s55, {7*1056}
    v_add_u32 v208, s59, v0
    v_add_u32 v209, s55, v0
    v_bfe_u32 v210, v1, 2, 3
    v_cmp_eq_u32 vcc, 7, v210
    v_mov_b32 v211, 0
    v_mov_b32 v211, 0
    v_cndmask_b32 v208, v208, v209, vcc
    v_add_u32 v207, s65, v5
    s_add_u32 s53, s65, 18432
    v_and_b32 v12, 15, v1
    v_mul_u32_u24 v12, 80, v12
    v_lshrrev_b32 v3, 4, v1
    v_lshl_add_u32 v12, v3, 3, v12
    v_add_u32 v12, s53, v12
    v_lshrrev_b32 v3, 2, v1
    v_and_b32 v4, 3, v1
    v_lshlrev_b32 v4, 4, v4
    v_mul_u32_u24 v15, 80, v3
    v_add3_u32 v15, v15, v4, s53
    s_mul_i32 s52, s57, 48
    v_add_u32 v3, s52, v3
    v_mul_u32_u24 v3, 2560, v3
    v_add_u32 v3, v3, v4
    s_lshl_b32 s52, s58, 8
    s_lshl_b32 s54, s{SW}, 6
    s_add_u32 s52, s52, s54
    s_add_u32 s52, s52, 1280""".split("\n")
    a.extend(interleave(interleave(g2(2, WA), wreads(1, WB), 0, 16), ad))
    pre = g2(3, WB, [0, 1, 2, 3])
    a("WAITTAG K4")
    rd4 = [x.replace(", v0 ", ", v208 ") for x in wreads(0, WA)]; rd4 = rd4[4:] + rd4[:4]
    a.extend(interleave(pre, rd4))
    def wr(gam): return [f"ds_write_b128 v207, {v4(ACC + (gam*6+k)*4)} offset:{(gam-1)*6144 + 1024*k}" for k in range(6)]
    a.extend(g2(4, WA, [2, 3]))
    a.extend(interleave(g2(3, WB, [4, 5]) + g2(4, WA, [4, 5]), wr(1), 2))
    a.extend(interleave(g2(3, WB, [6, 7]) + g2(4, WA, [6, 7]), wr(2), 2))
    a.extend(interleave(g2(4, WA, [0, 1]), wr(3), 2))
    stamp(a, 8)
    bar_arrive(a); bar_wait(a, True)
    R = 16
    order = [n * NS + sub for sub in range(NS) for n in range(2)]
    for k in order:
        for gam in range(3): a(f"ds_read_b128 {v4(R + (k*3+gam)*4)}, v{204+gam} offset:{1024*k}")
    for k in order:
        n, sub = k // NS, k % NS
        for r in range(4): a(f"v_add_f32 v{ACC+4*k+r}, v{ACC+4*k+r}, v{R+(k*3)*4+r}")
        for r in range(4): a(f"v_add_f32 v{R+(k*3+1)*4+r}, v{R+(k*3+1)*4+r}, v{R+(k*3+2)*4+r}")
        for r in range(4): a(f"v_add_f32 v{ACC+4*k+r}, v{ACC+4*k+r}, v{R+(k*3+1)*4+r}")
        a(f"v_cvt_pk_bf16_f32 v{140+2*k}, v{ACC+4*k}, v{ACC+4*k+1}\n v_cvt_pk_bf16_f32 v{141+2*k}, v{ACC+4*k+2}, v{ACC+4*k+3}")
        a(f"ds_write_b64 v12, {v2(140+2*k)} offset:{32*n}")
        if n == 1:
            a(f"ds_read_b128 {v4(160+4*sub)}, v15")
            if sub > 0:
                a(f"buffer_store_dwordx4 {v4(160+4*(sub-1))}, v3, {sq(SRD1)}, s52 offen{OSC()}\n s_add_u32 s52, s52, {16*2560}")
    a(f"buffer_store_dwordx4 {v4(160+4*(NS-1))}, v3, {sq(SRD1)}, s52 offen{OSC()}")

def OSC(k=None): return ["", " sc1", " nt", " sc0 sc1"][cfg.osc if k is None else k]

def kd(name):
    return f""".p2align 6
.amdhsa_kernel {name}
  .amdhsa_next_free_vgpr 256
  .amdhsa_next_free_sgpr 102
  .amdhsa_accum_offset 256
  .amdhsa_group_segment_fixed_size 0
  .amdhsa_kernarg_size 96
  .amdhsa_user_sgpr_count 2
  .amdhsa_user_sgpr_kernarg_segment_ptr 1
  .amdhsa_system_sgpr_workgroup_id_x 1
  .amdhsa_float_denorm_mode_32 3
.end_amdhsa_kernel"""

def head(name): return f".globl {name}\n.p2align 8\n.type {name},@function"

def build():
    k = KN + "_kernel"
    a = Asm()
    a(head(k)); prologue(a, k, 256)
    a("s_cmp_ge_u32 s2, 192\n s_cbranch_scc1 L_P")
    g_ids(a)
    a(f"s_cmp_eq_u32 s{SGRP}, 0\n s_cbranch_scc1 L_CONS")
    tag(a, 7)
    role_loader(a)

    if cfg.qswap: a("s_cmp_ge_u32 s2, 168\n s_cbranch_scc1 L_B2")
    a("s_cmp_ge_u32 s2, 128\n s_cbranch_scc1 L_CONV\n s_branch L_B2")
    a.label("L_CONS")
    if not cfg.zp:
        a(f"s_cmp_lg_u32 s{SW}, 0\n s_cbranch_scc1 L_ZW\n s_cmp_ge_u32 s2, {NZERO}\n s_cbranch_scc1 L_ZW")
        zero_wave(a)
    a(f"s_cmp_lg_u32 s{SW}, 3\n s_cbranch_scc1 L_CONS1")
    init_wave(a, "g")
    a.label("L_CONS1")
    a(f"s_setprio {cfg.cprio}")
    args_ready(a)
    g_setup2(a)
    a("s_cmp_ge_u32 s58, 8\n s_cbranch_scc1 L_Q")
    tag(a, 1); role_kv(a)
    a("s_branch L_FIN")
    a.label("L_Q"); tag(a, 2); role_q(a)
    if cfg.qearly:
        a("s_cmp_lt_u32 s2, 168\n s_cbranch_scc1 L_FG0"); tag(a, 5); a("v_mov_b32 v2, v208\n s_branch L_B2Q"); a.label("L_FG0")
    elif cfg.qswap: a("v_mov_b32 v12, 0\n s_cmp_ge_u32 s2, 168\n s_cbranch_scc1 L_CONV2")
    else: a("s_cmp_ge_u32 s2, 168\n s_cbranch_scc1 L_B2")
    fin_g0(a)
    a.label("L_P")
    if cfg.zp:
        a(f"s_cmp_lg_u32 s{SW8}, 1\n s_cbranch_scc1 L_ZW\n s_cmp_ge_u32 s2, {192 + NZERO}\n s_cbranch_scc1 L_ZW")
        zero_wave(a)
    role_prep(a)
    a.label("L_CONV"); role_conv(a)
    a("s_cmp_ge_u32 s56, 10\n s_cbranch_scc1 L_FIN")
    a.label("L_FINR")
    tag(a, 8); role_fin(a)
    if cfg.enc == 89: a("s_waitcnt vmcnt(0)"); stamp(a, 9)
    a("s_branch L_FIN")
    a.label("L_B2")
    a("""s_lshr_b32 s53, s2, 3
    s_sub_u32 s54, s53, 5
    s_cmp_lt_u32 s53, 16
    s_cselect_b32 s53, s53, s54
    s_and_b32 s56, s2, 7
    s_mul_i32 s56, s56, 27
    s_add_u32 s56, s56, s53
    s_cmp_ge_u32 s56, 215
    s_cbranch_scc1 L_FIN""")
    tag(a, 5); role_b2(a)
    if cfg.enc == 59: a("s_waitcnt vmcnt(0)"); stamp(a, 9)
    a.label("L_FIN"); stamps_out(a)
    if cfg.enc:
        a("s_waitcnt vmcnt(0) lgkmcnt(0)")
        a.label("L_SPIN")
        a("s_sleep 1\n s_memrealtime s[94:95]\n s_waitcnt lgkmcnt(0)\n s_sub_u32 s94, s94, s96\n s_cmp_lt_u32 s94, 2500\n s_cbranch_scc1 L_SPIN")
    a.label("L_END"); a("s_endpgm")
    launch = [f"; @launch grid=(256,1,1) block=(512,1,1) lds={LDS_BYTES}"]
    return launch, a, [k]

HDR = """; Fused H3 SSM-conv block + linear-attention block, one persistent launch: 256 workgroups x 8 waves, one per CU.
; generated by dev/gen.py"""
def emit(path, launch, a, kernels, verbose=False):
    body = fix_hazards(insert_waits(a.lines), verbose)
    if cfg.al:
        body, n1, n2 = align8(body, cfg.al)
        if verbose: print("align: promoted", n1, "nops", n2)
    out = HDR.split("\n") + list(launch) + ['.amdgcn_target "amdgcn-amd-amdhsa--gfx950"', ".text", ".p2align 8", "L_CODE_BEGIN:"]
    out += [(l if l.endswith(":") or l.startswith(".") else "    " + l) for l in body]
    out += ["L_CODE_END:", "    s_endpgm", '.section .rodata,"a"'] + [kd(k) for k in kernels]
    open(path, "w").write("\n".join(out) + "\n")

if __name__ == "__main__":
    cfg.stamps = "stamps" in sys.argv[2:]
    cfg.rot = "norot" not in sys.argv[2:]
    for x in sys.argv[2:]:
        if "=" in x: setattr(cfg, x.split("=")[0], int(x.split("=")[1]))
    emit(sys.argv[1], *build(), verbose="-v" in sys.argv)
```

```python
import sys
sys.path.insert(0, "dev")
from asmlib import *

KN = "concat_heads__ssm_conv_h3__linear_attn_block__prompt"
WS_KVFLG = 0x0000
WS_YFLG  = 0x2000
WS_UFLG  = 0x4800
WS_QFLAG = 0x5000
WS_CNT   = 0x8000
WS_KV    = 0xD000
NZERO    = 56
TP = 4224
WS_UT    = 0x100000
WS_YT    = 0x400000
WS_PQ    = 0x700000
WS_STAMP = 0xA00000
WS_SIZE  = 0xB00000
LDS_BYTES = 163840
HALF = 81920
L_BAR = HALF - 64
L_SIG = HALF - 60
SGRP, SLB, SBT, SW8, SLD = 74, 75, 76, 77, 72
LOG2E = 0x3FB8AA3B
EPS = 0x358637BD

P_Q, P_K, P_V, P_SH, P_H, P_D, P_X, P_W, P_WO, P_OUT, P_DBG, P_WS = [4 + 2 * i for i in range(12)]
SRD0, SRD1, SRD2, SRD3, SRD4, SRDWS = 28, 32, 36, 40, 44, 48
SW = 3

def srd(a, d, p, nbytes):
    a(f"s_mov_b32 s{d}, s{p}\n s_and_b32 s{d+1}, s{p+1}, 0xffff\n s_mov_b32 s{d+2}, {nbytes}\n s_mov_b32 s{d+3}, 0x20000")
def sq(d): return f"s[{d}:{d+3}]"
def v4(r): return f"v[{r}:{r+3}]"
def v2(r): return f"v[{r}:{r+1}]"

class Cfg:
    stamps = False
    rot = False
    gonly = 0
    ahead0 = 4
    ahead = 4
    bpos = 3
    lprio = 3
    cprio = 2
    psleep = 2
    qlate = 3
    pprio = 0
    qit = 4
    cgate = 4
    gpos = 2
    wowarm = 0
    pqfirst = 2
    pearly = 0
    qswap = 0
    mprio = 3
    sig0 = 1
    x_ns2 = 0
    pfe = 0
    pfirst = 0
    early23 = 0
    wlate = 0
    nb9 = 8
    jit = 0
    x_zd = 0
    nogq = 1
    rA = -1
    rB = 0
    rC = 0
    rD = 0
    fsc = 1
    qpre = 0
    krep = 8
    fmode = 1
    smask = 1
    sdel = 10
    x_qd = 0
    x_pd = 0
    al = 0
    zp = 1
    wpipe = 1
    mix = 0
    qearly = 0
    pk = 0
    lite = 0
    nrep = 1
    kvall = 0
    yall = 0
    uall = 0
    vprio = 0
    fbase = 22
    tail2 = 1
    tlb = 0
    pwait = 1
    eprio = 3
    fprio = 3
    qrel = 8
    qst = 1
    osc = 1
    gate = 1
    usig = 4
    qbar = 1
    spf = 0
    slab = 0
    enc = 0
    role = 0
    pmode = 0
    x_noq = 0
    x_plain = 0
    x_pend = 0
    x_nost = 0
cfg = Cfg()

NSTAMP = 10
def stamp(a, i, force=False):
    if cfg.jit and i != NSTAMP - 1:
        stamp.n += 1
        a(f"s_mul_i32 s96, s2, 37\n s_mul_i32 s97, s{SW8}, {11 + 2 * cfg.jit}\n s_add_u32 s96, s96, s97\n s_add_u32 s96, s96, {stamp.n * 5 + cfg.jit}\n s_and_b32 s96, s96, 7\n s_cmp_lg_u32 s96, 0\n s_cbranch_scc1 L_JIT{stamp.n}\n s_sleep {40 + 29 * (stamp.n % 4)}")
        a.label(f"L_JIT{stamp.n}")
    if cfg.lite and i != NSTAMP - 1: return
    if cfg.slab and not force and i != NSTAMP - 1 and cfg.role in (7, 4, 5): return
    if cfg.enc and cfg.enc == cfg.role * 10 + i:
        a("s_memrealtime s[96:97]\n s_waitcnt lgkmcnt(0)")
    if cfg.stamps:
        a(f"s_memrealtime s[{80+2*i}:{81+2*i}]\n s_waitcnt lgkmcnt(0)")
stamp.n = 0
def stamps_out(a):
    if not cfg.stamps: return
    a("s_waitcnt vmcnt(0) lgkmcnt(0)")
    stamp(a, NSTAMP - 1)
    a("s_memtime s[70:71]\n s_waitcnt lgkmcnt(0)\n s_sub_u32 s101, s70, s101")
    a(f"s_getreg_b32 s52, hwreg(HW_REG_HW_ID)\n s_getreg_b32 s53, hwreg(HW_REG_XCC_ID)")
    for i in range(NSTAMP): a(f"v_mov_b32 v{16+i}, s{80+2*i}")
    a(f"v_mov_b32 v26, s52\n v_mov_b32 v27, s53\n v_mov_b32 v28, s100\n v_mov_b32 v29, s2\n v_mov_b32 v30, s101\n v_mov_b32 v31, 0")
    a(f"s_lshl_b32 s54, s2, 9\n s_lshl_b32 s55, s{SW8}, 6\n s_add_u32 s54, s54, s55\n s_add_u32 s54, s54, {WS_STAMP}")
    a(f"v_mov_b32 v32, 0\n s_mov_b64 exec, 1")
    for i in range(4): a(f"buffer_store_dwordx4 {v4(16+4*i)}, v32, {sq(SRDWS)}, s54 offen offset:{16*i}")
    a("s_mov_b64 exec, -1")
def tag(a, t):
    cfg.role = t
    if cfg.stamps: a(f"s_lshl_b32 s100, s100, 4\n s_add_u32 s100, s100, {t}")

def prologue(a, name, nwg):
    a.label(name)
    if cfg.enc: a("s_memrealtime s[98:99]\n s_memrealtime s[96:97]")
    a(f"""s_load_dwordx16 s[4:19], s[0:1], 0
    s_load_dwordx8 s[20:27], s[0:1], 64
    s_cmp_ge_u32 s2, {nwg}
    s_cbranch_scc1 L_END
    v_and_b32 v1, 63, v0
    v_lshrrev_b32 v2, 6, v0
    s_mov_b32 s{SBT}, 0
    v_readfirstlane_b32 s{SW8}, v2
    v_mov_b32 v12, 0
    s_mov_b32 s{SLD}, 0""")
    if cfg.stamps:
        for i in range(NSTAMP): a(f"s_mov_b32 s{80+2*i}, 0")
        a("s_mov_b32 s100, 0\n s_memrealtime s[80:81]\n s_memtime s[98:99]")
    a(f"""s_and_b32 s{SW}, s{SW8}, 3
    s_lshr_b32 s{SGRP}, s{SW8}, 2
    s_mul_i32 s{SLB}, s{SGRP}, {HALF}""")
    if cfg.pfe:
        a(f"s_cmp_lg_u32 s{SW8}, 2\n s_cbranch_scc1 L_NPF")
        init_wave(a, "e")
        a.label("L_NPF")

def init_wave(a, name):
    a("s_getpc_b64 s[52:53]")
    a.label(f"L_PC{name}")
    a(f"""s_lshr_b32 s54, s2, 3
    s_and_b32 s54, s54, 7
    s_lshl_b32 s54, s54, 13
    v_lshlrev_b32 v3, 7, v1
    v_add_u32 v3, s54, v3
    s_sub_u32 s52, s52, L_PC{name}-L_CODE_BEGIN
    s_subb_u32 s53, s53, 0
    v_min_u32 v3, L_CODE_END-L_CODE_BEGIN-4, v3
    global_load_dword v15, v3, s[52:53]""")
    lds_init(a)
    if cfg.tlb:
        n = cfg.tlb
        a(f"s_waitcnt lgkmcnt(0)\n s_mov_b64 exec, {(1 << n) - 1}")
        for k, (p, size) in enumerate(((P_WS, WS_STAMP), (P_OUT, 2048 * 2560), (P_Q, 2048 * 1280), (P_H, 640 * 4096), (P_WO, 640 * 1280))):
            st = (size - 128) // (n - 1) // 128 * 128
            a(f"s_mov_b32 s54, {st}\n v_mul_lo_u32 v3, v1, s54\n global_load_dword v{250+k}, v3, s[{p}:{p+1}]")
        a("s_mov_b64 exec, -1")

def lds_init(a):
    a(f"""v_and_b32 v4, 15, v1
    v_lshlrev_b32 v4, 2, v4
    v_bfe_u32 v5, v1, 4, 1
    v_mul_u32_u24 v5, {HALF}, v5
    v_add_u32 v4, v4, v5
    v_add_u32 v4, {L_BAR}, v4
    v_mov_b32 v5, 0
    ds_write_b32 v4, v5""")

def args_ready(a):
    a("s_waitcnt lgkmcnt(0)")
    if cfg.stamps: a("s_mov_b32 s101, s98")
    srd(a, SRDWS, P_WS, WS_SIZE if cfg.stamps else WS_STAMP)
    srd(a, SRD4, P_DBG, 256)

def bar_arrive(a):
    a(f"""v_mov_b32 v13, s{SLB}
    v_mov_b32 v14, 1
    v_add_u32 v13, {L_BAR}, v13
    s_add_u32 s{SBT}, s{SBT}, 4
    s_mov_b64 exec, 1
    ds_add_u32 v13, v14
    s_mov_b64 exec, -1""")
def gate_arrive(a):
    a(f"""v_mov_b32 v13, s{SLB}
    v_mov_b32 v14, 1
    v_add_u32 v13, {L_BAR}, v13
    s_mov_b64 exec, 1
    ds_add_u32 v13, v14 offset:8
    s_mov_b64 exec, -1""")
def bar_wait(a, addr_ok=False):
    n = bar_wait.n; bar_wait.n += 1
    if not addr_ok: a(f"v_mov_b32 v13, s{SLB}\n v_add_u32 v13, {L_BAR}, v13")
    a.label(f"L_BW_{n}")
    a(f"""ds_read_b32 v14, v13
    s_waitcnt lgkmcnt(0)
    v_cmp_gt_u32 vcc, s{SBT}, v14
    s_nop 1
    s_cbranch_vccnz L_BW_{n}""")
bar_wait.n = 0

def phi_block(regs_, temps):
    out = []
    n = len(temps)
    for g in range(0, len(regs_), n):
        grp = regs_[g:g + n]
        if cfg.pk:
            for k in range(0, len(grp), 2): out.append(f"v_pk_mul_f32 {v2(temps[k])}, {v2(grp[k])}, s[70:71] op_sel_hi:[1,0]")
            for r, t in zip(grp, temps): out.append(f"v_exp_f32 v{t}, v{t} clamp"); out.append(f"v_max_f32 v{r}, s71, v{r}")
            for k in range(0, len(grp), 2): out.append(f"v_pk_add_f32 {v2(grp[k])}, {v2(grp[k])}, {v2(temps[k])}")
            continue
        for r, t in zip(grp, temps): out.append(f"v_mul_f32 v{t}, s70, v{r}")
        for r, t in zip(grp, temps): out.append(f"v_exp_f32 v{t}, v{t} clamp"); out.append(f"v_max_f32 v{r}, s71, v{r}")
        for r, t in zip(grp, temps): out.append(f"v_add_f32 v{r}, v{r}, v{t}")
    return out

def probe(vdst, voff, s_off, srdq=SRDWS):
    if cfg.pmode == 3:
        return f"v_mov_b32 v{vdst}, -1\n s_mov_b64 exec, 3\n v_mov_b32 v{vdst}, 0\n buffer_atomic_add v{vdst}, v{voff}, {sq(srdq)}, {s_off} offen sc0 sc1\n s_mov_b64 exec, -1"
    return f"buffer_load_dword v{vdst}, v{voff}, {sq(srdq)}, {s_off} offen " + ["sc1", "sc0 sc1", "sc0 sc1 nt"][cfg.pmode]
def check(a, name, vdst, voff, s_off, target, srdq=SRDWS):
    a(f"v_cmp_gt_u32 vcc, {target}, v{vdst}\n s_mov_b32 s78, 0\n s_nop 0\n s_cbranch_vccz L_OK_{name}")
    a("PUSHSTATE")
    a.label(f"L_POLL_{name}")
    a(f"""s_sleep {cfg.psleep}
    {probe(vdst, voff, s_off, srdq)}
    s_add_u32 s78, s78, 1
    s_waitcnt vmcnt(0)
    v_cmp_gt_u32 vcc, {target}, v{vdst}
    s_cmp_ge_u32 s78, 0x20000
    s_cbranch_scc1 L_OK_{name}
    s_cbranch_vccnz L_POLL_{name}""")
    a("POPSTATE")
    a.label(f"L_OK_{name}")
def zero_probe(a, vd, vz): a(f"v_mov_b32 v{vz}, 128\n" + probe(vd, vz, "0", SRD4))
def zero_check(a, name, vd, vz): check(a, "z" + name, vd, vz, "0", 1, SRD4)
def zero_wave(a):
    a(f"""v_lshlrev_b32 v8, 4, v1
    v_mov_b32 v16, 0
    v_mov_b32 v17, 0
    v_mov_b32 v18, 0
    v_mov_b32 v19, 0
    s_and_b32 s54, s2, 63
    s_lshl_b32 s54, s54, 11
    s_mov_b32 s79, 1
    s_mov_b32 s78, 1""")
    args_ready(a)
    if cfg.x_zd: a("s_sleep 127\n s_sleep 127\n s_sleep 127")
    a(f"""buffer_store_dwordx4 v[16:19], v8, {sq(SRDWS)}, s54 offen sc1
    buffer_store_dwordx4 v[16:19], v8, {sq(SRDWS)}, s54 offen offset:1024 sc1
    s_waitcnt vmcnt(0)
    s_atomic_add s79, s[{P_DBG}:{P_DBG+1}], 0 glc
    s_waitcnt lgkmcnt(0)
    s_cmp_lg_u32 s79, {NZERO-1}
    s_cbranch_scc1 L_ZW
    s_atomic_add s78, s[{P_DBG}:{P_DBG+1}], 128
    s_waitcnt lgkmcnt(0)""")
    a.label("L_ZW")
    if cfg.slab == 5: stamp(a, 6, True)

def signal(a, s_off, nwaves, ldsaddr, narr=1, rstride=128):
    n = signal.n; signal.n += 1
    a(f"""v_mov_b32 v13, {ldsaddr}
    v_mov_b32 v14, 1
    s_add_u32 s68, s{P_WS}, s{s_off}
    s_addc_u32 s69, s{P_WS+1}, 0
    s_mov_b32 s78, 1
    s_waitcnt vmcnt(0)
    s_mov_b64 exec, 1
    ds_add_rtn_u32 v12, v13, v14
    s_mov_b64 exec, -1
    s_waitcnt lgkmcnt(0)
    v_readfirstlane_b32 s79, v12
    s_cmp_lg_u32 s79, {nwaves-1}
    s_cbranch_scc1 L_SIG_{n}""")
    if narr > 1:
        a(f"""s_mov_b32 s79, 1
        s_atomic_add s79, s[68:69], {WS_CNT} glc
        s_waitcnt lgkmcnt(0)
        s_cmp_lg_u32 s79, {narr-1}
        s_cbranch_scc1 L_SIG_{n}""")
    for r in range(cfg.nrep if narr > 1 else 1): a(f"s_atomic_add s78, s[68:69], {r*rstride}")
    a("s_waitcnt lgkmcnt(0)")
    a.label(f"L_SIG_{n}")
signal.n = 0

def conv_ids(a):
    a("""s_and_b32 s52, s2, 7
    s_mul_i32 s52, s52, 20
    s_lshr_b32 s53, s2, 3
    s_sub_u32 s53, s53, 12
    s_add_u32 s52, s52, s53""")
def sprefetch(a, p, s_off, n):
    a(f"s_add_u32 s68, s{p}, s{s_off}\n s_addc_u32 s69, s{p+1}, 0")
    for i in range(n): a(f"s_load_dword s79, s[68:69], {128*i}")
    a("s_waitcnt lgkmcnt(0)")

def last_barrier(a, name, n_younger):
    a(f"s_cmp_eq_u32 s{SLD}, 0\n s_cbranch_scc1 L_LB_{name}\n PUSHSTATE\n s_waitcnt vmcnt({n_younger})\n s_barrier\n s_setprio 0\n POPSTATE")
    a.label(f"L_LB_{name}")

G_ACC, G_B, G_X = 16, 96, 176
G_SLOT = 36864
def slot_off(j): return ((j & 1) ^ 1) * G_SLOT
def slot_half(j): return (j % 4) >> 1
def g_ids(a):
    a(f"""s_and_b32 s52, s2, 7
    s_lshr_b32 s53, s2, 3
    s_and_b32 s57, s52, 3
    s_lshl_b32 s57, s57, 2
    s_and_b32 s54, s53, 3
    s_add_u32 s57, s57, s54
    s_lshr_b32 s52, s52, 2
    s_lshr_b32 s54, s53, 2
    s_lshl_b32 s58, s52, 2
    s_add_u32 s58, s58, s54
    s_lshl_b32 s52, s52, 1
    s_add_u32 s52, s52, s54
    s_add_u32 s52, s52, 4
    s_cmp_ge_u32 s54, 4
    s_cselect_b32 s58, s52, s58
    s_lshl_b32 s66, s{SW}, 12
    s_add_u32 s66, s66, 20480""")

def g_setup_x(a):
    if cfg.rot:
        if cfg.rA < 0:
            a("s_mul_i32 s62, s57, 3\n s_lshl_b32 s59, s58, 1\n s_add_u32 s62, s62, s59")
        else:
            a(f"""s_bfe_u32 s62, s2, 0x20003
            s_mul_i32 s62, s62, {cfg.rA}
            s_lshr_b32 s59, s2, 5
            s_mul_i32 s59, s59, {cfg.rB}
            s_add_u32 s62, s62, s59
            s_and_b32 s59, s2, 3
            s_mul_i32 s59, s59, {cfg.rC}
            s_add_u32 s62, s62, s59
            s_bfe_u32 s59, s2, 0x10002
            s_mul_i32 s59, s59, {cfg.rD}
            s_add_u32 s62, s62, s59""")
        assert all((v * 205) >> 11 == v // 10 for v in range(100))
        a(f"""s_mul_i32 s59, s62, 205
        s_lshr_b32 s59, s59, 11
        s_mul_i32 s59, s59, 10
        s_sub_u32 s62, s62, s59
        s_lshl_b32 s64, s62, 7
        s_mul_i32 s63, s62, {64*3840}""")
    else:
        a("s_mov_b32 s64, 0\n s_mov_b32 s63, 0")
    a(f"""v_lshrrev_b32 v240, 3, v1
    s_lshl_b32 s59, s57, 7
    s_lshl_b32 s54, s{SW}, 5
    s_add_u32 s59, s59, s54
    v_add_u32 v240, s59, v240
    v_mul_u32_u24 v240, 1280, v240
    v_lshrrev_b32 v241, 4, v1
    v_and_b32 v242, 7, v1
    v_xor_b32 v242, v242, v241
    v_lshl_add_u32 v7, v242, 4, v240
    v_xor_b32 v242, 4, v242
    v_lshl_add_u32 v8, v242, 4, v240
    v_add_u32 v8, {10240-1024}, v8
    v_add_u32 v9, {20480-2048}, v7
    v_add_u32 v10, {20480-2048}, v8""")

def g_setup_w(a, hook=None):
    a(f"""s_mul_i32 s59, s58, 160
    s_add_u32 s60, s59, 1280
    s_add_u32 s61, s59, {2560-160}
    s_sub_u32 s59, s58, 8
    s_mul_i32 s59, s59, 320
    s_cmp_ge_u32 s58, 8
    s_cselect_b32 s60, s59, s60
    s_cselect_b32 s61, s59, s61
    s_mul_i32 s59, s{SW}, {16*3840}
    s_add_u32 s60, s60, s59
    s_add_u32 s61, s61, s59
    s_mul_i32 s65, s{SW}, 5120""")
    a(f"v_mov_b32 v244, s60\n v_mov_b32 v245, s61")
    for i in range(5):
        assert all(((64 * i + l) * 3277) >> 16 == (64 * i + l) // 20 for l in range(64))
        a(f"""v_add_u32 v240, {64*i}, v1
        v_mul_u32_u24 v241, 3277, v240
        v_lshrrev_b32 v241, 16, v241
        v_mul_u32_u24 v242, 20, v241
        v_sub_u32 v240, v240, v242""")
        if i == 2: a("v_lshrrev_b32 v242, 4, v1\n v_and_b32 v242, 2, v242\n v_xor_b32 v240, v240, v242")
        if i > 2: a("v_xor_b32 v240, 2, v240")
        a(f"""v_cmp_gt_u32 vcc, 10, v240
        v_mul_u32_u24 v241, 3840, v241
        v_lshl_add_u32 v240, v240, 4, v241
        v_cndmask_b32 v242, v245, v244, vcc""")
        if i in (0, 4): a(f"v_add_u32 v{2+i}, v240, v242")
        else: a(f"v_add_u32 v240, v240, v242\n v_subrev_u32 v{2+i}, {1024*i}, v240")
        if hook: hook(i)

def g_setup2(a):
    a(f"""v_lshrrev_b32 v241, 4, v1
    v_bfe_u32 v242, v1, 2, 2
    v_lshl_add_u32 v242, v241, 3, v242
    v_mul_u32_u24 v242, 320, v242
    v_and_b32 v243, 3, v1
    v_lshl_add_u32 v242, v243, 3, v242
    v_and_b32 v243, 1, v241
    v_lshlrev_b32 v243, 5, v243
    v_add_u32 v9, v242, v243
    v_sub_u32 v10, v242, v243
    v_and_b32 v240, 15, v1
    v_lshrrev_b32 v242, 1, v240
    v_xor_b32 v242, v242, v241
    v_lshlrev_b32 v240, 7, v240
    v_add_u32 v240, s66, v240
    v_lshl_add_u32 v11, v242, 4, v240
    v_xor_b32 v242, 4, v242
    v_lshl_add_u32 v12, v242, 4, v240
    s_mov_b32 s70, {LOG2E}
    s_mov_b32 s71, {EPS}""")
    for k in range(4): a(f"v_add_u32 v{2+k}, {HALF}, v{9+k}")

def g_loadx(j):
    o = [f"s_add_u32 m0, s66, {slot_half(j) * HALF + slot_off(j)}", "s_nop 0"]
    for i in range(4): o.append(f"buffer_load_dwordx4 v{7+i}, {sq(SRD0)}, s64 offen offset:{1024*i} lds ; tag=S{j}")
    o += ["s_add_u32 s64, s64, 128"]
    if cfg.rot: o += ["s_cmp_eq_u32 s64, 1280", "s_cselect_b32 s64, 0, s64"]
    return o
def g_loadw(j):
    base = slot_half(j) * HALF + slot_off(j)
    o = [f"s_add_u32 m0, s65, {base}", "s_nop 0"]
    for i in range(4): o.append(f"buffer_load_dwordx4 v{2+i}, {sq(SRD1)}, s63 offen offset:{1024*i} lds ; tag=S{j}")
    o += [f"s_add_u32 m0, s65, {base + 4096}", "s_nop 0", f"buffer_load_dwordx4 v6, {sq(SRD1)}, s63 offen lds ; tag=S{j}"]
    o += [f"s_add_u32 s63, s63, {64*3840}"]
    if cfg.rot: o += [f"s_cmp_eq_u32 s63, {640*3840}", "s_cselect_b32 s63, 0, s63"]
    return o
def g_xreads(j):
    return [f"ds_read_b128 {v4(G_X + (j&1)*16 + ks*8 + sub*4)}, v{(4 if slot_half(j) else 11)+ks} offset:{slot_off(j) + sub*2048}" for ks in range(2) for sub in range(2)]
def g_reads(t):
    j = t // 2
    o = []
    for n in range(10):
        for h in range(2):
            off = slot_off(j) + (t & 1) * 10240 + h * 1280 + 32 * n
            o.append(f"ds_read_b64_tr_b16 {v2(G_B + (t & 1) * 40 + n * 4 + 2 * h)}, v{(2 if slot_half(j) else 9) + (n & 1)} offset:{off}")
    return o

def role_loader(a):
    a(f"s_setprio {cfg.lprio}")
    g_setup_x(a)
    a("s_waitcnt lgkmcnt(0)")
    srd(a, SRD0, P_X, 2048 * 1280)
    if cfg.slab == 5: stamp(a, 5, True)
    if cfg.x_qd: a(f"s_cmp_lt_u32 s58, 8\n s_cbranch_scc1 L_XQD\n s_sleep {cfg.x_qd}"); a.label("L_XQD")
    a.extend(g_loadx(0))
    srd(a, SRD1, P_W, 640 * 3840)
    seq = []
    for j in range(10): seq += [g_loadx(j), g_loadw(j)]
    pos = 1
    if cfg.wpipe:
        w0 = g_loadw(0)
        parts = [w0[0:3], w0[3:4], w0[4:5], w0[5:6], w0[6:]]
        g_setup_w(a, lambda i: a.extend(parts[i]))
        pos = 2
    else: g_setup_w(a)
    def upto(n):
        nonlocal pos
        while pos < min(n, 20): a.extend(seq[pos]); pos += 1
    upto(cfg.ahead0)
    args_ready(a)
    stamp(a, 1)
    for j in range(9):
        a(f"WAITTAG S{j}")
        if cfg.slab == 2 and j < 8: stamp(a, j + 1, True)
        a("s_barrier")
        if cfg.slab == 1 and j < 8: stamp(a, j + 1, True)
        if j == 0: stamp(a, 2)
        if j == 6: zero_probe(a, 14, 13)
        upto(min(2 * (j + 1) + cfg.ahead, 2 * (j + 4)))
    zero_check(a, "ld", 14, 13)
    a(f"s_lshl_b32 s53, s58, 7\n s_add_u32 s6, s{P_WS}, s53\n s_addc_u32 s7, s{P_WS+1}, 0")
    a(f"s_mov_b32 s{SLD}, 1")
    stamp(a, 3)

def g_main(a, transposed, tail):
    a("s_waitcnt lgkmcnt(0)\n s_barrier")
    stamp(a, 1)
    a.extend(g_xreads(0) + g_reads(0))
    def mfma(t, n, sub):
        j, ks = t // 2, t % 2
        acc = v4(G_ACC + (sub * 10 + n) * 4)
        x = v4(G_X + (j & 1) * 16 + ks * 8 + sub * 4)
        b = v4(G_B + (t & 1) * 40 + n * 4)
        c = "0" if t == 0 else acc
        return f"v_mfma_f32_16x16x32_bf16 {acc}, {b}, {x}, {c}" if transposed else f"v_mfma_f32_16x16x32_bf16 {acc}, {x}, {b}, {c}"
    for t in range(18 if cfg.tail2 else 19):
        j, ks = t // 2, t % 2
        mf = [mfma(t, n, sub) for n in range(10) for sub in range(2)]
        rd = g_reads(t + 1)
        if ks == 1:
            rd = g_xreads(j + 1) + rd
            a.extend(mf[:cfg.bpos]); a("s_waitcnt lgkmcnt(0)" + "\n s_barrier")
            a.extend(interleave(mf[cfg.bpos:], rd))
        else:
            a.extend(interleave(mf, rd))
    if cfg.tail2:
        a.extend(interleave([mfma(18, n, sub) for n in range(5) for sub in range(2)], g_reads(19)))
        tail([mfma(19, n, sub) for n in range(5) for sub in range(2)] + [mfma(t, n, sub) for t in (18, 19) for n in range(5, 10) for sub in range(2)])
    else:
        tail([mfma(19, n, sub) for n in range(10) for sub in range(2)])

B_KS = 8416
def b2_head(a, vd):
    a(f"""s_mul_i32 s57, s56, 205
    s_lshr_b32 s57, s57, 10
    s_mul_i32 s54, s57, 5
    s_sub_u32 s58, s56, s54""")
    assert all((v * 205) >> 10 == v // 5 for v in range(216))
    srd(a, SRD0, P_WO, 640 * 1280)
    a(f"""s_lshl_b32 s59, s58, 8
    s_mul_i32 s53, s{SW}, {160*1280}
    s_add_u32 s59, s59, s53
    s_lshl_b32 s53, s{SW}, 6
    s_mul_i32 s65, s{SW}, 20480
    s_add_u32 s65, s65, s{SLB}
    v_and_b32 v240, 15, v1
    v_lshrrev_b32 v241, 4, v1
    v_lshlrev_b32 v240, 4, v240
    v_xor_b32 v240, s53, v240
    v_mul_u32_u24 v241, {8*1280}, v241
    v_add3_u32 v{vd}, v240, v241, s59""")
def b2_dma(kstep, slot, vd=2):
    return [[f"s_add_u32 m0, s65, {slot*B_KS + i*1056}", f"s_mov_b32 s63, {(32*kstep + i)*1280}",
             f"buffer_load_dwordx4 v{vd}, {sq(SRD0)}, s63 offen lds ; tag=K{kstep}"] for i in range(8)]

def role_q(a):
    a(f"""s_lshl_b32 s9, s57, 3
    s_lshl_b32 s53, s{SW}, 1
    s_add_u32 s9, s9, s53
    s_mul_i32 s9, s9, 20
    s_sub_u32 s53, s58, 8
    s_mul_i32 s54, s53, 5
    s_add_u32 s9, s9, s54
    s_lshl_b32 s9, s9, 10
    s_add_u32 s9, s9, {WS_PQ}
    s_mul_i32 s55, s53, 17
    s_add_u32 s55, s55, s57
    s_lshl_b32 s55, s55, 7
    s_add_u32 s55, s55, {WS_QFLAG}
    v_lshlrev_b32 v6, 4, v1""")
    if cfg.qearly:
        a("s_lshr_b32 s53, s2, 3\n s_sub_u32 s53, s53, 5\n s_and_b32 s56, s2, 7\n s_mul_i32 s56, s56, 27\n s_add_u32 s56, s56, s53")
        b2_head(a, 208)
    def tail(mf):
        bar_arrive(a)
        ep = []
        for c in range(5):
            for sub in range(2):
                r0 = G_ACC + (sub * 10 + 2 * c) * 4
                ep += phi_block(list(range(r0, r0 + 8)), list(range(240, 248)))
                d = G_B + (sub * 5 + c) * 4
                ep += [f"v_cvt_pk_bf16_f32 v{d+k}, v{r0+2*k}, v{r0+2*k+1}" for k in range(4)]
                ep += [f"s_add_u32 s54, s9, {(sub*20+c)*1024}", f"buffer_store_dwordx4 {v4(d)}, v6, {sq(SRDWS)}, s54 offen sc1"]
        n = 2 * (len(mf) - 8)
        a.extend(mf[:8])
        a.extend(interleave(mf[8:], ep[:n]))
        stamp(a, 2)
        if cfg.qswap:
            a("s_cmp_lt_u32 s2, 168\n s_cbranch_scc1 L_QS\n PUSHSTATE")
            bar_wait(a, True)
            conv_head(a, True)
            a("POPSTATE"); a.label("L_QS")
        a.extend(ep[n:])
        if cfg.qearly:
            a("s_cmp_lt_u32 s2, 168\n s_cbranch_scc1 L_QE\n PUSHSTATE")
            bar_wait(a, True)
            for g in b2_dma(0, 0, 208) + b2_dma(1, 1, 208): a.extend(g)
            a("POPSTATE"); a.label("L_QE")
    g_main(a, True, tail)
    stamp(a, 3)
    signal(a, 55, 4, L_SIG)
    stamp(a, 4)

MV = 224
M_IMG = 8448
def mini_head(a):
    srd(a, SRD0, P_H, 640 * 4096)
    a(f"""s_add_u32 s59, s2, 512
    s_lshl_b32 s60, s59, 12
    s_add_u32 s62, s{P_H}, s60
    s_addc_u32 s63, s{P_H+1}, 0
    s_load_dword s64, s[62:63], 0
    s_lshr_b32 s54, s59, 1
    s_lshl_b32 s54, s54, 2
    s_load_dword s65, s[{P_D}:{P_D+1}], s54
    s_lshl_b32 s54, s{SW}, 10
    v_lshl_add_u32 v6, v1, 4, s54
    buffer_load_dwordx4 {v4(MV)}, v6, {sq(SRD0)}, s60 offen
    buffer_load_dwordx4 {v4(MV+4)}, v6, {sq(SRD0)}, s60 offen offset:4
    v_mov_b32 v8, 0
    v_mov_b32 v7, 0
    s_mov_b32 s61, {WS_UFLG + 1024}
    s_mul_i32 s55, s59, {TP}
    s_waitcnt lgkmcnt(0)
    s_add_u32 s62, s55, {WS_UT}
    s_add_u32 s55, s55, {WS_YT}
    s_lshr_b32 s63, s59, 6
    s_lshl_b32 s63, s63, 10
    s_add_u32 s63, s63, {WS_YFLG}
    s_lshl_b32 s53, s65, 16
    s_and_b32 s54, s65, 0xffff0000
    s_bitcmp1_b32 s59, 0
    s_cselect_b32 s53, s54, s53
    s_lshl_b32 s54, s64, 16
    v_mov_b32 v240, s54
    v_add_f32 v240, s53, v240
    s_and_b32 s54, s64, 0xffff0000
    v_mov_b32 v241, s54
    v_cvt_pk_bf16_f32 v{MV+12}, v240, v241
    v_and_b32 v240, 15, v1
    v_lshrrev_b32 v241, 4, v1
    v_add_u32 v242, 1, v240
    v_bfe_u32 v243, v242, 1, 1
    v_mul_u32_u24 v243, {C_HCOPY}, v243
    v_lshrrev_b32 v244, 2, v242
    v_lshl_add_u32 v244, v241, 3, v244
    v_lshl_add_u32 v243, v244, 3, v243
    s_lshr_b32 s53, s{SW}, 1
    s_and_b32 s54, s{SW}, 1
    s_lshl_b32 s53, s53, 7
    s_lshl_b32 s54, s54, 4
    s_add_u32 s53, s53, s54
    s_lshl_b32 s54, s53, 1
    s_add_u32 s54, s54, {M_IMG}
    v_add_u32 v{MV+13}, s54, v243
    v_and_b32 v242, 1, v242
    v_lshlrev_b32 v{MV+14}, 4, v242
    v_lshlrev_b32 v242, 1, v241
    v_sub_u32 v242, v242, v240
    v_add_u32 v242, 15, v242
    s_add_u32 s53, s53, {M_IMG + 2*C_HCOPY}
    v_lshl_add_u32 v{MV+15}, v242, 4, s53
    v_lshrrev_b32 v242, 1, v1
    v_and_b32 v243, 1, v1
    v_mul_u32_u24 v243, {C_UH}, v243
    v_add_u32 v242, v242, v243
    s_lshl_b32 s53, s{SW}, 9
    s_add_u32 s53, s53, {M_IMG + 2*C_HCOPY}
    v_lshl_add_u32 v248, v242, 4, s53
    v_and_b32 v242, 1, v241
    v_mul_u32_u24 v242, {C_UH}, v242
    v_add_u32 v242, v242, v240
    v_lshlrev_b32 v249, 4, v242
    v_and_b32 v242, 1, v1
    v_lshlrev_b32 v242, 4, v242
    v_bfe_u32 v243, v1, 1, 1
    v_mul_u32_u24 v243, {C_HCOPY}, v243
    v_add_u32 v250, v242, v243
    s_lshl_b32 s53, s{SW}, 13
    s_add_u32 s53, s53, {21504 - 8192}
    s_cmp_eq_u32 s{SW}, 0
    s_cselect_b32 s53, 0, s53
    v_lshl_add_u32 v251, v1, 4, s53
    v_bfe_u32 v240, v1, 1, 4
    v_and_b32 v241, 1, v1
    v_lshlrev_b32 v240, 4, v240
    v_lshl_add_u32 v240, v241, 9, v240
    v_lshrrev_b32 v241, 5, v1
    v_lshl_add_u32 v240, v241, 10, v240
    s_lshl_b32 s53, s{SW}, 11
    v_add_u32 v252, s53, v240""")

def mini_conv(a, uld):
    ACC, A, RAW, B = 16, 48, 80, 160
    a(f"""ds_write_b128 v6, {v4(MV)} offset:{M_IMG + 32}
    ds_write_b128 v6, {v4(MV+4)} offset:{M_IMG + C_HCOPY + 32}
    s_cmp_lg_u32 s{SW}, 0
    s_cbranch_scc1 L_MC0
    v_mov_b32 v56, 0
    v_mov_b32 v57, 0
    v_mov_b32 v58, 0
    v_mov_b32 v59, 0
    ds_write_b128 v250, v[56:59] offset:{M_IMG}
    ds_write_b32 v8, v{MV+12} offset:{M_IMG + 32}
    ds_write_b32 v8, v{MV+12} offset:{M_IMG + C_HCOPY + 28}
    ds_write_b128 v249, v[56:59] offset:{M_IMG + 2*C_HCOPY + 128*16}""")
    a.label("L_MC0")
    a("s_waitcnt vmcnt(0)")
    if cfg.sig0:
        a(f"""v_mov_b32 v13, {L_BAR}
        v_mov_b32 v14, 1
        s_mov_b64 exec, 1
        ds_add_rtn_u32 v12, v13, v14 offset:8
        s_mov_b64 exec, -1
        s_mov_b32 s79, 1
        s_waitcnt lgkmcnt(0)
        v_readfirstlane_b32 s53, v12
        s_cmp_lg_u32 s53, 3
        s_cbranch_scc1 L_MS0
        s_atomic_add s79, s[6:7], {WS_CNT} glc""")
        a.label("L_MS0")
    else: gate_arrive(a)
    stamp(a, 4)
    def flag(n):
        a(f"s_waitcnt lgkmcnt(0)\n s_cmp_lg_u32 s79, 15\n s_cbranch_scc1 L_MS{n}\n s_mov_b32 s79, 1")
        if cfg.fmode == 0:
            for r in range(cfg.krep): a(f"s_atomic_add s79, s[6:7], {1024*r}")
            a("s_waitcnt lgkmcnt(0)")
        else:
            a(f"v_lshlrev_b32 v12, 10, v1\n s_mov_b64 exec, {(1 << cfg.krep) - 1}\n global_store_dword v12, v14, s[6:7] sc1\n s_mov_b64 exec, -1")
        a.label(f"L_MS{n}")
    a("s_cmp_eq_u32 s67, 1\n s_cbranch_scc1 L_MU1")
    flag(2)
    check(a, "mu", 7, 8, "s61", 1)
    a(uld + "\n s_waitcnt vmcnt(0)")
    a.label("L_MU1")
    a(f"ds_write_b128 v248, {v4(MV+8)}")
    bar_arrive(a)
    flag(1)
    bar_wait(a, True)
    a(f"s_setprio {cfg.mprio}")
    stamp(a, 5)
    def raw(N1, k): return RAW + N1 * 10 + 2 * k
    rr = [[f"ds_read_b64 {v2(raw(N1, k))}, v{MV+13} offset:{N1*512 + k*8}" for k in ks] for ks in ((0, 1, 2), (3, 4)) for N1 in range(8)]
    br = [[f"ds_read_b128 {v4(B + i*32 + 4*dl)}, v{MV+15} offset:{(14-2*dl)*128 + i*C_UH*16}" for dl in range(8)] for i in range(2)]
    def al(i, N1): return [f"v_alignbit_b32 v{A + 4*N1 + k}, v{raw(N1, 2*i) + k + 1}, v{raw(N1, 2*i) + k}, v{MV+14}" for k in range(4)]
    a.extend(rr[0] + br[0])
    for N1 in range(1, 8): a.extend(rr[N1])
    a.extend(al(0, 0))
    queue = [x for N1 in range(1, 8) for x in al(0, N1)]
    queue = queue[:4] + interleave(queue[4:], br[1] + [x for N1 in range(8) for x in rr[8 + N1]])
    def wr(J): return f"ds_write_b128 v251, {v4(ACC + 4*J)} offset:{1024*J}"
    for i in range(2):
        for N1 in range(8):
            tg = f"v_alignbit_b32 v{A+4*N1+3},"
            pos = min((k for k, q in enumerate(queue) if q.startswith(tg)), default=-1) if not (i == 0 and N1 == 0) else -1
            for q in queue[:pos + 1]: a(q)
            queue = queue[pos + 1:]
            for J in range(N1, 8):
                acc = v4(ACC + 4 * J)
                a(f"v_mfma_f32_16x16x32_bf16 {acc}, {v4(A+4*N1)}, {v4(B + i*32 + 4*(J-N1))}, {'0' if (i == 0 and N1 == 0) else acc}")
                for _ in range(2):
                    if queue: a(queue.pop(0))
            if i == 0: queue += al(1, N1)
            elif N1 >= 2: queue.append(wr(N1 - 2))
    a.extend(queue + [wr(6), wr(7)])
    bar_arrive(a); bar_wait(a, True)
    stamp(a, 6)
    for src in range(4):
        base = 0 if src == 0 else 21504 + 8192 * (src - 1)
        for h in range(2): a(f"ds_read_b128 {v4(48 + 8*src + 4*h)}, v252 offset:{base + 256*h}")
    for r in range(8): a(f"v_add_f32 v{48+r}, v{48+r}, v{56+r}")
    for r in range(8): a(f"v_add_f32 v{64+r}, v{64+r}, v{72+r}")
    for r in range(8): a(f"v_add_f32 v{48+r}, v{48+r}, v{64+r}")
    for d in range(4): a(f"v_cvt_pk_bf16_f32 v{80+d}, v{48+2*d}, v{49+2*d}")
    a(f"buffer_store_dwordx4 v[80:83], v6, {sq(SRDWS)}, s55 offen sc1")
    signal(a, 63, 4, L_SIG, 64)
    stamp(a, 7)

def role_kv(a):
    EX, HB = G_SLOT, 0
    DUMP = HB + 4 * 2048
    AD = 208
    a(f"""v_lshlrev_b32 v240, 4, v1
    s_mul_i32 s52, s{SW}, 10240
    s_add_u32 s52, s52, {EX}
    v_add_u32 v{AD+6}, s52, v240
    s_lshl_b32 s52, s{SW}, 10
    s_add_u32 s52, s52, {EX}
    v_add_u32 v{AD+7}, s52, v240
    v_and_b32 v246, 15, v1
    v_lshrrev_b32 v247, 4, v1
    v_lshlrev_b32 v247, 2, v247
    s_lshl_b32 s52, s{SW}, 2
    v_subrev_u32 v246, s52, v246
    v_subrev_u32 v247, s52, v247
    s_lshl_b32 s53, s{SW}, 11
    v_mov_b32 v245, {DUMP}
    v_lshlrev_b32 v{AD+8}, 2, v1
    v_add_u32 v{AD+9}, s53, v{AD+8}""")
    for k in range(4): a(f"v_mov_b32 v{AD+12+k}, 0x3f803f80")
    k = 0
    for dt in range(2):
        for et in range(2):
            a(f"""v_add_u32 v240, {16*dt}, v247
            v_add_u32 v241, {16*et}, v246
            v_max_u32 v242, v240, v241
            v_cmp_gt_u32 vcc, 20, v242
            v_mul_u32_u24 v241, 80, v241
            v_lshl_add_u32 v241, v240, 2, v241
            v_add_u32 v241, s53, v241
            v_cndmask_b32 v{AD+k}, v245, v241, vcc""")
            k += 1
        a(f"""v_add_u32 v240, {16*dt}, v247
        v_and_b32 v241, 15, v1
        v_mul_u32_u24 v241, 20, v241
        v_max_u32 v242, v240, v241
        v_cmp_gt_u32 vcc, 20, v242
        v_lshlrev_b32 v240, 2, v240
        v_add_u32 v240, s53, v240
        v_add_u32 v240, 1600, v240
        v_cndmask_b32 v{AD+4+dt}, v245, v240, vcc""")
    a(f"""s_lshl_b32 s52, s58, 2
    s_add_u32 s52, s52, s{SW}
    s_mul_i32 s52, s52, 1680
    s_add_u32 s52, s52, {WS_KV}
""")
    a(f"s_lshl_b32 s53, s58, 7\n s_add_u32 s6, s{P_WS}, s53\n s_addc_u32 s7, s{P_WS+1}, 0")
    mini_head(a)
    def tail(mf):
        ep = []
        for t in [0, 1, 5, 2, 6, 7, 3, 8, 9, 4]:
            r0 = G_ACC + t * 4; r1 = G_ACC + (10 + t) * 4
            if t < 5: ep += phi_block(list(range(r0, r0 + 4)) + list(range(r1, r1 + 4)), list(range(240, 248)))
            d = G_B + t * 4
            ep += [f"v_cvt_pk_bf16_f32 v{d}, v{r0}, v{r0+1}", f"v_cvt_pk_bf16_f32 v{d+1}, v{r0+2}, v{r0+3}",
                   f"v_cvt_pk_bf16_f32 v{d+2}, v{r1}, v{r1+1}", f"v_cvt_pk_bf16_f32 v{d+3}, v{r1+2}, v{r1+3}",
                   f"ds_write_b128 v{AD+6}, {v4(d)} offset:{t*1024}"]
        if cfg.wlate:
            wr = [x for x in ep if x.startswith("ds_write")]; ep = [x for x in ep if not x.startswith("ds_write")]
            ep = ep[:-cfg.wlate] + interleave(ep[-cfg.wlate:], wr[:9]) + wr[9:]
        n = 2 * (len(mf) - 6)
        a.extend(mf[:6])
        a.extend(interleave(mf[6:], ep[:n]))
        stamp(a, 2)
        a.extend(ep[n:])
    g_main(a, False, tail)
    uld = f"buffer_load_dwordx4 {v4(MV+8)}, v6, {sq(SRDWS)}, s62 offen sc1"
    bar_arrive(a)
    a("PUSHSTATE\n" + probe(7, 8, "s61") + "\n s_mov_b32 s67, 0\n POPSTATE")
    bar_wait(a, True)
    F = 136
    for rg in range(4):
        for q, off in enumerate([0, 5120, 1024, 6144]):
            a(f"ds_read_b128 {v4(F + rg*16 + [0, 2, 1, 3][q]*4)}, v{AD+7} offset:{rg*10240 + off}")
    D = 16
    for rg in range(4):
        for dt in range(2):
            A = v4(F + rg * 16 + dt * 4)
            acc = v4(D + 16 + dt * 4)
            a(f"v_mfma_f32_16x16x32_bf16 {acc}, {A}, {v4(AD+12)}, {'0' if rg == 0 else acc}")
            for et in range(2):
                acc = v4(D + (dt * 2 + et) * 4)
                a(f"v_mfma_f32_16x16x32_bf16 {acc}, {A}, {v4(F + rg*16 + 8 + et*4)}, {'0' if rg == 0 else acc}")
    for k in [4, 0, 1, 5, 2, 3]: a(f"ds_write_b128 v{AD+k}, {v4(D + 4*k)}")
    for i in range(7): a(f"ds_read_b32 v{48+i}, v{AD+9} offset:{256*i}")
    stamp(a, 3)
    for i in range(7):
        if i == 6: a("s_mov_b32 exec_hi, 0xf")
        a(f"buffer_atomic_add_f32 v{48+i}, v{AD+8}, {sq(SRDWS)}, s52 offen offset:{256*i}")
    a("s_mov_b64 exec, -1")
    a(f"s_waitcnt vmcnt(7)\n PUSHSTATE\n v_cmp_gt_u32 vcc, 1, v7\n s_nop 1\n s_cbranch_vccnz L_MU3\n {uld}\n s_mov_b32 s67, 1\n POPSTATE")
    a.label("L_MU3")
    mini_conv(a, uld)

C_HCOPY = 4224; C_UH = 144; C_WAVE = 2 * C_HCOPY + 2 * C_UH * 16
C_STG = HALF + 4 * C_WAVE; C_STGP = 4160
PV = 224
def WOW():
    if not cfg.wowarm: return ""
    if cfg.wowarm >= 2:
        o = f"""s_cmp_eq_u32 s{SW8}, 0
        s_cbranch_scc1 L_WW
        s_lshr_b32 s52, s2, 4
        s_sub_u32 s52, s52, 12
        s_mul_i32 s52, s52, {160*1280}
        s_bfe_u32 s53, s2, 0x10003
        s_mul_i32 s53, s53, 640
        s_add_u32 s52, s52, s53
        s_sub_u32 s53, s{SW8}, 1
        s_mul_i32 s53, s53, {64*1280}
        s_add_u32 s52, s52, s53
        v_mul_u32_u24 v3, 1280, v1
        v_add_u32 v3, s52, v3
        """
        if cfg.wowarm == 3: o += f"s_cmp_eq_u32 s{SW8}, 1\n s_cbranch_scc1 L_WW\n"
        for j in range(5): o += f"global_load_dword v{16+j}, v3, s[{P_WO}:{P_WO+1}] offset:{128*j}\n"
        return o + "s_waitcnt vmcnt(0)\n L_WW:"
    return f"""s_cmp_eq_u32 s{SW8}, 0
    s_cbranch_scc1 L_WW
    s_sub_u32 s52, s2, 192
    s_lshl_b32 s52, s52, 1
    s_add_u32 s52, s52, s{SW8}
    s_sub_u32 s52, s52, 1
    s_mul_i32 s52, s52, 6400
    v_lshlrev_b32 v3, 7, v1
    v_min_u32 v3, 6272, v3
    v_add_u32 v3, s52, v3
    global_load_dword v15, v3, s[{P_WO}:{P_WO+1}]
    s_waitcnt vmcnt(0)
    L_WW:"""
def role_prep(a):
    a(f"""s_and_b32 s52, s2, 7
    s_lshl_b32 s52, s52, 2
    s_bfe_u32 s53, s2, 0x20004
    s_add_u32 s52, s52, s53
    s_lshl_b32 s52, s52, 6
    s_bfe_u32 s65, s2, 0x10003
    s_mul_i32 s53, s65, 320
    s_sub_u32 s54, s{SW8}, 3
    s_lshl_b32 s55, s{SW8}, 1
    s_cmp_ge_u32 s{SW8}, 3
    s_cselect_b32 s54, s54, s55
    s_lshl_b32 s54, s54, 6
    s_add_u32 s53, s53, s54
    v_lshrrev_b32 v240, 3, v1
    v_lshl_add_u32 v241, v240, 3, s52
    v_and_b32 v242, 7, v1
    v_lshl_add_u32 v243, v242, 3, s53
    v_mul_u32_u24 v241, 1280, v241
    v_lshl_add_u32 v{PV}, v243, 1, v241
    s_movk_i32 s55, 5120""")
    def common2(rev):
        a(f"""v_add_u32 v241, s53, v240
        v_mul_u32_u24 v241, {TP}, v241
        v_lshl_add_u32 v{PV+3}, v242, 4, v241
        s_mul_i32 s54, s{SW}, 20480
        s_mul_i32 s63, s{SGRP}, 10240
        s_add_u32 s54, s54, s63
        v_mul_u32_u24 v241, 1040, v242
        v_add_u32 v241, s54, v241""")
        if rev: a("v_sub_u32 v240, 7, v240")
        a(f"""v_lshl_add_u32 v{PV+4}, v240, 4, v241
        v_lshl_add_u32 v{PV+5}, v1, 4, s54
        s_lshl_b32 s64, s52, 1
        s_mov_b32 s70, 0x05040100
        s_mov_b32 s71, 0x07060302""")
    def rds(R): return [f"ds_read_b128 {v4(R+4*i)}, v{PV+5} offset:{1040*i}" for i in range(8)]
    def sts(R, extra): return [x for i in range(8) for x in (f"s_add_u32 s54, s64, {8*TP*i + extra}", f"buffer_store_dwordx4 {v4(R+4*i)}, v{PV+3}, {sq(SRDWS)}, s54 offen sc1")]
    a(f"s_cmp_lt_u32 s{SW8}, 3\n s_cbranch_scc1 L_PQ")
    tag(a, 3)
    a(f"v_subrev_u32 v{PV+1}, 3840, v{PV}\n v_lshlrev_b32 v{PV+2}, 3, v243\n s_waitcnt lgkmcnt(0)")
    srd(a, SRD0, P_K, 2048 * 1280)
    if cfg.x_pd: a(f"s_sleep {cfg.x_pd}")
    K, V, C = 16, 60, 92
    for r in range(3): a(f"buffer_load_dwordx4 {v4(K+4*r)}, v{PV+1}, {sq(SRD0)}, 0 offen offset:{1280*r}")
    for r in range(8): a(f"buffer_load_dwordx4 {v4(K+12+4*r)}, v{PV}, {sq(SRD0)}, {'s55' if r >= 4 else '0'} offen offset:{1280*(r%4)}")
    srd(a, SRD1, P_V, 2048 * 1280); srd(a, SRD3, P_SH, 640 * 8)
    for r in range(4): a(f"buffer_load_dwordx4 {v4(C+4*r)}, v{PV+2}, {sq(SRD3)}, 0 offen offset:{16*r}")
    for r in range(8):
        a(f"buffer_load_dwordx4 {v4(V+4*r)}, v{PV}, {sq(SRD1)}, {'s55' if r >= 4 else '0'} offen offset:{1280*(r%4)}")
    args_ready(a)
    common2(True)
    a(f"s_sub_u32 s64, {WS_UT + 1984*2}, s64\n s_mov_b32 s62, 0xffff0000")
    stamp(a, 1)
    P, T, U, O = 108, 120, 184, 192
    for ch in range(8):
        dw, hi = ch // 2, ch % 2
        sel = "s71" if hi else "s70"
        for s_ in range(-2, 8):
            a(f"v_perm_b32 v{P+s_+2}, v{K+4*(s_+2)+dw}, v{K+4*(s_+3)+dw}, {sel}")
        for s_ in range(8): a(f"v_dot2_f32_bf16 v{T+8*ch+s_}, v{P+s_}, v{C+2*ch+1}, 0")
        for s_ in range(8): a(f"v_dot2_f32_bf16 v{T+8*ch+s_}, v{P+s_+2}, v{C+2*ch}, v{T+8*ch+s_}")
    for ch in range(8):
        dw, hi = ch // 2, ch % 2
        for s_ in range(8):
            a(f"v_and_b32 v{U+s_}, s62, v{V+4*s_+dw}" if hi else f"v_lshlrev_b32 v{U+s_}, 16, v{V+4*s_+dw}")
        for s_ in range(8): a(f"v_mul_f32 v{T+8*ch+s_}, v{T+8*ch+s_}, v{U+s_}")
        o = O + 4 * ch
        for j in range(4): a(f"v_cvt_pk_bf16_f32 v{o+j}, v{T+8*ch+7-2*j}, v{T+8*ch+6-2*j}")
        a(f"ds_write_b128 v{PV+4}, {v4(o)} offset:{128*ch}")
    a.extend(rds(16) + sts(16, 0))
    stamp(a, 2)
    zero_probe(a, 3, 4)
    zero_check(a, "pu", 3, 4)
    a("s_waitcnt vmcnt(0)\n s_barrier")
    stamp(a, 3)
    a(f"s_cmp_eq_u32 s{SGRP}, 1\n s_cbranch_scc1 L_CONV\n s_branch L_PW")
    a.label("L_PQ")
    tag(a, 6)
    if not cfg.pfe:
        a(f"s_cmp_lg_u32 s{SW8}, 2\n s_cbranch_scc1 L_PQ0")
        init_wave(a, "p")
        a.label("L_PQ0")
    args_ready(a)
    a(f"""s_lshl_b32 s65, s65, 10
    s_add_u32 s65, s65, {WS_UFLG}
    s_add_u32 s68, s{P_WS}, s65
    s_addc_u32 s69, s{P_WS+1}, 0
    s_mov_b32 s78, 1
    s_mov_b32 s79, 1
    s_waitcnt vmcnt(0)
    s_barrier
    {WOW()}
    s_cmp_lg_u32 s{SW8}, 0
    s_cbranch_scc1 L_PW
    s_atomic_add s79, s[68:69], {WS_CNT} glc
    s_waitcnt lgkmcnt(0)
    s_cmp_lg_u32 s79, 31
    s_cbranch_scc1 L_PW""")
    for r in range(cfg.nrep): a(f"s_atomic_add s78, s[68:69], {128*r}")
    a("s_waitcnt lgkmcnt(0)")
    a.label("L_PW")
    if cfg.pearly: a("s_branch L_B2")
    a(f"v_mov_b32 v13, {HALF + L_BAR + 8}")
    a.label("L_PWW")
    a("s_sleep 4\n ds_read_b32 v14, v13\n s_waitcnt lgkmcnt(0)\n v_cmp_gt_u32 vcc, 4, v14\n s_nop 1\n s_cbranch_vccnz L_PWW")
    stamp(a, 3)
    a("s_branch L_B2")

def conv_head(a, pr=False):
    a(f"""s_and_b32 s52, s2, 7
    s_lshl_b32 s52, s52, 4
    s_lshr_b32 s53, s2, 3
    s_and_b32 s61, s2, {7 if cfg.nrep == 8 else 0}
    s_sub_u32 s53, s53, 16
    s_add_u32 s57, s52, s53
    s_lshl_b32 s58, s57, 2
    s_add_u32 s58, s58, s{SW}
    s_lshl_b32 s59, s58, 12
    s_mul_i32 s60, s{SW}, {C_WAVE}
    s_add_u32 s60, s60, s{SLB}
    s_add_u32 s52, s{P_H}, s59
    s_addc_u32 s53, s{P_H+1}, 0
    s_load_dword s66, s[52:53], 0
    s_lshr_b32 s54, s58, 1
    s_lshl_b32 s54, s54, 2
    s_load_dword s67, s[{P_D}:{P_D+1}], s54
    s_lshl_b32 s61, s61, 7
    s_cmp_ge_u32 s57, 80
    s_cselect_b32 s54, {0 if cfg.uall else 1024}, 0
    s_add_u32 s61, s61, s54
    s_add_u32 s61, s61, {WS_UFLG}
    s_lshr_b32 s63, s57, 4
    s_mul_i32 s63, s63, {0 if cfg.yall else 1024}
    s_add_u32 s63, s63, {WS_YFLG}
    v_lshlrev_b32 v2, 4, v1
    v_add_u32 v3, 4, v2
    v_mov_b32 v12, 0""")
    if pr: a(probe(15, 12, "s61"))
    srd(a, SRD0, P_H, 640 * 4096)
    a(f"s_add_u32 m0, s60, 32")
    for i in range(4): a(f"buffer_load_dwordx4 v2, {sq(SRD0)}, s59 offen offset:{1024*i} lds ; tag=H")
    a(f"s_add_u32 m0, s60, {C_HCOPY + 32}")
    for i in range(4): a(f"buffer_load_dwordx4 v3, {sq(SRD0)}, s59 offen offset:{1024*i} lds ; tag=H")

def role_conv(a):
    ACC, A, RAW, B, UL = 16, 48, 80, 128, 224
    conv_head(a, True)
    last_barrier(a, "conv", 9)
    a.label("L_CONV2")
    tag(a, 4)
    stamp(a, 4)
    a(f"s_mul_i32 s55, s58, {TP}\n s_add_u32 s65, s55, {WS_UT}\n s_add_u32 s55, s55, {WS_YT}")
    uld = [f"buffer_load_dwordx4 {v4(UL+4*i)}, v2, {sq(SRDWS)}, s65 offen offset:{1024*i} sc1" for i in range(4)]
    fin_strip(a); fin_head(a)
    a(f"""v_and_b32 v8, 15, v1
    v_lshrrev_b32 v9, 4, v1
    v_add_u32 v10, 1, v8
    v_bfe_u32 v11, v10, 1, 1
    v_mul_u32_u24 v11, {C_HCOPY}, v11
    v_lshrrev_b32 v13, 2, v10
    v_lshl_add_u32 v13, v9, 3, v13
    v_lshl_add_u32 v11, v13, 3, v11
    v_add_u32 v4, s60, v11
    v_and_b32 v10, 1, v10
    v_lshlrev_b32 v5, 4, v10
    v_lshlrev_b32 v10, 1, v9
    v_sub_u32 v10, v10, v8
    v_add_u32 v10, 15, v10
    v_lshlrev_b32 v10, 4, v10
    v_add_u32 v6, s60, v10
    v_lshrrev_b32 v10, 1, v1
    v_and_b32 v11, 1, v1
    v_mul_u32_u24 v11, {C_UH}, v11
    v_add_u32 v10, v10, v11
    v_lshlrev_b32 v10, 4, v10
    v_add_u32 v7, s60, v10
    v_mov_b32 v16, 0
    v_mov_b32 v17, 0
    v_mov_b32 v18, 0
    v_mov_b32 v19, 0
    v_and_b32 v10, 1, v9
    v_mul_u32_u24 v10, {C_UH}, v10
    v_add_u32 v10, v10, v8
    v_lshl_add_u32 v20, v10, 4, s60
    v_and_b32 v10, 1, v1
    v_lshlrev_b32 v10, 4, v10
    v_bfe_u32 v11, v1, 1, 1
    v_mul_u32_u24 v11, {C_HCOPY}, v11
    v_add3_u32 v21, v10, v11, s60
    v_lshlrev_b32 v10, 5, v8
    v_lshl_add_u32 v8, v9, 3, v10""")
    a(f"""s_waitcnt lgkmcnt(0)
    s_lshl_b32 s52, s66, 16
    s_lshl_b32 s53, s67, 16
    s_and_b32 s54, s67, 0xffff0000
    s_bitcmp1_b32 s58, 0
    s_cselect_b32 s53, s54, s53
    s_and_b32 s54, s66, 0xffff0000
    v_mov_b32 v10, s52
    v_add_f32 v10, s53, v10
    v_mov_b32 v11, s54
    v_cvt_pk_bf16_f32 v10, v10, v11
    v_mov_b32 v11, s60
    WAITTAG H
    v_cmp_gt_u32 vcc, 1, v15
    s_mov_b32 s62, 0
    s_nop 0
    s_cbranch_vccnz L_CU0
    PUSHSTATE
    {chr(10).join(uld)}
    s_mov_b32 s62, 1
    s_branch L_CU1
    POPSTATE
    L_CU0:
    {probe(15, 12, "s61")}
    L_CU1:
    ds_write_b128 v21, v[16:19]
    ds_write_b32 v11, v10 offset:32
    ds_write_b32 v11, v10 offset:{C_HCOPY+28}
    ds_write_b128 v20, v[16:19] offset:{2*C_HCOPY + 128*16}""")
    def raw_slots(i):
        return [(0, 1, 2), (2, 0, 1), (1, 2, 0), (0, 1, 2)][i]
    def raw_reads(it, N1):
        N0, i = it >> 2, it & 3
        sl = raw_slots(i)
        return [f"ds_read_b64 {v2(RAW + N1*6 + 2*sl[k])}, v4 offset:{(2*N1+N0)*256 + (2*i+k)*8}" for k in range(0 if i == 0 else 1, 3)]
    def aligns(it, N1):
        sl = raw_slots(it & 3)
        d = [RAW + N1 * 6 + 2 * sl[0], RAW + N1 * 6 + 2 * sl[0] + 1, RAW + N1 * 6 + 2 * sl[1], RAW + N1 * 6 + 2 * sl[1] + 1, RAW + N1 * 6 + 2 * sl[2]]
        return [f"v_alignbit_b32 v{A + 4*N1 + k}, v{d[k+1]}, v{d[k]}, v5" for k in range(4)]
    def b_reads(it):
        N0, i = it >> 2, it & 3
        return [f"ds_read_b128 {v4(B + (it&1)*32 + 4*dl)}, v6 offset:{2*C_HCOPY + (14-(2*dl-N0))*128 + (i>>1)*16 + (i&1)*C_UH*16}" for dl in range(8)]
    for N1 in range(8): a.extend(raw_reads(0, N1))
    for N1 in range(8):
        a.extend(aligns(0, N1)); a.extend(raw_reads(1, N1))
    a("s_cmp_eq_u32 s62, 1\n s_cbranch_scc1 L_CU2\n PUSHSTATE")
    check(a, "convu", 15, 12, "s61", 1)
    a.extend(uld)
    a("POPSTATE"); a.label("L_CU2")
    stamp(a, 5)
    a("s_waitcnt vmcnt(0)")
    for i in range(4): a(f"ds_write_b128 v7, {v4(UL+4*i)} offset:{2*C_HCOPY + 512*i}")
    a.extend(b_reads(0))
    gate_arrive(a)
    a(f"s_setprio {cfg.vprio}")
    stamp(a, 6)
    def epi(J):
        T = 80 + 2 * J
        o = [f"v_cvt_pk_bf16_f32 v{T}, v{ACC+4*J}, v{ACC+4*J+1}", f"v_cvt_pk_bf16_f32 v{T+1}, v{ACC+4*J+2}, v{ACC+4*J+3}", f"ds_write_b64 v9, {v2(T)} offset:{512*J}"]
        if J & 1: o.append(f"ds_read_b128 {v4(96+2*(J-1))}, v10 offset:{512*(J-1)} ; y")
        if J in (3, 5): o.append(ysto((J - 3) // 2))
        return o
    def ysto(i): return f"buffer_store_dwordx4 {v4(96+4*i)}, v2, {sq(SRDWS)}, s55 offen offset:{1024*i} sc1"
    a("v_add_u32 v9, s60, v8\n v_add_u32 v10, s60, v2")
    queue = []
    for it in range(8):
        if it == 7: a(f"s_setprio {cfg.eprio}")
        if it < 7: queue += b_reads(it + 1)
        if it == cfg.qit:
            a("s_cmp_ge_u32 s56, 10\n s_cbranch_scc1 L_NQ\n PUSHSTATE"); a.extend(fin_qloads()); a("POPSTATE"); a.label("L_NQ")
        for N1 in range(8):
            tg = f"v_alignbit_b32 v{A+4*N1+3},"
            pos = max((k for k, q in enumerate(queue) if q.startswith(tg)), default=-1)
            for q in queue[:pos + 1]: a(q)
            queue = queue[pos + 1:]
            for J in range(N1, 8):
                acc = v4(ACC + 4 * J)
                c = "0" if (it == 0 and N1 == 0) else acc
                a(f"v_mfma_f32_16x16x32_bf16 {acc}, {v4(A+4*N1)}, {v4(B + (it&1)*32 + 4*(J-N1))}, {c}")
                if not cfg.mix:
                    for _ in range(2):
                        if queue: a(queue.pop(0))
                elif queue:
                    q = queue.pop(0); a(q)
                    if queue:
                        if q.startswith("ds_") and queue[0].startswith("ds_"):
                            k = next((k for k, x in enumerate(queue) if x.startswith("v_alignbit")), None)
                            if k is not None: a(queue.pop(k))
                            elif len(queue) > cfg.mix * 6: a(queue.pop(0))
                        elif q.startswith("v_alignbit") and queue[0].startswith("v_alignbit"):
                            k = next((k for k, x in enumerate(queue) if x.startswith("ds_read_b128") and not x.endswith("; y")), None)
                            a(queue.pop(k if k is not None else 0))
                        else: a(queue.pop(0))
            if it == 7 and N1 >= 2: queue += epi(N1 - 2)
            if it < 7: queue += aligns(it + 1, N1)
            if it < 6: queue += raw_reads(it + 2, N1)
        assert not any(q.startswith("ds_read_b128") and not q.endswith("; y") for q in queue)
    a.extend(queue)
    stamp(a, 7)
    a.extend(epi(6) + epi(7) + [ysto(2), ysto(3)])
    stamp(a, 8)
    signal(a, 63, 4, L_BAR + 12, 16)

FV = 240
def fin_head(a):
    a(f"""s_and_b32 s52, s2, 7
    s_lshl_b32 s52, s52, 2
    s_add_u32 s52, s52, s{SW}
    s_lshl_b32 s52, s52, 6
    s_lshl_b32 s53, s56, 6
    v_lshrrev_b32 v244, 3, v1
    v_lshl_add_u32 v245, v244, 3, s52
    v_and_b32 v246, 7, v1
    v_lshl_add_u32 v247, v246, 3, s53
    v_mul_u32_u24 v245, 1280, v245
    v_lshl_add_u32 v247, v247, 1, v245
    v_add_u32 v{FV}, v247, v245
    v_add_u32 v245, s53, v244
    v_mul_u32_u24 v245, {TP}, v245
    v_lshl_add_u32 v{FV+1}, v246, 4, v245
    v_mul_u32_u24 v245, 1040, v246
    v_lshl_add_u32 v245, v244, 4, v245
    v_add_u32 v{FV+2}, s60, v245
    s_lshl_b32 s64, s52, 1
    s_add_u32 s64, s64, {WS_YT}
    s_movk_i32 s53, 5120""")
    srd(a, SRD2, P_Q, 2048 * 1280); srd(a, SRD1, P_OUT, 2048 * 2560)
    a("s_cmp_ge_u32 s56, 10\n s_cselect_b32 s70, 0x40000000, 0\n s_add_u32 s71, s70, 5120")
def fin_qloads(): return [f"buffer_load_dwordx4 {v4(192+4*r)}, v247, {sq(SRD2)}, {'s71' if r >= 4 else 's70'} offen offset:{1280*(r%4)}" for r in range(8)]
def fin_strip(a):
    a(f"""s_lshr_b32 s53, s2, 3
    s_mul_i32 s54, s{SGRP}, 5
    s_add_u32 s56, s53, s54
    s_sub_u32 s56, s56, 16
    s_cmp_lt_u32 s53, 21
    s_cselect_b32 s56, s56, 15""")
def fin_g0(a):
    fin_strip(a)
    a(f"s_mul_i32 s60, s{SW}, 8448\n s_add_u32 s60, s60, 16384\n v_lshl_add_u32 v10, v1, 4, s60")
    fin_head(a)
    a.extend(fin_qloads())
    bar_wait(a)
    a("s_waitcnt vmcnt(0)\n s_branch L_FINR")

def role_fin(a):
    Q, QF, Y, T, L = 192, 48, 112, 144, 16
    a(f"""s_setprio {cfg.fprio}
    s_and_b32 s61, s2, {7 if cfg.nrep == 8 else 0}
    s_lshl_b32 s61, s61, 7
    s_mul_i32 s54, s56, {0 if cfg.yall else 1024}
    s_add_u32 s61, s61, s54
    s_add_u32 s61, s61, {WS_YFLG}
    s_mov_b32 s62, 0xffff0000
    v_mov_b32 v12, 0""")
    a(probe(15, 12, "s61"))
    for r in range(8):
        for d in range(4):
            a(f"v_lshlrev_b32 v{QF+8*r+2*d}, 16, v{Q+4*r+d}\n v_and_b32 v{QF+8*r+2*d+1}, s62, v{Q+4*r+d}")
    stamp(a, 1)
    check(a, "fin", 15, 12, "s61", 1)
    stamp(a, 2)
    for i in range(8): a(f"s_add_u32 s54, s64, {8*TP*i}\n buffer_load_dwordx4 {v4(L+4*i)}, v{FV+1}, {sq(SRDWS)}, s54 offen sc1")
    for i in range(8): a(f"ds_write_b128 v10, {v4(L+4*i)} offset:{1040*i}")
    for ch in range(8): a(f"ds_read_b128 {v4(Y+4*ch)}, v{FV+2} offset:{128*ch}")
    stamp(a, 3)
    a("s_mov_b32 s54, 0")
    for r in range(8):
        t = T + 8 * (r & 1)
        for ch in range(8):
            src = Y + 4 * ch + r // 2
            a(f"v_and_b32 v{t+ch}, s62, v{src}" if r & 1 else f"v_lshlrev_b32 v{t+ch}, 16, v{src}")
        for ch in range(8): a(f"v_mul_f32 v{t+ch}, v{t+ch}, v{QF+8*r+ch}")
        o = 160 + 4 * r
        for d in range(4): a(f"v_cvt_pk_bf16_f32 v{o+d}, v{t+2*d}, v{t+2*d+1}")
        a(f"buffer_store_dwordx4 {v4(o)}, v{FV}, {sq(SRD1)}, s54 offen{OSC(cfg.fsc)}")
        if r < 7: a("s_add_u32 s54, s54, 2560")

def b2_tables(hf):
    num = {}
    for t in range(5 * hf, 5 * hf + 5):
        hs = {e // 20 for e in range(16 * t, 16 * t + 16)}
        dts = [dt for dt in range(10) if hs & {d // 20 for d in range(16 * dt, 16 * dt + 16)}]
        ch = {}
        for dt in dts: ch.setdefault(dt // 2, []).append(dt)
        num[t] = sorted(ch.items())
    ch = {}
    for dt in range(5 * hf, 5 * hf + 5): ch.setdefault(dt // 2, []).append(dt)
    return num, sorted(ch.items())

NS = 3
def role_b2(a):
    PQ, KV, RAW = 16, 108, 180
    WA = [76 + 4 * n for n in range(8)]
    WB = [228 + 4 * n for n in range(7)] + [8]
    ACC = 108
    U = [180, 204]
    b2_head(a, 2)
    dma = b2_dma
    def wreads(slot, dst):
        return [f"ds_read_b64_tr_b16 {v2(dst[n] + 2*h)}, v0 offset:{slot*B_KS + h*512 + 32*n}" for n in range(8) for h in range(2)]
    if not cfg.qearly: bar_wait(a)
    d01 = dma(0, 0) + dma(1, 1)
    for g in d01[:cfg.nb9]: a.extend(g)
    last_barrier(a, "b2", cfg.nb9)
    for g in d01[cfg.nb9:]: a.extend(g)
    a.label("L_B2Q")
    a("v_and_b32 v8, 15, v1\n v_lshrrev_b32 v9, 4, v1")
    a(f"s_setprio {cfg.cprio}")
    srd(a, SRD1, P_OUT, 2048 * 2560)
    a(f"""v_bfe_u32 v10, v1, 2, 3
    v_mul_u32_u24 v10, 1056, v10
    v_lshrrev_b32 v11, 5, v1
    v_lshl_add_u32 v10, v11, 8, v10
    v_and_b32 v11, 3, v1
    v_lshl_add_u32 v10, v11, 3, v10
    v_add_u32 v0, s65, v10
    s_add_u32 s64, s65, {2*B_KS}
    v_lshlrev_b32 v9, 3, v9
    v_mul_u32_u24 v3, 40, v8
    v_add3_u32 v3, v3, v9, s64
    v_mul_u32_u24 v4, 800, v11
    v_add3_u32 v4, v4, v9, s64
    v_lshlrev_b32 v5, 4, v1
    v_lshlrev_b32 v6, 3, v1
    v_add_u32 v6, s64, v6
    v_add_u32 v7, 4096, v5
    s_mul_i32 s52, s57, 3
    s_lshr_b32 s53, s52, 3
    s_add_u32 s54, s52, 2
    s_min_u32 s54, s54, 127
    s_lshr_b32 s54, s54, 3
    s_sub_u32 s54, s54, s53
    s_lshl_b32 s54, s54, 7
    v_and_b32 v12, 1, v1
    v_mul_u32_u24 v13, {0 if cfg.kvall else 128}, v12
    v_mul_u32_u24 v12, s54, v12
    s_mul_i32 s60, s{SW}, 17
    s_add_u32 s60, s60, s53
    s_lshl_b32 s60, s60, 7
    s_add_u32 s60, s60, {WS_QFLAG}
    s_and_b32 s61, s2, {cfg.krep - 1}
    s_lshl_b32 s61, s61, 10
    s_mul_i32 s53, s{SW}, {0 if cfg.kvall else 256}
    s_add_u32 s61, s61, s53
    s_mul_i32 s52, s52, 20480
    s_mul_i32 s53, s{SW}, 5120
    s_add_u32 s52, s52, s53
    s_add_u32 s52, s52, {WS_PQ}
    s_mul_i32 s62, s{SW}, {8*1680}
    s_add_u32 s62, s62, {WS_KV}
    s_mov_b32 s73, {EPS}
    s_mov_b32 s66, 0xffff0000
    s_mov_b32 s67, -1
    s_mov_b32 s68, 0
    s_mov_b32 s69, -1
    s_mov_b32 s70, 0
    s_mov_b32 s71, 0xffff0000""")
    if cfg.qpre: a(probe(14, 12, "s60"))
    for r in range(KV, KV + 72): a(f"v_mov_b32 v{r}, 0")
    def allmasks():
        ms = []
        num, den = b2_tables(0)
        for (kind, t, dt) in [("z", 0, dt) for c, dts in den for dt in dts] + [("n", t, dt) for t in num for c, dts in num[t] for dt in dts]:
            m = sum(1 << l for l in range(64) if (16 * dt + 4 * (l >> 4)) // 20 == ((16 * t + (l & 15)) // 20 if kind == "n" else (l & 3)))
            if m not in ms and m != (1 << 64) - 1: ms.append(m)
        return ms
    free = [4, 10, 12, 14, 16, 18, 36, 38, 40, 42, 44, 46, 20, 24]
    mreg = dict(zip(allmasks(), free)) if cfg.smask else {}
    for m, r in mreg.items(): a(f"s_mov_b32 s{r}, {m & 0xffffffff:#x}\n s_mov_b32 s{r+1}, {m >> 32:#x}")
    def setmask(m):
        if m == (1 << 64) - 1: return ["s_mov_b64 exec, -1"]
        if m in mreg: return [f"s_mov_b64 exec, s[{mreg[m]}:{mreg[m]+1}]"]
        return [f"s_mov_b32 exec_lo, {m & 0xffffffff:#x}", f"s_mov_b32 exec_hi, {m >> 32:#x}"]
    def pqpart(sfx=""):
        a(probe(14, 12, "s60"))
        stamp(a, 5)
        check(a, "b2q" + sfx, 14, 12, "s60", 1)
        pqloads()
    def pqloads():
        for sub in range(NS):
            for c in range(5):
                a(f"buffer_load_dwordx4 {v4(PQ + (sub*5+c)*4)}, v{5 if c < 4 else 7}, {sq(SRDWS)}, s52 offen offset:{1024*(c%4)} sc1")
            if sub == 0: a("s_add_u32 s52, s52, 20480")
            if sub == 1: a("s_cmp_eq_u32 s57, 42\n s_cselect_b32 s53, 0, 20480\n s_add_u32 s52, s52, s53")
    a("WAITTAG K0")
    a.extend(wreads(0, WA))
    a("WAITTAG K1")
    a.extend(wreads(1, WB))
    a("s_waitcnt lgkmcnt(0)")
    if cfg.early23:
        a(f"s_cmp_eq_u32 s{SLD}, 0\n s_cbranch_scc1 L_E23\n PUSHSTATE")
        for g in dma(2, 0) + dma(3, 1): a.extend(g)
        a("POPSTATE"); a.label("L_E23")
    a(f"s_mov_b32 s79, 1\n s_mov_b32 s8, 0\n s_sub_u32 s54, {HALF + L_BAR + 8}, s{SLB}\n v_mov_b32 v15, s54")
    if cfg.qpre:
        a(f"v_cmp_gt_u32 vcc, 1, v14\n s_sub_u32 s53, s2, 128\n s_cmp_ge_u32 s53, 64\n s_cbranch_scc1 L_QP\n s_cbranch_vccnz L_GT\n PUSHSTATE\n s_mov_b32 s8, 1")
        pqloads()
        a("s_branch L_GT\n POPSTATE"); a.label("L_QP")
    a(f"""s_cmp_ge_u32 s2, 192
    s_cbranch_scc1 L_GTW
    s_cmp_eq_u32 s{SLD}, 0
    s_cbranch_scc1 L_GT
    {'s_branch L_GTW' if cfg.nogq & 1 else ''}
    PUSHSTATE""")
    a.label("L_GQ")
    a(f"""{probe(14, 12, "s60")}
    s_waitcnt vmcnt(0)
    ds_read_b32 v16, v15
    v_cmp_gt_u32 vcc, 1, v14
    s_nop 1
    s_cbranch_vccz L_GQ1
    s_waitcnt lgkmcnt(0)
    v_cmp_gt_u32 vcc, 4, v16
    s_nop 1
    s_cbranch_vccz L_GO
    s_sleep 1
    s_branch L_GQ""")
    a.label("L_GQ1")
    a("s_waitcnt lgkmcnt(0)\n s_mov_b32 s8, 1")
    pqloads()
    a("POPSTATE")
    a.label("L_GTW")
    a("ds_read_b32 v14, v15\n s_waitcnt lgkmcnt(0)\n v_cmp_gt_u32 vcc, 4, v14\n s_nop 1\n s_cbranch_vccz L_GO\n s_sleep 1\n s_branch L_GTW")
    a.label("L_GO")
    if not cfg.sig0:
        a(f"s_cmp_eq_u32 s{SLD}, 0\n s_cbranch_scc1 L_GT\n s_cmp_lg_u32 s{SW}, 0\n s_cbranch_scc1 L_GT")
        a(f"s_atomic_add s79, s[6:7], {WS_CNT} glc")
    if cfg.nogq & 2:
        a(f"s_cmp_eq_u32 s{SLD}, 0\n s_cbranch_scc1 L_GT\n PUSHSTATE\n s_mov_b32 s8, 1"); pqpart("z"); a("POPSTATE")
    a.label("L_GT")
    d23 = dma(2, 0) + dma(3, 1)
    if cfg.early23: a(f"s_cmp_lg_u32 s{SLD}, 0\n s_cbranch_scc1 L_E24")
    for g in d23[:cfg.sdel]: a.extend(g)
    if not cfg.sig0: a(f"s_waitcnt lgkmcnt(0)\n s_cmp_lg_u32 s79, 15\n s_cbranch_scc1 L_GT2\n s_mov_b32 s79, 1\n s_atomic_add s79, s[6:7], 0")
    a.label("L_GT2")
    for g in d23[cfg.sdel:]: a.extend(g)
    a.label("L_E24")
    S2 = 4 * C_WAVE; S2W = 7360
    assert S2 + 4 * S2W <= L_BAR
    a(f"s_sub_u32 s59, {HALF + S2}, s{SLB}\n s_mul_i32 s53, s{SW}, {S2W}\n s_add_u32 s59, s59, s53")
    a(f"s_add_u32 s55, s59, {7*1056}\n s_sub_u32 s55, s55, s64\n s_and_b32 s55, s55, 255\n s_add_u32 s55, s55, s64")
    for i in range(7): a(f"s_add_u32 m0, s59, {i*1056}\n s_mov_b32 s63, {(128 + i)*1280}\n buffer_load_dwordx4 v2, {sq(SRD0)}, s63 offen lds")
    a("s_waitcnt lgkmcnt(0)")
    if True:
        a(f"s_cmp_lg_u32 s8, 0\n s_cbranch_scc1 L_PQG\n PUSHSTATE"); pqpart("y"); a("POPSTATE"); a.label("L_PQG")
    a(probe(14, 13, "s61"))
    check(a, "b2kv", 14, 13, "s61", 1)
    stamp(a, 6)
    raw = [RAW + 4 * i for i in range(12)] + [KV + 64, KV + 68]
    for hf in range(2):
        for i in range(7):
            a(f"buffer_load_dwordx4 {v4(raw[hf*7+i])}, v{5 if i < 4 else 7}, {sq(SRDWS)}, s62 offen offset:{1024*(i%4)} sc1")
        if hf == 0: a("s_add_u32 s62, s62, 6720")
    for r in range(4): a(f"v_mov_b32 v{12+r}, s73")
    qi = {}
    tabs = [b2_tables(0), b2_tables(1)]
    def build_half(hf):
        o = []
        for i in range(7):
            r = raw[hf * 7 + i]
            o += [f"v_cvt_pk_bf16_f32 v{r}, v{r}, v{r+1}", f"v_cvt_pk_bf16_f32 v{r+1}, v{r+2}, v{r+3}", f"ds_write_b64 v6, {v2(r)} offset:{512*i}"]
        if hf == 1: o += [f"v_mov_b32 v{KV+64+k}, 0" for k in range(8)]
        num, den = tabs[hf]
        quads = [("z", hf, dt) for c, dts in den for dt in dts] + [("n", t, dt) for t in num for c, dts in num[t] for dt in dts]
        assert len(quads) == 18
        rd = []
        for (kind, t, dt) in quads:
            q = len(qi); qi[(kind, t, dt)] = q
            mask = 0
            for l in range(64):
                i, g = l & 15, l >> 4
                hd = (16 * dt + 4 * g) // 20
                he = (16 * t + i) // 20 if kind == "n" else (i & 3) + 4 * t
                if hd == he: mask |= 1 << l
            off = 640 * (t - 5 * hf) + 32 * (dt - 5 * hf) if kind == "n" else 800 + 32 * (dt - 5 * hf)
            rd.append(setmask(mask) + [f"ds_read_b64 {v2(KV + 2*q)}, v{3 if kind == 'n' else 4} offset:{off}"])
        return o, rd
    def omf(sub, hf, T):
        o = []
        num, den = tabs[hf]
        def one(kind, t, lst, acc):
            lst = sorted(lst, key=lambda x: len(x[1]))
            for k, (c, dts) in enumerate(lst):
                src = v4(acc) if k else ("v[12:15]" if kind == "z" else "0")
                kv = KV + 2 * qi[(kind, t, dts[0])]
                pq = PQ + (sub * 5 + c) * 4
                key = (min(k, 1), 0 if kind == "z" else 1, t, k)
                if len(dts) == 2: o.append((key, f"v_mfma_f32_16x16x32_bf16 {v4(acc)}, {v4(kv)}, {v4(pq)}, {src}"))
                else: o.append((key, f"v_mfma_f32_16x16x16_bf16 {v4(acc)}, {v2(kv)}, {v2(pq + 2*(dts[0]&1))}, {src}"))
        one("z", hf, den, T)
        for t in num: one("n", t, num[t], T + 4 + 4 * (t - 5 * hf))
        return [x for _, x in sorted(o)]
    def ovalu(sub, hf, T):
        o = []
        for r in range(4): o.append(f"v_rcp_f32 v{T+r}, v{T+r}")
        for tl in range(5):
            t = tl + 5 * hf
            h0 = (16 * tl) // 20; h1 = (16 * tl + 12) // 20
            rc = T + h0; n = T + 4 + 4 * tl
            if h0 != h1:
                g0 = min(g for g in range(4) if (16 * tl + 4 * g) // 20 == h1)
                o.append(f"v_cndmask_b32 v{rc}, v{T+h0}, v{T+h1}, s[{64+2*g0}:{65+2*g0}]")
            for r in range(4): o.append(f"v_mul_f32 v{n+r}, v{n+r}, v{rc}")
            d = PQ + (sub * 5 + t // 2) * 4 + 2 * (t & 1)
            o.append(f"v_cvt_pk_bf16_f32 v{d}, v{n}, v{n+1}")
            o.append(f"v_cvt_pk_bf16_f32 v{d+1}, v{n+2}, v{n+3}")
        return o
    def acc(sub, n): return ACC + (n * NS + sub) * 4
    def g2(k, W, ns=range(8)):
        return [f"v_mfma_f32_16x16x32_bf16 {v4(acc(sub, n))}, {v4(W[n])}, {v4(PQ + (sub*5+k)*4)}, {'0' if k == 0 else v4(acc(sub, n))}" for n in ns for sub in range(NS) if not (cfg.x_ns2 and sub == 2 and n % 2)]
    units = [(s_, h) for h in range(2) for s_ in range(2 if cfg.x_ns2 else NS)]
    nu = len(units)
    w0, r0 = build_half(0)
    a.extend(w0)
    for g in r0: a.extend(g)
    a("s_mov_b64 exec, -1")
    w1, r1 = build_half(1)
    a.extend(w1)
    r1g = [r1[k] + r1[k + 1] + ["s_mov_b64 exec, -1"] for k in range(0, 18, 2)]
    a.extend(interleave(omf(*units[0], U[0]), r1g, 1, 11))
    stamp(a, 7)
    for u in range(1, nu):
        a.extend(interleave(omf(*units[u], U[u & 1]), ovalu(*units[u - 1], U[(u - 1) & 1]), 2))
        if u == 1: a(f"s_waitcnt lgkmcnt(0)\n s_mov_b32 m0, s55\n s_mov_b32 s63, {135*1280}\n buffer_load_dwordx4 v2, {sq(SRD0)}, s63 offen lds ; tag=K4")
    a.extend(interleave(g2(0, WA), ovalu(*units[nu - 1], U[(nu - 1) & 1]), 2))
    k1 = g2(1, WB)
    a.extend(interleave(k1, wreads(0, WA), 0, 18))
    ad = []
    for gam in range(1, 4):
        ad += [f"s_xor_b32 s52, s{SW}, {gam}", "s_mul_i32 s52, s52, 20480", f"s_add_u32 s52, s52, {(gam-1)*6144}", f"s_add_u32 s52, s52, s{SLB}", f"v_add_u32 v{203+gam}, s52, v5"]
    ad += f"""s_sub_u32 s59, s59, s65
    s_sub_u32 s55, s55, s65
    s_sub_u32 s55, s55, {7*1056}
    v_add_u32 v208, s59, v0
    v_add_u32 v209, s55, v0
    v_bfe_u32 v210, v1, 2, 3
    v_cmp_eq_u32 vcc, 7, v210
    v_mov_b32 v211, 0
    v_mov_b32 v211, 0
    v_cndmask_b32 v208, v208, v209, vcc
    v_add_u32 v207, s65, v5
    s_add_u32 s53, s65, 18432
    v_and_b32 v12, 15, v1
    v_mul_u32_u24 v12, 80, v12
    v_lshrrev_b32 v3, 4, v1
    v_lshl_add_u32 v12, v3, 3, v12
    v_add_u32 v12, s53, v12
    v_lshrrev_b32 v3, 2, v1
    v_and_b32 v4, 3, v1
    v_lshlrev_b32 v4, 4, v4
    v_mul_u32_u24 v15, 80, v3
    v_add3_u32 v15, v15, v4, s53
    s_mul_i32 s52, s57, 48
    v_add_u32 v3, s52, v3
    v_mul_u32_u24 v3, 2560, v3
    v_add_u32 v3, v3, v4
    s_lshl_b32 s52, s58, 8
    s_lshl_b32 s54, s{SW}, 6
    s_add_u32 s52, s52, s54
    s_add_u32 s52, s52, 1280""".split("\n")
    a.extend(interleave(interleave(g2(2, WA), wreads(1, WB), 0, 16), ad))
    pre = g2(3, WB, [0, 1, 2, 3])
    a("WAITTAG K4")
    rd4 = [x.replace(", v0 ", ", v208 ") for x in wreads(0, WA)]; rd4 = rd4[4:] + rd4[:4]
    a.extend(interleave(pre, rd4))
    def wr(gam): return [f"ds_write_b128 v207, {v4(ACC + (gam*6+k)*4)} offset:{(gam-1)*6144 + 1024*k}" for k in range(5 if cfg.x_ns2 else 6)]
    a.extend(g2(4, WA, [2, 3]))
    a.extend(interleave(g2(3, WB, [4, 5]) + g2(4, WA, [4, 5]), wr(1), 2))
    a.extend(interleave(g2(3, WB, [6, 7]) + g2(4, WA, [6, 7]), wr(2), 2))
    a.extend(interleave(g2(4, WA, [0, 1]), wr(3), 2))
    stamp(a, 8)
    bar_arrive(a); bar_wait(a, True)
    R = 16
    order = [n * NS + sub for sub in range(NS) for n in range(2)]
    for k in order:
        for gam in range(3): a(f"ds_read_b128 {v4(R + (k*3+gam)*4)}, v{204+gam} offset:{1024*k}")
    for k in order:
        n, sub = k // NS, k % NS
        for r in range(4): a(f"v_add_f32 v{ACC+4*k+r}, v{ACC+4*k+r}, v{R+(k*3)*4+r}")
        for r in range(4): a(f"v_add_f32 v{R+(k*3+1)*4+r}, v{R+(k*3+1)*4+r}, v{R+(k*3+2)*4+r}")
        for r in range(4): a(f"v_add_f32 v{ACC+4*k+r}, v{ACC+4*k+r}, v{R+(k*3+1)*4+r}")
        a(f"v_cvt_pk_bf16_f32 v{140+2*k}, v{ACC+4*k}, v{ACC+4*k+1}\n v_cvt_pk_bf16_f32 v{141+2*k}, v{ACC+4*k+2}, v{ACC+4*k+3}")
        a(f"ds_write_b64 v12, {v2(140+2*k)} offset:{32*n}")
        if n == 1:
            a(f"ds_read_b128 {v4(160+4*sub)}, v15")
            if sub > 0:
                a(f"buffer_store_dwordx4 {v4(160+4*(sub-1))}, v3, {sq(SRD1)}, s52 offen{OSC()}\n s_add_u32 s52, s52, {16*2560}")
    a(f"buffer_store_dwordx4 {v4(160+4*(NS-1))}, v3, {sq(SRD1)}, s52 offen{OSC()}")

def OSC(k=None): return ["", " sc1", " nt", " sc0 sc1"][cfg.osc if k is None else k]

def kd(name):
    return f""".p2align 6
.amdhsa_kernel {name}
  .amdhsa_next_free_vgpr 256
  .amdhsa_next_free_sgpr 102
  .amdhsa_accum_offset 256
  .amdhsa_group_segment_fixed_size 0
  .amdhsa_kernarg_size 96
  .amdhsa_user_sgpr_count 2
  .amdhsa_user_sgpr_kernarg_segment_ptr 1
  .amdhsa_system_sgpr_workgroup_id_x 1
  .amdhsa_float_denorm_mode_32 3
.end_amdhsa_kernel"""

def head(name): return f".globl {name}\n.p2align 8\n.type {name},@function"

def pblock(a):
    a.label("L_P")
    if cfg.zp:
        a(f"s_cmp_lg_u32 s{SW8}, 1\n s_cbranch_scc1 L_ZW\n s_cmp_ge_u32 s2, {192 + NZERO}\n s_cbranch_scc1 L_ZW")
        zero_wave(a)
    role_prep(a)

def build():
    k = KN + "_kernel"
    a = Asm()
    a(head(k)); prologue(a, k, 256)
    if cfg.pfirst == 1:
        a("s_cmp_lt_u32 s2, 192\n s_cbranch_scc1 L_G"); pblock(a); a.label("L_G")
    else: a("s_cmp_ge_u32 s2, 192\n s_cbranch_scc1 L_P")
    g_ids(a)
    a(f"s_cmp_eq_u32 s{SGRP}, 0\n s_cbranch_scc1 L_CONS")
    tag(a, 7)
    role_loader(a)

    if cfg.qswap: a("s_cmp_ge_u32 s2, 168\n s_cbranch_scc1 L_B2")
    a("s_cmp_ge_u32 s2, 128\n s_cbranch_scc1 L_CONV\n s_branch L_B2")
    if cfg.pfirst == 2: pblock(a)
    a.label("L_CONS")
    if not cfg.zp:
        a(f"s_cmp_lg_u32 s{SW}, 0\n s_cbranch_scc1 L_ZW\n s_cmp_ge_u32 s2, {NZERO}\n s_cbranch_scc1 L_ZW")
        zero_wave(a)
    if not cfg.pfe:
        a(f"s_cmp_lg_u32 s{SW}, 3\n s_cbranch_scc1 L_CONS1")
        init_wave(a, "g")
        a.label("L_CONS1")
    a(f"s_setprio {cfg.cprio}")
    args_ready(a)
    g_setup2(a)
    a("s_cmp_ge_u32 s58, 8\n s_cbranch_scc1 L_Q")
    tag(a, 1); role_kv(a)
    a("s_branch L_FIN")
    a.label("L_Q"); tag(a, 2); role_q(a)
    if cfg.qearly:
        a("s_cmp_lt_u32 s2, 168\n s_cbranch_scc1 L_FG0"); tag(a, 5); a("v_mov_b32 v2, v208\n s_branch L_B2Q"); a.label("L_FG0")
    elif cfg.qswap: a("v_mov_b32 v12, 0\n s_cmp_ge_u32 s2, 168\n s_cbranch_scc1 L_CONV2")
    else: a("s_cmp_ge_u32 s2, 168\n s_cbranch_scc1 L_B2")
    fin_g0(a)
    if not cfg.pfirst: pblock(a)
    a.label("L_CONV"); role_conv(a)
    a("s_cmp_ge_u32 s56, 10\n s_cbranch_scc1 L_FIN")
    a.label("L_FINR")
    tag(a, 8); role_fin(a)
    if cfg.enc == 89: a("s_waitcnt vmcnt(0)"); stamp(a, 9)
    a("s_branch L_FIN")
    a.label("L_B2")
    a("""s_lshr_b32 s53, s2, 3
    s_sub_u32 s54, s53, 5
    s_cmp_lt_u32 s53, 16
    s_cselect_b32 s53, s53, s54
    s_and_b32 s56, s2, 7
    s_mul_i32 s56, s56, 27
    s_add_u32 s56, s56, s53
    s_cmp_ge_u32 s56, 215
    s_cbranch_scc1 L_FIN""")
    tag(a, 5); role_b2(a)
    if cfg.enc == 59: a("s_waitcnt vmcnt(0)"); stamp(a, 9)
    a.label("L_FIN"); stamps_out(a)
    if cfg.enc:
        a("s_waitcnt vmcnt(0) lgkmcnt(0)")
        a.label("L_SPIN")
        a("s_sleep 1\n s_memrealtime s[94:95]\n s_waitcnt lgkmcnt(0)\n s_sub_u32 s94, s94, s96\n s_cmp_lt_u32 s94, 2500\n s_cbranch_scc1 L_SPIN")
    a.label("L_END"); a("s_endpgm")
    launch = [f"; @launch grid=(256,1,1) block=(512,1,1) lds={LDS_BYTES}"]
    return launch, a, [k]

HDR = """; Fused H3 SSM-conv block + linear-attention block, one persistent launch: 256 workgroups x 8 waves, one per CU.
; generated by dev/gen.py"""
def emit(path, launch, a, kernels, verbose=False):
    body = fix_hazards(insert_waits(a.lines), verbose)
    if cfg.al:
        body, n1, n2 = align8(body, cfg.al)
        if verbose: print("align: promoted", n1, "nops", n2)
    out = HDR.split("\n") + list(launch) + ['.amdgcn_target "amdgcn-amd-amdhsa--gfx950"', ".text", ".p2align 8", "L_CODE_BEGIN:"]
    out += [(l if l.endswith(":") or l.startswith(".") else "    " + l) for l in body]
    out += ["L_CODE_END:", "    s_endpgm", '.section .rodata,"a"'] + [kd(k) for k in kernels]
    open(path, "w").write("\n".join(out) + "\n")

if __name__ == "__main__":
    cfg.stamps = "stamps" in sys.argv[2:]
    cfg.rot = "norot" not in sys.argv[2:]
    for x in sys.argv[2:]:
        if "=" in x: setattr(cfg, x.split("=")[0], int(x.split("=")[1]))
    emit(sys.argv[1], *build(), verbose="-v" in sys.argv)
```
